```python
import torch

def _softmax(x, axis=-1):
    return torch.softmax(x, dim=axis)
def _gelu(x):
    return torch.nn.functional.gelu(x, approximate="tanh")
def _silu(x):
    return torch.nn.functional.silu(x)
def _sigmoid(x):
    return torch.sigmoid(x)
def _layernorm(x, axis=-1, eps=1e-5):
    m = x.mean(dim=axis, keepdim=True)
    v = x.var(dim=axis, keepdim=True, unbiased=False)
    return (x - m) / torch.sqrt(v + eps)
def _scatter_add(tgt, idx, src, axis=0):
    return tgt.clone().index_add_(axis, idx, src)
def _segment_sum(src, seg, n):
    out = torch.zeros((n,) + src.shape[1:], dtype=src.dtype)
    return out.index_add_(0, seg, src)
def _pad(x, pw):
    flat = tuple(v for pair in reversed(pw) for v in pair)
    return torch.nn.functional.pad(x, flat)

kernel_name = 'recurrent_scan__ssm_conv_h3__mixer_s_mlp__prompt'

def setup_inputs():

    _w = (lambda a: (lambda t: t.to(torch.bfloat16) if t.is_floating_point() else t)(torch.as_tensor(a)))
    def _A_setup():
        B, S, D = 1, 2048, 576
        ks = 4
        return {
            "q": _w((lambda *s: torch.randn(*s, dtype=torch.bfloat16) * 0.05)(B, S, D)),
            "k": _w((lambda *s: torch.randn(*s, dtype=torch.bfloat16) * 0.2)(B, S, D)),
            "v": _w((lambda *s: torch.randn(*s, dtype=torch.bfloat16) * 0.2)(B, S, D)),
            "shift_k": _w((lambda *s: torch.randn(*s, dtype=torch.bfloat16) * 0.2)(D, ks) * 0.5),
            "ssm_k": _w((lambda *s: torch.randn(*s, dtype=torch.bfloat16) * 0.2)(D, S) * (1.0 / S ** 0.5)),
            "ssm_D": _w((lambda *s: torch.randn(*s, dtype=torch.bfloat16) * 0.2)(D)),
        }
    _A_in = _A_setup()

    def _B_setup():
        B, S, D, F = 1, 2048, 576, 4608
        return {
            "x":  _w((lambda *s: torch.randn(*s, dtype=torch.bfloat16) * 0.05)(B, S, D)),
            "w1": _w((lambda *s: torch.randn(*s, dtype=torch.bfloat16) * 3.2)(D, D) * (D ** -0.5)),
            "w2": _w((lambda *s: torch.randn(*s, dtype=torch.bfloat16) * 3.2)(D, D) * (D ** -0.5)),
            "w3": _w((lambda *s: torch.randn(*s, dtype=torch.bfloat16) * 3.2)(D, F) * (D ** -0.5)),
            "w4": _w((lambda *s: torch.randn(*s, dtype=torch.bfloat16) * 3.2)(F, D) * (F ** -0.5)),
        }
    _B_in = _B_setup()

    return {
        "A_q": _A_in["q"],
        "A_k": _A_in["k"],
        "A_v": _A_in["v"],
        "A_shift_k": _A_in["shift_k"],
        "A_ssm_k": _A_in["ssm_k"],
        "A_ssm_D": _A_in["ssm_D"],
        "B_x": _B_in["x"],
        "B_w1": _B_in["w1"],
        "B_w2": _B_in["w2"],
        "B_w3": _B_in["w3"],
        "B_w4": _B_in["w4"],
    }

def reference(A_q, A_k, A_v, A_shift_k, A_ssm_k, A_ssm_D, B_x, B_w1, B_w2, B_w3, B_w4):
    def _A_ref(q, k, v, shift_k, ssm_k, ssm_D):
        B, S, D = q.shape
        ks = shift_k.shape[-1]
        k_pad = _pad(k, ((0, 0), (ks - 1, 0), (0, 0)))
        k_shift = torch.zeros_like(k)
        for t in range(ks):
            k_shift = k_shift + k_pad[:, t:t + S, :] * shift_k[:, ks - 1 - t][None, None, :]
        kv = k_shift * v
        L = 2 * S
        kv_pad = _pad(kv, ((0, 0), (0, S), (0, 0)))
        kf_pad = _pad(ssm_k, ((0, 0), (0, S)))
        kv_f = (lambda x, axes=(-2,-1): torch.fft.rfft2(x.float(), dim=axes))(kv_pad[:, None, :, :], axes=(1, 2))
        kf_f = (lambda x, axes=(-2,-1): torch.fft.rfft2(x.float(), dim=axes))(kf_pad[:, None, :], axes=(1, 2))
        kf_f = (lambda x, *d: x.permute(*d))(kf_f, 1, 2, 0)
        y_f = kv_f * kf_f[None, :, :, :]
        y = (lambda x, s, axes=(-2,-1): torch.fft.irfft2(x, s=s, dim=axes).to(torch.bfloat16))(y_f, (1, L), axes=(1, 2))[:, 0, :S, :]
        y = y + kv * ssm_D[None, None, :]
        return q * y

    def _B_ref(x, w1, w2, w3, w4):
        B, S, D = x.shape
        h = _gelu(_layernorm(x, axis=-1) @ w1)
        c = D // 4
        g0 = _pad(h[:, :, 0*c:1*c], ((0, 0), (1, 0), (0, 0)))[:, :S, :]
        g1 = _pad(h[:, :, 1*c:2*c], ((0, 0), (0, 1), (0, 0)))[:, 1:, :]
        g2 = _pad(h[:, :, 2*c:3*c], ((0, 0), (2, 0), (0, 0)))[:, :S, :]
        g3 = _pad(h[:, :, 3*c:   ], ((0, 0), (0, 2), (0, 0)))[:, 2:, :]
        hs = torch.concatenate([g0, g1, g2, g3], axis=-1) @ w2
        x1 = x + hs
        h2 = _gelu(_layernorm(x1, axis=-1) @ w3) @ w4
        return x1 + h2

    x = A_q
    xn = _layernorm(x, axis=-1)
    s = _A_ref(xn, A_k, A_v, A_shift_k, A_ssm_k, A_ssm_D)
    g = _silu(_B_ref(xn, B_w1, B_w2, B_w3, B_w4))
    return x + s * g
```

```python
S, D, F = 2048, 576, 4608
ACT = S * D * 2
H_OFF    = 0x0000000
XN_OFF   = 0x0240000
X1_OFF   = 0x0480000
KV_OFF   = 0x06C0000
KV_PITCH = 4160
Y_OFF    = 0x0940000
W2T_OFF  = 0x0B80000
W2M_OFF  = 0x0C30000
SS_OFF   = 0x0C40000
MEAN_OFF = 0x0C50000
R_OFF    = 0x0C54000
FLAG_OFF = 0x0C60000
W3T_OFF  = 0x0D00000
W4T_OFF  = 0x1210000
PART_OFF = 0x1720000
WS_BYTES = 0x2920000
WSLICE = 18 * 36 * 1024

EPS = 1e-5
import struct
def f2u(x): return struct.unpack("<I", struct.pack("<f", x))[0]
def fh(x): return "0x%08x" % f2u(x)

def v(n, c=1): return f"v{n}" if c == 1 else f"v[{n}:{n+c-1}]"
def s(n, c=1): return f"s{n}" if c == 1 else f"s[{n}:{n+c-1}]"

P_Q, P_K, P_V, P_SHK, P_SSMK, P_SSMD, P_BX, P_W1, P_W2, P_W3, P_W4, P_OUT, P_DBG, P_WS = [16 + 2 * i for i in range(14)]

class Asm:
    def __init__(self):
        self.L = []
        self.n = 0
    def __call__(self, t):
        for line in t.split("\n"):
            line = line.strip()
            if line:
                self.L.append(("" if line.endswith(":") or line.startswith(".") else "  ") + line)
    def lab(self, p="L"):
        self.n += 1
        return f"{p}_{self.n}"
    def text(self): return "\n".join(self.L) + "\n"
    def kernargs(self):
        self("s_load_dwordx16 s[16:31], s[0:1], 0")
        self("s_load_dwordx8 s[32:39], s[0:1], 64")
        self("s_load_dwordx4 s[40:43], s[0:1], 96")
    def srd(self, d, p, nbytes):
        self(f"s_mov_b32 s{d}, s{p}\ns_mov_b32 s{d+1}, s{p+1}\ns_mov_b32 s{d+2}, {nbytes}\ns_mov_b32 s{d+3}, 0x20000")
    def mfma(self, d, a, b, c=None):
        cc = v(d, 4) if c is None else c
        self(f"v_mfma_f32_16x16x32_bf16 {v(d,4)}, {v(a,4)}, {v(b,4)}, {cc}")
    def nop(self, n):
        while n > 0:
            k = min(n, 16)
            self(f"s_nop {k-1}")
            n -= k
    def prefetch_code(self, endlabel, vtmp, vdst, stmp):
        l = self.lab("PF")
        self(f"s_getpc_b64 {s(stmp,2)}")
        self(f"{l}:")
        self(f"v_lshlrev_b32 {v(vtmp)}, 7, v0")
        self(f"v_min_u32 {v(vtmp)}, {endlabel}-{l}-4, {v(vtmp)}")
        self(f"global_load_dword {v(vdst)}, {v(vtmp)}, {s(stmp,2)}")
    def subbar(self, vaddr, vtmp, stmp, n, off=0):
        l = self.lab("SB")
        self("s_mov_b64 exec, 1")
        self(f"v_mov_b32 {v(vtmp)}, 1")
        self(f"ds_add_u32 {v(vaddr)}, {v(vtmp)} offset:{off}")
        self("s_mov_b64 exec, -1")
        self(f"{l}:")
        self(f"ds_read_b32 {v(vtmp)}, {v(vaddr)} offset:{off}")
        self("s_waitcnt lgkmcnt(0)")
        self(f"v_readfirstlane_b32 s{stmp}, {v(vtmp)}")
        self(f"s_cmp_ge_u32 s{stmp}, {n}")
        self(f"s_cbranch_scc0 {l}")

def desc(name, nv, ns=96):
    nv = (nv + 7) // 8 * 8
    return f""".p2align 6
.amdhsa_kernel {name}
  .amdhsa_next_free_vgpr {nv}
  .amdhsa_next_free_sgpr {ns}
  .amdhsa_accum_offset {min(nv, 256)}
  .amdhsa_group_segment_fixed_size 0
  .amdhsa_kernarg_size 112
  .amdhsa_user_sgpr_count 2
  .amdhsa_user_sgpr_kernarg_segment_ptr 1
  .amdhsa_system_sgpr_workgroup_id_x 1
  .amdhsa_float_denorm_mode_32 3
.end_amdhsa_kernel
"""

GC0 = -2.0 * 0.7978845608028654 * 1.4426950408889634
GC1 = GC0 * 0.044715
LOG2E = 1.4426950408889634
```

```python
from common import *

KA_LDS = 147584
W1IMG, XR, PT, CNT = 0, 110592, 135168, 147456

def gelu_vals(a, regs, tmps, k0, k1, post=None):
    n = len(regs)
    K0 = k0 if isinstance(k0, list) else [k0] * n
    K1 = k1 if isinstance(k1, list) else [k1] * n
    nt = len(tmps)
    for b in range(0, n, nt):
        idx = list(range(b, min(b + nt, n)))
        for i in idx: a(f"v_mul_f32 {v(tmps[i-b])}, {v(regs[i])}, {v(regs[i])}")
        for i in idx: a(f"v_fma_f32 {v(tmps[i-b])}, {v(tmps[i-b])}, {K1[i]}, {K0[i]}")
        for i in idx: a(f"v_mul_f32 {v(tmps[i-b])}, {v(tmps[i-b])}, {v(regs[i])}")
        for i in idx: a(f"v_exp_f32 {v(tmps[i-b])}, {v(tmps[i-b])}")
        for i in idx: a(f"v_add_f32 {v(tmps[i-b])}, 1.0, {v(tmps[i-b])}")
        for i in idx: a(f"v_rcp_f32 {v(tmps[i-b])}, {v(tmps[i-b])}")
        for i in idx: a(f"v_mul_f32 {v(regs[i])}, {v(tmps[i-b])}, {v(regs[i])}")
        if post: post(idx)

def gen_gemm1(a):
    X, ACC, WF = 32, 104, 128
    a("s_mul_i32 s6, s5, 43\ns_lshr_b32 s6, s6, 8")
    a("s_mul_i32 s7, s6, 6\ns_sub_u32 s7, s5, s7")
    a("s_lshl_b32 s6, s6, 3\ns_add_u32 s6, s6, s4")
    a("s_lshl_b32 s8, s6, 2\ns_add_u32 s8, s8, s3")
    a("s_mul_i32 s9, s8, 18432")
    a("v_lshrrev_b32 v2, 2, v1")
    a("v_and_b32 v3, 3, v1")
    a("v_mul_u32_u24 v4, 1152, v2")
    a("v_lshl_add_u32 v5, v3, 4, v4")
    a("v_bfe_u32 v6, v1, 4, 1\nv_lshlrev_b32 v6, 1, v6\nv_xor_b32 v6, v6, v3")
    a("v_lshl_add_u32 v6, v6, 4, v4")
    a("s_waitcnt lgkmcnt(0)")
    a.srd(44, P_Q, ACT)
    a.srd(48, P_W1, D * D * 2)
    a.srd(56, P_WS, WS_BYTES)
    for ks in range(18):
        a(f"buffer_load_dwordx4 {v(X+4*ks,4)}, v5, s[44:47], s9 offen offset:{ks*64}")
    a("s_mul_i32 s10, s3, 18432\ns_mul_i32 s11, s7, 192\ns_add_u32 s10, s10, s11")
    a(f"s_mul_i32 s11, s3, 3072")
    a("s_mov_b32 s12, 9")
    l = a.lab("W1")
    a(f"{l}:")
    a("s_mov_b32 m0, s11")
    a("s_add_u32 s11, s11, 12288")
    a("buffer_load_dwordx4 v6, s[48:51], s10 offen lds")
    a("s_add_u32 m0, m0, 960\ns_nop 0")
    a("buffer_load_dwordx4 v6, s[48:51], s10 offen offset:64 lds")
    a("s_add_u32 m0, m0, 960\ns_nop 0")
    a("buffer_load_dwordx4 v6, s[48:51], s10 offen offset:128 lds")
    a("s_add_u32 s10, s10, 73728")
    a("s_sub_u32 s12, s12, 1\ns_cmp_lg_u32 s12, 0")
    a(f"s_cbranch_scc1 {l}")
    a(f"s_mul_i32 s13, s3, 6144\ns_add_u32 s13, s13, {XR}")
    a("v_and_b32 v7, 1, v3\nv_lshlrev_b32 v7, 9, v7")
    a("v_lshl_add_u32 v7, v2, 4, v7")
    a("v_lshrrev_b32 v8, 1, v3\nv_lshl_add_u32 v7, v8, 3, v7")
    a("v_add_u32 v7, s13, v7")
    a("v_add_u32 v8, 2048, v7\nv_add_u32 v9, 4096, v7")
    a("v_lshlrev_b32 v10, 4, v1")
    a("v_add_u32 v11, s13, v10")
    a("v_lshlrev_b32 v12, 6, v2")
    a("v_bfe_u32 v13, v1, 4, 1\nv_lshl_add_u32 v12, v13, 5, v12")
    a("v_lshl_add_u32 v12, v3, 3, v12")
    a("v_xor_b32 v13, 32, v12")
    a("v_mov_b32 v14, 0x3f803f80")
    for r in (16, 17, 18, 19): a(f"v_mov_b32 v{r}, 0")
    for ks in range(18):
        if ks % 3 == 0: a(f"s_waitcnt vmcnt({27 + 15 - ks})")
        for d in range(4):
            r = X + 4 * ks + d
            a(f"v_dot2c_f32_bf16 v{16+(d&1)}, v{r}, v14")
            a(f"v_dot2c_f32_bf16 v{18+(d&1)}, v{r}, v{r}")
    a("s_nop 2")
    a("v_add_f32 v16, v16, v17\nv_add_f32 v18, v18, v19\ns_nop 1")
    for qp in ("[1,0,3,2]", "[2,3,0,1]"):
        a(f"v_add_f32_dpp v16, v16, v16 quad_perm:{qp} row_mask:0xf bank_mask:0xf")
        a(f"v_add_f32_dpp v18, v18, v18 quad_perm:{qp} row_mask:0xf bank_mask:0xf")
        a("s_nop 1")
    a(f"v_mul_f32 v16, {fh(1.0/D)}, v16")
    a(f"v_mul_f32 v18, {fh(1.0/D)}, v18")
    a("v_fma_f32 v18, -v16, v16, v18")
    a("v_max_f32 v18, 0, v18")
    a(f"v_add_f32 v19, {fh(EPS)}, v18")
    a("v_rsq_f32 v20, v19")
    a("s_nop 0")
    a("v_mul_f32 v19, v20, v20")
    a(f"v_fmaak_f32 v19, v19, v18, {fh(EPS)}")
    a("v_rsq_f32 v19, v19")
    a("v_mul_f32 v22, v16, v20")
    a("v_sub_f32 v22, 0, v22")
    a("v_and_b32 v21, 15, v1\nv_lshlrev_b32 v21, 4, v21")
    a("ds_bpermute_b32 v15, v21, v19")
    a("s_lshr_b32 s14, s7, 1")
    a("s_and_b32 s15, s7, 1\ns_mul_i32 s15, s15, 3072")
    a("v_add_u32 v23, s15, v11")
    for rnd in range(3):
        for k in range(6):
            ks = rnd * 6 + k
            for d in range(4):
                r = X + 4 * ks + d
                t = 24 + 2 * (d & 1)
                a(f"v_lshlrev_b32 v{t}, 16, v{r}")
                a(f"v_and_b32 v{t+1}, 0xffff0000, v{r}")
                a(f"v_pk_fma_f32 {v(t,2)}, {v(t,2)}, v[20:21], v[22:23] op_sel_hi:[1,0,0]")
                a(f"v_cvt_pk_bf16_f32 v{r}, v{t}, v{t+1}")
            a(f"ds_write2_b64 v{7+k//2}, {v(X+4*ks,2)}, {v(X+4*ks+2,2)} offset0:{(k&1)*128} offset1:{(k&1)*128+32}")
        for k in range(6):
            a(f"ds_read_b128 {v(X+4*(rnd*6+k),4)}, v11 offset:{k*1024}")
        l = a.lab("XN")
        a(f"s_cmp_lg_u32 s14, {rnd}\ns_cbranch_scc1 {l}")
        for k in range(3):
            a(f"ds_read_b128 {v(152+4*k,4)}, v23 offset:{k*1024}")
        a(f"{l}:")
    a("s_mul_i32 s15, s7, 3072\ns_add_u32 s15, s15, s9")
    a(f"s_add_u32 s60, s15, {XN_OFF}")
    a("s_waitcnt lgkmcnt(0)")
    for k in range(3):
        a(f"buffer_store_dwordx4 {v(152+4*k,4)}, v10, s[56:59], s60 offen offset:{k*1024}")
    a("s_waitcnt vmcnt(3)")
    a(f"v_mov_b32 v24, {CNT}")
    a.subbar(24, 25, 61, 4)
    def rd(ks, i):
        base = 12 + (i & 1)
        o = ((2 * ks) * 3072 + (i >> 1) * 1024) - (55296 if ks >= 9 else 0)
        a(f"ds_read_b64_tr_b16 {v(WF+4*i,2)}, v{base} offset:{o}")
        a(f"ds_read_b64_tr_b16 {v(WF+4*i+2,2)}, v{base} offset:{o+3072}")
    for i in range(6): rd(0, i)
    for ks in range(18):
        if ks == 8:
            a("v_add_u32 v12, 55296, v12\nv_add_u32 v13, 55296, v13")
        for i in range(6):
            if i % 2 == 0:
                a(f"s_waitcnt lgkmcnt({8 if ks < 17 else 8 - 2*i})")
            a.mfma(ACC + 4 * i, WF + 4 * i, X + 4 * ks, "0" if ks == 0 else None)
            if ks < 17: rd(ks + 1, i)
    a("v_and_b32 v2, 15, v1")
    a("s_lshl_b32 s10, s8, 4")
    a("v_add_u32 v2, s10, v2")
    a("v_and_b32 v3, 48, v1\nv_lshlrev_b32 v3, 4, v3")
    a(f"s_mul_i32 s15, s7, 3072\ns_add_u32 s15, s15, {H_OFF}")
    a("s_movk_i32 s13, 18432")
    for half in range(2):
        a(f"s_mul_i32 s10, s7, 6\ns_add_u32 s10, s10, {3*half}\ns_mul_i32 s10, s10, 57\ns_lshr_b32 s10, s10, 9")
        a("s_lshr_b32 s11, s10, 1\ns_add_u32 s11, s11, 1\ns_sub_u32 s12, 0, s11\ns_bitcmp1_b32 s10, 0\ns_cselect_b32 s11, s12, s11")
        a("v_add_u32 v4, s11, v2")
        a(f"v_cmp_gt_u32 vcc, {S}, v4")
        a(f"s_mov_b64 {s(62+2*half,2)}, vcc")
        a("v_bfe_u32 v5, v4, 4, 7")
        a(f"v_mad_u32_u24 v{26+half}, v5, s13, v3")
        a("v_and_b32 v4, 15, v4")
        a(f"v_lshl_add_u32 v{26+half}, v4, 4, v{26+half}")
    a(f"v_mov_b32 v28, {fh(GC0)}\nv_mov_b32 v29, {fh(GC1)}")
    regs = list(range(ACC, ACC + 24))
    for r in regs: a(f"v_mul_f32 v{r}, v{r}, v15")
    gelu_vals(a, regs, list(range(X, X + 12)), "v28", "v29")
    for i in range(12):
        a(f"v_cvt_pk_bf16_f32 v{WF+i}, v{ACC+2*i}, v{ACC+2*i+1}")
    for i in range(12):
        a(f"v_cndmask_b32 v{WF+i}, 0, v{WF+i}, {s(62 + (2 if i >= 6 else 0), 2)}")
    a(f"buffer_store_dwordx4 {v(WF,4)}, v26, s[56:59], s15 offen")
    a(f"buffer_store_dwordx2 {v(WF+4,2)}, v26, s[56:59], s15 offen offset:1024")
    a(f"buffer_store_dwordx2 {v(WF+6,2)}, v27, s[56:59], s15 offen offset:1032")
    a(f"buffer_store_dwordx4 {v(WF+8,4)}, v27, s[56:59], s15 offen offset:2048")
    a("s_endpgm")

def gen_kv(a):
    KR, VR, SH, SP, KU, RES, PK = 32, 76, 108, 124, 132, 156, 172
    a("s_mul_i32 s7, s6, 7282\ns_lshr_b32 s7, s7, 16")
    a("s_mul_i32 s8, s7, 9\ns_sub_u32 s8, s6, s8")
    a("v_and_b32 v2, 7, v1\nv_lshrrev_b32 v3, 3, v1")
    a("s_lshl_b32 s9, s7, 6")
    a("v_lshl_add_u32 v4, v3, 3, s9")
    a("v_mul_u32_u24 v5, 1152, v4")
    a("s_lshl_b32 s10, s8, 7")
    a("v_lshl_add_u32 v5, v2, 4, v5\nv_add_u32 v5, s10, v5")
    a("v_subrev_u32 v6, 3456, v5")
    a("v_cmp_eq_u32 vcc, 0, v4")
    a("v_mov_b32 v7, 0x80000000\ns_mov_b64 s[62:63], vcc")
    a("v_cndmask_b32 v6, v6, v7, vcc")
    a("v_lshlrev_b32 v7, 6, v2\ns_lshl_b32 s11, s8, 9")
    a("s_movk_i32 s12, 4608")
    a("s_waitcnt lgkmcnt(0)")
    a.srd(44, P_K, ACT)
    a.srd(48, P_V, ACT)
    a.srd(52, P_SHK, D * 8)
    a.srd(56, P_WS, WS_BYTES)
    for i in range(4):
        a(f"buffer_load_dwordx4 {v(SH+4*i,4)}, v7, s[52:55], s11 offen offset:{16*i}")
    for j in range(3):
        a(f"buffer_load_dwordx4 {v(KR+4*j,4)}, v6, s[44:47], 0 offen offset:{1152*j}")
    for j in range(8):
        so = "0" if j < 4 else "s12"
        a(f"buffer_load_dwordx4 {v(KR+12+4*j,4)}, v5, s[44:47], {so} offen offset:{1152*(j&3)}")
    for j in range(8):
        so = "0" if j < 4 else "s12"
        a(f"buffer_load_dwordx4 {v(VR+4*j,4)}, v5, s[48:51], {so} offen offset:{1152*(j&3)}")
    a("s_lshl_b32 s13, s8, 6")
    a("v_lshl_add_u32 v8, v2, 3, s13")
    a(f"v_mul_u32_u24 v8, {KV_PITCH}, v8")
    a("v_lshlrev_b32 v9, 1, v4\nv_sub_u32 v8, v8, v9")
    a("v_add_u32 v8, 4080, v8")
    a(f"s_mov_b32 s14, {KV_OFF}")
    a("s_waitcnt vmcnt(0)")
    for q in range(4):
        for d in range(4):
            for h in range(2):
                src = SH + 4 * q + 2 * h + (d >> 1)
                if d & 1: a(f"v_and_b32 v{SP+2*d+h}, 0xffff0000, v{src}")
                else: a(f"v_lshlrev_b32 v{SP+2*d+h}, 16, v{src}")
        for j in range(11):
            a(f"v_lshlrev_b32 v{KU+2*j}, 16, v{KR+4*j+q}")
            a(f"v_and_b32 v{KU+2*j+1}, 0xffff0000, v{KR+4*j+q}")
        for j in range(8):
            a(f"v_pk_mul_f32 {v(RES+2*j,2)}, {v(KU+2*(j+3),2)}, {v(SP,2)}")
        for d in range(1, 4):
            for j in range(8):
                a(f"v_pk_fma_f32 {v(RES+2*j,2)}, {v(KU+2*(j+3-d),2)}, {v(SP+2*d,2)}, {v(RES+2*j,2)}")
        for j in range(8):
            a(f"v_lshlrev_b32 v{KU+2*j}, 16, v{VR+4*j+q}")
            a(f"v_and_b32 v{KU+2*j+1}, 0xffff0000, v{VR+4*j+q}")
        for j in range(8):
            a(f"v_pk_mul_f32 {v(RES+2*j,2)}, {v(RES+2*j,2)}, {v(KU+2*j,2)}")
        p = PK + 8 * q
        for h in range(2):
            for e in range(4):
                a(f"v_cvt_pk_bf16_f32 v{p+4*h+e}, v{RES+2*(7-2*e)+h}, v{RES+2*(6-2*e)+h}")
        for h in range(2):
            a(f"buffer_store_dwordx4 {v(p+4*h,4)}, v8, s[56:59], s14 offen")
            a(f"s_add_u32 s14, s14, {KV_PITCH}")
    l = a.lab("KVZ")
    a("s_mov_b64 exec, s[62:63]")
    a(f"s_cbranch_execz {l}")
    for r in range(4): a(f"v_mov_b32 v{KU+r}, 0")
    a(f"s_mov_b32 s14, {KV_OFF}")
    for i in range(8):
        a(f"buffer_store_dwordx4 {v(KU,4)}, v8, s[56:59], s14 offen offset:16")
        a(f"buffer_store_dwordx4 {v(KU,4)}, v8, s[56:59], s14 offen offset:32")
        a(f"s_add_u32 s14, s14, {KV_PITCH}")
    a(f"{l}:")
    a("s_endpgm")

def gen_pretile(a, stflags=""):
    R = 32
    a("v_lshrrev_b32 v2, 3, v1\nv_and_b32 v3, 7, v1")
    a("v_mul_lo_u32 v4, v2, s7")
    a("v_lshl_add_u32 v4, v3, 4, v4")
    a("s_lshl_b32 s10, s7, 3")
    for i in range(3):
        if i: a("s_sub_u32 s6, s6, s11")
        for rg in range(4):
            a(f"buffer_load_dwordx4 {v(R+16*i+4*rg,4)}, v4, s[44:47], s6 offen offset:{128*i}")
            if rg < 3: a("s_add_u32 s6, s6, s10")
        if i == 0: a("s_mul_i32 s11, s10, 3")
    a("v_lshlrev_b32 v5, 4, v1\nv_add_u32 v6, s9, v5")
    a("v_lshrrev_b32 v7, 2, v1\nv_lshlrev_b32 v7, 7, v7\nv_and_b32 v8, 3, v1\nv_lshl_add_u32 v7, v8, 3, v7\nv_add_u32 v7, s9, v7")
    for i in range(3):
        a(f"s_waitcnt vmcnt({8})")
        for rg in range(4):
            a(f"ds_write_b128 v6, {v(R+16*i+4*rg,4)} offset:{1024*rg}")
        for tn in range(4):
            a(f"ds_read_b64_tr_b16 {v(R+48+16*i+4*tn,2)}, v7 offset:{tn*32}")
            a(f"ds_read_b64_tr_b16 {v(R+48+16*i+4*tn+2,2)}, v7 offset:{2048+tn*32}")
        a("s_waitcnt lgkmcnt(0)")
        for tn in range(4):
            a(f"buffer_store_dwordx4 {v(R+48+16*i+4*tn,4)}, v5, s[56:59], s8 offen offset:{tn*1024} {stflags}")
        a("s_add_u32 s8, s8, 4096")

def gen_meantile(a):
    R = 32
    a("v_and_b32 v2, 15, v1\nv_lshrrev_b32 v3, 4, v1")
    a("v_mul_u32_u24 v4, 1152, v2\nv_lshl_add_u32 v4, v3, 4, v4")
    a("s_mul_i32 s7, s6, 36864\ns_add_u32 s8, s7, 18432")
    a("s_waitcnt lgkmcnt(0)")
    a.srd(44, P_W2, D * D * 2)
    a.srd(56, P_WS, WS_BYTES)
    for jh in range(2):
        for i in range(18):
            a(f"buffer_load_dwordx4 {v(R+72*jh+4*i,4)}, v4, s[44:47], s{7+jh} offen offset:{64*i}")
    for r in range(4): a(f"v_mov_b32 v{8+r}, 0x3f803f80")
    a("s_waitcnt vmcnt(0)")
    for i in range(18):
        for jh in range(2):
            a.mfma(12 + 4 * jh, R + 72 * jh + 4 * i, 8, "0" if i == 0 else None)
    a("v_and_b32 v5, 1, v1\nv_cmp_eq_u32 vcc, 1, v5")
    a.nop(8)
    for r in range(8): a(f"v_mul_f32 v{12+r}, {fh(1.0/D)}, v{12+r}")
    for e in range(4): a(f"v_cvt_pk_bf16_f32 v{20+e}, v{12+2*e}, v{13+2*e}")
    for e in range(4):
        a(f"v_lshlrev_b32 v24, 16, v{20+e}\nv_and_b32 v25, 0xffff0000, v{20+e}")
        a(f"v_sub_f32 v24, v{12+2*e}, v24\nv_sub_f32 v25, v{13+2*e}, v25")
        a(f"v_cvt_pk_bf16_f32 v24, v24, v25")
        a(f"v_cndmask_b32 v{20+e}, v{20+e}, v24, vcc")
    a(f"s_lshl_b32 s7, s6, 10\ns_add_u32 s7, s7, {W2M_OFF}")
    a("v_lshlrev_b32 v5, 4, v1")
    a("buffer_store_dwordx4 v[20:23], v5, s[56:59], s7 offen")
    a("s_endpgm")

def gen_ka(a, endlabel):
    a(".p2align 8\nka_kernel:")
    a("s_cmp_ge_u32 s2, 256\ns_cbranch_scc1 KA_end")
    a.kernargs()
    a.prefetch_code(endlabel, 2, 31, 6)
    a("v_lshrrev_b32 v2, 6, v0\nv_and_b32 v1, 63, v0")
    a("v_readfirstlane_b32 s3, v2")
    a(f"v_mov_b32 v3, {CNT}\nv_mov_b32 v4, 0")
    a("ds_write_b32 v3, v4")
    a("s_and_b32 s4, s2, 7\ns_lshr_b32 s5, s2, 3")
    a("s_waitcnt lgkmcnt(0)")
    a("s_barrier")
    a("s_cmp_eq_u32 s3, 4\ns_cbranch_scc1 KA_kv0")
    a("s_cmp_gt_u32 s3, 4\ns_cbranch_scc1 KA_pt0")
    a("s_cmp_ge_u32 s5, 24\ns_cbranch_scc1 KA_free")
    gen_gemm1(a)
    a("KA_free:")
    a("s_cmp_lg_u32 s3, 0\ns_cbranch_scc1 KA_pt1")
    a("s_cmp_ge_u32 s5, 28\ns_cbranch_scc1 KA_mean")
    a("s_add_u32 s5, s5, 8")
    a("KA_kv0:")
    a("s_mul_i32 s6, s4, 36\ns_add_u32 s6, s6, s5")
    gen_kv(a)
    a("KA_mean:")
    a("s_cmp_eq_u32 s5, 31\ns_cbranch_scc1 KA_end")
    a("s_mul_i32 s6, s4, 3\ns_add_u32 s6, s6, s5\ns_sub_u32 s6, s6, 28")
    a("s_cmp_ge_u32 s6, 18\ns_cbranch_scc1 KA_end")
    gen_meantile(a)
    a("KA_pt1:")
    a("s_mul_i32 s12, s5, 3\ns_add_u32 s12, s12, s3\ns_add_u32 s12, s12, 23")
    a("s_lshl_b32 s9, s3, 12")
    a("s_branch KA_pt")
    a("KA_pt0:")
    a("s_mul_i32 s12, s5, 3\ns_add_u32 s12, s12, s3\ns_sub_u32 s12, s12, 5")
    a(f"s_lshl_b32 s9, s3, 12\ns_add_u32 s9, s9, {PT - 5*4096}")
    a("KA_pt:")
    a.srd(56, P_WS, WS_BYTES)
    a("s_cmp_ge_u32 s12, 108\ns_cbranch_scc1 KA_pw2")
    a("s_cmp_ge_u32 s12, 54\ns_cbranch_scc1 KA_pw4")
    a.srd(44, P_W3, D * F * 2)
    a("s_mul_i32 s13, s12, 86\ns_lshr_b32 s13, s13, 8")
    a("s_mul_i32 s14, s13, 3\ns_sub_u32 s14, s12, s14")
    a("s_mul_i32 s6, s13, 294912\ns_mul_i32 s14, s14, 384\ns_add_u32 s6, s6, s14\ns_mul_i32 s14, s4, 1152\ns_add_u32 s6, s6, s14")
    a("s_movk_i32 s7, 9216")
    a(f"s_mul_i32 s8, s4, {WSLICE}\ns_add_u32 s8, s8, {W3T_OFF}")
    a("s_branch KA_ptgo")
    a("KA_pw4:")
    a.srd(44, P_W4, D * F * 2)
    a("s_sub_u32 s12, s12, 54")
    a(f"s_mul_i32 s15, s4, {WSLICE}")
    a(f"s_add_u32 s8, s15, {W4T_OFF}")
    a("s_branch KA_pw24")
    a("KA_pw2:")
    a.srd(44, P_W2, D * D * 2)
    a("s_sub_u32 s12, s12, 108\ns_cmp_ge_u32 s12, 7\ns_cbranch_scc1 KA_end")
    a("s_mul_i32 s13, s4, 7\ns_add_u32 s12, s12, s13\ns_cmp_ge_u32 s12, 54\ns_cbranch_scc1 KA_end")
    a(f"s_mov_b32 s15, 0\ns_mov_b32 s8, {W2T_OFF}")
    a("KA_pw24:")
    a("s_mul_i32 s13, s12, 86\ns_lshr_b32 s13, s13, 8")
    a("s_mul_i32 s14, s13, 3\ns_sub_u32 s14, s12, s14")
    a("s_mul_i32 s6, s13, 36864\ns_mul_i32 s14, s14, 384\ns_add_u32 s6, s6, s14\ns_add_u32 s6, s6, s15")
    a("s_movk_i32 s7, 1152")
    a("KA_ptgo:")
    a("s_mul_i32 s13, s12, 12288\ns_add_u32 s8, s8, s13")
    gen_pretile(a)
    a("KA_end:")
    a("s_endpgm")
```

```python
from common import *
from ka import gelu_vals

G2_M, G2_P, CV, CV_SZ = 0, 18432, 92160, 21248
G2_CNT = CV + 3 * CV_SZ
G2_LDS = G2_CNT + 64

def gen_gemm2(a):
    HB, XN, AR, ACC = 32, 104, 116, 148
    a("s_lshl_b32 s8, s5, 2\ns_add_u32 s8, s8, s3")
    a("s_mul_i32 s9, s8, 18432")
    a("s_lshr_b32 s6, s4, 2\ns_lshl_b32 s7, s4, 1\ns_add_u32 s6, s6, s7")
    a("s_and_b32 s7, s4, 3\ns_cmp_eq_u32 s7, 3\ns_cselect_b32 s7, 3, 2")
    a("v_lshlrev_b32 v2, 4, v1")
    a(f"s_add_u32 s10, s9, {H_OFF}")
    for ks in range(18):
        if ks and ks % 4 == 0: a("s_add_u32 s10, s10, 4096")
        a(f"buffer_load_dwordx4 {v(HB+4*ks,4)}, v2, s[56:59], s10 offen offset:{(ks%4)*1024}")
    a(f"s_lshl_b32 s11, s6, 10\ns_add_u32 s11, s11, s9")
    a(f"s_add_u32 s10, s11, {XN_OFF}")
    for p in range(3):
        a(f"buffer_load_dwordx4 {v(XN+4*p,4)}, v2, s[56:59], s10 offen offset:{p*1024}")
    a("s_mov_b32 s12, s3")
    l = a.lab("G2D"); l2 = a.lab("G2E")
    a(f"{l}:")
    a(f"s_lshl_b32 s13, s12, 10\ns_mov_b32 m0, s13\ns_add_u32 s14, s13, {W2M_OFF}")
    a("buffer_load_dwordx4 v2, s[56:59], s14 offen lds")
    a(f"s_mul_i32 s14, s12, 36864\ns_lshl_b32 s15, s6, 11\ns_add_u32 s14, s14, s15\ns_add_u32 s14, s14, {W2T_OFF}")
    a(f"s_lshl_b32 s13, s12, 11\ns_add_u32 m0, s13, {G2_P}")
    for p in range(3):
        if p == 2: a(f"s_cmp_eq_u32 s7, 2\ns_cbranch_scc1 {l2}")
        if p: a("s_add_u32 m0, m0, 36864\ns_add_u32 s14, s14, 2048")
        else: a("s_nop 0")
        a("buffer_load_dwordx4 v2, s[56:59], s14 offen lds")
        a("buffer_load_dwordx4 v2, s[56:59], s14 offen offset:1024 lds")
    a(f"{l2}:")
    a(f"s_add_u32 s12, s12, 4\ns_cmp_lt_u32 s12, 18\ns_cbranch_scc1 {l}")
    a(f"v_mov_b32 v4, {G2_CNT}\nv_mov_b32 v10, 0")
    a("s_waitcnt vmcnt(0)")
    a.subbar(4, 5, 61, 4)
    for i in range(8): a(f"ds_read_b128 {v(AR+4*i,4)}, v2 offset:{G2_M+i*1024}")
    for ks in range(18):
        a(f"s_waitcnt lgkmcnt({min(7, 17-ks)})")
        a.mfma(ACC, AR + 4 * (ks % 8), HB + 4 * ks, "0" if ks == 0 else None)
        if ks + 8 < 18: a(f"ds_read_b128 {v(AR+4*(ks%8),4)}, v2 offset:{G2_M+(ks+8)*1024}")
    a(f"v_add_u32 v3, {G2_P}, v2")
    a(f"s_add_u32 s11, s11, {X1_OFF}")
    a.nop(6)
    a(f"v_add_f32 v9, v{ACC}, v{ACC+1}")
    a.nop(2)
    l = a.lab("G2P")
    a(f"{l}:")
    for i in range(8): a(f"ds_read_b128 {v(AR+4*i,4)}, v3 offset:{i*1024}")
    for n in range(36):
        if n % 2 == 0: a(f"s_waitcnt lgkmcnt({min(6, 34-n)})")
        a.mfma(ACC + 4 * (n & 1), AR + 4 * (n % 8), HB + 4 * (n >> 1), "0" if n < 2 else None)
        if n + 8 < 36: a(f"ds_read_b128 {v(AR+4*(n%8),4)}, v3 offset:{(n+8)*1024}")
    for e in range(4):
        a(f"v_lshlrev_b32 v{12+2*e}, 16, v{XN+e}\nv_and_b32 v{13+2*e}, 0xffff0000, v{XN+e}")
    for e in range(8): a(f"v_sub_f32 v{12+e}, v{12+e}, v9")
    for e in range(8): a(f"v_add_f32 v{12+e}, v{12+e}, v{ACC+e}")
    for e in range(8): a(f"v_fmac_f32 v10, v{12+e}, v{12+e}")
    for e in range(4): a(f"v_cvt_pk_bf16_f32 v{20+e}, v{12+2*e}, v{13+2*e}")
    a("buffer_store_dwordx4 v[20:23], v2, s[56:59], s11 offen")
    for e in range(8): a(f"v_mov_b32 v{XN+e}, v{XN+4+e}")
    a("v_add_u32 v3, 36864, v3\ns_add_u32 s11, s11, 1024")
    a(f"s_sub_u32 s7, s7, 1\ns_cmp_lg_u32 s7, 0\ns_cbranch_scc1 {l}")
    a("v_mov_b32 v11, v10\ns_nop 1\nv_permlane32_swap_b32 v10, v11\nv_add_f32 v10, v10, v11")
    a("v_mov_b32 v11, v10\ns_nop 1\nv_permlane16_swap_b32 v10, v11\nv_add_f32 v10, v10, v11")
    a("v_lshlrev_b32 v4, 2, v1")
    a(f"s_lshl_b32 s10, s2, 8\ns_lshl_b32 s12, s3, 6\ns_add_u32 s10, s10, s12\ns_add_u32 s10, s10, {SS_OFF}")
    a(f"s_lshl_b32 s12, s8, 6\ns_add_u32 s12, s12, {MEAN_OFF}")
    a("s_mov_b64 exec, 0xffff")
    a("buffer_store_dword v10, v4, s[56:59], s10 offen")
    l = a.lab("G2M")
    a(f"s_cmp_lg_u32 s4, 0\ns_cbranch_scc1 {l}")
    a("buffer_store_dword v9, v4, s[56:59], s12 offen")
    a(f"{l}:")
    a("s_mov_b64 exec, -1")

def gen_conv(a):
    FA, FB, ACC = 32, 96, 160
    a.srd(44, P_SSMK, ACT)
    a("s_lshl_b32 s8, s6, 1\ns_and_b32 s8, s8, 0xfffffffc")
    a(f"s_load_dword s15, {s(P_SSMD,2)}, s8")
    a("v_lshlrev_b32 v2, 4, v1")
    a(f"s_mul_i32 s9, s6, {KV_PITCH}\ns_add_u32 s9, s9, {KV_OFF}")
    a("s_lshl_b32 s10, s6, 12")
    a(f"s_add_u32 m0, s7, {4*4160+512}\ns_nop 0")
    for i in range(4): a(f"buffer_load_dwordx4 v2, s[44:47], s10 offen offset:{i*1024} lds")
    for cp in range(4):
        a(f"s_add_u32 m0, s7, {cp*4160}\ns_add_u32 s11, s9, {2*cp}")
        for i in range(4): a(f"buffer_load_dwordx4 v2, s[56:59], s11 offen offset:{i*1024} lds")
    a("s_mov_b64 exec, 3")
    for cp in range(4):
        a(f"s_add_u32 m0, s7, {cp*4160+4096}\ns_add_u32 s11, s9, {2*cp+4096}")
        a("buffer_load_dwordx4 v2, s[56:59], s11 offen lds")
    a("s_mov_b64 exec, -1")
    a("v_lshlrev_b32 v3, 3, v1\nv_add_u32 v3, s7, v3\nv_mov_b32 v4, 0\nv_mov_b32 v5, 0")
    a(f"ds_write_b64 v3, v[4:5] offset:{4*4160}")
    a("v_and_b32 v6, 15, v1\nv_lshrrev_b32 v7, 4, v1")
    a("v_sub_u32 v8, 3, v6\nv_and_b32 v8, 3, v8\nv_mul_u32_u24 v8, 4160, v8")
    a("v_and_b32 v9, 12, v6\nv_lshlrev_b32 v9, 1, v9\nv_sub_u32 v8, v8, v9")
    a("v_lshlrev_b32 v9, 4, v7\nv_sub_u32 v8, v8, v9")
    a(f"v_add_u32 v8, {4104-3584}, v8\nv_add_u32 v8, s7, v8")
    a("v_lshlrev_b32 v10, 5, v6\nv_sub_u32 v10, v10, v9")
    a(f"v_add_u32 v10, {4*4160+512+16}, v10\nv_add_u32 v10, s7, v10")
    for r in range(32): a(f"v_mov_b32 v{ACC+r}, 0")
    a("s_waitcnt vmcnt(0) lgkmcnt(0)")
    def reads(st):
        o = []
        for m in range(8):
            o.append(f"ds_read_b128 {v(FB+32*st+4*m,4)}, v10 offset:{512*m}")
            o.append(f"ds_read_b64 {v(FA+32*st+4*m,2)}, v8 offset:{512*(7-m)}")
            o.append(f"ds_read_b64 {v(FA+32*st+4*m+2,2)}, v8 offset:{512*(7-m)+8}")
        return o
    for t in reads(0): a(t)
    a("s_mov_b32 s12, 4")
    l = a.lab("CV")
    a(f"{l}:")
    order = sorted([(i, m) for i in range(8) for m in range(i + 1)], key=lambda im: (max(im[1], im[0] - im[1]), im[1], im[0]))
    for st in range(2):
        a("v_subrev_u32 v8, 64, v8\nv_subrev_u32 v10, 64, v10")
        a("s_waitcnt lgkmcnt(0)")
        rd = reads(1 - st)
        for n, (i, m) in enumerate(order):
            a.mfma(ACC + 4 * i, FA + 32 * st + 4 * m, FB + 32 * st + 4 * (i - m))
            if n < 24: a(rd[n])
    a(f"s_sub_u32 s12, s12, 1\ns_cmp_lg_u32 s12, 0\ns_cbranch_scc1 {l}")
    a("s_waitcnt lgkmcnt(0)")
    a("v_lshlrev_b32 v11, 5, v6\nv_lshl_add_u32 v11, v7, 3, v11")
    a(f"v_sub_u32 v12, {4088-3584}, v11\nv_add_u32 v12, s7, v12")
    for i in range(8): a(f"ds_read_b64 {v(FA+2*i,2)}, v12 offset:{512*(7-i)}")
    a("s_lshl_b32 s13, s15, 16\ns_and_b32 s14, s15, 0xffff0000\ns_bitcmp1_b32 s6, 0\ns_cselect_b32 s13, s14, s13")
    a(f"s_add_u32 s10, s10, {Y_OFF}")
    a("s_waitcnt lgkmcnt(0)")
    for i in range(8):
        a(f"v_and_b32 v{FB}, 0xffff0000, v{FA+2*i+1}\nv_lshlrev_b32 v{FB+1}, 16, v{FA+2*i+1}")
        a(f"v_and_b32 v{FB+2}, 0xffff0000, v{FA+2*i}\nv_lshlrev_b32 v{FB+3}, 16, v{FA+2*i}")
        for r in range(4): a(f"v_fmac_f32 v{ACC+4*i+r}, s13, v{FB+r}")
        a(f"v_cvt_pk_bf16_f32 v{FB+8+2*i}, v{ACC+4*i}, v{ACC+4*i+1}\nv_cvt_pk_bf16_f32 v{FB+9+2*i}, v{ACC+4*i+2}, v{ACC+4*i+3}")
        a(f"buffer_store_dwordx2 {v(FB+8+2*i,2)}, v11, s[56:59], s10 offen offset:{512*i}")

def gen_kb1(a, endlabel):
    a(".p2align 8\nkb1_kernel:")
    a("s_cmp_ge_u32 s2, 256\ns_cbranch_scc1 KB1_end")
    a.kernargs()
    a("v_lshrrev_b32 v2, 6, v0\nv_and_b32 v1, 63, v0")
    a("v_readfirstlane_b32 s3, v2")
    a(f"v_mov_b32 v3, {G2_CNT}\nv_mov_b32 v4, 0")
    a("ds_write_b32 v3, v4")
    a("s_and_b32 s4, s2, 7\ns_lshr_b32 s5, s2, 3")
    a("s_waitcnt lgkmcnt(0)")
    a("s_barrier")
    a.srd(56, P_WS, WS_BYTES)
    a("s_cmp_ge_u32 s3, 4\ns_cbranch_scc1 KB1_q")
    gen_gemm2(a)
    a("s_endpgm")
    a("KB1_q:")
    a("s_cmp_eq_u32 s3, 7\ns_cbranch_scc1 KB1_end")
    a("s_and_b32 s6, s4, 3\ns_cmp_eq_u32 s6, 3\ns_cbranch_scc1 KB1_end")
    a("s_lshr_b32 s6, s4, 2\ns_sub_u32 s6, s4, s6\ns_mul_i32 s7, s5, 6\ns_add_u32 s6, s6, s7\ns_mul_i32 s6, s6, 3")
    a("s_sub_u32 s7, s3, 4\ns_add_u32 s6, s6, s7")
    a(f"s_mul_i32 s7, s7, {CV_SZ}\ns_add_u32 s7, s7, {CV}")
    gen_conv(a)
    a("KB1_end:")
    a("s_endpgm")

ML_X, ML_H = 0, 73728
ML_LDS = 147456
NS = 18
RING, BF, MACC, KC, GT = 32, 104, 120, 200, 208

class Stream:
    def __init__(self, a, segs):
        self.a = a
        self.items = [(sg, ks, t) for sg, (sr, nt) in enumerate(segs) for ks in range(18) for t in range(nt)]
        self.segs = segs
        self.issued = 0
        self.extra = 0
    def issue(self):
        if self.issued >= len(self.items): return
        sg, ks, t = self.items[self.issued]
        sr = self.segs[sg][0]
        if t == 0 and ks > 0: self.a(f"s_add_u32 s{sr}, s{sr}, 36864")
        slot = self.issued % NS
        vo, off = (2, t * 1024) if t < 4 else (3, 0)
        self.a(f"buffer_load_dwordx4 {v(RING+4*slot,4)}, v{vo}, s[56:59], s{sr} offen offset:{off}")
        self.issued += 1
    def index(self, sg, ks, t): return self.items.index((sg, ks, t))

def mphase(a, st, sg, nt, vb, ks0=0, ks1=18, first=True, pre=True):
    def rd(ks, m): a(f"ds_read_b128 {v(BF+4*m,4)}, v{vb + (m >> 1)} offset:{(m&1)*18432+ks*1024}")
    if pre:
        for m in range(4): rd(ks0, m)
    for ks in range(ks0, ks1):
        last = st.index(sg, ks, nt - 1)
        vm = st.issued - 1 - last
        for m in range(4):
            lg = 3 if ks + 1 < ks1 else 3 - m
            if m == 0: a(f"s_waitcnt vmcnt({vm}) lgkmcnt({lg})")
            else: a(f"s_waitcnt lgkmcnt({lg})")
            for t in range(nt):
                n = st.index(sg, ks, t)
                a.mfma(MACC + 16 * t + 4 * m, RING + 4 * (n % NS), BF + 4 * m, "0" if (first and ks == ks0) else None)
                if m == 3: st.issue()
            if ks + 1 < ks1: rd(ks + 1, m)

def gphase(a, ve, vo):
    a.nop(8)
    for t in range(3):
        for mp in range(2):
            regs = [MACC + 16 * t + 8 * mp + e for e in range(8)]
            k0 = [f"v{KC + 2*(2*mp + (e >> 2))}" for e in range(8)]
            k1 = [f"v{KC + 2*(2*mp + (e >> 2)) + 1}" for e in range(8)]
            gelu_vals(a, regs, list(range(GT, GT + 8)), k0, k1)
            p = GT + 8 + 4 * (mp & 1)
            for e in range(4): a(f"v_cvt_pk_bf16_f32 v{p+e}, v{regs[2*e]}, v{regs[2*e+1]}")
            ad = (ve if t != 1 else vo) + mp
            for mm in range(2):
                a(f"ds_write_b64 v{ad}, {v(p+2*mm,2)} offset:{mm*18432+(t>>1)*1024}")

def ephase(a, nt, sreg):
    a.nop(8)
    for t in range(nt):
        for mp in range(2):
            p = GT + 4 * ((2 * t + mp) % 4)
            for e in range(4): a(f"v_cvt_pk_bf16_f32 v{p+e}, v{MACC+16*t+8*mp+2*e}, v{MACC+16*t+8*mp+2*e+1}")
            a(f"buffer_store_dwordx4 {v(p,4)}, v2, s[56:59], s{sreg} offen offset:{((2*t+mp)%4)*1024}")
        if t % 2 == 1: a(f"s_add_u32 s{sreg}, s{sreg}, 4096")

def h_addr(a, sT, ve, vo):
    for k, dst in ((0, ve), (1, vo)):
        a(f"s_add_u32 s12, s{sT}, {k}\ns_lshr_b32 s13, s12, 1\ns_lshl_b32 s13, s13, 10\ns_and_b32 s12, s12, 1\ns_lshl_b32 s12, s12, 3\ns_add_u32 s12, s12, s13\ns_add_u32 s12, s12, {ML_H}")
        a(f"v_add_u32 v{dst}, s12, v2\nv_add_u32 v{dst+1}, 36864, v{dst}")

def gen_kb2(a, endlabel):
    a(".p2align 8\nkb2_kernel:")
    a("s_cmp_ge_u32 s2, 256\ns_cbranch_scc1 KB2_end")
    a.kernargs()
    a("v_lshrrev_b32 v2, 6, v0\nv_and_b32 v1, 63, v0")
    a("v_readfirstlane_b32 s3, v2")
    a("s_and_b32 s4, s2, 7\ns_lshr_b32 s5, s2, 3")
    a("v_lshlrev_b32 v2, 4, v1\nv_add_u32 v3, 4096, v2\nv_lshlrev_b32 v4, 2, v1")
    a("s_waitcnt lgkmcnt(0)")
    a.srd(56, P_WS, WS_BYTES)
    a(f"s_lshl_b32 s6, s5, 11\ns_add_u32 s6, s6, {SS_OFF}")
    for i in range(8): a(f"buffer_load_dword v{GT+i}, v4, s[56:59], s6 offen offset:{256*i}")
    a(f"s_mul_i32 s6, s3, 9216\ns_mov_b32 m0, s6\ns_mul_i32 s7, s5, 73728\ns_add_u32 s7, s7, s6\ns_add_u32 s7, s7, {X1_OFF}")
    for i in range(9):
        if i and i % 4 == 0: a("s_add_u32 m0, m0, 4096\ns_add_u32 s7, s7, 4096")
        a(f"buffer_load_dwordx4 v2, s[56:59], s7 offen offset:{(i%4)*1024} lds")
    a(f"s_mul_i32 s8, s4, {WSLICE}")
    a("s_mul_i32 s14, s3, 3")
    a(f"s_lshl_b32 s64, s14, 10\ns_add_u32 s64, s64, s8\ns_add_u32 s64, s64, {W3T_OFF}")
    a("s_add_u32 s65, s64, 24576")
    a("s_lshl_b32 s9, s3, 2\ns_mul_i32 s10, s3, 5\ns_sub_u32 s10, s10, 4\ns_cmp_ge_u32 s3, 4\ns_cselect_b32 s9, s10, s9")
    a(f"s_lshl_b32 s66, s9, 10\ns_add_u32 s66, s66, s8\ns_add_u32 s66, s66, {W4T_OFF}")
    a(f"s_lshl_b32 s10, s4, 5\ns_add_u32 s10, s10, s5\ns_mul_i32 s67, s10, 73728\ns_lshl_b32 s9, s9, 11\ns_add_u32 s67, s67, s9\ns_add_u32 s67, s67, {PART_OFF}")
    stP = Stream(a, [(64, 3), (65, 3), (66, 4)])
    stQ = Stream(a, [(64, 3), (66, 5)])
    for i in range(NS): stP.issue()
    stQ.issued = NS
    a(f"v_mov_b32 v6, v2\nv_add_u32 v7, 36864, v2\nv_add_u32 v8, {ML_H}, v2\nv_add_u32 v9, {ML_H+36864}, v2")
    h_addr(a, 14, 10, 12)
    a(f"s_waitcnt vmcnt({NS+9})")
    for i in range(1, 8): a(f"v_add_f32 v{GT}, v{GT}, v{GT+i}")
    a(f"v_fmaak_f32 v{GT}, {fh(1.0/D)}, v{GT}, {fh(EPS)}" if False else f"v_mov_b32 v{GT+1}, {fh(1.0/D)}\nv_fmaak_f32 v{GT}, v{GT+1}, v{GT}, {fh(EPS)}")
    a(f"v_rsq_f32 v{GT}, v{GT}")
    a("v_and_b32 v5, 15, v1\nv_lshlrev_b32 v5, 2, v5")
    for m in range(4):
        a(f"ds_bpermute_b32 v{GT+2+m}, v5, v{GT} offset:{64*m}")
    l = a.lab("MR")
    a(f"s_or_b32 s6, s3, s4\ns_cmp_lg_u32 s6, 0\ns_cbranch_scc1 {l}")
    a(f"s_lshl_b32 s6, s5, 8\ns_add_u32 s6, s6, {R_OFF}")
    a(f"buffer_store_dword v{GT}, v4, s[56:59], s6 offen")
    a(f"s_waitcnt vmcnt(0)")
    a(f"{l}:")
    a("s_waitcnt lgkmcnt(0)")
    for m in range(4):
        r = GT + 2 + m
        a(f"v_mul_f32 v{KC+2*m}, {fh(GC0)}, v{r}\nv_mul_f32 v{r}, v{r}, v{r}\nv_mul_f32 v{r}, {fh(0.044715)}, v{r}\nv_mul_f32 v{KC+2*m+1}, v{r}, v{KC+2*m}")
    a(f"s_waitcnt vmcnt({NS})")
    a("s_barrier")
    a("s_cmp_ge_u32 s3, 4\ns_cbranch_scc1 KB2_q")
    mphase(a, stP, 0, 3, 6)
    gphase(a, 10, 12)
    a("s_add_u32 s14, s14, 24")
    h_addr(a, 14, 10, 12)
    mphase(a, stP, 1, 3, 6)
    a("s_barrier")
    gphase(a, 10, 12)
    a("s_waitcnt lgkmcnt(0)\ns_barrier")
    mphase(a, stP, 2, 4, 8)
    ephase(a, 4, 67)
    a("s_endpgm")
    a("KB2_q:")
    mphase(a, stQ, 0, 3, 6)
    gphase(a, 10, 12)
    a("s_waitcnt lgkmcnt(0)\ns_barrier")
    mphase(a, stQ, 1, 5, 8, 0, 12)
    a("s_barrier")
    mphase(a, stQ, 1, 5, 8, 12, 18, first=False)
    ephase(a, 5, 67)
    a("KB2_end:")
    a("s_endpgm")

FIN_LDS = 4 * 2304
def gen_kb3(a, endlabel):
    PR, X1R, XNR, YR, XR, AC = 16, 80, 88, 96, 112, 120
    a(".p2align 8\nkb3_kernel:")
    a("s_cmp_ge_u32 s2, 288\ns_cbranch_scc1 KB3_end")
    a.kernargs()
    a("v_lshrrev_b32 v2, 6, v0\nv_and_b32 v1, 63, v0")
    a("v_readfirstlane_b32 s3, v2")
    a("s_lshl_b32 s4, s2, 2\ns_add_u32 s4, s4, s3")
    a("s_mul_i32 s5, s4, 3641\ns_lshr_b32 s5, s5, 16")
    a("s_mul_i32 s6, s5, 18\ns_sub_u32 s6, s4, s6")
    a("v_lshlrev_b32 v2, 4, v1")
    a("v_and_b32 v3, 15, v1\nv_lshrrev_b32 v4, 4, v1")
    a("v_lshlrev_b32 v5, 2, v3")
    a("v_lshlrev_b32 v6, 14, v4\nv_lshl_add_u32 v6, v3, 1, v6")
    a("v_lshrrev_b32 v7, 2, v1\nv_and_b32 v8, 3, v1")
    a("v_mul_u32_u24 v9, 1152, v7\nv_lshl_add_u32 v9, v8, 4, v9")
    for r in range(16): a(f"v_mov_b32 v{YR+r}, 0")
    a("s_waitcnt lgkmcnt(0)")
    a.srd(56, P_WS, WS_BYTES)
    a.srd(44, P_Q, ACT)
    a.srd(48, P_OUT, ACT)
    a(f"s_lshr_b32 s7, s5, 1\ns_mul_i32 s7, s7, 73728\ns_and_b32 s8, s5, 1\ns_lshl_b32 s8, s8, 10\ns_add_u32 s7, s7, s8\ns_lshl_b32 s8, s6, 12\ns_add_u32 s7, s7, s8\ns_add_u32 s7, s7, {PART_OFF}")
    for fb in range(8):
        for T in range(2):
            a(f"buffer_load_dwordx4 {v(PR+8*fb+4*T,4)}, v2, s[56:59], s7 offen offset:{2048*T}")
        a(f"s_add_u32 s7, s7, {ACT}")
    a("s_mul_i32 s9, s5, 36864\ns_lshl_b32 s8, s6, 10\ns_add_u32 s8, s8, s9")
    for mt in range(2):
        a(f"s_add_u32 s7, s8, {X1_OFF+18432*mt}")
        a(f"buffer_load_dwordx4 {v(X1R+4*mt,4)}, v2, s[56:59], s7 offen")
        a(f"s_add_u32 s7, s8, {XN_OFF+18432*mt}")
        a(f"buffer_load_dwordx4 {v(XNR+4*mt,4)}, v2, s[56:59], s7 offen")
    a(f"s_lshl_b32 s7, s5, 7\ns_add_u32 s8, s7, {R_OFF}\ns_add_u32 s7, s7, {MEAN_OFF}")
    for mt in range(2):
        a(f"buffer_load_dword v{10+mt}, v5, s[56:59], s8 offen offset:{64*mt}")
        a(f"buffer_load_dword v{12+mt}, v5, s[56:59], s7 offen offset:{64*mt}")
    a(f"s_lshl_b32 s7, s6, 17\ns_lshl_b32 s8, s5, 6\ns_add_u32 s7, s7, s8\ns_add_u32 s7, s7, {Y_OFF}")
    for T in range(2):
        for r in range(4):
            for mt in range(2):
                a(f"buffer_load_short_d16_hi v{YR+8*mt+4*T+r}, v6, s[56:59], s7 offen offset:{32*mt}")
            a(f"s_add_u32 s7, s7, {4096 if r < 3 else 65536-3*4096}")
    a("s_lshl_b32 s8, s6, 6\ns_add_u32 s9, s9, s8\ns_add_u32 s10, s9, 18432")
    a(f"buffer_load_dwordx4 {v(XR,4)}, v9, s[44:47], s9 offen")
    a(f"buffer_load_dwordx4 {v(XR+4,4)}, v9, s[44:47], s10 offen")
    a("s_mul_i32 s11, s3, 2304")
    a("v_mul_u32_u24 v14, 72, v3\nv_lshl_add_u32 v14, v4, 3, v14\nv_add_u32 v14, s11, v14")
    a("v_mul_u32_u24 v15, 72, v7\nv_lshl_add_u32 v15, v8, 4, v15\nv_add_u32 v15, s11, v15")
    for fb in range(8):
        a(f"s_waitcnt vmcnt({26 + 14 - 2*fb})")
        for T in range(2):
            for mt in range(2):
                for e in range(2):
                    src = PR + 8 * fb + 4 * T + 2 * mt + e
                    d = AC + 8 * mt + 4 * T + 2 * e
                    if fb == 0:
                        a(f"v_lshlrev_b32 v{d}, 16, v{src}\nv_and_b32 v{d+1}, 0xffff0000, v{src}")
                    else:
                        a(f"v_lshlrev_b32 v136, 16, v{src}\nv_and_b32 v137, 0xffff0000, v{src}")
                        a(f"v_pk_add_f32 {v(d,2)}, {v(d,2)}, v[136:137]")
    a("s_waitcnt vmcnt(2)")
    for mt in range(2):
        for e in range(4):
            d = AC + 8 * mt + 2 * e
            a(f"v_lshlrev_b32 v136, 16, v{X1R+4*mt+e}\nv_and_b32 v137, 0xffff0000, v{X1R+4*mt+e}")
            a(f"v_add_f32 v136, v136, v{12+mt}\nv_add_f32 v137, v137, v{12+mt}")
            a(f"v_fma_f32 v{d}, v{d}, v{10+mt}, v136\nv_fma_f32 v{d+1}, v{d+1}, v{10+mt}, v137")
            a(f"v_lshlrev_b32 v136, 16, v{XNR+4*mt+e}\nv_and_b32 v137, 0xffff0000, v{XNR+4*mt+e}")
            a(f"v_pk_mul_f32 {v(YR+8*mt+2*e,2)}, {v(YR+8*mt+2*e,2)}, v[136:137]")
    for r in range(16): a(f"v_mul_f32 v{PR+r}, {fh(-LOG2E)}, v{AC+r}")
    for r in range(16): a(f"v_exp_f32 v{PR+r}, v{PR+r}")
    for r in range(16): a(f"v_add_f32 v{PR+r}, 1.0, v{PR+r}")
    for r in range(16): a(f"v_rcp_f32 v{PR+r}, v{PR+r}")
    for r in range(16): a(f"v_mul_f32 v{AC+r}, v{AC+r}, v{YR+r}")
    for r in range(16): a(f"v_mul_f32 v{AC+r}, v{AC+r}, v{PR+r}")
    for e in range(8): a(f"v_cvt_pk_bf16_f32 v{PR+16+e}, v{AC+2*e}, v{AC+2*e+1}")
    for mt in range(2):
        for T in range(2):
            a(f"ds_write_b64 v14, {v(PR+16+4*mt+2*T,2)} offset:{mt*1152+T*32}")
    for mt in range(2):
        a(f"ds_read2_b64 {v(PR+24+4*mt,4)}, v15 offset0:{mt*144} offset1:{mt*144+1}")
    a("s_waitcnt vmcnt(0) lgkmcnt(0)")
    for mt in range(2):
        for e in range(4):
            a(f"v_lshlrev_b32 v136, 16, v{PR+24+4*mt+e}\nv_and_b32 v137, 0xffff0000, v{PR+24+4*mt+e}")
            a(f"v_lshlrev_b32 v138, 16, v{XR+4*mt+e}\nv_and_b32 v139, 0xffff0000, v{XR+4*mt+e}")
            a("v_pk_add_f32 v[136:137], v[136:137], v[138:139]")
            a(f"v_cvt_pk_bf16_f32 v{XR+4*mt+e}, v136, v137")
        a(f"buffer_store_dwordx4 {v(XR+4*mt,4)}, v9, s[48:51], s{9+mt} offen")
    a("KB3_end:")
    a("s_endpgm")
```

```python
import sys
from common import *
import ka, kb
HDR = open("recurrent_scan__ssm_conv_h3__mixer_s_mlp__prompt.s.ref").read().split("; Override launch geometry")[0]
def build(path):
    a = Asm()
    ka.gen_ka(a, "CODE_END")
    kb.gen_kb1(a, "CODE_END")
    kb.gen_kb2(a, "CODE_END")
    kb.gen_kb3(a, "CODE_END")
    a("CODE_END:")
    out = HDR
    out += f"; @launch kernel=ka_kernel grid=(256,1,1) block=(512,1,1) lds={ka.KA_LDS}\n"
    out += f"; @launch kernel=kb1_kernel grid=(256,1,1) block=(512,1,1) lds={kb.G2_LDS}\n"
    out += f"; @launch kernel=kb2_kernel grid=(256,1,1) block=(512,1,1) lds={kb.ML_LDS}\n"
    out += f"; @launch kernel=kb3_kernel grid=(288,1,1) block=(256,1,1) lds={kb.FIN_LDS}\n"
    out += '.amdgcn_target "amdgcn-amd-amdhsa--gfx950"\n.text\n'
    out += a.text()
    out += '.section .rodata,"a"\n'
    out += desc("ka_kernel", 208) + desc("kb1_kernel", 192) + desc("kb2_kernel", 224) + desc("kb3_kernel", 144)
    open(path, "w").write(out)
if __name__ == "__main__":
    build(sys.argv[1] if len(sys.argv) > 1 else "recurrent_scan__ssm_conv_h3__mixer_s_mlp__prompt.s")
```

```python
S, D, F = 2048, 576, 4608
ACT = S * D * 2
H_OFF    = 0x0000000
X1_OFF   = 0x0240000
KV_OFF   = 0x0480000
KV_PITCH = 4224
Y_OFF    = 0x0700000
W2M_OFF  = 0x0940000
ST1_OFF  = 0x0944000
SS_OFF   = 0x0950000
MEAN_OFF = 0x0960000
FLAG_OFF = 0x0970000
FB_STRIDE = 4352
FX_OFF   = FLAG_OFF
FP_OFF   = FLAG_OFF + 128
FW4_OFF  = FLAG_OFF + 32 * FB_STRIDE
FY_OFF   = FLAG_OFF + 40 * FB_STRIDE
FLAG_WAVES = 22
W3T_OFF  = 0x0A00000
W4T_OFF  = 0x0F10000
PART_OFF = 0x1420000
STAMP_OFF = 0x2620000
WS_BYTES = 0x2700000
WSLICE = 18 * 36 * 1024

EPS = 1e-5
import struct
def f2u(x): return struct.unpack("<I", struct.pack("<f", x))[0]
def fh(x): return "0x%08x" % f2u(x)

def v(n, c=1): return f"v{n}" if c == 1 else f"v[{n}:{n+c-1}]"
def s(n, c=1): return f"s{n}" if c == 1 else f"s[{n}:{n+c-1}]"

P_Q, P_K, P_V, P_SHK, P_SSMK, P_SSMD, P_BX, P_W1, P_W2, P_W3, P_W4, P_OUT, P_DBG, P_WS = [16 + 2 * i for i in range(14)]

class Asm:
    def __init__(self):
        self.L = []
        self.n = 0
        self.stamps = False
        self.kid = 0
    def stamp(self, i):
        if self.stamps: self(f"s_memrealtime s[{72+2*i}:{73+2*i}]")
    def stamp_init(self):
        if self.stamps:
            for i in range(12): self(f"s_mov_b32 s{72+2*i}, 0")
            self.stamp(0)
    def end(self, i=11):
        if self.stamps:
            self("s_waitcnt vmcnt(0) lgkmcnt(0)")
            self.stamp(i)
            self.srd(56, P_WS, WS_BYTES)
            self("s_mov_b64 exec, 1")
            self(f"s_lshl_b32 s6, s2, 3\ns_add_u32 s6, s6, s3\ns_lshl_b32 s6, s6, 6\ns_add_u32 s6, s6, {STAMP_OFF + self.kid * 0x28000}")
            self("v_mov_b32 v4, 0\ns_waitcnt lgkmcnt(0)")
            for q in range(3):
                for e in range(4): self(f"v_mov_b32 v{8+4*q+e}, s{72+8*q+2*e}")
                self(f"buffer_store_dwordx4 v[{8+4*q}:{11+4*q}], v4, s[56:59], s6 offen offset:{16*q}")
        self("s_endpgm")
    def __call__(self, t):
        for line in t.split("\n"):
            line = line.strip()
            if line:
                self.L.append(("" if line.endswith(":") or line.startswith(".") else "  ") + line)
    def lab(self, p="L"):
        self.n += 1
        return f"{p}_{self.n}"
    def text(self): return "\n".join(self.L) + "\n"
    def kernargs(self):
        self("s_load_dwordx16 s[16:31], s[0:1], 0")
        self("s_load_dwordx8 s[32:39], s[0:1], 64")
        self("s_load_dwordx4 s[40:43], s[0:1], 96")
    def srd(self, d, p, nbytes):
        self(f"s_mov_b32 s{d}, s{p}\ns_mov_b32 s{d+1}, s{p+1}\ns_mov_b32 s{d+2}, {nbytes}\ns_mov_b32 s{d+3}, 0x20000")
    def mfma(self, d, a, b, c=None):
        cc = v(d, 4) if c is None else c
        self(f"v_mfma_f32_16x16x32_bf16 {v(d,4)}, {v(a,4)}, {v(b,4)}, {cc}")
    def nop(self, n):
        while n > 0:
            k = min(n, 16)
            self(f"s_nop {k-1}")
            n -= k
    def prefetch_code(self, endlabel, vtmp, vdst, stmp):
        l = self.lab("PF")
        self(f"s_getpc_b64 {s(stmp,2)}")
        self(f"{l}:")
        self(f"v_and_b32 {v(vtmp)}, 15, v0")
        self(f"v_lshlrev_b32 {v(vtmp)}, 5, {v(vtmp)}")
        self(f"s_lshr_b32 s{stmp+2}, s2, 3")
        self(f"v_add_lshl_u32 {v(vtmp)}, s{stmp+2}, {v(vtmp)}, 7")
        self(f"v_min_u32 {v(vtmp)}, {endlabel}-{l}-4, {v(vtmp)}")
        self(f"global_load_dword {v(vdst)}, {v(vtmp)}, {s(stmp,2)} nt")
    def subbar(self, vaddr, vtmp, stmp, n, off=0):
        l = self.lab("SB")
        self("s_mov_b64 exec, 1")
        self(f"v_mov_b32 {v(vtmp)}, 1")
        self(f"ds_add_u32 {v(vaddr)}, {v(vtmp)} offset:{off}")
        self("s_mov_b64 exec, -1")
        self(f"{l}:")
        self(f"ds_read_b32 {v(vtmp)}, {v(vaddr)} offset:{off}")
        self("s_waitcnt lgkmcnt(0)")
        self(f"v_readfirstlane_b32 s{stmp}, {v(vtmp)}")
        self(f"s_cmp_ge_u32 s{stmp}, {n}")
        self(f"s_cbranch_scc0 {l}")

    def ldswait(self, vaddr, vtmp, stmp, n, off=0, sleep=0):
        l = self.lab("LW")
        self(f"{l}:")
        if sleep: self(f"s_sleep {sleep}")
        self(f"ds_read_b32 {v(vtmp)}, {v(vaddr)} offset:{off}")
        self("s_waitcnt lgkmcnt(0)")
        self(f"v_readfirstlane_b32 s{stmp}, {v(vtmp)}")
        self(f"s_cmp_ge_u32 s{stmp}, {n}")
        self(f"s_cbranch_scc0 {l}")
    def poll(self, vaddr, soff, vtmp, stmp, sleep=1):
        l = self.lab("PL"); d = self.lab("PD")
        self(f"s_mov_b32 s{stmp}, 0x40000")
        self(f"{l}:")
        self(f"buffer_load_dword {v(vtmp)}, {v(vaddr)}, s[56:59], {soff} offen sc1")
        self("s_waitcnt vmcnt(0)")
        self(f"v_cmp_eq_u32 vcc, 0, {v(vtmp)}")
        self(f"s_cbranch_vccz {d}")
        self(f"s_sleep {sleep}")
        self(f"s_sub_u32 s{stmp}, s{stmp}, 1")
        self(f"s_cbranch_scc0 {l}")
        self(f"{d}:")
    def spoll(self, n, soff, sd, stmp, sleep=1):
        l = self.lab("SP"); d = self.lab("SD")
        self(f"s_mov_b32 s{stmp}, 0x40000")
        self(f"{l}:")
        self(f"s_load_dwordx{n} {s(sd,n)}, {s(P_WS,2)}, s{soff} glc")
        self("s_waitcnt lgkmcnt(0)")
        k = n
        while k > 2:
            k //= 2
            for i in range(0, k, 2): self(f"s_and_b64 {s(sd+i,2)}, {s(sd+i,2)}, {s(sd+k+i,2)}")
        self(f"s_and_b32 s{sd}, s{sd}, s{sd+1}")
        self(f"s_cbranch_scc1 {d}")
        if sleep: self(f"s_sleep {sleep}")
        self(f"s_sub_u32 s{stmp}, s{stmp}, 1")
        self(f"s_cbranch_scc0 {l}")
        self(f"{d}:")
    def cpoll(self, soff, n, sd, stmp, sleep=1):
        l = self.lab("CP"); d = self.lab("CD")
        self(f"s_mov_b32 s{stmp}, 0x40000")
        self(f"{l}:")
        self(f"s_load_dword s{sd}, {s(P_WS,2)}, s{soff} glc")
        self("s_waitcnt lgkmcnt(0)")
        self(f"s_cmp_ge_u32 s{sd}, {n}")
        self(f"s_cbranch_scc1 {d}")
        if sleep: self(f"s_sleep {sleep}")
        self(f"s_sub_u32 s{stmp}, s{stmp}, 1")
        self(f"s_cbranch_scc0 {l}")
        self(f"{d}:")
    def vpoll(self, soff, n, vtmp, stmp, sleep=8):
        l = self.lab("VP"); d = self.lab("VD")
        self(f"s_mov_b32 s{stmp}, 0x20000\nv_mov_b32 {v(vtmp)}, 0")
        self(f"{l}:")
        self(f"buffer_load_dword {v(vtmp+1)}, {v(vtmp)}, s[56:59], s{soff} offen sc1")
        self("s_waitcnt vmcnt(0)")
        self(f"v_cmp_gt_u32 vcc, {n}, {v(vtmp+1)}")
        self(f"s_cbranch_vccz {d}")
        self(f"s_sleep {sleep}")
        self(f"s_sub_u32 s{stmp}, s{stmp}, 1")
        self(f"s_cbranch_scc0 {l}")
        self(f"{d}:")
    def addflag(self, soff, vtmp):
        self("s_mov_b64 exec, 1")
        self(f"v_mov_b32 {v(vtmp)}, 0\nv_mov_b32 {v(vtmp+1)}, 1")
        self(f"buffer_atomic_add {v(vtmp+1)}, {v(vtmp)}, s[56:59], {soff} offen sc1")
        self("s_mov_b64 exec, -1")
    def ldsadd(self, vaddr, vone, off):
        self("s_mov_b64 exec, 1")
        self(f"ds_add_u32 {v(vaddr)}, {v(vone)} offset:{off}")
        self("s_mov_b64 exec, -1")
    def setflag(self, soff, vtmp):
        self("s_mov_b64 exec, 1")
        self(f"v_mov_b32 {v(vtmp)}, 0\nv_mov_b32 {v(vtmp+1)}, 1")
        self(f"buffer_store_dword {v(vtmp+1)}, {v(vtmp)}, s[56:59], {soff} offen sc1")
        self("s_mov_b64 exec, -1")

def desc(name, nv, ns=100):
    nv = (nv + 7) // 8 * 8
    return f""".p2align 6
.amdhsa_kernel {name}
  .amdhsa_next_free_vgpr {nv}
  .amdhsa_next_free_sgpr {ns}
  .amdhsa_accum_offset {min(nv, 256)}
  .amdhsa_group_segment_fixed_size 0
  .amdhsa_kernarg_size 112
  .amdhsa_user_sgpr_count 2
  .amdhsa_user_sgpr_kernarg_segment_ptr 1
  .amdhsa_system_sgpr_workgroup_id_x 1
  .amdhsa_float_denorm_mode_32 3
.end_amdhsa_kernel
"""

GC0 = -2.0 * 0.7978845608028654 * 1.4426950408889634
GC1 = GC0 * 0.044715
LOG2E = 1.4426950408889634

import os
OPT = os.environ.get("OPT", "").split(",")
def optval(name, default):
    return int(os.environ.get(name, default))

def gelu_vals(a, regs, tmps, k0, k1):
    n = len(regs)
    K0 = k0 if isinstance(k0, list) else [k0] * n
    K1 = k1 if isinstance(k1, list) else [k1] * n
    nt = len(tmps)
    for b in range(0, n, nt):
        idx = list(range(b, min(b + nt, n)))
        for i in idx: a(f"v_mul_f32 {v(tmps[i-b])}, {v(regs[i])}, {v(regs[i])}")
        for i in idx: a(f"v_fma_f32 {v(tmps[i-b])}, {v(tmps[i-b])}, {K1[i]}, {K0[i]}")
        for i in idx: a(f"v_mul_f32 {v(tmps[i-b])}, {v(tmps[i-b])}, {v(regs[i])}")
        for i in idx: a(f"v_exp_f32 {v(tmps[i-b])}, {v(tmps[i-b])}")
        for i in idx: a(f"v_add_f32 {v(tmps[i-b])}, 1.0, {v(tmps[i-b])}")
        for i in idx: a(f"v_rcp_f32 {v(tmps[i-b])}, {v(tmps[i-b])}")
        for i in idx: a(f"v_mul_f32 {v(regs[i])}, {v(tmps[i-b])}, {v(regs[i])}")

def gsum(a, r, t):
    a(f"v_mov_b32 v{t}, v{r}\ns_nop 1\nv_permlane32_swap_b32 v{r}, v{t}\nv_add_f32 v{r}, v{r}, v{t}")
    a(f"v_mov_b32 v{t}, v{r}\ns_nop 1\nv_permlane16_swap_b32 v{r}, v{t}\nv_add_f32 v{r}, v{r}, v{t}")

def gen_pretile(a, R=32):
    a("v_lshrrev_b32 v18, 3, v1\nv_and_b32 v19, 7, v1")
    a("v_mul_lo_u32 v20, v18, s7")
    a("v_lshl_add_u32 v20, v19, 4, v20")
    a("s_lshl_b32 s10, s7, 3")
    for i in range(3):
        if i: a("s_sub_u32 s6, s6, s11")
        for rg in range(4):
            a(f"buffer_load_dwordx4 {v(R+16*i+4*rg,4)}, v20, s[44:47], s6 offen offset:{128*i} nt")
            if rg < 3: a("s_add_u32 s6, s6, s10")
        if i == 0: a("s_mul_i32 s11, s10, 3")
    a("v_lshlrev_b32 v21, 4, v1\nv_add_u32 v22, s9, v21")
    a("v_lshrrev_b32 v23, 2, v1\nv_lshlrev_b32 v23, 7, v23\nv_and_b32 v19, 3, v1\nv_lshl_add_u32 v23, v19, 3, v23\nv_add_u32 v23, s9, v23")
    for i in range(3):
        a(f"s_waitcnt vmcnt(8)")
        for rg in range(4):
            a(f"ds_write_b128 v22, {v(R+16*i+4*rg,4)} offset:{1024*rg}")
        for tn in range(4):
            a(f"ds_read_b64_tr_b16 {v(R+48+16*i+4*tn,2)}, v23 offset:{tn*32}")
            a(f"ds_read_b64_tr_b16 {v(R+48+16*i+4*tn+2,2)}, v23 offset:{2048+tn*32}")
        a("s_waitcnt lgkmcnt(0)")
        for tn in range(4):
            a(f"buffer_store_dwordx4 {v(R+48+16*i+4*tn,4)}, v21, s[56:59], s8 offen offset:{tn*1024} sc1")
        a("s_add_u32 s8, s8, 4096")
```

```python
from common import *

SLOT = 20480
KA_PT = 4 * SLOT
KA_LDS = KA_PT + 4 * 4096

def gen_g1_consumer(a):
    BUF, ACC, CS, SM, ONE, SQ = 32, 112, 136, 148, 156, 160
    a("s_and_b32 s8, s3, 1\ns_lshr_b32 s9, s3, 1")
    a("v_and_b32 v2, 15, v1\nv_lshrrev_b32 v3, 4, v1")
    a("v_bfe_u32 v4, v1, 3, 1\nv_lshlrev_b32 v4, 1, v4\nv_xor_b32 v4, v4, v3")
    a("v_lshl_add_u32 v4, v2, 2, v4\nv_lshlrev_b32 v4, 4, v4")
    a("s_lshl_b32 s10, s8, 11")
    a("v_add_u32 v10, s10, v4")
    a("v_lshrrev_b32 v5, 1, v3\nv_mul_u32_u24 v5, 3072, v5")
    a("v_and_b32 v6, 1, v3\nv_lshl_add_u32 v5, v6, 9, v5")
    a("v_lshrrev_b32 v7, 2, v2\nv_lshl_add_u32 v5, v7, 6, v5")
    a("v_and_b32 v7, 3, v1\nv_lshl_add_u32 v5, v7, 3, v5")
    a("v_lshl_add_u32 v5, v6, 5, v5\nv_add_u32 v5, 8192, v5")
    for t in range(3):
        a(f"s_mul_i32 s10, s9, 3\ns_add_u32 s10, s10, {t}\ns_lshr_b32 s11, s10, 1\ns_lshl_b32 s11, s11, 10\ns_and_b32 s10, s10, 1\ns_lshl_b32 s10, s10, 5")
        a(f"v_xor_b32 v{11+t}, s10, v5\nv_add_u32 v{11+t}, s11, v{11+t}")
    for r in range(4): a(f"v_add_u32 v{14+r}, {3*SLOT}, v{10+r}")
    for r in range(4): a(f"v_mov_b32 v{ONE+r}, 0x3f803f80")
    a("v_lshlrev_b32 v6, 2, v3\nv_sub_u32 v6, v2, v6")
    for r in range(4): a(f"v_cmp_eq_u32 {s(44+2*r,2)}, {r}, v6")
    a.srd(56, P_WS, WS_BYTES)
    def reads(gi):
        sl = gi % 4
        ab, o0 = (10, sl * SLOT) if sl < 3 else (14, 0)
        b = BUF + 40 * (gi & 1)
        o = []
        for k2 in range(2):
            for mi in range(2):
                o.append(f"ds_read_b128 {v(b+20*k2+4*mi,4)}, v{ab} offset:{o0+4096*k2+1024*mi}")
            for t in range(3):
                for jh in range(2):
                    o.append(f"ds_read_b64_tr_b16 {v(b+20*k2+8+4*t+2*jh,2)}, v{ab+1+t} offset:{o0+6144*k2+256*jh}")
        return o
    def work(gi):
        b = BUF + 40 * (gi & 1)
        o = []
        for k2 in range(2):
            c0 = "0" if (gi == 0 and k2 == 0) else None
            bb = b + 20 * k2
            for t in range(3):
                for mi in range(2): o.append(("m", ACC + 8 * t + 4 * mi, bb + 8 + 4 * t, bb + 4 * mi, c0))
                o.append(("m", CS + 4 * t, bb + 8 + 4 * t, ONE, c0))
            for mi in range(2): o.append(("m", SM + 4 * mi, ONE, bb + 4 * mi, c0))
            for mi in range(2): o.append(("m", SQ + 4 * mi, bb + 4 * mi, bb + 4 * mi, c0))
        return o, []
    for gi in range(10):
        rd = []
        if gi < 9:
            a("s_barrier")
            if gi == 0: a.stamp(2)
            if gi == 8: a.stamp(3)
            rd = reads(gi)
        if gi == 0:
            for r in rd: a(r)
        else:
            mm, dd = work(gi - 1)
            for n, (_, d, x, y, c) in enumerate(mm):
                if n < len(rd): a(rd[n])
                a.mfma(d, x, y, c)
                if n >= 6 and dd: a(dd.pop(0))
        a("s_waitcnt lgkmcnt(0)")
    a.stamp(4)
    a("s_lshl_b32 s10, s6, 6\ns_lshl_b32 s11, s8, 5\ns_add_u32 s10, s10, s11")
    a("v_add_u32 v4, s10, v2")
    a("v_lshlrev_b32 v5, 8, v3")
    a("s_mul_i32 s12, s7, 6\ns_mul_i32 s11, s9, 3\ns_add_u32 s12, s12, s11")
    a("s_mul_i32 s13, s12, 57\ns_lshr_b32 s13, s13, 9")
    a("s_lshr_b32 s14, s13, 1\ns_add_u32 s14, s14, 1\ns_sub_u32 s15, 0, s14\ns_bitcmp1_b32 s13, 0\ns_cselect_b32 s14, s15, s14")
    a("s_movk_i32 s13, 18432")
    for mi in range(2):
        a(f"v_mov_b32 v{20+2*mi}, 0")
        for r in range(4):
            a(f"v_cndmask_b32 v{20+2*mi}, v{20+2*mi}, v{SQ+4*mi+r}, {s(44+2*r,2)}")
        gsum(a, 20 + 2 * mi, 6)
        a(f"v_add_u32 v6, s14, v4" if mi == 0 else "v_add_u32 v6, s14, v4\nv_add_u32 v6, 16, v6")
        a(f"v_cmp_gt_u32 vcc, {S}, v6")
        a(f"s_mov_b64 {s(62+2*mi,2)}, vcc")
        a("v_bfe_u32 v7, v6, 4, 7")
        a(f"v_mad_u32_u24 v{8+mi}, v7, s13, v5")
        a("v_and_b32 v6, 15, v6")
        a(f"v_lshl_add_u32 v{8+mi}, v6, 4, v{8+mi}")
    for mi in range(2):
        mn, q, r1 = 24 + mi, 20 + 2 * mi, 26 + 2 * mi
        a(f"v_mul_f32 v{mn}, {fh(1.0/D)}, v{SM+4*mi}")
        a(f"v_mul_f32 v{q}, {fh(1.0/D)}, v{q}")
        a(f"v_fma_f32 v{q}, -v{mn}, v{mn}, v{q}")
        a(f"v_max_f32 v{q}, 0, v{q}")
        a(f"v_add_f32 v{q+1}, {fh(EPS)}, v{q}")
        a(f"v_rsq_f32 v{r1}, v{q+1}")
        a("s_nop 0")
        a(f"v_mul_f32 v{q+1}, v{r1}, v{r1}")
        a(f"v_fmaak_f32 v{q+1}, v{q+1}, v{q}, {fh(EPS)}")
        a(f"v_rsq_f32 v{q+1}, v{q+1}")
        a(f"v_mul_f32 v{r1+1}, -v{mn}, v{r1}" if False else f"v_mul_f32 v{r1+1}, v{mn}, v{r1}\nv_sub_f32 v{r1+1}, 0, v{r1+1}")
        a(f"v_mul_f32 v{q}, v{q+1}, v{r1}")
    a("s_or_b32 s11, s7, s9\ns_cmp_lg_u32 s11, 0\ns_cbranch_scc1 G1_ns")
    a(f"v_lshlrev_b32 v6, 3, v4\ns_mov_b32 s11, {ST1_OFF}\ns_mov_b64 exec, 0xffff")
    a("buffer_store_dwordx2 v[26:27], v6, s[56:59], s11 offen\nbuffer_store_dwordx2 v[28:29], v6, s[56:59], s11 offen offset:128")
    a("s_mov_b64 exec, -1")
    a("G1_ns:")
    a(f"v_mov_b32 v30, {fh(GC0)}\nv_mov_b32 v31, {fh(GC1)}")
    for t in range(3):
        regs = [ACC + 8 * t + e for e in range(8)]
        for e in range(8): a(f"v_fma_f32 v{regs[e]}, -v{24+(e>>2)}, v{CS+4*t+(e&3)}, v{regs[e]}")
        for e in range(8): a(f"v_mul_f32 v{regs[e]}, v{regs[e]}, v{20+2*(e>>2)}")
        gelu_vals(a, regs, list(range(BUF, BUF + 8)), "v30", "v31")
        p = BUF + 8 + 4 * t
        for e in range(4): a(f"v_cvt_pk_bf16_f32 v{p+e}, v{regs[2*e]}, v{regs[2*e+1]}")
        for e in range(4): a(f"v_cndmask_b32 v{p+e}, 0, v{p+e}, {s(62+2*(e>>1),2)}")
        a(f"s_lshr_b32 s11, s12, 1\ns_lshl_b32 s11, s11, 10\ns_and_b32 s15, s12, 1\ns_lshl_b32 s15, s15, 3\ns_add_u32 s11, s11, s15\ns_add_u32 s12, s12, 1")
        if H_OFF: a(f"s_add_u32 s11, s11, {H_OFF}")
        for mi in range(2): a(f"buffer_store_dwordx2 {v(p+2*mi,2)}, v{8+mi}, s[56:59], s11 offen")
    a.stamp(5)
    a.end()

def gen_g1_loader(a):
    a.srd(48, P_Q, ACT)
    a.srd(44, P_W1, D * D * 2)
    a("v_lshrrev_b32 v2, 2, v1\nv_and_b32 v3, 3, v1\nv_mul_u32_u24 v4, 1152, v2")
    a("v_lshrrev_b32 v6, 5, v1\nv_lshlrev_b32 v6, 1, v6\nv_xor_b32 v6, v6, v3")
    a("v_lshl_add_u32 v6, v6, 4, v4")
    a("s_sub_u32 s8, s3, 4")
    a("s_mul_i32 s9, s8, 18432\ns_mul_i32 s10, s6, 73728\ns_add_u32 s10, s10, s9")
    a("s_mul_i32 s11, s7, 192\ns_add_u32 s11, s11, s9")
    a("s_mul_i32 s12, s7, 3\ns_lshr_b32 s12, s12, 1\ns_mul_i32 s13, s60, 9\ns_lshr_b32 s13, s13, 2\ns_add_u32 s12, s12, s13")
    if "norot" in OPT: a("s_mov_b32 s12, 0")
    a("s_sub_u32 s13, s12, 9\ns_cmp_ge_u32 s12, 9\ns_cselect_b32 s12, s13, s12")
    a("s_lshl_b32 s13, s8, 10\ns_lshl_b32 s61, s8, 11\ns_add_u32 s61, s61, 4160")
    DEP = optval("G1DEP", 2)
    a(f"s_mov_b32 s14, {9+DEP}")
    a("G1L_l:")
    a(f"s_cmp_gt_u32 s14, 9\ns_cbranch_scc1 G1L_i")
    if a.stamps: a("s_cmp_eq_u32 s14, 9\ns_cbranch_scc0 G1L_s1\ns_memrealtime s[78:79]\nG1L_s1:")
    a(f"s_waitcnt vmcnt({5*(DEP-1)})")
    if a.stamps: a("s_cmp_eq_u32 s14, 9\ns_cbranch_scc0 G1L_s2\ns_memrealtime s[80:81]\nG1L_s2:")
    a("s_barrier")
    a("G1L_i:")
    a("s_lshl_b32 s15, s12, 7\ns_add_u32 s15, s15, s10\ns_mov_b32 m0, s13\ns_mul_i32 s9, s12, 73728")
    a("buffer_load_dwordx4 v6, s[48:51], s15 offen " + ("nt " if "xnt" in OPT else "") + "lds")
    a("s_add_u32 m0, m0, 4032\ns_add_u32 s9, s9, s11")
    a("buffer_load_dwordx4 v6, s[48:51], s15 offen offset:64 " + ("nt " if "xnt" in OPT else "") + "lds")
    a("s_add_u32 m0, m0, s61\ns_add_u32 s12, s12, 1")
    a("buffer_load_dwordx4 v6, s[44:47], s9 offen " + ("nt " if "wnt" in OPT else "") + "lds")
    a("s_add_u32 m0, m0, 960\ns_cmp_eq_u32 s12, 9")
    a("buffer_load_dwordx4 v6, s[44:47], s9 offen offset:64 " + ("nt " if "wnt" in OPT else "") + "lds")
    a("s_cselect_b32 s12, 0, s12\ns_add_u32 m0, m0, 960\ns_add_u32 s13, s13, 20480")
    a("buffer_load_dwordx4 v6, s[44:47], s9 offen offset:128 " + ("nt " if "wnt" in OPT else "") + "lds")
    a(f"s_sub_u32 s15, s13, {4*SLOT}\ns_cmp_ge_u32 s13, {4*SLOT}\ns_cselect_b32 s13, s15, s13")
    a(f"s_sub_u32 s14, s14, 1\ns_cmp_gt_u32 s14, {DEP}\ns_cbranch_scc1 G1L_l")
    for i in range(DEP):
        a(f"s_waitcnt vmcnt({5*(DEP-1-i)})\ns_barrier")
    a.stamp(2)

def gen_kv(a):
    KR, VR, SH, SP, KU, RES, PK = 32, 76, 108, 124, 132, 156, 172
    a("s_mul_i32 s7, s6, 7282\ns_lshr_b32 s7, s7, 16")
    a("s_mul_i32 s8, s7, 9\ns_sub_u32 s8, s6, s8")
    a("v_and_b32 v2, 7, v1\nv_lshrrev_b32 v3, 3, v1")
    a("s_lshl_b32 s9, s7, 6")
    a("v_lshl_add_u32 v4, v3, 3, s9")
    a("v_mul_u32_u24 v5, 1152, v4")
    a("s_lshl_b32 s10, s8, 7")
    a("v_lshl_add_u32 v5, v2, 4, v5\nv_add_u32 v5, s10, v5")
    a("v_subrev_u32 v6, 3456, v5")
    a("v_cmp_eq_u32 vcc, 0, v4")
    a("v_mov_b32 v7, 0x80000000\ns_lshl_b32 s11, s8, 9")
    a("v_cndmask_b32 v6, v6, v7, vcc")
    a("v_lshlrev_b32 v7, 6, v2")
    a("s_movk_i32 s12, 4608")
    a.srd(44, P_K, ACT)
    a.srd(48, P_V, ACT)
    a.srd(52, P_SHK, D * 8)
    a.srd(56, P_WS, WS_BYTES)
    for i in range(4):
        a(f"buffer_load_dwordx4 {v(SH+4*i,4)}, v7, s[52:55], s11 offen offset:{16*i}")
    for j in range(8):
        so = "0" if j < 4 else "s12"
        a(f"buffer_load_dwordx4 {v(KR+12+4*j,4)}, v5, s[44:47], {so} offen offset:{1152*(j&3)} nt")
    for j in range(3):
        a(f"buffer_load_dwordx4 {v(KR+4*j,4)}, v6, s[44:47], 0 offen offset:{1152*j} nt")
    for j in range(8):
        so = "0" if j < 4 else "s12"
        a(f"buffer_load_dwordx4 {v(VR+4*j,4)}, v5, s[48:51], {so} offen offset:{1152*(j&3)} nt")
    a("s_lshl_b32 s13, s3, 13")
    a("v_sub_u32 v8, 7, v3\nv_xor_b32 v8, v8, v2\nv_lshlrev_b32 v8, 4, v8\nv_lshl_add_u32 v8, v2, 10, v8\nv_add_u32 v8, s13, v8")
    a("v_lshlrev_b32 v9, 4, v1\nv_add_u32 v9, s13, v9")
    a(f"v_mul_u32_u24 v10, {KV_PITCH}, v3\nv_lshl_add_u32 v10, v2, 4, v10")
    a(f"s_mul_i32 s14, s8, {64*KV_PITCH}\ns_lshl_b32 s15, s7, 7\ns_sub_u32 s14, s14, s15\ns_add_u32 s14, s14, {KV_OFF+3968}")
    a.stamp(2)
    for q in range(4):
        if q == 0: a("s_waitcnt vmcnt(8)")
        for d in range(4):
            for h in range(2):
                src = SH + 4 * q + 2 * h + (d >> 1)
                if d & 1: a(f"v_and_b32 v{SP+2*d+h}, 0xffff0000, v{src}")
                else: a(f"v_lshlrev_b32 v{SP+2*d+h}, 16, v{src}")
        for j in range(11):
            a(f"v_lshlrev_b32 v{KU+2*j}, 16, v{KR+4*j+q}")
            a(f"v_and_b32 v{KU+2*j+1}, 0xffff0000, v{KR+4*j+q}")
        for j in range(8):
            a(f"v_pk_mul_f32 {v(RES+2*j,2)}, {v(KU+2*(j+3),2)}, {v(SP,2)}")
        for d in range(1, 4):
            for j in range(8):
                a(f"v_pk_fma_f32 {v(RES+2*j,2)}, {v(KU+2*(j+3-d),2)}, {v(SP+2*d,2)}, {v(RES+2*j,2)}")
        if q == 0:
            a("s_waitcnt vmcnt(0)")
            a.stamp(3)
        for j in range(8):
            a(f"v_lshlrev_b32 v{KU+2*j}, 16, v{VR+4*j+q}")
            a(f"v_and_b32 v{KU+2*j+1}, 0xffff0000, v{VR+4*j+q}")
        for j in range(8):
            a(f"v_pk_mul_f32 {v(RES+2*j,2)}, {v(RES+2*j,2)}, {v(KU+2*j,2)}")
        p = PK + 8 * (q & 1)
        for h in range(2):
            for e in range(4):
                a(f"v_cvt_pk_bf16_f32 v{p+4*h+e}, v{RES+2*(7-2*e)+h}, v{RES+2*(6-2*e)+h}")
            a(f"ds_write_b128 v8, {v(p+4*h,4)} offset:{(2*q+h)*128}")
    for i in range(8):
        a(f"v_xor_b32 v11, {16*i}, v9")
        a(f"ds_read_b128 {v(KR+4*i,4)}, v11 offset:{1024*i}")
    a.stamp(4)
    a("s_mov_b32 s15, s14")
    for i in range(8):
        a(f"s_waitcnt lgkmcnt({7-i})")
        a(f"buffer_store_dwordx4 {v(KR+4*i,4)}, v10, s[56:59], s14 offen sc1")
        a(f"s_add_u32 s14, s14, {8*KV_PITCH}")
    a("s_cmp_lg_u32 s7, 0\ns_cbranch_scc1 KV_z")
    for r in range(4): a(f"v_mov_b32 v{KU+r}, 0")
    for i in range(8):
        a(f"buffer_store_dwordx4 {v(KU,4)}, v10, s[56:59], s15 offen offset:128 sc1")
        a(f"s_add_u32 s15, s15, {8*KV_PITCH}")
    a("KV_z:")
    a.end()

def gen_meantile(a):
    R = 32
    a("v_and_b32 v2, 15, v1\nv_lshrrev_b32 v3, 4, v1")
    a("v_mul_u32_u24 v4, 1152, v2\nv_lshl_add_u32 v4, v3, 4, v4")
    a("s_mul_i32 s7, s6, 36864\ns_add_u32 s8, s7, 18432")
    a.srd(44, P_W2, D * D * 2)
    a.srd(56, P_WS, WS_BYTES)
    for jh in range(2):
        for i in range(18):
            a(f"buffer_load_dwordx4 {v(R+72*jh+4*i,4)}, v4, s[44:47], s{7+jh} offen offset:{64*i}")
    for r in range(4): a(f"v_mov_b32 v{8+r}, 0x3f803f80")
    a("s_waitcnt vmcnt(0)")
    for i in range(18):
        for jh in range(2):
            a.mfma(12 + 4 * jh, R + 72 * jh + 4 * i, 8, "0" if i == 0 else None)
    a("v_and_b32 v5, 1, v1\nv_cmp_eq_u32 vcc, 1, v5")
    a.nop(8)
    for r in range(8): a(f"v_mul_f32 v{12+r}, {fh(1.0/D)}, v{12+r}")
    for e in range(4): a(f"v_cvt_pk_bf16_f32 v{20+e}, v{12+2*e}, v{13+2*e}")
    for e in range(4):
        a(f"v_lshlrev_b32 v24, 16, v{20+e}\nv_and_b32 v25, 0xffff0000, v{20+e}")
        a(f"v_sub_f32 v24, v{12+2*e}, v24\nv_sub_f32 v25, v{13+2*e}, v25")
        a(f"v_cvt_pk_bf16_f32 v24, v24, v25")
        a(f"v_cndmask_b32 v{20+e}, v{20+e}, v24, vcc")
    a(f"s_lshl_b32 s7, s6, 7\ns_add_u32 s7, s7, {W2M_OFF}")
    a("v_lshlrev_b32 v5, 6, v5\nv_lshl_add_u32 v5, v3, 4, v5")
    a("s_mov_b32 exec_lo, 0x30003\ns_mov_b32 exec_hi, 0x30003")
    a("buffer_store_dwordx4 v[20:23], v5, s[56:59], s7 offen sc1")
    a.end()

def gen_ka(a, endlabel):
    a(".p2align 8\nka_kernel:")
    a("s_cmp_ge_u32 s2, 256\ns_cbranch_scc1 KA_end")
    a.stamp_init()
    a.kernargs()
    a("v_cmp_gt_u32 vcc, 16, v0\ns_and_saveexec_b64 s[12:13], vcc\ns_cbranch_execz KA_pf")
    a.prefetch_code(endlabel, 2, 31, 6)
    a("KA_pf:\ns_mov_b64 exec, -1")
    a("v_lshrrev_b32 v2, 6, v0\nv_and_b32 v1, 63, v0")
    a("v_readfirstlane_b32 s3, v2")
    a("s_and_b32 s4, s2, 7\ns_lshr_b32 s5, s2, 3")
    a("s_mul_i32 s60, s5, 43\ns_lshr_b32 s60, s60, 8")
    a("s_mul_i32 s7, s60, 6\ns_sub_u32 s7, s5, s7")
    a("s_lshl_b32 s6, s60, 3\ns_add_u32 s6, s6, s4")
    a("s_waitcnt lgkmcnt(0)")
    a.stamp(1)
    a("s_cmp_ge_u32 s5, 24\ns_cbranch_scc1 KA_free")
    a("s_cmp_ge_u32 s3, 4\ns_cbranch_scc1 KA_hi")
    gen_g1_consumer(a)
    a("KA_hi:")
    gen_g1_loader(a)
    a("s_cmp_lt_u32 s3, 6\ns_cbranch_scc1 KA_late")
    a.srd(44, P_W2, D * D * 2)
    a("s_lshl_b32 s6, s5, 1\ns_add_u32 s6, s6, s3\ns_sub_u32 s6, s6, 6\ns_mul_i32 s6, s6, 13824")
    a("v_min_u32 v2, 53, v1\nv_lshlrev_b32 v2, 7, v2\ns_add_u32 s7, s6, 6912")
    a("buffer_load_dword v8, v2, s[44:47], s6 offen\nbuffer_load_dword v9, v2, s[44:47], s7 offen")
    a("s_waitcnt vmcnt(0)")
    a.end()
    a("KA_late:")
    a("s_mul_i32 s12, s8, 24\ns_add_u32 s12, s12, s5\ns_add_u32 s12, s12, 16")
    a(f"s_lshl_b32 s9, s8, 12\ns_add_u32 s9, s9, {KA_PT}")
    a("s_cmp_ge_u32 s12, 54\ns_cbranch_scc1 KA_end")
    a("s_branch KA_pt")
    a("KA_zero:")
    a("s_sub_u32 s12, s12, 16\ns_lshl_b32 s12, s12, 3\ns_add_u32 s12, s12, s4")
    a(f"s_cmp_ge_u32 s12, {FLAG_WAVES}\ns_cbranch_scc1 KA_end")
    a.srd(56, P_WS, WS_BYTES)
    a(f"s_mul_i32 s6, s12, {2*FB_STRIDE}\ns_add_u32 s6, s6, {FLAG_OFF}")
    a(f"v_lshrrev_b32 v3, 5, v1\nv_mul_u32_u24 v3, {FB_STRIDE-512}, v3\nv_lshl_add_u32 v2, v1, 4, v3")
    a("v_mov_b32 v4, 0\nv_mov_b32 v5, 0\nv_mov_b32 v6, 0\nv_mov_b32 v7, 0")
    a("buffer_store_dwordx4 v[4:7], v2, s[56:59], s6 offen sc1")
    a("s_endpgm")
    a("KA_free:")
    a("s_lshl_b32 s12, s3, 3\ns_add_u32 s12, s12, s5\ns_sub_u32 s12, s12, 24")
    a("s_cmp_ge_u32 s12, 39\ns_cbranch_scc1 KA_pt1")
    a("s_cmp_ge_u32 s12, 36\ns_cbranch_scc1 KA_mean")
    a("s_mul_i32 s6, s4, 36\ns_add_u32 s6, s6, s12")
    if "nokv" in OPT: a("s_endpgm")
    gen_kv(a)
    a("KA_mean:")
    a("s_mul_i32 s6, s4, 3\ns_add_u32 s6, s6, s12\ns_sub_u32 s6, s6, 36")
    a("s_cmp_ge_u32 s6, 18\ns_cbranch_scc1 KA_end")
    gen_meantile(a)
    a("KA_pt1:")
    a("s_sub_u32 s12, s12, 39\ns_cmp_ge_u32 s12, 16\ns_cbranch_scc1 KA_zero")
    a("s_lshl_b32 s9, s3, 13")
    a("KA_pt:")
    if "nopt" in OPT: a("s_endpgm")
    a.srd(56, P_WS, WS_BYTES)
    a.srd(44, P_W3, D * F * 2)
    a("s_mul_i32 s13, s12, 86\ns_lshr_b32 s13, s13, 8")
    a("s_mul_i32 s14, s13, 3\ns_sub_u32 s14, s12, s14")
    a("s_mul_i32 s6, s13, 294912\ns_mul_i32 s14, s14, 384\ns_add_u32 s6, s6, s14\ns_mul_i32 s14, s4, 1152\ns_add_u32 s6, s6, s14")
    a("s_movk_i32 s7, 9216")
    a(f"s_mul_i32 s8, s4, {WSLICE}\ns_add_u32 s8, s8, {W3T_OFF}")
    a("s_mul_i32 s13, s12, 12288\ns_add_u32 s8, s8, s13")
    gen_pretile(a)
    a.stamp(5)
    a.end()
    a("KA_end:")
    a("s_endpgm")
```

```python
from common import *

G2_WM, G2_XT, G2_W = 0, 3072, 15360
CV, CV_SZ = 92160, 21248
CNT = CV + 3 * CV_SZ
RM = CNT + 64
PT7 = RM + 1024
KB_LDS = PT7 + 4096
ML_H = 73728
VC, V1 = 16, 17
NS = optval("NS", 18)
RING = 32
BF = RING + 4 * NS
MACC = BF + 16
KC = MACC + 80
GT = KC + 8
assert GT + 16 <= 256

class Stream:
    def __init__(self, a, segs):
        self.a = a
        self.items = [(sg, ks, t) for sg, sd in enumerate(segs) for ks in range(18) for t in range(len(sd[1]))]
        self.segs = segs
        self.issued = 0
        self.log = []
        self.hold = None
    def issue(self):
        if self.issued >= len(self.items): return
        sg, ks, t = self.items[self.issued]
        sr, tl, fl = self.segs[sg]
        if t == 0 and ks > 0: self.a(f"s_add_u32 s{sr}, s{sr}, 36864")
        vo, off = tl[t]
        self.a(f"buffer_load_dwordx4 {v(RING+4*(self.issued % NS),4)}, v{vo}, s[56:59], s{sr} offen offset:{off}{fl}")
        self.log.append(self.issued)
        self.issued += 1
    def other(self, tag="x"): self.log.append(tag)
    def index(self, sg, ks, t): return self.items.index((sg, ks, t))
    def younger(self, key): return len(self.log) - 1 - self.log.index(key)

def mphase(a, st, sg, vb, ks0=0, ks1=18, first=True, novm=False, acc=MACC, hook=None):
    nt = len(st.segs[sg][1])
    def rd(ks, m): a(f"ds_read_b128 {v(BF+4*m,4)}, v{vb + (m >> 1)} offset:{(m&1)*18432+ks*1024}")
    for m in range(4): rd(ks0, m)
    for ks in range(ks0, ks1):
        vm = st.younger(st.index(sg, ks, nt - 1))
        for m in range(4):
            lg = 3 if ks + 1 < ks1 else 3 - m
            if m == 0 and not novm: a(f"s_waitcnt vmcnt({min(vm,63)}) lgkmcnt({lg})")
            else: a(f"s_waitcnt lgkmcnt({lg})")
            for t in range(nt):
                n = st.index(sg, ks, t)
                a.mfma(acc + 16 * t + 4 * m, RING + 4 * (n % NS), BF + 4 * m, "0" if (first and ks == ks0) else None)
                if m == 3: st.issue()
                if hook: hook(ks, m, t)
            if ks + 1 < ks1: rd(ks + 1, m)

def gphase(a, ve, vo, hook=None):
    a.nop(8)
    for t in range(3):
        for mp in range(2):
            regs = [MACC + 16 * t + 8 * mp + e for e in range(8)]
            k0 = [f"v{KC + 2*(2*mp + (e >> 2))}" for e in range(8)]
            k1 = [f"v{KC + 2*(2*mp + (e >> 2)) + 1}" for e in range(8)]
            gelu_vals(a, regs, list(range(GT, GT + 8)), k0, k1)
            p = GT + 8 + 4 * (mp & 1)
            for e in range(4): a(f"v_cvt_pk_bf16_f32 v{p+e}, v{regs[2*e]}, v{regs[2*e+1]}")
            ad = (ve if t != 1 else vo) + mp
            for mm in range(2):
                a(f"ds_write_b64 v{ad}, {v(p+2*mm,2)} offset:{mm*18432+(t>>1)*1024}")
            if hook: hook(2 * t + mp)

def h_addr(a, sT, ve, vo):
    for k, dst in ((0, ve), (1, vo)):
        a(f"s_add_u32 s12, s{sT}, {k}\ns_lshr_b32 s13, s12, 1\ns_lshl_b32 s13, s13, 10\ns_and_b32 s12, s12, 1\ns_lshl_b32 s12, s12, 3\ns_add_u32 s12, s12, s13\ns_add_u32 s12, s12, {ML_H}")
        a(f"v_add_u32 v{dst}, s12, v2\nv_add_u32 v{dst+1}, 36864, v{dst}")

def pstore(a, acc, t, mp, sreg, off, k):
    p = GT + 4 * (k % 4)
    o = [f"v_cvt_pk_bf16_f32 v{p+e}, v{acc+16*t+8*mp+2*e}, v{acc+16*t+8*mp+2*e+1}" for e in range(4)]
    o.append(f"buffer_store_dwordx4 {v(p,4)}, v2, s[56:59], s{sreg} offen offset:{off} sc1")
    return o

def gen_gemm2(a):
    HB, BUF, ACC = 32, 104, 216
    a("s_lshl_b32 s8, s61, 2\ns_add_u32 s8, s8, s3")
    a("s_mul_i32 s9, s8, 18432")
    a(f"s_add_u32 s10, s9, {H_OFF}")
    for ks in range(18):
        if ks and ks % 4 == 0: a("s_add_u32 s10, s10, 4096")
        a(f"buffer_load_dwordx4 {v(HB+4*ks,4)}, v2, s[56:59], s10 offen offset:{(ks%4)*1024}")
    a.srd(44, P_Q, ACT)
    a("v_lshrrev_b32 v5, 2, v1\nv_and_b32 v6, 3, v1\nv_mul_u32_u24 v7, 1152, v5\nv_lshl_add_u32 v7, v6, 4, v7")
    a(f"s_mul_i32 s12, s3, 3072\ns_add_u32 s12, s12, {G2_XT}\ns_mov_b32 m0, s12\ns_lshl_b32 s10, s62, 6\ns_add_u32 s10, s10, s9")
    for p in range(3):
        if p: a("s_add_u32 m0, m0, 960\ns_nop 0")
        a(f"buffer_load_dwordx4 v7, s[44:47], s10 offen offset:{64*p} lds")
    a("v_and_b32 v8, 15, v1\nv_lshrrev_b32 v9, 4, v1\nv_lshlrev_b32 v10, 3, v8")
    a(f"s_lshl_b32 s10, s8, 7\ns_add_u32 s10, s10, {ST1_OFF}")
    a("buffer_load_dwordx2 v[18:19], v10, s[56:59], s10 offen")
    a(f"s_lshl_b32 s11, s62, 10\ns_add_u32 s11, s11, s9\ns_add_u32 s11, s11, {X1_OFF}")
    a(f"v_lshlrev_b32 v12, 6, v5\nv_and_b32 v13, 1, v9\nv_lshl_add_u32 v12, v13, 5, v12\nv_lshl_add_u32 v12, v6, 3, v12\nv_add_u32 v12, {G2_W}, v12")
    a("v_xor_b32 v13, 32, v12\nv_add_u32 v14, 49152, v12\nv_add_u32 v15, 49152, v13")
    a("v_and_b32 v11, 1, v1\nv_lshlrev_b32 v11, 6, v11\nv_lshl_add_u32 v11, v9, 4, v11")
    a("v_lshlrev_b32 v20, 6, v8\nv_lshl_add_u32 v20, v9, 3, v20\nv_add_u32 v20, s12, v20")
    a("v_mov_b32 v10, 0")
    a.stamp(1)
    a("s_cmp_eq_u32 s63, 3\ns_cbranch_scc1 G2_n3")
    for npair in (2, 3):
        nt = 1 + 2 * npair
        if npair == 3: a("G2_n3:")
        def reads(gi):
            b = BUF + 56 * (gi & 1)
            o = []
            for k2 in range(2):
                ks = 2 * gi + k2
                o.append(f"ds_read_b128 {v(b+28*k2,4)}, v11 offset:{G2_WM+128*ks}")
                for t in range(2 * npair):
                    for jh in range(2):
                        off = ((ks * 2 + jh) * npair + (t >> 1)) * 1024
                        ad = 12 + (t & 1)
                        if off >= 49152: off -= 49152; ad += 2
                        o.append(f"ds_read_b64_tr_b16 {v(b+28*k2+4+4*t+2*jh,2)}, v{ad} offset:{off}")
            return o
        for gi in range(10):
            rd = []
            if gi < 9:
                a("s_barrier")
                if gi == 0 and npair == 2: a.stamp(2)
                rd = reads(gi)
            if gi == 9:
                a("s_waitcnt vmcnt(0)")
                rd = [f"ds_read_b64 {v(BUF+56+2*t,2)}, v20 offset:{(t>>1)*1024+(t&1)*32}" for t in range(2 * npair)]
            if gi > 0:
                g = gi - 1
                if gi < 9: a(f"s_waitcnt vmcnt({22-2*gi})")
                b = BUF + 56 * (g & 1)
                for k2 in range(2):
                    for t in range(nt):
                        for _ in range(2):
                            if rd: a(rd.pop(0))
                        a.mfma(ACC + 4 * t, b + 28 * k2 + 4 * t, HB + 4 * (2 * g + k2), "0" if (g == 0 and k2 == 0) else None)
            for r in rd: a(r)
            a("s_waitcnt lgkmcnt(0)")
        XS = BUF + 56
        for e in range(4 * npair):
            a(f"v_lshlrev_b32 v{HB+2*e}, 16, v{XS+e}\nv_and_b32 v{HB+2*e+1}, 0xffff0000, v{XS+e}")
        a(f"v_add_f32 v9, v{ACC}, v{ACC+1}")
        a("v_sub_f32 v19, v19, v9")
        for p in range(npair):
            for e in range(8): a(f"v_fma_f32 v{HB+8*p+e}, v{HB+8*p+e}, v18, v19")
            for e in range(8): a(f"v_add_f32 v{HB+8*p+e}, v{HB+8*p+e}, v{ACC+4+8*p+e}")
            for e in range(4): a(f"v_cvt_pk_bf16_f32 v{BUF+4*p+e}, v{HB+8*p+2*e}, v{HB+8*p+2*e+1}")
            a(f"buffer_store_dwordx4 {v(BUF+4*p,4)}, v2, s[56:59], s11 offen offset:{p*1024} sc1")
        for e in range(8 * npair): a(f"v_fmac_f32 v10, v{HB+e}, v{HB+e}")
        if npair == 2: a("s_branch G2_j")
    a("G2_j:")
    gsum(a, 10, 11)
    a(f"s_lshl_b32 s10, s61, 3\ns_add_u32 s10, s10, s60\ns_lshl_b32 s10, s10, 8\ns_lshl_b32 s12, s3, 6\ns_add_u32 s10, s10, s12\ns_add_u32 s10, s10, {SS_OFF}")
    a(f"s_lshl_b32 s12, s8, 6\ns_add_u32 s12, s12, {MEAN_OFF}")
    a("s_mov_b64 exec, 0xffff")
    a("buffer_store_dword v10, v4, s[56:59], s10 offen sc1")
    a(f"s_cmp_lg_u32 s60, 0\ns_cbranch_scc1 G2_m")
    a("buffer_store_dword v9, v4, s[56:59], s12 offen sc1")
    a("G2_m:")
    a("s_mov_b64 exec, -1")

def gen_w2load(a):
    a.srd(44, P_W2, D * D * 2)
    a("v_lshrrev_b32 v5, 2, v1\nv_and_b32 v6, 3, v1\nv_mul_u32_u24 v7, 1152, v5")
    a("v_bfe_u32 v8, v1, 4, 1\nv_lshlrev_b32 v8, 1, v8\nv_xor_b32 v8, v8, v6\nv_lshl_add_u32 v7, v8, 4, v7")
    a("s_sub_u32 s12, s3, 4")
    a(f"s_min_u32 s8, s12, 2\ns_lshl_b32 s8, s8, 10\ns_mov_b32 m0, s8\ns_add_u32 s8, s8, {W2M_OFF}")
    a("buffer_load_dwordx4 v2, s[56:59], s8 offen lds")
    a(f"s_lshl_b32 s6, s63, 10\ns_mul_i32 s7, s12, s6\ns_add_u32 s7, s7, {G2_W}\ns_lshl_b32 s6, s6, 2")
    a("s_mul_i32 s9, s12, 18432\ns_lshl_b32 s10, s62, 6\ns_add_u32 s9, s9, s10")
    DEP = optval("G2DEP", 3)
    a(f"s_mov_b32 s14, {9+DEP}")
    def wait(n):
        l1 = a.lab("WA"); l2 = a.lab("WB")
        if n == 0: a("s_waitcnt vmcnt(0)")
        else: a(f"s_cmp_eq_u32 s63, 2\ns_cbranch_scc1 {l1}\ns_waitcnt vmcnt({3*n})\ns_branch {l2}\n{l1}:\ns_waitcnt vmcnt({2*n})\n{l2}:")
        a("s_barrier")
    a("W2_l:")
    a("s_cmp_gt_u32 s14, 9\ns_cbranch_scc1 W2_i")
    wait(DEP - 1)
    a("W2_i:")
    a("s_mov_b32 m0, s7\ns_add_u32 s7, s7, s6")
    a("buffer_load_dwordx4 v7, s[44:47], s9 offen lds")
    a("s_add_u32 m0, m0, 960\ns_cmp_eq_u32 s63, 2")
    a("buffer_load_dwordx4 v7, s[44:47], s9 offen offset:64 lds")
    a("s_cbranch_scc1 W2_a")
    a("s_add_u32 m0, m0, 960\ns_nop 0")
    a("buffer_load_dwordx4 v7, s[44:47], s9 offen offset:128 lds")
    a("W2_a:")
    a("s_add_u32 s9, s9, 73728")
    a(f"s_sub_u32 s14, s14, 1\ns_cmp_gt_u32 s14, {DEP}\ns_cbranch_scc1 W2_l")
    a("s_cmp_eq_u32 s55, 0\ns_cbranch_scc1 W2_t")
    gen_conv_load(a)
    for i in range(DEP): a(f"s_waitcnt vmcnt({10+2*(DEP-1-i)})\ns_barrier")
    a("s_branch KB_conv")
    a("W2_t:")
    for i in range(DEP): wait(DEP - 1 - i)

def gen_conv_load(a):
    a.srd(48, P_SSMK, ACT)
    a(f"s_mul_i32 s54, s52, {KV_PITCH}\ns_add_u32 s54, s54, {KV_OFF}")
    a("s_lshl_b32 s10, s52, 12")
    a(f"s_mov_b32 m0, s53\ns_add_u32 s11, s54, 4")
    for i in range(4): a(f"buffer_load_dwordx4 v2, s[56:59], s54 offen offset:{i*1024} lds")
    a("s_mov_b64 exec, 7")
    a("s_add_u32 m0, s53, 4096\ns_nop 0")
    a("buffer_load_dwordx4 v3, s[56:59], s54 offen lds")
    a(f"s_add_u32 m0, s53, {2*4160+4096}\ns_nop 0")
    a("buffer_load_dwordx4 v3, s[56:59], s11 offen lds")
    a("s_mov_b64 exec, -1")
    a(f"s_add_u32 m0, s53, {4*4160+512}\ns_nop 0")
    for i in range(4): a(f"buffer_load_dwordx4 v2, s[48:51], s10 offen offset:{i*1024} nt lds")

def gen_conv(a, mid):
    FA, FB, ACC = 96, 160, 224
    a("s_mov_b32 s6, s52\ns_mov_b32 s7, s53")
    a("s_lshl_b32 s8, s6, 1\ns_and_b32 s8, s8, 0xfffffffc")
    a(f"s_load_dword s15, {s(P_SSMD,2)}, s8")
    a(f"s_add_u32 m0, s7, {2*4160}")
    a("s_waitcnt vmcnt(6)")
    for i in range(4): a(f"buffer_load_dwordx4 v2, s[56:59], s11 offen offset:{i*1024} lds")
    a("v_lshlrev_b32 v5, 3, v1\nv_add_u32 v5, s7, v5\nv_mov_b32 v18, 0\nv_mov_b32 v19, 0")
    a(f"ds_write_b64 v5, v[18:19] offset:{4*4160}")
    a("v_and_b32 v6, 15, v1\nv_lshrrev_b32 v7, 4, v1")
    a("v_sub_u32 v8, 3, v6\nv_and_b32 v8, 3, v8\nv_mul_u32_u24 v8, 4160, v8")
    a("v_and_b32 v9, 12, v6\nv_lshlrev_b32 v9, 1, v9\nv_sub_u32 v8, v8, v9")
    a("v_lshlrev_b32 v9, 4, v7\nv_sub_u32 v8, v8, v9")
    a(f"v_add_u32 v8, {4104-3584}, v8\nv_add_u32 v8, s7, v8")
    a("v_lshlrev_b32 v10, 5, v6\nv_sub_u32 v10, v10, v9")
    a(f"v_add_u32 v10, {4*4160+512+16}, v10\nv_add_u32 v10, s7, v10")
    a("v_add_u32 v11, s7, v2")
    a("v_min_u32 v12, 16, v2\nv_add_u32 v12, s7, v12\nv_add_u32 v12, 4096, v12")
    for r in range(32): a(f"v_mov_b32 v{ACC+r}, 0")
    a.stamp(2)
    a("s_waitcnt vmcnt(0)")
    a.stamp(3)
    for c in range(5):
        ad, o = (11, c * 1024) if c < 4 else (12, 0)
        b = FA + 12 * c
        a(f"ds_read_b128 {v(b,4)}, v{ad} offset:{o}")
        a(f"ds_read_b128 {v(b+4,4)}, v{ad} offset:{o+2*4160}")
        a(f"ds_read_b64 {v(b+8,2)}, v{ad} offset:{o+16}")
    for c in range(5):
        ad, o = (11, c * 1024) if c < 4 else (12, 0)
        b = FA + 12 * c; d = FB + 8 * c
        a(f"s_waitcnt lgkmcnt({12-c})")
        for e in range(4): a(f"v_alignbit_b32 v{d+e}, v{b+4+e}, v{b+e}, 16")
        for e in range(4): a(f"v_alignbit_b32 v{d+4+e}, v{b+2+e if e < 2 else b+6+e}, v{b+4+e}, 16")
        a(f"ds_write_b128 v{ad}, {v(d,4)} offset:{o+4160}")
        a(f"ds_write_b128 v{ad}, {v(d+4,4)} offset:{o+3*4160}")
    a("s_waitcnt lgkmcnt(0)")
    def reads(st):
        o = []
        for m in range(8):
            o.append(f"ds_read_b128 {v(FB+32*st+4*m,4)}, v10 offset:{512*m}")
            o.append(f"ds_read_b64 {v(FA+32*st+4*m,2)}, v8 offset:{512*(7-m)}")
            o.append(f"ds_read_b64 {v(FA+32*st+4*m+2,2)}, v8 offset:{512*(7-m)+8}")
        return o
    for t in reads(0): a(t)
    order = sorted([(i, m) for i in range(8) for m in range(i + 1)], key=lambda im: (max(im[1], im[0] - im[1]), im[1], im[0]))
    def body(extra=None):
        for st in range(2):
            a("v_subrev_u32 v8, 64, v8\nv_subrev_u32 v10, 64, v10")
            a("s_waitcnt lgkmcnt(0)")
            rd = reads(1 - st)
            for n, (i, m) in enumerate(order):
                a.mfma(ACC + 4 * i, FA + 32 * st + 4 * m, FB + 32 * st + 4 * (i - m))
                if n < 24: a(rd[n])
                if extra and n % 4 == 3 and n < 32: extra()
    a("s_setprio 2")
    body()
    body(mid)
    a("s_mov_b32 s12, 2")
    a("CV_l:")
    body()
    a("s_sub_u32 s12, s12, 1\ns_cmp_lg_u32 s12, 0\ns_cbranch_scc1 CV_l")
    a.stamp(4)
    a("s_waitcnt lgkmcnt(0)")
    a("v_lshlrev_b32 v11, 5, v6\nv_lshl_add_u32 v11, v7, 3, v11")
    a(f"v_sub_u32 v12, {4088-3584}, v11\nv_add_u32 v12, s7, v12")
    for i in range(8): a(f"ds_read_b64 {v(FA+2*i,2)}, v12 offset:{512*(7-i)}")
    a("s_lshl_b32 s13, s15, 16\ns_and_b32 s14, s15, 0xffff0000\ns_bitcmp1_b32 s6, 0\ns_cselect_b32 s13, s14, s13")
    a(f"s_add_u32 s10, s10, {Y_OFF}")
    a("s_waitcnt lgkmcnt(0)")
    for i in range(8):
        a(f"v_and_b32 v{FB}, 0xffff0000, v{FA+2*i+1}\nv_lshlrev_b32 v{FB+1}, 16, v{FA+2*i+1}")
        a(f"v_and_b32 v{FB+2}, 0xffff0000, v{FA+2*i}\nv_lshlrev_b32 v{FB+3}, 16, v{FA+2*i}")
        for r in range(4): a(f"v_fmac_f32 v{ACC+4*i+r}, s13, v{FB+r}")
        a(f"v_cvt_pk_bf16_f32 v{FB+8+2*i}, v{ACC+4*i}, v{ACC+4*i+1}\nv_cvt_pk_bf16_f32 v{FB+9+2*i}, v{ACC+4*i+2}, v{ACC+4*i+3}")
        a(f"buffer_store_dwordx2 {v(FB+8+2*i,2)}, v11, s[56:59], s10 offen offset:{512*i} sc1")

def fin_consts(a):
    a("s_lshr_b32 s61, s4, 1\ns_and_b32 s62, s4, 1")
    a("s_mul_i32 s52, s61, 9\ns_lshl_b32 s6, s62, 2\ns_add_u32 s52, s52, s6")
    a("s_cmp_lt_u32 s4, 4\ns_cselect_b32 s53, 12288, 0")
    a("s_mul_i32 s54, s5, 73728\ns_lshl_b32 s6, s52, 5\ns_add_u32 s55, s54, s6")

def stage_x(a):
    a.srd(44, P_Q, ACT)
    fin_consts(a)
    a("s_mul_i32 s6, s3, 18432\ns_add_u32 s7, s6, s53\ns_mov_b32 m0, s7\ns_add_u32 s6, s6, s55\ns_movk_i32 s8, 6554\ns_movk_i32 s9, 992")
    for i in range(3):
        a(f"v_add_u32 v5, {64*i}, v1\nv_min_u32 v5, 159, v5\nv_mul_lo_u32 v14, v5, s8\nv_lshrrev_b32 v14, 16, v14")
        a("v_lshlrev_b32 v5, 4, v5\nv_mad_u32_u24 v5, v14, s9, v5")
        a("buffer_load_dwordx4 v5, s[44:47], s6 offen nt lds")
        a("s_add_u32 m0, m0, 1024")

def stage_y(a):
    a(f"s_mul_i32 s8, s61, {FB_STRIDE}\ns_add_u32 s8, s8, {FY_OFF}")
    a.vpoll(8, 144, 14, 13)
    a("v_lshrrev_b32 v5, 3, v1\nv_and_b32 v14, 7, v1\nv_lshlrev_b32 v5, 12, v5\nv_lshl_add_u32 v5, v14, 4, v5")
    a(f"s_lshl_b32 s6, s52, 16\ns_lshl_b32 s7, s3, 15\ns_add_u32 s6, s6, s7\ns_lshl_b32 s7, s5, 7\ns_add_u32 s6, s6, s7\ns_add_u32 s6, s6, {Y_OFF}")
    for i in range(3):
        if i == 2: a("s_cmp_ge_u32 s3, 2\ns_cbranch_scc1 FN_y")
        a("buffer_load_dwordx4 v5, s[56:59], s6 offen sc1 lds")
        a("s_add_u32 m0, m0, 1024\ns_add_u32 s6, s6, 131072")
    a("FN_y:")

def gen_final(a):
    PR, YR, XR, X1R, RMR, AC, T = 32, 64, 68, 72, 76, 88, 96
    a.srd(48, P_OUT, ACT)
    a("s_sub_u32 s60, s3, 4")
    fin_consts(a)
    a("v_and_b32 v5, 15, v1\nv_lshrrev_b32 v6, 4, v1")
    a("v_mul_u32_u24 v7, 160, v5\nv_lshl_add_u32 v7, v6, 3, v7\nv_add_u32 v7, s53, v7")
    a("v_lshrrev_b32 v8, 1, v6\nv_mul_u32_u24 v8, 18432, v8\nv_bfe_u32 v9, v1, 2, 3\nv_lshl_add_u32 v8, v9, 7, v8")
    a("v_and_b32 v9, 3, v1\nv_lshl_add_u32 v8, v9, 3, v8\nv_add_u32 v8, s53, v8\nv_add_u32 v8, 3072, v8")
    a(f"v_lshlrev_b32 v11, 4, v5\nv_add_u32 v11, {RM}, v11")
    a("v_lshrrev_b32 v5, 5, v1\nv_bfe_u32 v6, v1, 1, 4\nv_and_b32 v9, 1, v1")
    a("v_mul_u32_u24 v18, 18432, v5\nv_lshl_add_u32 v18, v9, 4, v18\nv_mul_u32_u24 v19, 160, v6\nv_add3_u32 v19, v19, v18, s53")
    a("v_mul_u32_u24 v6, 1152, v6\nv_add_u32 v18, v18, v6")
    a.stamp(1)
    lists = {0: [[(4,0),(8,0),(3,2)], [(5,0),(0,1)], [(6,0),(1,1)], [(7,0),(2,2)]],
             1: [[(1,0),(5,0),(9,2)], [(2,0),(6,1)], [(3,0),(7,1)], [(4,0),(8,2)]]}
    def enc(l): return sum(((u | (c << 4) | 0x80) << (8 * i)) for i, (u, c) in enumerate(l))
    for q in range(4):
        a(f"s_cmp_eq_u32 s62, 0\ns_cselect_b32 s6, {enc(lists[0][q])}, {enc(lists[1][q])}" if False else
          f"s_mov_b32 s6, {enc(lists[0][q])}\ns_mov_b32 s7, {enc(lists[1][q])}\ns_cmp_eq_u32 s62, 0\ns_cselect_b32 s6, s6, s7")
        if q == 0: a("s_mov_b32 s68, s6")
        else: a(f"s_cmp_eq_u32 s60, {q}\ns_cselect_b32 s68, s6, s68")
    a("FN_l:")
    a("s_and_b32 s63, s68, 15\ns_lshr_b32 s6, s63, 1\ns_and_b32 s7, s63, 1")
    a("s_add_u32 s8, s6, s52")
    a("s_mul_i32 s9, s7, 36864")
    a("s_lshr_b32 s10, s8, 1\ns_lshl_b32 s10, s10, 10\ns_and_b32 s11, s8, 1\ns_lshl_b32 s11, s11, 3\ns_add_u32 s10, s10, s11\ns_add_u32 s10, s10, s9")
    a("v_add_u32 v12, s10, v2")
    a("s_lshl_b32 s10, s6, 5\ns_add_u32 s69, s10, s9")
    a("v_add_u32 v13, s69, v7\nv_add_u32 v20, s69, v19")
    a("s_lshl_b32 s10, s7, 9\nv_add_u32 v14, s10, v11")
    a("s_and_b32 s10, s6, 1\ns_mul_i32 s10, s10, 36864\ns_lshr_b32 s11, s6, 1\ns_lshl_b32 s11, s11, 10\ns_add_u32 s10, s10, s11\ns_lshl_b32 s11, s7, 6\ns_add_u32 s10, s10, s11")
    a("v_add_u32 v15, s10, v8")
    for mt in range(2):
        a(f"ds_read_b64 {v(X1R+2*mt,2)}, v12 offset:{18432*mt}")
        a(f"ds_read_b64 {v(XR+2*mt,2)}, v13 offset:{18432*mt}")
        a(f"ds_read_b128 {v(RMR+4*mt,4)}, v14 offset:{256*mt}")
        a(f"ds_read_b64_tr_b16 {v(YR+2*mt,2)}, v15 offset:{32*mt}")
    a("s_add_u32 s69, s69, s55")
    a(f"s_bfe_u32 s10, s68, 0x20004\ns_lshl_b32 s10, s10, 2\ns_add_u32 s10, s10, s61\ns_lshl_b32 s10, s10, 5\ns_mul_i32 s11, s5, {FB_STRIDE}\ns_add_u32 s10, s10, s11\ns_add_u32 s10, s10, {FP_OFF}")
    a(f"s_lshl_b32 s9, s8, 11\ns_lshl_b32 s11, s7, 10\ns_add_u32 s9, s9, s11\ns_add_u32 s9, s9, s54\ns_add_u32 s9, s9, {PART_OFF}")
    a("s_waitcnt lgkmcnt(0)")
    for e in range(4):
        r = RMR + 4 * (e >> 1)
        a(f"v_lshlrev_b32 v{T+16+2*e}, 16, v{XR+e}\nv_and_b32 v{T+17+2*e}, 0xffff0000, v{XR+e}")
        a(f"v_lshlrev_b32 v{T+8+2*e}, 16, v{X1R+e}\nv_and_b32 v{T+9+2*e}, 0xffff0000, v{X1R+e}")
        a(f"v_lshlrev_b32 v{T+24+2*e}, 16, v{YR+e}\nv_and_b32 v{T+25+2*e}, 0xffff0000, v{YR+e}")
        a(f"v_fma_f32 v{T}, v{T+16+2*e}, v{r+2}, v{r+3}\nv_fma_f32 v{T+1}, v{T+17+2*e}, v{r+2}, v{r+3}")
        a(f"v_add_f32 v{T+8+2*e}, v{T+8+2*e}, v{r+1}\nv_add_f32 v{T+9+2*e}, v{T+9+2*e}, v{r+1}")
        a(f"v_mul_f32 v{T+24+2*e}, v{T+24+2*e}, v{T}\nv_mul_f32 v{T+25+2*e}, v{T+25+2*e}, v{T+1}")
    a.spoll(8, 10, 16, 13, 2)
    a.stamp(6)
    for fb in range(8):
        a(f"buffer_load_dwordx4 {v(PR+4*fb,4)}, v2, s[56:59], s9 offen sc1")
        if fb < 7: a(f"s_add_u32 s9, s9, {ACT}")
    for fb in range(8):
        a(f"s_waitcnt vmcnt({7-fb})")
        d = AC if fb == 0 else T
        for e in range(4):
            a(f"v_lshlrev_b32 v{d+2*e}, 16, v{PR+4*fb+e}\nv_and_b32 v{d+2*e+1}, 0xffff0000, v{PR+4*fb+e}")
        if fb:
            for e in range(8): a(f"v_add_f32 v{AC+e}, v{AC+e}, v{T+e}")
    for r in range(8): a(f"v_fma_f32 v{AC+r}, v{AC+r}, v{RMR+4*(r>>2)}, v{T+8+r}")
    for r in range(8): a(f"v_mul_f32 v{T+r}, {fh(-LOG2E)}, v{AC+r}")
    for r in range(8): a(f"v_exp_f32 v{T+r}, v{T+r}")
    for r in range(8): a(f"v_add_f32 v{T+r}, 1.0, v{T+r}")
    for r in range(8): a(f"v_rcp_f32 v{T+r}, v{T+r}")
    for r in range(8): a(f"v_mul_f32 v{AC+r}, v{AC+r}, v{T+24+r}")
    for r in range(8): a(f"v_fma_f32 v{AC+r}, v{AC+r}, v{T+r}, v{T+16+r}")
    for e in range(4): a(f"v_cvt_pk_bf16_f32 v{T+32+e}, v{AC+2*e}, v{AC+2*e+1}")
    for mt in range(2): a(f"ds_write_b64 v13, {v(T+32+2*mt,2)} offset:{18432*mt}")
    a(f"ds_read_b128 {v(T+36,4)}, v20")
    a("s_waitcnt lgkmcnt(0)")
    a(f"buffer_store_dwordx4 {v(T+36,4)}, v18, s[48:51], s69 offen")
    a("s_lshr_b32 s68, s68, 8\ns_cbranch_scc1 FN_l")

def touch(a, sbase, nlines, vdst, vtmp, fl=""):
    for i in range((nlines + 63) // 64):
        a(f"v_add_u32 v{vtmp}, {64*i}, v1\nv_min_u32 v{vtmp}, {nlines-1}, v{vtmp}\nv_lshlrev_b32 v{vtmp}, 7, v{vtmp}")
        a(f"buffer_load_dword v{vdst+i}, v{vtmp}, s[56:59], s{sbase} offen{fl}")

def paced(a, st, n, depth):
    for i in range(n):
        if i >= depth: a(f"s_waitcnt vmcnt({depth-1})")
        st.issue()

def gen_kb(a):
    a(".p2align 8\nkb_kernel:")
    a("s_cmp_ge_u32 s2, 256\ns_cbranch_scc1 KB_end")
    a.stamp_init()
    a.kernargs()
    a("v_lshrrev_b32 v2, 6, v0\nv_and_b32 v1, 63, v0")
    a("v_readfirstlane_b32 s3, v2")
    a(f"v_mov_b32 v{VC}, {CNT}\nv_mov_b32 v{V1}, 1\nv_mov_b32 v4, 0\nv_mov_b32 v5, 0\nv_mov_b32 v6, 0\nv_mov_b32 v7, 0")
    a(f"ds_write_b128 v{VC}, v[4:7]\nds_write_b128 v{VC}, v[4:7] offset:16")
    a("s_and_b32 s4, s2, 7\ns_lshr_b32 s5, s2, 3")
    a("s_and_b32 s60, s5, 7\ns_and_b32 s61, s5, 24\ns_add_u32 s61, s61, s4")
    a("s_lshr_b32 s62, s60, 2\ns_lshl_b32 s7, s60, 1\ns_add_u32 s62, s62, s7")
    a("s_and_b32 s7, s60, 3\ns_cmp_eq_u32 s7, 3\ns_cselect_b32 s63, 3, 2")
    a("v_lshlrev_b32 v2, 4, v1\nv_add_u32 v3, 4096, v2\nv_lshlrev_b32 v4, 2, v1")
    a(f"s_mul_i32 s8, s4, {WSLICE}")
    a("s_mul_i32 s71, s3, 3")
    a(f"s_lshl_b32 s64, s71, 10\ns_add_u32 s64, s64, s8\ns_add_u32 s64, s64, {W3T_OFF}")
    a("s_add_u32 s65, s64, 24576")
    a("s_and_b32 s9, s3, 3\ns_mul_i32 s9, s9, 9\ns_lshr_b32 s10, s3, 2\ns_lshl_b32 s10, s10, 1\ns_add_u32 s9, s9, s10")
    a(f"s_lshl_b32 s66, s9, 10\ns_add_u32 s66, s66, s8\ns_add_u32 s66, s66, {W4T_OFF}")
    a(f"s_lshl_b32 s10, s4, 5\ns_add_u32 s10, s10, s5\ns_mul_i32 s67, s10, 73728\ns_lshl_b32 s9, s9, 11\ns_add_u32 s67, s67, s9\ns_add_u32 s67, s67, {PART_OFF}")
    a(f"s_mul_i32 s9, s5, 20736\ns_add_u32 s70, s8, s9")
    a(f"s_and_b32 s69, s3, 3\ns_lshl_b32 s69, s69, 3\ns_add_u32 s69, s69, s4\ns_lshl_b32 s69, s69, 2\ns_mul_i32 s10, s5, {FB_STRIDE}\ns_add_u32 s69, s69, s10\ns_add_u32 s69, s69, {FP_OFF}")
    a("s_waitcnt lgkmcnt(0)")
    a.srd(56, P_WS, WS_BYTES)
    a("s_cmp_ge_u32 s3, 4\ns_cbranch_scc1 KB_q")
    A3 = [(2, 0), (2, 1024), (2, 2048)]
    stP = Stream(a, [(64, A3, ""), (65, A3, ""), (66, [(2, 0), (3, 3072)], " sc1"), (68, [(2, 0), (3, 3072)], " sc1")])
    stQ = Stream(a, [(64, A3, ""), (66, [(2, 0), (2, 1024), (2, 2048), (2, 3072), (3, 0)], " sc1")])
    def addrs():
        a(f"v_mov_b32 v6, v2\nv_add_u32 v7, 36864, v2\nv_add_u32 v8, {ML_H}, v2\nv_add_u32 v9, {ML_H+36864}, v2")
        h_addr(a, 71, 10, 12)
    def rk():
        a(f"v_and_b32 v5, 15, v1\nv_lshlrev_b32 v5, 4, v5\nv_add_u32 v5, {RM}, v5")
        for m in range(4): a(f"ds_read_b32 v{GT+m}, v5 offset:{256*m}")
        a("s_waitcnt lgkmcnt(0)")
        for m in range(4):
            r = GT + m
            a(f"v_mul_f32 v{KC+2*m}, {fh(GC0)}, v{r}\nv_mul_f32 v{r}, v{r}, v{r}\nv_mul_f32 v{r}, {fh(0.044715)}, v{r}\nv_mul_f32 v{KC+2*m+1}, v{r}, v{KC+2*m}")
    gen_gemm2(a)
    a.stamp(3)
    a(f"s_mul_i32 s6, s61, {FB_STRIDE}\ns_lshl_b32 s7, s60, 2\ns_add_u32 s6, s6, s7\ns_add_u32 s6, s6, {FX_OFF}")
    a("s_add_u32 s68, s66, 1024")
    a("s_waitcnt vmcnt(0)")
    a(f"s_mov_b64 exec, 1\nds_add_rtn_u32 v5, v{VC}, v{V1}\ns_mov_b64 exec, -1")
    a("s_waitcnt lgkmcnt(0)")
    a("v_readfirstlane_b32 s7, v5")
    a("s_cmp_lg_u32 s7, 3\ns_cbranch_scc1 KB_nosig")
    a.setflag("s6", 14)
    a("KB_nosig:")
    a.stamp(4)
    a.ldswait(VC, 5, 7, 4, 0)
    PRE = optval("PPRE", 9)
    paced(a, stP, PRE, 6)
    addrs()
    a(f"s_mul_i32 s6, s5, {FB_STRIDE}\ns_add_u32 s6, s6, {FX_OFF}")
    a(f"s_mul_i32 s9, s3, 18432\ns_mov_b32 m0, s9\ns_mul_i32 s7, s5, 73728\ns_add_u32 s7, s7, s9\ns_add_u32 s7, s7, {X1_OFF}")
    a("s_cmp_lg_u32 s3, 0\ns_cbranch_scc1 KB_xw")
    a.spoll(8, 6, 44, 13, 1)
    a.ldsadd(VC, V1, 20)
    a("s_branch KB_xg")
    a("KB_xw:")
    a.ldswait(VC, 5, 8, 1, 20)
    a("KB_xg:")
    a.stamp(5)
    def xdma(i):
        if i and i % 4 == 0: a("s_add_u32 m0, m0, 4096\ns_add_u32 s7, s7, 4096")
        a(f"buffer_load_dwordx4 v2, s[56:59], s7 offen offset:{(i%4)*1024} sc1 lds")
        stP.other(f"x{i}")
    XP = NS // 3
    for i in range(XP): xdma(i)
    for i in range(NS - PRE): stP.issue()
    for i in range(XP, 18): xdma(i)
    a(f"s_lshl_b32 s6, s5, 11\ns_add_u32 s6, s6, {SS_OFF}\ns_lshl_b32 s8, s5, 8\ns_add_u32 s8, s8, {MEAN_OFF}\ns_lshl_b32 s9, s5, 9\ns_add_u32 s9, s9, {ST1_OFF}")
    for i in range(8):
        a(f"buffer_load_dword v{GT+i}, v4, s[56:59], s6 offen offset:{256*i} sc1"); stP.other()
    a(f"buffer_load_dword v{GT+9}, v4, s[56:59], s8 offen sc1"); stP.other()
    a("v_lshlrev_b32 v5, 3, v1")
    a(f"buffer_load_dwordx2 {v(GT+10,2)}, v5, s[56:59], s9 offen"); stP.other("st")
    a(f"s_waitcnt vmcnt({stP.younger(f'x{XP-1}')})")
    a.subbar(VC, 5, 7, 4, off=4)
    a.stamp(6)
    mphase(a, stP, 0, 6, 0, XP)
    a(f"s_waitcnt vmcnt({stP.younger('st')})")
    for i in range(1, 8): a(f"v_add_f32 v{GT}, v{GT}, v{GT+i}")
    a(f"v_mov_b32 v{GT+1}, {fh(1.0/D)}\nv_fmaak_f32 v{GT}, v{GT+1}, v{GT}, {fh(EPS)}")
    a(f"v_rsq_f32 v{GT+8}, v{GT}")
    a(f"v_add_u32 v5, {RM}, v2\ns_nop 0")
    a(f"ds_write_b128 v5, {v(GT+8,4)}")
    a.subbar(VC, 5, 7, 4, off=8)
    mphase(a, stP, 0, 6, XP, 18, first=False)
    a.stamp(7)
    a("s_barrier")
    rk()
    def w4hook(i):
        if i == optval("W4AT", 2):
            a("s_cmp_lg_u32 s3, 0\ns_cbranch_scc1 KB_w4s")
            a(f"s_mul_i32 s6, s4, {FB_STRIDE}\ns_add_u32 s6, s6, {FW4_OFF}")
            a.vpoll(6, 54, 14, 13)
            a.ldsadd(VC, V1, 12)
            a(f"s_add_u32 s6, s70, {W4T_OFF}")
            touch(a, 6, 162, 24, 5, " sc1")
            a("KB_w4s:")
    gphase(a, 10, 12, w4hook)
    a("s_add_u32 s71, s71, 24")
    h_addr(a, 71, 10, 12)
    a.ldswait(VC, 5, 7, 1, 12)
    a("s_waitcnt vmcnt(0)")
    mphase(a, stP, 1, 6)
    a.stamp(8)
    a("s_barrier")
    def sthook(i):
        if i == 0: stage_x(a)
        if i == 2: stage_y(a)
    gphase(a, 10, 12, sthook)
    a("s_waitcnt vmcnt(0) lgkmcnt(0)\ns_barrier")
    a.stamp(9)
    mphase(a, stP, 2, 8)
    a("s_add_u32 s6, s67, 14336\ns_add_u32 s7, s69, 128")
    pend = []
    for k, (t, mp) in enumerate([(0, 0), (0, 1), (1, 0), (1, 1)]):
        pend += pstore(a, MACC, t, mp, 67 if t == 0 else 6, mp * 1024, k)
    state = {"flag": False}
    def hook(ks, m, t):
        if ks >= 1 and m < 3 and pend:
            ins = pend.pop(0); a(ins)
            if ins.startswith("buffer"): stP.other("e" if not pend else "x")
        if not pend and not state["flag"] and ks == optval("EFLAG", 10) and m == 0 and t == 0:
            a(f"s_waitcnt vmcnt({stP.younger('e')})")
            a.setflag("s7", 14); stP.other()
            state["flag"] = True
    mphase(a, stP, 3, 8, acc=MACC + 32, hook=hook)
    assert state["flag"]
    a.stamp(10)
    a.nop(8)
    for k, (t, mp) in enumerate([(0, 0), (0, 1), (1, 0), (1, 1)]):
        for ins in pstore(a, MACC + 32, t, mp, 67 if t == 0 else 6, 2048 + mp * 1024, k): a(ins)
    a("s_add_u32 s7, s69, 256")
    a("s_waitcnt vmcnt(0)")
    a.setflag("s7", 14)
    a.end()
    a("KB_q:")
    a("s_lshr_b32 s6, s60, 2\ns_sub_u32 s6, s60, s6\ns_mul_i32 s7, s61, 6\ns_add_u32 s6, s6, s7\ns_mul_i32 s6, s6, 3")
    a("s_sub_u32 s7, s3, 4\ns_add_u32 s52, s6, s7")
    a(f"s_mul_i32 s7, s7, {CV_SZ}\ns_add_u32 s53, s7, {CV}")
    a("s_cmp_eq_u32 s3, 7\ns_cselect_b32 s55, 0, 1\ns_cmp_eq_u32 s63, 3\ns_cselect_b32 s55, 0, s55")
    gen_w2load(a)
    a("s_cmp_eq_u32 s3, 7\ns_cbranch_scc1 KB_w7")
    a("s_branch KB_nc")
    a("KB_conv:")
    gen_conv(a, stQ.issue)
    assert stQ.issued == 16
    a(f"s_lshr_b32 s6, s6, 4\ns_mul_i32 s6, s6, 57\ns_lshr_b32 s6, s6, 9\ns_mul_i32 s6, s6, {FB_STRIDE}\ns_add_u32 s6, s6, {FY_OFF}")
    a("s_waitcnt vmcnt(0)")
    a.addflag("s6", 14)
    a("s_setprio 0")
    a.stamp(5)
    a("s_branch KB_q3")
    a("KB_w7:")
    a(f"s_add_u32 s8, s70, {W3T_OFF}")
    touch(a, 8, 162, 24, 5)
    a(f"s_mov_b32 s12, s5\ns_mov_b32 s9, {PT7}")
    a("s_branch KB_q2")
    a("KB_nc:")
    a("s_lshr_b32 s12, s5, 2\ns_mul_i32 s12, s12, 3\ns_add_u32 s12, s12, s3\ns_add_u32 s12, s12, 28")
    a(f"s_lshl_b32 s9, s3, 12\ns_add_u32 s9, s9, {CV+36864-4*4096}")
    a("KB_q2:")
    a("s_cmp_ge_u32 s12, 54\ns_cbranch_scc1 KB_q2b")
    if "w4late" in OPT: a.ldswait(VC, 5, 7, 4, 0, sleep=2)
    a.stamp(2)
    a.srd(44, P_W4, D * F * 2)
    a(f"s_mul_i32 s15, s4, {WSLICE}\ns_add_u32 s8, s15, {W4T_OFF}")
    a("s_mul_i32 s13, s12, 86\ns_lshr_b32 s13, s13, 8\ns_mul_i32 s14, s13, 3\ns_sub_u32 s14, s12, s14")
    a("s_mul_i32 s6, s13, 36864\ns_mul_i32 s14, s14, 384\ns_add_u32 s6, s6, s14\ns_add_u32 s6, s6, s15")
    a("s_movk_i32 s7, 1152\ns_mul_i32 s13, s12, 12288\ns_add_u32 s8, s8, s13")
    gen_pretile(a, 128)
    a(f"s_mul_i32 s6, s4, {FB_STRIDE}\ns_add_u32 s6, s6, {FW4_OFF}")
    a("s_waitcnt vmcnt(0)")
    a.addflag("s6", 14)
    a("KB_q2b:")
    a.stamp(5)
    stQ2 = Stream(a, stQ.segs)
    paced(a, stQ2, 16, 4)
    a("s_waitcnt vmcnt(0)")
    a("KB_q3:")
    stQ.other()
    for i in range(NS - 16): stQ.issue()
    addrs()
    a("s_waitcnt lgkmcnt(0)\ns_barrier")
    a.stamp(7)
    rk()
    kw = 18 - (NS + 2) // 3
    mphase(a, stQ, 0, 6, 0, kw)
    a.ldswait(VC, 5, 7, 1, 12)
    mphase(a, stQ, 0, 6, kw, 18, first=False)
    gphase(a, 10, 12)
    a("s_waitcnt lgkmcnt(0)\ns_barrier")
    a.stamp(8)
    mphase(a, stQ, 1, 8, 0, 12)
    a("s_barrier\ns_setprio 1")
    a.stamp(9)
    mphase(a, stQ, 1, 8, 12, 18, first=False)
    if "qlow" in OPT: a("s_setprio 0")
    a.stamp(10)
    a.nop(8)
    for k in range(10):
        if k and k % 4 == 0: a("s_add_u32 s67, s67, 4096")
        for ins in pstore(a, MACC, k >> 1, k & 1, 67, (k % 4) * 1024, k): a(ins)
    a("s_waitcnt vmcnt(0)")
    a.setflag("s69", 14)
    gen_final(a)
    a.end()
    a("KB_end:")
    a("s_endpgm")
```

```python
import sys
from common import *
import ka2 as ka
import kb4 as kb
HDR = open("recurrent_scan__ssm_conv_h3__mixer_s_mlp__prompt.s.ref").read().split("; Override launch geometry")[0]
def build(path, stamps=False):
    a = Asm()
    a.stamps = stamps
    ka.gen_ka(a, "CODE_END")
    a.kid = 1
    kb.gen_kb(a)
    a("CODE_END:")
    out = HDR
    out += f"; @launch kernel=ka_kernel grid=(256,1,1) block=(512,1,1) lds={ka.KA_LDS}\n"
    out += f"; @launch kernel=kb_kernel grid=(256,1,1) block=(512,1,1) lds={kb.KB_LDS}\n"
    out += '.amdgcn_target "amdgcn-amd-amdhsa--gfx950"\n.text\n'
    out += a.text()
    out += '.section .rodata,"a"\n'
    out += desc("ka_kernel", 192) + desc("kb_kernel", 256)
    open(path, "w").write(out)
if __name__ == "__main__":
    if len(sys.argv) > 1:
        build(sys.argv[1], len(sys.argv) <= 2)
    else:
        build("v3.s")
        build("stamped.s", True)
```

```python
S, D, F = 2048, 576, 4608
ACT = S * D * 2
H_OFF    = 0x0000000
X1_OFF   = 0x0240000
KV_OFF   = 0x0480000
KV_PITCH = 4224
Y_OFF    = 0x0700000
W2M_OFF  = 0x0940000
ST1_OFF  = 0x0944000
SS_OFF   = 0x0950000
MEAN_OFF = 0x0960000
FLAG_OFF = 0x0970000
FB_STRIDE = 4352
FX_OFF   = FLAG_OFF
FP_OFF   = FLAG_OFF + 128
FW4_OFF  = FLAG_OFF + 32 * FB_STRIDE
FY_OFF   = FLAG_OFF + 40 * FB_STRIDE
FH_OFF   = FLAG_OFF + 64
FW3A_OFF = FW4_OFF + 128
FW3R_OFF = FW4_OFF + 256
FKV_OFF  = FY_OFF + 128
FM_OFF   = FY_OFF + 3 * FB_STRIDE + 128
FCNT = 12 * FB_STRIDE
FLAG_WAVES = 31
W3T_OFF  = 0x0A00000
W4T_OFF  = 0x0F10000
PART_OFF = 0x1420000
STAMP_OFF = 0x2620000
WS_BYTES = 0x2700000
WSLICE = 18 * 36 * 1024

EPS = 1e-5
import struct, os
def f2u(x): return struct.unpack("<I", struct.pack("<f", x))[0]
def fh(x): return "0x%08x" % f2u(x)

def v(n, c=1): return f"v{n}" if c == 1 else f"v[{n}:{n+c-1}]"
def s(n, c=1): return f"s{n}" if c == 1 else f"s[{n}:{n+c-1}]"

P_Q, P_K, P_V, P_SHK, P_SSMK, P_SSMD, P_BX, P_W1, P_W2, P_W3, P_W4, P_OUT, P_DBG, P_WS = [16 + 2 * i for i in range(14)]

class Asm:
    def __init__(self):
        self.L = []
        self.n = 0
        self.stamps = False
        self.kid = 0
    def stamp(self, i):
        if self.stamps: self(f"{'s_memtime' if 'cyc' in os.environ.get('OPT','') else 's_memrealtime'} s[{72+2*i}:{73+2*i}]")
    def stamp_init(self):
        if self.stamps:
            for i in range(12): self(f"s_mov_b32 s{72+2*i}, 0")
            self.stamp(0)
    def end(self, i=11):
        if self.stamps:
            self("s_waitcnt vmcnt(0) lgkmcnt(0)")
            self.stamp(i)
            self.srd(56, P_WS, WS_BYTES)
            self("s_mov_b64 exec, 1")
            self(f"s_lshl_b32 s6, s2, 3\ns_add_u32 s6, s6, s3\ns_lshl_b32 s6, s6, 6\ns_add_u32 s6, s6, {STAMP_OFF + self.kid * 0x28000}")
            self("v_mov_b32 v4, 0\ns_waitcnt lgkmcnt(0)")
            for q in range(3):
                for e in range(4): self(f"v_mov_b32 v{8+4*q+e}, s{72+8*q+2*e}")
                self(f"buffer_store_dwordx4 v[{8+4*q}:{11+4*q}], v4, s[56:59], s6 offen offset:{16*q}")
        self("s_endpgm")
    def __call__(self, t):
        for line in t.split("\n"):
            line = line.strip()
            if line:
                self.L.append(("" if line.endswith(":") or line.startswith(".") else "  ") + line)
    def lab(self, p="L"):
        self.n += 1
        return f"{p}_{self.n}"
    def text(self): return "\n".join(self.L) + "\n"
    def kernargs(self):
        self("s_load_dwordx16 s[16:31], s[0:1], 0")
        self("s_load_dwordx8 s[32:39], s[0:1], 64")
        self("s_load_dwordx4 s[40:43], s[0:1], 96")
    def srd(self, d, p, nbytes):
        self(f"s_mov_b32 s{d}, s{p}\ns_mov_b32 s{d+1}, s{p+1}\ns_mov_b32 s{d+2}, {nbytes}\ns_mov_b32 s{d+3}, 0x20000")
    def mfma(self, d, a, b, c=None):
        cc = v(d, 4) if c is None else c
        self(f"v_mfma_f32_16x16x32_bf16 {v(d,4)}, {v(a,4)}, {v(b,4)}, {cc}")
    def nop(self, n):
        while n > 0:
            k = min(n, 16)
            self(f"s_nop {k-1}")
            n -= k
    def prefetch_code(self, endlabel, vtmp, vdst, stmp):
        l = self.lab("PF")
        self(f"s_getpc_b64 {s(stmp,2)}")
        self(f"{l}:")
        self(f"v_and_b32 {v(vtmp)}, 15, v0")
        self(f"v_lshlrev_b32 {v(vtmp)}, 5, {v(vtmp)}")
        self(f"s_lshr_b32 s{stmp+2}, s2, 3")
        self(f"v_add_lshl_u32 {v(vtmp)}, s{stmp+2}, {v(vtmp)}, 7")
        self(f"v_min_u32 {v(vtmp)}, {endlabel}-{l}-4, {v(vtmp)}")
        self(f"global_load_dword {v(vdst)}, {v(vtmp)}, {s(stmp,2)} nt")
    def subbar(self, vaddr, vtmp, stmp, n, off=0):
        self("s_mov_b64 exec, 1")
        self(f"v_mov_b32 {v(vtmp)}, 1")
        self(f"ds_add_u32 {v(vaddr)}, {v(vtmp)} offset:{off}")
        self("s_mov_b64 exec, -1")
        self.ldswait(vaddr, vtmp, stmp, n, off)
    def ldswait(self, vaddr, vtmp, stmp, n, off=0, sleep=1):
        l = self.lab("LW"); d = self.lab("LD")
        self(f"{l}:")
        self(f"ds_read_b32 {v(vtmp)}, {v(vaddr)} offset:{off}")
        self("s_waitcnt lgkmcnt(0)")
        self(f"v_readfirstlane_b32 s{stmp}, {v(vtmp)}")
        self(f"s_cmp_ge_u32 s{stmp}, {n}")
        self(f"s_cbranch_scc1 {d}")
        self(f"s_sleep {max(sleep, int(os.environ.get('LSLEEP', '1')))}")
        self(f"s_branch {l}")
        self(f"{d}:")
    def poll(self, vaddr, soff, vtmp, stmp, sleep=1):
        l = self.lab("PL"); d = self.lab("PD")
        self(f"s_mov_b32 s{stmp}, 0x40000")
        self(f"{l}:")
        self(f"buffer_load_dword {v(vtmp)}, {v(vaddr)}, s[56:59], {soff} offen sc1")
        self("s_waitcnt vmcnt(0)")
        self(f"v_cmp_eq_u32 vcc, 0, {v(vtmp)}")
        self(f"s_cbranch_vccz {d}")
        self(f"s_sleep {sleep}")
        self(f"s_sub_u32 s{stmp}, s{stmp}, 1")
        self(f"s_cbranch_scc0 {l}")
        self(f"{d}:")
    def spoll(self, n, soff, sd, stmp, sleep=1):
        l = self.lab("SP"); d = self.lab("SD")
        self(f"s_mov_b32 s{stmp}, 0x40000")
        self(f"{l}:")
        self(f"s_load_dwordx{n} {s(sd,n)}, {s(P_WS,2)}, s{soff} glc")
        self("s_waitcnt lgkmcnt(0)")
        k = n
        while k > 2:
            k //= 2
            for i in range(0, k, 2): self(f"s_and_b64 {s(sd+i,2)}, {s(sd+i,2)}, {s(sd+k+i,2)}")
        self(f"s_and_b32 s{sd}, s{sd}, s{sd+1}")
        self(f"s_cbranch_scc1 {d}")
        if sleep: self(f"s_sleep {sleep}")
        self(f"s_sub_u32 s{stmp}, s{stmp}, 1")
        self(f"s_cbranch_scc0 {l}")
        self(f"{d}:")
    def cpoll(self, soff, n, sd, stmp, sleep=1):
        l = self.lab("CP"); d = self.lab("CD")
        self(f"s_mov_b32 s{stmp}, 0x40000")
        self(f"{l}:")
        self(f"s_load_dword s{sd}, {s(P_WS,2)}, s{soff} glc")
        self("s_waitcnt lgkmcnt(0)")
        self(f"s_cmp_ge_u32 s{sd}, {n}")
        self(f"s_cbranch_scc1 {d}")
        if sleep: self(f"s_sleep {sleep}")
        self(f"s_sub_u32 s{stmp}, s{stmp}, 1")
        self(f"s_cbranch_scc0 {l}")
        self(f"{d}:")
    def vpoll(self, soff, n, vtmp, stmp, sleep=8):
        l = self.lab("VP"); d = self.lab("VD")
        self(f"s_mov_b32 s{stmp}, 0x20000\nv_mov_b32 {v(vtmp)}, 0")
        self(f"{l}:")
        self(f"buffer_load_dword {v(vtmp+1)}, {v(vtmp)}, s[56:59], s{soff} offen sc1")
        self("s_waitcnt vmcnt(0)")
        self(f"v_cmp_gt_u32 vcc, {n}, {v(vtmp+1)}")
        self(f"s_cbranch_vccz {d}")
        self(f"s_sleep {sleep}")
        self(f"s_sub_u32 s{stmp}, s{stmp}, 1")
        self(f"s_cbranch_scc0 {l}")
        self(f"{d}:")
    def zcheck(self, vtmp, stmp):
        l = self.lab("ZP"); d = self.lab("ZD")
        self(f"s_mov_b32 s{stmp}, 0x20000\nv_mov_b32 {v(vtmp)}, 0")
        self(f"{l}:")
        self(f"global_load_dword {v(vtmp+1)}, {v(vtmp)}, {s(P_DBG,2)} sc1")
        self("s_waitcnt vmcnt(0)")
        self(f"v_cmp_gt_u32 vcc, {FLAG_WAVES}, {v(vtmp+1)}")
        self(f"s_cbranch_vccz {d}")
        self("s_sleep 4")
        self(f"s_sub_u32 s{stmp}, s{stmp}, 1")
        self(f"s_cbranch_scc0 {l}")
        self(f"{d}:")
    def arrive(self, soff, n, vtmp, stmp):
        d = self.lab("AR")
        self("s_mov_b64 exec, 1")
        self(f"v_mov_b32 {v(vtmp)}, {FCNT}\nv_mov_b32 {v(vtmp+1)}, 1")
        self(f"buffer_atomic_add {v(vtmp+1)}, {v(vtmp)}, s[56:59], s{soff} offen sc0 sc1")
        self("s_waitcnt vmcnt(0)")
        self(f"v_readfirstlane_b32 s{stmp}, {v(vtmp+1)}")
        self(f"s_add_u32 s{stmp}, s{stmp}, 1\ns_cmp_lg_u32 s{stmp}, {n}")
        self(f"s_cbranch_scc1 {d}")
        self(f"v_mov_b32 {v(vtmp)}, 0\nv_mov_b32 {v(vtmp+1)}, 1")
        self(f"buffer_store_dword {v(vtmp+1)}, {v(vtmp)}, s[56:59], s{soff} offen sc1")
        self("s_waitcnt vmcnt(0)")
        self(f"{d}:")
        self("s_mov_b64 exec, -1")
    def addflag(self, soff, vtmp):
        self("s_mov_b64 exec, 1")
        self(f"v_mov_b32 {v(vtmp)}, 0\nv_mov_b32 {v(vtmp+1)}, 1")
        self(f"buffer_atomic_add {v(vtmp+1)}, {v(vtmp)}, s[56:59], {soff} offen sc1")
        self("s_mov_b64 exec, -1")
    def ldsadd(self, vaddr, vone, off):
        self("s_mov_b64 exec, 1")
        self(f"ds_add_u32 {v(vaddr)}, {v(vone)} offset:{off}")
        self("s_mov_b64 exec, -1")
    def setflag(self, soff, vtmp):
        self("s_mov_b64 exec, 1")
        self(f"v_mov_b32 {v(vtmp)}, 0\nv_mov_b32 {v(vtmp+1)}, 1")
        self(f"buffer_store_dword {v(vtmp+1)}, {v(vtmp)}, s[56:59], {soff} offen sc1")
        self("s_mov_b64 exec, -1")

def desc(name, nv, ns=100):
    nv = (nv + 7) // 8 * 8
    return f""".p2align 6
.amdhsa_kernel {name}
  .amdhsa_next_free_vgpr {nv}
  .amdhsa_next_free_sgpr {ns}
  .amdhsa_accum_offset {min(nv, 256)}
  .amdhsa_group_segment_fixed_size 0
  .amdhsa_kernarg_size 112
  .amdhsa_user_sgpr_count 2
  .amdhsa_user_sgpr_kernarg_segment_ptr 1
  .amdhsa_system_sgpr_workgroup_id_x 1
  .amdhsa_float_denorm_mode_32 3
.end_amdhsa_kernel
"""

GC0 = -2.0 * 0.7978845608028654 * 1.4426950408889634
GC1 = GC0 * 0.044715
LOG2E = 1.4426950408889634

import os
OPT = os.environ.get("OPT", "").split(",")
def optval(name, default):
    return int(os.environ.get(name, default))

def gelu_vals(a, regs, tmps, k0, k1):
    n = len(regs)
    K0 = k0 if isinstance(k0, list) else [k0] * n
    K1 = k1 if isinstance(k1, list) else [k1] * n
    nt = len(tmps)
    for b in range(0, n, nt):
        idx = list(range(b, min(b + nt, n)))
        for i in idx: a(f"v_mul_f32 {v(tmps[i-b])}, {v(regs[i])}, {v(regs[i])}")
        for i in idx: a(f"v_fma_f32 {v(tmps[i-b])}, {v(tmps[i-b])}, {K1[i]}, {K0[i]}")
        for i in idx: a(f"v_mul_f32 {v(tmps[i-b])}, {v(tmps[i-b])}, {v(regs[i])}")
        for i in idx: a(f"v_exp_f32 {v(tmps[i-b])}, {v(tmps[i-b])}")
        for i in idx: a(f"v_add_f32 {v(tmps[i-b])}, 1.0, {v(tmps[i-b])}")
        for i in idx: a(f"v_rcp_f32 {v(tmps[i-b])}, {v(tmps[i-b])}")
        for i in idx: a(f"v_mul_f32 {v(regs[i])}, {v(tmps[i-b])}, {v(regs[i])}")

def gsum(a, r, t):
    a(f"v_mov_b32 v{t}, v{r}\ns_nop 1\nv_permlane32_swap_b32 v{r}, v{t}\nv_add_f32 v{r}, v{r}, v{t}")
    a(f"v_mov_b32 v{t}, v{r}\ns_nop 1\nv_permlane16_swap_b32 v{r}, v{t}\nv_add_f32 v{r}, v{r}, v{t}")

def gen_pretile(a, R=32):
    a("v_lshrrev_b32 v18, 3, v1\nv_and_b32 v19, 7, v1")
    a("v_mul_lo_u32 v20, v18, s7")
    a("v_lshl_add_u32 v20, v19, 4, v20")
    a("s_lshl_b32 s10, s7, 3")
    for i in range(3):
        if i: a("s_sub_u32 s6, s6, s11")
        for rg in range(4):
            a(f"buffer_load_dwordx4 {v(R+16*i+4*rg,4)}, v20, s[44:47], s6 offen offset:{128*i} nt")
            if rg < 3: a("s_add_u32 s6, s6, s10")
        if i == 0: a("s_mul_i32 s11, s10, 3")
    a("v_lshlrev_b32 v21, 4, v1\nv_add_u32 v22, s9, v21")
    a("v_lshrrev_b32 v23, 2, v1\nv_lshlrev_b32 v23, 7, v23\nv_and_b32 v19, 3, v1\nv_lshl_add_u32 v23, v19, 3, v23\nv_add_u32 v23, s9, v23")
    for i in range(3):
        a(f"s_waitcnt vmcnt(8)")
        for rg in range(4):
            a(f"ds_write_b128 v22, {v(R+16*i+4*rg,4)} offset:{1024*rg}")
        for tn in range(4):
            a(f"ds_read_b64_tr_b16 {v(R+48+16*i+4*tn,2)}, v23 offset:{tn*32}")
            a(f"ds_read_b64_tr_b16 {v(R+48+16*i+4*tn+2,2)}, v23 offset:{2048+tn*32}")
        a("s_waitcnt lgkmcnt(0)")
        for tn in range(4):
            a(f"buffer_store_dwordx4 {v(R+48+16*i+4*tn,4)}, v21, s[56:59], s8 offen offset:{tn*1024} sc1")
        a("s_add_u32 s8, s8, 4096")
```

```python
from common import *

SLOT = 20480
G1_RING = 4 * SLOT
G1X_ST, G1X_CS, G1X_H = 0, 512, 1536
G1X_SZ = 1536 + 4096

def gelu_pk(a, regs, tmps, k0, k1, one):
    n = len(regs)
    P = lambda r: v(r, 2)
    for i in range(0, n, 2): a(f"v_pk_mul_f32 {P(tmps[i])}, {P(regs[i])}, {P(regs[i])}")
    for i in range(0, n, 2): a(f"v_pk_fma_f32 {P(tmps[i])}, {P(tmps[i])}, {k1}, {k0}")
    for i in range(0, n, 2): a(f"v_pk_mul_f32 {P(tmps[i])}, {P(tmps[i])}, {P(regs[i])}")
    for i in range(n): a(f"v_exp_f32 v{tmps[i]}, v{tmps[i]}")
    for i in range(0, n, 2): a(f"v_pk_add_f32 {P(tmps[i])}, {P(tmps[i])}, {one}")
    for i in range(n): a(f"v_rcp_f32 v{tmps[i]}, v{tmps[i]}")
    for i in range(0, n, 2): a(f"v_pk_mul_f32 {P(regs[i])}, {P(tmps[i])}, {P(regs[i])}")

def frag_addrs(a):
    a("v_and_b32 v2, 15, v1\nv_lshrrev_b32 v3, 4, v1")
    a("v_bfe_u32 v4, v1, 3, 1\nv_lshlrev_b32 v4, 1, v4\nv_xor_b32 v4, v4, v3")
    a("v_lshl_add_u32 v4, v2, 2, v4\nv_lshlrev_b32 v4, 4, v4")
    a("v_lshrrev_b32 v5, 1, v3\nv_mul_u32_u24 v5, 3072, v5")
    a("v_and_b32 v8, 1, v3\nv_lshl_add_u32 v5, v8, 9, v5")
    a("v_lshrrev_b32 v7, 2, v2\nv_lshl_add_u32 v5, v7, 6, v5")
    a("v_and_b32 v7, 3, v1\nv_lshl_add_u32 v5, v7, 3, v5")
    a("v_lshl_add_u32 v5, v8, 5, v5\nv_add_u32 v5, 8192, v5")

def tile_addr(a, dst, stile, extra=None):
    a(f"s_lshr_b32 s15, s{stile}, 1\ns_lshl_b32 s15, s15, 10\ns_and_b32 s9, s{stile}, 1\ns_lshl_b32 s9, s9, 5")
    if extra: a(f"s_add_u32 s15, s15, {extra}")
    a(f"v_xor_b32 v{dst}, s9, v5\nv_add_u32 v{dst}, s15, v{dst}")

def loader_pre(a):
    a("v_lshrrev_b32 v2, 2, v1\nv_and_b32 v3, 3, v1\nv_mul_u32_u24 v4, 1152, v2")
    a("v_lshrrev_b32 v6, 5, v1\nv_lshlrev_b32 v6, 1, v6\nv_xor_b32 v6, v6, v3")
    a("v_lshl_add_u32 v6, v6, 4, v4")
    a("s_and_b32 s8, s3, 3")
    a("s_mul_i32 s9, s8, 18432\ns_mul_i32 s10, s6, 73728\ns_add_u32 s10, s10, s9")
    a("s_mul_i32 s11, s7, 192\ns_add_u32 s11, s11, s9")
    a("s_mul_i32 s12, s7, 3\ns_lshr_b32 s12, s12, 1\ns_mul_i32 s13, s60, 9\ns_lshr_b32 s13, s13, 2\ns_add_u32 s12, s12, s13")
    a("s_sub_u32 s13, s12, 9\ns_cmp_ge_u32 s12, 9\ns_cselect_b32 s12, s13, s12")
    a("s_lshl_b32 s13, s8, 10\ns_lshl_b32 s61, s8, 11\ns_add_u32 s61, s61, 4160")

def issue(a):
    a("s_lshl_b32 s15, s12, 7\ns_add_u32 s15, s15, s10\ns_mov_b32 m0, s13\ns_mul_i32 s9, s12, 73728")
    a("buffer_load_dwordx4 v6, s[48:51], s15 offen lds")
    a("s_add_u32 m0, m0, 4032\ns_add_u32 s9, s9, s11")
    a("buffer_load_dwordx4 v6, s[48:51], s15 offen offset:64 lds")
    a("s_add_u32 m0, m0, s61\ns_add_u32 s12, s12, 1")
    a("buffer_load_dwordx4 v6, s[44:47], s9 offen lds")
    a("s_add_u32 m0, m0, 960\ns_cmp_eq_u32 s12, 9")
    a("buffer_load_dwordx4 v6, s[44:47], s9 offen offset:64 lds")
    a("s_cselect_b32 s12, 0, s12\ns_add_u32 m0, m0, 960\ns_add_u32 s13, s13, 20480")
    a("buffer_load_dwordx4 v6, s[44:47], s9 offen offset:128 lds")
    a(f"s_sub_u32 s15, s13, {G1_RING}\ns_cmp_ge_u32 s13, {G1_RING}\ns_cselect_b32 s13, s15, s13")

def gen_loader(a, G1X, stfl=""):
    XB, WB, CS, SM, SQ, ONE = 32, 40, 52, 64, 68, 72
    DEP = optval("G1DEP", 2)
    a.srd(48, P_Q, ACT)
    a.srd(44, P_W1, D * D * 2)
    a(f"s_mov_b32 s14, {DEP}")
    a("G1L_p:")
    issue(a)
    a("s_sub_u32 s14, s14, 1\ns_cmp_lg_u32 s14, 0\ns_cbranch_scc1 G1L_p")
    a.stamp(3)
    frag_addrs(a)
    a("s_lshl_b32 s15, s8, 10\nv_add_u32 v10, s15, v4")
    a("s_and_b32 s62, s8, 1\ns_mul_i32 s62, s62, 6144\ns_lshr_b32 s63, s8, 1\ns_mul_i32 s63, s63, 3")
    for t in range(3):
        tile_addr(a, 11 + t, 63, "s62")
        a("s_add_u32 s63, s63, 1")
    for r in range(4): a(f"v_mov_b32 v{ONE+r}, 0x3f803f80")
    for r in range(40): a(f"v_mov_b32 v{XB+r}, 0")
    a("v_lshlrev_b32 v7, 2, v3\nv_sub_u32 v7, v2, v7")
    for r in range(4): a(f"v_cmp_eq_u32 {s(64+2*r,2)}, {r}, v7")
    a(f"s_mov_b32 s14, 0\ns_mov_b32 s63, 0\ns_setprio {optval('G1P', 1)}")
    a("G1L_l:")
    labs = [a.lab("G1W") for _ in range(DEP + 1)]
    for d in range(DEP - 1):
        a(f"s_cmp_eq_u32 s14, {8-d}\ns_cbranch_scc1 {labs[d]}")
    for d in reversed(range(DEP)):
        a(f"{labs[d]}:")
        a(f"s_waitcnt vmcnt({5*d})")
        if d: a(f"s_branch {labs[DEP]}")
    a(f"{labs[DEP]}:")
    a("s_barrier")
    def mm():
        a.mfma(SQ, XB, XB); a.mfma(SM, ONE, XB); a.mfma(CS, WB, ONE)
        a.mfma(SQ, XB + 4, XB + 4); a.mfma(SM, ONE, XB + 4); a.mfma(CS + 4, WB + 4, ONE); a.mfma(CS + 8, WB + 8, ONE)
    if "g1nh" not in OPT: mm()
    for k2 in range(2 if "g1nh" not in OPT else 0): a(f"ds_read_b128 {v(XB+4*k2,4)}, v10 offset:{4096*k2}")
    for t in range(3 if "g1nh" not in OPT else 0):
        for jh in range(2): a(f"ds_read_b64_tr_b16 {v(WB+4*t+2*jh,2)}, v{11+t} offset:{256*jh}")
    a(f"s_cmp_ge_u32 s14, {9-DEP}\ns_cbranch_scc1 G1L_n")
    if "g1nl" not in OPT: issue(a)
    a("G1L_n:")
    a(f"s_add_u32 s63, s63, 1\ns_mov_b32 s15, {SLOT}\ns_cmp_eq_u32 s63, 4\ns_cselect_b32 s15, {-3*SLOT}, s15\ns_cselect_b32 s63, 0, s63")
    for r in range(4): a(f"v_add_u32 v{10+r}, s15, v{10+r}")
    a("s_waitcnt lgkmcnt(0)")
    a("s_add_u32 s14, s14, 1\ns_cmp_lt_u32 s14, 9\ns_cbranch_scc1 G1L_l")
    mm()
    a.nop(3)
    a.stamp(2)
    a.srd(56, P_WS, WS_BYTES)
    a("v_mov_b32 v20, 0")
    for r in range(4): a(f"v_cndmask_b32 v20, v20, v{SQ+r}, {s(64+2*r,2)}")
    gsum(a, 20, 7)
    a(f"v_mul_f32 v24, {fh(1.0/D)}, v{SM}")
    a(f"v_mul_f32 v20, {fh(1.0/D)}, v20")
    a("v_fma_f32 v20, -v24, v24, v20")
    a("v_max_f32 v20, 0, v20")
    a(f"v_add_f32 v21, {fh(EPS)}, v20")
    a("v_rsq_f32 v26, v21")
    a(f"s_and_b32 s15, s8, 1\ns_mul_i32 s15, s15, 384\ns_lshr_b32 s9, s8, 1\ns_mul_i32 s9, s9, 192\ns_add_u32 s15, s15, s9\ns_add_u32 s15, s15, {G1X+G1X_CS}")
    a("v_lshl_add_u32 v7, v3, 4, s15")
    a("v_mul_f32 v21, v26, v26")
    a(f"v_fmaak_f32 v21, v21, v20, {fh(EPS)}")
    a("v_rsq_f32 v21, v21")
    for t in range(3): a(f"ds_write_b128 v7, {v(CS+4*t,4)} offset:{64*t}")
    a("v_mul_f32 v27, v24, v26\nv_sub_f32 v27, 0, v27")
    a("v_mul_f32 v25, v21, v26")
    a(f"s_lshl_b32 s15, s8, 7\ns_add_u32 s9, s15, {G1X+G1X_ST}")
    a("v_lshlrev_b32 v8, 3, v2\nv_add_u32 v7, s9, v8")
    a("ds_write_b64 v7, v[24:25]")
    a("s_waitcnt lgkmcnt(0)\ns_barrier\ns_setprio 0")
    a("s_cmp_lg_u32 s7, 0\ns_cbranch_scc1 G1_ns")
    a(f"s_lshl_b32 s9, s6, 9\ns_add_u32 s9, s9, s15\ns_add_u32 s9, s9, {ST1_OFF}\ns_mov_b64 exec, 0xffff")
    a(f"buffer_store_dwordx2 v[26:27], v8, s[56:59], s9 offen{stfl}")
    a("s_mov_b64 exec, -1")
    a("G1_ns:")

def gen_consumer(a, G1X, vcnt, cnt_off, stfl=""):
    BUF, ACC = 32, 112
    a("s_and_b32 s8, s3, 1\ns_lshr_b32 s62, s3, 1")
    frag_addrs(a)
    a("s_lshl_b32 s10, s8, 11\nv_add_u32 v10, s10, v4")
    a("s_lshl_b32 s63, s62, 2")
    tile_addr(a, 11, 63)
    a("v_xor_b32 v12, 32, v11")
    a("s_add_u32 s63, s62, 2")
    tile_addr(a, 13, 63)
    for r in range(4): a(f"v_add_u32 v{18+r}, {3*SLOT}, v{10+r}")
    a(f"s_lshl_b32 s10, s8, 8\ns_add_u32 s10, s10, {G1X+G1X_ST}\nv_lshl_add_u32 v22, v2, 3, s10")
    a(f"s_lshl_b32 s10, s62, 8\ns_add_u32 s10, s10, {G1X+G1X_CS}\nv_lshl_add_u32 v23, v3, 4, s10")
    a(f"s_lshl_b32 s10, s62, 6\ns_add_u32 s10, s10, {G1X+G1X_CS+128}\nv_lshl_add_u32 v24, v3, 4, s10")
    a("v_lshlrev_b32 v25, 4, v1")
    a(f"s_lshl_b32 s10, s8, 11\ns_add_u32 s10, s10, {G1X+G1X_H}\ns_lshl_b32 s11, s62, 3\ns_add_u32 s11, s11, s10\nv_add_u32 v26, s11, v25")
    a("s_lshl_b32 s11, s62, 10\ns_add_u32 s11, s11, s10\nv_add_u32 v27, s11, v25")
    a(f"s_lshl_b32 s10, s6, 2\ns_lshl_b32 s11, s8, 1\ns_add_u32 s10, s10, s11\ns_mul_i32 s10, s10, 18432\ns_mul_i32 s11, s7, 3072\ns_add_u32 s10, s10, s11\ns_add_u32 s10, s10, {H_OFF}")
    a("s_lshl_b32 s11, s62, 11\ns_add_u32 s11, s11, s10\ns_add_u32 s12, s11, 18432")
    a("s_mul_i32 s13, s62, 18432\ns_add_u32 s13, s13, s10")
    a(f"v_mov_b32 v136, {fh(GC0)}\nv_mov_b32 v137, {fh(GC0)}\nv_mov_b32 v138, {fh(GC1)}\nv_mov_b32 v139, {fh(GC1)}\nv_mov_b32 v140, 1.0\nv_mov_b32 v141, 1.0")
    a.srd(56, P_WS, WS_BYTES)
    def reads(gi):
        sl = gi % 4
        ab, o0 = (10, sl * SLOT) if sl < 3 else (18, 0)
        b = BUF + 40 * (gi & 1)
        o = []
        for k2 in range(2):
            for mi in range(2):
                o.append(f"ds_read_b128 {v(b+20*k2+4*mi,4)}, v{ab} offset:{o0+4096*k2+1024*mi}")
            for t in range(3):
                for jh in range(2):
                    o.append(f"ds_read_b64_tr_b16 {v(b+20*k2+8+4*t+2*jh,2)}, v{ab+1+t} offset:{o0+6144*k2+256*jh}")
        return o
    for gi in range(10):
        rd = []
        if gi < 9:
            a("s_barrier")
            if gi == 0: a.stamp(2)
            if gi == 8: a.stamp(3)
            rd = reads(gi) if "g1nc" not in OPT else []
        if gi > 0 and "g1nc" not in OPT:
            b = BUF + 40 * ((gi - 1) & 1)
            for k2 in range(2):
                for t in range(3):
                    for mi in range(2):
                        for _ in range(2):
                            if rd: a(rd.pop(0))
                        a.mfma(ACC + 8 * t + 4 * mi, b + 20 * k2 + 8 + 4 * t, b + 20 * k2 + 4 * mi, "0" if (gi == 1 and k2 == 0) else None)
        for r in rd: a(r)
        if gi < 9: a("s_waitcnt lgkmcnt(0)")
    a("s_barrier")
    a.stamp(4)
    ST, CS, TM, PK = 72, 76, 100, 144
    for mi in range(2): a(f"ds_read_b64 {v(ST+2*mi,2)}, v22 offset:{128*mi}")
    for t in (2, 0, 1):
        for k2 in range(2):
            a(f"ds_read_b128 {v(CS+8*t+4*k2,4)}, v{24 if t == 2 else 23} offset:{384*k2+(64*t if t < 2 else 0)}")
    for n, t in enumerate((2, 0, 1)):
        a(f"s_waitcnt lgkmcnt({[4, 5, 3][n]})")
        regs = [ACC + 8 * t + e for e in range(8)]
        for e in range(0, 4, 2): a(f"v_pk_add_f32 {v(CS+8*t+e,2)}, {v(CS+8*t+e,2)}, {v(CS+8*t+4+e,2)}")
        for e in range(0, 8, 2):
            a(f"v_pk_fma_f32 {v(regs[e],2)}, {v(ST+2*(e>>2),2)}, {v(CS+8*t+(e&3),2)}, {v(regs[e],2)} op_sel_hi:[0,1,1] neg_lo:[1,0,0] neg_hi:[1,0,0]")
        for e in range(0, 8, 2):
            a(f"v_pk_mul_f32 {v(regs[e],2)}, {v(regs[e],2)}, {v(ST+2*(e>>2),2)} op_sel:[0,1] op_sel_hi:[1,1]")
        gelu_pk(a, regs, list(range(TM, TM + 8)), "v[136:137]", "v[138:139]", "v[140:141]")
        for e in range(4):
            d = PK + 8 + e if t == 2 else PK + 4 * (e >> 1) + 2 * t + (e & 1)
            a(f"v_cvt_pk_bf16_f32 v{d}, v{regs[2*e]}, v{regs[2*e+1]}")
        if t == 2:
            for mi in range(2): a(f"ds_write_b64 v26, {v(PK+8+2*mi,2)} offset:{1024*mi}")
            a.ldsadd(vcnt, vcnt + 1, cnt_off)
    for mi in range(2): a(f"buffer_store_dwordx4 {v(PK+4*mi,4)}, v25, s[56:59], s{11+mi} offen{stfl}")
    a.ldswait(vcnt, 7, 9, 4, cnt_off)
    a(f"ds_read_b128 {v(PK+12,4)}, v27")
    a("s_waitcnt lgkmcnt(0)")
    a(f"buffer_store_dwordx4 {v(PK+12,4)}, v25, s[56:59], s13 offen offset:1024{stfl}")
    a.stamp(5)
```

```python
from common import *
from g1 import gelu_pk, frag_addrs, tile_addr, loader_pre

SLOT = 20480
NSLOT = 3
G1_RING = NSLOT * SLOT
G1_BASE = 97152
G1X = G1_BASE + 2 * SLOT
G1X_ST, G1X_CS, G1X_H = 0, 1024, 1792
G1X_SZ = 1792 + 4096

def issue(a):
    a("s_lshl_b32 s15, s12, 7\ns_add_u32 s15, s15, s10\ns_mov_b32 m0, s13\ns_mul_i32 s9, s12, 73728")
    a("buffer_load_dwordx4 v6, s[48:51], s15 offen lds")
    a("s_add_u32 m0, m0, 4032\ns_add_u32 s9, s9, s11")
    a("buffer_load_dwordx4 v6, s[48:51], s15 offen offset:64 lds")
    a("s_add_u32 m0, m0, s61\ns_add_u32 s12, s12, 1")
    a("buffer_load_dwordx4 v6, s[44:47], s9 offen lds")
    a("s_add_u32 m0, m0, 960\ns_cmp_eq_u32 s12, 9")
    a("buffer_load_dwordx4 v6, s[44:47], s9 offen offset:64 lds")
    a("s_cselect_b32 s12, 0, s12\ns_add_u32 m0, m0, 960\ns_add_u32 s13, s13, 20480")
    a("buffer_load_dwordx4 v6, s[44:47], s9 offen offset:128 lds")
    a(f"s_sub_u32 s15, s13, {G1_RING}\ns_cmp_ge_u32 s13, {G1_BASE+G1_RING}\ns_cselect_b32 s13, s15, s13")

def gen_loader(a, w2pre, w2issue):
    a.srd(48, P_Q, ACT)
    a.srd(44, P_W1, D * D * 2)
    a(f"s_add_u32 s13, s13, {G1_BASE+2*SLOT}")
    issue(a)
    issue(a)
    w2pre()
    def wb(base, mult):
        l1 = a.lab("GA"); l2 = a.lab("GB")
        a(f"s_cmp_eq_u32 s63, 2\ns_cbranch_scc1 {l1}\ns_waitcnt vmcnt({base+3*mult})\ns_branch {l2}\n{l1}:\ns_waitcnt vmcnt({base+2*mult})\n{l2}:\ns_barrier")
    a("s_mov_b32 s14, 7")
    a("G1L_l:")
    a("s_waitcnt vmcnt(5)\ns_barrier")
    issue(a)
    a("s_sub_u32 s14, s14, 1\ns_cmp_lg_u32 s14, 0\ns_cbranch_scc1 G1L_l")
    w2issue()
    wb(5, 1)
    w2issue(); w2issue()
    wb(0, 3)

def gen_consumer(a, vcnt, cnt_off, stfl="", after1=None):
    BUF, ACC, CS, SM, SQ, ONE = 32, 112, 160, 172, 180, 188
    a("s_and_b32 s8, s3, 1\ns_lshr_b32 s62, s3, 1\ns_xor_b32 s14, s8, s62")
    frag_addrs(a)
    a("s_lshl_b32 s10, s8, 11\ns_lshl_b32 s11, s14, 12\ns_add_u32 s10, s10, s11\nv_add_u32 v10, s10, v4\nv_xor_b32 v18, 4096, v10")
    a(f"v_add_u32 v10, {G1_BASE}, v10\nv_add_u32 v18, {G1_BASE}, v18\nv_add_u32 v5, {G1_BASE}, v5")
    a("s_mul_i32 s12, s14, 6144\ns_lshl_b32 s63, s62, 2")
    tile_addr(a, 11, 63, "s12")
    a("v_xor_b32 v12, 32, v11")
    a("s_add_u32 s63, s62, 2")
    tile_addr(a, 13, 63, "s12")
    a("s_mul_i32 s12, s14, -12288\ns_add_u32 s12, s12, 6144")
    for r in range(3): a(f"v_add_u32 v{19+r}, s12, v{11+r}")
    a(f"s_lshl_b32 s10, s3, 8\ns_add_u32 s10, s10, {G1X+G1X_ST}\nv_lshl_add_u32 v22, v2, 3, s10")
    a(f"s_xor_b32 s10, s3, 2\ns_lshl_b32 s10, s10, 8\ns_add_u32 s10, s10, {G1X+G1X_ST}\nv_lshl_add_u32 v28, v2, 3, s10")
    a(f"s_mul_i32 s10, s3, 192\ns_add_u32 s10, s10, {G1X+G1X_CS}\nv_lshl_add_u32 v23, v3, 4, s10")
    a(f"s_xor_b32 s10, s3, 1\ns_mul_i32 s10, s10, 192\ns_add_u32 s10, s10, {G1X+G1X_CS}\nv_lshl_add_u32 v24, v3, 4, s10")
    a("v_lshlrev_b32 v25, 4, v1\nv_lshlrev_b32 v29, 3, v2")
    a(f"s_lshl_b32 s10, s8, 11\ns_add_u32 s10, s10, {G1X+G1X_H}\ns_lshl_b32 s11, s62, 3\ns_add_u32 s11, s11, s10\nv_add_u32 v26, s11, v25")
    a("s_lshl_b32 s11, s62, 10\ns_add_u32 s11, s11, s10\nv_add_u32 v27, s11, v25")
    a(f"s_lshl_b32 s10, s6, 2\ns_lshl_b32 s11, s8, 1\ns_add_u32 s10, s10, s11\ns_lshl_b32 s63, s10, 7\ns_add_u32 s63, s63, {ST1_OFF}")
    a(f"s_mul_i32 s10, s10, 18432\ns_mul_i32 s11, s7, 3072\ns_add_u32 s10, s10, s11\ns_add_u32 s10, s10, {H_OFF}")
    a("s_lshl_b32 s11, s62, 11\ns_add_u32 s11, s11, s10\ns_add_u32 s12, s11, 18432")
    a("s_mul_i32 s13, s62, 18432\ns_add_u32 s13, s13, s10")
    a(f"v_mov_b32 v136, {fh(GC0)}\nv_mov_b32 v137, {fh(GC0)}\nv_mov_b32 v138, {fh(GC1)}\nv_mov_b32 v139, {fh(GC1)}\nv_mov_b32 v140, 1.0\nv_mov_b32 v141, 1.0")
    for r in range(4): a(f"v_mov_b32 v{ONE+r}, 0x3f803f80")
    a("v_lshlrev_b32 v7, 2, v3\nv_sub_u32 v7, v2, v7")
    for r in range(4): a(f"v_cmp_eq_u32 {s(64+2*r,2)}, {r}, v7")
    def reads(gi):
        o0 = ((gi + 2) % NSLOT) * SLOT
        b = BUF + 40 * (gi & 1)
        o = []
        for k2 in range(2):
            ab = 10 + 8 * k2
            for mi in range(2):
                o.append(f"ds_read_b128 {v(b+20*k2+4*mi,4)}, v{ab} offset:{o0+1024*mi}")
            for t in range(3):
                for jh in range(2):
                    o.append(f"ds_read_b64_tr_b16 {v(b+20*k2+8+4*t+2*jh,2)}, v{ab+1+t} offset:{o0+256*jh}")
        return o
    for gi in range(10):
        rd = []
        if gi < 9:
            a("s_barrier")
            if gi == 0: a.stamp(2)
            if gi == 1 and after1: after1()
            rd = reads(gi)
        if gi > 0:
            b = BUF + 40 * ((gi - 1) & 1)
            z = "0" if gi == 1 else None
            mm = [(SQ + 4 * mi, b + 4 * mi, b + 4 * mi, z) for mi in range(2)] + [(SM + 4 * mi, ONE, b + 4 * mi, z) for mi in range(2)]
            mm += [(CS + 4 * t, b + 8 + 4 * t, ONE, z) for t in range(3)]
            mm += [(ACC + 8 * t + 4 * mi, b + 20 * k2 + 8 + 4 * t, b + 20 * k2 + 4 * mi, z if k2 == 0 else None) for k2 in range(2) for t in range(3) for mi in range(2)]
            for n, (d, x, y, c) in enumerate(mm):
                if rd: a(rd.pop(0))
                a.mfma(d, x, y, c)
                if gi == 9 and n == 11:
                    for mi in range(2):
                        q = SM + 4 * mi + 1
                        a(f"v_mov_b32 v{q}, 0")
                        for r in range(4): a(f"v_cndmask_b32 v{q}, v{q}, v{SQ+4*mi+r}, {s(64+2*r,2)}")
                if gi == 9 and n in (13, 15): gsum(a, SM + 4 * ((n - 13) // 2) + 1, 7)
                if gi == 9 and n == 16:
                    for t in range(3): a(f"ds_write_b128 v23, {v(CS+4*t,4)} offset:{64*t}")
                    for mi in range(2): a(f"ds_write_b64 v22, {v(SM+4*mi,2)} offset:{128*mi}")
        for r in rd: a(r)
        a("s_waitcnt lgkmcnt(0)")
    a("s_barrier")
    a.stamp(3)
    ST, CP, TM, PK, R1 = 72, 76, 100, 144, 88
    for mi in range(2): a(f"ds_read_b64 {v(ST+2*mi,2)}, v28 offset:{128*mi}")
    for t in range(3): a(f"ds_read_b128 {v(CP+4*t,4)}, v24 offset:{64*t}")
    a("s_waitcnt lgkmcnt(3)")
    M = lambda mi: ST + 2 * mi
    for mi in range(2): a(f"v_pk_add_f32 {v(M(mi),2)}, {v(M(mi),2)}, {v(SM+4*mi,2)}")
    for mi in range(2): a(f"v_mul_f32 v{M(mi)}, {fh(1.0/D)}, v{M(mi)}\nv_mul_f32 v{M(mi)+1}, {fh(1.0/D)}, v{M(mi)+1}")
    for mi in range(2): a(f"v_fma_f32 v{M(mi)+1}, -v{M(mi)}, v{M(mi)}, v{M(mi)+1}")
    for mi in range(2): a(f"v_max_f32 v{M(mi)+1}, 0, v{M(mi)+1}")
    for mi in range(2): a(f"v_add_f32 v{TM+mi}, {fh(EPS)}, v{M(mi)+1}")
    for mi in range(2): a(f"v_rsq_f32 v{R1+2*mi}, v{TM+mi}")
    a("s_waitcnt lgkmcnt(0)")
    for e in range(0, 12, 2): a(f"v_pk_add_f32 {v(CS+e,2)}, {v(CS+e,2)}, {v(CP+e,2)}")
    for mi in range(2): a(f"v_mul_f32 v{TM+mi}, v{R1+2*mi}, v{R1+2*mi}")
    for mi in range(2): a(f"v_fmaak_f32 v{TM+mi}, v{TM+mi}, v{M(mi)+1}, {fh(EPS)}")
    for mi in range(2): a(f"v_rsq_f32 v{TM+mi}, v{TM+mi}")
    for mi in range(2): a(f"v_mul_f32 v{R1+2*mi+1}, v{M(mi)}, v{R1+2*mi}")
    for mi in range(2): a(f"v_mul_f32 v{M(mi)+1}, v{TM+mi}, v{R1+2*mi}")
    for mi in range(2): a(f"v_sub_f32 v{R1+2*mi+1}, 0, v{R1+2*mi+1}")
    for mi in range(2): a(f"v_sub_f32 v{92+4*mi}, 0, v{M(mi)}\nv_sub_f32 v{93+4*mi}, 0, v{M(mi)}\nv_mov_b32 v{94+4*mi}, v{M(mi)+1}\nv_mov_b32 v{95+4*mi}, v{M(mi)+1}")
    a("s_or_b32 s9, s7, s62\ns_cmp_lg_u32 s9, 0\ns_cbranch_scc1 G1_ns")
    a("s_mov_b64 exec, 0xffff")
    for mi in range(2): a(f"buffer_store_dwordx2 {v(R1+2*mi,2)}, v29, s[56:59], s63 offen offset:{128*mi}{stfl}")
    a("s_mov_b64 exec, -1")
    a("G1_ns:")
    for n, t in enumerate((2, 0, 1)):
        regs = [ACC + 8 * t + e for e in range(8)]
        for e in range(0, 8, 2):
            a(f"v_pk_fma_f32 {v(regs[e],2)}, {v(92+4*(e>>2),2)}, {v(CS+4*t+(e&3),2)}, {v(regs[e],2)}")
        for e in range(0, 8, 2):
            a(f"v_pk_mul_f32 {v(regs[e],2)}, {v(regs[e],2)}, {v(94+4*(e>>2),2)}")
        gelu_pk(a, regs, list(range(TM, TM + 8)), "v[136:137]", "v[138:139]", "v[140:141]")
        for e in range(4):
            d = PK + 8 + e if t == 2 else PK + 4 * (e >> 1) + 2 * t + (e & 1)
            a(f"v_cvt_pk_bf16_f32 v{d}, v{regs[2*e]}, v{regs[2*e+1]}")
        if t == 2:
            for mi in range(2): a(f"ds_write_b64 v26, {v(PK+8+2*mi,2)} offset:{1024*mi}")
            a.ldsadd(vcnt, vcnt + 1, cnt_off)
        if t == 0:
            a.ldswait(vcnt, 7, 9, 4, cnt_off)
            a(f"ds_read_b128 {v(PK+12,4)}, v27")
    for mi in range(2): a(f"buffer_store_dwordx4 {v(PK+4*mi,4)}, v25, s[56:59], s{11+mi} offen{stfl}")
    a("s_waitcnt lgkmcnt(0)")
    a(f"buffer_store_dwordx4 {v(PK+12,4)}, v25, s[56:59], s13 offen offset:1024{stfl}")
```

```python
from common import *

G2_WM, G2_XT, G2_W = 0, 3072, 15360
CV, CV_SZ = 92160, 21248
CNT = CV + 3 * CV_SZ
RM = CNT + 64
PT7 = RM + 1024
KB_LDS = PT7 + 4096
ML_H = 73728
VC, V1 = 16, 17
NS = optval("NS", 18)
RING = 32
BF = RING + 4 * NS
MACC = BF + 32
KC = MACC + 80
GT = KC + 8
assert GT + 16 <= 256

class Stream:
    def __init__(self, a, segs):
        self.a = a
        self.items = [(sg, ks, t) for sg, sd in enumerate(segs) for ks in range(18) for t in range(len(sd[1]))]
        self.segs = segs
        self.issued = 0
        self.log = []
        self.owed = 0
        self.pre_done = -1
    def pre(self):
        if self.issued >= len(self.items) or self.pre_done == self.issued: return
        sg, ks, t = self.items[self.issued]
        if t == 0 and ks > 0:
            self.a(f"s_add_u32 s{self.segs[sg][0]}, s{self.segs[sg][0]}, 36864")
            self.pre_done = self.issued
    def issue(self):
        if self.issued >= len(self.items): return
        sg, ks, t = self.items[self.issued]
        sr, tl, fl = self.segs[sg]
        if t == 0 and ks > 0 and self.pre_done != self.issued: self.a(f"s_add_u32 s{sr}, s{sr}, 36864")
        vo, off = tl[t]
        if not ("nold" in OPT and self.issued >= NS): self.a(f"buffer_load_dwordx4 {v(RING+4*(self.issued % NS),4)}, v{vo}, s[56:59], s{sr} offen offset:{off}{fl}")
        self.log.append(self.issued)
        self.issued += 1
    def other(self, tag="x"): self.log.append(tag)
    def index(self, sg, ks, t): return self.items.index((sg, ks, t))
    def younger(self, key): return len(self.log) - 1 - self.log.index(key)

def mphase(a, st, sg, vb, ks0=0, ks1=18, first=True, acc=None, hook=None, prio=None):
    if acc is None: acc = MACC
    nt = len(st.segs[sg][1])
    def rd(ks, m): a(f"ds_read_b128 {v(BF+16*(ks&1)+4*m,4)}, v{vb + (m >> 1)} offset:{(m&1)*18432+ks*1024}")
    if prio is not None: a(f"s_setprio {prio}")
    for m in range(4): rd(ks0, m)
    rslots = {2: (0, 2, 3, 4), 3: (2, 3, 6, 7)}.get(nt, (2, 6, 10, 14))
    for ks in range(ks0, ks1):
        vm = st.younger(st.index(sg, ks, nt - 1))
        a(f"s_waitcnt vmcnt({min(vm,63)}) lgkmcnt(0)")
        for t in range(nt):
            n = st.index(sg, ks, t)
            for m in range(4):
                i = 4 * t + m
                a.mfma(acc + 16 * t + 4 * m, RING + 4 * (n % NS), BF + 16 * (ks & 1) + 4 * m, "0" if (first and ks == ks0) else None)
                if m == 0 and st.owed: st.pre()
                if m == 1 and st.owed: st.issue(); st.owed = 0
                if m == 3: st.owed = 1
                if i in rslots and ks + 1 < ks1 and "nord" not in OPT: rd(ks + 1, rslots.index(i))
                if hook: hook(ks, i)
    if st.owed: st.issue(); st.owed = 0
    if prio is not None: a("s_setprio 0")

def gphase(a, ve, vo, hook=None):
    a.nop(8)
    for t in range(3):
        for mp in range(2):
            regs = [MACC + 16 * t + 8 * mp + e for e in range(8)]
            k0 = [f"v{KC + 2*(2*mp + (e >> 2))}" for e in range(8)]
            k1 = [f"v{KC + 2*(2*mp + (e >> 2)) + 1}" for e in range(8)]
            if "nog" not in OPT: gelu_vals(a, regs, list(range(GT, GT + 8)), k0, k1)
            else: a("s_sleep 8")
            p = GT + 8 + 4 * (mp & 1)
            for e in range(4): a(f"v_cvt_pk_bf16_f32 v{p+e}, v{regs[2*e]}, v{regs[2*e+1]}")
            ad = (ve if t != 1 else vo) + mp
            for mm in range(2):
                a(f"ds_write_b64 v{ad}, {v(p+2*mm,2)} offset:{mm*18432+(t>>1)*1024}")
            if hook: hook(2 * t + mp)

def h_addr(a, sT, ve, vo):
    for k, dst in ((0, ve), (1, vo)):
        a(f"s_add_u32 s12, s{sT}, {k}\ns_lshr_b32 s13, s12, 1\ns_lshl_b32 s13, s13, 10\ns_and_b32 s12, s12, 1\ns_lshl_b32 s12, s12, 3\ns_add_u32 s12, s12, s13\ns_add_u32 s12, s12, {ML_H}")
        a(f"v_add_u32 v{dst}, s12, v2\nv_add_u32 v{dst+1}, 36864, v{dst}")

def pstore(a, acc, t, mp, sreg, off, k):
    p = GT + 4 * (k % 4)
    o = [f"v_cvt_pk_bf16_f32 v{p+e}, v{acc+16*t+8*mp+2*e}, v{acc+16*t+8*mp+2*e+1}" for e in range(4)]
    o.append(f"buffer_store_dwordx4 {v(p,4)}, v2, s[56:59], s{sreg} offen offset:{off} sc1")
    return o

HFL = ''
def gen_gemm2(a):
    HB, BUF, ACC = 32, 104, 216
    a("s_lshl_b32 s8, s61, 2\ns_add_u32 s8, s8, s3")
    a("s_mul_i32 s9, s8, 18432")
    a("v_and_b32 v8, 15, v1\ns_lshl_b32 s10, s8, 4\nv_add_u32 v8, s10, v8\nv_and_b32 v9, 48, v1\nv_lshlrev_b32 v9, 4, v9\ns_movk_i32 s13, 18432\nv_mov_b32 v10, 0x80000000")
    for gam, sh in enumerate((-1, 1, -2, 2)):
        a(f"v_add_u32 v5, {sh}, v8\nv_cmp_gt_u32 vcc, {S}, v5\nv_lshrrev_b32 v6, 4, v5\nv_mad_u32_u24 v6, v6, s13, v9\nv_and_b32 v5, 15, v5\nv_lshl_add_u32 v6, v5, 4, v6")
        a(f"v_cndmask_b32 v{24+gam}, v10, v6, vcc")
    a(f"s_mov_b32 s14, {H_OFF}")
    hl = []
    for ks in range(18):
        pre = "s_add_u32 s14, s14, 4096\n" if ks and ks % 4 == 0 else ""
        g0, g1 = (2 * ks) // 9, (2 * ks + 1) // 9
        if g0 == g1: hl.append(pre + f"buffer_load_dwordx4 {v(HB+4*ks,4)}, v{24+g0}, s[56:59], s14 offen offset:{(ks%4)*1024}{HFL}")
        else: hl.append(pre + f"buffer_load_dwordx2 {v(HB+4*ks,2)}, v{24+g0}, s[56:59], s14 offen offset:{(ks%4)*1024}{HFL}\nbuffer_load_dwordx2 {v(HB+4*ks+2,2)}, v{24+g1}, s[56:59], s14 offen offset:{(ks%4)*1024+8}{HFL}")
    for x in hl: a(x)
    a.srd(44, P_Q, ACT)
    a("v_lshrrev_b32 v5, 2, v1\nv_and_b32 v6, 3, v1\nv_mul_u32_u24 v7, 1152, v5\nv_lshl_add_u32 v7, v6, 4, v7")
    a(f"s_mul_i32 s12, s3, 3072\ns_add_u32 s12, s12, {G2_XT}\ns_mov_b32 m0, s12\ns_lshl_b32 s10, s62, 6\ns_add_u32 s10, s10, s9")
    for p in range(3):
        if p: a("s_add_u32 m0, m0, 960\ns_nop 0")
        a(f"buffer_load_dwordx4 v7, s[44:47], s10 offen offset:{64*p} lds")
    a("v_and_b32 v8, 15, v1\nv_lshrrev_b32 v9, 4, v1\nv_lshlrev_b32 v10, 3, v8")
    a(f"s_lshl_b32 s10, s8, 7\ns_add_u32 s10, s10, {ST1_OFF}")
    a("buffer_load_dwordx2 v[18:19], v10, s[56:59], s10 offen")
    a(f"s_lshl_b32 s11, s62, 10\ns_add_u32 s11, s11, s9\ns_add_u32 s11, s11, {X1_OFF}")
    a(f"v_lshlrev_b32 v12, 6, v5\nv_and_b32 v13, 1, v9\nv_lshl_add_u32 v12, v13, 5, v12\nv_lshl_add_u32 v12, v6, 3, v12\nv_add_u32 v12, {G2_W}, v12")
    a("v_xor_b32 v13, 32, v12\nv_add_u32 v14, 49152, v12\nv_add_u32 v15, 49152, v13")
    a("v_and_b32 v11, 1, v1\nv_lshlrev_b32 v11, 6, v11\nv_lshl_add_u32 v11, v9, 4, v11")
    a("v_lshlrev_b32 v20, 6, v8\nv_lshl_add_u32 v20, v9, 3, v20\nv_add_u32 v20, s12, v20")
    a("v_mov_b32 v10, 0")
    a.stamp(1)
    a("s_cmp_eq_u32 s63, 3\ns_cbranch_scc1 G2_n3")
    for npair in (2, 3):
        nt = 1 + 2 * npair
        if npair == 3: a("G2_n3:")
        def reads(gi):
            b = BUF + 56 * (gi & 1)
            o = []
            for k2 in range(2):
                ks = 2 * gi + k2
                o.append(f"ds_read_b128 {v(b+28*k2,4)}, v11 offset:{G2_WM+128*ks}")
                for t in range(2 * npair):
                    for jh in range(2):
                        off = ((ks * 2 + jh) * npair + (t >> 1)) * 1024
                        ad = 12 + (t & 1)
                        if off >= 49152: off -= 49152; ad += 2
                        o.append(f"ds_read_b64_tr_b16 {v(b+28*k2+4+4*t+2*jh,2)}, v{ad} offset:{off}")
            return o
        for gi in range(10):
            rd = []
            if gi < 9:
                a("s_barrier")
                if gi == 0 and npair == 2: a.stamp(2)
                rd = reads(gi)
            if gi == 9:
                a("s_waitcnt vmcnt(0)")
                rd = [f"ds_read_b64 {v(BUF+56+2*t,2)}, v20 offset:{(t>>1)*1024+(t&1)*32}" for t in range(2 * npair)]
            if gi > 0:
                g = gi - 1
                if gi < 9: a(f"s_waitcnt vmcnt({22-2*gi+(2*gi <= 4)+(2*gi <= 13)})")
                b = BUF + 56 * (g & 1)
                for k2 in range(2):
                    for t in range(nt):
                        for _ in range(2):
                            if rd: a(rd.pop(0))
                        a.mfma(ACC + 4 * t, b + 28 * k2 + 4 * t, HB + 4 * (2 * g + k2), "0" if (g == 0 and k2 == 0) else None)
            for r in rd: a(r)
            a("s_waitcnt lgkmcnt(0)")
        XS = BUF + 56
        for e in range(4 * npair):
            a(f"v_lshlrev_b32 v{HB+2*e}, 16, v{XS+e}\nv_and_b32 v{HB+2*e+1}, 0xffff0000, v{XS+e}")
        a(f"v_add_f32 v9, v{ACC}, v{ACC+1}")
        a("v_sub_f32 v19, v19, v9")
        for p in range(npair):
            for e in range(8): a(f"v_fma_f32 v{HB+8*p+e}, v{HB+8*p+e}, v18, v19")
            for e in range(8): a(f"v_add_f32 v{HB+8*p+e}, v{HB+8*p+e}, v{ACC+4+8*p+e}")
            for e in range(4): a(f"v_cvt_pk_bf16_f32 v{BUF+4*p+e}, v{HB+8*p+2*e}, v{HB+8*p+2*e+1}")
            a(f"buffer_store_dwordx4 {v(BUF+4*p,4)}, v2, s[56:59], s11 offen offset:{p*1024} sc1")
        for e in range(8 * npair): a(f"v_fmac_f32 v10, v{HB+e}, v{HB+e}")
        if npair == 2: a("s_branch G2_j")
    a("G2_j:")
    gsum(a, 10, 11)
    a(f"s_lshl_b32 s10, s61, 3\ns_add_u32 s10, s10, s60\ns_lshl_b32 s10, s10, 8\ns_lshl_b32 s12, s3, 6\ns_add_u32 s10, s10, s12\ns_add_u32 s10, s10, {SS_OFF}")
    a(f"s_lshl_b32 s12, s8, 6\ns_add_u32 s12, s12, {MEAN_OFF}")
    a("s_mov_b64 exec, 0xffff")
    a("buffer_store_dword v10, v4, s[56:59], s10 offen sc1")
    a(f"s_cmp_lg_u32 s60, 0\ns_cbranch_scc1 G2_m")
    a("buffer_store_dword v9, v4, s[56:59], s12 offen sc1")
    a("G2_m:")
    a("s_mov_b64 exec, -1")

def gen_w2load(a):
    a.srd(44, P_W2, D * D * 2)
    a("v_lshrrev_b32 v5, 2, v1\nv_and_b32 v6, 3, v1\nv_mul_u32_u24 v7, 1152, v5")
    a("v_bfe_u32 v8, v1, 4, 1\nv_lshlrev_b32 v8, 1, v8\nv_xor_b32 v8, v8, v6\nv_lshl_add_u32 v7, v8, 4, v7")
    a("s_sub_u32 s12, s3, 4")
    a(f"s_min_u32 s8, s12, 2\ns_lshl_b32 s8, s8, 10\ns_mov_b32 m0, s8\ns_add_u32 s8, s8, {W2M_OFF}")
    a("buffer_load_dwordx4 v2, s[56:59], s8 offen lds")
    a(f"s_lshl_b32 s6, s63, 10\ns_mul_i32 s7, s12, s6\ns_add_u32 s7, s7, {G2_W}\ns_lshl_b32 s6, s6, 2")
    a("s_mul_i32 s9, s12, 18432\ns_lshl_b32 s10, s62, 6\ns_add_u32 s9, s9, s10")
    DEP = optval("G2DEP", 3)
    a(f"s_mov_b32 s14, {9+DEP}")
    def wait(n):
        l1 = a.lab("WA"); l2 = a.lab("WB")
        if n == 0: a("s_waitcnt vmcnt(0)")
        else: a(f"s_cmp_eq_u32 s63, 2\ns_cbranch_scc1 {l1}\ns_waitcnt vmcnt({3*n})\ns_branch {l2}\n{l1}:\ns_waitcnt vmcnt({2*n})\n{l2}:")
        a("s_barrier")
    a("W2_l:")
    a("s_cmp_gt_u32 s14, 9\ns_cbranch_scc1 W2_i")
    wait(DEP - 1)
    a("W2_i:")
    a("s_mov_b32 m0, s7\ns_add_u32 s7, s7, s6")
    a("buffer_load_dwordx4 v7, s[44:47], s9 offen lds")
    a("s_add_u32 m0, m0, 960\ns_cmp_eq_u32 s63, 2")
    a("buffer_load_dwordx4 v7, s[44:47], s9 offen offset:64 lds")
    a("s_cbranch_scc1 W2_a")
    a("s_add_u32 m0, m0, 960\ns_nop 0")
    a("buffer_load_dwordx4 v7, s[44:47], s9 offen offset:128 lds")
    a("W2_a:")
    a("s_add_u32 s9, s9, 73728")
    a(f"s_sub_u32 s14, s14, 1\ns_cmp_gt_u32 s14, {DEP}\ns_cbranch_scc1 W2_l")
    a("s_cmp_eq_u32 s55, 0\ns_cbranch_scc1 W2_t")
    gen_conv_load(a)
    for i in range(DEP): a(f"s_waitcnt vmcnt({10+2*(DEP-1-i)})\ns_barrier")
    a("s_branch KB_conv")
    a("W2_t:")
    for i in range(DEP): wait(DEP - 1 - i)

def gen_conv_load(a, fl=''):
    a.srd(48, P_SSMK, ACT)
    a(f"s_mul_i32 s54, s52, {KV_PITCH}\ns_add_u32 s54, s54, {KV_OFF}")
    a("s_lshl_b32 s10, s52, 12")
    a(f"s_mov_b32 m0, s53\ns_add_u32 s11, s54, 4")
    for i in range(4): a(f"buffer_load_dwordx4 v2, s[56:59], s54 offen offset:{i*1024}{fl} lds")
    a("s_mov_b64 exec, 7")
    a("s_add_u32 m0, s53, 4096\ns_nop 0")
    a(f"buffer_load_dwordx4 v3, s[56:59], s54 offen{fl} lds")
    a(f"s_add_u32 m0, s53, {2*4160+4096}\ns_nop 0")
    a(f"buffer_load_dwordx4 v3, s[56:59], s11 offen{fl} lds")
    a("s_mov_b64 exec, -1")
    a(f"s_add_u32 m0, s53, {4*4160+512}\ns_nop 0")
    for i in range(4): a(f"buffer_load_dwordx4 v2, s[48:51], s10 offen offset:{i*1024} nt lds")

def gen_conv(a, mid, fl='', gate=None):
    FA, FB, ACC = 96, 160, 224
    a("s_mov_b32 s6, s52\ns_mov_b32 s7, s53")
    a("s_lshl_b32 s8, s6, 1\ns_and_b32 s8, s8, 0xfffffffc")
    a(f"s_load_dword s15, {s(P_SSMD,2)}, s8")
    a(f"s_add_u32 m0, s7, {2*4160}")
    a("s_waitcnt vmcnt(6)")
    for i in range(4): a(f"buffer_load_dwordx4 v2, s[56:59], s11 offen offset:{i*1024}{fl} lds")
    a("v_lshlrev_b32 v5, 3, v1\nv_add_u32 v5, s7, v5\nv_mov_b32 v18, 0\nv_mov_b32 v19, 0")
    a(f"ds_write_b64 v5, v[18:19] offset:{4*4160}")
    a("v_and_b32 v6, 15, v1\nv_lshrrev_b32 v7, 4, v1")
    a("v_sub_u32 v8, 3, v6\nv_and_b32 v8, 3, v8\nv_mul_u32_u24 v8, 4160, v8")
    a("v_and_b32 v9, 12, v6\nv_lshlrev_b32 v9, 1, v9\nv_sub_u32 v8, v8, v9")
    a("v_lshlrev_b32 v9, 4, v7\nv_sub_u32 v8, v8, v9")
    a(f"v_add_u32 v8, {4104-3584}, v8\nv_add_u32 v8, s7, v8")
    a("v_lshlrev_b32 v10, 5, v6\nv_sub_u32 v10, v10, v9")
    a(f"v_add_u32 v10, {4*4160+512+16}, v10\nv_add_u32 v10, s7, v10")
    a("v_add_u32 v11, s7, v2")
    a("v_min_u32 v12, 16, v2\nv_add_u32 v12, s7, v12\nv_add_u32 v12, 4096, v12")
    for r in range(32): a(f"v_mov_b32 v{ACC+r}, 0")
    a.stamp(2)
    a("s_waitcnt vmcnt(0)")
    a.stamp(3)
    for c in range(5):
        ad, o = (11, c * 1024) if c < 4 else (12, 0)
        b = FA + 12 * c
        a(f"ds_read_b128 {v(b,4)}, v{ad} offset:{o}")
        a(f"ds_read_b128 {v(b+4,4)}, v{ad} offset:{o+2*4160}")
        a(f"ds_read_b64 {v(b+8,2)}, v{ad} offset:{o+16}")
    for c in range(5):
        ad, o = (11, c * 1024) if c < 4 else (12, 0)
        b = FA + 12 * c; d = FB + 8 * c
        a(f"s_waitcnt lgkmcnt({12-c})")
        for e in range(4): a(f"v_alignbit_b32 v{d+e}, v{b+4+e}, v{b+e}, 16")
        for e in range(4): a(f"v_alignbit_b32 v{d+4+e}, v{b+2+e if e < 2 else b+6+e}, v{b+4+e}, 16")
        a(f"ds_write_b128 v{ad}, {v(d,4)} offset:{o+4160}")
        a(f"ds_write_b128 v{ad}, {v(d+4,4)} offset:{o+3*4160}")
    a("s_waitcnt lgkmcnt(0)")
    def reads(st):
        o = []
        for m in range(8):
            o.append(f"ds_read_b128 {v(FB+32*st+4*m,4)}, v10 offset:{512*m}")
            o.append(f"ds_read_b64 {v(FA+32*st+4*m,2)}, v8 offset:{512*(7-m)}")
            o.append(f"ds_read_b64 {v(FA+32*st+4*m+2,2)}, v8 offset:{512*(7-m)+8}")
        return o
    for t in reads(0): a(t)
    order = sorted([(i, m) for i in range(8) for m in range(i + 1)], key=lambda im: (max(im[1], im[0] - im[1]), im[1], im[0]))
    def body(extra=None):
        for st in range(2):
            a("v_subrev_u32 v8, 64, v8\nv_subrev_u32 v10, 64, v10")
            a("s_waitcnt lgkmcnt(0)")
            rd = reads(1 - st)
            for n, (i, m) in enumerate(order):
                a.mfma(ACC + 4 * i, FA + 32 * st + 4 * m, FB + 32 * st + 4 * (i - m))
                if n < 24: a(rd[n])
                if extra and n % 4 == 3 and n < 32: extra()
    a(f"s_setprio {optval('CVP', 3)}")
    n1 = optval("CVMID", 1 if gate is None else 2)
    if gate == "none": n1 = 4
    a(f"s_mov_b32 s12, {n1}")
    a("CV_k:")
    body()
    a("s_sub_u32 s12, s12, 1\ns_cmp_lg_u32 s12, 0\ns_cbranch_scc1 CV_k")
    if n1 < 4:
        if gate: gate()
        body(mid)
    if n1 < 3:
        a(f"s_mov_b32 s12, {3-n1}")
        a("CV_l:")
        body()
        a("s_sub_u32 s12, s12, 1\ns_cmp_lg_u32 s12, 0\ns_cbranch_scc1 CV_l")
    a.stamp(4)
    a("s_waitcnt lgkmcnt(0)")
    a("v_lshlrev_b32 v11, 5, v6\nv_lshl_add_u32 v11, v7, 3, v11")
    a(f"v_sub_u32 v12, {4088-3584}, v11\nv_add_u32 v12, s7, v12")
    for i in range(8): a(f"ds_read_b64 {v(FA+2*i,2)}, v12 offset:{512*(7-i)}")
    a("s_lshl_b32 s13, s15, 16\ns_and_b32 s14, s15, 0xffff0000\ns_bitcmp1_b32 s6, 0\ns_cselect_b32 s13, s14, s13")
    a(f"s_add_u32 s10, s10, {Y_OFF}")
    a("s_waitcnt lgkmcnt(0)")
    for i in range(8):
        a(f"v_and_b32 v{FB}, 0xffff0000, v{FA+2*i+1}\nv_lshlrev_b32 v{FB+1}, 16, v{FA+2*i+1}")
        a(f"v_and_b32 v{FB+2}, 0xffff0000, v{FA+2*i}\nv_lshlrev_b32 v{FB+3}, 16, v{FA+2*i}")
        for r in range(4): a(f"v_fmac_f32 v{ACC+4*i+r}, s13, v{FB+r}")
        a(f"v_cvt_pk_bf16_f32 v{FB+8+2*i}, v{ACC+4*i}, v{ACC+4*i+1}\nv_cvt_pk_bf16_f32 v{FB+9+2*i}, v{ACC+4*i+2}, v{ACC+4*i+3}")
        a(f"buffer_store_dwordx2 {v(FB+8+2*i,2)}, v11, s[56:59], s10 offen offset:{512*i} sc1")

def fin_consts(a):
    a("s_lshr_b32 s61, s4, 1\ns_and_b32 s62, s4, 1")
    a("s_mul_i32 s52, s61, 9\ns_lshl_b32 s6, s62, 2\ns_add_u32 s52, s52, s6")
    a("s_cmp_lt_u32 s4, 4\ns_cselect_b32 s53, 12288, 0")
    a("s_mul_i32 s54, s5, 73728\ns_lshl_b32 s6, s52, 5\ns_add_u32 s55, s54, s6")

def stage_x(a):
    a.srd(44, P_Q, ACT)
    fin_consts(a)
    a("s_mul_i32 s6, s3, 18432\ns_add_u32 s7, s6, s53\ns_mov_b32 m0, s7\ns_add_u32 s6, s6, s55\ns_movk_i32 s8, 6554\ns_movk_i32 s9, 992")
    for i in range(3):
        a(f"v_add_u32 v5, {64*i}, v1\nv_min_u32 v5, 159, v5\nv_mul_lo_u32 v14, v5, s8\nv_lshrrev_b32 v14, 16, v14")
        a("v_lshlrev_b32 v5, 4, v5\nv_mad_u32_u24 v5, v14, s9, v5")
        a("buffer_load_dwordx4 v5, s[44:47], s6 offen nt lds")
        a("s_add_u32 m0, m0, 1024")

def stage_y(a):
    a("v_lshrrev_b32 v5, 3, v1\nv_and_b32 v14, 7, v1\nv_lshlrev_b32 v5, 12, v5\nv_lshl_add_u32 v5, v14, 4, v5")
    a(f"s_lshl_b32 s6, s52, 16\ns_lshl_b32 s7, s3, 15\ns_add_u32 s6, s6, s7\ns_lshl_b32 s7, s5, 7\ns_add_u32 s6, s6, s7\ns_add_u32 s6, s6, {Y_OFF}")
    for i in range(3):
        if i == 2: a("s_cmp_ge_u32 s3, 2\ns_cbranch_scc1 FN_y")
        a("buffer_load_dwordx4 v5, s[56:59], s6 offen sc1 lds")
        a("s_add_u32 m0, m0, 1024\ns_add_u32 s6, s6, 131072")
    a("FN_y:")

def gen_final(a):
    PR, YR, XR, X1R, RMR, AC, T = 32, 64, 68, 72, 76, 88, 96
    a.srd(48, P_OUT, ACT)
    a("s_sub_u32 s60, s3, 4")
    fin_consts(a)
    a("v_and_b32 v5, 15, v1\nv_lshrrev_b32 v6, 4, v1")
    a("v_mul_u32_u24 v7, 160, v5\nv_lshl_add_u32 v7, v6, 3, v7\nv_add_u32 v7, s53, v7")
    a("v_lshrrev_b32 v8, 1, v6\nv_mul_u32_u24 v8, 18432, v8\nv_bfe_u32 v9, v1, 2, 3\nv_lshl_add_u32 v8, v9, 7, v8")
    a("v_and_b32 v9, 3, v1\nv_lshl_add_u32 v8, v9, 3, v8\nv_add_u32 v8, s53, v8\nv_add_u32 v8, 3072, v8")
    a(f"v_lshlrev_b32 v11, 4, v5\nv_add_u32 v11, {RM}, v11")
    a("v_lshrrev_b32 v5, 5, v1\nv_bfe_u32 v6, v1, 1, 4\nv_and_b32 v9, 1, v1")
    a("v_mul_u32_u24 v18, 18432, v5\nv_lshl_add_u32 v18, v9, 4, v18\nv_mul_u32_u24 v19, 160, v6\nv_add3_u32 v19, v19, v18, s53")
    a("v_mul_u32_u24 v6, 1152, v6\nv_add_u32 v18, v18, v6")
    a.stamp(1)
    lists = {0: [[(4,0),(8,0),(3,2)], [(5,0),(0,1)], [(6,0),(1,1)], [(7,0),(2,2)]],
             1: [[(1,0),(5,0),(9,2)], [(2,0),(6,1)], [(3,0),(7,1)], [(4,0),(8,2)]]}
    def enc(l): return sum(((u | (c << 4) | 0x80) << (8 * i)) for i, (u, c) in enumerate(l))
    for q in range(4):
        a(f"s_cmp_eq_u32 s62, 0\ns_cselect_b32 s6, {enc(lists[0][q])}, {enc(lists[1][q])}" if False else
          f"s_mov_b32 s6, {enc(lists[0][q])}\ns_mov_b32 s7, {enc(lists[1][q])}\ns_cmp_eq_u32 s62, 0\ns_cselect_b32 s6, s6, s7")
        if q == 0: a("s_mov_b32 s68, s6")
        else: a(f"s_cmp_eq_u32 s60, {q}\ns_cselect_b32 s68, s6, s68")
    a("FN_l:")
    a("s_and_b32 s63, s68, 15\ns_lshr_b32 s6, s63, 1\ns_and_b32 s7, s63, 1")
    a("s_add_u32 s8, s6, s52")
    a("s_mul_i32 s9, s7, 36864")
    a("s_lshr_b32 s10, s8, 1\ns_lshl_b32 s10, s10, 10\ns_and_b32 s11, s8, 1\ns_lshl_b32 s11, s11, 3\ns_add_u32 s10, s10, s11\ns_add_u32 s10, s10, s9")
    a("v_add_u32 v12, s10, v2")
    a("s_lshl_b32 s10, s6, 5\ns_add_u32 s69, s10, s9")
    a("v_add_u32 v13, s69, v7\nv_add_u32 v20, s69, v19")
    a("s_lshl_b32 s10, s7, 9\nv_add_u32 v14, s10, v11")
    a("s_and_b32 s10, s6, 1\ns_mul_i32 s10, s10, 36864\ns_lshr_b32 s11, s6, 1\ns_lshl_b32 s11, s11, 10\ns_add_u32 s10, s10, s11\ns_lshl_b32 s11, s7, 6\ns_add_u32 s10, s10, s11")
    a("v_add_u32 v15, s10, v8")
    for mt in range(2):
        a(f"ds_read_b64 {v(X1R+2*mt,2)}, v12 offset:{18432*mt}")
        a(f"ds_read_b64 {v(XR+2*mt,2)}, v13 offset:{18432*mt}")
        a(f"ds_read_b128 {v(RMR+4*mt,4)}, v14 offset:{256*mt}")
        a(f"ds_read_b64_tr_b16 {v(YR+2*mt,2)}, v15 offset:{32*mt}")
    a("s_add_u32 s69, s69, s55")
    a(f"s_bfe_u32 s10, s68, 0x20004\ns_lshl_b32 s10, s10, 2\ns_add_u32 s10, s10, s61\ns_lshl_b32 s10, s10, 5\ns_mul_i32 s11, s5, {FB_STRIDE}\ns_add_u32 s10, s10, s11\ns_add_u32 s10, s10, {FP_OFF}")
    a(f"s_lshl_b32 s9, s8, 11\ns_lshl_b32 s11, s7, 10\ns_add_u32 s9, s9, s11\ns_add_u32 s9, s9, s54\ns_add_u32 s9, s9, {PART_OFF}")
    a("s_waitcnt lgkmcnt(0)")
    for e in range(4):
        r = RMR + 4 * (e >> 1)
        a(f"v_lshlrev_b32 v{T+16+2*e}, 16, v{XR+e}\nv_and_b32 v{T+17+2*e}, 0xffff0000, v{XR+e}")
        a(f"v_lshlrev_b32 v{T+8+2*e}, 16, v{X1R+e}\nv_and_b32 v{T+9+2*e}, 0xffff0000, v{X1R+e}")
        a(f"v_lshlrev_b32 v{T+24+2*e}, 16, v{YR+e}\nv_and_b32 v{T+25+2*e}, 0xffff0000, v{YR+e}")
        a(f"v_fma_f32 v{T}, v{T+16+2*e}, v{r+2}, v{r+3}\nv_fma_f32 v{T+1}, v{T+17+2*e}, v{r+2}, v{r+3}")
        a(f"v_add_f32 v{T+8+2*e}, v{T+8+2*e}, v{r+1}\nv_add_f32 v{T+9+2*e}, v{T+9+2*e}, v{r+1}")
        a(f"v_mul_f32 v{T+24+2*e}, v{T+24+2*e}, v{T}\nv_mul_f32 v{T+25+2*e}, v{T+25+2*e}, v{T+1}")
    a.spoll(8, 10, 16, 13, 2)
    if 'fine' in OPT: a.stamp(6)
    for fb in range(8):
        a(f"buffer_load_dwordx4 {v(PR+4*fb,4)}, v2, s[56:59], s9 offen sc1")
        if fb < 7: a(f"s_add_u32 s9, s9, {ACT}")
    for fb in range(8):
        a(f"s_waitcnt vmcnt({7-fb})")
        d = AC if fb == 0 else T
        for e in range(4):
            a(f"v_lshlrev_b32 v{d+2*e}, 16, v{PR+4*fb+e}\nv_and_b32 v{d+2*e+1}, 0xffff0000, v{PR+4*fb+e}")
        if fb:
            for e in range(8): a(f"v_add_f32 v{AC+e}, v{AC+e}, v{T+e}")
    for r in range(8): a(f"v_fma_f32 v{AC+r}, v{AC+r}, v{RMR+4*(r>>2)}, v{T+8+r}")
    for r in range(8): a(f"v_mul_f32 v{T+r}, {fh(-LOG2E)}, v{AC+r}")
    for r in range(8): a(f"v_exp_f32 v{T+r}, v{T+r}")
    for r in range(8): a(f"v_add_f32 v{T+r}, 1.0, v{T+r}")
    for r in range(8): a(f"v_rcp_f32 v{T+r}, v{T+r}")
    for r in range(8): a(f"v_mul_f32 v{AC+r}, v{AC+r}, v{T+24+r}")
    for r in range(8): a(f"v_fma_f32 v{AC+r}, v{AC+r}, v{T+r}, v{T+16+r}")
    for e in range(4): a(f"v_cvt_pk_bf16_f32 v{T+32+e}, v{AC+2*e}, v{AC+2*e+1}")
    for mt in range(2): a(f"ds_write_b64 v13, {v(T+32+2*mt,2)} offset:{18432*mt}")
    a(f"ds_read_b128 {v(T+36,4)}, v20")
    a("s_waitcnt lgkmcnt(0)")
    a(f"buffer_store_dwordx4 {v(T+36,4)}, v18, s[48:51], s69 offen")
    a("s_lshr_b32 s68, s68, 8\ns_cbranch_scc1 FN_l")

def touch(a, sbase, nlines, vdst, vtmp, fl=""):
    for i in range((nlines + 63) // 64):
        a(f"v_add_u32 v{vtmp}, {64*i}, v1\nv_min_u32 v{vtmp}, {nlines-1}, v{vtmp}\nv_lshlrev_b32 v{vtmp}, 7, v{vtmp}")
        a(f"buffer_load_dword v{vdst+i%4}, v{vtmp}, s[56:59], s{sbase} offen{fl}")

def paced(a, st, n, depth):
    for i in range(n):
        if i >= depth: a(f"s_waitcnt vmcnt({depth-1})")
        st.issue()

def gen_kb(a):
    a(".p2align 8\nkb_kernel:")
    a("s_cmp_ge_u32 s2, 256\ns_cbranch_scc1 KB_end")
    a.stamp_init()
    a.kernargs()
    a("v_lshrrev_b32 v2, 6, v0\nv_and_b32 v1, 63, v0")
    a("v_readfirstlane_b32 s3, v2")
    a(f"v_mov_b32 v{VC}, {CNT}\nv_mov_b32 v{V1}, 1\nv_mov_b32 v4, 0\nv_mov_b32 v5, 0\nv_mov_b32 v6, 0\nv_mov_b32 v7, 0")
    a(f"ds_write_b128 v{VC}, v[4:7]\nds_write_b128 v{VC}, v[4:7] offset:16\nds_write_b128 v{VC}, v[4:7] offset:32")
    a("s_and_b32 s4, s2, 7\ns_lshr_b32 s5, s2, 3")
    a("s_and_b32 s60, s5, 7\ns_and_b32 s61, s5, 24\ns_add_u32 s61, s61, s4")
    a("s_mov_b32 s96, s4\ns_mov_b32 s97, s5")
    if "tok" in OPT: a("s_mov_b32 s4, s60\ns_mov_b32 s5, s61")
    if "nf2" in OPT:
        a("s_and_b32 s4, s96, 3\ns_lshl_b32 s4, s4, 1\ns_and_b32 s7, s97, 1\ns_add_u32 s4, s4, s7\ns_lshr_b32 s5, s96, 2\ns_lshl_b32 s5, s5, 4\ns_lshr_b32 s7, s97, 1\ns_add_u32 s5, s5, s7")
    if "nf4" in OPT:
        a("s_and_b32 s4, s96, 1\ns_lshl_b32 s4, s4, 2\ns_and_b32 s7, s97, 3\ns_add_u32 s4, s4, s7\ns_lshr_b32 s5, s96, 1\ns_lshl_b32 s5, s5, 3\ns_lshr_b32 s7, s97, 2\ns_add_u32 s5, s5, s7")
    a("s_lshr_b32 s62, s60, 2\ns_lshl_b32 s7, s60, 1\ns_add_u32 s62, s62, s7")
    a("s_and_b32 s7, s60, 3\ns_cmp_eq_u32 s7, 3\ns_cselect_b32 s63, 3, 2")
    a("v_lshlrev_b32 v2, 4, v1\nv_add_u32 v3, 4096, v2\nv_lshlrev_b32 v4, 2, v1")
    a(f"s_mul_i32 s8, s4, {WSLICE}")
    a("s_mul_i32 s71, s3, 3")
    a(f"s_lshl_b32 s64, s71, 10\ns_add_u32 s64, s64, s8\ns_add_u32 s64, s64, {W3T_OFF}")
    a("s_add_u32 s65, s64, 24576")
    a("s_and_b32 s9, s3, 3\ns_mul_i32 s9, s9, 9\ns_lshr_b32 s10, s3, 2\ns_lshl_b32 s10, s10, 1\ns_add_u32 s9, s9, s10")
    a(f"s_lshl_b32 s66, s9, 10\ns_add_u32 s66, s66, s8\ns_add_u32 s66, s66, {W4T_OFF}")
    a(f"s_lshl_b32 s10, s4, 5\ns_add_u32 s10, s10, s5\ns_mul_i32 s67, s10, 73728\ns_lshl_b32 s9, s9, 11\ns_add_u32 s67, s67, s9\ns_add_u32 s67, s67, {PART_OFF}")
    NSH = 32 if not ({"nf2", "nf4", "tok"} & set(OPT)) else (16 if "nf2" in OPT else 8)
    TL = 5184 // NSH
    a(f"s_and_b32 s9, s5, {NSH-1}\ns_mul_i32 s9, s9, {TL*128}\ns_add_u32 s70, s8, s9")
    a(f"s_and_b32 s69, s3, 3\ns_lshl_b32 s69, s69, 3\ns_add_u32 s69, s69, s4\ns_lshl_b32 s69, s69, 2\ns_mul_i32 s10, s5, {FB_STRIDE}\ns_add_u32 s69, s69, s10\ns_add_u32 s69, s69, {FP_OFF}")
    a("s_waitcnt lgkmcnt(0)")
    a.srd(56, P_WS, WS_BYTES)
    a("s_cmp_ge_u32 s3, 4\ns_cbranch_scc1 KB_q")
    PP, QP, PB = optval("PP", 1), optval("QP", 2), optval("PB", 0)
    A3 = [(2, 0), (2, 1024), (2, 2048)]
    stP = Stream(a, [(64, A3, ""), (65, A3, ""), (66, [(2, 0), (3, 3072)], " sc1"), (68, [(2, 0), (3, 3072)], " sc1")])
    stQ = Stream(a, [(64, A3, ""), (66, [(2, 0), (2, 1024), (2, 2048), (2, 3072), (3, 0)], " sc1")])
    def addrs():
        a(f"v_mov_b32 v6, v2\nv_add_u32 v7, 36864, v2\nv_add_u32 v8, {ML_H}, v2\nv_add_u32 v9, {ML_H+36864}, v2")
        h_addr(a, 71, 10, 12)
    def rk():
        a(f"v_and_b32 v5, 15, v1\nv_lshlrev_b32 v5, 4, v5\nv_add_u32 v5, {RM}, v5")
        for m in range(4): a(f"ds_read_b32 v{GT+m}, v5 offset:{256*m}")
        a("s_waitcnt lgkmcnt(0)")
        for m in range(4):
            r = GT + m
            a(f"v_mul_f32 v{KC+2*m}, {fh(GC0)}, v{r}\nv_mul_f32 v{r}, v{r}, v{r}\nv_mul_f32 v{r}, {fh(0.044715)}, v{r}\nv_mul_f32 v{KC+2*m+1}, v{r}, v{KC+2*m}")
    cG2, cX1, cX2, cFX, cSide, cH1, cA, cH2, cW4 = 0, 4, 8, 12, 16, 20, 24, 28, 32
    fine = "fine" in OPT
    gen_gemm2(a)
    a.stamp(3)
    a(f"s_mul_i32 s6, s61, {FB_STRIDE}\ns_lshl_b32 s7, s60, 2\ns_add_u32 s6, s6, s7\ns_add_u32 s6, s6, {FX_OFF}")
    a("s_add_u32 s68, s66, 1024")
    a("s_waitcnt vmcnt(0)")
    a(f"s_mov_b64 exec, 1\nds_add_rtn_u32 v5, v{VC}, v{V1}\ns_mov_b64 exec, -1")
    a("s_waitcnt lgkmcnt(0)")
    a("v_readfirstlane_b32 s7, v5")
    a("s_cmp_lg_u32 s7, 3\ns_cbranch_scc1 KB_nosig")
    a.setflag("s6", 14)
    a("KB_nosig:")
    a.stamp(4)
    a.ldswait(VC, 5, 7, 4, cG2)
    PRE = optval("PPRE", NS)
    paced(a, stP, PRE, optval("PPACE", 8))
    addrs()
    a(f"s_mul_i32 s6, s5, {FB_STRIDE}\ns_add_u32 s6, s6, {FX_OFF}")
    a(f"s_mul_i32 s9, s3, 18432\ns_mov_b32 m0, s9\ns_mul_i32 s7, s5, 73728\ns_add_u32 s7, s7, s9\ns_add_u32 s7, s7, {X1_OFF}")
    a("s_cmp_lg_u32 s3, 0\ns_cbranch_scc1 KB_xw")
    a.spoll(8, 6, 44, 13, 1)
    a.ldsadd(VC, V1, cFX)
    a("s_branch KB_xg")
    a("KB_xw:")
    a.ldswait(VC, 5, 8, 1, cFX)
    a("KB_xg:")
    a.stamp(5)
    def xdma(i):
        if i and i % 4 == 0: a("s_add_u32 m0, m0, 4096\ns_add_u32 s7, s7, 4096")
        a(f"buffer_load_dwordx4 v2, s[56:59], s7 offen offset:{(i%4)*1024} sc1 lds")
        stP.other(f"x{i}")
    XP = optval("XP", 6)
    for i in range(XP): xdma(i)
    for i in range(NS - PRE): stP.issue()
    a(f"s_lshl_b32 s6, s5, 11\ns_add_u32 s6, s6, {SS_OFF}\ns_lshl_b32 s8, s5, 8\ns_add_u32 s8, s8, {MEAN_OFF}\ns_lshl_b32 s9, s5, 9\ns_add_u32 s9, s9, {ST1_OFF}")
    a("v_lshlrev_b32 v18, 3, v1")
    late = [(lambda i=i: xdma(i)) for i in range(XP, 18)]
    def stat(ins, tag="x"):
        a(ins); stP.other(tag)
    late += [(lambda i=i: stat(f"buffer_load_dword v{GT+i}, v4, s[56:59], s6 offen offset:{256*i} sc1")) for i in range(8)]
    late += [lambda: stat(f"buffer_load_dword v{GT+9}, v4, s[56:59], s8 offen sc1")]
    late += [lambda: stat(f"buffer_load_dwordx2 {v(GT+10,2)}, v18, s[56:59], s9 offen", "st")]
    XE = optval("XE", 4)
    for i in range(XE): late.pop(0)()
    a(f"s_waitcnt vmcnt({stP.younger(f'x{XP-1}')})")
    a.subbar(VC, 5, 10, 4, off=cX1)
    a.stamp(6)
    def xhook(ks, i):
        if i in (0, 4, 8, 10, 11, 3) and late: late.pop(0)()
    mphase(a, stP, 0, 6, 0, XP, prio=2, hook=xhook)
    assert not late
    a(f"s_waitcnt vmcnt({stP.younger('st')})")
    for i in range(1, 8): a(f"v_add_f32 v{GT}, v{GT}, v{GT+i}")
    a(f"v_mov_b32 v{GT+1}, {fh(1.0/D)}\nv_fmaak_f32 v{GT}, v{GT+1}, v{GT}, {fh(EPS)}")
    a(f"v_rsq_f32 v{GT+8}, v{GT}")
    a(f"v_add_u32 v5, {RM}, v2\ns_nop 0")
    a(f"ds_write_b128 v5, {v(GT+8,4)}")
    a.subbar(VC, 5, 7, 4, off=cX2)
    mphase(a, stP, 0, 6, XP, 18, first=False, prio=2)
    a.stamp(7)
    rk()
    a.ldswait(VC, 5, 7, 4, cSide, sleep=1)
    gphase(a, 10, 12)
    a.ldsadd(VC, V1, cH1)
    if fine: a.stamp(1)
    a("s_add_u32 s71, s71, 24")
    h_addr(a, 71, 10, 12)
    a.ldswait(VC, 5, 7, 1, cW4, sleep=1)
    mphase(a, stP, 1, 6, prio=1)
    a.ldsadd(VC, V1, cA)
    a.stamp(8)
    def sthook(i):
        if i == 1:
            a.ldswait(VC, 5, 7, 4, cA, sleep=1)
            a.ldswait(VC, 5, 7, 8, cH1, sleep=1)
            stage_x(a)
            stage_y(a)
    gphase(a, 10, 12, sthook)
    if fine: a.stamp(3)
    a("s_waitcnt vmcnt(0)")
    a.subbar(VC, 5, 7, 4, off=cH2)
    a.stamp(9)
    mphase(a, stP, 2, 8)
    if fine: a.stamp(4)
    a("s_add_u32 s6, s67, 14336\ns_add_u32 s7, s69, 128")
    pend = []
    for k, (t, mp) in enumerate([(0, 0), (0, 1), (1, 0), (1, 1)]):
        pend += pstore(a, MACC, t, mp, 67 if t == 0 else 6, mp * 1024, k)
    state = {"flag": False}
    def hook(ks, i):
        if (ks >= 1 or i >= 3) and i not in (1, 5) and pend:
            ins = pend.pop(0); a(ins)
            if ins.startswith("buffer"): stP.other("e" if not pend else "x")
        if not pend and not state["flag"] and ks == optval("EFLAG", 16) and i == 0:
            a(f"s_waitcnt vmcnt({stP.younger('e')})")
            a.setflag("s7", 14); stP.other()
            state["flag"] = True
    mphase(a, stP, 3, 8, acc=MACC + 32, hook=hook)
    assert state["flag"]
    a.stamp(10)
    a("s_setprio 3")
    a.nop(8)
    for k, (t, mp) in enumerate([(0, 0), (0, 1), (1, 0), (1, 1)]):
        for ins in pstore(a, MACC + 32, t, mp, 67 if t == 0 else 6, 2048 + mp * 1024, k): a(ins)
    a("s_add_u32 s7, s69, 256")
    a("s_waitcnt vmcnt(0)")
    a.setflag("s7", 14)
    a.end()
    a("KB_q:")
    a("s_lshr_b32 s6, s60, 2\ns_sub_u32 s6, s60, s6\ns_mul_i32 s7, s61, 6\ns_add_u32 s6, s6, s7\ns_mul_i32 s6, s6, 3")
    a("s_sub_u32 s7, s3, 4\ns_add_u32 s52, s6, s7")
    a(f"s_mul_i32 s7, s7, {CV_SZ}\ns_add_u32 s53, s7, {CV}")
    a("s_cmp_eq_u32 s3, 7\ns_cselect_b32 s55, 0, 1\ns_cmp_eq_u32 s63, 3\ns_cselect_b32 s55, 0, s55")
    gen_w2load(a)
    a("s_cmp_eq_u32 s3, 7\ns_cbranch_scc1 KB_w7")
    a("s_branch KB_nc")
    a("KB_conv:")
    gen_conv(a, stQ.issue)
    assert stQ.issued == 16
    a(f"s_lshr_b32 s6, s6, 4\ns_mul_i32 s6, s6, 57\ns_lshr_b32 s6, s6, 9\ns_mul_i32 s6, s6, {FB_STRIDE}\ns_add_u32 s6, s6, {FY_OFF}")
    a.ldsadd(VC, V1, cSide)
    a("s_waitcnt vmcnt(0)")
    a.addflag("s6", 14)
    a("s_setprio 0")
    a.stamp(5)
    a("s_branch KB_q3")
    a("KB_w7:")
    a(f"s_mov_b32 s12, s97\ns_mov_b32 s9, {PT7}")
    a("s_branch KB_q2")
    a("KB_nc:")
    a("s_lshr_b32 s12, s97, 2\ns_mul_i32 s12, s12, 3\ns_add_u32 s12, s12, s3\ns_add_u32 s12, s12, 28")
    a(f"s_lshl_b32 s9, s3, 12\ns_add_u32 s9, s9, {CV+36864-4*4096}")
    a("KB_q2:")
    a("s_cmp_ge_u32 s12, 54\ns_cbranch_scc1 KB_q2b")
    W4W = optval("W4W", cG2)
    if W4W >= 0: a.ldswait(VC, 5, 7, 4, W4W, sleep=2)
    a.stamp(2)
    a("s_setprio 3")
    a.srd(44, P_W4, D * F * 2)
    a(f"s_mul_i32 s15, s96, {WSLICE}\ns_add_u32 s8, s15, {W4T_OFF}")
    a("s_mul_i32 s13, s12, 86\ns_lshr_b32 s13, s13, 8\ns_mul_i32 s14, s13, 3\ns_sub_u32 s14, s12, s14")
    a("s_mul_i32 s6, s13, 36864\ns_mul_i32 s14, s14, 384\ns_add_u32 s6, s6, s14\ns_add_u32 s6, s6, s15")
    a("s_movk_i32 s7, 1152\ns_mul_i32 s13, s12, 12288\ns_add_u32 s8, s8, s13")
    gen_pretile(a, 128)
    a(f"s_mul_i32 s6, s96, {FB_STRIDE}\ns_add_u32 s6, s6, {FW4_OFF}")
    a("s_waitcnt vmcnt(0)")
    a.addflag("s6", 14)
    a("s_setprio 0")
    a("KB_q2b:")
    a.stamp(5)
    stQ2 = Stream(a, stQ.segs)
    paced(a, stQ2, 16, 4)
    a("s_waitcnt vmcnt(0)")
    a.ldsadd(VC, V1, cSide)
    a("KB_q3:")
    stQ.other()
    for i in range(NS - 16): stQ.issue()
    addrs()
    a.ldswait(VC, 5, 7, 4, cX2, sleep=1)
    rk()
    a.stamp(7)
    kw = 18 - (NS + 2) // 3
    mphase(a, stQ, 0, 6, 0, kw, prio=2)
    a("s_cmp_lg_u32 s3, 7\ns_cbranch_scc1 KB_q2c")
    a(f"s_mul_i32 s6, s4, {FB_STRIDE}\ns_add_u32 s6, s6, {FW4_OFF}")
    a.cpoll(6, 54, 44, 13, 4)
    a.ldsadd(VC, V1, cW4)
    a("KB_q2c:")
    a.ldswait(VC, 5, 7, 1, cW4)
    mphase(a, stQ, 0, 6, kw, 18, first=False, prio=2)
    a.ldswait(VC, 5, 7, 4, cSide)
    if fine: a.stamp(2)
    a(f"s_lshr_b32 s8, s4, 1\ns_mul_i32 s8, s8, {FB_STRIDE}\ns_add_u32 s8, s8, {FY_OFF}")
    def yhook(i):
        if i == 3:
            a("s_cmp_lg_u32 s3, 7\ns_cbranch_scc1 KB_ys")
            a.vpoll(8, 144, 14, 13)
            a("KB_ys:")
    gphase(a, 10, 12, yhook)
    if fine: a.stamp(3)
    a.subbar(VC, 5, 7, 8, off=cH1)
    a.stamp(8)
    mphase(a, stQ, 1, 8, 0, 12, prio=1)
    if fine: a.stamp(4)
    a.ldswait(VC, 5, 7, 4, cH2, sleep=1)
    a.stamp(9)
    mphase(a, stQ, 1, 8, 12, 18, first=False, prio=1)
    a(f"s_setprio {optval('QT', 1)}")
    a.stamp(10)
    a.nop(8)
    QS = optval("QS", 10)
    for k in range(10):
        if k and k % 4 == 0: a("s_add_u32 s67, s67, 4096")
        ins = pstore(a, MACC, k >> 1, k & 1, 67, (k % 4) * 1024, k)
        for x in ins[:4]: a(x)
        if k >= QS: a(f"s_waitcnt vmcnt({QS-1})")
        a(ins[4])
    a("s_waitcnt vmcnt(0)")
    a.setflag("s69", 14)
    a(f"s_setprio {optval('QF', 0)}")
    gen_final(a)
    a.end()
    a("KB_end:")
    a("s_endpgm")
```

```python
from common import *
import g1b as g1
import kb4
from kb4 import Stream, mphase, gphase, h_addr, pstore, stage_x, stage_y, gen_final, gen_conv_load, paced, NS, RING, BF, MACC, KC, GT, ML_H, VC, V1

G2_WM, G2_XT, G2_W = 0, 2560, 14848
SCR = G2_W + 110592
CV, CV_SZ = 92160, 21248
CNT = 158656 - 64
RM = CNT + 128
PT7 = RM + 1024
KM_LDS = PT7 + 4096
kb4.RM = RM
cG2, cX1, cX2, cFX, cSide, cH1, cA, cH2, cW4, cG1, cP1, cFH, cU, cW2, cW3, cHs = [4 * i for i in range(16)]
cW3a = cHs + 4
cKV = cHs + 8
cHl = cHs + 12

def gen_kv(a):
    KR, VR, SH, SP, KU, RES, PK, OUT = 32, 76, 108, 124, 132, 156, 172, 188
    a("s_mul_i32 s7, s6, 7282\ns_lshr_b32 s7, s7, 16")
    a("s_mul_i32 s8, s7, 9\ns_sub_u32 s8, s6, s8")
    a("v_and_b32 v2, 7, v1\nv_lshrrev_b32 v3, 3, v1")
    a("s_lshl_b32 s9, s7, 6")
    a("v_lshl_add_u32 v4, v3, 3, s9")
    a("v_mul_u32_u24 v5, 1152, v4")
    a("s_lshl_b32 s10, s8, 7")
    a("v_lshl_add_u32 v5, v2, 4, v5\nv_add_u32 v5, s10, v5")
    a("v_subrev_u32 v6, 3456, v5")
    a("v_cmp_eq_u32 vcc, 0, v4")
    a("v_mov_b32 v7, 0x80000000\ns_lshl_b32 s11, s8, 9")
    a("v_cndmask_b32 v6, v6, v7, vcc")
    a("v_lshlrev_b32 v7, 6, v2")
    a("s_movk_i32 s12, 4608")
    a.srd(44, P_K, ACT)
    a.srd(48, P_V, ACT)
    a.srd(52, P_SHK, D * 8)
    for i in range(4):
        a(f"buffer_load_dwordx4 {v(SH+4*i,4)}, v7, s[52:55], s11 offen offset:{16*i}")
    for j in range(8):
        so = "0" if j < 4 else "s12"
        a(f"buffer_load_dwordx4 {v(KR+12+4*j,4)}, v5, s[44:47], {so} offen offset:{1152*(j&3)} nt")
    for j in range(3):
        a(f"buffer_load_dwordx4 {v(KR+4*j,4)}, v6, s[44:47], 0 offen offset:{1152*j} nt")
    if optval("KVP", 0): a(f"s_waitcnt vmcnt({optval('KVP', 0)})")
    for j in range(8):
        so = "0" if j < 4 else "s12"
        a(f"buffer_load_dwordx4 {v(VR+4*j,4)}, v5, s[48:51], {so} offen offset:{1152*(j&3)} nt")
    a("v_sub_u32 v8, 7, v3\nv_xor_b32 v8, v8, v2\nv_lshlrev_b32 v8, 4, v8\nv_lshl_add_u32 v8, v2, 9, v8\nv_add_u32 v8, s13, v8")
    a("v_lshrrev_b32 v11, 5, v1\nv_xor_b32 v9, v11, v1\nv_lshlrev_b32 v9, 4, v9")
    a(f"v_and_b32 v10, 3, v3\nv_lshl_add_u32 v10, v11, 3, v10\nv_mul_u32_u24 v10, {KV_PITCH}, v10\nv_lshl_add_u32 v10, v2, 4, v10")
    a(f"s_mul_i32 s14, s8, {64*KV_PITCH}\ns_lshl_b32 s15, s7, 7\ns_sub_u32 s14, s14, s15\ns_add_u32 s14, s14, {KV_OFF+3968}")
    for i in range(4): a(f"v_xor_b32 v{12+i}, {32*i}, v9\nv_add_u32 v{12+i}, s13, v{12+i}")
    a.stamp(2)
    for q in range(4):
        if q == 0: a("s_waitcnt vmcnt(8)")
        for d in range(4):
            for h in range(2):
                src = SH + 4 * q + 2 * h + (d >> 1)
                if d & 1: a(f"v_and_b32 v{SP+2*d+h}, 0xffff0000, v{src}")
                else: a(f"v_lshlrev_b32 v{SP+2*d+h}, 16, v{src}")
        for j in range(11):
            a(f"v_lshlrev_b32 v{KU+2*j}, 16, v{KR+4*j+q}")
            a(f"v_and_b32 v{KU+2*j+1}, 0xffff0000, v{KR+4*j+q}")
        for j in range(8):
            a(f"v_pk_mul_f32 {v(RES+2*j,2)}, {v(KU+2*(j+3),2)}, {v(SP,2)}")
        for d in range(1, 4):
            for j in range(8):
                a(f"v_pk_fma_f32 {v(RES+2*j,2)}, {v(KU+2*(j+3-d),2)}, {v(SP+2*d,2)}, {v(RES+2*j,2)}")
        if q == 0:
            a("s_waitcnt vmcnt(0)")
            a.ldsadd(VC, V1, cG1)
        for j in range(8):
            a(f"v_lshlrev_b32 v{KU+2*j}, 16, v{VR+4*j+q}")
            a(f"v_and_b32 v{KU+2*j+1}, 0xffff0000, v{VR+4*j+q}")
        for j in range(8):
            a(f"v_pk_mul_f32 {v(RES+2*j,2)}, {v(RES+2*j,2)}, {v(KU+2*j,2)}")
        p = PK + 8 * (q & 1)
        for h in range(2):
            for e in range(4):
                a(f"v_cvt_pk_bf16_f32 v{p+4*h+e}, v{RES+2*(7-2*e)+h}, v{RES+2*(6-2*e)+h}")
            a(f"ds_write_b128 v8, {v(p+4*h,4)} offset:{(2*(q&1)+h)*128}")
        if q & 1:
            o = OUT + 16 * (q >> 1)
            for i in range(4): a(f"ds_read_b128 {v(o+4*i,4)}, v{12+i} offset:{1024*i}")
            a(f"s_add_u32 s15, s14, {4*(q>>1)*KV_PITCH}")
            for i in range(4):
                a(f"s_waitcnt lgkmcnt({3-i})")
                a(f"buffer_store_dwordx4 {v(o+4*i,4)}, v10, s[56:59], s15 offen sc1")
                a(f"s_add_u32 s15, s15, {16*KV_PITCH}")
    a("s_cmp_lg_u32 s7, 0\ns_cbranch_scc1 KV_z")
    for r in range(4): a(f"v_mov_b32 v{KU+r}, 0")
    for i in range(8):
        a(f"buffer_store_dwordx4 {v(KU,4)}, v10, s[56:59], s14 offen offset:128 sc1")
        a(f"s_add_u32 s14, s14, {(4 if i % 2 == 0 else 12)*KV_PITCH}")
    a("KV_z:")
    a(f"s_mul_i32 s9, s8, 86\ns_lshr_b32 s9, s9, 8\ns_mul_i32 s10, s9, {FB_STRIDE-384}\ns_lshl_b32 s6, s8, 7\ns_add_u32 s6, s6, s10\ns_add_u32 s6, s6, {FKV_OFF}\ns_mov_b32 s100, 32")

def gen_meantile(a):
    R = 32
    a("v_lshrrev_b32 v2, 2, v1\nv_and_b32 v3, 3, v1")
    a("v_mul_u32_u24 v4, 1152, v2\nv_lshl_add_u32 v4, v3, 4, v4")
    a("s_mul_i32 s7, s6, 36864\ns_add_u32 s8, s7, 18432")
    a.srd(44, P_W2, D * D * 2)
    for jh in range(2):
        for i in range(18):
            a(f"buffer_load_dwordx4 {v(R+72*jh+4*i,4)}, v4, s[44:47], s{7+jh} offen offset:{64*i}")
    a("v_mov_b32 v8, 0x3f803f80")
    for r in range(4): a(f"v_mov_b32 v{20+r}, 0")
    a("v_lshrrev_b32 v5, 2, v2\nv_and_b32 v6, 3, v2\nv_lshlrev_b32 v5, 4, v5\nv_lshl_add_u32 v5, v6, 1, v5\nv_add_u32 v5, s13, v5")
    a("v_lshlrev_b32 v6, 4, v1\nv_add_u32 v7, s13, v6")
    for jh in range(2):
        if jh == 0: a("s_waitcnt vmcnt(18)")
        else: a.zcheck(14, 9, True)
        for r in range(72): a(f"v_dot2c_f32_bf16 v{20+2*jh+(r&1)}, v{R+72*jh+r}, v8")
    a("s_nop 2\nv_add_f32 v20, v20, v21\nv_add_f32 v22, v22, v23\ns_nop 1")
    for qp in ("[1,0,3,2]", "[2,3,0,1]"):
        a(f"v_add_f32_dpp v20, v20, v20 quad_perm:{qp} row_mask:0xf bank_mask:0xf")
        a(f"v_add_f32_dpp v22, v22, v22 quad_perm:{qp} row_mask:0xf bank_mask:0xf")
        a("s_nop 1")
    a(f"v_mul_f32 v20, {fh(1.0/D)}, v20\nv_mul_f32 v22, {fh(1.0/D)}, v22")
    a("v_cvt_pk_bf16_f32 v24, v20, v22\nv_or_b32 v24, 0x10001, v24")
    a("v_lshlrev_b32 v21, 16, v24\nv_and_b32 v23, 0xffff0000, v24\nv_sub_f32 v20, v20, v21\nv_sub_f32 v22, v22, v23")
    a("v_cvt_pk_bf16_f32 v25, v20, v22\nv_or_b32 v25, 0x10001, v25")
    a("ds_write_b16 v5, v24\nds_write_b16_d16_hi v5, v24 offset:8\nds_write_b16 v5, v25 offset:64\nds_write_b16_d16_hi v5, v25 offset:72")
    a("ds_read_b128 v[20:23], v7")
    a(f"s_lshl_b32 s7, s6, 7\ns_add_u32 s7, s7, {W2M_OFF}")
    a("s_waitcnt lgkmcnt(0)\ns_mov_b64 exec, 0xff")
    a("buffer_store_dwordx4 v[20:23], v6, s[56:59], s7 offen sc1")
    a("s_mov_b64 exec, -1")

def job_setup(a, lab):
    a(f"s_mul_i32 s15, s96, {WSLICE}\ns_mul_i32 s98, s96, {FB_STRIDE}")
    a(f"s_cmp_ge_u32 s12, 54\ns_cbranch_scc1 {lab}_4")
    a.srd(44, P_W3, D * F * 2)
    a("s_mul_i32 s14, s12, 57\ns_lshr_b32 s14, s14, 10\ns_mul_i32 s13, s14, 18\ns_sub_u32 s13, s12, s13")
    a("s_mul_i32 s6, s13, 294912\ns_mul_i32 s7, s96, 1152\ns_add_u32 s6, s6, s7\ns_movk_i32 s7, 9216")
    a(f"s_add_u32 s8, s15, {W3T_OFF}\ns_min_u32 s15, s14, 1\ns_add_u32 s15, s15, 1\ns_mul_i32 s100, s15, 18\ns_lshl_b32 s15, s15, 7\ns_add_u32 s98, s98, s15")
    a(f"s_branch {lab}_j")
    a(f"{lab}_4:")
    a.srd(44, P_W4, D * F * 2)
    a("s_sub_u32 s6, s12, 54\ns_mul_i32 s13, s6, 86\ns_lshr_b32 s13, s13, 8\ns_mul_i32 s14, s13, 3\ns_sub_u32 s14, s6, s14")
    a(f"s_mul_i32 s6, s13, 36864\ns_add_u32 s6, s6, s15\ns_movk_i32 s7, 1152\ns_mov_b32 s100, 54\ns_add_u32 s8, s15, {W4T_OFF}")
    a(f"{lab}_j:")
    a(f"s_mul_i32 s15, s14, 384\ns_add_u32 s6, s6, s15\ns_mul_i32 s15, s13, 36864\ns_add_u32 s8, s8, s15\ns_mul_i32 s15, s14, 12288\ns_add_u32 s8, s8, s15\ns_add_u32 s98, s98, {FW4_OFF}")

def consts(a):
    a("s_and_b32 s60, s97, 7\ns_and_b32 s61, s97, 24\ns_add_u32 s61, s61, s96")
    if "nf1" in OPT: a("s_mov_b32 s4, s96\ns_mov_b32 s5, s97")
    elif "tok" in OPT: a("s_mov_b32 s4, s60\ns_mov_b32 s5, s61")
    elif "nf2" in OPT:
        a("s_and_b32 s4, s96, 3\ns_lshl_b32 s4, s4, 1\ns_and_b32 s7, s97, 1\ns_add_u32 s4, s4, s7\ns_lshr_b32 s5, s96, 2\ns_lshl_b32 s5, s5, 4\ns_lshr_b32 s7, s97, 1\ns_add_u32 s5, s5, s7")
    else:
        a("s_and_b32 s4, s96, 1\ns_lshl_b32 s4, s4, 2\ns_and_b32 s7, s97, 3\ns_add_u32 s4, s4, s7\ns_lshr_b32 s5, s96, 1\ns_lshl_b32 s5, s5, 3\ns_lshr_b32 s7, s97, 2\ns_add_u32 s5, s5, s7")
    a("s_lshr_b32 s62, s60, 2\ns_lshl_b32 s7, s60, 1\ns_add_u32 s62, s62, s7")
    a("s_and_b32 s7, s60, 3\ns_cmp_eq_u32 s7, 3\ns_cselect_b32 s63, 3, 2")
    a("v_lshlrev_b32 v2, 4, v1\nv_add_u32 v3, 4096, v2\nv_lshlrev_b32 v4, 2, v1")

def consts2(a):
    a(f"s_mul_i32 s8, s4, {WSLICE}")
    a("s_mul_i32 s71, s3, 3")
    a(f"s_lshl_b32 s64, s71, 10\ns_add_u32 s64, s64, s8\ns_add_u32 s64, s64, {W3T_OFF}")
    a("s_add_u32 s65, s64, 24576")
    a("s_and_b32 s9, s3, 3\ns_mul_i32 s9, s9, 9\ns_lshr_b32 s10, s3, 2\ns_lshl_b32 s10, s10, 1\ns_add_u32 s9, s9, s10")
    a(f"s_lshl_b32 s66, s9, 10\ns_add_u32 s66, s66, s8\ns_add_u32 s66, s66, {W4T_OFF}\ns_add_u32 s68, s66, 1024")
    a(f"s_lshl_b32 s10, s4, 5\ns_add_u32 s10, s10, s5\ns_mul_i32 s67, s10, 73728\ns_lshl_b32 s9, s9, 11\ns_add_u32 s67, s67, s9\ns_add_u32 s67, s67, {PART_OFF}")
    a(f"s_and_b32 s69, s3, 3\ns_lshl_b32 s69, s69, 3\ns_add_u32 s69, s69, s4\ns_lshl_b32 s69, s69, 2\ns_mul_i32 s10, s5, {FB_STRIDE}\ns_add_u32 s69, s69, s10\ns_add_u32 s69, s69, {FP_OFF}")
    a(f"s_mul_i32 s70, s4, {FB_STRIDE}\ns_add_u32 s70, s70, {FW4_OFF}")

def gen_gemm2(a):
    HB, BUF, ACC = 32, 104, 216
    a("s_lshl_b32 s8, s61, 2\ns_add_u32 s8, s8, s3")
    a("s_mul_i32 s9, s8, 18432")
    a.srd(44, P_Q, ACT)
    a("v_lshrrev_b32 v5, 2, v1\nv_and_b32 v6, 3, v1\nv_mul_u32_u24 v7, 1152, v5\nv_lshl_add_u32 v7, v6, 4, v7")
    a(f"s_mul_i32 s12, s3, 3072\ns_add_u32 s12, s12, {G2_XT}\ns_mov_b32 m0, s12\ns_lshl_b32 s10, s62, 6\ns_add_u32 s10, s10, s9")
    for p in range(3):
        if p: a("s_add_u32 m0, m0, 960\ns_nop 0")
        a(f"buffer_load_dwordx4 v7, s[44:47], s10 offen offset:{64*p} lds")
    a(f"v_lshrrev_b32 v9, 4, v1\nv_lshlrev_b32 v12, 6, v5\nv_and_b32 v13, 1, v9\nv_lshl_add_u32 v12, v13, 5, v12\nv_lshl_add_u32 v12, v6, 3, v12\nv_add_u32 v12, {G2_W}, v12")
    a("v_xor_b32 v13, 32, v12\nv_add_u32 v22, 49152, v12\nv_add_u32 v23, 49152, v13")
    a("v_and_b32 v11, 1, v1\nv_lshlrev_b32 v11, 6, v11\nv_lshl_add_u32 v11, v9, 4, v11")
    a("v_and_b32 v8, 15, v1\nv_lshlrev_b32 v21, 3, v8\nv_lshlrev_b32 v20, 6, v8\nv_lshl_add_u32 v20, v9, 3, v20\nv_add_u32 v20, s12, v20")
    a("s_lshl_b32 s10, s8, 4\nv_add_u32 v8, s10, v8\nv_lshlrev_b32 v9, 8, v9\ns_movk_i32 s13, 18432\nv_mov_b32 v10, 0x80000000")
    for gam, sh in enumerate((-1, 1, -2, 2)):
        a(f"v_add_u32 v5, {sh}, v8\nv_cmp_gt_u32 vcc, {S}, v5\nv_lshrrev_b32 v6, 4, v5\nv_mad_u32_u24 v6, v6, s13, v9\nv_and_b32 v5, 15, v5\nv_lshl_add_u32 v6, v5, 4, v6")
        a(f"v_cndmask_b32 v{24+gam}, v10, v6, vcc")
    a(f"s_lshl_b32 s11, s62, 10\ns_add_u32 s11, s11, s9\ns_add_u32 s11, s11, {X1_OFF}")
    a(f"s_lshl_b32 s10, s8, 7\ns_add_u32 s10, s10, {ST1_OFF}\ns_mov_b32 s14, {H_OFF}\nv_mov_b32 v10, 0")
    a("s_cmp_lg_u32 s3, 0\ns_cbranch_scc1 G2_hw")
    a(f"s_mul_i32 s6, s61, {FB_STRIDE}\ns_add_u32 s6, s6, {FH_OFF}\ns_sub_u32 s7, s6, {FB_STRIDE}\ns_cmp_eq_u32 s61, 0\ns_cselect_b32 s7, s6, s7\ns_add_u32 s12, s6, {FB_STRIDE}\ns_cmp_eq_u32 s61, 31\ns_cselect_b32 s12, s6, s12")
    a("s_mov_b32 s13, 0x40000")
    a("G2_hp:")
    for r, o in ((48, 6), (49, 7), (50, 12)): a(f"s_load_dword s{r}, {s(P_WS,2)}, s{o} glc")
    a("s_waitcnt lgkmcnt(0)")
    a("s_min_u32 s48, s48, s49\ns_min_u32 s48, s48, s50\ns_cmp_ge_u32 s48, 6\ns_cbranch_scc1 G2_hd")
    a("s_sleep 1\ns_sub_u32 s13, s13, 1\ns_cbranch_scc0 G2_hp")
    a("G2_hd:")
    a.ldsadd(VC, V1, cFH)
    a("s_branch G2_hg")
    a("G2_hw:")
    a.ldswait(VC, 5, 7, 1, cFH)
    a(f"s_cmp_lg_u32 s3, 1\ns_cbranch_scc1 G2_hg\ns_add_u32 s6, s70, 128\ns_load_dword s48, {s(P_WS,2)}, s6 glc")
    a("G2_hg:")
    a.stamp(6)
    for ks in range(18):
        if ks and ks % 4 == 0: a("s_add_u32 s14, s14, 4096")
        g0, g1_ = (2 * ks) // 9, (2 * ks + 1) // 9
        if g0 == g1_: a(f"buffer_load_dwordx4 {v(HB+4*ks,4)}, v{24+g0}, s[56:59], s14 offen offset:{(ks%4)*1024} sc1")
        else:
            a(f"buffer_load_dwordx2 {v(HB+4*ks,2)}, v{24+g0}, s[56:59], s14 offen offset:{(ks%4)*1024} sc1")
            a(f"buffer_load_dwordx2 {v(HB+4*ks+2,2)}, v{24+g1_}, s[56:59], s14 offen offset:{(ks%4)*1024+8} sc1")
    a("buffer_load_dwordx2 v[18:19], v21, s[56:59], s10 offen sc1")
    a.ldswait(VC, 5, 7, 13, cW2)
    a.stamp(7)
    a("s_cmp_eq_u32 s63, 3\ns_cbranch_scc1 G2_n3")
    for npair in (2, 3):
        nt = 1 + 2 * npair
        if npair == 3: a("G2_n3:")
        def reads(gi):
            b = BUF + 56 * (gi & 1)
            o = []
            for k2 in range(2):
                ks = 2 * gi + k2
                o.append(f"ds_read_b128 {v(b+28*k2,4)}, v11 offset:{G2_WM+128*ks}")
                for t in range(2 * npair):
                    for jh in range(2):
                        off = ((ks * 2 + jh) * npair + (t >> 1)) * 1024
                        ad = 12 + (t & 1)
                        if off >= 49152: off -= 49152; ad += 10
                        o.append(f"ds_read_b64_tr_b16 {v(b+28*k2+4+4*t+2*jh,2)}, v{ad} offset:{off}")
            return o
        for gi in range(10):
            rd = reads(gi) if gi < 9 else [f"ds_read_b64 {v(BUF+56+2*t,2)}, v20 offset:{(t>>1)*1024+(t&1)*32}" for t in range(2 * npair)]
            if gi > 0:
                g = gi - 1
                a(f"s_waitcnt vmcnt({19-2*gi+(2*gi <= 4)+(2*gi <= 13)})" if gi < 9 else "s_waitcnt vmcnt(0)")
                if gi == optval("HLAT", 6): a.ldsadd(VC, V1, cHl)
                b = BUF + 56 * (g & 1)
                for k2 in range(2):
                    for t in range(nt):
                        for _ in range(2):
                            if rd: a(rd.pop(0))
                        a.mfma(ACC + 4 * t, b + 28 * k2 + 4 * t, HB + 4 * (2 * g + k2), "0" if (g == 0 and k2 == 0) else None)
            for r in rd: a(r)
            a("s_waitcnt lgkmcnt(0)")
        XS = BUF + 56
        for e in range(4 * npair):
            a(f"v_lshlrev_b32 v{HB+2*e}, 16, v{XS+e}\nv_and_b32 v{HB+2*e+1}, 0xffff0000, v{XS+e}")
        a(f"v_add_f32 v9, v{ACC}, v{ACC+1}")
        a("v_sub_f32 v28, v19, v9\nv_sub_f32 v29, v19, v9\nv_mov_b32 v19, v18")
        for p in range(npair):
            for e in range(0, 8, 2): a(f"v_pk_fma_f32 {v(HB+8*p+e,2)}, {v(HB+8*p+e,2)}, v[18:19], v[28:29]")
            for e in range(0, 8, 2): a(f"v_pk_add_f32 {v(HB+8*p+e,2)}, {v(HB+8*p+e,2)}, {v(ACC+4+8*p+e,2)}")
            for e in range(4): a(f"v_cvt_pk_bf16_f32 v{BUF+4*p+e}, v{HB+8*p+2*e}, v{HB+8*p+2*e+1}")
            a(f"buffer_store_dwordx4 {v(BUF+4*p,4)}, v2, s[56:59], s11 offen offset:{p*1024} sc1")
        a("v_mov_b32 v11, 0")
        for e in range(0, 8 * npair, 2): a(f"v_pk_fma_f32 v[10:11], {v(HB+e,2)}, {v(HB+e,2)}, v[10:11]")
        if npair == 2: a("s_branch G2_j")
    a("G2_j:")
    a("v_add_f32 v10, v10, v11")
    gsum(a, 10, 11)
    a(f"s_lshl_b32 s10, s61, 3\ns_add_u32 s10, s10, s60\ns_lshl_b32 s10, s10, 8\ns_lshl_b32 s12, s3, 6\ns_add_u32 s10, s10, s12\ns_add_u32 s10, s10, {SS_OFF}")
    a(f"s_lshl_b32 s12, s8, 6\ns_add_u32 s12, s12, {MEAN_OFF}")
    a("s_mov_b64 exec, 0xffff")
    a("buffer_store_dword v10, v4, s[56:59], s10 offen sc1")
    a(f"s_cmp_lg_u32 s60, 0\ns_cbranch_scc1 G2_m")
    a("buffer_store_dword v9, v4, s[56:59], s12 offen sc1")
    a("G2_m:")
    a("s_mov_b64 exec, -1")

def w2_pre(a):
    a.srd(52, P_W2, D * D * 2)
    a("v_lshrrev_b32 v5, 2, v1\nv_and_b32 v8, 3, v1\nv_mul_u32_u24 v7, 1152, v5")
    a("v_bfe_u32 v5, v1, 4, 1\nv_lshlrev_b32 v5, 1, v5\nv_xor_b32 v5, v5, v8\nv_lshl_add_u32 v7, v5, 4, v7")
    a("s_lshl_b32 s64, s63, 10\ns_lshl_b32 s65, s62, 6\nv_mov_b32 v9, 0")

def w2_rg(a):
    l = a.lab("W2A")
    a("s_mov_b32 m0, s66\ns_nop 0")
    a("buffer_load_dwordx4 v7, s[52:55], s67 offen lds")
    a("s_add_u32 m0, m0, 960\ns_cmp_eq_u32 s63, 2")
    a("buffer_load_dwordx4 v7, s[52:55], s67 offen offset:64 lds")
    a(f"s_cbranch_scc1 {l}")
    a("s_add_u32 m0, m0, 960\ns_nop 0")
    a("buffer_load_dwordx4 v7, s[52:55], s67 offen offset:128 lds")
    a(f"{l}:")

def gen_w2load(a):
    if "w7skip" in OPT: a("s_mov_b32 s12, 13\ns_cmp_eq_u32 s68, 4\ns_cselect_b32 s13, s3, 0\ns_cmp_eq_u32 s13, 7\ns_cbranch_scc1 W2_e")
    a("W2_l:")
    a(f"s_mov_b64 exec, 1\nds_add_rtn_u32 v5, v{VC}, v{V1} offset:{cU}\ns_mov_b64 exec, -1")
    a(f"s_waitcnt vmcnt({optval('W2PACE', 6)}) lgkmcnt(0)")
    a("v_readfirstlane_b32 s12, v5")
    a("s_add_u32 s12, s12, s68\ns_cmp_ge_u32 s12, 12\ns_cbranch_scc1 W2_e")
    a(f"s_mul_i32 s67, s12, 55296\ns_add_u32 s67, s67, s65\ns_mul_i32 s66, s12, s64\ns_mul_i32 s66, s66, 3\ns_add_u32 s66, s66, {G2_W}")
    a("v_add_u32 v9, 1, v9")
    for r in range(3):
        w2_rg(a)
        a("s_add_u32 s67, s67, 18432\ns_add_u32 s66, s66, s64")
    a("s_branch W2_l")
    a("W2_e:")
    a.zcheck(14, 13)
    a("s_cmp_lg_u32 s12, 12\ns_cbranch_scc1 W2_f")
    a(f"s_mov_b32 s8, {W2M_OFF}\nv_add_u32 v9, 1, v9\nv_min_u32 v5, 240, v2\ns_mov_b32 s13, 0x20000")
    a("W2_m:")
    a("buffer_load_dwordx4 v[32:35], v2, s[56:59], s8 offen sc1\nbuffer_load_dwordx4 v[36:39], v2, s[56:59], s8 offen offset:1024 sc1\nbuffer_load_dwordx4 v[40:43], v5, s[56:59], s8 offen offset:2048 sc1")
    a("s_waitcnt vmcnt(0)")
    a("v_min_u32 v6, v32, v36\nv_min_u32 v6, v6, v40\nv_cmp_eq_u32 vcc, 0, v6\ns_cbranch_vccz W2_n")
    a("s_sleep 8\ns_sub_u32 s13, s13, 1\ns_cbranch_scc0 W2_m")
    a("W2_n:")
    a(f"ds_write_b128 v2, v[32:35] offset:{G2_WM}\nds_write_b128 v2, v[36:39] offset:{G2_WM+1024}\nds_write_b128 v5, v[40:43] offset:{G2_WM+2048}")
    a("W2_f:")
    a.ldsadd(VC, 9, cW2)

def gen_km(a, name):
    fine = "fine" in OPT
    a(f".p2align 8\n{name}:")
    a("s_cmp_ge_u32 s2, 256\ns_cbranch_scc1 KM_end")
    a.stamp_init()
    if "skew" in OPT:
        a("s_mul_i32 s4, s2, 5\ns_and_b32 s4, s4, 7\nSK_l:\ns_sub_u32 s4, s4, 1\ns_cbranch_scc1 SK_d\ns_sleep 12\ns_branch SK_l\nSK_d:")
    a.kernargs()
    a("v_lshrrev_b32 v2, 6, v0\nv_and_b32 v1, 63, v0")
    a("v_readfirstlane_b32 s3, v2")
    a("s_and_b32 s96, s2, 7\ns_lshr_b32 s97, s2, 3")
    a("s_mul_i32 s60, s97, 43\ns_lshr_b32 s60, s60, 8")
    a("s_mul_i32 s7, s60, 6\ns_sub_u32 s7, s97, s7")
    a("s_lshl_b32 s6, s60, 3\ns_add_u32 s6, s6, s96")
    a(f"v_mov_b32 v{VC}, {CNT}\nv_mov_b32 v{V1}, 1")
    a("s_cmp_lt_u32 s3, 4\ns_cbranch_scc1 KM_lo")
    a("s_cmp_ge_u32 s97, 24\ns_cbranch_scc1 KM_free")
    g1.loader_pre(a)
    a("s_waitcnt lgkmcnt(0)")
    def w2pre():
        a("s_mov_b32 s101, s61")
        consts(a)
        a("s_mov_b32 s98, s61\ns_mov_b32 s61, s101")
        w2_pre(a)
        a("s_lshr_b32 s68, s97, 3\ns_lshl_b32 s68, s68, 2\ns_add_u32 s68, s68, s8")
    def w2issue():
        a(f"s_mul_i32 s67, s68, 18432\ns_add_u32 s67, s67, s65\ns_mul_i32 s66, s68, s64\ns_add_u32 s66, s66, {G2_W}")
        w2_rg(a)
        a("s_add_u32 s68, s68, 4\ns_sub_u32 s66, s68, 12\ns_cmp_ge_u32 s68, 12\ns_cselect_b32 s68, s66, s68")
    g1.gen_loader(a, w2pre, w2issue)
    a.srd(56, P_WS, WS_BYTES)
    a("s_mov_b32 s61, s98\ns_mov_b32 s68, 4\nv_mov_b32 v9, 1")
    a("s_barrier")
    a("s_branch KM_qj")
    a("KM_lo:")
    a("s_cmp_lg_u32 s3, 0\ns_cbranch_scc1 KM_pf")
    a("s_mov_b64 exec, 0xffff")
    a.prefetch_code("CODE_END", 2, 31, 8)
    a(f"v_lshl_add_u32 v2, v1, 2, v{VC}\nv_mov_b32 v3, 0\nds_write2_b32 v2, v3, v3 offset0:0 offset1:16")
    a("s_mov_b64 exec, -1")
    a("KM_pf:")
    a("s_cmp_ge_u32 s97, 24\ns_cbranch_scc1 KM_free")
    a("s_waitcnt lgkmcnt(0)")
    a.srd(56, P_WS, WS_BYTES)
    a(f"s_mov_b32 s99, 0\ns_cmp_lg_u32 s3, 1\ns_cbranch_scc1 KM_nz\ns_cmp_ge_u32 s2, {FLAG_WAVES}\ns_cbranch_scc1 KM_nz")
    a(f"s_mov_b32 s99, 3\ns_mul_i32 s8, s2, {2*FB_STRIDE}\ns_add_u32 s8, s8, {FLAG_OFF}")
    a(f"s_movk_i32 s9, {FB_STRIDE-512}\ns_cmp_lt_u32 s2, 28\ns_cbranch_scc1 KM_z1")
    a(f"s_mov_b32 s9, 0\ns_lshl_b32 s8, s2, 10\ns_add_u32 s8, s8, {W2M_OFF-28*1024}")
    a("KM_z1:")
    a(f"v_lshrrev_b32 v3, 5, v1\nv_mul_u32_u24 v3, s9, v3\nv_lshl_add_u32 v2, v1, 4, v3")
    a("v_mov_b32 v192, 0\nv_mov_b32 v193, 0\nv_mov_b32 v194, 0\nv_mov_b32 v195, 0")
    a("buffer_store_dwordx4 v[192:195], v2, s[56:59], s8 offen sc1")
    a("KM_nz:")
    def after1():
        a(f"s_cmp_lg_u32 s99, 3\ns_cbranch_scc1 KM_z2\ns_waitcnt vmcnt(0)\ns_mov_b64 exec, 1\nglobal_atomic_add v192, v{V1}, {s(P_DBG,2)} sc1\ns_mov_b64 exec, -1\nKM_z2:")
    a(f"s_setprio {optval('PFP', 3)}")
    a.stamp(1)
    g1.gen_consumer(a, VC, cG1, " sc1", after1)
    a.stamp(4)
    a(f"s_mul_i32 s6, s6, {FB_STRIDE}\ns_add_u32 s6, s6, {FH_OFF}")
    a.zcheck(14, 13)
    a(f"s_mov_b64 exec, 1\nds_add_rtn_u32 v5, v{VC}, v{V1} offset:{cHs}\ns_mov_b64 exec, -1")
    a("s_waitcnt lgkmcnt(0)")
    a("v_readfirstlane_b32 s7, v5")
    a("s_cmp_lg_u32 s7, 3\ns_cbranch_scc1 KM_pj")
    a.addflag("s6", 14)
    a("s_branch KM_pj")
    a("KM_free:")
    a("s_waitcnt lgkmcnt(0)\ns_barrier")
    a.srd(56, P_WS, WS_BYTES)
    a(f"s_lshl_b32 s13, s3, 12\ns_add_u32 s13, s13, {SCR}")
    a("s_lshl_b32 s12, s3, 3\ns_add_u32 s12, s12, s97\ns_sub_u32 s12, s12, 24")
    a("s_cmp_ge_u32 s12, 39\ns_cbranch_scc1 KM_fpt")
    a("s_cmp_lt_u32 s12, 3\ns_cbranch_scc1 KM_mean")
    a("s_mul_i32 s6, s96, 36\ns_add_u32 s6, s6, s12\ns_sub_u32 s6, s6, 3")
    if "nokv" in OPT:
        a.ldsadd(VC, V1, cG1)
        a("s_sleep 60\ns_branch KM_fz")
    a("s_setprio 2")
    gen_kv(a)
    a("s_branch KM_fsig")
    a("KM_mean:")
    a("s_mul_i32 s6, s96, 3\ns_add_u32 s6, s6, s12")
    a("s_cmp_ge_u32 s6, 18\ns_cbranch_scc1 KM_fz")
    a("s_setprio 3")
    gen_meantile(a)
    a("s_branch KM_fdone")
    a("KM_fpt:")
    a("s_sub_u32 s12, s12, 39\ns_cmp_ge_u32 s12, 18\ns_cbranch_scc1 KM_fidle")
    a("s_mov_b32 s9, s13\ns_mov_b32 s99, 0")
    if optval("FJW", 0): a.ldswait(VC, 5, 7, optval("FJW", 0), cG1, sleep=4)
    a("KM_job:")
    job_setup(a, "JS")
    gen_pretile(a, 128)
    a("s_mov_b32 s6, s98")
    a("s_cmp_lg_u32 s99, 0\ns_cbranch_scc1 KM_jret")
    a("KM_fsig:")
    a.stamp(3)
    a.zcheck(14, 13)
    a.addflag("s6", 14)
    a("s_branch KM_fdone")
    a("KM_fz:")
    a.zcheck(14, 13)
    a("s_branch KM_fdone")
    a("KM_fidle:")
    a("KM_fi2:")
    a("s_setprio 0")
    a.ldswait(VC, 5, 7, optval("FIDLE", 4), cG1, sleep=4)
    a("KM_fdone:")
    a.stamp(4)
    a("s_cmp_lt_u32 s3, 4\ns_cbranch_scc1 KM_pj")
    consts(a)
    w2_pre(a)
    a("s_mov_b32 s68, 0")
    a("s_branch KM_qj")

    A3 = [(2, 0), (2, 1024), (2, 2048)]
    stP = Stream(a, [(64, A3, " sc1"), (65, A3, " sc1"), (66, [(2, 0), (3, 3072)], " sc1"), (68, [(2, 0), (3, 3072)], " sc1")])
    stQ = Stream(a, [(64, A3, " sc1"), (66, [(2, 0), (2, 1024), (2, 2048), (2, 3072), (3, 0)], " sc1")])
    def addrs():
        a(f"v_mov_b32 v6, v2\nv_add_u32 v7, 36864, v2\nv_add_u32 v8, {ML_H}, v2\nv_add_u32 v9, {ML_H+36864}, v2")
        h_addr(a, 71, 10, 12)
    def rk():
        a(f"v_and_b32 v5, 15, v1\nv_lshlrev_b32 v5, 4, v5\nv_add_u32 v5, {RM}, v5")
        for m in range(4): a(f"ds_read_b32 v{GT+m}, v5 offset:{256*m}")
        a("s_waitcnt lgkmcnt(0)")
        for m in range(4):
            r = GT + m
            a(f"v_mul_f32 v{KC+2*m}, {fh(GC0)}, v{r}\nv_mul_f32 v{r}, v{r}, v{r}\nv_mul_f32 v{r}, {fh(0.044715)}, v{r}\nv_mul_f32 v{KC+2*m+1}, v{r}, v{KC+2*m}")
    a("KM_pj:")
    a(f"s_setprio {optval('PFP', 3)}")
    a.stamp(5)
    a.ldsadd(VC, V1, cP1)
    consts(a)
    consts2(a)
    gen_gemm2(a)
    a.stamp(8)
    a(f"s_mul_i32 s6, s61, {FB_STRIDE}\ns_lshl_b32 s7, s60, 2\ns_add_u32 s6, s6, s7\ns_add_u32 s6, s6, {FX_OFF}")
    P0 = 0
    a("s_waitcnt vmcnt(0)")
    a(f"s_mov_b64 exec, 1\nds_add_rtn_u32 v5, v{VC}, v{V1} offset:{cG2}\ns_mov_b64 exec, -1")
    a("s_waitcnt lgkmcnt(0)")
    a("v_readfirstlane_b32 s7, v5")
    a("s_cmp_lg_u32 s7, 3\ns_cbranch_scc1 KB_nosig")
    a.setflag("s6", 14)
    a("KB_nosig:")
    a("s_cmp_lg_u32 s3, 1\ns_cbranch_scc1 KB_w3\ns_cmp_ge_u32 s48, 18\ns_cbranch_scc1 KB_w3b")
    a("s_add_u32 s6, s70, 128")
    a.cpoll(6, 18, 48, 13, 8)
    a("KB_w3b:")
    a.ldsadd(VC, V1, cW3a)
    a("KB_w3:")
    a.ldswait(VC, 5, 7, 1, cW3a)
    a.ldswait(VC, 5, 7, 4, cG2)
    PRE = optval("PPRE", NS)
    paced(a, stP, PRE - P0, optval("PPACE", 8))
    addrs()
    a(f"s_mul_i32 s6, s5, {FB_STRIDE}\ns_add_u32 s6, s6, {FX_OFF}")
    a(f"s_mul_i32 s9, s3, 18432\ns_mov_b32 m0, s9\ns_mul_i32 s7, s5, 73728\ns_add_u32 s7, s7, s9\ns_add_u32 s7, s7, {X1_OFF}")
    a("s_cmp_lg_u32 s3, 0\ns_cbranch_scc1 KB_xw")
    a.spoll(8, 6, 44, 13, 1)
    a.ldsadd(VC, V1, cFX)
    a("s_branch KB_xg")
    a("KB_xw:")
    a.ldswait(VC, 5, 8, 1, cFX)
    a("KB_xg:")
    a.stamp(9)
    def xdma(i):
        if i and i % 4 == 0: a("s_add_u32 m0, m0, 4096\ns_add_u32 s7, s7, 4096")
        a(f"buffer_load_dwordx4 v2, s[56:59], s7 offen offset:{(i%4)*1024} sc1 lds")
        stP.other(f"x{i}")
    XP = optval("XP", 6)
    for i in range(XP): xdma(i)
    for i in range(NS - PRE): stP.issue()
    a(f"s_lshl_b32 s6, s5, 11\ns_add_u32 s6, s6, {SS_OFF}\ns_lshl_b32 s8, s5, 8\ns_add_u32 s8, s8, {MEAN_OFF}\ns_lshl_b32 s9, s5, 9\ns_add_u32 s9, s9, {ST1_OFF}")
    a("v_lshlrev_b32 v18, 3, v1")
    late = [(lambda i=i: xdma(i)) for i in range(XP, 18)]
    def stat(ins, tag="x"):
        a(ins); stP.other(tag)
    late += [(lambda i=i: stat(f"buffer_load_dword v{GT+i}, v4, s[56:59], s6 offen offset:{256*i} sc1")) for i in range(8)]
    late += [lambda: stat(f"buffer_load_dword v{GT+9}, v4, s[56:59], s8 offen sc1")]
    late += [lambda: stat(f"buffer_load_dwordx2 {v(GT+10,2)}, v18, s[56:59], s9 offen sc1", "st")]
    for i in range(optval("XE", 4)): late.pop(0)()
    a(f"s_waitcnt vmcnt({stP.younger(f'x{XP-1}')})")
    a.subbar(VC, 5, 10, 4, off=cX1)
    a.stamp(10 if not fine else 1)
    def xhook(ks, i):
        if i in (0, 4, 8, 10, 11, 3) and late: late.pop(0)()
    mphase(a, stP, 0, 6, 0, XP, prio=2, hook=xhook)
    assert not late
    a(f"s_waitcnt vmcnt({stP.younger('st')})")
    for i in range(1, 8): a(f"v_add_f32 v{GT}, v{GT}, v{GT+i}")
    a(f"v_mov_b32 v{GT+1}, {fh(1.0/D)}\nv_fmaak_f32 v{GT}, v{GT+1}, v{GT}, {fh(EPS)}")
    a(f"v_rsq_f32 v{GT+8}, v{GT}")
    a(f"v_add_u32 v5, {RM}, v2\ns_nop 0")
    a(f"ds_write_b128 v5, {v(GT+8,4)}")
    a.subbar(VC, 5, 7, 4, off=cX2)
    kw = 18 - (NS + 2) // 3
    def w3hook(ks, i):
        if ks == kw - 1 and i == 10: a.ldswait(VC, 5, 7, 1, cW3)
    mphase(a, stP, 0, 6, XP, 18, first=False, prio=2, hook=w3hook)
    if fine: a.stamp(2)
    rk()
    a.ldswait(VC, 5, 7, 4, cSide, sleep=1)
    gphase(a, 10, 12)
    a.ldsadd(VC, V1, cH1)
    if fine: a.stamp(3)
    a("s_add_u32 s71, s71, 24")
    h_addr(a, 71, 10, 12)
    a.ldswait(VC, 5, 7, 1, cW4, sleep=1)
    mphase(a, stP, 1, 6, prio=1)
    a.ldsadd(VC, V1, cA)
    if fine: a.stamp(4)
    def sthook(i):
        if i == 1:
            a.ldswait(VC, 5, 7, 4, cA, sleep=1)
            a.ldswait(VC, 5, 7, 8, cH1, sleep=1)
            stage_x(a)
            stage_y(a)
    gphase(a, 10, 12, sthook)
    a("s_waitcnt vmcnt(0)")
    a.subbar(VC, 5, 7, 4, off=cH2)
    if fine: a.stamp(5)
    mphase(a, stP, 2, 8)
    if fine: a.stamp(6)
    a("s_add_u32 s6, s67, 14336\ns_add_u32 s7, s69, 128")
    pend = []
    for k, (t, mp) in enumerate([(0, 0), (0, 1), (1, 0), (1, 1)]):
        pend += pstore(a, MACC, t, mp, 67 if t == 0 else 6, mp * 1024, k)
    state = {"flag": False}
    def hook(ks, i):
        if (ks >= 1 or i >= 3) and i not in (1, 5) and pend:
            ins = pend.pop(0); a(ins)
            if ins.startswith("buffer"): stP.other("e" if not pend else "x")
        if not pend and not state["flag"] and ks == optval("EFLAG", 14) and i == 0:
            a(f"s_waitcnt vmcnt({stP.younger('e')})")
            a.setflag("s7", 14); stP.other()
            state["flag"] = True
    mphase(a, stP, 3, 8, acc=MACC + 32, hook=hook)
    assert state["flag"]
    if fine: a.stamp(7)
    a("s_setprio 3")
    a.nop(8)
    for k, (t, mp) in enumerate([(0, 0), (0, 1), (1, 0), (1, 1)]):
        for ins in pstore(a, MACC + 32, t, mp, 67 if t == 0 else 6, 2048 + mp * 1024, k): a(ins)
    a("s_add_u32 s7, s69, 256")
    a("s_waitcnt vmcnt(0)")
    a.setflag("s7", 14)
    a.end()
    a("KM_qj:")
    a("s_setprio 0")
    a.stamp(5)
    a.ldsadd(VC, V1, cP1)
    gen_w2load(a)
    a.stamp(7 if not fine else 2)
    consts2(a)
    if "noside" in OPT:
        a.ldsadd(VC, V1, cW3)
        a.ldswait(VC, 5, 7, 4, cX1, sleep=2)
        a("s_branch KB_q2b")
    a("s_cmp_eq_u32 s3, 7\ns_cbranch_scc1 KB_w7")
    a("s_cmp_eq_u32 s63, 3\ns_cbranch_scc1 KB_nc")
    a("s_lshr_b32 s6, s60, 2\ns_sub_u32 s6, s60, s6\ns_mul_i32 s7, s61, 6\ns_add_u32 s6, s6, s7\ns_mul_i32 s6, s6, 3")
    a("s_sub_u32 s7, s3, 4\ns_add_u32 s52, s6, s7")
    a(f"s_mul_i32 s7, s7, {CV_SZ}\ns_add_u32 s53, s7, {CV}")
    a("s_cmp_lg_u32 s3, 4\ns_cbranch_scc1 KB_kw")
    for d in (0, 2):
        a(f"s_add_u32 s8, s52, {d}\ns_lshr_b32 s8, s8, 6\ns_mul_i32 s9, s8, 86\ns_lshr_b32 s9, s9, 8\ns_mul_i32 s9, s9, {FB_STRIDE-384}\ns_lshl_b32 s8, s8, 7\ns_add_u32 s8, s8, s9\ns_add_u32 s8, s8, {FKV_OFF}")
        a.cpoll(8, 32, 44, 13, 12)
    a.ldsadd(VC, V1, cKV)
    a("KB_kw:")
    a.ldswait(VC, 5, 7, 1, cKV, sleep=2)
    a.ldswait(VC, 5, 7, 8, cP1, sleep=1)
    if "cvearly" not in OPT: a.ldswait(VC, 5, 7, 4, cHl, sleep=2)
    if not fine: a.stamp(8)
    gen_conv_load(a, " sc1")
    st_save = a.stamps
    a.stamps = st_save and not fine
    kb4.gen_conv(a, None, " sc1", "none")
    a.stamps = st_save
    a(f"s_lshr_b32 s6, s6, 4\ns_mul_i32 s6, s6, 57\ns_lshr_b32 s6, s6, 9\ns_mul_i32 s6, s6, {FB_STRIDE}\ns_add_u32 s6, s6, {FY_OFF}")
    a.ldsadd(VC, V1, cSide)
    a("s_waitcnt vmcnt(0)")
    a.addflag("s6", 14)
    a("s_branch KB_q3")
    a("KB_w7:")
    a(f"s_add_u32 s52, s97, 18\ns_add_u32 s53, s97, 54\ns_mov_b32 s54, {PT7}")
    a("s_branch KB_q2")
    a("KB_nc:")
    a("s_lshr_b32 s12, s97, 2\ns_mul_i32 s12, s12, 3\ns_add_u32 s12, s12, s3\ns_sub_u32 s12, s12, 4")
    a("s_add_u32 s52, s12, 50\ns_cmp_ge_u32 s12, 4\ns_cselect_b32 s52, 108, s52\ns_add_u32 s53, s12, 86")
    a(f"s_lshl_b32 s54, s3, 12\ns_add_u32 s54, s54, {SCR}")
    a("KB_q2:")
    a.ldswait(VC, 5, 7, 8, cP1, sleep=2)
    a(f"s_mov_b32 s99, 1\ns_mov_b32 s12, s52\ns_setprio {optval('J1P', 0)}")
    a("KB_jl:")
    a("s_mov_b32 s9, s54\ns_cmp_lt_u32 s12, 108\ns_cbranch_scc1 KM_job")
    a("s_branch KB_jn")
    a("KM_jret:")
    a("s_waitcnt vmcnt(0)")
    a.addflag("s6", 14)
    a("KB_jn:")
    a("s_cmp_eq_u32 s99, 2\ns_cbranch_scc1 KB_q2b")
    if not fine: a.stamp(8)
    W4W = optval("W4W", 0)
    if W4W < 0: a("s_cmp_eq_u32 s3, 7\ns_cbranch_scc1 KB_j3")
    a.ldswait(VC, 5, 7, 4, max(W4W, 0), sleep=2)
    a("KB_j3:")
    a(f"s_mov_b32 s99, 2\ns_mov_b32 s12, s53\ns_setprio {optval('J2P', 3)}\ns_branch KB_jl")
    a("KB_q2b:")
    a.ldsadd(VC, V1, cSide)
    a("s_cmp_lg_u32 s3, 7\ns_cbranch_scc1 KB_q3")
    a("s_add_u32 s8, s70, 256")
    if "noside" not in OPT: a.cpoll(8, 36, 44, 13, 16)
    a.ldsadd(VC, V1, cW3)
    a("KB_q3:")
    a.stamp(9 if not fine else 3)
    a("s_setprio 0")
    a.ldswait(VC, 5, 7, 1, cW3, sleep=2)
    QW = optval("QRW", -1)
    if QW >= 0: a.ldswait(VC, 5, 7, 4, QW, sleep=2)
    paced(a, stQ, NS, optval("QPACE", 6))
    if not fine: a.stamp(6)
    addrs()
    a.ldswait(VC, 5, 7, 4, cX2, sleep=1)
    rk()
    mphase(a, stQ, 0, 6, 0, kw, prio=2)
    a("s_cmp_lg_u32 s3, 7\ns_cbranch_scc1 KB_q2c")
    if "noside" not in OPT: a.cpoll(70, 54, 44, 13, 16)
    a.ldsadd(VC, V1, cW4)
    a("KB_q2c:")
    a.ldswait(VC, 5, 7, 1, cW4)
    mphase(a, stQ, 0, 6, kw, 18, first=False, prio=2)
    a.ldswait(VC, 5, 7, 4, cSide)
    if fine: a.stamp(4)
    a(f"s_lshr_b32 s8, s4, 1\ns_mul_i32 s8, s8, {FB_STRIDE}\ns_add_u32 s8, s8, {FY_OFF}")
    def yhook(i):
        if i == 3:
            a("s_cmp_lg_u32 s3, 7\ns_cbranch_scc1 KB_ys")
            if "noside" not in OPT: a.vpoll(8, 144, 14, 13, 32)
            a("KB_ys:")
    gphase(a, 10, 12, yhook)
    a.subbar(VC, 5, 7, 8, off=cH1)
    if fine: a.stamp(5)
    mphase(a, stQ, 1, 8, 0, 12, prio=1)
    a.ldswait(VC, 5, 7, 4, cH2, sleep=1)
    if fine: a.stamp(7)
    mphase(a, stQ, 1, 8, 12, 18, first=False, prio=1)
    a(f"s_setprio {optval('QT', 1)}")
    a.stamp(10)
    a.nop(8)
    for k in range(10):
        if k and k % 4 == 0: a("s_add_u32 s67, s67, 4096")
        for x in pstore(a, MACC, k >> 1, k & 1, 67, (k % 4) * 1024, k): a(x)
    a("s_waitcnt vmcnt(0)")
    a.setflag("s69", 14)
    a(f"s_setprio {optval('QF', 0)}")
    gen_final(a)
    a.end()
    a("KM_end:")
    a("s_endpgm")
```

```python
import sys
from common import *
import km
NAME = "recurrent_scan__ssm_conv_h3__mixer_s_mlp__prompt_kernel"
HDR = open("recurrent_scan__ssm_conv_h3__mixer_s_mlp__prompt.s.ref").read().split("; Override launch geometry")[0]
def build(path, stamps=False):
    a = Asm()
    a.stamps = stamps
    km.gen_km(a, NAME)
    a("CODE_END:")
    out = HDR
    out += f"; @launch grid=(256,1,1) block=(512,1,1) lds={km.KM_LDS}\n"
    out += f'.amdgcn_target "amdgcn-amd-amdhsa--gfx950"\n.text\n.globl {NAME}\n.type {NAME},@function\n'
    out += a.text()
    out += '.section .rodata,"a"\n'
    out += desc(NAME, 256, 102)
    open(path, "w").write(out)
if __name__ == "__main__":
    build(sys.argv[1], len(sys.argv) <= 2)
```

```python
S, D, F = 2048, 576, 4608
ACT = S * D * 2
H_OFF    = 0x0000000
X1_OFF   = 0x0240000
KV_OFF   = 0x0480000
KV_PITCH = 4224
Y_OFF    = 0x0700000
W2M_OFF  = 0x0940000
CSUM_OFF = W2M_OFF + 3072
ST1_OFF  = CSUM_OFF + 9216
CLR_KB   = 44
SS_OFF   = 0x0950000
MEAN_OFF = 0x0968000
FLAG_OFF = 0x0970000
FB_STRIDE = 4352
FX_OFF   = FLAG_OFF
FP_OFF   = FLAG_OFF + 128
FW4_OFF  = FLAG_OFF + 32 * FB_STRIDE
FY_OFF   = FLAG_OFF + 40 * FB_STRIDE
FH_OFF   = FLAG_OFF + 16 * FB_STRIDE
FW3A_OFF = FW4_OFF + 128
FW3R_OFF = FW4_OFF + 256
FKV_OFF  = FY_OFF + 128
FM_OFF   = FY_OFF + 3 * FB_STRIDE + 128
FCNT = 12 * FB_STRIDE
FKC_OFF  = FLAG_OFF + 56 * FB_STRIDE
FLAG_WAVES = 17
W3T_OFF  = 0x0A00000
W4T_OFF  = 0x0F10000
PART_OFF = 0x1420000
STAMP_OFF = 0x2620000
WS_BYTES = 0x2700000
WSLICE = 18 * 36 * 1024

EPS = 1e-5
import struct, os
def f2u(x): return struct.unpack("<I", struct.pack("<f", x))[0]
def fh(x): return "0x%08x" % f2u(x)

def v(n, c=1): return f"v{n}" if c == 1 else f"v[{n}:{n+c-1}]"
def s(n, c=1): return f"s{n}" if c == 1 else f"s[{n}:{n+c-1}]"

P_Q, P_K, P_V, P_SHK, P_SSMK, P_SSMD, P_BX, P_W1, P_W2, P_W3, P_W4, P_OUT, P_DBG, P_WS = [16 + 2 * i for i in range(14)]

class Asm:
    def __init__(self):
        self.L = []
        self.n = 0
        self.stamps = False
        self.kid = 0
    def stamp(self, i):
        if self.stamps: self(f"{'s_memtime' if 'cyc' in os.environ.get('OPT','') else 's_memrealtime'} s[{72+2*i}:{73+2*i}]")
    def stamp_init(self):
        if self.stamps:
            for i in range(12): self(f"s_mov_b32 s{72+2*i}, 0")
            self.stamp(0)
    def end(self, i=11):
        if self.stamps:
            self("s_waitcnt vmcnt(0) lgkmcnt(0)")
            self.stamp(i)
            self.srd(56, P_WS, WS_BYTES)
            self("s_mov_b64 exec, 1")
            self(f"s_lshl_b32 s6, s2, 3\ns_add_u32 s6, s6, s3\ns_lshl_b32 s6, s6, 6\ns_add_u32 s6, s6, {STAMP_OFF + self.kid * 0x28000}")
            self("v_mov_b32 v4, 0\ns_waitcnt lgkmcnt(0)")
            for q in range(3):
                for e in range(4): self(f"v_mov_b32 v{8+4*q+e}, s{72+8*q+2*e}")
                self(f"buffer_store_dwordx4 v[{8+4*q}:{11+4*q}], v4, s[56:59], s6 offen offset:{16*q}")
            if "dbgst" in os.environ.get("OPT", ""):
                l = self.lab("DS")
                self(f"s_lshl_b32 s6, s2, 3\ns_add_u32 s6, s6, s3\ns_cmp_lg_u32 s6, {os.environ.get('DBGW', '41')}\ns_cbranch_scc1 {l}")
                for i in range(1, 12):
                    self(f"v_subrev_u32 v20, s72, v{8+i}\nglobal_store_dword v4, v20, {s(P_DBG,2)} offset:{4+4*i}")
                self(f"{l}:")
        self("s_endpgm")
    def __call__(self, t):
        for line in t.split("\n"):
            line = line.strip()
            if line:
                self.L.append(("" if line.endswith(":") or line.startswith(".") else "  ") + line)
    def lab(self, p="L"):
        self.n += 1
        return f"{p}_{self.n}"
    def text(self): return "\n".join(self.L) + "\n"
    def kernargs(self):
        self("s_load_dwordx16 s[16:31], s[0:1], 0")
        self("s_load_dwordx8 s[32:39], s[0:1], 64")
        self("s_load_dwordx4 s[40:43], s[0:1], 96")
    def srd(self, d, p, nbytes):
        self(f"s_mov_b32 s{d}, s{p}\ns_mov_b32 s{d+1}, s{p+1}\ns_mov_b32 s{d+2}, {nbytes}\ns_mov_b32 s{d+3}, 0x20000")
    def mfma(self, d, a, b, c=None):
        cc = v(d, 4) if c is None else c
        self(f"v_mfma_f32_16x16x32_bf16 {v(d,4)}, {v(a,4)}, {v(b,4)}, {cc}")
    def nop(self, n):
        while n > 0:
            k = min(n, 16)
            self(f"s_nop {k-1}")
            n -= k
    def prefetch_code(self, endlabel, vtmp, vdst, stmp):
        l = self.lab("PF")
        self(f"s_getpc_b64 {s(stmp,2)}")
        self(f"{l}:")
        self(f"v_and_b32 {v(vtmp)}, 15, v0")
        self(f"v_lshlrev_b32 {v(vtmp)}, 5, {v(vtmp)}")
        self(f"s_lshr_b32 s{stmp+2}, s2, 3")
        self(f"v_add_lshl_u32 {v(vtmp)}, s{stmp+2}, {v(vtmp)}, 7")
        self(f"v_min_u32 {v(vtmp)}, {endlabel}-{l}-4, {v(vtmp)}")
        self(f"global_load_dword {v(vdst)}, {v(vtmp)}, {s(stmp,2)} nt")
    def subbar(self, vaddr, vtmp, stmp, n, off=0):
        self("s_mov_b64 exec, 1")
        self(f"v_mov_b32 {v(vtmp)}, 1")
        self(f"ds_add_u32 {v(vaddr)}, {v(vtmp)} offset:{off}")
        self("s_mov_b64 exec, -1")
        self.ldswait(vaddr, vtmp, stmp, n, off)
    def ldswait(self, vaddr, vtmp, stmp, n, off=0, sleep=1):
        l = self.lab("LW"); d = self.lab("LD")
        self(f"{l}:")
        self(f"ds_read_b32 {v(vtmp)}, {v(vaddr)} offset:{off}")
        self("s_waitcnt lgkmcnt(0)")
        self(f"v_readfirstlane_b32 s{stmp}, {v(vtmp)}")
        self(f"s_cmp_ge_u32 s{stmp}, {n}")
        self(f"s_cbranch_scc1 {d}")
        self(f"s_sleep {max(sleep, int(os.environ.get('LSLEEP', '1')))}")
        self(f"s_branch {l}")
        self(f"{d}:")
    def poll(self, vaddr, soff, vtmp, stmp, sleep=1):
        l = self.lab("PL"); d = self.lab("PD")
        self(f"s_mov_b32 s{stmp}, 0x40000")
        self(f"{l}:")
        self(f"buffer_load_dword {v(vtmp)}, {v(vaddr)}, s[56:59], {soff} offen sc1")
        self("s_waitcnt vmcnt(0)")
        self(f"v_cmp_eq_u32 vcc, 0, {v(vtmp)}")
        self(f"s_cbranch_vccz {d}")
        self(f"s_sleep {sleep}")
        self(f"s_sub_u32 s{stmp}, s{stmp}, 1")
        self(f"s_cbranch_scc0 {l}")
        self(f"{d}:")
    def spoll(self, n, soff, sd, stmp, sleep=1):
        l = self.lab("SP"); d = self.lab("SD")
        self(f"s_mov_b32 s{stmp}, 0x40000")
        self(f"{l}:")
        self(f"s_load_dwordx{n} {s(sd,n)}, {s(P_WS,2)}, s{soff} glc")
        self("s_waitcnt lgkmcnt(0)")
        k = n
        while k > 2:
            k //= 2
            for i in range(0, k, 2): self(f"s_and_b64 {s(sd+i,2)}, {s(sd+i,2)}, {s(sd+k+i,2)}")
        self(f"s_and_b32 s{sd}, s{sd}, s{sd+1}")
        self(f"s_cbranch_scc1 {d}")
        if sleep: self(f"s_sleep {sleep}")
        self(f"s_sub_u32 s{stmp}, s{stmp}, 1")
        self(f"s_cbranch_scc0 {l}")
        self(f"{d}:")
    def cpoll(self, soff, n, sd, stmp, sleep=1):
        l = self.lab("CP"); d = self.lab("CD")
        self(f"s_mov_b32 s{stmp}, 0x40000")
        self(f"{l}:")
        self(f"s_load_dword s{sd}, {s(P_WS,2)}, s{soff} glc")
        self("s_waitcnt lgkmcnt(0)")
        self(f"s_cmp_ge_u32 s{sd}, {n}")
        self(f"s_cbranch_scc1 {d}")
        if sleep: self(f"s_sleep {sleep}")
        self(f"s_sub_u32 s{stmp}, s{stmp}, 1")
        self(f"s_cbranch_scc0 {l}")
        self(f"{d}:")
    def vpoll(self, soff, n, vtmp, stmp, sleep=8):
        l = self.lab("VP"); d = self.lab("VD")
        self(f"s_mov_b32 s{stmp}, 0x20000\nv_mov_b32 {v(vtmp)}, 0")
        self(f"{l}:")
        self(f"buffer_load_dword {v(vtmp+1)}, {v(vtmp)}, s[56:59], s{soff} offen sc1")
        self("s_waitcnt vmcnt(0)")
        self(f"v_cmp_gt_u32 vcc, {n}, {v(vtmp+1)}")
        self(f"s_cbranch_vccz {d}")
        self(f"s_sleep {sleep}")
        self(f"s_sub_u32 s{stmp}, s{stmp}, 1")
        self(f"s_cbranch_scc0 {l}")
        self(f"{d}:")
    def zcheck(self, vtmp, stmp, drain=True):
        l = self.lab("ZP"); d = self.lab("ZD")
        self(f"s_load_dword s{stmp}, {s(P_DBG,2)}, 0")
        self("s_waitcnt vmcnt(0) lgkmcnt(0)" if drain else "s_waitcnt lgkmcnt(0)")
        self(f"s_cmp_lg_u32 s{stmp}, 0\ns_cbranch_scc1 {d}")
        self(f"s_mov_b32 s{stmp}, 0x20000\nv_mov_b32 {v(vtmp)}, 0")
        self(f"{l}:")
        self(f"global_load_dword {v(vtmp+1)}, {v(vtmp)}, {s(P_DBG,2)} sc1")
        self("s_waitcnt vmcnt(0)")
        self(f"v_cmp_eq_u32 vcc, 0, {v(vtmp+1)}")
        self(f"s_cbranch_vccz {d}")
        self("s_sleep 4")
        self(f"s_sub_u32 s{stmp}, s{stmp}, 1")
        self(f"s_cbranch_scc0 {l}")
        self(f"{d}:")
    def sarrive(self, soff, n, stmp, scnt=None):
        d = self.lab("SA")
        if scnt is None:
            scnt = stmp + 1
            self(f"s_add_u32 s{scnt}, s{soff}, {FCNT}")
        self(f"s_mov_b32 s{stmp}, 1\ns_atomic_add s{stmp}, {s(P_WS,2)}, s{scnt} glc")
        self(f"s_waitcnt lgkmcnt(0)\ns_add_u32 s{stmp}, s{stmp}, 1\ns_cmp_lg_u32 s{stmp}, {n}\ns_cbranch_scc1 {d}")
        self(f"s_atomic_add s101, {s(P_WS,2)}, s{soff}")
        self(f"{d}:")
    def sadd(self, soff, stmp):
        self(f"s_atomic_add s101, {s(P_WS,2)}, s{soff}")
    def arrive(self, soff, n, vtmp, stmp):
        d = self.lab("AR")
        self("s_mov_b64 exec, 1")
        self(f"v_mov_b32 {v(vtmp)}, {FCNT}\nv_mov_b32 {v(vtmp+1)}, 1")
        self(f"buffer_atomic_add {v(vtmp+1)}, {v(vtmp)}, s[56:59], s{soff} offen sc0 sc1")
        self("s_waitcnt vmcnt(0)")
        self(f"v_readfirstlane_b32 s{stmp}, {v(vtmp+1)}")
        self(f"s_add_u32 s{stmp}, s{stmp}, 1\ns_cmp_lg_u32 s{stmp}, {n}")
        self(f"s_cbranch_scc1 {d}")
        self(f"v_mov_b32 {v(vtmp)}, 0\nv_mov_b32 {v(vtmp+1)}, 1")
        self(f"buffer_store_dword {v(vtmp+1)}, {v(vtmp)}, s[56:59], s{soff} offen sc1")
        self("s_waitcnt vmcnt(0)")
        self(f"{d}:")
        self("s_mov_b64 exec, -1")
    def addflag(self, soff, vtmp):
        self("s_mov_b64 exec, 1")
        self(f"v_mov_b32 {v(vtmp)}, 0\nv_mov_b32 {v(vtmp+1)}, 1")
        self(f"buffer_atomic_add {v(vtmp+1)}, {v(vtmp)}, s[56:59], {soff} offen sc1")
        self("s_mov_b64 exec, -1")
    def ldsadd(self, vaddr, vone, off):
        self("s_mov_b64 exec, 1")
        self(f"ds_add_u32 {v(vaddr)}, {v(vone)} offset:{off}")
        self("s_mov_b64 exec, -1")
    def setflag(self, soff, vtmp):
        self("s_mov_b64 exec, 1")
        self(f"v_mov_b32 {v(vtmp)}, 0\nv_mov_b32 {v(vtmp+1)}, 1")
        self(f"buffer_store_dword {v(vtmp+1)}, {v(vtmp)}, s[56:59], {soff} offen sc1")
        self("s_mov_b64 exec, -1")

def desc(name, nv, ns=100):
    nv = (nv + 7) // 8 * 8
    return f""".p2align 6
.amdhsa_kernel {name}
  .amdhsa_next_free_vgpr {nv}
  .amdhsa_next_free_sgpr {ns}
  .amdhsa_accum_offset {min(nv, 256)}
  .amdhsa_group_segment_fixed_size 0
  .amdhsa_kernarg_size 112
  .amdhsa_user_sgpr_count 2
  .amdhsa_user_sgpr_kernarg_segment_ptr 1
  .amdhsa_system_sgpr_workgroup_id_x 1
  .amdhsa_float_denorm_mode_32 3
.end_amdhsa_kernel
"""

GC0 = -2.0 * 0.7978845608028654 * 1.4426950408889634
GC1 = GC0 * 0.044715
LOG2E = 1.4426950408889634

import os
OPT = os.environ.get("OPT", "").split(",")
def optval(name, default):
    return int(os.environ.get(name, default))

def gelu_vals(a, regs, tmps, k0, k1):
    n = len(regs)
    K0 = k0 if isinstance(k0, list) else [k0] * n
    K1 = k1 if isinstance(k1, list) else [k1] * n
    nt = len(tmps)
    for b in range(0, n, nt):
        idx = list(range(b, min(b + nt, n)))
        for i in idx: a(f"v_mul_f32 {v(tmps[i-b])}, {v(regs[i])}, {v(regs[i])}")
        for i in idx: a(f"v_fma_f32 {v(tmps[i-b])}, {v(tmps[i-b])}, {K1[i]}, {K0[i]}")
        for i in idx: a(f"v_mul_f32 {v(tmps[i-b])}, {v(tmps[i-b])}, {v(regs[i])}")
        for i in idx: a(f"v_exp_f32 {v(tmps[i-b])}, {v(tmps[i-b])}")
        for i in idx: a(f"v_add_f32 {v(tmps[i-b])}, 1.0, {v(tmps[i-b])}")
        for i in idx: a(f"v_rcp_f32 {v(tmps[i-b])}, {v(tmps[i-b])}")
        for i in idx: a(f"v_mul_f32 {v(regs[i])}, {v(tmps[i-b])}, {v(regs[i])}")

def gsum(a, r, t):
    a(f"v_mov_b32 v{t}, v{r}\ns_nop 1\nv_permlane32_swap_b32 v{r}, v{t}\nv_add_f32 v{r}, v{r}, v{t}")
    a(f"v_mov_b32 v{t}, v{r}\ns_nop 1\nv_permlane16_swap_b32 v{r}, v{t}\nv_add_f32 v{r}, v{r}, v{t}")

def gen_pretile(a, R=32):
    a("v_lshrrev_b32 v18, 3, v1\nv_and_b32 v19, 7, v1")
    a("v_mul_lo_u32 v20, v18, s7")
    a("v_lshl_add_u32 v20, v19, 4, v20")
    a("s_lshl_b32 s10, s7, 3")
    for i in range(3):
        if i: a("s_sub_u32 s6, s6, s11")
        for rg in range(4):
            a(f"buffer_load_dwordx4 {v(R+16*i+4*rg,4)}, v20, s[44:47], s6 offen offset:{128*i} nt")
            if rg < 3: a("s_add_u32 s6, s6, s10")
        if i == 0: a("s_mul_i32 s11, s10, 3")
    a("v_lshlrev_b32 v21, 4, v1\nv_add_u32 v22, s9, v21")
    a("v_lshrrev_b32 v23, 2, v1\nv_lshlrev_b32 v23, 7, v23\nv_and_b32 v19, 3, v1\nv_lshl_add_u32 v23, v19, 3, v23\nv_add_u32 v23, s9, v23")
    for i in range(3):
        a(f"s_waitcnt vmcnt(8)")
        for rg in range(4):
            a(f"ds_write_b128 v22, {v(R+16*i+4*rg,4)} offset:{1024*rg}")
        for tn in range(4):
            a(f"ds_read_b64_tr_b16 {v(R+48+16*i+4*tn,2)}, v23 offset:{tn*32}")
            a(f"ds_read_b64_tr_b16 {v(R+48+16*i+4*tn+2,2)}, v23 offset:{2048+tn*32}")
        a("s_waitcnt lgkmcnt(0)")
        for tn in range(4):
            a(f"buffer_store_dwordx4 {v(R+48+16*i+4*tn,4)}, v21, s[56:59], s8 offen offset:{tn*1024} sc1")
        a("s_add_u32 s8, s8, 4096")
```

```python
from common import *
import kb4, km
from g1 import gelu_pk
from kb4 import Stream, mphase, gphase, h_addr, pstore, stage_x, stage_y, gen_final, gen_conv_load, paced, NS, RING, BF, MACC, KC, GT, ML_H, VC, V1

G2_WM, G2_W = 0, 2560
SLOT = 24576
G1_BASE = 76800
G1_AUX = 150528
CV_SZ = 21248
FSCR = 6 * CV_SZ
CNT = 158592
RM = CNT + 128
K6_LDS = RM + 1024
kb4.RM = RM
cG2, cX1, cX2, cFX, cSide, cH1, cA, cH2, cW4, cG1, cFH, cU, cW3, cHs, cW3a, cKV, cXs = [4 * i for i in range(17)]
km.cG1 = cG1

W4F = optval('W4F', 432)

def last_of(a, off, n, skip):
    a(f"s_mov_b64 exec, 1\nds_add_rtn_u32 v5, v{VC}, v{V1} offset:{off}\ns_mov_b64 exec, -1")
    a("s_waitcnt lgkmcnt(0)")
    a("v_readfirstlane_b32 s7, v5")
    a(f"s_cmp_lg_u32 s7, {n-1}\ns_cbranch_scc1 {skip}")

def gen_g(a):
    BUF, ACC, STA, CSA = 32, 96, 112, 120
    log = []
    a("v_lshrrev_b32 v2, 2, v1\nv_and_b32 v3, 3, v1\nv_mul_u32_u24 v4, 1152, v2")
    a("v_lshrrev_b32 v6, 5, v1\nv_lshlrev_b32 v6, 1, v6\nv_xor_b32 v6, v6, v3\nv_lshl_add_u32 v6, v6, 4, v4")
    a("s_mul_i32 s10, s60, 147456\ns_mul_i32 s9, s3, 18432\ns_add_u32 s10, s10, s9")
    a("s_lshr_b32 s8, s3, 1\ns_mul_i32 s11, s8, 18432\ns_lshl_b32 s9, s61, 7\ns_add_u32 s11, s11, s9\ns_and_b32 s9, s3, 1\ns_lshl_b32 s9, s9, 6\ns_add_u32 s11, s11, s9")
    a("s_mul_i32 s14, s62, 7\ns_add_u32 s14, s14, 1\ns_mov_b32 s12, s61")
    a(f"s_lshl_b32 s13, s3, 10\ns_add_u32 s13, s13, {G1_BASE}")
    a("s_waitcnt lgkmcnt(0)")
    a.srd(48, P_Q, ACT)
    a.srd(44, P_W1, D * D * 2)
    def issue(gi):
        sl = (gi % 3) * SLOT
        a("s_add_u32 s12, s12, s14\ns_sub_u32 s9, s12, 9\ns_cmp_ge_u32 s12, 9\ns_cselect_b32 s12, s9, s12")
        a(f"s_lshl_b32 s15, s12, 7\ns_add_u32 s15, s15, s10\ns_add_u32 m0, s13, {sl}\ns_mul_i32 s9, s12, 73728")
        a("buffer_load_dwordx4 v6, s[48:51], s15 offen lds")
        a("s_add_u32 m0, m0, 8128\ns_add_u32 s9, s9, s11")
        a("buffer_load_dwordx4 v6, s[48:51], s15 offen offset:64 lds")
        a("s_add_u32 m0, m0, 8256\ns_nop 0")
        a("buffer_load_dwordx4 v6, s[44:47], s9 offen lds")
        log.extend(["x", "x", f"g{gi}"])
    younger = lambda key: len(log) - 1 - log.index(key)
    issue(0); issue(1)
    if "w1t" in OPT:
        a("s_mul_i32 s8, s62, 288\ns_lshl_b32 s9, s61, 6\ns_add_u32 s8, s8, s9\ns_add_u32 s8, s8, 32\ns_mul_i32 s9, s3, 36\ns_add_u32 s8, s8, s9")
        a("v_min_u32 v7, 35, v1\nv_add_u32 v7, s8, v7\nv_subrev_u32 v8, 576, v7\nv_min_u32 v7, v7, v8\nv_mul_u32_u24 v7, 1152, v7\ns_lshl_b32 s9, s61, 7")
        a("buffer_load_dword v31, v7, s[44:47], s9 offen")
        log.append("t")
    a.srd(56, P_WS, WS_BYTES)
    a("s_cmp_lg_u32 s3, 0\ns_cbranch_scc1 G_pf")
    a("s_mov_b64 exec, 0xffff")
    a(f"v_lshl_add_u32 v7, v1, 2, v{VC}\nv_mov_b32 v8, 0\nds_write2_b32 v7, v8, v8 offset0:0 offset1:16")
    a("s_mov_b64 exec, -1")
    a("G_pf:")
    a.srd(52, P_W2, D * D * 2)
    a("v_bfe_u32 v7, v1, 4, 1\nv_lshlrev_b32 v8, 1, v7\nv_xor_b32 v8, v8, v3\nv_lshl_add_u32 v30, v8, 4, v4")
    a(f"v_lshlrev_b32 v12, 6, v2\nv_lshl_add_u32 v12, v7, 5, v12\nv_lshl_add_u32 v12, v3, 3, v12\nv_add_u32 v22, {G2_W}, v12\nv_xor_b32 v23, 32, v22")
    a(f"s_mov_b32 s66, s11\ns_lshl_b32 s67, s3, 10\ns_add_u32 s67, s67, {G2_W}")
    a("v_and_b32 v2, 15, v1\nv_lshrrev_b32 v3, 4, v1")
    a("v_bfe_u32 v4, v1, 3, 1\nv_lshlrev_b32 v4, 1, v4")
    a("v_xor_b32 v5, v4, v3\nv_lshl_add_u32 v5, v2, 2, v5\nv_lshlrev_b32 v5, 4, v5")
    a(f"s_and_b32 s63, s3, 3\ns_lshr_b32 s64, s3, 2\ns_lshl_b32 s9, s63, 11\ns_add_u32 s9, s9, {G1_BASE}\nv_add_u32 v10, s9, v5")
    a("v_lshrrev_b32 v5, 1, v3\nv_lshlrev_b32 v11, 11, v5\nv_and_b32 v8, 1, v3\nv_lshl_add_u32 v11, v8, 9, v11")
    a("v_lshrrev_b32 v7, 2, v2\nv_lshl_add_u32 v11, v7, 6, v11\nv_and_b32 v7, 3, v1\nv_lshl_add_u32 v11, v7, 3, v11\nv_lshl_add_u32 v11, v8, 5, v11")
    a(f"s_lshl_b32 s9, s64, 10\ns_add_u32 s9, s9, {G1_BASE+16384}\nv_add_u32 v11, s9, v11\nv_xor_b32 v12, 32, v11")
    a(f"v_xor_b32 v5, v5, v4\nv_lshl_add_u32 v5, v2, 2, v5\nv_lshlrev_b32 v20, 4, v5\nv_lshl_add_u32 v20, v8, 3, v20\ns_add_u32 s9, s13, {2*SLOT}\nv_add_u32 v20, s9, v20\nv_xor_b32 v21, 32, v20")
    a("v_lshlrev_b32 v13, 4, v2\nv_lshlrev_b32 v18, 4, v3\nv_lshlrev_b32 v25, 4, v1")
    a(f"s_lshl_b32 s68, s60, 11\ns_add_u32 s68, s68, {ST1_OFF}\ns_lshl_b32 s9, s63, 9\ns_add_u32 s69, s68, s9")
    a(f"s_lshl_b32 s70, s61, 8\ns_lshl_b32 s9, s64, 7\ns_add_u32 s70, s70, s9\ns_add_u32 s70, s70, {CSUM_OFF}\ns_add_u32 s71, s70, 4608")
    a(f"s_lshl_b32 s65, s60, 3\ns_lshl_b32 s9, s63, 1\ns_add_u32 s65, s65, s9\ns_mul_i32 s65, s65, 18432\ns_lshl_b32 s9, s61, 11\ns_add_u32 s65, s65, s9\ns_lshl_b32 s9, s64, 10\ns_add_u32 s65, s65, s9\ns_add_u32 s65, s65, {H_OFF}")
    a(f"v_mov_b32 v160, {fh(GC0)}\nv_mov_b32 v161, {fh(GC0)}\nv_mov_b32 v162, {fh(GC1)}\nv_mov_b32 v163, {fh(GC1)}\nv_mov_b32 v164, 1.0\nv_mov_b32 v165, 1.0\nv_mov_b32 v14, 0")
    a(f"s_lshl_b32 s9, s3, 8\ns_add_u32 s9, s9, s68\nv_add_u32 v26, s9, v25")
    a(f"s_lshr_b32 s9, s3, 1\ns_mul_i32 s9, s9, 2304\ns_and_b32 s8, s3, 1\ns_lshl_b32 s8, s8, 7\ns_add_u32 s9, s9, s8\ns_lshl_b32 s8, s61, 8\ns_add_u32 s9, s9, s8\ns_add_u32 s9, s9, {CSUM_OFF-256}")
    a("v_add_u32 v27, s9, v25\nv_cmp_gt_u32 vcc, 16, v1\ns_mul_i32 s98, s3, 384\ns_mul_i32 s9, s63, 768\nv_cndmask_b32 v26, v27, v26, vcc")
    a(f"s_add_u32 s98, s98, {G1_AUX}\ns_add_u32 s9, s9, {G1_AUX}\nv_add_u32 v27, s9, v13\ns_mul_i32 s9, s64, 384\ns_add_u32 s9, s9, {G1_AUX+256}\nv_add_u32 v28, s9, v18")
    def w2issue(n):
        for _ in range(n):
            a("s_mov_b32 m0, s67\ns_add_u32 s67, s67, 8192")
            a("buffer_load_dwordx4 v30, s[52:55], s66 offen lds")
            a("s_add_u32 s66, s66, 73728")
            log.append("w")
    def aux():
        for mi in range(2): a(f"buffer_load_dwordx4 {v(STA+4*mi,4)}, v13, s[56:59], s69 offen offset:{256*mi} sc1")
        for q in range(4):
            for t in range(2):
                a(f"buffer_load_dwordx4 {v(CSA+16*t+4*q,4)}, v18, s[56:59], s{70+(q>>1)} offen offset:{2304*(q&1)+64*t} sc1")
    def reads(gi):
        o0 = (gi % 3) * SLOT
        b = BUF + 32 * (gi & 1)
        o = []
        for k2 in range(2):
            for mi in range(2): o.append(f"ds_read_b128 {v(b+16*k2+4*mi,4)}, v10 offset:{o0+8192*k2+1024*mi}")
            for t in range(2):
                for jh in range(2): o.append(f"ds_read_b64_tr_b16 {v(b+16*k2+8+4*t+2*jh,2)}, v{11+t} offset:{o0+4096*k2+256*jh}")
        return o
    AUXG = optval("AUXG", 6)
    for gi in range(10):
        rd = []
        if gi < 9:
            a(f"s_waitcnt vmcnt({min(younger(f'g{gi}'), younger('aux') if gi == 8 else 63)})\ns_barrier")
            if gi == 0 or "g1t" in OPT: a.stamp(1 + gi)
            rd = reads(gi) if "g1nc" not in OPT else []
            if gi == AUXG - 1: a(f"s_load_dword s63, {s(P_DBG,2)}, 0")
        def mem():
            if gi == AUXG:
                a("s_mov_b32 m0, s98\ns_mov_b64 exec, 0xffffff\nbuffer_load_dwordx4 v26, s[56:59], 0 offen sc1 lds\ns_mov_b64 exec, -1")
                log.append("aux")
            if gi + 2 < 9:
                if "g1nl" in OPT: log.extend(["x", "x", f"g{gi+2}"])
                else: issue(gi + 2)
        if gi == 9:
            rd = [f"ds_read_b128 {v(STA+4*mi,4)}, v27 offset:{384*mi}" for mi in range(2)]
            rd += [f"ds_read_b128 {v(CSA+16*t+4*q,4)}, v28 offset:{768*q+64*t}" for q in range(4) for t in range(2)]
        l1 = a.lab("GM"); l2 = a.lab("GN")
        a(f"s_cmp_ge_u32 s3, 4\ns_cbranch_scc1 {l1}")
        n0 = len(log); mem(); del log[n0:]
        a(f"{l1}:")
        for _ in range(4):
            if rd: a(rd.pop(0))
        if gi > 0:
            b = BUF + 32 * ((gi - 1) & 1)
            for k2 in range(2):
                for t in range(2):
                    for mi in range(2):
                        if rd: a(rd.pop(0))
                        a.mfma(ACC + 8 * mi + 4 * t, b + 16 * k2 + 8 + 4 * t, b + 16 * k2 + 4 * mi, "0" if (gi == 1 and k2 == 0) else None)
        for r in rd: a(r)
        a(f"s_cmp_lt_u32 s3, 4\ns_cbranch_scc1 {l2}")
        mem()
        a(f"{l2}:")
        if gi in (7, 8): w2issue(3)
        if gi < 9: a("s_waitcnt lgkmcnt(0)")
    a.stamp(2 if "g1t" not in OPT else 10)
    if "g1t" in OPT: a.end()
    a("s_waitcnt lgkmcnt(0)\ns_mov_b32 s9, 0x20000")
    a("G_ck:")
    a(f"v_min_u32 v5, v{STA}, v{STA+4}")
    for q in range(0, 8, 2): a(f"v_min3_u32 v5, v5, v{CSA+4*q}, v{CSA+4*q+4}")
    a("v_cmp_eq_u32 vcc, 0, v5\ns_cmp_eq_u32 s63, 0\ns_cselect_b64 s[6:7], -1, vcc\ns_cmp_eq_u64 s[6:7], 0\ns_cbranch_scc1 G_ok")
    a("s_sleep 4")
    a.zcheck(14, 63)
    a("s_mov_b32 s63, 1")
    aux()
    a("s_waitcnt vmcnt(0)\ns_sub_u32 s9, s9, 1\ns_cbranch_scc0 G_ck")
    a("G_ok:")
    for t in range(2):
        for e in range(0, 4, 2):
            a(f"v_pk_add_f32 {v(CSA+16*t+e,2)}, {v(CSA+16*t+e,2)}, {v(CSA+16*t+4+e,2)}\nv_pk_add_f32 {v(CSA+16*t+8+e,2)}, {v(CSA+16*t+8+e,2)}, {v(CSA+16*t+12+e,2)}")
    for mi in range(2): a(f"v_mov_b32 v{STA+4*mi}, v{STA+4*mi+2}\nv_mov_b32 v{STA+4*mi+1}, v{STA+4*mi+2}\nv_mov_b32 v{STA+4*mi+2}, v{STA+4*mi+3}")
    for t in range(2):
        for e in range(0, 4, 2): a(f"v_pk_add_f32 {v(CSA+16*t+e,2)}, {v(CSA+16*t+e,2)}, {v(CSA+16*t+8+e,2)}")
    a("s_add_u32 s9, s65, 18432")
    for mi in range(2):
        regs = [ACC + 8 * mi + e for e in range(8)]
        for e in range(0, 8, 2): a(f"v_pk_fma_f32 {v(regs[e],2)}, {v(STA+4*mi,2)}, {v(CSA+16*(e>>2)+(e&3),2)}, {v(regs[e],2)}")
        for e in range(0, 8, 2): a(f"v_pk_mul_f32 {v(regs[e],2)}, {v(regs[e],2)}, {v(STA+4*mi+2,2)}")
        gelu_pk(a, regs, list(range(168, 176)), "v[160:161]", "v[162:163]", "v[164:165]")
        for e in range(4): a(f"v_cvt_pk_bf16_f32 v{176+4*mi+e}, v{regs[2*e]}, v{regs[2*e+1]}")
        a(f"buffer_store_dwordx4 {v(176+4*mi,4)}, v25, s[56:59], s{65 if mi == 0 else 9} offen sc1")
    a.stamp(3)
    w2issue(3)
    HB, AR, AC2 = 32, 104, 224
    a("v_lshlrev_b32 v2, 4, v1\nv_add_u32 v3, 4096, v2\nv_lshlrev_b32 v4, 2, v1")
    a("s_lshl_b32 s8, s60, 3\ns_add_u32 s8, s8, s3")
    a("v_and_b32 v11, 1, v1\nv_lshlrev_b32 v11, 6, v11\nv_add_u32 v11, v11, v18")
    a("v_add_u32 v28, 36864, v22\nv_add_u32 v29, 36864, v23")
    a("v_and_b32 v8, 15, v1\ns_lshl_b32 s10, s8, 4\nv_add_u32 v8, s10, v8\nv_lshlrev_b32 v9, 4, v18\ns_movk_i32 s13, 18432\nv_mov_b32 v10, 0x80000000")
    for gam, sh in enumerate((-1, 1, -2, 2)):
        a(f"v_add_u32 v5, {sh}, v8\nv_cmp_gt_u32 vcc, {S}, v5\nv_lshrrev_b32 v6, 4, v5\nv_mad_u32_u24 v6, v6, s13, v9\nv_and_b32 v5, 15, v5\nv_lshl_add_u32 v6, v5, 4, v6")
        a(f"v_cndmask_b32 v{24+gam}, v10, v6, vcc")
    a(f"s_mul_i32 s11, s8, 18432\ns_lshl_b32 s9, s61, 11\ns_add_u32 s11, s11, s9\ns_add_u32 s11, s11, {X1_OFF}")
    a(f"s_mul_i32 s6, s60, {FB_STRIDE}\ns_add_u32 s6, s6, {FH_OFF}\ns_lshl_b32 s10, s3, 8\ns_add_u32 s10, s10, s68\ns_mov_b32 s14, {H_OFF}")
    a("s_waitcnt vmcnt(3)")
    last_of(a, cHs, 8, "G_hs")
    a.sadd(6, 7)
    a("G_hs:")
    a.stamp(4)
    a("buffer_load_dwordx2 v[18:19], v13, s[56:59], s10 offen sc1")
    a("s_cmp_lg_u32 s3, 7\ns_cbranch_scc1 G_wm")
    a(f"s_mov_b32 s9, {W2M_OFF}\nv_min_u32 v5, 240, v2\ns_mov_b32 s13, 0x20000")
    a("W2_m:")
    a("buffer_load_dwordx4 v[32:35], v2, s[56:59], s9 offen sc1\nbuffer_load_dwordx4 v[36:39], v2, s[56:59], s9 offen offset:1024 sc1\nbuffer_load_dwordx4 v[40:43], v5, s[56:59], s9 offen offset:2048 sc1")
    a("s_waitcnt vmcnt(0)")
    a("v_min3_u32 v6, v32, v36, v40\nv_cmp_eq_u32 vcc, 0, v6\ns_cbranch_vccz W2_n")
    a("s_sleep 8\ns_sub_u32 s13, s13, 1\ns_cbranch_scc0 W2_m")
    a("W2_n:")
    a(f"ds_write_b128 v2, v[32:35] offset:{G2_WM}\nds_write_b128 v2, v[36:39] offset:{G2_WM+1024}\nds_write_b128 v5, v[40:43] offset:{G2_WM+2048}")
    a("s_waitcnt lgkmcnt(0)")
    a("G_wm:")
    a("s_waitcnt vmcnt(0)\ns_barrier")
    NA = 6
    def ard(ks):
        b = AR + 20 * (ks % NA)
        o = [f"ds_read_b128 {v(b,4)}, v11 offset:{G2_WM+128*ks}"]
        for t in range(4):
            for jh in range(2):
                off = ((ks * 2 + jh) * 2 + (t >> 1)) * 1024
                ad = 22 + (t & 1)
                if off >= 36864: off -= 36864; ad += 6
                o.append(f"ds_read_b64_tr_b16 {v(b+4+4*t+2*jh,2)}, v{ad} offset:{off}")
        return o
    for ks in range(NA):
        for r in ard(ks): a(r)
    for t in range(4): a(f"ds_read_b64 {v(244+2*t,2)}, v{20+(t&1)} offset:{8192*(t>>1)}")
    a("s_cmp_lg_u32 s3, 1\ns_cbranch_scc1 G2_hw")
    a.cpoll(6, 9, 48, 13, 1)
    a("G2_hw:")
    a(f"s_sub_u32 s7, s6, {FB_STRIDE}\ns_add_u32 s12, s6, {FB_STRIDE}\ns_cmp_eq_u32 s3, 0\ns_cselect_b32 s12, s7, s12")
    a("s_waitcnt lgkmcnt(0)\ns_barrier")
    a("s_add_u32 s7, s8, 1\ns_and_b32 s9, s7, 7\ns_cmp_ge_u32 s9, 2\ns_cbranch_scc1 G2_hg\ns_and_b32 s7, s7, 127\ns_cmp_lt_u32 s7, 2\ns_cbranch_scc1 G2_hg")
    a.cpoll(12, 9, 48, 13, 1)
    a("G2_hg:")
    a.stamp(5)
    hl = []
    for ks in range(18):
        pre = "s_add_u32 s14, s14, 4096\n" if ks and ks % 4 == 0 else ""
        g0, g1_ = (2 * ks) // 9, (2 * ks + 1) // 9
        if g0 == g1_: hl.append((pre + f"buffer_load_dwordx4 {v(HB+4*ks,4)}, v{24+g0}, s[56:59], s14 offen offset:{(ks%4)*1024} sc1", 1))
        else: hl.append((pre + f"buffer_load_dwordx2 {v(HB+4*ks,2)}, v{24+g0}, s[56:59], s14 offen offset:{(ks%4)*1024} sc1\nbuffer_load_dwordx2 {v(HB+4*ks+2,2)}, v{24+g1_}, s[56:59], s14 offen offset:{(ks%4)*1024+8} sc1", 2))
    HD = optval("HD", 5)
    log2 = []
    def hissue(ks):
        a(hl[ks][0]); log2.extend(["x"] * (hl[ks][1] - 1) + [ks])
    for ks in range(HD): hissue(ks)
    for ks in range(18):
        lg = "" if ks < NA else f" lgkmcnt({min(15, 9*min(NA-1, 17-ks))})"
        a(f"s_waitcnt vmcnt({len(log2)-1-log2.index(ks)}){lg}")
        if ks + HD < 18: hissue(ks + HD)
        rd = ard(ks + NA) if ks + NA < 18 else []
        b = AR + 20 * (ks % NA)
        for t in range(5):
            a.mfma(AC2 + 4 * t, b + 4 * t, HB + 4 * ks, "0" if ks == 0 else None)
            for _ in range(1 if t == 0 else 2):
                if rd: a(rd.pop(0))
    a.stamp(6)
    for e in range(8): a(f"v_lshlrev_b32 v{HB+2*e}, 16, v{244+e}\nv_and_b32 v{HB+2*e+1}, 0xffff0000, v{244+e}")
    a(f"v_add_f32 v9, v{AC2}, v{AC2+1}")
    a("v_sub_f32 v28, v19, v9\nv_sub_f32 v29, v19, v9\nv_mov_b32 v19, v18\nv_mov_b32 v10, 0\nv_mov_b32 v11, 0")
    for p in range(2):
        for e in range(0, 8, 2): a(f"v_pk_fma_f32 {v(HB+8*p+e,2)}, {v(HB+8*p+e,2)}, v[18:19], v[28:29]")
        for e in range(0, 8, 2): a(f"v_pk_add_f32 {v(HB+8*p+e,2)}, {v(HB+8*p+e,2)}, {v(AC2+4+8*p+e,2)}")
        for e in range(4): a(f"v_cvt_pk_bf16_f32 v{AR+4*p+e}, v{HB+8*p+2*e}, v{HB+8*p+2*e+1}")
        a(f"buffer_store_dwordx4 {v(AR+4*p,4)}, v2, s[56:59], s11 offen offset:{p*1024} sc1")
    for e in range(0, 16, 2): a(f"v_pk_fma_f32 v[10:11], {v(HB+e,2)}, {v(HB+e,2)}, v[10:11]")
    a("v_add_f32 v10, v10, v11")
    gsum(a, 10, 11)
    a(f"s_mul_i32 s10, s60, 9\ns_add_u32 s10, s10, s61\ns_lshl_b32 s10, s10, 9\ns_lshl_b32 s12, s3, 6\ns_add_u32 s10, s10, s12\ns_add_u32 s10, s10, {SS_OFF}")
    a(f"s_lshl_b32 s12, s8, 6\ns_add_u32 s12, s12, {MEAN_OFF}")
    a("s_mov_b64 exec, 0xffff")
    a("buffer_store_dword v10, v4, s[56:59], s10 offen sc1")
    a("s_cmp_lg_u32 s61, 0\ns_cbranch_scc1 G2_m")
    a("buffer_store_dword v9, v4, s[56:59], s12 offen sc1")
    a("G2_m:")
    a("s_mov_b64 exec, -1")
    a(f"s_sub_u32 s6, s6, {FH_OFF-FX_OFF}")
    consts(a)
    a("s_waitcnt vmcnt(0)")
    last_of(a, cG2, 8, "G_xs")
    a.sadd(6, 7)
    a("G_xs:")
    a.stamp(7)

def gen_stats(a):
    R = 32
    a("v_lshrrev_b32 v2, 2, v1\nv_and_b32 v3, 3, v1\nv_mul_u32_u24 v4, 1152, v2\nv_lshl_add_u32 v4, v3, 4, v4")
    a("s_mul_i32 s7, s6, 18432")
    a.srd(44, P_Q, ACT)
    for i in range(18): a(f"buffer_load_dwordx4 {v(R+4*i,4)}, v4, s[44:47], s7 offen offset:{64*i}")
    a("s_barrier")
    a("v_mov_b32 v8, 0x3f803f80")
    for r in range(4): a(f"v_mov_b32 v{20+r}, 0")
    for i in range(18):
        if i % 3 == 0: a(f"s_waitcnt vmcnt({15-i})")
        for d in range(4):
            a(f"v_dot2c_f32_bf16 v{20+(d&1)}, v{R+4*i+d}, v8\nv_dot2c_f32_bf16 v{22+(d&1)}, v{R+4*i+d}, v{R+4*i+d}")
    a.ldsadd(VC, V1, cG1)
    a("v_add_f32 v20, v20, v21\nv_add_f32 v22, v22, v23\ns_nop 1")
    for qp in ("[1,0,3,2]", "[2,3,0,1]"):
        a(f"v_add_f32_dpp v20, v20, v20 quad_perm:{qp} row_mask:0xf bank_mask:0xf")
        a(f"v_add_f32_dpp v22, v22, v22 quad_perm:{qp} row_mask:0xf bank_mask:0xf")
        a("s_nop 1")
    a(f"v_mul_f32 v26, {fh(-1.0/D)}, v20\nv_mul_f32 v22, {fh(1.0/D)}, v22")
    a("v_fma_f32 v22, -v26, v26, v22\nv_max_f32 v22, 0, v22")
    a(f"v_add_f32 v21, {fh(EPS)}, v22\nv_rsq_f32 v24, v21\ns_nop 0")
    a(f"v_mul_f32 v21, v24, v24\nv_fmaak_f32 v21, v21, v22, {fh(EPS)}\nv_rsq_f32 v21, v21")
    a("v_mul_f32 v25, v26, v24\nv_mul_f32 v27, v21, v24\nv_or_b32 v24, 1, v24")
    a(f"v_lshlrev_b32 v5, 4, v2\ns_lshl_b32 s7, s6, 8\ns_add_u32 s7, s7, {ST1_OFF}")
    a.zcheck(14, 9, False)
    a("s_mov_b32 exec_lo, 0x11111111\ns_mov_b32 exec_hi, 0x11111111")
    a("buffer_store_dwordx4 v[24:27], v5, s[56:59], s7 offen sc1")
    a("s_mov_b64 exec, -1")

def gen_colsum(a):
    R = 32
    a("s_mul_i32 s7, s6, 57\ns_lshr_b32 s7, s7, 9\ns_mul_i32 s8, s7, 9\ns_sub_u32 s8, s6, s8")
    a("v_lshrrev_b32 v2, 3, v1\nv_and_b32 v3, 7, v1\nv_mul_u32_u24 v4, 1152, v2\nv_lshl_add_u32 v4, v3, 4, v4")
    a("s_mul_i32 s10, s7, 165888\ns_lshl_b32 s11, s8, 7\ns_add_u32 s10, s10, s11")
    a.srd(44, P_W1, D * D * 2)
    for i in range(18):
        a(f"buffer_load_dwordx4 {v(R+4*i,4)}, v4, s[44:47], s10 offen\ns_add_u32 s10, s10, 9216")
    a("s_barrier")
    for i in range(18):
        if i % 3 == 0: a(f"s_waitcnt vmcnt({15-i})")
        d = 20 if i == 0 else 104
        for e in range(4): a(f"v_lshlrev_b32 v{d+2*e}, 16, v{R+4*i+e}\nv_and_b32 v{d+2*e+1}, 0xffff0000, v{R+4*i+e}")
        if i:
            for e in range(4): a(f"v_pk_add_f32 {v(20+2*e,2)}, {v(20+2*e,2)}, {v(104+2*e,2)}")
    a.ldsadd(VC, V1, cG1)
    for e in range(8): a(f"v_add_f32_dpp v{20+e}, v{20+e}, v{20+e} row_ror:8 row_mask:0xf bank_mask:0xf")
    for e in range(8): gsum(a, 20 + e, 5)
    for e in range(8): a(f"v_or_b32 v{20+e}, 1, v{20+e}")
    a(f"v_lshlrev_b32 v5, 5, v1\ns_mul_i32 s7, s7, 2304\ns_lshl_b32 s8, s8, 8\ns_add_u32 s7, s7, s8\ns_add_u32 s7, s7, {CSUM_OFF}")
    a.zcheck(14, 9, False)
    a("s_mov_b64 exec, 0xff")
    a("buffer_store_dwordx4 v[20:23], v5, s[56:59], s7 offen sc1\nbuffer_store_dwordx4 v[24:27], v5, s[56:59], s7 offen offset:16 sc1")
    a("s_mov_b64 exec, -1")

def consts(a):
    if "nf1" in OPT: a("s_mov_b32 s4, s96\ns_mov_b32 s5, s97")
    elif "nf2" in OPT:
        a("s_and_b32 s4, s96, 3\ns_lshl_b32 s4, s4, 1\ns_and_b32 s7, s97, 1\ns_add_u32 s4, s4, s7\ns_lshr_b32 s5, s96, 2\ns_lshl_b32 s5, s5, 4\ns_lshr_b32 s7, s97, 1\ns_add_u32 s5, s5, s7")
    else:
        a("s_and_b32 s4, s96, 1\ns_lshl_b32 s4, s4, 2\ns_and_b32 s7, s97, 3\ns_add_u32 s4, s4, s7\ns_lshr_b32 s5, s96, 1\ns_lshl_b32 s5, s5, 3\ns_lshr_b32 s7, s97, 2\ns_add_u32 s5, s5, s7")
    km.consts2(a)

def gen_f(a):
    a("s_cmp_lg_u32 s3, 0\ns_cbranch_scc1 F_pf")
    a("s_mov_b64 exec, 0xffff")
    a(f"v_lshl_add_u32 v7, v1, 2, v{VC}\nv_mov_b32 v8, 0\nds_write2_b32 v7, v8, v8 offset0:0 offset1:16")
    a("s_mov_b64 exec, -1")
    a("F_pf:")
    a(f"s_mul_i32 s61, s3, {CV_SZ}\ns_lshl_b32 s7, s3, 12\ns_add_u32 s7, s7, {FSCR-6*4096}\ns_cmp_ge_u32 s3, 6\ns_cselect_b32 s61, s7, s61")
    a("s_mul_i32 s12, s3, 112\ns_add_u32 s12, s12, s60\ns_mov_b32 s13, s61")
    a("s_waitcnt lgkmcnt(0)")
    a.srd(56, P_WS, WS_BYTES)
    a("s_cmp_lt_u32 s12, 182\ns_cbranch_scc1 F_small")
    a("s_barrier")
    a("s_cmp_ge_u32 s12, 470\ns_cbranch_scc1 F_pt")
    a("s_setprio 2\ns_branch F_kv")
    a("F_small:")
    a("s_setprio 3")
    a("s_cmp_ge_u32 s12, 164\ns_cbranch_scc1 F_mean")
    a("s_cmp_ge_u32 s12, 128\ns_cbranch_scc1 F_cs")
    a("s_and_b32 s6, s12, 7\ns_lshl_b32 s6, s6, 4\ns_lshr_b32 s7, s12, 3\ns_add_u32 s6, s6, s7")
    gen_stats(a)
    a("s_branch F_sm2")
    a("F_cs:\ns_sub_u32 s6, s12, 128")
    gen_colsum(a)
    a("s_branch F_sm2")
    a("F_mean:\ns_sub_u32 s6, s12, 164\ns_barrier")
    km.gen_meantile(a)
    a.ldsadd(VC, V1, cG1)
    a("F_sm2:")
    a.ldsadd(VC, V1, cKV)
    a("s_branch F_done")
    a("F_kv:\ns_sub_u32 s6, s12, 182")
    if "nobulk" in OPT: a("s_sleep 100\ns_branch F_end")
    st = a.stamps; a.stamps = False
    km.gen_kv(a)
    a.stamps = st
    a.stamp(5)
    a(f"s_mul_i32 s11, s8, {FB_STRIDE}\ns_add_u32 s11, s11, {FKC_OFF}")
    a("s_branch F_sig")
    a("F_pt:")
    if "nobulk" in OPT or "nopt" in OPT: a("s_sleep 100\ns_branch F_end")
    a("s_cmp_lt_u32 s60, 22\ns_cselect_b32 s8, 5, 4")
    a.ldswait(VC, 5, 7, "s8", cKV, sleep=4)
    if "fjk" in OPT: a.ldswait(VC, 5, 7, 4, cXs, sleep=4)
    a("F_job:")
    a("s_mov_b32 s99, 0")
    a("F_job2:")
    a("s_sub_u32 s12, s12, 470\ns_and_b32 s62, s12, 7\ns_lshr_b32 s12, s12, 3\ns_mov_b32 s9, s61")
    n0 = len(a.L)
    km.job_setup(a, "JS")
    a.L[n0:] = [x.replace("s96", "s62") for x in a.L[n0:]]
    gen_pretile(a, 128)
    a("s_mov_b32 s6, s98")
    a(f"s_add_u32 s11, s6, {FCNT}")
    a("s_cmp_lg_u32 s99, 0\ns_cbranch_scc1 K6_jret")
    a("F_sig:")
    a.zcheck(14, 13)
    a.ldsadd(VC, V1, cKV)
    a.stamp(6)
    a.sarrive(6, "s100", 8, 11)
    a("F_done:")
    a.stamp(2)
    a("s_cmp_le_u32 s3, 4\ns_cbranch_scc1 F_cv")
    a(f"s_mov_b64 exec, 1\nds_add_rtn_u32 v5, v{VC}, v{V1} offset:{cU}\ns_mov_b64 exec, -1")
    a("s_waitcnt lgkmcnt(0)")
    a("v_readfirstlane_b32 s12, v5")
    a(f"s_mul_i32 s12, s12, 112\ns_add_u32 s12, s12, s60\ns_add_u32 s12, s12, 896\ns_cmp_lt_u32 s12, {902+W4F}\ns_cbranch_scc1 F_job")
    a("s_cmp_lg_u32 s3, 5\ns_cbranch_scc1 F_end\ns_cmp_ge_u32 s60, 16\ns_cbranch_scc1 F_end")
    a("F_cv:")
    if "nobulk" in OPT: a("s_branch F_end")
    a("v_lshlrev_b32 v2, 4, v1\nv_add_u32 v3, 4096, v2")
    a("s_lshl_b32 s52, s60, 2\ns_add_u32 s52, s52, s3\ns_mul_i32 s7, s3, 112\ns_add_u32 s7, s7, s60\ns_cmp_ge_u32 s3, 4\ns_cselect_b32 s52, s7, s52\ns_mov_b32 s53, s61")
    a(f"s_lshr_b32 s8, s52, 6\ns_mul_i32 s9, s8, 86\ns_lshr_b32 s9, s9, 8\ns_mul_i32 s9, s9, {FB_STRIDE-384}\ns_lshl_b32 s8, s8, 7\ns_add_u32 s8, s8, s9\ns_add_u32 s8, s8, {FKV_OFF}")
    a.srd(48, P_SSMK, ACT)
    a(f"s_lshl_b32 s10, s52, 12\ns_add_u32 m0, s53, {4*4160+512}\ns_mul_i32 s54, s52, {KV_PITCH}\ns_add_u32 s54, s54, {KV_OFF}\ns_add_u32 s11, s54, 4")
    for i in range(4): a(f"buffer_load_dwordx4 v2, s[48:51], s10 offen offset:{i*1024} nt lds")
    a.vpoll(8, 1, 14, 13, 4)
    a.stamp(3)
    a.ldsadd(VC, V1, cXs)
    a("s_mov_b32 m0, s53\ns_nop 0")
    for i in range(4): a(f"buffer_load_dwordx4 v2, s[56:59], s54 offen offset:{i*1024} sc1 lds")
    a("s_mov_b64 exec, 7\ns_add_u32 m0, s53, 4096\ns_nop 0")
    a("buffer_load_dwordx4 v3, s[56:59], s54 offen sc1 lds")
    a(f"s_add_u32 m0, s53, {2*4160+4096}\ns_nop 0")
    a("buffer_load_dwordx4 v3, s[56:59], s11 offen sc1 lds")
    a("s_mov_b64 exec, -1")
    st = a.stamps; a.stamps = False
    kb4.gen_conv(a, None, " sc1", "none")
    a.stamps = st
    a.stamp(4)
    a(f"s_lshr_b32 s6, s6, 4\ns_mul_i32 s6, s6, 57\ns_lshr_b32 s6, s6, 9\ns_mul_i32 s6, s6, {FB_STRIDE}\ns_add_u32 s6, s6, {FY_OFF}")
    a("s_waitcnt vmcnt(0)")
    a.sadd(6, 7)
    a("F_end:")
    if "g1t" in OPT: a.end()
    a("v_lshlrev_b32 v2, 4, v1\nv_add_u32 v3, 4096, v2\nv_lshlrev_b32 v4, 2, v1\nv_mov_b32 v5, 2")
    consts(a)
    a("s_cmp_ge_u32 s3, 4\ns_cbranch_scc1 K6_q")
    a.ldsadd(VC, 5, cG2)
    a.stamp(7)

def gen_k6(a, name):
    fine = "fine" in OPT
    a(f".p2align 8\n{name}:\nK6_start:")
    a("s_cmp_ge_u32 s2, 256\ns_cbranch_scc1 K6_end")
    a.stamp_init()
    a.kernargs()
    a("v_lshrrev_b32 v2, 6, v0\nv_and_b32 v1, 63, v0")
    a("v_readfirstlane_b32 s3, v2")
    a("s_and_b32 s96, s2, 7\ns_lshr_b32 s97, s2, 3\ns_mov_b32 s101, 1")
    a(f"v_mov_b32 v{VC}, {CNT}\nv_mov_b32 v{V1}, 1")
    a("s_sub_u32 s60, s2, 144\ns_cmp_lt_u32 s97, 18\ns_cbranch_scc1 K6_g")
    a("s_cmp_lt_u32 s3, 6\ns_cbranch_scc1 K6_f\ns_cmp_eq_u32 s3, 7\ns_cbranch_scc1 K6_pf")
    a(f"s_cmp_ge_u32 s60, {FLAG_WAVES}\ns_cbranch_scc1 K6_f")
    a(f"v_lshrrev_b32 v7, 5, v1\nv_mul_u32_u24 v7, {FB_STRIDE-512}, v7\nv_lshl_add_u32 v7, v1, 4, v7\nv_lshlrev_b32 v6, 4, v1")
    a("v_mov_b32 v8, 0\nv_mov_b32 v9, 0\nv_mov_b32 v10, 0\nv_mov_b32 v11, 0")
    a(f"s_lshl_b32 s8, s60, 12\ns_add_u32 s8, s8, {W2M_OFF}\ns_mul_i32 s9, s60, {4*FB_STRIDE}\ns_add_u32 s9, s9, {FLAG_OFF}\ns_add_u32 s10, s9, {2*FB_STRIDE}")
    a("s_waitcnt lgkmcnt(0)")
    a.srd(56, P_WS, WS_BYTES)
    for i in range(4): a(f"buffer_store_dwordx4 v[8:11], v6, s[56:59], s8 offen offset:{1024*i} sc1")
    a("buffer_store_dwordx4 v[8:11], v7, s[56:59], s9 offen sc1\nbuffer_store_dwordx4 v[8:11], v7, s[56:59], s10 offen sc1")
    a("s_mov_b32 s8, 1\ns_waitcnt vmcnt(0)")
    a(f"s_atomic_add s8, {s(P_DBG,2)}, 128 glc\ns_waitcnt lgkmcnt(0)\ns_cmp_lg_u32 s8, {FLAG_WAVES-1}\ns_cbranch_scc1 K6_f")
    a(f"s_atomic_add s101, {s(P_DBG,2)}, 0")
    a.stamp(1)
    a("s_branch K6_f")
    a("K6_pf:")
    a("s_getpc_b64 s[8:9]\nF_pc:")
    a("s_sub_u32 s10, s97, 18\nv_min_u32 v2, 39, v1\nv_mul_u32_u24 v2, 14, v2\nv_add_lshl_u32 v2, s10, v2, 7\nv_min_u32 v2, CODE_END-F_pc-4, v2")
    a("global_load_dword v31, v2, s[8:9]")
    a("s_branch K6_f")
    a("K6_g:")
    a("s_cmp_ge_u32 s97, 9\ns_cselect_b32 s62, 1, 0\ns_mul_i32 s61, s62, 9\ns_sub_u32 s61, s97, s61\ns_lshl_b32 s60, s96, 1\ns_add_u32 s60, s60, s62")
    gen_g(a)
    a("s_cmp_ge_u32 s3, 4\ns_cbranch_scc1 K6_q")
    a("s_branch K6_p")
    a("K6_f:")
    gen_f(a)
    A3 = [(2, 0), (2, 1024), (2, 2048)]
    stP = Stream(a, [(64, A3, " sc1"), (65, A3, " sc1"), (66, [(2, 0), (3, 3072)], " sc1"), (68, [(2, 0), (3, 3072)], " sc1")])
    stQ = Stream(a, [(64, A3, " sc1"), (66, [(2, 0), (2, 1024), (2, 2048), (2, 3072), (3, 0)], " sc1")])
    def addrs():
        a(f"v_mov_b32 v6, v2\nv_add_u32 v7, 36864, v2\nv_add_u32 v8, {ML_H}, v2\nv_add_u32 v9, {ML_H+36864}, v2")
        h_addr(a, 71, 10, 12)
    def rk():
        a(f"v_and_b32 v5, 15, v1\nv_lshlrev_b32 v5, 4, v5\nv_add_u32 v5, {RM}, v5")
        for m in range(4): a(f"ds_read_b32 v{GT+m}, v5 offset:{256*m}")
        a("s_waitcnt lgkmcnt(0)")
        for m in range(4):
            r = GT + m
            a(f"v_mul_f32 v{KC+2*m}, {fh(GC0)}, v{r}\nv_mul_f32 v{r}, v{r}, v{r}\nv_mul_f32 v{r}, {fh(0.044715)}, v{r}\nv_mul_f32 v{KC+2*m+1}, v{r}, v{KC+2*m}")
    a("K6_p:")
    a("s_setprio 2")
    a("s_cmp_lg_u32 s3, 1\ns_cbranch_scc1 KB_w3")
    a("s_add_u32 s6, s70, 128")
    if not ({"nobulk", "nopt"} & set(OPT)): a.cpoll(6, 1, 48, 13, 8)
    a.ldsadd(VC, V1, cW3a)
    a("KB_w3:")
    a.ldswait(VC, 5, 7, 1, cW3a)
    PRE = optval("PPRE", NS)
    paced(a, stP, PRE, optval("PPACE", 8))
    addrs()
    a(f"s_lshr_b32 s11, s5, 1\ns_mul_i32 s6, s11, {FB_STRIDE}\ns_add_u32 s6, s6, {FX_OFF}")
    a(f"s_mul_i32 s9, s3, 18432\ns_mov_b32 m0, s9\ns_mul_i32 s7, s5, 73728\ns_add_u32 s7, s7, s9\ns_add_u32 s7, s7, {X1_OFF}")
    a.stamp(8)
    a("s_cmp_lg_u32 s3, 0\ns_cbranch_scc1 KB_xw")
    a.cpoll(6, 9, 44, 13, optval('FXS', 1))
    a.ldswait(VC, 5, 8, 8, cG2)
    a.ldsadd(VC, V1, cFX)
    a("s_branch KB_xg")
    a("KB_xw:")
    a.ldswait(VC, 5, 8, 1, cFX)
    a("KB_xg:")
    a.stamp(9)
    def xdma(i):
        if i and i % 4 == 0: a("s_add_u32 m0, m0, 4096\ns_add_u32 s7, s7, 4096")
        a(f"buffer_load_dwordx4 v2, s[56:59], s7 offen offset:{(i%4)*1024} sc1 lds")
        stP.other(f"x{i}")
    XP = optval("XP", 6)
    for i in range(XP): xdma(i)
    for i in range(NS - PRE): stP.issue()
    a(f"s_mul_i32 s6, s11, 4608\ns_and_b32 s8, s5, 1\ns_lshl_b32 s8, s8, 8\ns_add_u32 s6, s6, s8\ns_add_u32 s6, s6, {SS_OFF}\ns_add_u32 s11, s6, 4096")
    a(f"s_lshl_b32 s8, s5, 8\ns_add_u32 s8, s8, {MEAN_OFF}\ns_lshl_b32 s9, s5, 10\ns_add_u32 s9, s9, {ST1_OFF}")
    late = [(lambda i=i: xdma(i)) for i in range(XP, 18)]
    def stat(ins, tag="x"):
        a(ins); stP.other(tag)
    late += [(lambda i=i: stat(f"buffer_load_dword v{GT+i}, v4, s[56:59], s6 offen offset:{512*i} sc1")) for i in range(8)]
    late += [lambda: stat(f"buffer_load_dword v{GT+8}, v4, s[56:59], s11 offen sc1")]
    late += [lambda: stat(f"buffer_load_dword v{GT+13}, v4, s[56:59], s8 offen sc1")]
    late += [lambda: stat(f"buffer_load_dwordx2 {v(GT+14,2)}, v2, s[56:59], s9 offen sc1", "st")]
    for i in range(optval("XE", 4)): late.pop(0)()
    a(f"s_waitcnt vmcnt({stP.younger(f'x{XP-1}')})")
    a.subbar(VC, 5, 10, 4, off=cX1)
    a.stamp(10 if not fine else 1)
    def xhook(ks, i):
        if i in (0, 4, 8, 10, 11, 3) and late: late.pop(0)()
    mphase(a, stP, 0, 6, 0, XP, prio=2, hook=xhook)
    assert not late
    a(f"s_waitcnt vmcnt({stP.younger('st')})")
    for i in range(1, 9): a(f"v_add_f32 v{GT}, v{GT}, v{GT+i}")
    a(f"v_mov_b32 v{GT+1}, {fh(1.0/D)}\nv_fmaak_f32 v{GT}, v{GT+1}, v{GT}, {fh(EPS)}")
    a(f"v_rsq_f32 v{GT+12}, v{GT}")
    a(f"v_add_u32 v5, {RM}, v2\ns_nop 0")
    a(f"ds_write_b128 v5, {v(GT+12,4)}")
    a.subbar(VC, 5, 7, 4, off=cX2)
    kw = 18 - (NS + 2) // 3
    def w3hook(ks, i):
        if ks == kw - 1 and i == 10: a.ldswait(VC, 5, 7, 1, cW3)
    mphase(a, stP, 0, 6, XP, 18, first=False, prio=2, hook=w3hook)
    if fine: a.stamp(2)
    rk()
    a.ldswait(VC, 5, 7, 4, cSide)
    gphase(a, 10, 12)
    a.ldsadd(VC, V1, cH1)
    if fine: a.stamp(3)
    a("s_add_u32 s71, s71, 24")
    h_addr(a, 71, 10, 12)
    a.ldswait(VC, 5, 7, 1, cW4)
    mphase(a, stP, 1, 6, prio=1)
    a.ldsadd(VC, V1, cA)
    if fine: a.stamp(4)
    def sthook(i):
        if i == 1:
            a.ldswait(VC, 5, 7, 4, cA)
            a.ldswait(VC, 5, 7, 8, cH1)
            stage_x(a)
            stage_y(a)
    gphase(a, 10, 12, sthook)
    a("s_waitcnt vmcnt(0)")
    a.subbar(VC, 5, 7, 4, off=cH2)
    if fine: a.stamp(5)
    mphase(a, stP, 2, 8)
    if fine: a.stamp(6)
    a("s_add_u32 s6, s67, 14336\ns_add_u32 s7, s69, 128")
    pend = []
    for k, (t, mp) in enumerate([(0, 0), (0, 1), (1, 0), (1, 1)]):
        pend += pstore(a, MACC, t, mp, 67 if t == 0 else 6, mp * 1024, k)
    state = {"flag": False}
    def hook(ks, i):
        if (ks >= 1 or i >= 3) and i not in (1, 5) and pend:
            ins = pend.pop(0); a(ins)
            if ins.startswith("buffer"): stP.other("e" if not pend else "x")
        if not pend and not state["flag"] and ks == optval("EFLAG", 14) and i == 0:
            a(f"s_waitcnt vmcnt({stP.younger('e')})")
            a.setflag("s7", 14); stP.other()
            state["flag"] = True
    mphase(a, stP, 3, 8, acc=MACC + 32, hook=hook)
    assert state["flag"]
    if fine: a.stamp(7)
    a("s_setprio 3")
    a.nop(8)
    for k, (t, mp) in enumerate([(0, 0), (0, 1), (1, 0), (1, 1)]):
        for ins in pstore(a, MACC + 32, t, mp, 67 if t == 0 else 6, 2048 + mp * 1024, k): a(ins)
    a("s_add_u32 s7, s69, 256")
    a("s_waitcnt vmcnt(0)")
    a.sadd(7, 6)
    a.end()
    a("K6_q:")
    a("s_setprio 0")
    a.stamp(8 if not fine else 2)
    a("s_cmp_lg_u32 s3, 7\ns_cbranch_scc1 KB_q3")
    a("s_add_u32 s8, s70, 256")
    if not ({"nobulk", "nopt"} & set(OPT)): a.cpoll(8, 1, 44, 13, 16)
    a.ldsadd(VC, V1, cW3)
    a("KB_q3:")
    a.ldswait(VC, 5, 7, 1, cW3, sleep=2)
    QW = optval("QRW", -1)
    if QW >= 0: a.ldswait(VC, 5, 7, 4, QW, sleep=2)
    paced(a, stQ, NS, optval("QPACE", 4))
    a("s_waitcnt vmcnt(0)")
    a(f"s_lshl_b32 s12, s3, 8\ns_add_u32 s12, s12, s2\ns_sub_u32 s12, s12, 1792\ns_cmp_ge_u32 s12, {432-W4F}\ns_cbranch_scc1 K6_nj")
    W4W = optval("W4W", cX2)
    if W4W >= 0: a.ldswait(VC, 5, 7, {cG2: 8, cFX: 1}.get(W4W, 4), W4W, sleep=2)
    a(f"s_add_u32 s12, s12, {902+W4F}\ns_lshl_b32 s61, s3, 12\ns_add_u32 s61, s61, {FSCR-6*4096}\ns_mov_b32 s99, 1\ns_setprio {optval('J2P', 3)}")
    if not ({"nobulk", "nopt"} & set(OPT)): a("s_branch F_job2")
    a("K6_jret:")
    a("s_waitcnt vmcnt(0)")
    a.sarrive(6, "s100", 8)
    a("s_setprio 0")
    a("K6_nj:")
    a.ldsadd(VC, V1, cSide)
    a.stamp(9 if not fine else 3)
    addrs()
    a.ldswait(VC, 5, 7, 4, cX2)
    rk()
    mphase(a, stQ, 0, 6, 0, kw, prio=2)
    a("s_cmp_lg_u32 s3, 7\ns_cbranch_scc1 KB_q2c")
    if not ({"nobulk", "nopt"} & set(OPT)): a.cpoll(70, 1, 44, 13, 8)
    a.ldsadd(VC, V1, cW4)
    a("KB_q2c:")
    a.ldswait(VC, 5, 7, 1, cW4)
    mphase(a, stQ, 0, 6, kw, 18, first=False, prio=2)
    a.ldswait(VC, 5, 7, 4, cSide)
    if fine: a.stamp(4)
    a(f"s_lshr_b32 s8, s4, 1\ns_mul_i32 s8, s8, {FB_STRIDE}\ns_add_u32 s8, s8, {FY_OFF}")
    def yhook(i):
        if i == 3:
            a("s_cmp_lg_u32 s3, 7\ns_cbranch_scc1 KB_ys")
            if not ({"nobulk", "nopt"} & set(OPT)): a.vpoll(8, 144, 14, 13, 32)
            a("KB_ys:")
    gphase(a, 10, 12, yhook)
    a.subbar(VC, 5, 7, 8, off=cH1)
    if fine: a.stamp(5)
    mphase(a, stQ, 1, 8, 0, 12, prio=1)
    a.ldswait(VC, 5, 7, 4, cH2)
    if fine: a.stamp(7)
    mphase(a, stQ, 1, 8, 12, 18, first=False, prio=1)
    a(f"s_setprio {optval('QT', 1)}")
    a.stamp(10)
    a.nop(8)
    for k in range(10):
        if k and k % 4 == 0: a("s_add_u32 s67, s67, 4096")
        for x in pstore(a, MACC, k >> 1, k & 1, 67, (k % 4) * 1024, k): a(x)
    a("s_waitcnt vmcnt(0)")
    a.sadd(69, 6)
    a(f"s_setprio {optval('QF', 0)}")
    st = a.stamps; a.stamps = st and fine
    gen_final(a)
    a.stamps = st
    a.end()
    a("K6_end:")
    a("s_endpgm")
```

```python
import sys
from common import *
import k6
NAME = "recurrent_scan__ssm_conv_h3__mixer_s_mlp__prompt_kernel"
HDR = open("recurrent_scan__ssm_conv_h3__mixer_s_mlp__prompt.s.ref").read().split("; Override launch geometry")[0]
def build(path, stamps=False):
    a = Asm()
    a.stamps = stamps
    k6.gen_k6(a, NAME)
    a("CODE_END:")
    out = HDR
    out += f"; @launch grid=(256,1,1) block=(512,1,1) lds={k6.K6_LDS}\n"
    out += f'.amdgcn_target "amdgcn-amd-amdhsa--gfx950"\n.text\n.globl {NAME}\n.type {NAME},@function\n'
    out += a.text()
    out += '.section .rodata,"a"\n'
    out += desc(NAME, 256, 102)
    open(path, "w").write(out)
if __name__ == "__main__":
    build(sys.argv[1], len(sys.argv) <= 2)
```

```python
S, D, F = 2048, 576, 4608
ACT = S * D * 2
H_OFF    = 0x0000000
X1_OFF   = 0x0240000
KV_OFF   = 0x0480000
KV_PITCH = 4224
Y_OFF    = 0x0700000
W2M_OFF  = 0x0940000
CSUM_OFF = W2M_OFF + 3072
ST1_OFF  = CSUM_OFF + 9216
CLR_KB   = 44
SS_OFF   = 0x0950000
MEAN_OFF = 0x0968000
FLAG_OFF = 0x0970000
FB_STRIDE = 4352
FX_OFF   = FLAG_OFF
FP_OFF   = FLAG_OFF + 128
FW4_OFF  = FLAG_OFF + 32 * FB_STRIDE
FY_OFF   = FLAG_OFF + 40 * FB_STRIDE
FH_OFF   = FLAG_OFF + 16 * FB_STRIDE
FW3A_OFF = FW4_OFF + 128
FW3R_OFF = FW4_OFF + 256
FKV_OFF  = FY_OFF + 128
FM_OFF   = FY_OFF + 3 * FB_STRIDE + 128
FCNT = 12 * FB_STRIDE
FKC_OFF  = FLAG_OFF + 56 * FB_STRIDE
FLAG_WAVES = 17
W3T_OFF  = 0x0A00000
W4T_OFF  = 0x0F10000
PART_OFF = 0x1420000
STAMP_OFF = 0x2620000
WS_BYTES = 0x2700000
WSLICE = 18 * 36 * 1024

EPS = 1e-5
import struct, os
def f2u(x): return struct.unpack("<I", struct.pack("<f", x))[0]
def fh(x): return "0x%08x" % f2u(x)

def v(n, c=1): return f"v{n}" if c == 1 else f"v[{n}:{n+c-1}]"
def s(n, c=1): return f"s{n}" if c == 1 else f"s[{n}:{n+c-1}]"

P_Q, P_K, P_V, P_SHK, P_SSMK, P_SSMD, P_BX, P_W1, P_W2, P_W3, P_W4, P_OUT, P_DBG, P_WS = [16 + 2 * i for i in range(14)]

class Asm:
    def __init__(self):
        self.L = []
        self.n = 0
        self.stamps = False
        self.kid = 0
    def stamp(self, i):
        if self.stamps: self(f"{'s_memtime' if 'cyc' in os.environ.get('OPT','') else 's_memrealtime'} s[{72+2*i}:{73+2*i}]")
    def stamp_init(self):
        if self.stamps:
            for i in range(12): self(f"s_mov_b32 s{72+2*i}, 0")
            self.stamp(0)
    def end(self, i=11):
        if self.stamps:
            self("s_waitcnt vmcnt(0) lgkmcnt(0)")
            self.stamp(i)
            self.srd(56, P_WS, WS_BYTES)
            self("s_mov_b64 exec, 1")
            self(f"s_lshl_b32 s6, s2, 3\ns_add_u32 s6, s6, s3\ns_lshl_b32 s6, s6, 6\ns_add_u32 s6, s6, {STAMP_OFF + self.kid * 0x28000}")
            self("v_mov_b32 v4, 0\ns_waitcnt lgkmcnt(0)")
            for q in range(3):
                for e in range(4): self(f"v_mov_b32 v{8+4*q+e}, s{72+8*q+2*e}")
                self(f"buffer_store_dwordx4 v[{8+4*q}:{11+4*q}], v4, s[56:59], s6 offen offset:{16*q}")
            if os.environ.get("HOLD"):
                idx, wid = os.environ["HOLD"].split(",")
                l = self.lab("HS"); l2 = self.lab("HL")
                self(f"s_lshl_b32 s6, s2, 3\ns_add_u32 s6, s6, s3\ns_cmp_lg_u32 s6, {wid}\ns_cbranch_scc1 {l}")
                self(f"{l2}:\ns_sleep 1\ns_memrealtime s[8:9]\ns_waitcnt lgkmcnt(0)\ns_sub_u32 s8, s8, s{72+2*int(idx)}\ns_cmp_lt_u32 s8, 10000\ns_cbranch_scc1 {l2}")
                self(f"{l}:")
            if "dbgst" in os.environ.get("OPT", ""):
                l = self.lab("DS")
                self(f"s_lshl_b32 s6, s2, 3\ns_add_u32 s6, s6, s3\ns_cmp_lg_u32 s6, {os.environ.get('DBGW', '41')}\ns_cbranch_scc1 {l}")
                for i in range(1, 12):
                    self(f"v_subrev_u32 v20, s72, v{8+i}\nglobal_store_dword v4, v20, {s(P_DBG,2)} offset:{4+4*i}")
                self(f"{l}:")
        self("s_endpgm")
    def __call__(self, t):
        for line in t.split("\n"):
            line = line.strip()
            if line:
                self.L.append(("" if line.endswith(":") or line.startswith(".") else "  ") + line)
    def lab(self, p="L"):
        self.n += 1
        return f"{p}_{self.n}"
    def text(self): return "\n".join(self.L) + "\n"
    def kernargs(self):
        self("s_load_dwordx16 s[16:31], s[0:1], 0")
        self("s_load_dwordx8 s[32:39], s[0:1], 64")
        self("s_load_dwordx4 s[40:43], s[0:1], 96")
    def srd(self, d, p, nbytes):
        self(f"s_mov_b32 s{d}, s{p}\ns_mov_b32 s{d+1}, s{p+1}\ns_mov_b32 s{d+2}, {nbytes}\ns_mov_b32 s{d+3}, 0x20000")
    def mfma(self, d, a, b, c=None):
        cc = v(d, 4) if c is None else c
        self(f"v_mfma_f32_16x16x32_bf16 {v(d,4)}, {v(a,4)}, {v(b,4)}, {cc}")
    def nop(self, n):
        while n > 0:
            k = min(n, 16)
            self(f"s_nop {k-1}")
            n -= k
    def prefetch_code(self, endlabel, vtmp, vdst, stmp):
        l = self.lab("PF")
        self(f"s_getpc_b64 {s(stmp,2)}")
        self(f"{l}:")
        self(f"v_and_b32 {v(vtmp)}, 15, v0")
        self(f"v_lshlrev_b32 {v(vtmp)}, 5, {v(vtmp)}")
        self(f"s_lshr_b32 s{stmp+2}, s2, 3")
        self(f"v_add_lshl_u32 {v(vtmp)}, s{stmp+2}, {v(vtmp)}, 7")
        self(f"v_min_u32 {v(vtmp)}, {endlabel}-{l}-4, {v(vtmp)}")
        self(f"global_load_dword {v(vdst)}, {v(vtmp)}, {s(stmp,2)} nt")
    def subbar(self, vaddr, vtmp, stmp, n, off=0):
        self("s_mov_b64 exec, 1")
        self(f"v_mov_b32 {v(vtmp)}, 1")
        self(f"ds_add_u32 {v(vaddr)}, {v(vtmp)} offset:{off}")
        self("s_mov_b64 exec, -1")
        self.ldswait(vaddr, vtmp, stmp, n, off)
    def ldswait(self, vaddr, vtmp, stmp, n, off=0, sleep=1):
        l = self.lab("LW"); d = self.lab("LD")
        self(f"{l}:")
        self(f"ds_read_b32 {v(vtmp)}, {v(vaddr)} offset:{off}")
        self("s_waitcnt lgkmcnt(0)")
        self(f"v_readfirstlane_b32 s{stmp}, {v(vtmp)}")
        self(f"s_cmp_ge_u32 s{stmp}, {n}")
        self(f"s_cbranch_scc1 {d}")
        self(f"s_sleep {max(sleep, int(os.environ.get('LSLEEP', '1')))}")
        self(f"s_branch {l}")
        self(f"{d}:")
    def poll(self, vaddr, soff, vtmp, stmp, sleep=1):
        l = self.lab("PL"); d = self.lab("PD")
        self(f"s_mov_b32 s{stmp}, 0x40000")
        self(f"{l}:")
        self(f"buffer_load_dword {v(vtmp)}, {v(vaddr)}, s[56:59], {soff} offen sc1")
        self("s_waitcnt vmcnt(0)")
        self(f"v_cmp_eq_u32 vcc, 0, {v(vtmp)}")
        self(f"s_cbranch_vccz {d}")
        self(f"s_sleep {sleep}")
        self(f"s_sub_u32 s{stmp}, s{stmp}, 1")
        self(f"s_cbranch_scc0 {l}")
        self(f"{d}:")
    def spoll(self, n, soff, sd, stmp, sleep=1):
        l = self.lab("SP"); d = self.lab("SD")
        self(f"s_mov_b32 s{stmp}, 0x40000")
        self(f"{l}:")
        self(f"s_load_dwordx{n} {s(sd,n)}, {s(P_WS,2)}, s{soff} glc")
        self("s_waitcnt lgkmcnt(0)")
        k = n
        while k > 2:
            k //= 2
            for i in range(0, k, 2): self(f"s_and_b64 {s(sd+i,2)}, {s(sd+i,2)}, {s(sd+k+i,2)}")
        self(f"s_and_b32 s{sd}, s{sd}, s{sd+1}")
        self(f"s_cbranch_scc1 {d}")
        if sleep: self(f"s_sleep {sleep}")
        self(f"s_sub_u32 s{stmp}, s{stmp}, 1")
        self(f"s_cbranch_scc0 {l}")
        self(f"{d}:")
    def cpoll(self, soff, n, sd, stmp, sleep=1):
        l = self.lab("CP"); d = self.lab("CD")
        self(f"s_mov_b32 s{stmp}, 0x40000")
        self(f"{l}:")
        self(f"s_load_dword s{sd}, {s(P_WS,2)}, s{soff} glc")
        self("s_waitcnt lgkmcnt(0)")
        self(f"s_cmp_ge_u32 s{sd}, {n}")
        self(f"s_cbranch_scc1 {d}")
        if sleep: self(f"s_sleep {sleep}")
        self(f"s_sub_u32 s{stmp}, s{stmp}, 1")
        self(f"s_cbranch_scc0 {l}")
        self(f"{d}:")
    def vpoll(self, soff, n, vtmp, stmp, sleep=8):
        l = self.lab("VP"); d = self.lab("VD")
        self(f"s_mov_b32 s{stmp}, 0x20000\nv_mov_b32 {v(vtmp)}, 0")
        self(f"{l}:")
        self(f"buffer_load_dword {v(vtmp+1)}, {v(vtmp)}, s[56:59], s{soff} offen sc1")
        self("s_waitcnt vmcnt(0)")
        self(f"v_cmp_gt_u32 vcc, {n}, {v(vtmp+1)}")
        self(f"s_cbranch_vccz {d}")
        self(f"s_sleep {sleep}")
        self(f"s_sub_u32 s{stmp}, s{stmp}, 1")
        self(f"s_cbranch_scc0 {l}")
        self(f"{d}:")
    def zcheck(self, vtmp, stmp, drain=True):
        l = self.lab("ZP"); d = self.lab("ZD")
        self(f"s_load_dword s{stmp}, {s(P_DBG,2)}, 0")
        self("s_waitcnt vmcnt(0) lgkmcnt(0)" if drain else "s_waitcnt lgkmcnt(0)")
        self(f"s_cmp_lg_u32 s{stmp}, 0\ns_cbranch_scc1 {d}")
        self(f"s_mov_b32 s{stmp}, 0x20000\nv_mov_b32 {v(vtmp)}, 0")
        self(f"{l}:")
        self(f"global_load_dword {v(vtmp+1)}, {v(vtmp)}, {s(P_DBG,2)} sc1")
        self("s_waitcnt vmcnt(0)")
        self(f"v_cmp_eq_u32 vcc, 0, {v(vtmp+1)}")
        self(f"s_cbranch_vccz {d}")
        self("s_sleep 4")
        self(f"s_sub_u32 s{stmp}, s{stmp}, 1")
        self(f"s_cbranch_scc0 {l}")
        self(f"{d}:")
    def sarrive(self, soff, n, stmp, scnt=None):
        d = self.lab("SA")
        if scnt is None:
            scnt = stmp + 1
            self(f"s_add_u32 s{scnt}, s{soff}, {FCNT}")
        self(f"s_mov_b32 s{stmp}, 1\ns_atomic_add s{stmp}, {s(P_WS,2)}, s{scnt} glc")
        self(f"s_waitcnt lgkmcnt(0)\ns_add_u32 s{stmp}, s{stmp}, 1\ns_cmp_lg_u32 s{stmp}, {n}\ns_cbranch_scc1 {d}")
        self(f"s_atomic_add s101, {s(P_WS,2)}, s{soff}")
        self(f"{d}:")
    def sadd(self, soff, stmp):
        self(f"s_atomic_add s101, {s(P_WS,2)}, s{soff}")
    def arrive(self, soff, n, vtmp, stmp):
        d = self.lab("AR")
        self("s_mov_b64 exec, 1")
        self(f"v_mov_b32 {v(vtmp)}, {FCNT}\nv_mov_b32 {v(vtmp+1)}, 1")
        self(f"buffer_atomic_add {v(vtmp+1)}, {v(vtmp)}, s[56:59], s{soff} offen sc0 sc1")
        self("s_waitcnt vmcnt(0)")
        self(f"v_readfirstlane_b32 s{stmp}, {v(vtmp+1)}")
        self(f"s_add_u32 s{stmp}, s{stmp}, 1\ns_cmp_lg_u32 s{stmp}, {n}")
        self(f"s_cbranch_scc1 {d}")
        self(f"v_mov_b32 {v(vtmp)}, 0\nv_mov_b32 {v(vtmp+1)}, 1")
        self(f"buffer_store_dword {v(vtmp+1)}, {v(vtmp)}, s[56:59], s{soff} offen sc1")
        self("s_waitcnt vmcnt(0)")
        self(f"{d}:")
        self("s_mov_b64 exec, -1")
    def addflag(self, soff, vtmp):
        self("s_mov_b64 exec, 1")
        self(f"v_mov_b32 {v(vtmp)}, 0\nv_mov_b32 {v(vtmp+1)}, 1")
        self(f"buffer_atomic_add {v(vtmp+1)}, {v(vtmp)}, s[56:59], {soff} offen sc1")
        self("s_mov_b64 exec, -1")
    def ldsadd(self, vaddr, vone, off):
        self("s_mov_b64 exec, 1")
        self(f"ds_add_u32 {v(vaddr)}, {v(vone)} offset:{off}")
        self("s_mov_b64 exec, -1")
    def setflag(self, soff, vtmp):
        self("s_mov_b64 exec, 1")
        self(f"v_mov_b32 {v(vtmp)}, 0\nv_mov_b32 {v(vtmp+1)}, 1")
        self(f"buffer_store_dword {v(vtmp+1)}, {v(vtmp)}, s[56:59], {soff} offen sc1")
        self("s_mov_b64 exec, -1")

def desc(name, nv, ns=100):
    nv = (nv + 7) // 8 * 8
    return f""".p2align 6
.amdhsa_kernel {name}
  .amdhsa_next_free_vgpr {nv}
  .amdhsa_next_free_sgpr {ns}
  .amdhsa_accum_offset {min(nv, 256)}
  .amdhsa_group_segment_fixed_size 0
  .amdhsa_kernarg_size 112
  .amdhsa_user_sgpr_count 2
  .amdhsa_user_sgpr_kernarg_segment_ptr 1
  .amdhsa_system_sgpr_workgroup_id_x 1
  .amdhsa_float_denorm_mode_32 3
.end_amdhsa_kernel
"""

GC0 = -2.0 * 0.7978845608028654 * 1.4426950408889634
GC1 = GC0 * 0.044715
LOG2E = 1.4426950408889634

import os
OPT = os.environ.get("OPT", "").split(",")
def optval(name, default):
    return int(os.environ.get(name, default))

def gelu_vals(a, regs, tmps, k0, k1):
    n = len(regs)
    K0 = k0 if isinstance(k0, list) else [k0] * n
    K1 = k1 if isinstance(k1, list) else [k1] * n
    nt = len(tmps)
    for b in range(0, n, nt):
        idx = list(range(b, min(b + nt, n)))
        for i in idx: a(f"v_mul_f32 {v(tmps[i-b])}, {v(regs[i])}, {v(regs[i])}")
        for i in idx: a(f"v_fma_f32 {v(tmps[i-b])}, {v(tmps[i-b])}, {K1[i]}, {K0[i]}")
        for i in idx: a(f"v_mul_f32 {v(tmps[i-b])}, {v(tmps[i-b])}, {v(regs[i])}")
        for i in idx: a(f"v_exp_f32 {v(tmps[i-b])}, {v(tmps[i-b])}")
        for i in idx: a(f"v_add_f32 {v(tmps[i-b])}, 1.0, {v(tmps[i-b])}")
        for i in idx: a(f"v_rcp_f32 {v(tmps[i-b])}, {v(tmps[i-b])}")
        for i in idx: a(f"v_mul_f32 {v(regs[i])}, {v(tmps[i-b])}, {v(regs[i])}")

def gsum(a, r, t):
    a(f"v_mov_b32 v{t}, v{r}\ns_nop 1\nv_permlane32_swap_b32 v{r}, v{t}\nv_add_f32 v{r}, v{r}, v{t}")
    a(f"v_mov_b32 v{t}, v{r}\ns_nop 1\nv_permlane16_swap_b32 v{r}, v{t}\nv_add_f32 v{r}, v{r}, v{t}")

def gen_pretile(a, R=32):
    a("v_lshrrev_b32 v18, 3, v1\nv_and_b32 v19, 7, v1")
    a("v_mul_lo_u32 v20, v18, s7")
    a("v_lshl_add_u32 v20, v19, 4, v20")
    a("s_lshl_b32 s10, s7, 3")
    for i in range(3):
        if i: a("s_sub_u32 s6, s6, s11")
        for rg in range(4):
            a(f"buffer_load_dwordx4 {v(R+16*i+4*rg,4)}, v20, s[44:47], s6 offen offset:{128*i} nt")
            if rg < 3: a("s_add_u32 s6, s6, s10")
        if i == 0: a("s_mul_i32 s11, s10, 3")
    a("v_lshlrev_b32 v21, 4, v1\nv_add_u32 v22, s9, v21")
    a("v_lshrrev_b32 v23, 2, v1\nv_lshlrev_b32 v23, 7, v23\nv_and_b32 v19, 3, v1\nv_lshl_add_u32 v23, v19, 3, v23\nv_add_u32 v23, s9, v23")
    for i in range(3):
        a(f"s_waitcnt vmcnt(8)")
        for rg in range(4):
            a(f"ds_write_b128 v22, {v(R+16*i+4*rg,4)} offset:{1024*rg}")
        for tn in range(4):
            a(f"ds_read_b64_tr_b16 {v(R+48+16*i+4*tn,2)}, v23 offset:{tn*32}")
            a(f"ds_read_b64_tr_b16 {v(R+48+16*i+4*tn+2,2)}, v23 offset:{2048+tn*32}")
        a("s_waitcnt lgkmcnt(0)")
        for tn in range(4):
            a(f"buffer_store_dwordx4 {v(R+48+16*i+4*tn,4)}, v21, s[56:59], s8 offen offset:{tn*1024} sc1")
        a("s_add_u32 s8, s8, 4096")
```

```python
from common import *
import kb4, km
from g1 import gelu_pk
from kb4 import Stream, mphase, gphase, h_addr, pstore, stage_x, stage_y, gen_final, gen_conv_load, paced, NS, RING, BF, MACC, KC, GT, ML_H, VC, V1

G2_WM, G2_W = 0, 2560
SLOT = 24576
G1_BASE = 76800
G1_AUX = 150528
CV_SZ = 21248
FSCR = 6 * CV_SZ
CNT = 158592
RM = CNT + 128
K6_LDS = RM + 1024
kb4.RM = RM
cG2, cX1, cX2, cFX, cSide, cH1, cA, cH2, cW4, cG1, cFH, cU, cW3, cHs, cW3a, cKV, cXs = [4 * i for i in range(17)]
km.cG1 = cG1

W4F = optval('W4F', 432)

def last_of(a, off, n, skip):
    a(f"s_mov_b64 exec, 1\nds_add_rtn_u32 v5, v{VC}, v{V1} offset:{off}\ns_mov_b64 exec, -1")
    a("s_waitcnt lgkmcnt(0)")
    a("v_readfirstlane_b32 s7, v5")
    a(f"s_cmp_lg_u32 s7, {n-1}\ns_cbranch_scc1 {skip}")

def gen_g(a):
    BUF, ACC, STA, CSA, SQ, SM, CS, ONE, XA, WA = 32, 96, 112, 124, 140, 144, 148, 152, 184, 188
    log = []
    a("v_lshrrev_b32 v2, 2, v1\nv_and_b32 v3, 3, v1\nv_mul_u32_u24 v4, 1152, v2")
    a("v_lshrrev_b32 v6, 5, v1\nv_lshlrev_b32 v6, 1, v6\nv_xor_b32 v6, v6, v3\nv_lshl_add_u32 v6, v6, 4, v4")
    a("s_mul_i32 s10, s60, 147456\ns_mul_i32 s9, s3, 18432\ns_add_u32 s10, s10, s9")
    a("s_lshr_b32 s8, s3, 1\ns_mul_i32 s11, s8, 18432\ns_lshl_b32 s9, s61, 7\ns_add_u32 s11, s11, s9\ns_and_b32 s9, s3, 1\ns_lshl_b32 s9, s9, 6\ns_add_u32 s11, s11, s9")
    a("s_mul_i32 s14, s62, 7\ns_add_u32 s14, s14, 1\ns_mov_b32 s12, s61")
    a(f"s_lshl_b32 s13, s3, 10\ns_add_u32 s13, s13, {G1_BASE}")
    a("s_waitcnt lgkmcnt(0)")
    a.srd(48, P_Q, ACT)
    a.srd(44, P_W1, D * D * 2)
    def issue(gi):
        sl = (gi % 3) * SLOT
        a("s_add_u32 s12, s12, s14\ns_sub_u32 s9, s12, 9\ns_cmp_ge_u32 s12, 9\ns_cselect_b32 s12, s9, s12")
        a(f"s_lshl_b32 s15, s12, 7\ns_add_u32 s15, s15, s10\ns_add_u32 m0, s13, {sl}\ns_mul_i32 s9, s12, 73728")
        a("buffer_load_dwordx4 v6, s[48:51], s15 offen lds")
        a("s_add_u32 m0, m0, 8128\ns_add_u32 s9, s9, s11")
        a("buffer_load_dwordx4 v6, s[48:51], s15 offen offset:64 lds")
        a("s_add_u32 m0, m0, 8256\ns_nop 0")
        a("buffer_load_dwordx4 v6, s[44:47], s9 offen lds")
        log.extend(["x", "x", f"g{gi}"])
    younger = lambda key: len(log) - 1 - log.index(key)
    issue(0); issue(1)
    if "w1t" in OPT:
        a("s_mul_i32 s8, s62, 288\ns_lshl_b32 s9, s61, 6\ns_add_u32 s8, s8, s9\ns_add_u32 s8, s8, 32\ns_mul_i32 s9, s3, 36\ns_add_u32 s8, s8, s9")
        a("v_min_u32 v7, 35, v1\nv_add_u32 v7, s8, v7\nv_subrev_u32 v8, 576, v7\nv_min_u32 v7, v7, v8\nv_mul_u32_u24 v7, 1152, v7\ns_lshl_b32 s9, s61, 7")
        a("buffer_load_dword v31, v7, s[44:47], s9 offen")
        log.append("t")
    a.srd(56, P_WS, WS_BYTES)
    a("s_cmp_lg_u32 s3, 0\ns_cbranch_scc1 G_pf")
    a("s_mov_b64 exec, 0xffff")
    a(f"v_lshl_add_u32 v7, v1, 2, v{VC}\nv_mov_b32 v8, 0\nds_write2_b32 v7, v8, v8 offset0:0 offset1:16")
    a("s_mov_b64 exec, -1")
    a("G_pf:")
    a.srd(52, P_W2, D * D * 2)
    a("v_bfe_u32 v7, v1, 4, 1\nv_lshlrev_b32 v8, 1, v7\nv_xor_b32 v8, v8, v3\nv_lshl_add_u32 v30, v8, 4, v4")
    a(f"v_lshlrev_b32 v12, 6, v2\nv_lshl_add_u32 v12, v7, 5, v12\nv_lshl_add_u32 v12, v3, 3, v12\nv_add_u32 v22, {G2_W}, v12\nv_xor_b32 v23, 32, v22")
    a(f"s_mov_b32 s66, s11\ns_lshl_b32 s67, s3, 10\ns_add_u32 s67, s67, {G2_W}")
    a("v_and_b32 v2, 15, v1\nv_lshrrev_b32 v3, 4, v1")
    a("v_bfe_u32 v4, v1, 3, 1\nv_lshlrev_b32 v4, 1, v4")
    a("v_xor_b32 v5, v4, v3\nv_lshl_add_u32 v5, v2, 2, v5\nv_lshlrev_b32 v5, 4, v5")
    a("s_and_b32 s63, s3, 3\ns_lshr_b32 s64, s3, 2\ns_and_b32 s69, s3, 1\ns_lshr_b32 s70, s63, 1\ns_lshl_b32 s71, s63, 1\ns_add_u32 s71, s71, s64")
    a("s_lshl_b32 s9, s71, 10\ns_lshl_b32 s8, s69, 13\ns_add_u32 s9, s9, s8\nv_add_u32 v5, s9, v5")
    for i, x in enumerate((0, 1024, 8192, 9216)): a(f"v_xor_b32 v{XA+i}, {x}, v5\nv_add_u32 v{XA+i}, {G1_BASE}, v{XA+i}")
    a("v_lshrrev_b32 v5, 1, v3\nv_lshlrev_b32 v11, 11, v5\nv_and_b32 v8, 1, v3\nv_lshl_add_u32 v11, v8, 9, v11")
    a("v_lshrrev_b32 v7, 2, v2\nv_lshl_add_u32 v11, v7, 6, v11\nv_and_b32 v7, 3, v1\nv_lshl_add_u32 v11, v7, 3, v11\nv_lshl_add_u32 v11, v8, 5, v11")
    a("s_lshl_b32 s9, s64, 10\ns_lshl_b32 s8, s69, 12\ns_add_u32 s9, s9, s8\nv_add_u32 v11, s9, v11\ns_lshl_b32 s8, s70, 5\nv_xor_b32 v11, s8, v11")
    for i, x in enumerate((0, 32, 4096, 4128)): a(f"v_xor_b32 v{WA+i}, {x}, v11\nv_add_u32 v{WA+i}, {G1_BASE+16384}, v{WA+i}")
    a(f"v_xor_b32 v5, v5, v4\nv_lshl_add_u32 v5, v2, 2, v5\nv_lshlrev_b32 v20, 4, v5\nv_lshl_add_u32 v20, v8, 3, v20\ns_add_u32 s9, s13, {2*SLOT}\nv_add_u32 v20, s9, v20\nv_xor_b32 v21, 32, v20")
    a("v_lshlrev_b32 v13, 4, v2\nv_lshlrev_b32 v18, 4, v3\nv_lshlrev_b32 v25, 4, v1")
    a(f"s_lshl_b32 s9, s71, 8\ns_add_u32 s9, s9, {G1_AUX}\nv_add_u32 v26, s9, v13\nv_xor_b32 v27, 256, v26")
    a(f"s_lshl_b32 s9, s64, 8\ns_lshl_b32 s8, s70, 7\ns_add_u32 s9, s9, s8\ns_add_u32 s9, s9, {G1_AUX+2048}\nv_add_u32 v28, s9, v18\nv_xor_b32 v29, 128, v28\ns_lshl_b32 s8, s69, 6\nv_add_u32 v24, s8, v28")
    a(f"s_lshl_b32 s65, s60, 3\ns_add_u32 s65, s65, s71\ns_lshl_b32 s68, s65, 8\ns_add_u32 s68, s68, {ST1_OFF}\ns_xor_b32 s98, s65, 1")
    a(f"s_lshl_b32 s9, s61, 11\ns_lshl_b32 s8, s64, 10\ns_add_u32 s9, s9, s8\ns_add_u32 s9, s9, {H_OFF}\ns_mul_i32 s65, s65, 18432\ns_add_u32 s65, s65, s9\ns_mul_i32 s98, s98, 18432\ns_add_u32 s98, s98, s9")
    a(f"v_mov_b32 v160, {fh(GC0)}\nv_mov_b32 v161, {fh(GC0)}\nv_mov_b32 v162, {fh(GC1)}\nv_mov_b32 v163, {fh(GC1)}\nv_mov_b32 v164, 1.0\nv_mov_b32 v165, 1.0")
    for r in range(4): a(f"v_mov_b32 v{ONE+r}, 0x3f803f80")
    a("v_lshlrev_b32 v7, 2, v3\nv_sub_u32 v19, v2, v7")
    def w2issue(n):
        for _ in range(n):
            a("s_mov_b32 m0, s67\ns_add_u32 s67, s67, 8192")
            a("buffer_load_dwordx4 v30, s[52:55], s66 offen lds")
            a("s_add_u32 s66, s66, 73728")
            log.append("w")
    def reads(gi):
        o0 = (gi % 3) * SLOT
        b = BUF + 32 * (gi & 1)
        o = []
        for k2 in range(2):
            for mi in range(2): o.append(f"ds_read_b128 {v(b+16*k2+4*mi,4)}, v{XA+2*k2+mi} offset:{o0}")
            for t in range(2):
                for jh in range(2): o.append(f"ds_read_b64_tr_b16 {v(b+16*k2+8+4*t+2*jh,2)}, v{WA+2*k2+t} offset:{o0+256*jh}")
        return o
    fin = [f"v_mov_b32 v{STA}, 0"]
    for r in range(4): fin += [f"v_cmp_eq_u32 vcc, {r}, v19\ns_nop 1\nv_cndmask_b32 v{STA}, v{STA}, v{SQ+r}, vcc"]
    for gi in range(10):
        rd = []
        if gi < 9:
            a(f"s_waitcnt vmcnt({younger(f'g{gi}')})\ns_barrier")
            if gi == 0 or "g1t" in OPT: a.stamp(1 + gi)
            rd = reads(gi)
        def mem():
            if gi + 2 < 9: issue(gi + 2)
        l1 = a.lab("GM"); l2 = a.lab("GN")
        if gi + 2 < 9:
            a(f"s_cmp_ge_u32 s3, 4\ns_cbranch_scc1 {l1}")
            n0 = len(log); mem(); del log[n0:]
            a(f"{l1}:")
        if gi > 0:
            b = BUF + 32 * ((gi - 1) & 1)
            z = "0" if gi == 1 else None
            mm = [(SQ, b, b, z), (SM, ONE, b, z), (CS, b + 8, ONE, z), (SQ, b + 16, b + 16, None), (SM, ONE, b + 16, None)]
            mm += [(ACC + 8 * mi + 4 * t, b + 16 * k2 + 8 + 4 * t, b + 16 * k2 + 4 * mi, z if k2 == 0 else None) for k2 in range(2) for t in range(2) for mi in range(2)]
            for n, (d, x, y, c) in enumerate(mm):
                if rd: a(rd.pop(0))
                a.mfma(d, x, y, c)
        for r in rd: a(r)
        if gi + 2 < 9:
            a(f"s_cmp_lt_u32 s3, 4\ns_cbranch_scc1 {l2}")
            mem()
            a(f"{l2}:")
        if gi in (7, 8): w2issue(3)
        if gi < 9: a("s_waitcnt lgkmcnt(0)")
    a(f"ds_write_b128 v24, {v(CS,4)}")
    for x in fin: a(x)
    gsum(a, STA, 7)
    a(f"v_mul_f32 v{STA+2}, {fh(-1.0/D)}, v{SM}\nv_mul_f32 v7, {fh(1.0/D)}, v{STA}")
    a(f"v_fma_f32 v7, -v{STA+2}, v{STA+2}, v7\nv_max_f32 v7, 0, v7\nv_add_f32 v8, {fh(EPS)}, v7\nv_rsq_f32 v{STA}, v8\ns_nop 0")
    a(f"v_mul_f32 v8, v{STA}, v{STA}\nv_fmaak_f32 v8, v8, v7, {fh(EPS)}\nv_rsq_f32 v8, v8\nv_mul_f32 v{STA+1}, v{STA+2}, v{STA}\nv_mul_f32 v{STA+3}, v8, v{STA}")
    a(f"ds_write_b128 v26, {v(STA,4)}")
    a("s_waitcnt lgkmcnt(0)\ns_barrier")
    a.stamp(2 if "g1t" not in OPT else 10)
    if "g1t" in OPT: a.end()
    for t in range(2):
        for q in range(2): a(f"ds_read_b128 {v(CSA+8*t+4*q,4)}, v{28+t} offset:{64*q}")
    a(f"ds_read_b128 {v(STA+4,4)}, v27")
    a("s_cmp_lg_u32 s61, 0\ns_cbranch_scc1 G_ns")
    a(f"s_mov_b64 exec, 0xffff\nbuffer_store_dwordx4 {v(STA,4)}, v13, s[56:59], s68 offen sc1\ns_mov_b64 exec, -1")
    a("G_ns:")
    a(f"v_mov_b32 v{STA+8}, v{STA+2}\nv_mov_b32 v{STA+9}, v{STA+2}\nv_mov_b32 v{STA+10}, v{STA+3}\nv_mov_b32 v{STA+11}, v{STA+3}")
    a("s_waitcnt lgkmcnt(0)")
    for t in range(2):
        for e in range(0, 4, 2): a(f"v_pk_add_f32 {v(CSA+8*t+e,2)}, {v(CSA+8*t+e,2)}, {v(CSA+8*t+4+e,2)}")
    a(f"v_mov_b32 v{STA+4}, v{STA+6}\nv_mov_b32 v{STA+5}, v{STA+6}\nv_mov_b32 v{STA+6}, v{STA+7}")
    for mi in range(2):
        c = STA + 8 - 4 * mi
        regs = [ACC + 8 * mi + e for e in range(8)]
        for e in range(0, 8, 2): a(f"v_pk_fma_f32 {v(regs[e],2)}, {v(c,2)}, {v(CSA+8*(e>>2)+(e&3),2)}, {v(regs[e],2)}")
        for e in range(0, 8, 2): a(f"v_pk_mul_f32 {v(regs[e],2)}, {v(regs[e],2)}, {v(c+2,2)}")
        gelu_pk(a, regs, list(range(168, 176)), "v[160:161]", "v[162:163]", "v[164:165]")
        l1 = a.lab("GS"); l2 = a.lab("GT")
        a(f"s_cmp_lg_u32 s70, 0\ns_cbranch_scc1 {l1}")
        for e in range(4): a(f"v_cvt_pk_bf16_f32 v{176+4*mi+e}, v{regs[2*e]}, v{regs[2*e+1]}")
        a(f"s_branch {l2}\n{l1}:")
        for e in range(4): a(f"v_cvt_pk_bf16_f32 v{176+4*mi+(e^2)}, v{regs[2*e]}, v{regs[2*e+1]}")
        a(f"{l2}:")
        a(f"buffer_store_dwordx4 {v(176+4*mi,4)}, v25, s[56:59], s{65 if mi == 0 else 98} offen sc1")
    a.stamp(3)
    w2issue(3)
    HB, AR, AC2 = 32, 104, 224
    a("v_lshlrev_b32 v2, 4, v1\nv_add_u32 v3, 4096, v2\nv_lshlrev_b32 v4, 2, v1")
    a("s_lshl_b32 s8, s60, 3\ns_add_u32 s8, s8, s3")
    a("v_and_b32 v11, 1, v1\nv_lshlrev_b32 v11, 6, v11\nv_add_u32 v11, v11, v18")
    a("v_add_u32 v28, 36864, v22\nv_add_u32 v29, 36864, v23")
    a("v_and_b32 v8, 15, v1\ns_lshl_b32 s10, s8, 4\nv_add_u32 v8, s10, v8\nv_lshlrev_b32 v9, 4, v18\ns_movk_i32 s13, 18432\nv_mov_b32 v10, 0x80000000")
    for gam, sh in enumerate((-1, 1, -2, 2)):
        a(f"v_add_u32 v5, {sh}, v8\nv_cmp_gt_u32 vcc, {S}, v5\nv_lshrrev_b32 v6, 4, v5\nv_mad_u32_u24 v6, v6, s13, v9\nv_and_b32 v5, 15, v5\nv_lshl_add_u32 v6, v5, 4, v6")
        a(f"v_cndmask_b32 v{24+gam}, v10, v6, vcc")
    a(f"s_mul_i32 s11, s8, 18432\ns_lshl_b32 s9, s61, 11\ns_add_u32 s11, s11, s9\ns_add_u32 s11, s11, {X1_OFF}")
    a(f"s_mul_i32 s6, s60, {FB_STRIDE}\ns_add_u32 s6, s6, {FH_OFF}\ns_lshl_b32 s10, s3, 8\ns_add_u32 s10, s10, {G1_AUX}\nv_add_u32 v13, s10, v13\ns_mov_b32 s14, {H_OFF}")
    a("ds_read_b64 v[18:19], v13")
    a.zcheck(14, 9, False)
    a("s_waitcnt vmcnt(3)")
    last_of(a, cHs, 8, "G_hs")
    a.sadd(6, 7)
    a("G_hs:")
    a.stamp(4)
    a("s_cmp_lg_u32 s3, 7\ns_cbranch_scc1 G_wm")
    a(f"s_mov_b32 s9, {W2M_OFF}\nv_min_u32 v5, 240, v2\ns_mov_b32 s13, 0x20000")
    a("W2_m:")
    a("buffer_load_dwordx4 v[32:35], v2, s[56:59], s9 offen sc1\nbuffer_load_dwordx4 v[36:39], v2, s[56:59], s9 offen offset:1024 sc1\nbuffer_load_dwordx4 v[40:43], v5, s[56:59], s9 offen offset:2048 sc1")
    a("s_waitcnt vmcnt(0)")
    a("v_min3_u32 v6, v32, v36, v40\nv_cmp_eq_u32 vcc, 0, v6\ns_cbranch_vccz W2_n")
    a("s_sleep 8\ns_sub_u32 s13, s13, 1\ns_cbranch_scc0 W2_m")
    a("W2_n:")
    a(f"ds_write_b128 v2, v[32:35] offset:{G2_WM}\nds_write_b128 v2, v[36:39] offset:{G2_WM+1024}\nds_write_b128 v5, v[40:43] offset:{G2_WM+2048}")
    a("s_waitcnt lgkmcnt(0)")
    a("G_wm:")
    a("s_waitcnt vmcnt(0)\ns_barrier")
    NA = 6
    def ard(ks):
        b = AR + 20 * (ks % NA)
        o = [f"ds_read_b128 {v(b,4)}, v11 offset:{G2_WM+128*ks}"]
        for t in range(4):
            for jh in range(2):
                off = ((ks * 2 + jh) * 2 + (t >> 1)) * 1024
                ad = 22 + (t & 1)
                if off >= 36864: off -= 36864; ad += 6
                o.append(f"ds_read_b64_tr_b16 {v(b+4+4*t+2*jh,2)}, v{ad} offset:{off}")
        return o
    for ks in range(NA):
        for r in ard(ks): a(r)
    for t in range(4): a(f"ds_read_b64 {v(244+2*t,2)}, v{20+(t&1)} offset:{8192*(t>>1)}")
    a("s_cmp_lg_u32 s3, 1\ns_cbranch_scc1 G2_hw")
    a.cpoll(6, 9, 48, 13, 1)
    a("G2_hw:")
    a(f"s_sub_u32 s7, s6, {FB_STRIDE}\ns_add_u32 s12, s6, {FB_STRIDE}\ns_cmp_eq_u32 s3, 0\ns_cselect_b32 s12, s7, s12")
    a("s_waitcnt lgkmcnt(0)\ns_barrier")
    a("s_add_u32 s7, s8, 1\ns_and_b32 s9, s7, 7\ns_cmp_ge_u32 s9, 2\ns_cbranch_scc1 G2_hg\ns_and_b32 s7, s7, 127\ns_cmp_lt_u32 s7, 2\ns_cbranch_scc1 G2_hg")
    a.cpoll(12, 9, 48, 13, 1)
    a("G2_hg:")
    a.stamp(5)
    hl = []
    for ks in range(18):
        pre = "s_add_u32 s14, s14, 4096\n" if ks and ks % 4 == 0 else ""
        g0, g1_ = (2 * ks) // 9, (2 * ks + 1) // 9
        if g0 == g1_: hl.append((pre + f"buffer_load_dwordx4 {v(HB+4*ks,4)}, v{24+g0}, s[56:59], s14 offen offset:{(ks%4)*1024} sc1", 1))
        else: hl.append((pre + f"buffer_load_dwordx2 {v(HB+4*ks,2)}, v{24+g0}, s[56:59], s14 offen offset:{(ks%4)*1024} sc1\nbuffer_load_dwordx2 {v(HB+4*ks+2,2)}, v{24+g1_}, s[56:59], s14 offen offset:{(ks%4)*1024+8} sc1", 2))
    HD = optval("HD", 5)
    log2 = []
    def hissue(ks):
        a(hl[ks][0]); log2.extend(["x"] * (hl[ks][1] - 1) + [ks])
    for ks in range(HD): hissue(ks)
    for ks in range(18):
        lg = "" if ks < NA else f" lgkmcnt({min(15, 9*min(NA-1, 17-ks))})"
        a(f"s_waitcnt vmcnt({len(log2)-1-log2.index(ks)}){lg}")
        if ks + HD < 18: hissue(ks + HD)
        rd = ard(ks + NA) if ks + NA < 18 else []
        b = AR + 20 * (ks % NA)
        for t in range(5):
            a.mfma(AC2 + 4 * t, b + 4 * t, HB + 4 * ks, "0" if ks == 0 else None)
            for _ in range(1 if t == 0 else 2):
                if rd: a(rd.pop(0))
    a.stamp(6)
    for e in range(8): a(f"v_lshlrev_b32 v{HB+2*e}, 16, v{244+e}\nv_and_b32 v{HB+2*e+1}, 0xffff0000, v{244+e}")
    a(f"v_add_f32 v9, v{AC2}, v{AC2+1}")
    a("v_sub_f32 v28, v19, v9\nv_sub_f32 v29, v19, v9\nv_mov_b32 v19, v18\nv_mov_b32 v10, 0\nv_mov_b32 v11, 0")
    for p in range(2):
        for e in range(0, 8, 2): a(f"v_pk_fma_f32 {v(HB+8*p+e,2)}, {v(HB+8*p+e,2)}, v[18:19], v[28:29]")
        for e in range(0, 8, 2): a(f"v_pk_add_f32 {v(HB+8*p+e,2)}, {v(HB+8*p+e,2)}, {v(AC2+4+8*p+e,2)}")
        for e in range(4): a(f"v_cvt_pk_bf16_f32 v{AR+4*p+e}, v{HB+8*p+2*e}, v{HB+8*p+2*e+1}")
        a(f"buffer_store_dwordx4 {v(AR+4*p,4)}, v2, s[56:59], s11 offen offset:{p*1024} sc1")
    for e in range(0, 16, 2): a(f"v_pk_fma_f32 v[10:11], {v(HB+e,2)}, {v(HB+e,2)}, v[10:11]")
    a("v_add_f32 v10, v10, v11")
    gsum(a, 10, 11)
    a(f"s_mul_i32 s10, s60, 9\ns_add_u32 s10, s10, s61\ns_lshl_b32 s10, s10, 9\ns_lshl_b32 s12, s3, 6\ns_add_u32 s10, s10, s12\ns_add_u32 s10, s10, {SS_OFF}")
    a(f"s_lshl_b32 s12, s8, 6\ns_add_u32 s12, s12, {MEAN_OFF}")
    a("s_mov_b64 exec, 0xffff")
    a("buffer_store_dword v10, v4, s[56:59], s10 offen sc1")
    a("s_cmp_lg_u32 s61, 0\ns_cbranch_scc1 G2_m")
    a("buffer_store_dword v9, v4, s[56:59], s12 offen sc1")
    a("G2_m:")
    a("s_mov_b64 exec, -1")
    a(f"s_sub_u32 s6, s6, {FH_OFF-FX_OFF}")
    consts(a)
    a("s_waitcnt vmcnt(0)")
    last_of(a, cG2, 8, "G_xs")
    a.sadd(6, 7)
    a("G_xs:")
    a.stamp(7)

def gen_stats(a):
    R = 32
    a("v_lshrrev_b32 v2, 2, v1\nv_and_b32 v3, 3, v1\nv_mul_u32_u24 v4, 1152, v2\nv_lshl_add_u32 v4, v3, 4, v4")
    a("s_mul_i32 s7, s6, 18432")
    a.srd(44, P_Q, ACT)
    for i in range(18): a(f"buffer_load_dwordx4 {v(R+4*i,4)}, v4, s[44:47], s7 offen offset:{64*i}")
    a("s_barrier")
    a("v_mov_b32 v8, 0x3f803f80")
    for r in range(4): a(f"v_mov_b32 v{20+r}, 0")
    for i in range(18):
        if i % 3 == 0: a(f"s_waitcnt vmcnt({15-i})")
        for d in range(4):
            a(f"v_dot2c_f32_bf16 v{20+(d&1)}, v{R+4*i+d}, v8\nv_dot2c_f32_bf16 v{22+(d&1)}, v{R+4*i+d}, v{R+4*i+d}")
    a.ldsadd(VC, V1, cG1)
    a("v_add_f32 v20, v20, v21\nv_add_f32 v22, v22, v23\ns_nop 1")
    for qp in ("[1,0,3,2]", "[2,3,0,1]"):
        a(f"v_add_f32_dpp v20, v20, v20 quad_perm:{qp} row_mask:0xf bank_mask:0xf")
        a(f"v_add_f32_dpp v22, v22, v22 quad_perm:{qp} row_mask:0xf bank_mask:0xf")
        a("s_nop 1")
    a(f"v_mul_f32 v26, {fh(-1.0/D)}, v20\nv_mul_f32 v22, {fh(1.0/D)}, v22")
    a("v_fma_f32 v22, -v26, v26, v22\nv_max_f32 v22, 0, v22")
    a(f"v_add_f32 v21, {fh(EPS)}, v22\nv_rsq_f32 v24, v21\ns_nop 0")
    a(f"v_mul_f32 v21, v24, v24\nv_fmaak_f32 v21, v21, v22, {fh(EPS)}\nv_rsq_f32 v21, v21")
    a("v_mul_f32 v25, v26, v24\nv_mul_f32 v27, v21, v24\nv_or_b32 v24, 1, v24")
    a(f"v_lshlrev_b32 v5, 4, v2\ns_lshl_b32 s7, s6, 8\ns_add_u32 s7, s7, {ST1_OFF}")
    a.zcheck(14, 9, False)
    a("s_mov_b32 exec_lo, 0x11111111\ns_mov_b32 exec_hi, 0x11111111")
    a("buffer_store_dwordx4 v[24:27], v5, s[56:59], s7 offen sc1")
    a("s_mov_b64 exec, -1")

def gen_colsum(a):
    R = 32
    a("s_mul_i32 s7, s6, 57\ns_lshr_b32 s7, s7, 9\ns_mul_i32 s8, s7, 9\ns_sub_u32 s8, s6, s8")
    a("v_lshrrev_b32 v2, 3, v1\nv_and_b32 v3, 7, v1\nv_mul_u32_u24 v4, 1152, v2\nv_lshl_add_u32 v4, v3, 4, v4")
    a("s_mul_i32 s10, s7, 165888\ns_lshl_b32 s11, s8, 7\ns_add_u32 s10, s10, s11")
    a.srd(44, P_W1, D * D * 2)
    for i in range(18):
        a(f"buffer_load_dwordx4 {v(R+4*i,4)}, v4, s[44:47], s10 offen\ns_add_u32 s10, s10, 9216")
    a("s_barrier")
    for i in range(18):
        if i % 3 == 0: a(f"s_waitcnt vmcnt({15-i})")
        d = 20 if i == 0 else 104
        for e in range(4): a(f"v_lshlrev_b32 v{d+2*e}, 16, v{R+4*i+e}\nv_and_b32 v{d+2*e+1}, 0xffff0000, v{R+4*i+e}")
        if i:
            for e in range(4): a(f"v_pk_add_f32 {v(20+2*e,2)}, {v(20+2*e,2)}, {v(104+2*e,2)}")
    a.ldsadd(VC, V1, cG1)
    for e in range(8): a(f"v_add_f32_dpp v{20+e}, v{20+e}, v{20+e} row_ror:8 row_mask:0xf bank_mask:0xf")
    for e in range(8): gsum(a, 20 + e, 5)
    for e in range(8): a(f"v_or_b32 v{20+e}, 1, v{20+e}")
    a(f"v_lshlrev_b32 v5, 5, v1\ns_mul_i32 s7, s7, 2304\ns_lshl_b32 s8, s8, 8\ns_add_u32 s7, s7, s8\ns_add_u32 s7, s7, {CSUM_OFF}")
    a.zcheck(14, 9, False)
    a("s_mov_b64 exec, 0xff")
    a("buffer_store_dwordx4 v[20:23], v5, s[56:59], s7 offen sc1\nbuffer_store_dwordx4 v[24:27], v5, s[56:59], s7 offen offset:16 sc1")
    a("s_mov_b64 exec, -1")

def consts(a):
    if "nf1" in OPT: a("s_mov_b32 s4, s96\ns_mov_b32 s5, s97")
    elif "nf2" in OPT:
        a("s_and_b32 s4, s96, 3\ns_lshl_b32 s4, s4, 1\ns_and_b32 s7, s97, 1\ns_add_u32 s4, s4, s7\ns_lshr_b32 s5, s96, 2\ns_lshl_b32 s5, s5, 4\ns_lshr_b32 s7, s97, 1\ns_add_u32 s5, s5, s7")
    else:
        a("s_and_b32 s4, s96, 1\ns_lshl_b32 s4, s4, 2\ns_and_b32 s7, s97, 3\ns_add_u32 s4, s4, s7\ns_lshr_b32 s5, s96, 1\ns_lshl_b32 s5, s5, 3\ns_lshr_b32 s7, s97, 2\ns_add_u32 s5, s5, s7")
    km.consts2(a)

def gen_f(a):
    a("s_cmp_lg_u32 s3, 0\ns_cbranch_scc1 F_pf")
    a("s_mov_b64 exec, 0xffff")
    a(f"v_lshl_add_u32 v7, v1, 2, v{VC}\nv_mov_b32 v8, 0\nds_write2_b32 v7, v8, v8 offset0:0 offset1:16")
    a("s_mov_b64 exec, -1")
    a("F_pf:")
    a(f"s_mul_i32 s61, s3, {CV_SZ}\ns_lshl_b32 s7, s3, 12\ns_add_u32 s7, s7, {FSCR-6*4096}\ns_cmp_ge_u32 s3, 6\ns_cselect_b32 s61, s7, s61")
    a("s_mul_i32 s12, s3, 112\ns_add_u32 s12, s12, s60\ns_mov_b32 s13, s61")
    a("s_waitcnt lgkmcnt(0)")
    a.srd(56, P_WS, WS_BYTES)
    a("s_barrier")
    a("s_cmp_ge_u32 s12, 306\ns_cbranch_scc1 F_pt")
    a("s_setprio 2\ns_cmp_ge_u32 s12, 18\ns_cbranch_scc1 F_kv")
    a("s_mov_b32 s6, s12")
    km.gen_meantile(a)
    a.ldsadd(VC, V1, cKV)
    a("s_branch F_done")
    a("F_kv:\ns_sub_u32 s6, s12, 18")
    if "nobulk" in OPT: a("s_sleep 100\ns_branch F_end")
    st = a.stamps; a.stamps = False
    km.gen_kv(a)
    a.stamps = st
    a.stamp(5)
    a(f"s_mul_i32 s11, s8, {FB_STRIDE}\ns_add_u32 s11, s11, {FKC_OFF}")
    a("s_branch F_sig")
    a("F_pt:")
    if "nobulk" in OPT or "nopt" in OPT: a("s_sleep 100\ns_branch F_end")
    a(f"s_cmp_lt_u32 s3, {optval('FUN', 4)}\ns_cbranch_scc1 F_job\ns_mov_b32 s8, {optval('FJW', 4)}")
    a.ldswait(VC, 5, 7, "s8", cKV, sleep=4)
    if "fjk" in OPT: a.ldswait(VC, 5, 7, 4, cXs, sleep=4)
    a("F_job:")
    a("s_mov_b32 s99, 0")
    a("F_job2:")
    a("s_sub_u32 s12, s12, 306\ns_and_b32 s62, s12, 7\ns_lshr_b32 s12, s12, 3\ns_mov_b32 s9, s61")
    n0 = len(a.L)
    km.job_setup(a, "JS")
    a.L[n0:] = [x.replace("s96", "s62") for x in a.L[n0:]]
    gen_pretile(a, 128)
    a("s_mov_b32 s6, s98")
    a(f"s_add_u32 s11, s6, {FCNT}")
    a("s_cmp_lg_u32 s99, 0\ns_cbranch_scc1 K6_jret")
    a("F_sig:")
    a.zcheck(14, 13)
    a.ldsadd(VC, V1, cKV)
    a.stamp(6)
    a.sarrive(6, "s100", 8, 11)
    a("F_done:")
    a.stamp(2)
    a("s_cmp_le_u32 s3, 4\ns_cbranch_scc1 F_cv")
    a(f"s_mov_b64 exec, 1\nds_add_rtn_u32 v5, v{VC}, v{V1} offset:{cU}\ns_mov_b64 exec, -1")
    a("s_waitcnt lgkmcnt(0)")
    a("v_readfirstlane_b32 s12, v5")
    a(f"s_mul_i32 s12, s12, 112\ns_add_u32 s12, s12, s60\ns_add_u32 s12, s12, 896\ns_cmp_lt_u32 s12, {738+W4F}\ns_cbranch_scc1 F_job")
    a("s_cmp_lg_u32 s3, 5\ns_cbranch_scc1 F_end\ns_cmp_ge_u32 s60, 16\ns_cbranch_scc1 F_end")
    a("F_cv:")
    if "nobulk" in OPT: a("s_branch F_end")
    a("v_lshlrev_b32 v2, 4, v1\nv_add_u32 v3, 4096, v2")
    a("s_lshl_b32 s52, s60, 2\ns_add_u32 s52, s52, s3\ns_mul_i32 s7, s3, 112\ns_add_u32 s7, s7, s60\ns_cmp_ge_u32 s3, 4\ns_cselect_b32 s52, s7, s52\ns_mov_b32 s53, s61")
    a(f"s_lshr_b32 s8, s52, 6\ns_mul_i32 s9, s8, 86\ns_lshr_b32 s9, s9, 8\ns_mul_i32 s9, s9, {FB_STRIDE-384}\ns_lshl_b32 s8, s8, 7\ns_add_u32 s8, s8, s9\ns_add_u32 s8, s8, {FKV_OFF}")
    a.srd(48, P_SSMK, ACT)
    a(f"s_lshl_b32 s10, s52, 12\ns_add_u32 m0, s53, {4*4160+512}\ns_mul_i32 s54, s52, {KV_PITCH}\ns_add_u32 s54, s54, {KV_OFF}\ns_add_u32 s11, s54, 4")
    for i in range(4): a(f"buffer_load_dwordx4 v2, s[48:51], s10 offen offset:{i*1024} nt lds")
    a.vpoll(8, 1, 14, 13, 4)
    a.stamp(3)
    a.ldsadd(VC, V1, cXs)
    a("s_mov_b32 m0, s53\ns_nop 0")
    for i in range(4): a(f"buffer_load_dwordx4 v2, s[56:59], s54 offen offset:{i*1024} sc1 lds")
    a("s_mov_b64 exec, 7\ns_add_u32 m0, s53, 4096\ns_nop 0")
    a("buffer_load_dwordx4 v3, s[56:59], s54 offen sc1 lds")
    a(f"s_add_u32 m0, s53, {2*4160+4096}\ns_nop 0")
    a("buffer_load_dwordx4 v3, s[56:59], s11 offen sc1 lds")
    a("s_mov_b64 exec, -1")
    st = a.stamps; a.stamps = False
    kb4.gen_conv(a, None, " sc1", "none")
    a.stamps = st
    a.stamp(4)
    a(f"s_lshr_b32 s6, s6, 4\ns_mul_i32 s6, s6, 57\ns_lshr_b32 s6, s6, 9\ns_mul_i32 s6, s6, {FB_STRIDE}\ns_add_u32 s6, s6, {FY_OFF}")
    a("s_waitcnt vmcnt(0)")
    a.sadd(6, 7)
    a("F_end:")
    if "g1t" in OPT: a.end()
    a("v_lshlrev_b32 v2, 4, v1\nv_add_u32 v3, 4096, v2\nv_lshlrev_b32 v4, 2, v1\nv_mov_b32 v5, 2")
    consts(a)
    a("s_cmp_ge_u32 s3, 4\ns_cbranch_scc1 K6_q")
    a.ldsadd(VC, 5, cG2)
    a.stamp(7)

def gen_k6(a, name):
    fine = "fine" in OPT
    a(f".p2align 8\n{name}:\nK6_start:")
    a("s_cmp_ge_u32 s2, 256\ns_cbranch_scc1 K6_end")
    a.stamp_init()
    a.kernargs()
    a("v_lshrrev_b32 v2, 6, v0\nv_and_b32 v1, 63, v0")
    a("v_readfirstlane_b32 s3, v2")
    a("s_and_b32 s96, s2, 7\ns_lshr_b32 s97, s2, 3\ns_mov_b32 s101, 1")
    a(f"v_mov_b32 v{VC}, {CNT}\nv_mov_b32 v{V1}, 1")
    a("s_sub_u32 s60, s2, 144\ns_cmp_lt_u32 s97, 18\ns_cbranch_scc1 K6_g")
    a("s_cmp_lt_u32 s3, 6\ns_cbranch_scc1 K6_f\ns_cmp_eq_u32 s3, 7\ns_cbranch_scc1 K6_pf")
    a(f"s_cmp_ge_u32 s60, {FLAG_WAVES}\ns_cbranch_scc1 K6_f")
    a(f"v_lshrrev_b32 v7, 5, v1\nv_mul_u32_u24 v7, {FB_STRIDE-512}, v7\nv_lshl_add_u32 v7, v1, 4, v7\nv_lshlrev_b32 v6, 4, v1")
    a("v_mov_b32 v8, 0\nv_mov_b32 v9, 0\nv_mov_b32 v10, 0\nv_mov_b32 v11, 0")
    a(f"s_lshl_b32 s8, s60, 12\ns_add_u32 s8, s8, {W2M_OFF}\ns_mul_i32 s9, s60, {4*FB_STRIDE}\ns_add_u32 s9, s9, {FLAG_OFF}\ns_add_u32 s10, s9, {2*FB_STRIDE}")
    a("s_waitcnt lgkmcnt(0)")
    a.srd(56, P_WS, WS_BYTES)
    for i in range(4): a(f"buffer_store_dwordx4 v[8:11], v6, s[56:59], s8 offen offset:{1024*i} sc1")
    a("buffer_store_dwordx4 v[8:11], v7, s[56:59], s9 offen sc1\nbuffer_store_dwordx4 v[8:11], v7, s[56:59], s10 offen sc1")
    a("s_mov_b32 s8, 1\ns_waitcnt vmcnt(0)")
    a(f"s_atomic_add s8, {s(P_DBG,2)}, 128 glc\ns_waitcnt lgkmcnt(0)\ns_cmp_lg_u32 s8, {FLAG_WAVES-1}\ns_cbranch_scc1 K6_f")
    a(f"s_atomic_add s101, {s(P_DBG,2)}, 0")
    a.stamp(1)
    a("s_branch K6_f")
    a("K6_pf:")
    a("s_getpc_b64 s[8:9]\nF_pc:")
    a("s_sub_u32 s10, s97, 18\nv_min_u32 v2, 39, v1\nv_mul_u32_u24 v2, 14, v2\nv_add_lshl_u32 v2, s10, v2, 7\nv_min_u32 v2, CODE_END-F_pc-4, v2")
    a("global_load_dword v31, v2, s[8:9]")
    a("s_branch K6_f")
    a("K6_g:")
    a("s_cmp_ge_u32 s97, 9\ns_cselect_b32 s62, 1, 0\ns_mul_i32 s61, s62, 9\ns_sub_u32 s61, s97, s61\ns_lshl_b32 s60, s96, 1\ns_add_u32 s60, s60, s62")
    gen_g(a)
    a("s_cmp_ge_u32 s3, 4\ns_cbranch_scc1 K6_q")
    a("s_branch K6_p")
    a("K6_f:")
    gen_f(a)
    A3 = [(2, 0), (2, 1024), (2, 2048)]
    stP = Stream(a, [(64, A3, " sc1"), (65, A3, " sc1"), (66, [(2, 0), (3, 3072)], " sc1"), (68, [(2, 0), (3, 3072)], " sc1")])
    stQ = Stream(a, [(64, A3, " sc1"), (66, [(2, 0), (2, 1024), (2, 2048), (2, 3072), (3, 0)], " sc1")])
    def addrs():
        a(f"v_mov_b32 v6, v2\nv_add_u32 v7, 36864, v2\nv_add_u32 v8, {ML_H}, v2\nv_add_u32 v9, {ML_H+36864}, v2")
        h_addr(a, 71, 10, 12)
    def rk():
        a(f"v_and_b32 v5, 15, v1\nv_lshlrev_b32 v5, 4, v5\nv_add_u32 v5, {RM}, v5")
        for m in range(4): a(f"ds_read_b32 v{GT+m}, v5 offset:{256*m}")
        a("s_waitcnt lgkmcnt(0)")
        for m in range(4):
            r = GT + m
            a(f"v_mul_f32 v{KC+2*m}, {fh(GC0)}, v{r}\nv_mul_f32 v{r}, v{r}, v{r}\nv_mul_f32 v{r}, {fh(0.044715)}, v{r}\nv_mul_f32 v{KC+2*m+1}, v{r}, v{KC+2*m}")
    a("K6_p:")
    a("s_setprio 2")
    a("s_cmp_lg_u32 s3, 1\ns_cbranch_scc1 KB_w3")
    a("s_add_u32 s6, s70, 128")
    if not ({"nobulk", "nopt"} & set(OPT)): a.cpoll(6, 1, 48, 13, 8)
    a.ldsadd(VC, V1, cW3a)
    a("KB_w3:")
    a.ldswait(VC, 5, 7, 1, cW3a)
    PRE = optval("PPRE", NS)
    paced(a, stP, PRE, optval("PPACE", 8))
    addrs()
    a(f"s_lshr_b32 s11, s5, 1\ns_mul_i32 s6, s11, {FB_STRIDE}\ns_add_u32 s6, s6, {FX_OFF}")
    a(f"s_mul_i32 s9, s3, 18432\ns_mov_b32 m0, s9\ns_mul_i32 s7, s5, 73728\ns_add_u32 s7, s7, s9\ns_add_u32 s7, s7, {X1_OFF}")
    a.stamp(8)
    a("s_cmp_lg_u32 s3, 0\ns_cbranch_scc1 KB_xw")
    a.cpoll(6, 9, 44, 13, optval('FXS', 1))
    a.ldswait(VC, 5, 8, 8, cG2)
    a.ldsadd(VC, V1, cFX)
    a("s_branch KB_xg")
    a("KB_xw:")
    a.ldswait(VC, 5, 8, 1, cFX)
    a("KB_xg:")
    a.stamp(9)
    def xdma(i):
        if i and i % 4 == 0: a("s_add_u32 m0, m0, 4096\ns_add_u32 s7, s7, 4096")
        a(f"buffer_load_dwordx4 v2, s[56:59], s7 offen offset:{(i%4)*1024} sc1 lds")
        stP.other(f"x{i}")
    XP = optval("XP", 6)
    for i in range(XP): xdma(i)
    for i in range(NS - PRE): stP.issue()
    a(f"s_mul_i32 s6, s11, 4608\ns_and_b32 s8, s5, 1\ns_lshl_b32 s8, s8, 8\ns_add_u32 s6, s6, s8\ns_add_u32 s6, s6, {SS_OFF}\ns_add_u32 s11, s6, 4096")
    a(f"s_lshl_b32 s8, s5, 8\ns_add_u32 s8, s8, {MEAN_OFF}\ns_lshl_b32 s9, s5, 10\ns_add_u32 s9, s9, {ST1_OFF}")
    late = [(lambda i=i: xdma(i)) for i in range(XP, 18)]
    def stat(ins, tag="x"):
        a(ins); stP.other(tag)
    late += [(lambda i=i: stat(f"buffer_load_dword v{GT+i}, v4, s[56:59], s6 offen offset:{512*i} sc1")) for i in range(8)]
    late += [lambda: stat(f"buffer_load_dword v{GT+8}, v4, s[56:59], s11 offen sc1")]
    late += [lambda: stat(f"buffer_load_dword v{GT+13}, v4, s[56:59], s8 offen sc1")]
    late += [lambda: stat(f"buffer_load_dwordx2 {v(GT+14,2)}, v2, s[56:59], s9 offen sc1", "st")]
    for i in range(optval("XE", 4)): late.pop(0)()
    a(f"s_waitcnt vmcnt({stP.younger(f'x{XP-1}')})")
    a.subbar(VC, 5, 10, 4, off=cX1)
    a.stamp(10 if not fine else 1)
    def xhook(ks, i):
        if i in (0, 4, 8, 10, 11, 3) and late: late.pop(0)()
    mphase(a, stP, 0, 6, 0, XP, prio=2, hook=xhook)
    assert not late
    a(f"s_waitcnt vmcnt({stP.younger('st')})")
    for i in range(1, 9): a(f"v_add_f32 v{GT}, v{GT}, v{GT+i}")
    a(f"v_mov_b32 v{GT+1}, {fh(1.0/D)}\nv_fmaak_f32 v{GT}, v{GT+1}, v{GT}, {fh(EPS)}")
    a(f"v_rsq_f32 v{GT+12}, v{GT}")
    a(f"v_add_u32 v5, {RM}, v2\ns_nop 0")
    a(f"ds_write_b128 v5, {v(GT+12,4)}")
    a.subbar(VC, 5, 7, 4, off=cX2)
    kw = 18 - (NS + 2) // 3
    def w3hook(ks, i):
        if ks == kw - 1 and i == 10: a.ldswait(VC, 5, 7, 1, cW3)
    mphase(a, stP, 0, 6, XP, 18, first=False, prio=2, hook=w3hook)
    if fine: a.stamp(2)
    rk()
    a.ldswait(VC, 5, 7, 4, cSide)
    gphase(a, 10, 12)
    a.ldsadd(VC, V1, cH1)
    if fine: a.stamp(3)
    a("s_add_u32 s71, s71, 24")
    h_addr(a, 71, 10, 12)
    a.ldswait(VC, 5, 7, 1, cW4)
    mphase(a, stP, 1, 6, prio=1)
    a.ldsadd(VC, V1, cA)
    if fine: a.stamp(4)
    def sthook(i):
        if i == 1:
            a.ldswait(VC, 5, 7, 4, cA)
            a.ldswait(VC, 5, 7, 8, cH1)
            stage_x(a)
            stage_y(a)
    gphase(a, 10, 12, sthook)
    a("s_waitcnt vmcnt(0)")
    a.subbar(VC, 5, 7, 4, off=cH2)
    if fine: a.stamp(5)
    mphase(a, stP, 2, 8)
    if fine: a.stamp(6)
    a("s_add_u32 s6, s67, 14336\ns_add_u32 s7, s69, 128")
    pend = []
    for k, (t, mp) in enumerate([(0, 0), (0, 1), (1, 0), (1, 1)]):
        pend += pstore(a, MACC, t, mp, 67 if t == 0 else 6, mp * 1024, k)
    state = {"flag": False}
    def hook(ks, i):
        if (ks >= 1 or i >= 3) and i not in (1, 5) and pend:
            ins = pend.pop(0); a(ins)
            if ins.startswith("buffer"): stP.other("e" if not pend else "x")
        if not pend and not state["flag"] and ks == optval("EFLAG", 14) and i == 0:
            a(f"s_waitcnt vmcnt({stP.younger('e')})")
            a.setflag("s7", 14); stP.other()
            state["flag"] = True
    mphase(a, stP, 3, 8, acc=MACC + 32, hook=hook)
    assert state["flag"]
    if fine: a.stamp(7)
    a("s_setprio 3")
    a.nop(8)
    for k, (t, mp) in enumerate([(0, 0), (0, 1), (1, 0), (1, 1)]):
        for ins in pstore(a, MACC + 32, t, mp, 67 if t == 0 else 6, 2048 + mp * 1024, k): a(ins)
    a("s_add_u32 s7, s69, 256")
    a("s_waitcnt vmcnt(0)")
    a.sadd(7, 6)
    a.end()
    a("K6_q:")
    a("s_setprio 0")
    a.stamp(8 if not fine else 2)
    a("s_cmp_lg_u32 s3, 7\ns_cbranch_scc1 KB_q3")
    a("s_add_u32 s8, s70, 256")
    if not ({"nobulk", "nopt"} & set(OPT)): a.cpoll(8, 1, 44, 13, 16)
    a.ldsadd(VC, V1, cW3)
    a("KB_q3:")
    a.ldswait(VC, 5, 7, 1, cW3, sleep=2)
    QW = optval("QRW", -1)
    if QW >= 0: a.ldswait(VC, 5, 7, 4, QW, sleep=2)
    paced(a, stQ, NS, optval("QPACE", 4))
    a("s_waitcnt vmcnt(0)")
    a(f"s_lshl_b32 s12, s3, 8\ns_add_u32 s12, s12, s2\ns_sub_u32 s12, s12, 1792\ns_cmp_ge_u32 s12, {432-W4F}\ns_cbranch_scc1 K6_nj")
    W4W = optval("W4W", cX2)
    if W4W >= 0: a.ldswait(VC, 5, 7, {cG2: 8, cFX: 1}.get(W4W, 4), W4W, sleep=2)
    a(f"s_add_u32 s12, s12, {738+W4F}\ns_lshl_b32 s61, s3, 12\ns_add_u32 s61, s61, {FSCR-6*4096}\ns_mov_b32 s99, 1\ns_setprio {optval('J2P', 3)}")
    if not ({"nobulk", "nopt"} & set(OPT)): a("s_branch F_job2")
    a("K6_jret:")
    a("s_waitcnt vmcnt(0)")
    a.sarrive(6, "s100", 8)
    a("s_setprio 0")
    a("K6_nj:")
    a.ldsadd(VC, V1, cSide)
    a.stamp(9 if not fine else 3)
    addrs()
    a.ldswait(VC, 5, 7, 4, cX2)
    rk()
    mphase(a, stQ, 0, 6, 0, kw, prio=2)
    a("s_cmp_lg_u32 s3, 7\ns_cbranch_scc1 KB_q2c")
    if not ({"nobulk", "nopt"} & set(OPT)): a.cpoll(70, 1, 44, 13, 8)
    a.ldsadd(VC, V1, cW4)
    a("KB_q2c:")
    a.ldswait(VC, 5, 7, 1, cW4)
    mphase(a, stQ, 0, 6, kw, 18, first=False, prio=2)
    a.ldswait(VC, 5, 7, 4, cSide)
    if fine: a.stamp(4)
    a(f"s_lshr_b32 s8, s4, 1\ns_mul_i32 s8, s8, {FB_STRIDE}\ns_add_u32 s8, s8, {FY_OFF}")
    def yhook(i):
        if i == 3:
            a("s_cmp_lg_u32 s3, 7\ns_cbranch_scc1 KB_ys")
            if not ({"nobulk", "nopt"} & set(OPT)): a.vpoll(8, 144, 14, 13, 32)
            a("KB_ys:")
    gphase(a, 10, 12, yhook)
    a.subbar(VC, 5, 7, 8, off=cH1)
    if fine: a.stamp(5)
    mphase(a, stQ, 1, 8, 0, 12, prio=1)
    a.ldswait(VC, 5, 7, 4, cH2)
    if fine: a.stamp(7)
    mphase(a, stQ, 1, 8, 12, 18, first=False, prio=1)
    a(f"s_setprio {optval('QT', 1)}")
    a.stamp(10)
    a.nop(8)
    for k in range(10):
        if k and k % 4 == 0: a("s_add_u32 s67, s67, 4096")
        for x in pstore(a, MACC, k >> 1, k & 1, 67, (k % 4) * 1024, k): a(x)
    a("s_waitcnt vmcnt(0)")
    a.sadd(69, 6)
    a(f"s_setprio {optval('QF', 0)}")
    st = a.stamps; a.stamps = st and fine
    gen_final(a)
    a.stamps = st
    a.end()
    a("K6_end:")
    a("s_endpgm")
```

```python
S, D, F = 2048, 576, 4608
ACT = S * D * 2
H_OFF    = 0x0000000
X1_OFF   = 0x0240000
KV_OFF   = 0x0480000
KV_PITCH = 4224
Y_OFF    = 0x0700000
W2M_OFF  = 0x0940000
CSUM_OFF = W2M_OFF + 3072
ST1_OFF  = CSUM_OFF + 9216
CLR_KB   = 44
SS_OFF   = 0x0950000
MEAN_OFF = 0x0968000
FLAG_OFF = 0x0970000
FB_STRIDE = 4352
FX_OFF   = FLAG_OFF
FP_OFF   = FLAG_OFF + 128
FW4_OFF  = FLAG_OFF + 32 * FB_STRIDE
FY_OFF   = FLAG_OFF + 40 * FB_STRIDE
FH_OFF   = FLAG_OFF + 16 * FB_STRIDE
FW3A_OFF = FW4_OFF + 128
FW3R_OFF = FW4_OFF + 256
FKV_OFF  = FY_OFF + 128
FM_OFF   = FY_OFF + 3 * FB_STRIDE + 128
FCNT = 12 * FB_STRIDE
FKC_OFF  = FLAG_OFF + 56 * FB_STRIDE
FLAG_WAVES = 17
W3T_OFF  = 0x0A00000
W4T_OFF  = 0x0F10000
PART_OFF = 0x1420000
STAMP_OFF = 0x2620000
WS_BYTES = 0x2700000
WSLICE = 18 * 36 * 1024

EPS = 1e-5
import struct, os
def f2u(x): return struct.unpack("<I", struct.pack("<f", x))[0]
def fh(x): return "0x%08x" % f2u(x)

def v(n, c=1): return f"v{n}" if c == 1 else f"v[{n}:{n+c-1}]"
def s(n, c=1): return f"s{n}" if c == 1 else f"s[{n}:{n+c-1}]"

P_Q, P_K, P_V, P_SHK, P_SSMK, P_SSMD, P_BX, P_W1, P_W2, P_W3, P_W4, P_OUT, P_DBG, P_WS = [16 + 2 * i for i in range(14)]

class Asm:
    def __init__(self):
        self.L = []
        self.n = 0
        self.stamps = False
        self.kid = 0
    def stamp(self, i):
        if self.stamps: self(f"{'s_memtime' if 'cyc' in os.environ.get('OPT','') else 's_memrealtime'} s[{72+2*i}:{73+2*i}]")
    def stamp_init(self):
        if self.stamps:
            for i in range(12): self(f"s_mov_b32 s{72+2*i}, 0")
            self.stamp(0)
    def end(self, i=11):
        if self.stamps:
            self("s_waitcnt vmcnt(0) lgkmcnt(0)")
            self.stamp(i)
            self.srd(56, P_WS, WS_BYTES)
            self("s_mov_b64 exec, 1")
            self(f"s_lshl_b32 s6, s2, 3\ns_add_u32 s6, s6, s3\ns_lshl_b32 s6, s6, 6\ns_add_u32 s6, s6, {STAMP_OFF + self.kid * 0x28000}")
            self("v_mov_b32 v4, 0\ns_waitcnt lgkmcnt(0)")
            for q in range(3):
                for e in range(4): self(f"v_mov_b32 v{8+4*q+e}, s{72+8*q+2*e}")
                self(f"buffer_store_dwordx4 v[{8+4*q}:{11+4*q}], v4, s[56:59], s6 offen offset:{16*q}")
            if os.environ.get("HOLD"):
                idx, wid = os.environ["HOLD"].split(",")
                l = self.lab("HS"); l2 = self.lab("HL")
                self(f"s_lshl_b32 s6, s2, 3\ns_add_u32 s6, s6, s3\ns_cmp_lg_u32 s6, {wid}\ns_cbranch_scc1 {l}")
                self(f"{l2}:\ns_sleep 1\ns_memrealtime s[8:9]\ns_waitcnt lgkmcnt(0)\ns_sub_u32 s8, s8, s{72+2*int(idx)}\ns_cmp_lt_u32 s8, 10000\ns_cbranch_scc1 {l2}")
                self(f"{l}:")
            if "dbgst" in os.environ.get("OPT", ""):
                l = self.lab("DS")
                self(f"s_lshl_b32 s6, s2, 3\ns_add_u32 s6, s6, s3\ns_cmp_lg_u32 s6, {os.environ.get('DBGW', '41')}\ns_cbranch_scc1 {l}")
                for i in range(1, 12):
                    self(f"v_subrev_u32 v20, s72, v{8+i}\nglobal_store_dword v4, v20, {s(P_DBG,2)} offset:{4+4*i}")
                self(f"{l}:")
        self("s_endpgm")
    def __call__(self, t):
        for line in t.split("\n"):
            line = line.strip()
            if line:
                self.L.append(("" if line.endswith(":") or line.startswith(".") else "  ") + line)
    def lab(self, p="L"):
        self.n += 1
        return f"{p}_{self.n}"
    def text(self): return "\n".join(self.L) + "\n"
    def kernargs(self):
        self("s_load_dwordx16 s[16:31], s[0:1], 0")
        self("s_load_dwordx8 s[32:39], s[0:1], 64")
        self("s_load_dwordx4 s[40:43], s[0:1], 96")
    def srd(self, d, p, nbytes):
        self(f"s_mov_b32 s{d}, s{p}\ns_mov_b32 s{d+1}, s{p+1}\ns_mov_b32 s{d+2}, {nbytes}\ns_mov_b32 s{d+3}, 0x20000")
    def mfma(self, d, a, b, c=None):
        cc = v(d, 4) if c is None else c
        self(f"v_mfma_f32_16x16x32_bf16 {v(d,4)}, {v(a,4)}, {v(b,4)}, {cc}")
    def nop(self, n):
        while n > 0:
            k = min(n, 16)
            self(f"s_nop {k-1}")
            n -= k
    def prefetch_code(self, endlabel, vtmp, vdst, stmp):
        l = self.lab("PF")
        self(f"s_getpc_b64 {s(stmp,2)}")
        self(f"{l}:")
        self(f"v_and_b32 {v(vtmp)}, 15, v0")
        self(f"v_lshlrev_b32 {v(vtmp)}, 5, {v(vtmp)}")
        self(f"s_lshr_b32 s{stmp+2}, s2, 3")
        self(f"v_add_lshl_u32 {v(vtmp)}, s{stmp+2}, {v(vtmp)}, 7")
        self(f"v_min_u32 {v(vtmp)}, {endlabel}-{l}-4, {v(vtmp)}")
        self(f"global_load_dword {v(vdst)}, {v(vtmp)}, {s(stmp,2)} nt")
    def subbar(self, vaddr, vtmp, stmp, n, off=0):
        self("s_mov_b64 exec, 1")
        self(f"v_mov_b32 {v(vtmp)}, 1")
        self(f"ds_add_u32 {v(vaddr)}, {v(vtmp)} offset:{off}")
        self("s_mov_b64 exec, -1")
        self.ldswait(vaddr, vtmp, stmp, n, off)
    def ldswait(self, vaddr, vtmp, stmp, n, off=0, sleep=1):
        l = self.lab("LW"); d = self.lab("LD")
        self(f"{l}:")
        self(f"ds_read_b32 {v(vtmp)}, {v(vaddr)} offset:{off}")
        self("s_waitcnt lgkmcnt(0)")
        self(f"v_readfirstlane_b32 s{stmp}, {v(vtmp)}")
        self(f"s_cmp_ge_u32 s{stmp}, {n}")
        self(f"s_cbranch_scc1 {d}")
        self(f"s_sleep {max(sleep, int(os.environ.get('LSLEEP', '1')))}")
        self(f"s_branch {l}")
        self(f"{d}:")
    def poll(self, vaddr, soff, vtmp, stmp, sleep=1):
        l = self.lab("PL"); d = self.lab("PD")
        self(f"s_mov_b32 s{stmp}, 0x40000")
        self(f"{l}:")
        self(f"buffer_load_dword {v(vtmp)}, {v(vaddr)}, s[56:59], {soff} offen sc1")
        self("s_waitcnt vmcnt(0)")
        self(f"v_cmp_eq_u32 vcc, 0, {v(vtmp)}")
        self(f"s_cbranch_vccz {d}")
        self(f"s_sleep {sleep}")
        self(f"s_sub_u32 s{stmp}, s{stmp}, 1")
        self(f"s_cbranch_scc0 {l}")
        self(f"{d}:")
    def spoll(self, n, soff, sd, stmp, sleep=1):
        l = self.lab("SP"); d = self.lab("SD")
        self(f"s_mov_b32 s{stmp}, 0x40000")
        self(f"{l}:")
        self(f"s_load_dwordx{n} {s(sd,n)}, {s(P_WS,2)}, s{soff} glc")
        self("s_waitcnt lgkmcnt(0)")
        k = n
        while k > 2:
            k //= 2
            for i in range(0, k, 2): self(f"s_and_b64 {s(sd+i,2)}, {s(sd+i,2)}, {s(sd+k+i,2)}")
        self(f"s_and_b32 s{sd}, s{sd}, s{sd+1}")
        self(f"s_cbranch_scc1 {d}")
        if sleep: self(f"s_sleep {sleep}")
        self(f"s_sub_u32 s{stmp}, s{stmp}, 1")
        self(f"s_cbranch_scc0 {l}")
        self(f"{d}:")
    def cpoll(self, soff, n, sd, stmp, sleep=1):
        l = self.lab("CP"); d = self.lab("CD")
        self(f"s_mov_b32 s{stmp}, 0x40000")
        self(f"{l}:")
        self(f"s_load_dword s{sd}, {s(P_WS,2)}, s{soff} glc")
        self("s_waitcnt lgkmcnt(0)")
        self(f"s_cmp_ge_u32 s{sd}, {n}")
        self(f"s_cbranch_scc1 {d}")
        if sleep: self(f"s_sleep {sleep}")
        self(f"s_sub_u32 s{stmp}, s{stmp}, 1")
        self(f"s_cbranch_scc0 {l}")
        self(f"{d}:")
    def vpoll(self, soff, n, vtmp, stmp, sleep=8):
        l = self.lab("VP"); d = self.lab("VD")
        self(f"s_mov_b32 s{stmp}, 0x20000\nv_mov_b32 {v(vtmp)}, 0")
        self(f"{l}:")
        self(f"buffer_load_dword {v(vtmp+1)}, {v(vtmp)}, s[56:59], s{soff} offen sc1")
        self("s_waitcnt vmcnt(0)")
        self(f"v_cmp_gt_u32 vcc, {n}, {v(vtmp+1)}")
        self(f"s_cbranch_vccz {d}")
        self(f"s_sleep {sleep}")
        self(f"s_sub_u32 s{stmp}, s{stmp}, 1")
        self(f"s_cbranch_scc0 {l}")
        self(f"{d}:")
    def zcheck(self, vtmp, stmp, drain=True):
        l = self.lab("ZP"); d = self.lab("ZD")
        self(f"s_load_dword s{stmp}, {s(P_DBG,2)}, 0")
        self("s_waitcnt vmcnt(0) lgkmcnt(0)" if drain else "s_waitcnt lgkmcnt(0)")
        self(f"s_cmp_lg_u32 s{stmp}, 0\ns_cbranch_scc1 {d}")
        self(f"s_mov_b32 s{stmp}, 0x20000\nv_mov_b32 {v(vtmp)}, 0")
        self(f"{l}:")
        self(f"global_load_dword {v(vtmp+1)}, {v(vtmp)}, {s(P_DBG,2)} sc1")
        self("s_waitcnt vmcnt(0)")
        self(f"v_cmp_eq_u32 vcc, 0, {v(vtmp+1)}")
        self(f"s_cbranch_vccz {d}")
        self("s_sleep 4")
        self(f"s_sub_u32 s{stmp}, s{stmp}, 1")
        self(f"s_cbranch_scc0 {l}")
        self(f"{d}:")
    def sarrive(self, soff, n, stmp, scnt=None):
        d = self.lab("SA")
        if scnt is None:
            scnt = stmp + 1
            self(f"s_add_u32 s{scnt}, s{soff}, {FCNT}")
        self(f"s_mov_b32 s{stmp}, 1\ns_atomic_add s{stmp}, {s(P_WS,2)}, s{scnt} glc")
        self(f"s_waitcnt lgkmcnt(0)\ns_add_u32 s{stmp}, s{stmp}, 1\ns_cmp_lg_u32 s{stmp}, {n}\ns_cbranch_scc1 {d}")
        self(f"s_atomic_add s101, {s(P_WS,2)}, s{soff}")
        self(f"{d}:")
    def dpoll(self, soff, sd, stmp, sleep=4):
        d = self.lab("DP")
        self(f"s_load_dword s{sd}, {s(P_WS,2)}, s{soff}\ns_waitcnt lgkmcnt(0)\ns_cmp_lg_u32 s{sd}, 0\ns_cbranch_scc1 {d}")
        self.cpoll(soff, 1, sd, stmp, sleep)
        self(f"{d}:")
    def sadd(self, soff, stmp):
        self(f"s_atomic_add s101, {s(P_WS,2)}, s{soff}")
    def arrive(self, soff, n, vtmp, stmp):
        d = self.lab("AR")
        self("s_mov_b64 exec, 1")
        self(f"v_mov_b32 {v(vtmp)}, {FCNT}\nv_mov_b32 {v(vtmp+1)}, 1")
        self(f"buffer_atomic_add {v(vtmp+1)}, {v(vtmp)}, s[56:59], s{soff} offen sc0 sc1")
        self("s_waitcnt vmcnt(0)")
        self(f"v_readfirstlane_b32 s{stmp}, {v(vtmp+1)}")
        self(f"s_add_u32 s{stmp}, s{stmp}, 1\ns_cmp_lg_u32 s{stmp}, {n}")
        self(f"s_cbranch_scc1 {d}")
        self(f"v_mov_b32 {v(vtmp)}, 0\nv_mov_b32 {v(vtmp+1)}, 1")
        self(f"buffer_store_dword {v(vtmp+1)}, {v(vtmp)}, s[56:59], s{soff} offen sc1")
        self("s_waitcnt vmcnt(0)")
        self(f"{d}:")
        self("s_mov_b64 exec, -1")
    def addflag(self, soff, vtmp):
        self("s_mov_b64 exec, 1")
        self(f"v_mov_b32 {v(vtmp)}, 0\nv_mov_b32 {v(vtmp+1)}, 1")
        self(f"buffer_atomic_add {v(vtmp+1)}, {v(vtmp)}, s[56:59], {soff} offen sc1")
        self("s_mov_b64 exec, -1")
    def ldsadd(self, vaddr, vone, off):
        self("s_mov_b64 exec, 1")
        self(f"ds_add_u32 {v(vaddr)}, {v(vone)} offset:{off}")
        self("s_mov_b64 exec, -1")
    def setflag(self, soff, vtmp):
        self("s_mov_b64 exec, 1")
        self(f"v_mov_b32 {v(vtmp)}, 0\nv_mov_b32 {v(vtmp+1)}, 1")
        self(f"buffer_store_dword {v(vtmp+1)}, {v(vtmp)}, s[56:59], {soff} offen sc1")
        self("s_mov_b64 exec, -1")

def desc(name, nv, ns=100):
    nv = (nv + 7) // 8 * 8
    return f""".p2align 6
.amdhsa_kernel {name}
  .amdhsa_next_free_vgpr {nv}
  .amdhsa_next_free_sgpr {ns}
  .amdhsa_accum_offset {min(nv, 256)}
  .amdhsa_group_segment_fixed_size 0
  .amdhsa_kernarg_size 112
  .amdhsa_user_sgpr_count 2
  .amdhsa_user_sgpr_kernarg_segment_ptr 1
  .amdhsa_system_sgpr_workgroup_id_x 1
  .amdhsa_float_denorm_mode_32 3
.end_amdhsa_kernel
"""

GC0 = -2.0 * 0.7978845608028654 * 1.4426950408889634
GC1 = GC0 * 0.044715
LOG2E = 1.4426950408889634

import os
OPT = os.environ.get("OPT", "").split(",")
def optval(name, default):
    return int(os.environ.get(name, default))

def gelu_vals(a, regs, tmps, k0, k1):
    n = len(regs)
    K0 = k0 if isinstance(k0, list) else [k0] * n
    K1 = k1 if isinstance(k1, list) else [k1] * n
    nt = len(tmps)
    for b in range(0, n, nt):
        idx = list(range(b, min(b + nt, n)))
        for i in idx: a(f"v_mul_f32 {v(tmps[i-b])}, {v(regs[i])}, {v(regs[i])}")
        for i in idx: a(f"v_fma_f32 {v(tmps[i-b])}, {v(tmps[i-b])}, {K1[i]}, {K0[i]}")
        for i in idx: a(f"v_mul_f32 {v(tmps[i-b])}, {v(tmps[i-b])}, {v(regs[i])}")
        for i in idx: a(f"v_exp_f32 {v(tmps[i-b])}, {v(tmps[i-b])}")
        for i in idx: a(f"v_add_f32 {v(tmps[i-b])}, 1.0, {v(tmps[i-b])}")
        for i in idx: a(f"v_rcp_f32 {v(tmps[i-b])}, {v(tmps[i-b])}")
        for i in idx: a(f"v_mul_f32 {v(regs[i])}, {v(tmps[i-b])}, {v(regs[i])}")

def gsum(a, r, t):
    a(f"v_mov_b32 v{t}, v{r}\ns_nop 1\nv_permlane32_swap_b32 v{r}, v{t}\nv_add_f32 v{r}, v{r}, v{t}")
    a(f"v_mov_b32 v{t}, v{r}\ns_nop 1\nv_permlane16_swap_b32 v{r}, v{t}\nv_add_f32 v{r}, v{r}, v{t}")

def gen_pretile(a, R=32):
    a("v_lshrrev_b32 v18, 3, v1\nv_and_b32 v19, 7, v1")
    a("v_mul_lo_u32 v20, v18, s7")
    a("v_lshl_add_u32 v20, v19, 4, v20")
    a("s_lshl_b32 s10, s7, 3")
    for i in range(3):
        if i: a("s_sub_u32 s6, s6, s11")
        for rg in range(4):
            a(f"buffer_load_dwordx4 {v(R+16*i+4*rg,4)}, v20, s[44:47], s6 offen offset:{128*i} nt")
            if rg < 3: a("s_add_u32 s6, s6, s10")
        if i == 0: a("s_mul_i32 s11, s10, 3")
    a("v_lshlrev_b32 v21, 4, v1\nv_add_u32 v22, s9, v21")
    a("v_lshrrev_b32 v23, 2, v1\nv_lshlrev_b32 v23, 7, v23\nv_and_b32 v19, 3, v1\nv_lshl_add_u32 v23, v19, 3, v23\nv_add_u32 v23, s9, v23")
    for i in range(3):
        a(f"s_waitcnt vmcnt(8)")
        for rg in range(4):
            a(f"ds_write_b128 v22, {v(R+16*i+4*rg,4)} offset:{1024*rg}")
        for tn in range(4):
            a(f"ds_read_b64_tr_b16 {v(R+48+16*i+4*tn,2)}, v23 offset:{tn*32}")
            a(f"ds_read_b64_tr_b16 {v(R+48+16*i+4*tn+2,2)}, v23 offset:{2048+tn*32}")
        a("s_waitcnt lgkmcnt(0)")
        for tn in range(4):
            a(f"buffer_store_dwordx4 {v(R+48+16*i+4*tn,4)}, v21, s[56:59], s8 offen offset:{tn*1024} sc1")
        a("s_add_u32 s8, s8, 4096")
```

```python
from common import *
from kb4 import VC, V1
FA, FB, ACC = 96, 160, 224
KF = 4 * 4160

def setup(a):
    a("s_lshl_b32 s8, s6, 1\ns_and_b32 s8, s8, 0xfffffffc")
    a(f"s_load_dword s15, {s(P_SSMD,2)}, s8")
    a("v_lshlrev_b32 v5, 3, v1\nv_add_u32 v5, s7, v5\nv_mov_b32 v18, 0\nv_mov_b32 v19, 0")
    a(f"ds_write_b64 v5, v[18:19] offset:{KF}")
    a("v_and_b32 v6, 15, v1\nv_lshrrev_b32 v7, 4, v1")
    a("v_sub_u32 v8, 3, v6\nv_and_b32 v8, 3, v8\nv_mul_u32_u24 v8, 4160, v8")
    a("v_and_b32 v9, 12, v6\nv_lshlrev_b32 v9, 1, v9\nv_sub_u32 v8, v8, v9")
    a("v_lshlrev_b32 v9, 4, v7\nv_sub_u32 v8, v8, v9")
    a(f"v_add_u32 v8, {4104-3584}, v8\nv_add_u32 v8, s7, v8")
    a("v_lshlrev_b32 v10, 5, v6\nv_sub_u32 v10, v10, v9")
    a(f"v_add_u32 v10, {KF+512+16}, v10\nv_add_u32 v10, s7, v10")
    a("v_add_u32 v11, s7, v2")
    a("v_min_u32 v12, 16, v2\nv_add_u32 v12, s7, v12\nv_add_u32 v12, 4096, v12")
    a("v_lshlrev_b32 v20, 5, v6\nv_lshl_add_u32 v20, v7, 3, v20")
    a(f"v_sub_u32 v21, {4088-3584}, v20\nv_add_u32 v21, s7, v21")
    for r in range(32): a(f"v_mov_b32 v{ACC+r}, 0")

def build(a, chunks):
    n = len(chunks)
    for c, (ad, o) in enumerate(chunks):
        b = FA + 12 * c
        a(f"ds_read_b128 {v(b,4)}, v{ad} offset:{o}")
        a(f"ds_read_b128 {v(b+4,4)}, v{ad} offset:{o+2*4160}")
        a(f"ds_read_b64 {v(b+8,2)}, v{ad} offset:{o+16}")
    for c, (ad, o) in enumerate(chunks):
        b = FA + 12 * c; d = FB + 8 * c
        a(f"s_waitcnt lgkmcnt({3*(n-1)-c})")
        for e in range(4): a(f"v_alignbit_b32 v{d+e}, v{b+4+e}, v{b+e}, 16")
        for e in range(4): a(f"v_alignbit_b32 v{d+4+e}, v{b+2+e if e < 2 else b+6+e}, v{b+4+e}, 16")
        a(f"ds_write_b128 v{ad}, {v(d,4)} offset:{o+4160}")
        a(f"ds_write_b128 v{ad}, {v(d+4,4)} offset:{o+3*4160}")

def reads(st):
    o = []
    for m in range(8):
        o.append(f"ds_read_b128 {v(FB+32*st+4*m,4)}, v10 offset:{512*m}")
        o.append(f"ds_read_b64 {v(FA+32*st+4*m,2)}, v8 offset:{512*(7-m)}")
        o.append(f"ds_read_b64 {v(FA+32*st+4*m+2,2)}, v8 offset:{512*(7-m)+8}")
    return o
ORDER = sorted([(i, m) for i in range(8) for m in range(i + 1)], key=lambda im: (max(im[1], im[0] - im[1]), im[1], im[0]))

def body(a, extra=None, last=False):
    for st in range(2):
        a("v_subrev_u32 v8, 64, v8\nv_subrev_u32 v10, 64, v10")
        a("s_waitcnt lgkmcnt(0)")
        rd = reads(1 - st) if not (last and st == 1) else []
        for n, (i, m) in enumerate(ORDER):
            a.mfma(ACC + 4 * i, FA + 32 * st + 4 * m, FB + 32 * st + 4 * (i - m))
            if n < len(rd): a(rd[n])
            if extra and n >= 24 and n < 32: extra()

def dval(a):
    a("s_lshl_b32 s13, s15, 16\ns_and_b32 s14, s15, 0xffff0000\ns_bitcmp1_b32 s6, 0\ns_cselect_b32 s13, s14, s13")

def out_tile(a, acc, kv, pk, off):
    T = 22
    a(f"v_and_b32 v{T}, 0xffff0000, v{kv+1}\nv_lshlrev_b32 v{T+1}, 16, v{kv+1}")
    a(f"v_and_b32 v{T+2}, 0xffff0000, v{kv}\nv_lshlrev_b32 v{T+3}, 16, v{kv}")
    for r in range(4): a(f"v_fmac_f32 v{acc+r}, s13, v{T+r}")
    a(f"v_cvt_pk_bf16_f32 v{pk}, v{acc}, v{acc+1}\nv_cvt_pk_bf16_f32 v{pk+1}, v{acc+2}, v{acc+3}")
    a(f"buffer_store_dwordx2 {v(pk,2)}, v20, s[56:59], s10 offen offset:{off} sc1")

def fy_addr(a):
    a(f"s_lshl_b32 s6, s6, 5\ns_add_u32 s6, s6, {FYW_OFF}")

def kv_flag_addr(a, d):
    a(f"s_lshr_b32 s{d}, s6, 6\ns_mul_i32 s9, s{d}, 86\ns_lshr_b32 s9, s9, 8\ns_mul_i32 s9, s9, {FB_STRIDE-384}\ns_lshl_b32 s{d}, s{d}, 7\ns_add_u32 s{d}, s{d}, s9\ns_add_u32 s{d}, s{d}, {FKV_OFF}")

def single(a, wait_kv, gate, extra):
    a.srd(48, P_SSMK, ACT)
    a(f"s_lshl_b32 s10, s6, 12\ns_add_u32 m0, s7, {KF+512}\ns_mul_i32 s54, s6, {KV_PITCH}\ns_add_u32 s54, s54, {KV_OFF}\ns_add_u32 s11, s54, 4")
    for i in range(4): a(f"buffer_load_dwordx4 v2, s[48:51], s10 offen offset:{i*1024} nt lds")
    setup(a)
    wait_kv()
    a("s_mov_b32 m0, s7\ns_nop 0")
    for i in range(4): a(f"buffer_load_dwordx4 v2, s[56:59], s54 offen offset:{i*1024} sc1 lds")
    a(f"s_add_u32 m0, s7, {2*4160}\ns_nop 0")
    for i in range(4): a(f"buffer_load_dwordx4 v2, s[56:59], s11 offen offset:{i*1024} sc1 lds")
    a("s_mov_b64 exec, 7\ns_add_u32 m0, s7, 4096\ns_nop 0")
    a("buffer_load_dwordx4 v3, s[56:59], s54 offen sc1 lds")
    a(f"s_add_u32 m0, s7, {2*4160+4096}\ns_nop 0")
    a("buffer_load_dwordx4 v3, s[56:59], s11 offen sc1 lds")
    a("s_mov_b64 exec, -1")
    a("s_waitcnt vmcnt(0) lgkmcnt(0)")
    a.stamp(5)
    build(a, [(11, c * 1024) for c in range(4)] + [(12, 0)])
    for t in reads(0): a(t)
    a("s_mov_b32 s12, 2")
    a("CV_k:")
    body(a)
    a("s_sub_u32 s12, s12, 1\ns_cmp_lg_u32 s12, 0\ns_cbranch_scc1 CV_k")
    a.stamp(6)
    gate()
    a.stamp(7)
    body(a, extra)
    body(a, None, True)
    for i in range(8): a(f"ds_read_b64 {v(FA+2*i,2)}, v21 offset:{512*(7-i)}")
    dval(a)
    a(f"s_add_u32 s10, s10, {Y_OFF}")
    a("s_waitcnt lgkmcnt(0)")
    for i in range(8): out_tile(a, ACC + 4 * i, FA + 2 * i, FB + 2 * i, 512 * i)
    fy_addr(a)

def team(a, base, red, c1, c2, c3, gate, extra):
    a.srd(48, P_SSMK, ACT)
    a(f"s_mov_b32 s7, {base}\ns_sub_u32 s55, s3, 4\ns_lshl_b32 s12, s55, 10")
    a(f"s_lshl_b32 s10, s6, 12\ns_mul_i32 s54, s6, {KV_PITCH}\ns_add_u32 s54, s54, {KV_OFF}\ns_add_u32 s11, s54, 4")
    a(f"v_add_u32 v5, s12, v2\ns_add_u32 m0, s12, {base}\ns_nop 0")
    a("buffer_load_dwordx4 v5, s[56:59], s54 offen sc1 lds")
    a(f"s_add_u32 m0, s12, {base+2*4160}\ns_nop 0")
    a("buffer_load_dwordx4 v5, s[56:59], s11 offen sc1 lds")
    a(f"s_add_u32 m0, s12, {base+KF+512}\ns_nop 0")
    a("buffer_load_dwordx4 v5, s[48:51], s10 offen nt lds")
    a(f"s_mov_b64 exec, 7\ns_mov_b32 m0, {base+4096}\ns_nop 0")
    a("buffer_load_dwordx4 v3, s[56:59], s54 offen sc1 lds")
    a(f"s_mov_b32 m0, {base+2*4160+4096}\ns_nop 0")
    a("buffer_load_dwordx4 v3, s[56:59], s11 offen sc1 lds")
    a("s_mov_b64 exec, -1")
    setup(a)
    a("v_add_u32 v11, s12, v11\ns_lshl_b32 s8, s55, 7\nv_subrev_u32 v8, s8, v8\nv_subrev_u32 v10, s8, v10\nv_subrev_u32 v21, s12, v21\nv_add_u32 v20, s12, v20")
    a(f"s_lshl_b32 s8, s55, 13\ns_add_u32 s8, s8, {red}\nv_add_u32 v26, s8, v2\ns_lshl_b32 s8, s55, 11\ns_add_u32 s8, s8, {red}\nv_add_u32 v27, s8, v2")
    a("s_waitcnt vmcnt(0)")
    a.subbar(VC, 5, 8, 4, off=c1)
    build(a, [(11, 0), (12, 0)])
    a.subbar(VC, 5, 8, 4, off=c2)
    gate()
    for t in reads(0): a(t)
    body(a, extra, True)
    for i in range(2): a(f"ds_read_b64 {v(FA+2*i,2)}, v21 offset:{512*(7-i)}")
    dval(a)
    a(f"s_add_u32 s10, s10, {Y_OFF}")
    a.nop(4)
    for i in range(8): a(f"ds_write_b128 v26, {v(ACC+4*i,4)} offset:{1024*i}")
    a.subbar(VC, 5, 8, 4, off=c3)
    for i in range(2):
        for w in range(4): a(f"ds_read_b128 {v(FB+16*i+4*w,4)}, v27 offset:{8192*w+1024*i}")
    a("s_waitcnt lgkmcnt(0)")
    for i in range(2):
        b = FB + 16 * i
        for e in range(4): a(f"v_add_f32 v{b+e}, v{b+e}, v{b+4+e}\nv_add_f32 v{b+8+e}, v{b+8+e}, v{b+12+e}")
        for e in range(4): a(f"v_add_f32 v{b+e}, v{b+e}, v{b+8+e}")
        out_tile(a, b, FA + 2 * i, FB + 32 + 2 * i, 512 * i)
    fy_addr(a)
```

```python
from common import *
import kb4, km
from g1 import gelu_pk
import conv
from kb4 import Stream, mphase, gphase, h_addr, pstore, stage_x, stage_y, gen_final, gen_conv_load, paced, NS, RING, BF, MACC, KC, GT, ML_H, VC, V1

G2_WM, G2_W = 0, 2560
SLOT = 24576
G1_BASE = 76800
G1_AUX = 150528
CV_SZ = 21248
FSCR = 4 * CV_SZ
CNT = 158592
RM = CNT + 128
K6_LDS = RM + 1024
kb4.RM = RM
cG2, cX1, cX2, cFX, cSide, cH1, cA, cH2, cW4, cG1, cFH, cU, cW3, cHs, cW3a, cKV, cXs, cT1, cT2, cT3, cT0 = [4 * i for i in range(21)]
km.cG1 = cG1

W4F = optval('W4F', 432)

def last_of(a, off, n, skip):
    a(f"s_mov_b64 exec, 1\nds_add_rtn_u32 v5, v{VC}, v{V1} offset:{off}\ns_mov_b64 exec, -1")
    a("s_waitcnt lgkmcnt(0)")
    a("v_readfirstlane_b32 s7, v5")
    a(f"s_cmp_lg_u32 s7, {n-1}\ns_cbranch_scc1 {skip}")

def gen_g(a):
    BUF, ACC, STA, CSA, SQ, SM, CS, ONE, XA, WA = 32, 96, 112, 124, 140, 144, 148, 152, 184, 188
    log = []
    a("v_lshrrev_b32 v2, 2, v1\nv_and_b32 v3, 3, v1\nv_mul_u32_u24 v4, 1152, v2")
    a("v_lshrrev_b32 v6, 5, v1\nv_lshlrev_b32 v6, 1, v6\nv_xor_b32 v6, v6, v3\nv_lshl_add_u32 v6, v6, 4, v4")
    a("s_mul_i32 s10, s60, 147456\ns_mul_i32 s9, s3, 18432\ns_add_u32 s10, s10, s9")
    a("s_lshr_b32 s8, s3, 1\ns_mul_i32 s11, s8, 18432\ns_lshl_b32 s9, s61, 7\ns_add_u32 s11, s11, s9\ns_and_b32 s9, s3, 1\ns_lshl_b32 s9, s9, 6\ns_add_u32 s11, s11, s9")
    a("s_mul_i32 s14, s62, 7\ns_add_u32 s14, s14, 1\ns_mov_b32 s12, s61")
    a(f"s_lshl_b32 s13, s3, 10\ns_add_u32 s13, s13, {G1_BASE}")
    a("s_waitcnt lgkmcnt(0)")
    a.srd(48, P_Q, ACT)
    a.srd(44, P_W1, D * D * 2)
    def issue(gi):
        sl = (gi % 3) * SLOT
        a("s_add_u32 s12, s12, s14\ns_sub_u32 s9, s12, 9\ns_cmp_ge_u32 s12, 9\ns_cselect_b32 s12, s9, s12")
        a(f"s_lshl_b32 s15, s12, 7\ns_add_u32 s15, s15, s10\ns_add_u32 m0, s13, {sl}\ns_mul_i32 s9, s12, 73728")
        a("buffer_load_dwordx4 v6, s[48:51], s15 offen lds")
        a("s_add_u32 m0, m0, 8128\ns_add_u32 s9, s9, s11")
        a("buffer_load_dwordx4 v6, s[48:51], s15 offen offset:64 lds")
        a("s_add_u32 m0, m0, 8256\ns_nop 0")
        a("buffer_load_dwordx4 v6, s[44:47], s9 offen lds")
        log.extend(["x", "x", f"g{gi}"])
    younger = lambda key: len(log) - 1 - log.index(key)
    issue(0); issue(1)
    if "w1t" in OPT:
        a("s_mul_i32 s8, s62, 288\ns_lshl_b32 s9, s61, 6\ns_add_u32 s8, s8, s9\ns_add_u32 s8, s8, 32\ns_mul_i32 s9, s3, 36\ns_add_u32 s8, s8, s9")
        a("v_min_u32 v7, 35, v1\nv_add_u32 v7, s8, v7\nv_subrev_u32 v8, 576, v7\nv_min_u32 v7, v7, v8\nv_mul_u32_u24 v7, 1152, v7\ns_lshl_b32 s9, s61, 7")
        a("buffer_load_dword v31, v7, s[44:47], s9 offen")
        log.append("t")
    a.srd(56, P_WS, WS_BYTES)
    a("s_cmp_lg_u32 s3, 0\ns_cbranch_scc1 G_pf")
    a("s_mov_b64 exec, 0xffff")
    a(f"v_lshl_add_u32 v7, v1, 2, v{VC}\nv_mov_b32 v8, 0\nds_write2_b32 v7, v8, v8 offset0:0 offset1:16")
    a("s_mov_b64 exec, -1")
    a("G_pf:")
    a.srd(52, P_W2, D * D * 2)
    a("v_bfe_u32 v7, v1, 4, 1\nv_lshlrev_b32 v8, 1, v7\nv_xor_b32 v8, v8, v3\nv_lshl_add_u32 v30, v8, 4, v4")
    a(f"v_lshlrev_b32 v12, 6, v2\nv_lshl_add_u32 v12, v7, 5, v12\nv_lshl_add_u32 v12, v3, 3, v12\nv_add_u32 v22, {G2_W}, v12\nv_xor_b32 v23, 32, v22")
    a(f"s_mov_b32 s66, s11\ns_lshl_b32 s67, s3, 10\ns_add_u32 s67, s67, {G2_W}")
    a("v_and_b32 v2, 15, v1\nv_lshrrev_b32 v3, 4, v1")
    a("v_bfe_u32 v4, v1, 3, 1\nv_lshlrev_b32 v4, 1, v4")
    a("v_xor_b32 v5, v4, v3\nv_lshl_add_u32 v5, v2, 2, v5\nv_lshlrev_b32 v5, 4, v5")
    a("s_and_b32 s63, s3, 3\ns_lshr_b32 s64, s3, 2\ns_and_b32 s69, s3, 1\ns_lshr_b32 s70, s63, 1\ns_lshl_b32 s71, s63, 1\ns_add_u32 s71, s71, s64")
    a("s_lshl_b32 s9, s71, 10\ns_lshl_b32 s8, s69, 13\ns_add_u32 s9, s9, s8\nv_add_u32 v5, s9, v5")
    for i, x in enumerate((0, 1024, 8192, 9216)): a(f"v_xor_b32 v{XA+i}, {x}, v5\nv_add_u32 v{XA+i}, {G1_BASE}, v{XA+i}")
    a("v_lshrrev_b32 v5, 1, v3\nv_lshlrev_b32 v11, 11, v5\nv_and_b32 v8, 1, v3\nv_lshl_add_u32 v11, v8, 9, v11")
    a("v_lshrrev_b32 v7, 2, v2\nv_lshl_add_u32 v11, v7, 6, v11\nv_and_b32 v7, 3, v1\nv_lshl_add_u32 v11, v7, 3, v11\nv_lshl_add_u32 v11, v8, 5, v11")
    a("s_lshl_b32 s9, s64, 10\ns_lshl_b32 s8, s69, 12\ns_add_u32 s9, s9, s8\nv_add_u32 v11, s9, v11\ns_lshl_b32 s8, s70, 5\nv_xor_b32 v11, s8, v11")
    for i, x in enumerate((0, 32, 4096, 4128)): a(f"v_xor_b32 v{WA+i}, {x}, v11\nv_add_u32 v{WA+i}, {G1_BASE+16384}, v{WA+i}")
    a(f"v_xor_b32 v5, v5, v4\nv_lshl_add_u32 v5, v2, 2, v5\nv_lshlrev_b32 v20, 4, v5\nv_lshl_add_u32 v20, v8, 3, v20\ns_add_u32 s9, s13, {2*SLOT}\nv_add_u32 v20, s9, v20\nv_xor_b32 v21, 32, v20")
    a("v_lshlrev_b32 v13, 4, v2\nv_lshlrev_b32 v18, 4, v3\nv_lshlrev_b32 v25, 4, v1")
    a(f"s_lshl_b32 s9, s71, 8\ns_add_u32 s9, s9, {G1_AUX}\nv_add_u32 v26, s9, v13\nv_xor_b32 v27, 256, v26")
    a(f"s_lshl_b32 s9, s64, 8\ns_lshl_b32 s8, s70, 7\ns_add_u32 s9, s9, s8\ns_add_u32 s9, s9, {G1_AUX+2048}\nv_add_u32 v28, s9, v18\nv_xor_b32 v29, 128, v28\ns_lshl_b32 s8, s69, 6\nv_add_u32 v24, s8, v28")
    a(f"s_lshl_b32 s65, s60, 3\ns_add_u32 s65, s65, s71\ns_lshl_b32 s68, s65, 8\ns_add_u32 s68, s68, {ST1_OFF}\ns_xor_b32 s98, s65, 1")
    a(f"s_lshl_b32 s9, s61, 11\ns_lshl_b32 s8, s64, 10\ns_add_u32 s9, s9, s8\ns_add_u32 s9, s9, {H_OFF}\ns_mul_i32 s65, s65, 18432\ns_add_u32 s65, s65, s9\ns_mul_i32 s98, s98, 18432\ns_add_u32 s98, s98, s9")
    a(f"v_mov_b32 v160, {fh(GC0)}\nv_mov_b32 v161, {fh(GC0)}\nv_mov_b32 v162, {fh(GC1)}\nv_mov_b32 v163, {fh(GC1)}\nv_mov_b32 v164, 1.0\nv_mov_b32 v165, 1.0")
    for r in range(4): a(f"v_mov_b32 v{ONE+r}, 0x3f803f80")
    a("v_lshlrev_b32 v7, 2, v3\nv_sub_u32 v19, v2, v7")
    def w2issue(n):
        for _ in range(n):
            a("s_mov_b32 m0, s67\ns_add_u32 s67, s67, 8192")
            a("buffer_load_dwordx4 v30, s[52:55], s66 offen lds")
            a("s_add_u32 s66, s66, 73728")
            log.append("w")
    def reads(gi):
        o0 = (gi % 3) * SLOT
        b = BUF + 32 * (gi & 1)
        o = []
        for k2 in range(2):
            for mi in range(2): o.append(f"ds_read_b128 {v(b+16*k2+4*mi,4)}, v{XA+2*k2+mi} offset:{o0}")
            for t in range(2):
                for jh in range(2): o.append(f"ds_read_b64_tr_b16 {v(b+16*k2+8+4*t+2*jh,2)}, v{WA+2*k2+t} offset:{o0+256*jh}")
        return o
    fin = [f"v_mov_b32 v{STA}, 0"]
    for r in range(4): fin += [f"v_cmp_eq_u32 vcc, {r}, v19\ns_nop 1\nv_cndmask_b32 v{STA}, v{STA}, v{SQ+r}, vcc"]
    for gi in range(10):
        rd = []
        if gi < 9:
            a(f"s_waitcnt vmcnt({younger(f'g{gi}')})\ns_barrier")
            if gi == 0 or "g1t" in OPT: a.stamp(1 + gi)
            rd = reads(gi)
        def mem():
            if gi + 2 < 9: issue(gi + 2)
        l1 = a.lab("GM"); l2 = a.lab("GN")
        if gi + 2 < 9:
            a(f"s_cmp_ge_u32 s3, 4\ns_cbranch_scc1 {l1}")
            n0 = len(log); mem(); del log[n0:]
            a(f"{l1}:")
        if gi > 0:
            b = BUF + 32 * ((gi - 1) & 1)
            z = "0" if gi == 1 else None
            mm = [(SQ, b, b, z), (SM, ONE, b, z), (CS, b + 8, ONE, z), (SQ, b + 16, b + 16, None), (SM, ONE, b + 16, None)]
            mm += [(ACC + 8 * mi + 4 * t, b + 16 * k2 + 8 + 4 * t, b + 16 * k2 + 4 * mi, z if k2 == 0 else None) for k2 in range(2) for t in range(2) for mi in range(2)]
            for n, (d, x, y, c) in enumerate(mm):
                if rd: a(rd.pop(0))
                a.mfma(d, x, y, c)
        for r in rd: a(r)
        if gi + 2 < 9:
            a(f"s_cmp_lt_u32 s3, 4\ns_cbranch_scc1 {l2}")
            mem()
            a(f"{l2}:")
        if gi in (7, 8): w2issue(3)
        if gi < 9: a("s_waitcnt lgkmcnt(0)")
    a(f"ds_write_b128 v24, {v(CS,4)}")
    for x in fin: a(x)
    gsum(a, STA, 7)
    a(f"v_mul_f32 v{STA+2}, {fh(-1.0/D)}, v{SM}\nv_mul_f32 v7, {fh(1.0/D)}, v{STA}")
    a(f"v_fma_f32 v7, -v{STA+2}, v{STA+2}, v7\nv_max_f32 v7, 0, v7\nv_add_f32 v8, {fh(EPS)}, v7\nv_rsq_f32 v{STA}, v8\ns_nop 0")
    a(f"v_mul_f32 v8, v{STA}, v{STA}\nv_fmaak_f32 v8, v8, v7, {fh(EPS)}\nv_rsq_f32 v8, v8\nv_mul_f32 v{STA+1}, v{STA+2}, v{STA}\nv_mul_f32 v{STA+3}, v8, v{STA}")
    a(f"ds_write_b128 v26, {v(STA,4)}")
    a("s_waitcnt lgkmcnt(0)\ns_barrier")
    a.stamp(2 if "g1t" not in OPT else 10)
    if "g1t" in OPT: a.end()
    for t in range(2):
        for q in range(2): a(f"ds_read_b128 {v(CSA+8*t+4*q,4)}, v{28+t} offset:{64*q}")
    a(f"ds_read_b128 {v(STA+4,4)}, v27")
    a("s_cmp_lg_u32 s61, 0\ns_cbranch_scc1 G_ns")
    a(f"s_mov_b64 exec, 0xffff\nbuffer_store_dwordx4 {v(STA,4)}, v13, s[56:59], s68 offen sc1\ns_mov_b64 exec, -1")
    a("G_ns:")
    a(f"v_mov_b32 v{STA+8}, v{STA+2}\nv_mov_b32 v{STA+9}, v{STA+2}\nv_mov_b32 v{STA+10}, v{STA+3}\nv_mov_b32 v{STA+11}, v{STA+3}")
    a("s_waitcnt lgkmcnt(0)")
    for t in range(2):
        for e in range(0, 4, 2): a(f"v_pk_add_f32 {v(CSA+8*t+e,2)}, {v(CSA+8*t+e,2)}, {v(CSA+8*t+4+e,2)}")
    a(f"v_mov_b32 v{STA+4}, v{STA+6}\nv_mov_b32 v{STA+5}, v{STA+6}\nv_mov_b32 v{STA+6}, v{STA+7}")
    for mi in range(2):
        c = STA + 8 - 4 * mi
        regs = [ACC + 8 * mi + e for e in range(8)]
        for e in range(0, 8, 2): a(f"v_pk_fma_f32 {v(regs[e],2)}, {v(c,2)}, {v(CSA+8*(e>>2)+(e&3),2)}, {v(regs[e],2)}")
        for e in range(0, 8, 2): a(f"v_pk_mul_f32 {v(regs[e],2)}, {v(regs[e],2)}, {v(c+2,2)}")
        gelu_pk(a, regs, list(range(168, 176)), "v[160:161]", "v[162:163]", "v[164:165]")
        l1 = a.lab("GS"); l2 = a.lab("GT")
        a(f"s_cmp_lg_u32 s70, 0\ns_cbranch_scc1 {l1}")
        for e in range(4): a(f"v_cvt_pk_bf16_f32 v{176+4*mi+e}, v{regs[2*e]}, v{regs[2*e+1]}")
        a(f"s_branch {l2}\n{l1}:")
        for e in range(4): a(f"v_cvt_pk_bf16_f32 v{176+4*mi+(e^2)}, v{regs[2*e]}, v{regs[2*e+1]}")
        a(f"{l2}:")
        a(f"buffer_store_dwordx4 {v(176+4*mi,4)}, v25, s[56:59], s{65 if mi == 0 else 98} offen sc1")
    a.stamp(3)
    w2issue(3)
    HB, AR, AC2 = 32, 104, 224
    a("v_lshlrev_b32 v2, 4, v1\nv_add_u32 v3, 4096, v2\nv_lshlrev_b32 v4, 2, v1")
    a("s_lshl_b32 s8, s60, 3\ns_add_u32 s8, s8, s3")
    a("v_and_b32 v11, 1, v1\nv_lshlrev_b32 v11, 6, v11\nv_add_u32 v11, v11, v18")
    a("v_add_u32 v28, 36864, v22\nv_add_u32 v29, 36864, v23")
    a("v_and_b32 v8, 15, v1\ns_lshl_b32 s10, s8, 4\nv_add_u32 v8, s10, v8\nv_lshlrev_b32 v9, 4, v18\ns_movk_i32 s13, 18432\nv_mov_b32 v10, 0x80000000")
    for gam, sh in enumerate((-1, 1, -2, 2)):
        a(f"v_add_u32 v5, {sh}, v8\nv_cmp_gt_u32 vcc, {S}, v5\nv_lshrrev_b32 v6, 4, v5\nv_mad_u32_u24 v6, v6, s13, v9\nv_and_b32 v5, 15, v5\nv_lshl_add_u32 v6, v5, 4, v6")
        a(f"v_cndmask_b32 v{24+gam}, v10, v6, vcc")
    a(f"s_mul_i32 s11, s8, 18432\ns_lshl_b32 s9, s61, 11\ns_add_u32 s11, s11, s9\ns_add_u32 s11, s11, {X1_OFF}")
    a(f"s_mul_i32 s6, s60, {FB_STRIDE}\ns_add_u32 s6, s6, {FH_OFF}\ns_lshl_b32 s10, s3, 8\ns_add_u32 s10, s10, {G1_AUX}\nv_add_u32 v13, s10, v13\ns_mov_b32 s14, {H_OFF}")
    a("ds_read_b64 v[18:19], v13")
    a.zcheck(14, 9, False)
    a("s_waitcnt vmcnt(3)")
    last_of(a, cHs, 8, "G_hs")
    a.sadd(6, 7)
    a("G_hs:")
    a.stamp(4)
    a("s_cmp_lg_u32 s3, 7\ns_cbranch_scc1 G_wm")
    a(f"s_mov_b32 s9, {W2M_OFF}\nv_min_u32 v5, 240, v2\ns_mov_b32 s13, 0x20000")
    a("W2_m:")
    a("buffer_load_dwordx4 v[32:35], v2, s[56:59], s9 offen sc1\nbuffer_load_dwordx4 v[36:39], v2, s[56:59], s9 offen offset:1024 sc1\nbuffer_load_dwordx4 v[40:43], v5, s[56:59], s9 offen offset:2048 sc1")
    a("s_waitcnt vmcnt(0)")
    a("v_min3_u32 v6, v32, v36, v40\nv_cmp_eq_u32 vcc, 0, v6\ns_cbranch_vccz W2_n")
    a("s_sleep 8\ns_sub_u32 s13, s13, 1\ns_cbranch_scc0 W2_m")
    a("W2_n:")
    a(f"ds_write_b128 v2, v[32:35] offset:{G2_WM}\nds_write_b128 v2, v[36:39] offset:{G2_WM+1024}\nds_write_b128 v5, v[40:43] offset:{G2_WM+2048}")
    a("s_waitcnt lgkmcnt(0)")
    a("G_wm:")
    a("s_waitcnt vmcnt(0)\ns_barrier")
    NA = 6
    def ard(ks):
        b = AR + 20 * (ks % NA)
        o = [f"ds_read_b128 {v(b,4)}, v11 offset:{G2_WM+128*ks}"]
        for t in range(4):
            for jh in range(2):
                off = ((ks * 2 + jh) * 2 + (t >> 1)) * 1024
                ad = 22 + (t & 1)
                if off >= 36864: off -= 36864; ad += 6
                o.append(f"ds_read_b64_tr_b16 {v(b+4+4*t+2*jh,2)}, v{ad} offset:{off}")
        return o
    for ks in range(NA):
        for r in ard(ks): a(r)
    for t in range(4): a(f"ds_read_b64 {v(244+2*t,2)}, v{20+(t&1)} offset:{8192*(t>>1)}")
    a("s_cmp_lg_u32 s3, 1\ns_cbranch_scc1 G2_hw")
    a.cpoll(6, 9, 48, 13, 1)
    a("G2_hw:")
    a(f"s_sub_u32 s7, s6, {FB_STRIDE}\ns_add_u32 s12, s6, {FB_STRIDE}\ns_cmp_eq_u32 s3, 0\ns_cselect_b32 s12, s7, s12")
    a("s_waitcnt lgkmcnt(0)\ns_barrier")
    a("s_add_u32 s7, s8, 1\ns_and_b32 s9, s7, 7\ns_cmp_ge_u32 s9, 2\ns_cbranch_scc1 G2_hg\ns_and_b32 s7, s7, 127\ns_cmp_lt_u32 s7, 2\ns_cbranch_scc1 G2_hg")
    a.cpoll(12, 9, 48, 13, 1)
    a("G2_hg:")
    a.stamp(5)
    hl = []
    for ks in range(18):
        pre = "s_add_u32 s14, s14, 4096\n" if ks and ks % 4 == 0 else ""
        g0, g1_ = (2 * ks) // 9, (2 * ks + 1) // 9
        if g0 == g1_: hl.append((pre + f"buffer_load_dwordx4 {v(HB+4*ks,4)}, v{24+g0}, s[56:59], s14 offen offset:{(ks%4)*1024} sc1", 1))
        else: hl.append((pre + f"buffer_load_dwordx2 {v(HB+4*ks,2)}, v{24+g0}, s[56:59], s14 offen offset:{(ks%4)*1024} sc1\nbuffer_load_dwordx2 {v(HB+4*ks+2,2)}, v{24+g1_}, s[56:59], s14 offen offset:{(ks%4)*1024+8} sc1", 2))
    HD = optval("HD", 5)
    log2 = []
    def hissue(ks):
        a(hl[ks][0]); log2.extend(["x"] * (hl[ks][1] - 1) + [ks])
    for ks in range(HD): hissue(ks)
    for ks in range(18):
        lg = "" if ks < NA else f" lgkmcnt({min(15, 9*min(NA-1, 17-ks))})"
        a(f"s_waitcnt vmcnt({len(log2)-1-log2.index(ks)}){lg}")
        if ks + HD < 18: hissue(ks + HD)
        rd = ard(ks + NA) if ks + NA < 18 else []
        b = AR + 20 * (ks % NA)
        for t in range(5):
            a.mfma(AC2 + 4 * t, b + 4 * t, HB + 4 * ks, "0" if ks == 0 else None)
            for _ in range(1 if t == 0 else 2):
                if rd: a(rd.pop(0))
    a.stamp(6)
    for e in range(8): a(f"v_lshlrev_b32 v{HB+2*e}, 16, v{244+e}\nv_and_b32 v{HB+2*e+1}, 0xffff0000, v{244+e}")
    a(f"v_add_f32 v9, v{AC2}, v{AC2+1}")
    a("v_sub_f32 v28, v19, v9\nv_sub_f32 v29, v19, v9\nv_mov_b32 v19, v18\nv_mov_b32 v10, 0\nv_mov_b32 v11, 0")
    for p in range(2):
        for e in range(0, 8, 2): a(f"v_pk_fma_f32 {v(HB+8*p+e,2)}, {v(HB+8*p+e,2)}, v[18:19], v[28:29]")
        for e in range(0, 8, 2): a(f"v_pk_add_f32 {v(HB+8*p+e,2)}, {v(HB+8*p+e,2)}, {v(AC2+4+8*p+e,2)}")
        for e in range(4): a(f"v_cvt_pk_bf16_f32 v{AR+4*p+e}, v{HB+8*p+2*e}, v{HB+8*p+2*e+1}")
        a(f"buffer_store_dwordx4 {v(AR+4*p,4)}, v2, s[56:59], s11 offen offset:{p*1024} sc1")
    for e in range(0, 16, 2): a(f"v_pk_fma_f32 v[10:11], {v(HB+e,2)}, {v(HB+e,2)}, v[10:11]")
    a("v_add_f32 v10, v10, v11")
    gsum(a, 10, 11)
    a(f"s_mul_i32 s10, s60, 9\ns_add_u32 s10, s10, s61\ns_lshl_b32 s10, s10, 9\ns_lshl_b32 s12, s3, 6\ns_add_u32 s10, s10, s12\ns_add_u32 s10, s10, {SS_OFF}")
    a(f"s_lshl_b32 s12, s8, 6\ns_add_u32 s12, s12, {MEAN_OFF}")
    a("s_mov_b64 exec, 0xffff")
    a("buffer_store_dword v10, v4, s[56:59], s10 offen sc1")
    a("s_cmp_lg_u32 s61, 0\ns_cbranch_scc1 G2_m")
    a("buffer_store_dword v9, v4, s[56:59], s12 offen sc1")
    a("G2_m:")
    a("s_mov_b64 exec, -1")
    a(f"s_sub_u32 s6, s6, {FH_OFF-FX_OFF}")
    consts(a)
    a("s_waitcnt vmcnt(0)")
    last_of(a, cG2, 8, "G_xs")
    a.sadd(6, 7)
    a("G_xs:")
    a.stamp(7)

def gen_stats(a):
    R = 32
    a("v_lshrrev_b32 v2, 2, v1\nv_and_b32 v3, 3, v1\nv_mul_u32_u24 v4, 1152, v2\nv_lshl_add_u32 v4, v3, 4, v4")
    a("s_mul_i32 s7, s6, 18432")
    a.srd(44, P_Q, ACT)
    for i in range(18): a(f"buffer_load_dwordx4 {v(R+4*i,4)}, v4, s[44:47], s7 offen offset:{64*i}")
    a("s_barrier")
    a("v_mov_b32 v8, 0x3f803f80")
    for r in range(4): a(f"v_mov_b32 v{20+r}, 0")
    for i in range(18):
        if i % 3 == 0: a(f"s_waitcnt vmcnt({15-i})")
        for d in range(4):
            a(f"v_dot2c_f32_bf16 v{20+(d&1)}, v{R+4*i+d}, v8\nv_dot2c_f32_bf16 v{22+(d&1)}, v{R+4*i+d}, v{R+4*i+d}")
    a.ldsadd(VC, V1, cG1)
    a("v_add_f32 v20, v20, v21\nv_add_f32 v22, v22, v23\ns_nop 1")
    for qp in ("[1,0,3,2]", "[2,3,0,1]"):
        a(f"v_add_f32_dpp v20, v20, v20 quad_perm:{qp} row_mask:0xf bank_mask:0xf")
        a(f"v_add_f32_dpp v22, v22, v22 quad_perm:{qp} row_mask:0xf bank_mask:0xf")
        a("s_nop 1")
    a(f"v_mul_f32 v26, {fh(-1.0/D)}, v20\nv_mul_f32 v22, {fh(1.0/D)}, v22")
    a("v_fma_f32 v22, -v26, v26, v22\nv_max_f32 v22, 0, v22")
    a(f"v_add_f32 v21, {fh(EPS)}, v22\nv_rsq_f32 v24, v21\ns_nop 0")
    a(f"v_mul_f32 v21, v24, v24\nv_fmaak_f32 v21, v21, v22, {fh(EPS)}\nv_rsq_f32 v21, v21")
    a("v_mul_f32 v25, v26, v24\nv_mul_f32 v27, v21, v24\nv_or_b32 v24, 1, v24")
    a(f"v_lshlrev_b32 v5, 4, v2\ns_lshl_b32 s7, s6, 8\ns_add_u32 s7, s7, {ST1_OFF}")
    a.zcheck(14, 9, False)
    a("s_mov_b32 exec_lo, 0x11111111\ns_mov_b32 exec_hi, 0x11111111")
    a("buffer_store_dwordx4 v[24:27], v5, s[56:59], s7 offen sc1")
    a("s_mov_b64 exec, -1")

def gen_colsum(a):
    R = 32
    a("s_mul_i32 s7, s6, 57\ns_lshr_b32 s7, s7, 9\ns_mul_i32 s8, s7, 9\ns_sub_u32 s8, s6, s8")
    a("v_lshrrev_b32 v2, 3, v1\nv_and_b32 v3, 7, v1\nv_mul_u32_u24 v4, 1152, v2\nv_lshl_add_u32 v4, v3, 4, v4")
    a("s_mul_i32 s10, s7, 165888\ns_lshl_b32 s11, s8, 7\ns_add_u32 s10, s10, s11")
    a.srd(44, P_W1, D * D * 2)
    for i in range(18):
        a(f"buffer_load_dwordx4 {v(R+4*i,4)}, v4, s[44:47], s10 offen\ns_add_u32 s10, s10, 9216")
    a("s_barrier")
    for i in range(18):
        if i % 3 == 0: a(f"s_waitcnt vmcnt({15-i})")
        d = 20 if i == 0 else 104
        for e in range(4): a(f"v_lshlrev_b32 v{d+2*e}, 16, v{R+4*i+e}\nv_and_b32 v{d+2*e+1}, 0xffff0000, v{R+4*i+e}")
        if i:
            for e in range(4): a(f"v_pk_add_f32 {v(20+2*e,2)}, {v(20+2*e,2)}, {v(104+2*e,2)}")
    a.ldsadd(VC, V1, cG1)
    for e in range(8): a(f"v_add_f32_dpp v{20+e}, v{20+e}, v{20+e} row_ror:8 row_mask:0xf bank_mask:0xf")
    for e in range(8): gsum(a, 20 + e, 5)
    for e in range(8): a(f"v_or_b32 v{20+e}, 1, v{20+e}")
    a(f"v_lshlrev_b32 v5, 5, v1\ns_mul_i32 s7, s7, 2304\ns_lshl_b32 s8, s8, 8\ns_add_u32 s7, s7, s8\ns_add_u32 s7, s7, {CSUM_OFF}")
    a.zcheck(14, 9, False)
    a("s_mov_b64 exec, 0xff")
    a("buffer_store_dwordx4 v[20:23], v5, s[56:59], s7 offen sc1\nbuffer_store_dwordx4 v[24:27], v5, s[56:59], s7 offen offset:16 sc1")
    a("s_mov_b64 exec, -1")

def consts(a):
    if "nf1" in OPT: a("s_mov_b32 s4, s96\ns_mov_b32 s5, s97")
    elif "nf2" in OPT:
        a("s_and_b32 s4, s96, 3\ns_lshl_b32 s4, s4, 1\ns_and_b32 s7, s97, 1\ns_add_u32 s4, s4, s7\ns_lshr_b32 s5, s96, 2\ns_lshl_b32 s5, s5, 4\ns_lshr_b32 s7, s97, 1\ns_add_u32 s5, s5, s7")
    else:
        a("s_and_b32 s4, s96, 1\ns_lshl_b32 s4, s4, 2\ns_and_b32 s7, s97, 3\ns_add_u32 s4, s4, s7\ns_lshr_b32 s5, s96, 1\ns_lshl_b32 s5, s5, 3\ns_lshr_b32 s7, s97, 2\ns_add_u32 s5, s5, s7")
    km.consts2(a)

def gen_f(a, stP):
    a("s_cmp_lg_u32 s3, 0\ns_cbranch_scc1 F_pf")
    a("s_mov_b64 exec, 0xffff")
    a(f"v_lshl_add_u32 v7, v1, 2, v{VC}\nv_mov_b32 v8, 0\nds_write2_b32 v7, v8, v8 offset0:0 offset1:16")
    a("s_mov_b64 exec, -1")
    a("F_pf:")
    a(f"s_mul_i32 s61, s3, {CV_SZ}\ns_lshl_b32 s7, s3, 12\ns_add_u32 s7, s7, {FSCR-4*4096}\ns_cmp_ge_u32 s3, 4\ns_cselect_b32 s61, s7, s61")
    a("s_mul_i32 s12, s3, 112\ns_add_u32 s12, s12, s60\ns_mov_b32 s13, s61")
    a("s_waitcnt lgkmcnt(0)")
    a.srd(56, P_WS, WS_BYTES)
    a("s_barrier")
    a("s_cmp_ge_u32 s12, 306\ns_cbranch_scc1 F_pt")
    a("s_setprio 2\ns_cmp_ge_u32 s12, 18\ns_cbranch_scc1 F_kv")
    a("s_mov_b32 s6, s12")
    km.gen_meantile(a)
    a.ldsadd(VC, V1, cKV)
    a("s_branch F_done")
    a("F_kv:\ns_sub_u32 s6, s12, 18")
    if "nobulk" in OPT: a("s_sleep 100\ns_branch F_end")
    st = a.stamps; a.stamps = False
    km.gen_kv(a)
    a.stamps = st
    a.stamp(5)
    a(f"s_mul_i32 s11, s8, {FB_STRIDE}\ns_add_u32 s11, s11, {FKC_OFF}")
    a("s_branch F_sig")
    a("F_pt:")
    if "nobulk" in OPT or "nopt" in OPT: a("s_sleep 100\ns_branch F_end")
    a(f"s_cmp_lt_u32 s3, {optval('FUN', 4)}\ns_cbranch_scc1 F_job\ns_mov_b32 s8, {optval('FJW', 4)}")
    a.ldswait(VC, 5, 7, "s8", cKV, sleep=4)
    a("F_job:")
    a("s_sub_u32 s12, s12, 306\ns_and_b32 s62, s12, 7\ns_lshr_b32 s12, s12, 3\ns_mov_b32 s9, s61")
    n0 = len(a.L)
    km.job_setup(a, "JS")
    a.L[n0:] = [x.replace("s96", "s62") for x in a.L[n0:]]
    gen_pretile(a, 128)
    a("s_mov_b32 s6, s98")
    a(f"s_add_u32 s11, s6, {FCNT}")
    a("F_sig:")
    a.zcheck(14, 13)
    a.ldsadd(VC, V1, cKV)
    a.stamp(6)
    a.sarrive(6, "s100", 8, 11)
    a("F_done:")
    a.stamp(2)
    a("s_cmp_lt_u32 s3, 4\ns_cbranch_scc1 F_cv")
    a(f"s_mov_b64 exec, 1\nds_add_rtn_u32 v5, v{VC}, v{V1} offset:{cU}\ns_mov_b64 exec, -1")
    a("s_waitcnt lgkmcnt(0)")
    a("v_readfirstlane_b32 s12, v5")
    a("s_mul_i32 s12, s12, 112\ns_add_u32 s12, s12, s60\ns_add_u32 s12, s12, 896\ns_cmp_lt_u32 s12, 1170\ns_cbranch_scc1 F_job")
    a("F_end:")
    if "g1t" in OPT: a.end()
    a("v_lshlrev_b32 v2, 4, v1\nv_add_u32 v3, 4096, v2\nv_lshlrev_b32 v4, 2, v1")
    consts(a)
    a("s_branch K6_q")
    a("F_cv:")
    a("v_lshlrev_b32 v2, 4, v1\nv_add_u32 v3, 4096, v2\nv_lshlrev_b32 v4, 2, v1")
    consts(a)
    a("s_lshl_b32 s6, s60, 2\ns_add_u32 s6, s6, s3\ns_mov_b32 s7, s61\ns_setprio 3")
    def wait_kv():
        a("s_cmp_lg_u32 s3, 0\ns_cbranch_scc1 F_kw")
        conv.kv_flag_addr(a, 8)
        a.cpoll(8, 1, 44, 13, 4)
        a.ldsadd(VC, V1, cXs)
        a("F_kw:")
        a.ldswait(VC, 5, 8, 1, cXs)
        a.stamp(3)
    def gate():
        a("s_cmp_lg_u32 s3, 1\ns_cbranch_scc1 F_w3")
        a("s_add_u32 s8, s70, 128")
        a.dpoll(8, 44, 13)
        a.ldsadd(VC, V1, cW3a)
        a("F_w3:")
        a.ldswait(VC, 5, 8, 1, cW3a)
    conv.single(a, wait_kv, gate, stP.issue)
    assert stP.issued == 16
    a.stamp(4)
    a("v_mov_b32 v5, 2\ns_mov_b32 s98, s6")
    a.ldsadd(VC, 5, cG2)
    a("s_branch K6_p2")

def gen_k6(a, name):
    fine = "fine" in OPT
    a(f".p2align 8\n{name}:\nK6_start:")
    a("s_cmp_ge_u32 s2, 256\ns_cbranch_scc1 K6_end")
    a.stamp_init()
    if "skew" in OPT:
        a("s_mul_i32 s4, s2, 5\ns_and_b32 s4, s4, 7\nSK_l:\ns_sub_u32 s4, s4, 1\ns_cbranch_scc1 SK_d\ns_sleep 12\ns_branch SK_l\nSK_d:")
    a.kernargs()
    a("v_lshrrev_b32 v2, 6, v0\nv_and_b32 v1, 63, v0")
    a("v_readfirstlane_b32 s3, v2")
    a("s_and_b32 s96, s2, 7\ns_lshr_b32 s97, s2, 3\ns_mov_b32 s101, 1")
    a(f"v_mov_b32 v{VC}, {CNT}\nv_mov_b32 v{V1}, 1")
    a("s_sub_u32 s60, s2, 144\ns_cmp_lt_u32 s97, 18\ns_cbranch_scc1 K6_g")
    a("s_cmp_lt_u32 s3, 6\ns_cbranch_scc1 K6_f\ns_cmp_eq_u32 s3, 7\ns_cbranch_scc1 K6_pf")
    a(f"s_cmp_ge_u32 s60, {FLAG_WAVES}\ns_cbranch_scc1 K6_f")
    a(f"v_lshrrev_b32 v7, 5, v1\nv_mul_u32_u24 v7, {FB_STRIDE-512}, v7\nv_lshl_add_u32 v7, v1, 4, v7\nv_lshlrev_b32 v6, 4, v1")
    a("v_mov_b32 v8, 0\nv_mov_b32 v9, 0\nv_mov_b32 v10, 0\nv_mov_b32 v11, 0")
    a(f"s_lshl_b32 s8, s60, 12\ns_add_u32 s8, s8, {W2M_OFF}\ns_mul_i32 s9, s60, {4*FB_STRIDE}\ns_add_u32 s9, s9, {FLAG_OFF}\ns_add_u32 s10, s9, {2*FB_STRIDE}")
    a("s_waitcnt lgkmcnt(0)")
    a.srd(56, P_WS, WS_BYTES)
    for i in range(4): a(f"buffer_store_dwordx4 v[8:11], v6, s[56:59], s8 offen offset:{1024*i} sc1")
    a("buffer_store_dwordx4 v[8:11], v7, s[56:59], s9 offen sc1\nbuffer_store_dwordx4 v[8:11], v7, s[56:59], s10 offen sc1")
    a("s_mov_b32 s8, 1\ns_waitcnt vmcnt(0)")
    a(f"s_atomic_add s8, {s(P_DBG,2)}, 128 glc\ns_waitcnt lgkmcnt(0)\ns_cmp_lg_u32 s8, {FLAG_WAVES-1}\ns_cbranch_scc1 K6_f")
    a(f"s_atomic_add s101, {s(P_DBG,2)}, 0")
    a.stamp(1)
    a("s_branch K6_f")
    a("K6_pf:")
    a("s_getpc_b64 s[8:9]\nF_pc:")
    a("s_sub_u32 s10, s97, 18\nv_min_u32 v2, 39, v1\nv_mul_u32_u24 v2, 14, v2\nv_add_lshl_u32 v2, s10, v2, 7\nv_min_u32 v2, CODE_END-F_pc-4, v2")
    a("global_load_dword v31, v2, s[8:9]")
    a("s_branch K6_f")
    a("K6_g:")
    a("s_cmp_ge_u32 s97, 9\ns_cselect_b32 s62, 1, 0\ns_mul_i32 s61, s62, 9\ns_sub_u32 s61, s97, s61\ns_lshl_b32 s60, s96, 1\ns_add_u32 s60, s60, s62")
    A3 = [(2, 0), (2, 1024), (2, 2048)]
    stP = Stream(a, [(64, A3, " sc1"), (65, A3, " sc1"), (66, [(2, 0), (3, 3072)], " sc1"), (68, [(2, 0), (3, 3072)], " sc1")])
    stQ = Stream(a, [(64, A3, " sc1"), (66, [(2, 0), (2, 1024), (2, 2048), (2, 3072), (3, 0)], " sc1")])
    gen_g(a)
    a("s_cmp_lt_u32 s3, 4\ns_cbranch_scc1 K6_p")
    a("s_cmp_ge_u32 s2, 128\ns_cbranch_scc1 K6_q")
    a("s_add_u32 s6, s2, 448\ns_cmp_lg_u32 s3, 4\ns_cbranch_scc1 G_kw")
    conv.kv_flag_addr(a, 8)
    a.dpoll(8, 44, 13)
    a.ldsadd(VC, V1, cT0)
    a("G_kw:")
    a("s_setprio 3\ns_cmp_lg_u32 s3, 7\ns_cbranch_scc1 G_k2\ns_add_u32 s8, s70, 256")
    a.dpoll(8, 44, 13, 8)
    a.ldsadd(VC, V1, cW3)
    a("G_k2:")
    a.ldswait(VC, 5, 8, 1, cT0)
    a.ldswait(VC, 5, 8, 8, cG2)
    conv.team(a, G1_BASE, G1_BASE + 21504, cT1, cT2, cT3, lambda: None, stQ.issue)
    assert stQ.issued == 16
    a.ldsadd(VC, V1, cSide)
    a.stamp(8 if not fine else 2)
    a("s_waitcnt vmcnt(0)")
    a.sadd(6, 7)
    a("s_branch K6_q2")
    a("K6_f:")
    gen_f(a, stP)
    def addrs():
        a(f"v_mov_b32 v6, v2\nv_add_u32 v7, 36864, v2\nv_add_u32 v8, {ML_H}, v2\nv_add_u32 v9, {ML_H+36864}, v2")
        h_addr(a, 71, 10, 12)
    def rk():
        a(f"v_and_b32 v5, 15, v1\nv_lshlrev_b32 v5, 4, v5\nv_add_u32 v5, {RM}, v5")
        for m in range(4): a(f"ds_read_b32 v{GT+m}, v5 offset:{256*m}")
        a("s_waitcnt lgkmcnt(0)")
        for m in range(4):
            r = GT + m
            a(f"v_mul_f32 v{KC+2*m}, {fh(GC0)}, v{r}\nv_mul_f32 v{r}, v{r}, v{r}\nv_mul_f32 v{r}, {fh(0.044715)}, v{r}\nv_mul_f32 v{KC+2*m+1}, v{r}, v{KC+2*m}")
    a("K6_p:")
    a("s_cmp_lg_u32 s3, 1\ns_cbranch_scc1 KB_w3")
    a("s_add_u32 s6, s70, 128")
    a.dpoll(6, 48, 13, 8)
    a.ldsadd(VC, V1, cW3a)
    a("KB_w3:")
    a.ldswait(VC, 5, 7, 1, cW3a)
    paced(a, Stream(a, stP.segs), 16, optval("PPACE", 8))
    a("s_mov_b32 s98, 0")
    a("K6_p2:")
    a("s_setprio 2")
    PRE = NS
    for i in range(NS - 16): stP.issue()
    addrs()
    a(f"s_lshr_b32 s11, s5, 1\ns_mul_i32 s6, s11, {FB_STRIDE}\ns_add_u32 s6, s6, {FX_OFF}")
    a(f"s_mul_i32 s9, s3, 18432\ns_mov_b32 m0, s9\ns_mul_i32 s7, s5, 73728\ns_add_u32 s7, s7, s9\ns_add_u32 s7, s7, {X1_OFF}")
    a.stamp(8)
    a("s_cmp_lg_u32 s3, 0\ns_cbranch_scc1 KB_xw")
    a.cpoll(6, 9, 44, 13, optval('FXS', 1))
    a.ldswait(VC, 5, 8, 8, cG2)
    a.ldsadd(VC, V1, cFX)
    a("s_branch KB_xg")
    a("KB_xw:")
    a.ldswait(VC, 5, 8, 1, cFX)
    a("KB_xg:")
    a.stamp(9)
    def xdma(i):
        if i and i % 4 == 0: a("s_add_u32 m0, m0, 4096\ns_add_u32 s7, s7, 4096")
        a(f"buffer_load_dwordx4 v2, s[56:59], s7 offen offset:{(i%4)*1024} sc1 lds")
        stP.other(f"x{i}")
    XP = optval("XP", 6)
    for i in range(XP): xdma(i)
    for i in range(NS - PRE): stP.issue()
    a(f"s_mul_i32 s6, s11, 4608\ns_and_b32 s8, s5, 1\ns_lshl_b32 s8, s8, 8\ns_add_u32 s6, s6, s8\ns_add_u32 s6, s6, {SS_OFF}\ns_add_u32 s11, s6, 4096")
    a(f"s_lshl_b32 s8, s5, 8\ns_add_u32 s8, s8, {MEAN_OFF}\ns_lshl_b32 s9, s5, 10\ns_add_u32 s9, s9, {ST1_OFF}")
    late = [(lambda i=i: xdma(i)) for i in range(XP, 18)]
    def stat(ins, tag="x"):
        a(ins); stP.other(tag)
    late += [(lambda i=i: stat(f"buffer_load_dword v{GT+i}, v4, s[56:59], s6 offen offset:{512*i} sc1")) for i in range(8)]
    late += [lambda: stat(f"buffer_load_dword v{GT+8}, v4, s[56:59], s11 offen sc1")]
    late += [lambda: stat(f"buffer_load_dword v{GT+13}, v4, s[56:59], s8 offen sc1")]
    late += [lambda: stat(f"buffer_load_dwordx2 {v(GT+14,2)}, v2, s[56:59], s9 offen sc1", "st")]
    for i in range(optval("XE", 4)): late.pop(0)()
    a(f"s_waitcnt vmcnt({stP.younger(f'x{XP-1}')})")
    a(f"s_cmp_eq_u32 s98, 0\ns_cbranch_scc1 KB_fy\ns_mov_b32 s100, 4\ns_atomic_add s100, {s(P_WS,2)}, s98\nKB_fy:")
    a.subbar(VC, 5, 10, 4, off=cX1)
    a.stamp(10 if not fine else 1)
    def xhook(ks, i):
        if i in (0, 4, 8, 10, 11, 3) and late: late.pop(0)()
    mphase(a, stP, 0, 6, 0, XP, prio=2, hook=xhook)
    assert not late
    a(f"s_waitcnt vmcnt({stP.younger('st')})")
    for i in range(1, 9): a(f"v_add_f32 v{GT}, v{GT}, v{GT+i}")
    a(f"v_mov_b32 v{GT+1}, {fh(1.0/D)}\nv_fmaak_f32 v{GT}, v{GT+1}, v{GT}, {fh(EPS)}")
    a(f"v_rsq_f32 v{GT+12}, v{GT}")
    a(f"v_add_u32 v5, {RM}, v2\ns_nop 0")
    a(f"ds_write_b128 v5, {v(GT+12,4)}")
    a.subbar(VC, 5, 7, 4, off=cX2)
    kw = 18 - (NS + 2) // 3
    def w3hook(ks, i):
        if ks == kw - 1 and i == 10: a.ldswait(VC, 5, 7, 1, cW3)
    mphase(a, stP, 0, 6, XP, 18, first=False, prio=2, hook=w3hook)
    if fine: a.stamp(2)
    rk()
    a.ldswait(VC, 5, 7, 4, cSide)
    gphase(a, 10, 12)
    a.ldsadd(VC, V1, cH1)
    if fine: a.stamp(3)
    a("s_add_u32 s71, s71, 24")
    h_addr(a, 71, 10, 12)
    a.ldswait(VC, 5, 7, 1, cW4)
    mphase(a, stP, 1, 6, prio=1)
    a.ldsadd(VC, V1, cA)
    if fine: a.stamp(4)
    def sthook(i):
        if i == 1:
            a.ldswait(VC, 5, 7, 4, cA)
            a.ldswait(VC, 5, 7, 8, cH1)
            stage_x(a)
            stage_y(a)
    gphase(a, 10, 12, sthook)
    a("s_waitcnt vmcnt(0)")
    a.subbar(VC, 5, 7, 4, off=cH2)
    if fine: a.stamp(5)
    mphase(a, stP, 2, 8)
    if fine: a.stamp(6)
    a("s_add_u32 s6, s67, 14336\ns_add_u32 s7, s69, 128")
    pend = []
    for k, (t, mp) in enumerate([(0, 0), (0, 1), (1, 0), (1, 1)]):
        pend += pstore(a, MACC, t, mp, 67 if t == 0 else 6, mp * 1024, k)
    state = {"flag": False}
    def hook(ks, i):
        if (ks >= 1 or i >= 3) and i not in (1, 5) and pend:
            ins = pend.pop(0); a(ins)
            if ins.startswith("buffer"): stP.other("e" if not pend else "x")
        if not pend and not state["flag"] and ks == optval("EFLAG", 14) and i == 0:
            a(f"s_waitcnt vmcnt({stP.younger('e')})")
            a.setflag("s7", 14); stP.other()
            state["flag"] = True
    mphase(a, stP, 3, 8, acc=MACC + 32, hook=hook)
    assert state["flag"]
    if fine: a.stamp(7)
    a("s_setprio 3")
    a.nop(8)
    for k, (t, mp) in enumerate([(0, 0), (0, 1), (1, 0), (1, 1)]):
        for ins in pstore(a, MACC + 32, t, mp, 67 if t == 0 else 6, 2048 + mp * 1024, k): a(ins)
    a("s_add_u32 s7, s69, 256")
    a("s_waitcnt vmcnt(0)")
    a.sadd(7, 6)
    a.end()
    a("K6_q:")
    a("s_setprio 0")
    a.stamp(8 if not fine else 2)
    a.ldsadd(VC, V1, cSide)
    a("s_cmp_lg_u32 s3, 7\ns_cbranch_scc1 KB_q3")
    a("s_add_u32 s8, s70, 256")
    if not ({"nobulk", "nopt"} & set(OPT)): a.dpoll(8, 44, 13, 16)
    a.ldsadd(VC, V1, cW3)
    a("KB_q3:")
    a.ldswait(VC, 5, 7, 1, cW3, sleep=2)
    QW = optval("QRW", -1)
    if QW >= 0: a.ldswait(VC, 5, 7, 4, QW, sleep=2)
    paced(a, Stream(a, stQ.segs), 16, optval("QPACE", 4))
    a("K6_q2:")
    a("s_setprio 0")
    for i in range(NS - 16): stQ.issue()
    a.stamp(9 if not fine else 3)
    addrs()
    a.ldswait(VC, 5, 7, 4, cX2)
    rk()
    mphase(a, stQ, 0, 6, 0, kw, prio=2)
    a("s_cmp_lg_u32 s3, 7\ns_cbranch_scc1 KB_q2c")
    if not ({"nobulk", "nopt"} & set(OPT)): a.dpoll(70, 44, 13, 8)
    a.ldsadd(VC, V1, cW4)
    a("KB_q2c:")
    a.ldswait(VC, 5, 7, 1, cW4)
    mphase(a, stQ, 0, 6, kw, 18, first=False, prio=2)
    a.ldswait(VC, 5, 7, 4, cSide)
    if fine: a.stamp(4)
    a(f"s_lshr_b32 s8, s4, 1\ns_mul_i32 s8, s8, {FB_STRIDE}\ns_add_u32 s8, s8, {FY_OFF}")
    def yhook(i):
        if i == 3:
            a("s_cmp_lg_u32 s3, 7\ns_cbranch_scc1 KB_ys")
            if not ({"nobulk", "nopt"} & set(OPT)): a.vpoll(8, 576, 14, 13, 32)
            a("KB_ys:")
    gphase(a, 10, 12, yhook)
    a.subbar(VC, 5, 7, 8, off=cH1)
    if fine: a.stamp(5)
    mphase(a, stQ, 1, 8, 0, 12, prio=1)
    a.ldswait(VC, 5, 7, 4, cH2)
    if fine: a.stamp(7)
    mphase(a, stQ, 1, 8, 12, 18, first=False, prio=1)
    a(f"s_setprio {optval('QT', 1)}")
    a.stamp(10)
    a.nop(8)
    for k in range(10):
        if k and k % 4 == 0: a("s_add_u32 s67, s67, 4096")
        for x in pstore(a, MACC, k >> 1, k & 1, 67, (k % 4) * 1024, k): a(x)
    a("s_waitcnt vmcnt(0)")
    a.sadd(69, 6)
    a(f"s_setprio {optval('QF', 0)}")
    st = a.stamps; a.stamps = st and fine
    gen_final(a)
    a.stamps = st
    a.end()
    a("K6_end:")
    a("s_endpgm")
```

```python
S, D, F = 2048, 576, 4608
ACT = S * D * 2
H_OFF    = 0x0000000
X1_OFF   = 0x0240000
KV_OFF   = 0x0480000
KV_PITCH = 4224
Y_OFF    = 0x0700000
W2M_OFF  = 0x0940000
FT_OFF   = W2M_OFF + 3072
CSUM_OFF = FT_OFF
FYW_OFF  = FT_OFF + 36864
ST1_OFF  = 0x09E0000
SS_OFF   = 0x0950000
MEAN_OFF = 0x0968000
FLAG_OFF = 0x0970000
FB_STRIDE = 4352
FX_OFF   = FLAG_OFF
FP_OFF   = FLAG_OFF + 128
FW4_OFF  = FLAG_OFF + 32 * FB_STRIDE
FY_OFF   = FLAG_OFF + 40 * FB_STRIDE
FH_OFF   = FLAG_OFF + 16 * FB_STRIDE
FW3A_OFF = FW4_OFF + 128
FW3R_OFF = FW4_OFF + 256
FKV_OFF  = FY_OFF + 128
FM_OFF   = FY_OFF + 3 * FB_STRIDE + 128
FCNT = 12 * FB_STRIDE
FKC_OFF  = FLAG_OFF + 56 * FB_STRIDE
FLAG_WAVES = 17
W3T_OFF  = 0x0A00000
W4T_OFF  = 0x0F10000
PART_OFF = 0x1420000
STAMP_OFF = 0x2620000
WS_BYTES = 0x2700000
WSLICE = 18 * 36 * 1024

EPS = 1e-5
import struct, os
def f2u(x): return struct.unpack("<I", struct.pack("<f", x))[0]
def fh(x): return "0x%08x" % f2u(x)

def v(n, c=1): return f"v{n}" if c == 1 else f"v[{n}:{n+c-1}]"
def s(n, c=1): return f"s{n}" if c == 1 else f"s[{n}:{n+c-1}]"

P_Q, P_K, P_V, P_SHK, P_SSMK, P_SSMD, P_BX, P_W1, P_W2, P_W3, P_W4, P_OUT, P_DBG, P_WS = [16 + 2 * i for i in range(14)]

class Asm:
    def __init__(self):
        self.L = []
        self.n = 0
        self.stamps = False
        self.kid = 0
    def stamp(self, i):
        if self.stamps: self(f"{'s_memtime' if 'cyc' in os.environ.get('OPT','') else 's_memrealtime'} s[{72+2*i}:{73+2*i}]")
    def stamp_init(self):
        if self.stamps:
            for i in range(12): self(f"s_mov_b32 s{72+2*i}, 0")
            self.stamp(0)
    def end(self, i=11):
        if self.stamps:
            self("s_waitcnt vmcnt(0) lgkmcnt(0)")
            self.stamp(i)
            self.srd(56, P_WS, WS_BYTES)
            self("s_mov_b64 exec, 1")
            self(f"s_lshl_b32 s6, s2, 3\ns_add_u32 s6, s6, s3\ns_lshl_b32 s6, s6, 6\ns_add_u32 s6, s6, {STAMP_OFF + self.kid * 0x28000}")
            self("v_mov_b32 v4, 0\ns_waitcnt lgkmcnt(0)")
            for q in range(3):
                for e in range(4): self(f"v_mov_b32 v{8+4*q+e}, s{72+8*q+2*e}")
                self(f"buffer_store_dwordx4 v[{8+4*q}:{11+4*q}], v4, s[56:59], s6 offen offset:{16*q}")
            if os.environ.get("HOLD"):
                idx, wid = os.environ["HOLD"].split(",")
                l = self.lab("HS"); l2 = self.lab("HL")
                self(f"s_lshl_b32 s6, s2, 3\ns_add_u32 s6, s6, s3\ns_cmp_lg_u32 s6, {wid}\ns_cbranch_scc1 {l}")
                self(f"{l2}:\ns_sleep 1\ns_memrealtime s[8:9]\ns_waitcnt lgkmcnt(0)\ns_sub_u32 s8, s8, s{72+2*int(idx)}\ns_cmp_lt_u32 s8, 10000\ns_cbranch_scc1 {l2}")
                self(f"{l}:")
            if "dbgst" in os.environ.get("OPT", ""):
                l = self.lab("DS")
                self(f"s_lshl_b32 s6, s2, 3\ns_add_u32 s6, s6, s3\ns_cmp_lg_u32 s6, {os.environ.get('DBGW', '41')}\ns_cbranch_scc1 {l}")
                for i in range(1, 12):
                    self(f"v_subrev_u32 v20, s72, v{8+i}\nglobal_store_dword v4, v20, {s(P_DBG,2)} offset:{4+4*i}")
                self(f"{l}:")
        self("s_endpgm")
    def __call__(self, t):
        for line in t.split("\n"):
            line = line.strip()
            if line:
                self.L.append(("" if line.endswith(":") or line.startswith(".") else "  ") + line)
    def lab(self, p="L"):
        self.n += 1
        return f"{p}_{self.n}"
    def text(self): return "\n".join(self.L) + "\n"
    def kernargs(self):
        self("s_load_dwordx16 s[16:31], s[0:1], 0")
        self("s_load_dwordx8 s[32:39], s[0:1], 64")
        self("s_load_dwordx4 s[40:43], s[0:1], 96")
    def srd(self, d, p, nbytes):
        self(f"s_mov_b32 s{d}, s{p}\ns_mov_b32 s{d+1}, s{p+1}\ns_mov_b32 s{d+2}, {nbytes}\ns_mov_b32 s{d+3}, 0x20000")
    def mfma(self, d, a, b, c=None):
        cc = v(d, 4) if c is None else c
        self(f"v_mfma_f32_16x16x32_bf16 {v(d,4)}, {v(a,4)}, {v(b,4)}, {cc}")
    def nop(self, n):
        while n > 0:
            k = min(n, 16)
            self(f"s_nop {k-1}")
            n -= k
    def prefetch_code(self, endlabel, vtmp, vdst, stmp):
        l = self.lab("PF")
        self(f"s_getpc_b64 {s(stmp,2)}")
        self(f"{l}:")
        self(f"v_and_b32 {v(vtmp)}, 15, v0")
        self(f"v_lshlrev_b32 {v(vtmp)}, 5, {v(vtmp)}")
        self(f"s_lshr_b32 s{stmp+2}, s2, 3")
        self(f"v_add_lshl_u32 {v(vtmp)}, s{stmp+2}, {v(vtmp)}, 7")
        self(f"v_min_u32 {v(vtmp)}, {endlabel}-{l}-4, {v(vtmp)}")
        self(f"global_load_dword {v(vdst)}, {v(vtmp)}, {s(stmp,2)} nt")
    def subbar(self, vaddr, vtmp, stmp, n, off=0):
        self("s_mov_b64 exec, 1")
        self(f"v_mov_b32 {v(vtmp)}, 1")
        self(f"ds_add_u32 {v(vaddr)}, {v(vtmp)} offset:{off}")
        self("s_mov_b64 exec, -1")
        self.ldswait(vaddr, vtmp, stmp, n, off)
    def ldswait(self, vaddr, vtmp, stmp, n, off=0, sleep=1):
        l = self.lab("LW"); d = self.lab("LD")
        self(f"{l}:")
        self(f"ds_read_b32 {v(vtmp)}, {v(vaddr)} offset:{off}")
        self("s_waitcnt lgkmcnt(0)")
        self(f"v_readfirstlane_b32 s{stmp}, {v(vtmp)}")
        self(f"s_cmp_ge_u32 s{stmp}, {n}")
        self(f"s_cbranch_scc1 {d}")
        self(f"s_sleep {max(sleep, int(os.environ.get('LSLEEP', '1')))}")
        self(f"s_branch {l}")
        self(f"{d}:")
    def poll(self, vaddr, soff, vtmp, stmp, sleep=1):
        l = self.lab("PL"); d = self.lab("PD")
        self(f"s_mov_b32 s{stmp}, 0x40000")
        self(f"{l}:")
        self(f"buffer_load_dword {v(vtmp)}, {v(vaddr)}, s[56:59], {soff} offen sc1")
        self("s_waitcnt vmcnt(0)")
        self(f"v_cmp_eq_u32 vcc, 0, {v(vtmp)}")
        self(f"s_cbranch_vccz {d}")
        self(f"s_sleep {sleep}")
        self(f"s_sub_u32 s{stmp}, s{stmp}, 1")
        self(f"s_cbranch_scc0 {l}")
        self(f"{d}:")
    def spoll(self, n, soff, sd, stmp, sleep=1):
        l = self.lab("SP"); d = self.lab("SD")
        self(f"s_mov_b32 s{stmp}, 0x40000")
        self(f"{l}:")
        self(f"s_load_dwordx{n} {s(sd,n)}, {s(P_WS,2)}, s{soff} glc")
        self("s_waitcnt lgkmcnt(0)")
        k = n
        while k > 2:
            k //= 2
            for i in range(0, k, 2): self(f"s_and_b64 {s(sd+i,2)}, {s(sd+i,2)}, {s(sd+k+i,2)}")
        self(f"s_and_b32 s{sd}, s{sd}, s{sd+1}")
        self(f"s_cbranch_scc1 {d}")
        if sleep: self(f"s_sleep {sleep}")
        self(f"s_sub_u32 s{stmp}, s{stmp}, 1")
        self(f"s_cbranch_scc0 {l}")
        self(f"{d}:")
    def cpoll(self, soff, n, sd, stmp, sleep=1):
        l = self.lab("CP"); d = self.lab("CD")
        self(f"s_mov_b32 s{stmp}, 0x40000")
        self(f"{l}:")
        self(f"s_load_dword s{sd}, {s(P_WS,2)}, s{soff} glc")
        self("s_waitcnt lgkmcnt(0)")
        self(f"s_cmp_ge_u32 s{sd}, {n}")
        self(f"s_cbranch_scc1 {d}")
        if sleep: self(f"s_sleep {sleep}")
        self(f"s_sub_u32 s{stmp}, s{stmp}, 1")
        self(f"s_cbranch_scc0 {l}")
        self(f"{d}:")
    def vpoll(self, soff, n, vtmp, stmp, sleep=8):
        l = self.lab("VP"); d = self.lab("VD")
        self(f"s_mov_b32 s{stmp}, 0x20000\nv_mov_b32 {v(vtmp)}, 0")
        self(f"{l}:")
        self(f"buffer_load_dword {v(vtmp+1)}, {v(vtmp)}, s[56:59], s{soff} offen sc1")
        self("s_waitcnt vmcnt(0)")
        self(f"v_cmp_gt_u32 vcc, {n}, {v(vtmp+1)}")
        self(f"s_cbranch_vccz {d}")
        self(f"s_sleep {sleep}")
        self(f"s_sub_u32 s{stmp}, s{stmp}, 1")
        self(f"s_cbranch_scc0 {l}")
        self(f"{d}:")
    def zcheck(self, vtmp, stmp, drain=True):
        l = self.lab("ZP"); d = self.lab("ZD")
        self(f"s_load_dword s{stmp}, {s(P_DBG,2)}, 0")
        self("s_waitcnt vmcnt(0) lgkmcnt(0)" if drain else "s_waitcnt lgkmcnt(0)")
        self(f"s_cmp_lg_u32 s{stmp}, 0\ns_cbranch_scc1 {d}")
        self(f"s_mov_b32 s{stmp}, 0x20000\nv_mov_b32 {v(vtmp)}, 0")
        self(f"{l}:")
        self(f"global_load_dword {v(vtmp+1)}, {v(vtmp)}, {s(P_DBG,2)} sc1")
        self("s_waitcnt vmcnt(0)")
        self(f"v_cmp_eq_u32 vcc, 0, {v(vtmp+1)}")
        self(f"s_cbranch_vccz {d}")
        self("s_sleep 4")
        self(f"s_sub_u32 s{stmp}, s{stmp}, 1")
        self(f"s_cbranch_scc0 {l}")
        self(f"{d}:")
    def sarrive(self, soff, n, stmp, scnt=None):
        d = self.lab("SA")
        if scnt is None:
            scnt = stmp + 1
            self(f"s_add_u32 s{scnt}, s{soff}, {FCNT}")
        self(f"s_mov_b32 s{stmp}, 1\ns_atomic_add s{stmp}, {s(P_WS,2)}, s{scnt} glc")
        self(f"s_waitcnt lgkmcnt(0)\ns_add_u32 s{stmp}, s{stmp}, 1\ns_cmp_lg_u32 s{stmp}, {n}\ns_cbranch_scc1 {d}")
        self(f"s_atomic_add s101, {s(P_WS,2)}, s{soff}")
        self(f"{d}:")
    def dpoll(self, soff, sd, stmp, sleep=4):
        d = self.lab("DP")
        self(f"s_load_dword s{sd}, {s(P_WS,2)}, s{soff}\ns_waitcnt lgkmcnt(0)\ns_cmp_lg_u32 s{sd}, 0\ns_cbranch_scc1 {d}")
        self.cpoll(soff, 1, sd, stmp, sleep)
        self(f"{d}:")
    def sadd(self, soff, stmp):
        self(f"s_atomic_add s101, {s(P_WS,2)}, s{soff}")
    def arrive(self, soff, n, vtmp, stmp):
        d = self.lab("AR")
        self("s_mov_b64 exec, 1")
        self(f"v_mov_b32 {v(vtmp)}, {FCNT}\nv_mov_b32 {v(vtmp+1)}, 1")
        self(f"buffer_atomic_add {v(vtmp+1)}, {v(vtmp)}, s[56:59], s{soff} offen sc0 sc1")
        self("s_waitcnt vmcnt(0)")
        self(f"v_readfirstlane_b32 s{stmp}, {v(vtmp+1)}")
        self(f"s_add_u32 s{stmp}, s{stmp}, 1\ns_cmp_lg_u32 s{stmp}, {n}")
        self(f"s_cbranch_scc1 {d}")
        self(f"v_mov_b32 {v(vtmp)}, 0\nv_mov_b32 {v(vtmp+1)}, 1")
        self(f"buffer_store_dword {v(vtmp+1)}, {v(vtmp)}, s[56:59], s{soff} offen sc1")
        self("s_waitcnt vmcnt(0)")
        self(f"{d}:")
        self("s_mov_b64 exec, -1")
    def addflag(self, soff, vtmp):
        self("s_mov_b64 exec, 1")
        self(f"v_mov_b32 {v(vtmp)}, 0\nv_mov_b32 {v(vtmp+1)}, 1")
        self(f"buffer_atomic_add {v(vtmp+1)}, {v(vtmp)}, s[56:59], {soff} offen sc1")
        self("s_mov_b64 exec, -1")
    def ldsadd(self, vaddr, vone, off):
        self("s_mov_b64 exec, 1")
        self(f"ds_add_u32 {v(vaddr)}, {v(vone)} offset:{off}")
        self("s_mov_b64 exec, -1")
    def setflag(self, soff, vtmp):
        self("s_mov_b64 exec, 1")
        self(f"v_mov_b32 {v(vtmp)}, 0\nv_mov_b32 {v(vtmp+1)}, 1")
        self(f"buffer_store_dword {v(vtmp+1)}, {v(vtmp)}, s[56:59], {soff} offen sc1")
        self("s_mov_b64 exec, -1")

def desc(name, nv, ns=100):
    nv = (nv + 7) // 8 * 8
    return f""".p2align 6
.amdhsa_kernel {name}
  .amdhsa_next_free_vgpr {nv}
  .amdhsa_next_free_sgpr {ns}
  .amdhsa_accum_offset {min(nv, 256)}
  .amdhsa_group_segment_fixed_size 0
  .amdhsa_kernarg_size 112
  .amdhsa_user_sgpr_count 2
  .amdhsa_user_sgpr_kernarg_segment_ptr 1
  .amdhsa_system_sgpr_workgroup_id_x 1
  .amdhsa_float_denorm_mode_32 3
.end_amdhsa_kernel
"""

GC0 = -2.0 * 0.7978845608028654 * 1.4426950408889634
GC1 = GC0 * 0.044715
LOG2E = 1.4426950408889634

import os
OPT = os.environ.get("OPT", "").split(",")
def optval(name, default):
    return int(os.environ.get(name, default))

def gelu_vals(a, regs, tmps, k0, k1):
    n = len(regs)
    K0 = k0 if isinstance(k0, list) else [k0] * n
    K1 = k1 if isinstance(k1, list) else [k1] * n
    nt = len(tmps)
    for b in range(0, n, nt):
        idx = list(range(b, min(b + nt, n)))
        for i in idx: a(f"v_mul_f32 {v(tmps[i-b])}, {v(regs[i])}, {v(regs[i])}")
        for i in idx: a(f"v_fma_f32 {v(tmps[i-b])}, {v(tmps[i-b])}, {K1[i]}, {K0[i]}")
        for i in idx: a(f"v_mul_f32 {v(tmps[i-b])}, {v(tmps[i-b])}, {v(regs[i])}")
        for i in idx: a(f"v_exp_f32 {v(tmps[i-b])}, {v(tmps[i-b])}")
        for i in idx: a(f"v_add_f32 {v(tmps[i-b])}, 1.0, {v(tmps[i-b])}")
        for i in idx: a(f"v_rcp_f32 {v(tmps[i-b])}, {v(tmps[i-b])}")
        for i in idx: a(f"v_mul_f32 {v(regs[i])}, {v(tmps[i-b])}, {v(regs[i])}")

def gsum(a, r, t):
    a(f"v_mov_b32 v{t}, v{r}\ns_nop 1\nv_permlane32_swap_b32 v{r}, v{t}\nv_add_f32 v{r}, v{r}, v{t}")
    a(f"v_mov_b32 v{t}, v{r}\ns_nop 1\nv_permlane16_swap_b32 v{r}, v{t}\nv_add_f32 v{r}, v{r}, v{t}")

def gen_pretile(a, R=32):
    a("v_lshrrev_b32 v18, 3, v1\nv_and_b32 v19, 7, v1")
    a("v_mul_lo_u32 v20, v18, s7")
    a("v_lshl_add_u32 v20, v19, 4, v20")
    a("s_lshl_b32 s10, s7, 3")
    for i in range(3):
        if i: a("s_sub_u32 s6, s6, s11")
        for rg in range(4):
            a(f"buffer_load_dwordx4 {v(R+16*i+4*rg,4)}, v20, s[44:47], s6 offen offset:{128*i} nt")
            if rg < 3: a("s_add_u32 s6, s6, s10")
        if i == 0: a("s_mul_i32 s11, s10, 3")
    a("v_lshlrev_b32 v21, 4, v1\nv_add_u32 v22, s9, v21")
    a("v_lshrrev_b32 v23, 2, v1\nv_lshlrev_b32 v23, 7, v23\nv_and_b32 v19, 3, v1\nv_lshl_add_u32 v23, v19, 3, v23\nv_add_u32 v23, s9, v23")
    for i in range(3):
        a(f"s_waitcnt vmcnt(8)")
        for rg in range(4):
            a(f"ds_write_b128 v22, {v(R+16*i+4*rg,4)} offset:{1024*rg}")
        for tn in range(4):
            a(f"ds_read_b64_tr_b16 {v(R+48+16*i+4*tn,2)}, v23 offset:{tn*32}")
            a(f"ds_read_b64_tr_b16 {v(R+48+16*i+4*tn+2,2)}, v23 offset:{2048+tn*32}")
        a("s_waitcnt lgkmcnt(0)")
        for tn in range(4):
            a(f"buffer_store_dwordx4 {v(R+48+16*i+4*tn,4)}, v21, s[56:59], s8 offen offset:{tn*1024} sc1")
        a("s_add_u32 s8, s8, 4096")
```

```python
from common import *
import kb4, km
from g1 import gelu_pk
import conv, tail
from kb4 import Stream, mphase, gphase, h_addr, pstore, stage_x, stage_y, gen_final, gen_conv_load, paced, NS, RING, BF, MACC, KC, GT, ML_H, VC, V1

G2_WM, G2_W = 0, 2560
SLOT = 24576
G1_BASE = 76800
G1_AUX = 150528
CV_SZ = 21248
FSCR = 4 * CV_SZ
CNT = 158592
RM = CNT + 128
K6_LDS = RM + 1024
kb4.RM = RM
cG2, cX1, cX2, cFX, cSide, cH1, cA, cH2, cW4, cG1, cFH, cU, cW3, cHs, cW3a, cKV, cXs, cT1, cT2, cT3, cT0, cOwn = [4 * i for i in range(22)]
km.cG1 = cG1

W4F = optval('W4F', 432)

def last_of(a, off, n, skip):
    a(f"s_mov_b64 exec, 1\nds_add_rtn_u32 v5, v{VC}, v{V1} offset:{off}\ns_mov_b64 exec, -1")
    a("s_waitcnt lgkmcnt(0)")
    a("v_readfirstlane_b32 s7, v5")
    a(f"s_cmp_lg_u32 s7, {n-1}\ns_cbranch_scc1 {skip}")

def gen_g(a):
    BUF, ACC, STA, CSA, SQ, SM, CS, ONE, XA, WA = 32, 96, 112, 124, 140, 144, 148, 152, 184, 188
    log = []
    a("v_lshrrev_b32 v2, 2, v1\nv_and_b32 v3, 3, v1\nv_mul_u32_u24 v4, 1152, v2")
    a("v_lshrrev_b32 v6, 5, v1\nv_lshlrev_b32 v6, 1, v6\nv_xor_b32 v6, v6, v3\nv_lshl_add_u32 v6, v6, 4, v4")
    a("s_mul_i32 s10, s60, 147456\ns_mul_i32 s9, s3, 18432\ns_add_u32 s10, s10, s9")
    a("s_lshr_b32 s8, s3, 1\ns_mul_i32 s11, s8, 18432\ns_lshl_b32 s9, s61, 7\ns_add_u32 s11, s11, s9\ns_and_b32 s9, s3, 1\ns_lshl_b32 s9, s9, 6\ns_add_u32 s11, s11, s9")
    a("s_mul_i32 s14, s62, 7\ns_add_u32 s14, s14, 1\ns_mov_b32 s12, s61")
    a(f"s_lshl_b32 s13, s3, 10\ns_add_u32 s13, s13, {G1_BASE}")
    a("s_waitcnt lgkmcnt(0)")
    a.srd(48, P_Q, ACT)
    a.srd(44, P_W1, D * D * 2)
    def issue(gi):
        sl = (gi % 3) * SLOT
        a("s_add_u32 s12, s12, s14\ns_sub_u32 s9, s12, 9\ns_cmp_ge_u32 s12, 9\ns_cselect_b32 s12, s9, s12")
        a(f"s_lshl_b32 s15, s12, 7\ns_add_u32 s15, s15, s10\ns_add_u32 m0, s13, {sl}\ns_mul_i32 s9, s12, 73728")
        a("buffer_load_dwordx4 v6, s[48:51], s15 offen lds")
        a("s_add_u32 m0, m0, 8128\ns_add_u32 s9, s9, s11")
        a("buffer_load_dwordx4 v6, s[48:51], s15 offen offset:64 lds")
        a("s_add_u32 m0, m0, 8256\ns_nop 0")
        a("buffer_load_dwordx4 v6, s[44:47], s9 offen lds")
        log.extend(["x", "x", f"g{gi}"])
    younger = lambda key: len(log) - 1 - log.index(key)
    issue(0); issue(1)
    if "w1t" in OPT:
        a("s_mul_i32 s8, s62, 288\ns_lshl_b32 s9, s61, 6\ns_add_u32 s8, s8, s9\ns_add_u32 s8, s8, 32\ns_mul_i32 s9, s3, 36\ns_add_u32 s8, s8, s9")
        a("v_min_u32 v7, 35, v1\nv_add_u32 v7, s8, v7\nv_subrev_u32 v8, 576, v7\nv_min_u32 v7, v7, v8\nv_mul_u32_u24 v7, 1152, v7\ns_lshl_b32 s9, s61, 7")
        a("buffer_load_dword v31, v7, s[44:47], s9 offen")
        log.append("t")
    a.srd(56, P_WS, WS_BYTES)
    a("s_cmp_lg_u32 s3, 0\ns_cbranch_scc1 G_pf")
    a("s_mov_b64 exec, 0xffff")
    a(f"v_lshl_add_u32 v7, v1, 2, v{VC}\nv_mov_b32 v8, 0\nds_write2_b32 v7, v8, v8 offset0:0 offset1:16")
    a("s_mov_b64 exec, -1")
    a("G_pf:")
    a.srd(52, P_W2, D * D * 2)
    a("v_bfe_u32 v7, v1, 4, 1\nv_lshlrev_b32 v8, 1, v7\nv_xor_b32 v8, v8, v3\nv_lshl_add_u32 v30, v8, 4, v4")
    a(f"v_lshlrev_b32 v12, 6, v2\nv_lshl_add_u32 v12, v7, 5, v12\nv_lshl_add_u32 v12, v3, 3, v12\nv_add_u32 v22, {G2_W}, v12\nv_xor_b32 v23, 32, v22")
    a(f"s_mov_b32 s66, s11\ns_lshl_b32 s67, s3, 10\ns_add_u32 s67, s67, {G2_W}")
    a("v_and_b32 v2, 15, v1\nv_lshrrev_b32 v3, 4, v1")
    a("v_bfe_u32 v4, v1, 3, 1\nv_lshlrev_b32 v4, 1, v4")
    a("v_xor_b32 v5, v4, v3\nv_lshl_add_u32 v5, v2, 2, v5\nv_lshlrev_b32 v5, 4, v5")
    a("s_and_b32 s63, s3, 3\ns_lshr_b32 s64, s3, 2\ns_and_b32 s69, s3, 1\ns_lshr_b32 s70, s63, 1\ns_lshl_b32 s71, s63, 1\ns_add_u32 s71, s71, s64")
    a("s_lshl_b32 s9, s71, 10\ns_lshl_b32 s8, s69, 13\ns_add_u32 s9, s9, s8\nv_add_u32 v5, s9, v5")
    for i, x in enumerate((0, 1024, 8192, 9216)): a(f"v_xor_b32 v{XA+i}, {x}, v5\nv_add_u32 v{XA+i}, {G1_BASE}, v{XA+i}")
    a("v_lshrrev_b32 v5, 1, v3\nv_lshlrev_b32 v11, 11, v5\nv_and_b32 v8, 1, v3\nv_lshl_add_u32 v11, v8, 9, v11")
    a("v_lshrrev_b32 v7, 2, v2\nv_lshl_add_u32 v11, v7, 6, v11\nv_and_b32 v7, 3, v1\nv_lshl_add_u32 v11, v7, 3, v11\nv_lshl_add_u32 v11, v8, 5, v11")
    a("s_lshl_b32 s9, s64, 10\ns_lshl_b32 s8, s69, 12\ns_add_u32 s9, s9, s8\nv_add_u32 v11, s9, v11\ns_lshl_b32 s8, s70, 5\nv_xor_b32 v11, s8, v11")
    for i, x in enumerate((0, 32, 4096, 4128)): a(f"v_xor_b32 v{WA+i}, {x}, v11\nv_add_u32 v{WA+i}, {G1_BASE+16384}, v{WA+i}")
    a(f"v_xor_b32 v5, v5, v4\nv_lshl_add_u32 v5, v2, 2, v5\nv_lshlrev_b32 v20, 4, v5\nv_lshl_add_u32 v20, v8, 3, v20\ns_add_u32 s9, s13, {2*SLOT}\nv_add_u32 v20, s9, v20\nv_xor_b32 v21, 32, v20")
    a("v_lshlrev_b32 v13, 4, v2\nv_lshlrev_b32 v18, 4, v3\nv_lshlrev_b32 v25, 4, v1")
    a(f"s_lshl_b32 s9, s71, 8\ns_add_u32 s9, s9, {G1_AUX}\nv_add_u32 v26, s9, v13\nv_xor_b32 v27, 256, v26")
    a(f"s_lshl_b32 s9, s64, 8\ns_lshl_b32 s8, s70, 7\ns_add_u32 s9, s9, s8\ns_add_u32 s9, s9, {G1_AUX+2048}\nv_add_u32 v28, s9, v18\nv_xor_b32 v29, 128, v28\ns_lshl_b32 s8, s69, 6\nv_add_u32 v24, s8, v28")
    a(f"s_lshl_b32 s65, s60, 3\ns_add_u32 s65, s65, s71\ns_lshl_b32 s68, s65, 8\ns_add_u32 s68, s68, {ST1_OFF}\ns_xor_b32 s98, s65, 1")
    a(f"s_lshl_b32 s9, s61, 11\ns_lshl_b32 s8, s64, 10\ns_add_u32 s9, s9, s8\ns_add_u32 s9, s9, {H_OFF}\ns_mul_i32 s65, s65, 18432\ns_add_u32 s65, s65, s9\ns_mul_i32 s98, s98, 18432\ns_add_u32 s98, s98, s9")
    a(f"v_mov_b32 v160, {fh(GC0)}\nv_mov_b32 v161, {fh(GC0)}\nv_mov_b32 v162, {fh(GC1)}\nv_mov_b32 v163, {fh(GC1)}\nv_mov_b32 v164, 1.0\nv_mov_b32 v165, 1.0")
    for r in range(4): a(f"v_mov_b32 v{ONE+r}, 0x3f803f80")
    a("v_lshlrev_b32 v7, 2, v3\nv_sub_u32 v19, v2, v7")
    def w2issue(n):
        for _ in range(n):
            a("s_mov_b32 m0, s67\ns_add_u32 s67, s67, 8192")
            a("buffer_load_dwordx4 v30, s[52:55], s66 offen lds")
            a("s_add_u32 s66, s66, 73728")
            log.append("w")
    def reads(gi):
        o0 = (gi % 3) * SLOT
        b = BUF + 32 * (gi & 1)
        o = []
        for k2 in range(2):
            for mi in range(2): o.append(f"ds_read_b128 {v(b+16*k2+4*mi,4)}, v{XA+2*k2+mi} offset:{o0}")
            for t in range(2):
                for jh in range(2): o.append(f"ds_read_b64_tr_b16 {v(b+16*k2+8+4*t+2*jh,2)}, v{WA+2*k2+t} offset:{o0+256*jh}")
        return o
    fin = [f"v_mov_b32 v{STA}, 0"]
    for r in range(4): fin += [f"v_cmp_eq_u32 vcc, {r}, v19\ns_nop 1\nv_cndmask_b32 v{STA}, v{STA}, v{SQ+r}, vcc"]
    for gi in range(10):
        rd = []
        if gi < 9:
            a(f"s_waitcnt vmcnt({younger(f'g{gi}')})\ns_barrier")
            if gi == 0 or "g1t" in OPT: a.stamp(1 + gi)
            rd = reads(gi)
        def mem():
            if gi + 2 < 9: issue(gi + 2)
        l1 = a.lab("GM"); l2 = a.lab("GN")
        if gi + 2 < 9:
            a(f"s_cmp_ge_u32 s3, 4\ns_cbranch_scc1 {l1}")
            n0 = len(log); mem(); del log[n0:]
            a(f"{l1}:")
        if gi > 0:
            b = BUF + 32 * ((gi - 1) & 1)
            z = "0" if gi == 1 else None
            mm = [(SQ, b, b, z), (SM, ONE, b, z), (CS, b + 8, ONE, z), (SQ, b + 16, b + 16, None), (SM, ONE, b + 16, None)]
            mm += [(ACC + 8 * mi + 4 * t, b + 16 * k2 + 8 + 4 * t, b + 16 * k2 + 4 * mi, z if k2 == 0 else None) for k2 in range(2) for t in range(2) for mi in range(2)]
            for n, (d, x, y, c) in enumerate(mm):
                if rd: a(rd.pop(0))
                a.mfma(d, x, y, c)
        for r in rd: a(r)
        if gi + 2 < 9:
            a(f"s_cmp_lt_u32 s3, 4\ns_cbranch_scc1 {l2}")
            mem()
            a(f"{l2}:")
        if gi in (7, 8): w2issue(3)
        if gi < 9: a("s_waitcnt lgkmcnt(0)")
    a(f"ds_write_b128 v24, {v(CS,4)}")
    for x in fin: a(x)
    gsum(a, STA, 7)
    a(f"v_mul_f32 v{STA+2}, {fh(-1.0/D)}, v{SM}\nv_mul_f32 v7, {fh(1.0/D)}, v{STA}")
    a(f"v_fma_f32 v7, -v{STA+2}, v{STA+2}, v7\nv_max_f32 v7, 0, v7\nv_add_f32 v8, {fh(EPS)}, v7\nv_rsq_f32 v{STA}, v8\ns_nop 0")
    a(f"v_mul_f32 v8, v{STA}, v{STA}\nv_fmaak_f32 v8, v8, v7, {fh(EPS)}\nv_rsq_f32 v8, v8\nv_mul_f32 v{STA+1}, v{STA+2}, v{STA}\nv_mul_f32 v{STA+3}, v8, v{STA}")
    a(f"ds_write_b128 v26, {v(STA,4)}")
    a("s_waitcnt lgkmcnt(0)\ns_barrier")
    a.stamp(2 if "g1t" not in OPT else 10)
    if "g1t" in OPT: a.end()
    for t in range(2):
        for q in range(2): a(f"ds_read_b128 {v(CSA+8*t+4*q,4)}, v{28+t} offset:{64*q}")
    a(f"ds_read_b128 {v(STA+4,4)}, v27")
    a("s_cmp_lg_u32 s61, 0\ns_cbranch_scc1 G_ns")
    a(f"s_mov_b64 exec, 0xffff\nbuffer_store_dwordx4 {v(STA,4)}, v13, s[56:59], s68 offen sc1\ns_mov_b64 exec, -1")
    a("G_ns:")
    a(f"v_mov_b32 v{STA+8}, v{STA+2}\nv_mov_b32 v{STA+9}, v{STA+2}\nv_mov_b32 v{STA+10}, v{STA+3}\nv_mov_b32 v{STA+11}, v{STA+3}")
    a("s_waitcnt lgkmcnt(0)")
    for t in range(2):
        for e in range(0, 4, 2): a(f"v_pk_add_f32 {v(CSA+8*t+e,2)}, {v(CSA+8*t+e,2)}, {v(CSA+8*t+4+e,2)}")
    a(f"v_mov_b32 v{STA+4}, v{STA+6}\nv_mov_b32 v{STA+5}, v{STA+6}\nv_mov_b32 v{STA+6}, v{STA+7}")
    for mi in range(2):
        c = STA + 8 - 4 * mi
        regs = [ACC + 8 * mi + e for e in range(8)]
        for e in range(0, 8, 2): a(f"v_pk_fma_f32 {v(regs[e],2)}, {v(c,2)}, {v(CSA+8*(e>>2)+(e&3),2)}, {v(regs[e],2)}")
        for e in range(0, 8, 2): a(f"v_pk_mul_f32 {v(regs[e],2)}, {v(regs[e],2)}, {v(c+2,2)}")
        gelu_pk(a, regs, list(range(168, 176)), "v[160:161]", "v[162:163]", "v[164:165]")
        l1 = a.lab("GS"); l2 = a.lab("GT")
        a(f"s_cmp_lg_u32 s70, 0\ns_cbranch_scc1 {l1}")
        for e in range(4): a(f"v_cvt_pk_bf16_f32 v{176+4*mi+e}, v{regs[2*e]}, v{regs[2*e+1]}")
        a(f"s_branch {l2}\n{l1}:")
        for e in range(4): a(f"v_cvt_pk_bf16_f32 v{176+4*mi+(e^2)}, v{regs[2*e]}, v{regs[2*e+1]}")
        a(f"{l2}:")
        a(f"buffer_store_dwordx4 {v(176+4*mi,4)}, v25, s[56:59], s{65 if mi == 0 else 98} offen sc1")
    a.stamp(3)
    w2issue(3)
    HB, AR, AC2 = 32, 104, 224
    a("v_lshlrev_b32 v2, 4, v1\nv_add_u32 v3, 4096, v2\nv_lshlrev_b32 v4, 2, v1")
    a("s_lshl_b32 s8, s60, 3\ns_add_u32 s8, s8, s3")
    a("v_and_b32 v11, 1, v1\nv_lshlrev_b32 v11, 6, v11\nv_add_u32 v11, v11, v18")
    a("v_add_u32 v28, 36864, v22\nv_add_u32 v29, 36864, v23")
    a("v_and_b32 v8, 15, v1\ns_lshl_b32 s10, s8, 4\nv_add_u32 v8, s10, v8\nv_lshlrev_b32 v9, 4, v18\ns_movk_i32 s13, 18432\nv_mov_b32 v10, 0x80000000")
    for gam, sh in enumerate((-1, 1, -2, 2)):
        a(f"v_add_u32 v5, {sh}, v8\nv_cmp_gt_u32 vcc, {S}, v5\nv_lshrrev_b32 v6, 4, v5\nv_mad_u32_u24 v6, v6, s13, v9\nv_and_b32 v5, 15, v5\nv_lshl_add_u32 v6, v5, 4, v6")
        a(f"v_cndmask_b32 v{24+gam}, v10, v6, vcc")
    a(f"s_mul_i32 s11, s8, 18432\ns_lshl_b32 s9, s61, 11\ns_add_u32 s11, s11, s9\ns_add_u32 s11, s11, {X1_OFF}")
    a(f"s_mul_i32 s6, s60, {FB_STRIDE}\ns_add_u32 s6, s6, {FH_OFF}\ns_lshl_b32 s10, s3, 8\ns_add_u32 s10, s10, {G1_AUX}\nv_add_u32 v13, s10, v13\ns_mov_b32 s14, {H_OFF}")
    a("ds_read_b64 v[18:19], v13")
    a.zcheck(14, 9, False)
    a("s_waitcnt vmcnt(3)")
    last_of(a, cHs, 8, "G_hs")
    a.sadd(6, 7)
    a("G_hs:")
    a.stamp(4)
    a("s_cmp_lg_u32 s3, 7\ns_cbranch_scc1 G_wm")
    a(f"s_mov_b32 s9, {W2M_OFF}\nv_min_u32 v5, 240, v2\ns_mov_b32 s13, 0x20000")
    a("W2_m:")
    a("buffer_load_dwordx4 v[32:35], v2, s[56:59], s9 offen sc1\nbuffer_load_dwordx4 v[36:39], v2, s[56:59], s9 offen offset:1024 sc1\nbuffer_load_dwordx4 v[40:43], v5, s[56:59], s9 offen offset:2048 sc1")
    a("s_waitcnt vmcnt(0)")
    a("v_min3_u32 v6, v32, v36, v40\nv_cmp_eq_u32 vcc, 0, v6\ns_cbranch_vccz W2_n")
    a("s_sleep 8\ns_sub_u32 s13, s13, 1\ns_cbranch_scc0 W2_m")
    a("W2_n:")
    a(f"ds_write_b128 v2, v[32:35] offset:{G2_WM}\nds_write_b128 v2, v[36:39] offset:{G2_WM+1024}\nds_write_b128 v5, v[40:43] offset:{G2_WM+2048}")
    a("s_waitcnt lgkmcnt(0)")
    a("G_wm:")
    a("s_waitcnt vmcnt(0)\ns_barrier")
    NA = 6
    def ard(ks):
        b = AR + 20 * (ks % NA)
        o = [f"ds_read_b128 {v(b,4)}, v11 offset:{G2_WM+128*ks}"]
        for t in range(4):
            for jh in range(2):
                off = ((ks * 2 + jh) * 2 + (t >> 1)) * 1024
                ad = 22 + (t & 1)
                if off >= 36864: off -= 36864; ad += 6
                o.append(f"ds_read_b64_tr_b16 {v(b+4+4*t+2*jh,2)}, v{ad} offset:{off}")
        return o
    for ks in range(NA):
        for r in ard(ks): a(r)
    for t in range(4): a(f"ds_read_b64 {v(244+2*t,2)}, v{20+(t&1)} offset:{8192*(t>>1)}")
    a("s_cmp_lg_u32 s3, 1\ns_cbranch_scc1 G2_hw")
    a.cpoll(6, 9, 48, 13, 1)
    a("G2_hw:")
    a(f"s_sub_u32 s7, s6, {FB_STRIDE}\ns_add_u32 s12, s6, {FB_STRIDE}\ns_cmp_eq_u32 s3, 0\ns_cselect_b32 s12, s7, s12")
    a("s_waitcnt lgkmcnt(0)\ns_barrier")
    a("s_add_u32 s7, s8, 1\ns_and_b32 s9, s7, 7\ns_cmp_ge_u32 s9, 2\ns_cbranch_scc1 G2_hg\ns_and_b32 s7, s7, 127\ns_cmp_lt_u32 s7, 2\ns_cbranch_scc1 G2_hg")
    a.cpoll(12, 9, 48, 13, 1)
    a("G2_hg:")
    a.stamp(5)
    hl = []
    for ks in range(18):
        pre = "s_add_u32 s14, s14, 4096\n" if ks and ks % 4 == 0 else ""
        g0, g1_ = (2 * ks) // 9, (2 * ks + 1) // 9
        if g0 == g1_: hl.append((pre + f"buffer_load_dwordx4 {v(HB+4*ks,4)}, v{24+g0}, s[56:59], s14 offen offset:{(ks%4)*1024} sc1", 1))
        else: hl.append((pre + f"buffer_load_dwordx2 {v(HB+4*ks,2)}, v{24+g0}, s[56:59], s14 offen offset:{(ks%4)*1024} sc1\nbuffer_load_dwordx2 {v(HB+4*ks+2,2)}, v{24+g1_}, s[56:59], s14 offen offset:{(ks%4)*1024+8} sc1", 2))
    HD = optval("HD", 5)
    log2 = []
    def hissue(ks):
        a(hl[ks][0]); log2.extend(["x"] * (hl[ks][1] - 1) + [ks])
    for ks in range(HD): hissue(ks)
    for ks in range(18):
        lg = "" if ks < NA else f" lgkmcnt({min(15, 9*min(NA-1, 17-ks))})"
        a(f"s_waitcnt vmcnt({len(log2)-1-log2.index(ks)}){lg}")
        if ks + HD < 18: hissue(ks + HD)
        rd = ard(ks + NA) if ks + NA < 18 else []
        b = AR + 20 * (ks % NA)
        for t in range(5):
            a.mfma(AC2 + 4 * t, b + 4 * t, HB + 4 * ks, "0" if ks == 0 else None)
            for _ in range(1 if t == 0 else 2):
                if rd: a(rd.pop(0))
    a.stamp(6)
    for e in range(8): a(f"v_lshlrev_b32 v{HB+2*e}, 16, v{244+e}\nv_and_b32 v{HB+2*e+1}, 0xffff0000, v{244+e}")
    a(f"v_add_f32 v9, v{AC2}, v{AC2+1}")
    a("v_sub_f32 v28, v19, v9\nv_sub_f32 v29, v19, v9\nv_mov_b32 v19, v18\nv_mov_b32 v10, 0\nv_mov_b32 v11, 0")
    for p in range(2):
        for e in range(0, 8, 2): a(f"v_pk_fma_f32 {v(HB+8*p+e,2)}, {v(HB+8*p+e,2)}, v[18:19], v[28:29]")
        for e in range(0, 8, 2): a(f"v_pk_add_f32 {v(HB+8*p+e,2)}, {v(HB+8*p+e,2)}, {v(AC2+4+8*p+e,2)}")
        for e in range(4): a(f"v_cvt_pk_bf16_f32 v{AR+4*p+e}, v{HB+8*p+2*e}, v{HB+8*p+2*e+1}")
        a(f"buffer_store_dwordx4 {v(AR+4*p,4)}, v2, s[56:59], s11 offen offset:{p*1024} sc1")
    for e in range(0, 16, 2): a(f"v_pk_fma_f32 v[10:11], {v(HB+e,2)}, {v(HB+e,2)}, v[10:11]")
    a("v_add_f32 v10, v10, v11")
    gsum(a, 10, 11)
    a(f"s_mul_i32 s10, s60, 9\ns_add_u32 s10, s10, s61\ns_lshl_b32 s10, s10, 9\ns_lshl_b32 s12, s3, 6\ns_add_u32 s10, s10, s12\ns_add_u32 s10, s10, {SS_OFF}")
    a(f"s_lshl_b32 s12, s8, 6\ns_add_u32 s12, s12, {MEAN_OFF}")
    a("s_mov_b64 exec, 0xffff")
    a("buffer_store_dword v10, v4, s[56:59], s10 offen sc1")
    a("s_cmp_lg_u32 s61, 0\ns_cbranch_scc1 G2_m")
    a("buffer_store_dword v9, v4, s[56:59], s12 offen sc1")
    a("G2_m:")
    a("s_mov_b64 exec, -1")
    a(f"s_sub_u32 s6, s6, {FH_OFF-FX_OFF}")
    consts(a)
    a("s_waitcnt vmcnt(0)")
    last_of(a, cG2, 8, "G_xs")
    a.sadd(6, 7)
    a("G_xs:")
    a.stamp(7)

def gen_stats(a):
    R = 32
    a("v_lshrrev_b32 v2, 2, v1\nv_and_b32 v3, 3, v1\nv_mul_u32_u24 v4, 1152, v2\nv_lshl_add_u32 v4, v3, 4, v4")
    a("s_mul_i32 s7, s6, 18432")
    a.srd(44, P_Q, ACT)
    for i in range(18): a(f"buffer_load_dwordx4 {v(R+4*i,4)}, v4, s[44:47], s7 offen offset:{64*i}")
    a("s_barrier")
    a("v_mov_b32 v8, 0x3f803f80")
    for r in range(4): a(f"v_mov_b32 v{20+r}, 0")
    for i in range(18):
        if i % 3 == 0: a(f"s_waitcnt vmcnt({15-i})")
        for d in range(4):
            a(f"v_dot2c_f32_bf16 v{20+(d&1)}, v{R+4*i+d}, v8\nv_dot2c_f32_bf16 v{22+(d&1)}, v{R+4*i+d}, v{R+4*i+d}")
    a.ldsadd(VC, V1, cG1)
    a("v_add_f32 v20, v20, v21\nv_add_f32 v22, v22, v23\ns_nop 1")
    for qp in ("[1,0,3,2]", "[2,3,0,1]"):
        a(f"v_add_f32_dpp v20, v20, v20 quad_perm:{qp} row_mask:0xf bank_mask:0xf")
        a(f"v_add_f32_dpp v22, v22, v22 quad_perm:{qp} row_mask:0xf bank_mask:0xf")
        a("s_nop 1")
    a(f"v_mul_f32 v26, {fh(-1.0/D)}, v20\nv_mul_f32 v22, {fh(1.0/D)}, v22")
    a("v_fma_f32 v22, -v26, v26, v22\nv_max_f32 v22, 0, v22")
    a(f"v_add_f32 v21, {fh(EPS)}, v22\nv_rsq_f32 v24, v21\ns_nop 0")
    a(f"v_mul_f32 v21, v24, v24\nv_fmaak_f32 v21, v21, v22, {fh(EPS)}\nv_rsq_f32 v21, v21")
    a("v_mul_f32 v25, v26, v24\nv_mul_f32 v27, v21, v24\nv_or_b32 v24, 1, v24")
    a(f"v_lshlrev_b32 v5, 4, v2\ns_lshl_b32 s7, s6, 8\ns_add_u32 s7, s7, {ST1_OFF}")
    a.zcheck(14, 9, False)
    a("s_mov_b32 exec_lo, 0x11111111\ns_mov_b32 exec_hi, 0x11111111")
    a("buffer_store_dwordx4 v[24:27], v5, s[56:59], s7 offen sc1")
    a("s_mov_b64 exec, -1")

def gen_colsum(a):
    R = 32
    a("s_mul_i32 s7, s6, 57\ns_lshr_b32 s7, s7, 9\ns_mul_i32 s8, s7, 9\ns_sub_u32 s8, s6, s8")
    a("v_lshrrev_b32 v2, 3, v1\nv_and_b32 v3, 7, v1\nv_mul_u32_u24 v4, 1152, v2\nv_lshl_add_u32 v4, v3, 4, v4")
    a("s_mul_i32 s10, s7, 165888\ns_lshl_b32 s11, s8, 7\ns_add_u32 s10, s10, s11")
    a.srd(44, P_W1, D * D * 2)
    for i in range(18):
        a(f"buffer_load_dwordx4 {v(R+4*i,4)}, v4, s[44:47], s10 offen\ns_add_u32 s10, s10, 9216")
    a("s_barrier")
    for i in range(18):
        if i % 3 == 0: a(f"s_waitcnt vmcnt({15-i})")
        d = 20 if i == 0 else 104
        for e in range(4): a(f"v_lshlrev_b32 v{d+2*e}, 16, v{R+4*i+e}\nv_and_b32 v{d+2*e+1}, 0xffff0000, v{R+4*i+e}")
        if i:
            for e in range(4): a(f"v_pk_add_f32 {v(20+2*e,2)}, {v(20+2*e,2)}, {v(104+2*e,2)}")
    a.ldsadd(VC, V1, cG1)
    for e in range(8): a(f"v_add_f32_dpp v{20+e}, v{20+e}, v{20+e} row_ror:8 row_mask:0xf bank_mask:0xf")
    for e in range(8): gsum(a, 20 + e, 5)
    for e in range(8): a(f"v_or_b32 v{20+e}, 1, v{20+e}")
    a(f"v_lshlrev_b32 v5, 5, v1\ns_mul_i32 s7, s7, 2304\ns_lshl_b32 s8, s8, 8\ns_add_u32 s7, s7, s8\ns_add_u32 s7, s7, {CSUM_OFF}")
    a.zcheck(14, 9, False)
    a("s_mov_b64 exec, 0xff")
    a("buffer_store_dwordx4 v[20:23], v5, s[56:59], s7 offen sc1\nbuffer_store_dwordx4 v[24:27], v5, s[56:59], s7 offen offset:16 sc1")
    a("s_mov_b64 exec, -1")

def consts(a):
    if "nf1" in OPT: a("s_mov_b32 s4, s96\ns_mov_b32 s5, s97")
    elif "nf2" in OPT:
        a("s_and_b32 s4, s96, 3\ns_lshl_b32 s4, s4, 1\ns_and_b32 s7, s97, 1\ns_add_u32 s4, s4, s7\ns_lshr_b32 s5, s96, 2\ns_lshl_b32 s5, s5, 4\ns_lshr_b32 s7, s97, 1\ns_add_u32 s5, s5, s7")
    else:
        a("s_and_b32 s4, s96, 1\ns_lshl_b32 s4, s4, 2\ns_and_b32 s7, s97, 3\ns_add_u32 s4, s4, s7\ns_lshr_b32 s5, s96, 1\ns_lshl_b32 s5, s5, 3\ns_lshr_b32 s7, s97, 2\ns_add_u32 s5, s5, s7")
    km.consts2(a)

def gen_f(a, stP):
    a("s_cmp_lg_u32 s3, 0\ns_cbranch_scc1 F_pf")
    a("s_mov_b64 exec, 0xffff")
    a(f"v_lshl_add_u32 v7, v1, 2, v{VC}\nv_mov_b32 v8, 0\nds_write2_b32 v7, v8, v8 offset0:0 offset1:16")
    a("s_mov_b64 exec, -1")
    a("F_pf:")
    a(f"s_mul_i32 s61, s3, {CV_SZ}\ns_lshl_b32 s7, s3, 12\ns_add_u32 s7, s7, {FSCR-4*4096}\ns_cmp_ge_u32 s3, 4\ns_cselect_b32 s61, s7, s61")
    a("s_mul_i32 s12, s3, 112\ns_add_u32 s12, s12, s60\ns_mov_b32 s13, s61")
    a("s_waitcnt lgkmcnt(0)")
    a.srd(56, P_WS, WS_BYTES)
    a("s_barrier")
    a("s_cmp_ge_u32 s12, 306\ns_cbranch_scc1 F_pt")
    a("s_setprio 2\ns_cmp_ge_u32 s12, 18\ns_cbranch_scc1 F_kv")
    a("s_mov_b32 s6, s12")
    km.gen_meantile(a)
    a.ldsadd(VC, V1, cKV)
    a("s_branch F_done")
    a("F_kv:\ns_sub_u32 s6, s12, 18")
    if "nobulk" in OPT: a("s_sleep 100\ns_branch F_end")
    st = a.stamps; a.stamps = False
    km.gen_kv(a)
    a.stamps = st
    a.stamp(5)
    a(f"s_mul_i32 s11, s8, {FB_STRIDE}\ns_add_u32 s11, s11, {FKC_OFF}")
    a("s_branch F_sig")
    a("F_pt:")
    if "nobulk" in OPT or "nopt" in OPT: a("s_sleep 100\ns_branch F_end")
    a(f"s_cmp_lt_u32 s3, {optval('FUN', 4)}\ns_cbranch_scc1 F_job\ns_mov_b32 s8, {optval('FJW', 4)}")
    a.ldswait(VC, 5, 7, "s8", cKV, sleep=4)
    a("F_job:")
    a("s_sub_u32 s12, s12, 306\ns_and_b32 s62, s12, 7\ns_lshr_b32 s12, s12, 3\ns_mov_b32 s9, s61")
    n0 = len(a.L)
    km.job_setup(a, "JS")
    a.L[n0:] = [x.replace("s96", "s62") for x in a.L[n0:]]
    gen_pretile(a, 128)
    a("s_mov_b32 s6, s98")
    a(f"s_add_u32 s11, s6, {FCNT}")
    a("F_sig:")
    a.zcheck(14, 13)
    a.ldsadd(VC, V1, cKV)
    a.stamp(6)
    a.sarrive(6, "s100", 8, 11)
    a("F_done:")
    a.stamp(2)
    a("s_cmp_lt_u32 s3, 4\ns_cbranch_scc1 F_cv")
    a(f"s_mov_b64 exec, 1\nds_add_rtn_u32 v5, v{VC}, v{V1} offset:{cU}\ns_mov_b64 exec, -1")
    a("s_waitcnt lgkmcnt(0)")
    a("v_readfirstlane_b32 s12, v5")
    a("s_mul_i32 s12, s12, 112\ns_add_u32 s12, s12, s60\ns_add_u32 s12, s12, 896\ns_cmp_lt_u32 s12, 1170\ns_cbranch_scc1 F_job")
    a("F_end:")
    if "g1t" in OPT: a.end()
    a("v_lshlrev_b32 v2, 4, v1\nv_add_u32 v3, 4096, v2\nv_lshlrev_b32 v4, 2, v1")
    consts(a)
    a("s_branch K6_q")
    a("F_cv:")
    a("v_lshlrev_b32 v2, 4, v1\nv_add_u32 v3, 4096, v2\nv_lshlrev_b32 v4, 2, v1")
    consts(a)
    a("s_lshl_b32 s6, s60, 2\ns_add_u32 s6, s6, s3\ns_mov_b32 s7, s61\ns_setprio 3")
    def wait_kv():
        a("s_cmp_lg_u32 s3, 0\ns_cbranch_scc1 F_kw")
        conv.kv_flag_addr(a, 8)
        a.cpoll(8, 1, 44, 13, 4)
        a.ldsadd(VC, V1, cXs)
        a("F_kw:")
        a.ldswait(VC, 5, 8, 1, cXs)
        a.stamp(3)
    def gate():
        a("s_cmp_lg_u32 s3, 1\ns_cbranch_scc1 F_w3")
        a("s_add_u32 s8, s70, 128")
        a.dpoll(8, 44, 13)
        a.ldsadd(VC, V1, cW3a)
        a("F_w3:")
        a.ldswait(VC, 5, 8, 1, cW3a)
    conv.single(a, wait_kv, gate, stP.issue)
    assert stP.issued == 16
    a.stamp(4)
    a("v_mov_b32 v5, 2\ns_mov_b32 s98, s6")
    a.ldsadd(VC, 5, cG2)
    a("s_branch K6_p2")

def gen_k6(a, name):
    fine = "fine" in OPT
    a(f".p2align 8\n{name}:\nK6_start:")
    a("s_cmp_ge_u32 s2, 256\ns_cbranch_scc1 K6_end")
    a.stamp_init()
    if "skew" in OPT:
        a("s_mul_i32 s4, s2, 5\ns_and_b32 s4, s4, 7\nSK_l:\ns_sub_u32 s4, s4, 1\ns_cbranch_scc1 SK_d\ns_sleep 12\ns_branch SK_l\nSK_d:")
    a.kernargs()
    a("v_lshrrev_b32 v2, 6, v0\nv_and_b32 v1, 63, v0")
    a("v_readfirstlane_b32 s3, v2")
    a("s_and_b32 s96, s2, 7\ns_lshr_b32 s97, s2, 3\ns_mov_b32 s101, 1")
    a(f"v_mov_b32 v{VC}, {CNT}\nv_mov_b32 v{V1}, 1")
    a("s_sub_u32 s60, s2, 144\ns_cmp_lt_u32 s97, 18\ns_cbranch_scc1 K6_g")
    a("s_cmp_lt_u32 s3, 6\ns_cbranch_scc1 K6_f\ns_cmp_eq_u32 s3, 7\ns_cbranch_scc1 K6_pf")
    a(f"s_cmp_ge_u32 s60, {FLAG_WAVES}\ns_cbranch_scc1 K6_f")
    a(f"v_lshrrev_b32 v7, 5, v1\nv_mul_u32_u24 v7, {FB_STRIDE-512}, v7\nv_lshl_add_u32 v7, v1, 4, v7\nv_lshlrev_b32 v6, 4, v1")
    a("v_mov_b32 v8, 0\nv_mov_b32 v9, 0\nv_mov_b32 v10, 0\nv_mov_b32 v11, 0")
    a(f"s_lshl_b32 s8, s60, 12\ns_add_u32 s8, s8, {W2M_OFF}\ns_mul_i32 s9, s60, {4*FB_STRIDE}\ns_add_u32 s9, s9, {FLAG_OFF}\ns_add_u32 s10, s9, {2*FB_STRIDE}")
    a("s_waitcnt lgkmcnt(0)")
    a.srd(56, P_WS, WS_BYTES)
    for i in range(4): a(f"buffer_store_dwordx4 v[8:11], v6, s[56:59], s8 offen offset:{1024*i} sc1")
    a("buffer_store_dwordx4 v[8:11], v7, s[56:59], s9 offen sc1\nbuffer_store_dwordx4 v[8:11], v7, s[56:59], s10 offen sc1")
    a("s_mov_b32 s8, 1\ns_waitcnt vmcnt(0)")
    a(f"s_atomic_add s8, {s(P_DBG,2)}, 128 glc\ns_waitcnt lgkmcnt(0)\ns_cmp_lg_u32 s8, {FLAG_WAVES-1}\ns_cbranch_scc1 K6_f")
    a(f"s_atomic_add s101, {s(P_DBG,2)}, 0")
    a.stamp(1)
    a("s_branch K6_f")
    a("K6_pf:")
    a("s_getpc_b64 s[8:9]\nF_pc:")
    a("s_sub_u32 s10, s97, 18\nv_min_u32 v2, 39, v1\nv_mul_u32_u24 v2, 14, v2\nv_add_lshl_u32 v2, s10, v2, 7\nv_min_u32 v2, CODE_END-F_pc-4, v2")
    a("global_load_dword v31, v2, s[8:9]")
    a("s_branch K6_f")
    a("K6_g:")
    a("s_cmp_ge_u32 s97, 9\ns_cselect_b32 s62, 1, 0\ns_mul_i32 s61, s62, 9\ns_sub_u32 s61, s97, s61\ns_lshl_b32 s60, s96, 1\ns_add_u32 s60, s60, s62")
    A3 = [(2, 0), (2, 1024), (2, 2048)]
    stP = Stream(a, [(64, A3, " sc1"), (65, A3, " sc1"), (66, [(tail.VT + i, 0) for i in range(3)], " sc1"), (68, [(tail.VT + 3, 0)], " sc1")])
    stQ = Stream(a, [(64, A3, " sc1"), (66, [(tail.VT + i, 0) for i in range(5)], " sc1")])
    gen_g(a)
    a("s_cmp_lt_u32 s3, 4\ns_cbranch_scc1 K6_p")
    a("s_cmp_ge_u32 s2, 128\ns_cbranch_scc1 K6_q")
    a("s_add_u32 s6, s2, 448\ns_cmp_lg_u32 s3, 4\ns_cbranch_scc1 G_kw")
    conv.kv_flag_addr(a, 8)
    a.dpoll(8, 44, 13)
    a.ldsadd(VC, V1, cT0)
    a("G_kw:")
    a("s_setprio 3\ns_cmp_lg_u32 s3, 7\ns_cbranch_scc1 G_k2\ns_add_u32 s8, s70, 256")
    a.dpoll(8, 44, 13, 8)
    a.ldsadd(VC, V1, cW3)
    a("G_k2:")
    a.ldswait(VC, 5, 8, 1, cT0)
    a.ldswait(VC, 5, 8, 8, cG2)
    conv.team(a, G1_BASE, G1_BASE + 21504, cT1, cT2, cT3, lambda: None, stQ.issue)
    assert stQ.issued == 16
    a.ldsadd(VC, V1, cSide)
    a.stamp(8 if not fine else 2)
    a("s_waitcnt vmcnt(0)")
    last_of(a, cU, 4, "K6_q2")
    a.setflag("s6", 14)
    a("s_branch K6_q2")
    a("K6_f:")
    gen_f(a, stP)
    def addrs():
        a(f"v_mov_b32 v6, v2\nv_add_u32 v7, 36864, v2\nv_add_u32 v8, {ML_H}, v2\nv_add_u32 v9, {ML_H+36864}, v2")
        h_addr(a, 71, 10, 12)
    def rk():
        a(f"v_and_b32 v5, 15, v1\nv_lshlrev_b32 v5, 4, v5\nv_add_u32 v5, {RM}, v5")
        for m in range(4): a(f"ds_read_b32 v{GT+m}, v5 offset:{256*m}")
        a("s_waitcnt lgkmcnt(0)")
        for m in range(4):
            r = GT + m
            a(f"v_mul_f32 v{KC+2*m}, {fh(GC0)}, v{r}\nv_mul_f32 v{r}, v{r}, v{r}\nv_mul_f32 v{r}, {fh(0.044715)}, v{r}\nv_mul_f32 v{KC+2*m+1}, v{r}, v{KC+2*m}")
    a("K6_p:")
    a("s_cmp_lg_u32 s3, 1\ns_cbranch_scc1 KB_w3")
    a("s_add_u32 s6, s70, 128")
    a.dpoll(6, 48, 13, 8)
    a.ldsadd(VC, V1, cW3a)
    a("KB_w3:")
    a.ldswait(VC, 5, 7, 1, cW3a)
    paced(a, Stream(a, stP.segs), 16, optval("PPACE", 8))
    a("s_mov_b32 s98, 0")
    a("K6_p2:")
    a("s_setprio 2")
    PRE = NS
    for i in range(NS - 16): stP.issue()
    addrs()
    a(f"s_lshr_b32 s11, s5, 1\ns_mul_i32 s6, s11, {FB_STRIDE}\ns_add_u32 s6, s6, {FX_OFF}")
    a(f"s_mul_i32 s9, s3, 18432\ns_mov_b32 m0, s9\ns_mul_i32 s7, s5, 73728\ns_add_u32 s7, s7, s9\ns_add_u32 s7, s7, {X1_OFF}")
    a.stamp(8)
    a("s_cmp_lg_u32 s3, 0\ns_cbranch_scc1 KB_xw")
    a.cpoll(6, 9, 44, 13, optval('FXS', 1))
    a.ldswait(VC, 5, 8, 8, cG2)
    a.ldsadd(VC, V1, cFX)
    a("s_branch KB_xg")
    a("KB_xw:")
    a.ldswait(VC, 5, 8, 1, cFX)
    a("KB_xg:")
    a.stamp(9)
    def xdma(i):
        if i and i % 4 == 0: a("s_add_u32 m0, m0, 4096\ns_add_u32 s7, s7, 4096")
        a(f"buffer_load_dwordx4 v2, s[56:59], s7 offen offset:{(i%4)*1024} sc1 lds")
        stP.other(f"x{i}")
    XP = optval("XP", 6)
    for i in range(XP): xdma(i)
    for i in range(NS - PRE): stP.issue()
    late = [(lambda i=i: xdma(i)) for i in range(XP, 18)]
    def stat(ins, tag="x"):
        a(ins); stP.other(tag)
    for i in range(optval("XE", 12)): late.pop(0)()
    a(f"s_waitcnt vmcnt({stP.younger(f'x{XP-1}')})")
    a("s_cmp_eq_u32 s98, 0\ns_cbranch_scc1 KB_fy")
    a.setflag("s98", 14)
    a("KB_fy:")
    a.subbar(VC, 5, 10, 4, off=cX1)
    a.stamp(10 if not fine else 1)
    def xhook(ks, i):
        if i in (0, 4, 8, 10, 11, 3) and late: late.pop(0)()
    mphase(a, stP, 0, 6, 0, XP, prio=2, hook=xhook)
    assert not late
    if "s1" in OPT: a.stamp(8)
    a(f"s_waitcnt vmcnt({stP.younger('x17')})")
    if "s1" in OPT: a.stamp(9)
    a.subbar(VC, 5, 7, 4, off=cX2)
    kw = 18 - (NS + 2) // 3
    def w3hook(ks, i):
        if ks == kw - 1 and i == 10: a.ldswait(VC, 5, 7, 1, cW3)
    mphase(a, stP, 0, 6, XP, 18, first=False, prio=2, hook=w3hook)
    if fine: a.stamp(2)
    a.ldswait(VC, 5, 7, 5, cSide)
    rk()
    gphase(a, 10, 12)
    a.ldsadd(VC, V1, cH1)
    if fine: a.stamp(3)
    a("s_add_u32 s71, s71, 24")
    h_addr(a, 71, 10, 12)
    tail.consts_b(a)
    a.ldswait(VC, 5, 7, 1, cW4)
    mphase(a, stP, 1, 6, prio=1)
    a.ldsadd(VC, V1, cA)
    if fine: a.stamp(4)
    def sthook(i):
        if i == 1:
            a.ldswait(VC, 5, 7, 4, cA)
            a.ldswait(VC, 5, 7, 8, cH1)
            stage_x(a)
            stage_y(a)
    gphase(a, 10, 12, sthook)
    a("s_waitcnt vmcnt(0)")
    a.subbar(VC, 5, 7, 4, off=cH2)
    if fine: a.stamp(5)
    mphase(a, stP, 2, 8)
    if fine: a.stamp(6)
    tail.stores(a, 3, stP.other)
    tail.ex_base(a, 8)
    a(f"v_add_u32 v10, s8, v2\ns_lshl_b32 s6, s3, 2\nv_add_u32 v11, s6, v{VC}")
    def hook(ks, i):
        if ks == optval("EFLAG", 12) and i == 0:
            a("s_waitcnt vmcnt(0)")
            tail.flags(a, 3); stP.other()
    mphase(a, stP, 3, 8, acc=MACC + 64, hook=hook, bufs=[BF, BF + 16, MACC, MACC + 16], prio=optval("P2P", 1))
    if fine: a.stamp(7)
    a.nop(8)
    for i in range(4): a(f"ds_write_b128 v10, {v(MACC+64+4*i,4)} offset:{1024*i}")
    a.ldsadd(11, V1, cOwn)
    a.end()
    a("K6_q:")
    a("s_setprio 0")
    a.stamp(8 if not fine else 2)
    a.ldsadd(VC, V1, cSide)
    a("s_cmp_lg_u32 s3, 7\ns_cbranch_scc1 KB_q3")
    a("s_add_u32 s8, s70, 256")
    if not ({"nobulk", "nopt"} & set(OPT)): a.dpoll(8, 44, 13, 16)
    a.ldsadd(VC, V1, cW3)
    a("KB_q3:")
    a.ldswait(VC, 5, 7, 1, cW3, sleep=2)
    QW = optval("QRW", -1)
    if QW >= 0: a.ldswait(VC, 5, 7, 4, QW, sleep=2)
    paced(a, Stream(a, stQ.segs), 16, optval("QPACE", 4))
    a("K6_q2:")
    a("s_setprio 0")
    for i in range(NS - 16): stQ.issue()
    a.stamp(9 if not fine else 3)
    addrs()
    a("s_cmp_lg_u32 s3, 6\ns_cbranch_scc1 KB_rs")
    a.ldswait(VC, 5, 7, 1, cFX)
    a(f"s_lshr_b32 s11, s5, 1\ns_mul_i32 s6, s11, 4608\ns_and_b32 s8, s5, 1\ns_lshl_b32 s8, s8, 8\ns_add_u32 s6, s6, s8\ns_add_u32 s6, s6, {SS_OFF}\ns_add_u32 s11, s6, 4096")
    a(f"s_lshl_b32 s8, s5, 8\ns_add_u32 s8, s8, {MEAN_OFF}\ns_lshl_b32 s9, s5, 10\ns_add_u32 s9, s9, {ST1_OFF}\ns_setprio 3")
    for i in range(8): a(f"buffer_load_dword v{GT+i}, v4, s[56:59], s6 offen offset:{512*i} sc1")
    a(f"buffer_load_dword v{GT+8}, v4, s[56:59], s11 offen sc1\nbuffer_load_dword v{GT+13}, v4, s[56:59], s8 offen sc1\nbuffer_load_dwordx2 {v(GT+14,2)}, v2, s[56:59], s9 offen sc1")
    a("s_waitcnt vmcnt(0)")
    for i in range(1, 9): a(f"v_add_f32 v{GT}, v{GT}, v{GT+i}")
    a(f"v_mov_b32 v{GT+1}, {fh(1.0/D)}\nv_fmaak_f32 v{GT}, v{GT+1}, v{GT}, {fh(EPS)}")
    a(f"v_rsq_f32 v{GT+12}, v{GT}")
    a(f"v_add_u32 v5, {RM}, v2\ns_nop 0")
    a(f"ds_write_b128 v5, {v(GT+12,4)}")
    a.ldsadd(VC, V1, cSide)
    a("KB_rs:")
    a.ldswait(VC, 5, 7, 4, cX2)
    mphase(a, stQ, 0, 6, 0, kw, prio=2)
    a("s_cmp_lg_u32 s3, 7\ns_cbranch_scc1 KB_q2c")
    if not ({"nobulk", "nopt"} & set(OPT)): a.dpoll(70, 44, 13, 8)
    a.ldsadd(VC, V1, cW4)
    a("KB_q2c:")
    tail.consts_b(a)
    a.ldswait(VC, 5, 7, 1, cW4)
    mphase(a, stQ, 0, 6, kw, 18, first=False, prio=2)
    a.ldswait(VC, 5, 7, 5, cSide)
    if fine: a.stamp(4)
    rk()
    def yhook(i):
        ld = "buffer_load_dword v18, v14, s[56:59], s8 offen sc1\nbuffer_load_dword v19, v14, s[56:59], s8 offen offset:1280 sc1"
        if i == 0:
            a(f"s_mul_i32 s8, s4, 9\ns_lshr_b32 s8, s8, 1\ns_lshl_b32 s8, s8, 9\ns_add_u32 s8, s8, {FYW_OFF}\nv_min_u32 v14, 39, v1\nv_lshlrev_b32 v14, 5, v14")
            a(f"s_cmp_lg_u32 s3, 7\ns_cbranch_scc1 KB_y0\n{ld}\nKB_y0:")
        if i == 4:
            a("s_cmp_lg_u32 s3, 7\ns_cbranch_scc1 KB_ys\ns_mov_b32 s13, 0x20000\nKB_y1:")
            a("s_waitcnt vmcnt(0)\nv_and_b32 v18, v18, v19\nv_cmp_ne_u32 vcc, 1, v18\ns_cbranch_vccz KB_ys")
            a(f"s_sleep 16\n{ld}\ns_sub_u32 s13, s13, 1\ns_cbranch_scc0 KB_y1")
            a("KB_ys:")
    gphase(a, 10, 12, yhook)
    a.subbar(VC, 5, 7, 8, off=cH1)
    if fine: a.stamp(5)
    mphase(a, stQ, 1, 8, 0, 12, prio=1)
    a.ldswait(VC, 5, 7, 4, cH2)
    if fine: a.stamp(7)
    mphase(a, stQ, 1, 8, 12, 18, first=False, prio=1)
    a(f"s_setprio {optval('QT', 1)}")
    a.stamp(10)
    tail.stores(a, 5)
    def mid():
        a("s_waitcnt vmcnt(0)")
        tail.flags(a, 5)
        a(f"s_setprio {optval('QF', 1)}")
    st = a.stamps; a.stamps = st and fine
    tail.final(a, cOwn, mid)
    a.stamps = st
    a.end()
    a("K6_end:")
    a("s_endpgm")
```

```python
from common import *

G2_WM, G2_XT, G2_W = 0, 3072, 15360
CV, CV_SZ = 92160, 21248
CNT = CV + 3 * CV_SZ
RM = CNT + 64
PT7 = RM + 1024
KB_LDS = PT7 + 4096
ML_H = 73728
VC, V1 = 16, 17
NS = optval("NS", 18)
RING = 32
BF = RING + 4 * NS
MACC = BF + 32
KC = MACC + 80
GT = KC + 8
assert GT + 16 <= 256

class Stream:
    def __init__(self, a, segs):
        self.a = a
        self.items = [(sg, ks, t) for sg, sd in enumerate(segs) for ks in range(18) for t in range(len(sd[1]))]
        self.segs = segs
        self.issued = 0
        self.log = []
        self.owed = 0
        self.pre_done = -1
    def pre(self):
        if self.issued >= len(self.items) or self.pre_done == self.issued: return
        sg, ks, t = self.items[self.issued]
        if t == 0 and ks > 0:
            self.a(f"s_add_u32 s{self.segs[sg][0]}, s{self.segs[sg][0]}, 36864")
            self.pre_done = self.issued
    def issue(self):
        if self.issued >= len(self.items): return
        sg, ks, t = self.items[self.issued]
        sr, tl, fl = self.segs[sg]
        if t == 0 and ks > 0 and self.pre_done != self.issued: self.a(f"s_add_u32 s{sr}, s{sr}, 36864")
        vo, off = tl[t]
        if not ("nold" in OPT and self.issued >= NS): self.a(f"buffer_load_dwordx4 {v(RING+4*(self.issued % NS),4)}, v{vo}, s[56:59], s{sr} offen offset:{off}{fl}")
        self.log.append(self.issued)
        self.issued += 1
    def other(self, tag="x"): self.log.append(tag)
    def index(self, sg, ks, t): return self.items.index((sg, ks, t))
    def younger(self, key): return len(self.log) - 1 - self.log.index(key)

def mphase(a, st, sg, vb, ks0=0, ks1=18, first=True, acc=None, hook=None, prio=None, bufs=None):
    if acc is None: acc = MACC
    if bufs is None: bufs = [BF, BF + 16]
    nb = len(bufs); dist = nb - 1
    nt = len(st.segs[sg][1])
    def rd(ks, m): a(f"ds_read_b128 {v(bufs[ks%nb]+4*m,4)}, v{vb + (m >> 1)} offset:{(m&1)*18432+ks*1024}")
    if prio is not None: a(f"s_setprio {prio}")
    for ks in range(ks0, min(ks0 + dist, ks1)):
        for m in range(4): rd(ks, m)
    rslots = {1: (0, 1, 2, 3), 2: (0, 2, 3, 4), 3: (2, 3, 6, 7)}.get(nt, (2, 6, 10, 14))
    for ks in range(ks0, ks1):
        vm = st.younger(st.index(sg, ks, nt - 1))
        a(f"s_waitcnt vmcnt({min(vm,63)}) lgkmcnt({4*min(dist-1, ks1-1-ks)})")
        for t in range(nt):
            n = st.index(sg, ks, t)
            for m in range(4):
                i = 4 * t + m
                a.mfma(acc + 16 * t + 4 * m, RING + 4 * (n % NS), bufs[ks % nb] + 4 * m, "0" if (first and ks == ks0) else None)
                if m == 0 and st.owed: st.pre()
                if m == 1 and st.owed: st.issue(); st.owed = 0
                if m == 3: st.owed = 1
                if i in rslots and ks + dist < ks1 and "nord" not in OPT: rd(ks + dist, rslots.index(i))
                if hook: hook(ks, i)
    if st.owed: st.issue(); st.owed = 0
    if prio is not None: a("s_setprio 0")

def gphase(a, ve, vo, hook=None):
    a.nop(8)
    for t in range(3):
        for mp in range(2):
            regs = [MACC + 16 * t + 8 * mp + e for e in range(8)]
            k0 = [f"v{KC + 2*(2*mp + (e >> 2))}" for e in range(8)]
            k1 = [f"v{KC + 2*(2*mp + (e >> 2)) + 1}" for e in range(8)]
            if "nog" not in OPT: gelu_vals(a, regs, list(range(GT, GT + 8)), k0, k1)
            else: a("s_sleep 8")
            p = GT + 8 + 4 * (mp & 1)
            for e in range(4): a(f"v_cvt_pk_bf16_f32 v{p+e}, v{regs[2*e]}, v{regs[2*e+1]}")
            ad = (ve if t != 1 else vo) + mp
            for mm in range(2):
                a(f"ds_write_b64 v{ad}, {v(p+2*mm,2)} offset:{mm*18432+(t>>1)*1024}")
            if hook: hook(2 * t + mp)

def h_addr(a, sT, ve, vo):
    for k, dst in ((0, ve), (1, vo)):
        a(f"s_add_u32 s12, s{sT}, {k}\ns_lshr_b32 s13, s12, 1\ns_lshl_b32 s13, s13, 10\ns_and_b32 s12, s12, 1\ns_lshl_b32 s12, s12, 3\ns_add_u32 s12, s12, s13\ns_add_u32 s12, s12, {ML_H}")
        a(f"v_add_u32 v{dst}, s12, v2\nv_add_u32 v{dst+1}, 36864, v{dst}")

def pstore(a, acc, t, mp, sreg, off, k):
    p = GT + 4 * (k % 4)
    o = [f"v_cvt_pk_bf16_f32 v{p+e}, v{acc+16*t+8*mp+2*e}, v{acc+16*t+8*mp+2*e+1}" for e in range(4)]
    o.append(f"buffer_store_dwordx4 {v(p,4)}, v2, s[56:59], s{sreg} offen offset:{off} sc1")
    return o

HFL = ''
def gen_gemm2(a):
    HB, BUF, ACC = 32, 104, 216
    a("s_lshl_b32 s8, s61, 2\ns_add_u32 s8, s8, s3")
    a("s_mul_i32 s9, s8, 18432")
    a("v_and_b32 v8, 15, v1\ns_lshl_b32 s10, s8, 4\nv_add_u32 v8, s10, v8\nv_and_b32 v9, 48, v1\nv_lshlrev_b32 v9, 4, v9\ns_movk_i32 s13, 18432\nv_mov_b32 v10, 0x80000000")
    for gam, sh in enumerate((-1, 1, -2, 2)):
        a(f"v_add_u32 v5, {sh}, v8\nv_cmp_gt_u32 vcc, {S}, v5\nv_lshrrev_b32 v6, 4, v5\nv_mad_u32_u24 v6, v6, s13, v9\nv_and_b32 v5, 15, v5\nv_lshl_add_u32 v6, v5, 4, v6")
        a(f"v_cndmask_b32 v{24+gam}, v10, v6, vcc")
    a(f"s_mov_b32 s14, {H_OFF}")
    hl = []
    for ks in range(18):
        pre = "s_add_u32 s14, s14, 4096\n" if ks and ks % 4 == 0 else ""
        g0, g1 = (2 * ks) // 9, (2 * ks + 1) // 9
        if g0 == g1: hl.append(pre + f"buffer_load_dwordx4 {v(HB+4*ks,4)}, v{24+g0}, s[56:59], s14 offen offset:{(ks%4)*1024}{HFL}")
        else: hl.append(pre + f"buffer_load_dwordx2 {v(HB+4*ks,2)}, v{24+g0}, s[56:59], s14 offen offset:{(ks%4)*1024}{HFL}\nbuffer_load_dwordx2 {v(HB+4*ks+2,2)}, v{24+g1}, s[56:59], s14 offen offset:{(ks%4)*1024+8}{HFL}")
    for x in hl: a(x)
    a.srd(44, P_Q, ACT)
    a("v_lshrrev_b32 v5, 2, v1\nv_and_b32 v6, 3, v1\nv_mul_u32_u24 v7, 1152, v5\nv_lshl_add_u32 v7, v6, 4, v7")
    a(f"s_mul_i32 s12, s3, 3072\ns_add_u32 s12, s12, {G2_XT}\ns_mov_b32 m0, s12\ns_lshl_b32 s10, s62, 6\ns_add_u32 s10, s10, s9")
    for p in range(3):
        if p: a("s_add_u32 m0, m0, 960\ns_nop 0")
        a(f"buffer_load_dwordx4 v7, s[44:47], s10 offen offset:{64*p} lds")
    a("v_and_b32 v8, 15, v1\nv_lshrrev_b32 v9, 4, v1\nv_lshlrev_b32 v10, 3, v8")
    a(f"s_lshl_b32 s10, s8, 7\ns_add_u32 s10, s10, {ST1_OFF}")
    a("buffer_load_dwordx2 v[18:19], v10, s[56:59], s10 offen")
    a(f"s_lshl_b32 s11, s62, 10\ns_add_u32 s11, s11, s9\ns_add_u32 s11, s11, {X1_OFF}")
    a(f"v_lshlrev_b32 v12, 6, v5\nv_and_b32 v13, 1, v9\nv_lshl_add_u32 v12, v13, 5, v12\nv_lshl_add_u32 v12, v6, 3, v12\nv_add_u32 v12, {G2_W}, v12")
    a("v_xor_b32 v13, 32, v12\nv_add_u32 v14, 49152, v12\nv_add_u32 v15, 49152, v13")
    a("v_and_b32 v11, 1, v1\nv_lshlrev_b32 v11, 6, v11\nv_lshl_add_u32 v11, v9, 4, v11")
    a("v_lshlrev_b32 v20, 6, v8\nv_lshl_add_u32 v20, v9, 3, v20\nv_add_u32 v20, s12, v20")
    a("v_mov_b32 v10, 0")
    a.stamp(1)
    a("s_cmp_eq_u32 s63, 3\ns_cbranch_scc1 G2_n3")
    for npair in (2, 3):
        nt = 1 + 2 * npair
        if npair == 3: a("G2_n3:")
        def reads(gi):
            b = BUF + 56 * (gi & 1)
            o = []
            for k2 in range(2):
                ks = 2 * gi + k2
                o.append(f"ds_read_b128 {v(b+28*k2,4)}, v11 offset:{G2_WM+128*ks}")
                for t in range(2 * npair):
                    for jh in range(2):
                        off = ((ks * 2 + jh) * npair + (t >> 1)) * 1024
                        ad = 12 + (t & 1)
                        if off >= 49152: off -= 49152; ad += 2
                        o.append(f"ds_read_b64_tr_b16 {v(b+28*k2+4+4*t+2*jh,2)}, v{ad} offset:{off}")
            return o
        for gi in range(10):
            rd = []
            if gi < 9:
                a("s_barrier")
                if gi == 0 and npair == 2: a.stamp(2)
                rd = reads(gi)
            if gi == 9:
                a("s_waitcnt vmcnt(0)")
                rd = [f"ds_read_b64 {v(BUF+56+2*t,2)}, v20 offset:{(t>>1)*1024+(t&1)*32}" for t in range(2 * npair)]
            if gi > 0:
                g = gi - 1
                if gi < 9: a(f"s_waitcnt vmcnt({22-2*gi+(2*gi <= 4)+(2*gi <= 13)})")
                b = BUF + 56 * (g & 1)
                for k2 in range(2):
                    for t in range(nt):
                        for _ in range(2):
                            if rd: a(rd.pop(0))
                        a.mfma(ACC + 4 * t, b + 28 * k2 + 4 * t, HB + 4 * (2 * g + k2), "0" if (g == 0 and k2 == 0) else None)
            for r in rd: a(r)
            a("s_waitcnt lgkmcnt(0)")
        XS = BUF + 56
        for e in range(4 * npair):
            a(f"v_lshlrev_b32 v{HB+2*e}, 16, v{XS+e}\nv_and_b32 v{HB+2*e+1}, 0xffff0000, v{XS+e}")
        a(f"v_add_f32 v9, v{ACC}, v{ACC+1}")
        a("v_sub_f32 v19, v19, v9")
        for p in range(npair):
            for e in range(8): a(f"v_fma_f32 v{HB+8*p+e}, v{HB+8*p+e}, v18, v19")
            for e in range(8): a(f"v_add_f32 v{HB+8*p+e}, v{HB+8*p+e}, v{ACC+4+8*p+e}")
            for e in range(4): a(f"v_cvt_pk_bf16_f32 v{BUF+4*p+e}, v{HB+8*p+2*e}, v{HB+8*p+2*e+1}")
            a(f"buffer_store_dwordx4 {v(BUF+4*p,4)}, v2, s[56:59], s11 offen offset:{p*1024} sc1")
        for e in range(8 * npair): a(f"v_fmac_f32 v10, v{HB+e}, v{HB+e}")
        if npair == 2: a("s_branch G2_j")
    a("G2_j:")
    gsum(a, 10, 11)
    a(f"s_lshl_b32 s10, s61, 3\ns_add_u32 s10, s10, s60\ns_lshl_b32 s10, s10, 8\ns_lshl_b32 s12, s3, 6\ns_add_u32 s10, s10, s12\ns_add_u32 s10, s10, {SS_OFF}")
    a(f"s_lshl_b32 s12, s8, 6\ns_add_u32 s12, s12, {MEAN_OFF}")
    a("s_mov_b64 exec, 0xffff")
    a("buffer_store_dword v10, v4, s[56:59], s10 offen sc1")
    a(f"s_cmp_lg_u32 s60, 0\ns_cbranch_scc1 G2_m")
    a("buffer_store_dword v9, v4, s[56:59], s12 offen sc1")
    a("G2_m:")
    a("s_mov_b64 exec, -1")

def gen_w2load(a):
    a.srd(44, P_W2, D * D * 2)
    a("v_lshrrev_b32 v5, 2, v1\nv_and_b32 v6, 3, v1\nv_mul_u32_u24 v7, 1152, v5")
    a("v_bfe_u32 v8, v1, 4, 1\nv_lshlrev_b32 v8, 1, v8\nv_xor_b32 v8, v8, v6\nv_lshl_add_u32 v7, v8, 4, v7")
    a("s_sub_u32 s12, s3, 4")
    a(f"s_min_u32 s8, s12, 2\ns_lshl_b32 s8, s8, 10\ns_mov_b32 m0, s8\ns_add_u32 s8, s8, {W2M_OFF}")
    a("buffer_load_dwordx4 v2, s[56:59], s8 offen lds")
    a(f"s_lshl_b32 s6, s63, 10\ns_mul_i32 s7, s12, s6\ns_add_u32 s7, s7, {G2_W}\ns_lshl_b32 s6, s6, 2")
    a("s_mul_i32 s9, s12, 18432\ns_lshl_b32 s10, s62, 6\ns_add_u32 s9, s9, s10")
    DEP = optval("G2DEP", 3)
    a(f"s_mov_b32 s14, {9+DEP}")
    def wait(n):
        l1 = a.lab("WA"); l2 = a.lab("WB")
        if n == 0: a("s_waitcnt vmcnt(0)")
        else: a(f"s_cmp_eq_u32 s63, 2\ns_cbranch_scc1 {l1}\ns_waitcnt vmcnt({3*n})\ns_branch {l2}\n{l1}:\ns_waitcnt vmcnt({2*n})\n{l2}:")
        a("s_barrier")
    a("W2_l:")
    a("s_cmp_gt_u32 s14, 9\ns_cbranch_scc1 W2_i")
    wait(DEP - 1)
    a("W2_i:")
    a("s_mov_b32 m0, s7\ns_add_u32 s7, s7, s6")
    a("buffer_load_dwordx4 v7, s[44:47], s9 offen lds")
    a("s_add_u32 m0, m0, 960\ns_cmp_eq_u32 s63, 2")
    a("buffer_load_dwordx4 v7, s[44:47], s9 offen offset:64 lds")
    a("s_cbranch_scc1 W2_a")
    a("s_add_u32 m0, m0, 960\ns_nop 0")
    a("buffer_load_dwordx4 v7, s[44:47], s9 offen offset:128 lds")
    a("W2_a:")
    a("s_add_u32 s9, s9, 73728")
    a(f"s_sub_u32 s14, s14, 1\ns_cmp_gt_u32 s14, {DEP}\ns_cbranch_scc1 W2_l")
    a("s_cmp_eq_u32 s55, 0\ns_cbranch_scc1 W2_t")
    gen_conv_load(a)
    for i in range(DEP): a(f"s_waitcnt vmcnt({10+2*(DEP-1-i)})\ns_barrier")
    a("s_branch KB_conv")
    a("W2_t:")
    for i in range(DEP): wait(DEP - 1 - i)

def gen_conv_load(a, fl=''):
    a.srd(48, P_SSMK, ACT)
    a(f"s_mul_i32 s54, s52, {KV_PITCH}\ns_add_u32 s54, s54, {KV_OFF}")
    a("s_lshl_b32 s10, s52, 12")
    a(f"s_mov_b32 m0, s53\ns_add_u32 s11, s54, 4")
    for i in range(4): a(f"buffer_load_dwordx4 v2, s[56:59], s54 offen offset:{i*1024}{fl} lds")
    a("s_mov_b64 exec, 7")
    a("s_add_u32 m0, s53, 4096\ns_nop 0")
    a(f"buffer_load_dwordx4 v3, s[56:59], s54 offen{fl} lds")
    a(f"s_add_u32 m0, s53, {2*4160+4096}\ns_nop 0")
    a(f"buffer_load_dwordx4 v3, s[56:59], s11 offen{fl} lds")
    a("s_mov_b64 exec, -1")
    a(f"s_add_u32 m0, s53, {4*4160+512}\ns_nop 0")
    for i in range(4): a(f"buffer_load_dwordx4 v2, s[48:51], s10 offen offset:{i*1024} nt lds")

def gen_conv(a, mid, fl='', gate=None):
    FA, FB, ACC = 96, 160, 224
    a("s_mov_b32 s6, s52\ns_mov_b32 s7, s53")
    a("s_lshl_b32 s8, s6, 1\ns_and_b32 s8, s8, 0xfffffffc")
    a(f"s_load_dword s15, {s(P_SSMD,2)}, s8")
    a(f"s_add_u32 m0, s7, {2*4160}")
    a("s_waitcnt vmcnt(6)")
    for i in range(4): a(f"buffer_load_dwordx4 v2, s[56:59], s11 offen offset:{i*1024}{fl} lds")
    a("v_lshlrev_b32 v5, 3, v1\nv_add_u32 v5, s7, v5\nv_mov_b32 v18, 0\nv_mov_b32 v19, 0")
    a(f"ds_write_b64 v5, v[18:19] offset:{4*4160}")
    a("v_and_b32 v6, 15, v1\nv_lshrrev_b32 v7, 4, v1")
    a("v_sub_u32 v8, 3, v6\nv_and_b32 v8, 3, v8\nv_mul_u32_u24 v8, 4160, v8")
    a("v_and_b32 v9, 12, v6\nv_lshlrev_b32 v9, 1, v9\nv_sub_u32 v8, v8, v9")
    a("v_lshlrev_b32 v9, 4, v7\nv_sub_u32 v8, v8, v9")
    a(f"v_add_u32 v8, {4104-3584}, v8\nv_add_u32 v8, s7, v8")
    a("v_lshlrev_b32 v10, 5, v6\nv_sub_u32 v10, v10, v9")
    a(f"v_add_u32 v10, {4*4160+512+16}, v10\nv_add_u32 v10, s7, v10")
    a("v_add_u32 v11, s7, v2")
    a("v_min_u32 v12, 16, v2\nv_add_u32 v12, s7, v12\nv_add_u32 v12, 4096, v12")
    for r in range(32): a(f"v_mov_b32 v{ACC+r}, 0")
    a.stamp(2)
    a("s_waitcnt vmcnt(0)")
    a.stamp(3)
    for c in range(5):
        ad, o = (11, c * 1024) if c < 4 else (12, 0)
        b = FA + 12 * c
        a(f"ds_read_b128 {v(b,4)}, v{ad} offset:{o}")
        a(f"ds_read_b128 {v(b+4,4)}, v{ad} offset:{o+2*4160}")
        a(f"ds_read_b64 {v(b+8,2)}, v{ad} offset:{o+16}")
    for c in range(5):
        ad, o = (11, c * 1024) if c < 4 else (12, 0)
        b = FA + 12 * c; d = FB + 8 * c
        a(f"s_waitcnt lgkmcnt({12-c})")
        for e in range(4): a(f"v_alignbit_b32 v{d+e}, v{b+4+e}, v{b+e}, 16")
        for e in range(4): a(f"v_alignbit_b32 v{d+4+e}, v{b+2+e if e < 2 else b+6+e}, v{b+4+e}, 16")
        a(f"ds_write_b128 v{ad}, {v(d,4)} offset:{o+4160}")
        a(f"ds_write_b128 v{ad}, {v(d+4,4)} offset:{o+3*4160}")
    a("s_waitcnt lgkmcnt(0)")
    def reads(st):
        o = []
        for m in range(8):
            o.append(f"ds_read_b128 {v(FB+32*st+4*m,4)}, v10 offset:{512*m}")
            o.append(f"ds_read_b64 {v(FA+32*st+4*m,2)}, v8 offset:{512*(7-m)}")
            o.append(f"ds_read_b64 {v(FA+32*st+4*m+2,2)}, v8 offset:{512*(7-m)+8}")
        return o
    for t in reads(0): a(t)
    order = sorted([(i, m) for i in range(8) for m in range(i + 1)], key=lambda im: (max(im[1], im[0] - im[1]), im[1], im[0]))
    def body(extra=None):
        for st in range(2):
            a("v_subrev_u32 v8, 64, v8\nv_subrev_u32 v10, 64, v10")
            a("s_waitcnt lgkmcnt(0)")
            rd = reads(1 - st)
            for n, (i, m) in enumerate(order):
                a.mfma(ACC + 4 * i, FA + 32 * st + 4 * m, FB + 32 * st + 4 * (i - m))
                if n < 24: a(rd[n])
                if extra and n % 4 == 3 and n < 32: extra()
    a(f"s_setprio {optval('CVP', 3)}")
    n1 = optval("CVMID", 1 if gate is None else 2)
    if gate == "none": n1 = 4
    a(f"s_mov_b32 s12, {n1}")
    a("CV_k:")
    body()
    a("s_sub_u32 s12, s12, 1\ns_cmp_lg_u32 s12, 0\ns_cbranch_scc1 CV_k")
    if n1 < 4:
        if gate: gate()
        body(mid)
    if n1 < 3:
        a(f"s_mov_b32 s12, {3-n1}")
        a("CV_l:")
        body()
        a("s_sub_u32 s12, s12, 1\ns_cmp_lg_u32 s12, 0\ns_cbranch_scc1 CV_l")
    a.stamp(4)
    a("s_waitcnt lgkmcnt(0)")
    a("v_lshlrev_b32 v11, 5, v6\nv_lshl_add_u32 v11, v7, 3, v11")
    a(f"v_sub_u32 v12, {4088-3584}, v11\nv_add_u32 v12, s7, v12")
    for i in range(8): a(f"ds_read_b64 {v(FA+2*i,2)}, v12 offset:{512*(7-i)}")
    a("s_lshl_b32 s13, s15, 16\ns_and_b32 s14, s15, 0xffff0000\ns_bitcmp1_b32 s6, 0\ns_cselect_b32 s13, s14, s13")
    a(f"s_add_u32 s10, s10, {Y_OFF}")
    a("s_waitcnt lgkmcnt(0)")
    for i in range(8):
        a(f"v_and_b32 v{FB}, 0xffff0000, v{FA+2*i+1}\nv_lshlrev_b32 v{FB+1}, 16, v{FA+2*i+1}")
        a(f"v_and_b32 v{FB+2}, 0xffff0000, v{FA+2*i}\nv_lshlrev_b32 v{FB+3}, 16, v{FA+2*i}")
        for r in range(4): a(f"v_fmac_f32 v{ACC+4*i+r}, s13, v{FB+r}")
        a(f"v_cvt_pk_bf16_f32 v{FB+8+2*i}, v{ACC+4*i}, v{ACC+4*i+1}\nv_cvt_pk_bf16_f32 v{FB+9+2*i}, v{ACC+4*i+2}, v{ACC+4*i+3}")
        a(f"buffer_store_dwordx2 {v(FB+8+2*i,2)}, v11, s[56:59], s10 offen offset:{512*i} sc1")

def fin_consts(a):
    a("s_lshr_b32 s61, s4, 1\ns_and_b32 s62, s4, 1")
    a("s_mul_i32 s52, s61, 9\ns_lshl_b32 s6, s62, 2\ns_add_u32 s52, s52, s6")
    a("s_cmp_lt_u32 s4, 4\ns_cselect_b32 s53, 12288, 0")
    a("s_mul_i32 s54, s5, 73728\ns_lshl_b32 s6, s52, 5\ns_add_u32 s55, s54, s6")

def stage_x(a):
    a.srd(12, P_Q, ACT)
    fin_consts(a)
    a("s_mul_i32 s6, s3, 18432\ns_add_u32 s7, s6, s53\ns_mov_b32 m0, s7\ns_add_u32 s6, s6, s55\ns_movk_i32 s8, 6554\ns_movk_i32 s9, 992")
    for i in range(3):
        a(f"v_add_u32 v5, {64*i}, v1\nv_min_u32 v5, 159, v5\nv_mul_lo_u32 v14, v5, s8\nv_lshrrev_b32 v14, 16, v14")
        a("v_lshlrev_b32 v5, 4, v5\nv_mad_u32_u24 v5, v14, s9, v5")
        a("buffer_load_dwordx4 v5, s[12:15], s6 offen nt lds")
        a("s_add_u32 m0, m0, 1024")

def stage_y(a, uniform=False):
    a("v_lshrrev_b32 v5, 3, v1\nv_and_b32 v14, 7, v1\nv_lshlrev_b32 v5, 12, v5\nv_lshl_add_u32 v5, v14, 4, v5")
    a(f"s_lshl_b32 s6, s52, 16\ns_lshl_b32 s7, s3, 15\ns_add_u32 s6, s6, s7\ns_lshl_b32 s7, s5, 7\ns_add_u32 s6, s6, s7\ns_add_u32 s6, s6, {Y_OFF}")
    for i in range(3):
        if i == 2 and not uniform: a("s_cmp_ge_u32 s3, 2\ns_cbranch_scc1 FN_y")
        if i == 2 and uniform: a("s_sub_u32 s7, s6, 131072\ns_cmp_ge_u32 s3, 2\ns_cselect_b32 s6, s7, s6")
        a("buffer_load_dwordx4 v5, s[56:59], s6 offen sc1 lds")
        a("s_add_u32 m0, m0, 1024\ns_add_u32 s6, s6, 131072")
    a("FN_y:")

def gen_final(a):
    PR, YR, XR, X1R, RMR, AC, T = 32, 64, 68, 72, 76, 88, 96
    a.srd(48, P_OUT, ACT)
    a("s_sub_u32 s60, s3, 4")
    fin_consts(a)
    a("v_and_b32 v5, 15, v1\nv_lshrrev_b32 v6, 4, v1")
    a("v_mul_u32_u24 v7, 160, v5\nv_lshl_add_u32 v7, v6, 3, v7\nv_add_u32 v7, s53, v7")
    a("v_lshrrev_b32 v8, 1, v6\nv_mul_u32_u24 v8, 18432, v8\nv_bfe_u32 v9, v1, 2, 3\nv_lshl_add_u32 v8, v9, 7, v8")
    a("v_and_b32 v9, 3, v1\nv_lshl_add_u32 v8, v9, 3, v8\nv_add_u32 v8, s53, v8\nv_add_u32 v8, 3072, v8")
    a(f"v_lshlrev_b32 v11, 4, v5\nv_add_u32 v11, {RM}, v11")
    a("v_lshrrev_b32 v5, 5, v1\nv_bfe_u32 v6, v1, 1, 4\nv_and_b32 v9, 1, v1")
    a("v_mul_u32_u24 v18, 18432, v5\nv_lshl_add_u32 v18, v9, 4, v18\nv_mul_u32_u24 v19, 160, v6\nv_add3_u32 v19, v19, v18, s53")
    a("v_mul_u32_u24 v6, 1152, v6\nv_add_u32 v18, v18, v6")
    a.stamp(1)
    lists = {0: [[(4,0),(8,0),(3,2)], [(5,0),(0,1)], [(6,0),(1,1)], [(7,0),(2,2)]],
             1: [[(1,0),(5,0),(9,2)], [(2,0),(6,1)], [(3,0),(7,1)], [(4,0),(8,2)]]}
    def enc(l): return sum(((u | (c << 4) | 0x80) << (8 * i)) for i, (u, c) in enumerate(l))
    for q in range(4):
        a(f"s_cmp_eq_u32 s62, 0\ns_cselect_b32 s6, {enc(lists[0][q])}, {enc(lists[1][q])}" if False else
          f"s_mov_b32 s6, {enc(lists[0][q])}\ns_mov_b32 s7, {enc(lists[1][q])}\ns_cmp_eq_u32 s62, 0\ns_cselect_b32 s6, s6, s7")
        if q == 0: a("s_mov_b32 s68, s6")
        else: a(f"s_cmp_eq_u32 s60, {q}\ns_cselect_b32 s68, s6, s68")
    a("FN_l:")
    a("s_and_b32 s63, s68, 15\ns_lshr_b32 s6, s63, 1\ns_and_b32 s7, s63, 1")
    a("s_add_u32 s8, s6, s52")
    a("s_mul_i32 s9, s7, 36864")
    a("s_lshr_b32 s10, s8, 1\ns_lshl_b32 s10, s10, 10\ns_and_b32 s11, s8, 1\ns_lshl_b32 s11, s11, 3\ns_add_u32 s10, s10, s11\ns_add_u32 s10, s10, s9")
    a("v_add_u32 v12, s10, v2")
    a("s_lshl_b32 s10, s6, 5\ns_add_u32 s69, s10, s9")
    a("v_add_u32 v13, s69, v7\nv_add_u32 v20, s69, v19")
    a("s_lshl_b32 s10, s7, 9\nv_add_u32 v14, s10, v11")
    a("s_and_b32 s10, s6, 1\ns_mul_i32 s10, s10, 36864\ns_lshr_b32 s11, s6, 1\ns_lshl_b32 s11, s11, 10\ns_add_u32 s10, s10, s11\ns_lshl_b32 s11, s7, 6\ns_add_u32 s10, s10, s11")
    a("v_add_u32 v15, s10, v8")
    for mt in range(2):
        a(f"ds_read_b64 {v(X1R+2*mt,2)}, v12 offset:{18432*mt}")
        a(f"ds_read_b64 {v(XR+2*mt,2)}, v13 offset:{18432*mt}")
        a(f"ds_read_b128 {v(RMR+4*mt,4)}, v14 offset:{256*mt}")
        a(f"ds_read_b64_tr_b16 {v(YR+2*mt,2)}, v15 offset:{32*mt}")
    a("s_add_u32 s69, s69, s55")
    a(f"s_bfe_u32 s10, s68, 0x20004\ns_lshl_b32 s10, s10, 2\ns_add_u32 s10, s10, s61\ns_lshl_b32 s10, s10, 5\ns_mul_i32 s11, s5, {FB_STRIDE}\ns_add_u32 s10, s10, s11\ns_add_u32 s10, s10, {FP_OFF}")
    a(f"s_lshl_b32 s9, s8, 11\ns_lshl_b32 s11, s7, 10\ns_add_u32 s9, s9, s11\ns_add_u32 s9, s9, s54\ns_add_u32 s9, s9, {PART_OFF}")
    a("s_waitcnt lgkmcnt(0)")
    for e in range(4):
        r = RMR + 4 * (e >> 1)
        a(f"v_lshlrev_b32 v{T+16+2*e}, 16, v{XR+e}\nv_and_b32 v{T+17+2*e}, 0xffff0000, v{XR+e}")
        a(f"v_lshlrev_b32 v{T+8+2*e}, 16, v{X1R+e}\nv_and_b32 v{T+9+2*e}, 0xffff0000, v{X1R+e}")
        a(f"v_lshlrev_b32 v{T+24+2*e}, 16, v{YR+e}\nv_and_b32 v{T+25+2*e}, 0xffff0000, v{YR+e}")
        a(f"v_fma_f32 v{T}, v{T+16+2*e}, v{r+2}, v{r+3}\nv_fma_f32 v{T+1}, v{T+17+2*e}, v{r+2}, v{r+3}")
        a(f"v_add_f32 v{T+8+2*e}, v{T+8+2*e}, v{r+1}\nv_add_f32 v{T+9+2*e}, v{T+9+2*e}, v{r+1}")
        a(f"v_mul_f32 v{T+24+2*e}, v{T+24+2*e}, v{T}\nv_mul_f32 v{T+25+2*e}, v{T+25+2*e}, v{T+1}")
    a.spoll(8, 10, 16, 13, 2)
    if 'fine' in OPT: a.stamp(6)
    for fb in range(8):
        a(f"buffer_load_dwordx4 {v(PR+4*fb,4)}, v2, s[56:59], s9 offen sc1")
        if fb < 7: a(f"s_add_u32 s9, s9, {ACT}")
    for fb in range(8):
        a(f"s_waitcnt vmcnt({7-fb})")
        d = AC if fb == 0 else T
        for e in range(4):
            a(f"v_lshlrev_b32 v{d+2*e}, 16, v{PR+4*fb+e}\nv_and_b32 v{d+2*e+1}, 0xffff0000, v{PR+4*fb+e}")
        if fb:
            for e in range(8): a(f"v_add_f32 v{AC+e}, v{AC+e}, v{T+e}")
    for r in range(8): a(f"v_fma_f32 v{AC+r}, v{AC+r}, v{RMR+4*(r>>2)}, v{T+8+r}")
    for r in range(8): a(f"v_mul_f32 v{T+r}, {fh(-LOG2E)}, v{AC+r}")
    for r in range(8): a(f"v_exp_f32 v{T+r}, v{T+r}")
    for r in range(8): a(f"v_add_f32 v{T+r}, 1.0, v{T+r}")
    for r in range(8): a(f"v_rcp_f32 v{T+r}, v{T+r}")
    for r in range(8): a(f"v_mul_f32 v{AC+r}, v{AC+r}, v{T+24+r}")
    for r in range(8): a(f"v_fma_f32 v{AC+r}, v{AC+r}, v{T+r}, v{T+16+r}")
    for e in range(4): a(f"v_cvt_pk_bf16_f32 v{T+32+e}, v{AC+2*e}, v{AC+2*e+1}")
    for mt in range(2): a(f"ds_write_b64 v13, {v(T+32+2*mt,2)} offset:{18432*mt}")
    a(f"ds_read_b128 {v(T+36,4)}, v20")
    a("s_waitcnt lgkmcnt(0)")
    a(f"buffer_store_dwordx4 {v(T+36,4)}, v18, s[48:51], s69 offen")
    a("s_lshr_b32 s68, s68, 8\ns_cbranch_scc1 FN_l")

def touch(a, sbase, nlines, vdst, vtmp, fl=""):
    for i in range((nlines + 63) // 64):
        a(f"v_add_u32 v{vtmp}, {64*i}, v1\nv_min_u32 v{vtmp}, {nlines-1}, v{vtmp}\nv_lshlrev_b32 v{vtmp}, 7, v{vtmp}")
        a(f"buffer_load_dword v{vdst+i%4}, v{vtmp}, s[56:59], s{sbase} offen{fl}")

def paced(a, st, n, depth):
    for i in range(n):
        if i >= depth: a(f"s_waitcnt vmcnt({depth-1})")
        st.issue()

def gen_kb(a):
    a(".p2align 8\nkb_kernel:")
    a("s_cmp_ge_u32 s2, 256\ns_cbranch_scc1 KB_end")
    a.stamp_init()
    a.kernargs()
    a("v_lshrrev_b32 v2, 6, v0\nv_and_b32 v1, 63, v0")
    a("v_readfirstlane_b32 s3, v2")
    a(f"v_mov_b32 v{VC}, {CNT}\nv_mov_b32 v{V1}, 1\nv_mov_b32 v4, 0\nv_mov_b32 v5, 0\nv_mov_b32 v6, 0\nv_mov_b32 v7, 0")
    a(f"ds_write_b128 v{VC}, v[4:7]\nds_write_b128 v{VC}, v[4:7] offset:16\nds_write_b128 v{VC}, v[4:7] offset:32")
    a("s_and_b32 s4, s2, 7\ns_lshr_b32 s5, s2, 3")
    a("s_and_b32 s60, s5, 7\ns_and_b32 s61, s5, 24\ns_add_u32 s61, s61, s4")
    a("s_mov_b32 s96, s4\ns_mov_b32 s97, s5")
    if "tok" in OPT: a("s_mov_b32 s4, s60\ns_mov_b32 s5, s61")
    if "nf2" in OPT:
        a("s_and_b32 s4, s96, 3\ns_lshl_b32 s4, s4, 1\ns_and_b32 s7, s97, 1\ns_add_u32 s4, s4, s7\ns_lshr_b32 s5, s96, 2\ns_lshl_b32 s5, s5, 4\ns_lshr_b32 s7, s97, 1\ns_add_u32 s5, s5, s7")
    if "nf4" in OPT:
        a("s_and_b32 s4, s96, 1\ns_lshl_b32 s4, s4, 2\ns_and_b32 s7, s97, 3\ns_add_u32 s4, s4, s7\ns_lshr_b32 s5, s96, 1\ns_lshl_b32 s5, s5, 3\ns_lshr_b32 s7, s97, 2\ns_add_u32 s5, s5, s7")
    a("s_lshr_b32 s62, s60, 2\ns_lshl_b32 s7, s60, 1\ns_add_u32 s62, s62, s7")
    a("s_and_b32 s7, s60, 3\ns_cmp_eq_u32 s7, 3\ns_cselect_b32 s63, 3, 2")
    a("v_lshlrev_b32 v2, 4, v1\nv_add_u32 v3, 4096, v2\nv_lshlrev_b32 v4, 2, v1")
    a(f"s_mul_i32 s8, s4, {WSLICE}")
    a("s_mul_i32 s71, s3, 3")
    a(f"s_lshl_b32 s64, s71, 10\ns_add_u32 s64, s64, s8\ns_add_u32 s64, s64, {W3T_OFF}")
    a("s_add_u32 s65, s64, 24576")
    a("s_and_b32 s9, s3, 3\ns_mul_i32 s9, s9, 9\ns_lshr_b32 s10, s3, 2\ns_lshl_b32 s10, s10, 1\ns_add_u32 s9, s9, s10")
    a(f"s_lshl_b32 s66, s9, 10\ns_add_u32 s66, s66, s8\ns_add_u32 s66, s66, {W4T_OFF}")
    a(f"s_lshl_b32 s10, s4, 5\ns_add_u32 s10, s10, s5\ns_mul_i32 s67, s10, 73728\ns_lshl_b32 s9, s9, 11\ns_add_u32 s67, s67, s9\ns_add_u32 s67, s67, {PART_OFF}")
    NSH = 32 if not ({"nf2", "nf4", "tok"} & set(OPT)) else (16 if "nf2" in OPT else 8)
    TL = 5184 // NSH
    a(f"s_and_b32 s9, s5, {NSH-1}\ns_mul_i32 s9, s9, {TL*128}\ns_add_u32 s70, s8, s9")
    a(f"s_and_b32 s69, s3, 3\ns_lshl_b32 s69, s69, 3\ns_add_u32 s69, s69, s4\ns_lshl_b32 s69, s69, 2\ns_mul_i32 s10, s5, {FB_STRIDE}\ns_add_u32 s69, s69, s10\ns_add_u32 s69, s69, {FP_OFF}")
    a("s_waitcnt lgkmcnt(0)")
    a.srd(56, P_WS, WS_BYTES)
    a("s_cmp_ge_u32 s3, 4\ns_cbranch_scc1 KB_q")
    PP, QP, PB = optval("PP", 1), optval("QP", 2), optval("PB", 0)
    A3 = [(2, 0), (2, 1024), (2, 2048)]
    stP = Stream(a, [(64, A3, ""), (65, A3, ""), (66, [(2, 0), (3, 3072)], " sc1"), (68, [(2, 0), (3, 3072)], " sc1")])
    stQ = Stream(a, [(64, A3, ""), (66, [(2, 0), (2, 1024), (2, 2048), (2, 3072), (3, 0)], " sc1")])
    def addrs():
        a(f"v_mov_b32 v6, v2\nv_add_u32 v7, 36864, v2\nv_add_u32 v8, {ML_H}, v2\nv_add_u32 v9, {ML_H+36864}, v2")
        h_addr(a, 71, 10, 12)
    def rk():
        a(f"v_and_b32 v5, 15, v1\nv_lshlrev_b32 v5, 4, v5\nv_add_u32 v5, {RM}, v5")
        for m in range(4): a(f"ds_read_b32 v{GT+m}, v5 offset:{256*m}")
        a("s_waitcnt lgkmcnt(0)")
        for m in range(4):
            r = GT + m
            a(f"v_mul_f32 v{KC+2*m}, {fh(GC0)}, v{r}\nv_mul_f32 v{r}, v{r}, v{r}\nv_mul_f32 v{r}, {fh(0.044715)}, v{r}\nv_mul_f32 v{KC+2*m+1}, v{r}, v{KC+2*m}")
    cG2, cX1, cX2, cFX, cSide, cH1, cA, cH2, cW4 = 0, 4, 8, 12, 16, 20, 24, 28, 32
    fine = "fine" in OPT
    gen_gemm2(a)
    a.stamp(3)
    a(f"s_mul_i32 s6, s61, {FB_STRIDE}\ns_lshl_b32 s7, s60, 2\ns_add_u32 s6, s6, s7\ns_add_u32 s6, s6, {FX_OFF}")
    a("s_add_u32 s68, s66, 1024")
    a("s_waitcnt vmcnt(0)")
    a(f"s_mov_b64 exec, 1\nds_add_rtn_u32 v5, v{VC}, v{V1}\ns_mov_b64 exec, -1")
    a("s_waitcnt lgkmcnt(0)")
    a("v_readfirstlane_b32 s7, v5")
    a("s_cmp_lg_u32 s7, 3\ns_cbranch_scc1 KB_nosig")
    a.setflag("s6", 14)
    a("KB_nosig:")
    a.stamp(4)
    a.ldswait(VC, 5, 7, 4, cG2)
    PRE = optval("PPRE", NS)
    paced(a, stP, PRE, optval("PPACE", 8))
    addrs()
    a(f"s_mul_i32 s6, s5, {FB_STRIDE}\ns_add_u32 s6, s6, {FX_OFF}")
    a(f"s_mul_i32 s9, s3, 18432\ns_mov_b32 m0, s9\ns_mul_i32 s7, s5, 73728\ns_add_u32 s7, s7, s9\ns_add_u32 s7, s7, {X1_OFF}")
    a("s_cmp_lg_u32 s3, 0\ns_cbranch_scc1 KB_xw")
    a.spoll(8, 6, 44, 13, 1)
    a.ldsadd(VC, V1, cFX)
    a("s_branch KB_xg")
    a("KB_xw:")
    a.ldswait(VC, 5, 8, 1, cFX)
    a("KB_xg:")
    a.stamp(5)
    def xdma(i):
        if i and i % 4 == 0: a("s_add_u32 m0, m0, 4096\ns_add_u32 s7, s7, 4096")
        a(f"buffer_load_dwordx4 v2, s[56:59], s7 offen offset:{(i%4)*1024} sc1 lds")
        stP.other(f"x{i}")
    XP = optval("XP", 6)
    for i in range(XP): xdma(i)
    for i in range(NS - PRE): stP.issue()
    a(f"s_lshl_b32 s6, s5, 11\ns_add_u32 s6, s6, {SS_OFF}\ns_lshl_b32 s8, s5, 8\ns_add_u32 s8, s8, {MEAN_OFF}\ns_lshl_b32 s9, s5, 9\ns_add_u32 s9, s9, {ST1_OFF}")
    a("v_lshlrev_b32 v18, 3, v1")
    late = [(lambda i=i: xdma(i)) for i in range(XP, 18)]
    def stat(ins, tag="x"):
        a(ins); stP.other(tag)
    late += [(lambda i=i: stat(f"buffer_load_dword v{GT+i}, v4, s[56:59], s6 offen offset:{256*i} sc1")) for i in range(8)]
    late += [lambda: stat(f"buffer_load_dword v{GT+9}, v4, s[56:59], s8 offen sc1")]
    late += [lambda: stat(f"buffer_load_dwordx2 {v(GT+10,2)}, v18, s[56:59], s9 offen", "st")]
    XE = optval("XE", 4)
    for i in range(XE): late.pop(0)()
    a(f"s_waitcnt vmcnt({stP.younger(f'x{XP-1}')})")
    a.subbar(VC, 5, 10, 4, off=cX1)
    a.stamp(6)
    def xhook(ks, i):
        if i in (0, 4, 8, 10, 11, 3) and late: late.pop(0)()
    mphase(a, stP, 0, 6, 0, XP, prio=2, hook=xhook)
    assert not late
    a(f"s_waitcnt vmcnt({stP.younger('st')})")
    for i in range(1, 8): a(f"v_add_f32 v{GT}, v{GT}, v{GT+i}")
    a(f"v_mov_b32 v{GT+1}, {fh(1.0/D)}\nv_fmaak_f32 v{GT}, v{GT+1}, v{GT}, {fh(EPS)}")
    a(f"v_rsq_f32 v{GT+8}, v{GT}")
    a(f"v_add_u32 v5, {RM}, v2\ns_nop 0")
    a(f"ds_write_b128 v5, {v(GT+8,4)}")
    a.subbar(VC, 5, 7, 4, off=cX2)
    mphase(a, stP, 0, 6, XP, 18, first=False, prio=2)
    a.stamp(7)
    rk()
    a.ldswait(VC, 5, 7, 4, cSide, sleep=1)
    gphase(a, 10, 12)
    a.ldsadd(VC, V1, cH1)
    if fine: a.stamp(1)
    a("s_add_u32 s71, s71, 24")
    h_addr(a, 71, 10, 12)
    a.ldswait(VC, 5, 7, 1, cW4, sleep=1)
    mphase(a, stP, 1, 6, prio=1)
    a.ldsadd(VC, V1, cA)
    a.stamp(8)
    def sthook(i):
        if i == 1:
            a.ldswait(VC, 5, 7, 4, cA, sleep=1)
            a.ldswait(VC, 5, 7, 8, cH1, sleep=1)
            stage_x(a)
            stage_y(a)
    gphase(a, 10, 12, sthook)
    if fine: a.stamp(3)
    a("s_waitcnt vmcnt(0)")
    a.subbar(VC, 5, 7, 4, off=cH2)
    a.stamp(9)
    mphase(a, stP, 2, 8)
    if fine: a.stamp(4)
    a("s_add_u32 s6, s67, 14336\ns_add_u32 s7, s69, 128")
    pend = []
    for k, (t, mp) in enumerate([(0, 0), (0, 1), (1, 0), (1, 1)]):
        pend += pstore(a, MACC, t, mp, 67 if t == 0 else 6, mp * 1024, k)
    state = {"flag": False}
    def hook(ks, i):
        if (ks >= 1 or i >= 3) and i not in (1, 5) and pend:
            ins = pend.pop(0); a(ins)
            if ins.startswith("buffer"): stP.other("e" if not pend else "x")
        if not pend and not state["flag"] and ks == optval("EFLAG", 16) and i == 0:
            a(f"s_waitcnt vmcnt({stP.younger('e')})")
            a.setflag("s7", 14); stP.other()
            state["flag"] = True
    mphase(a, stP, 3, 8, acc=MACC + 32, hook=hook)
    assert state["flag"]
    a.stamp(10)
    a("s_setprio 3")
    a.nop(8)
    for k, (t, mp) in enumerate([(0, 0), (0, 1), (1, 0), (1, 1)]):
        for ins in pstore(a, MACC + 32, t, mp, 67 if t == 0 else 6, 2048 + mp * 1024, k): a(ins)
    a("s_add_u32 s7, s69, 256")
    a("s_waitcnt vmcnt(0)")
    a.setflag("s7", 14)
    a.end()
    a("KB_q:")
    a("s_lshr_b32 s6, s60, 2\ns_sub_u32 s6, s60, s6\ns_mul_i32 s7, s61, 6\ns_add_u32 s6, s6, s7\ns_mul_i32 s6, s6, 3")
    a("s_sub_u32 s7, s3, 4\ns_add_u32 s52, s6, s7")
    a(f"s_mul_i32 s7, s7, {CV_SZ}\ns_add_u32 s53, s7, {CV}")
    a("s_cmp_eq_u32 s3, 7\ns_cselect_b32 s55, 0, 1\ns_cmp_eq_u32 s63, 3\ns_cselect_b32 s55, 0, s55")
    gen_w2load(a)
    a("s_cmp_eq_u32 s3, 7\ns_cbranch_scc1 KB_w7")
    a("s_branch KB_nc")
    a("KB_conv:")
    gen_conv(a, stQ.issue)
    assert stQ.issued == 16
    a(f"s_lshr_b32 s6, s6, 4\ns_mul_i32 s6, s6, 57\ns_lshr_b32 s6, s6, 9\ns_mul_i32 s6, s6, {FB_STRIDE}\ns_add_u32 s6, s6, {FY_OFF}")
    a.ldsadd(VC, V1, cSide)
    a("s_waitcnt vmcnt(0)")
    a.addflag("s6", 14)
    a("s_setprio 0")
    a.stamp(5)
    a("s_branch KB_q3")
    a("KB_w7:")
    a(f"s_mov_b32 s12, s97\ns_mov_b32 s9, {PT7}")
    a("s_branch KB_q2")
    a("KB_nc:")
    a("s_lshr_b32 s12, s97, 2\ns_mul_i32 s12, s12, 3\ns_add_u32 s12, s12, s3\ns_add_u32 s12, s12, 28")
    a(f"s_lshl_b32 s9, s3, 12\ns_add_u32 s9, s9, {CV+36864-4*4096}")
    a("KB_q2:")
    a("s_cmp_ge_u32 s12, 54\ns_cbranch_scc1 KB_q2b")
    W4W = optval("W4W", cG2)
    if W4W >= 0: a.ldswait(VC, 5, 7, 4, W4W, sleep=2)
    a.stamp(2)
    a("s_setprio 3")
    a.srd(44, P_W4, D * F * 2)
    a(f"s_mul_i32 s15, s96, {WSLICE}\ns_add_u32 s8, s15, {W4T_OFF}")
    a("s_mul_i32 s13, s12, 86\ns_lshr_b32 s13, s13, 8\ns_mul_i32 s14, s13, 3\ns_sub_u32 s14, s12, s14")
    a("s_mul_i32 s6, s13, 36864\ns_mul_i32 s14, s14, 384\ns_add_u32 s6, s6, s14\ns_add_u32 s6, s6, s15")
    a("s_movk_i32 s7, 1152\ns_mul_i32 s13, s12, 12288\ns_add_u32 s8, s8, s13")
    gen_pretile(a, 128)
    a(f"s_mul_i32 s6, s96, {FB_STRIDE}\ns_add_u32 s6, s6, {FW4_OFF}")
    a("s_waitcnt vmcnt(0)")
    a.addflag("s6", 14)
    a("s_setprio 0")
    a("KB_q2b:")
    a.stamp(5)
    stQ2 = Stream(a, stQ.segs)
    paced(a, stQ2, 16, 4)
    a("s_waitcnt vmcnt(0)")
    a.ldsadd(VC, V1, cSide)
    a("KB_q3:")
    stQ.other()
    for i in range(NS - 16): stQ.issue()
    addrs()
    a.ldswait(VC, 5, 7, 4, cX2, sleep=1)
    rk()
    a.stamp(7)
    kw = 18 - (NS + 2) // 3
    mphase(a, stQ, 0, 6, 0, kw, prio=2)
    a("s_cmp_lg_u32 s3, 7\ns_cbranch_scc1 KB_q2c")
    a(f"s_mul_i32 s6, s4, {FB_STRIDE}\ns_add_u32 s6, s6, {FW4_OFF}")
    a.cpoll(6, 54, 44, 13, 4)
    a.ldsadd(VC, V1, cW4)
    a("KB_q2c:")
    a.ldswait(VC, 5, 7, 1, cW4)
    mphase(a, stQ, 0, 6, kw, 18, first=False, prio=2)
    a.ldswait(VC, 5, 7, 4, cSide)
    if fine: a.stamp(2)
    a(f"s_lshr_b32 s8, s4, 1\ns_mul_i32 s8, s8, {FB_STRIDE}\ns_add_u32 s8, s8, {FY_OFF}")
    def yhook(i):
        if i == 3:
            a("s_cmp_lg_u32 s3, 7\ns_cbranch_scc1 KB_ys")
            a.vpoll(8, 144, 14, 13)
            a("KB_ys:")
    gphase(a, 10, 12, yhook)
    if fine: a.stamp(3)
    a.subbar(VC, 5, 7, 8, off=cH1)
    a.stamp(8)
    mphase(a, stQ, 1, 8, 0, 12, prio=1)
    if fine: a.stamp(4)
    a.ldswait(VC, 5, 7, 4, cH2, sleep=1)
    a.stamp(9)
    mphase(a, stQ, 1, 8, 12, 18, first=False, prio=1)
    a(f"s_setprio {optval('QT', 1)}")
    a.stamp(10)
    a.nop(8)
    QS = optval("QS", 10)
    for k in range(10):
        if k and k % 4 == 0: a("s_add_u32 s67, s67, 4096")
        ins = pstore(a, MACC, k >> 1, k & 1, 67, (k % 4) * 1024, k)
        for x in ins[:4]: a(x)
        if k >= QS: a(f"s_waitcnt vmcnt({QS-1})")
        a(ins[4])
    a("s_waitcnt vmcnt(0)")
    a.setflag("s69", 14)
    a(f"s_setprio {optval('QF', 0)}")
    gen_final(a)
    a.end()
    a("KB_end:")
    a("s_endpgm")
```

```python
from common import *
import kb4
from kb4 import MACC, GT, VC, V1, fin_consts

VT = 24
STL = 44

def consts_b(a):
    a("s_mul_i32 s6, s4, 9\ns_lshr_b32 s6, s6, 1")
    a("s_and_b32 s7, s3, 3\ns_mul_i32 s8, s7, 3\ns_add_u32 s8, s8, 4\ns_mul_i32 s9, s7, 5\ns_add_u32 s9, s9, 16\ns_cmp_ge_u32 s3, 4\ns_cselect_b32 s8, s9, s8\ns_add_u32 s8, s8, s6")
    a("v_add_u32 v29, s8, v1\nv_subrev_u32 v5, 36, v29\nv_min_u32 v29, v29, v5")
    for i in range(5):
        a(f"s_add_u32 s9, s8, {i}")
        if i == 3: a("s_add_u32 s10, s6, s7\ns_cmp_lt_u32 s3, 4\ns_cselect_b32 s9, s10, s9")
        a(f"s_sub_u32 s10, s9, 36\ns_min_u32 s9, s9, s10\ns_lshl_b32 s{STL+i}, s9, 10\nv_add_u32 v{VT+i}, s{STL+i}, v2")
    a("v_lshl_add_u32 v5, v29, 1, 1\nv_mul_u32_u24 v5, 57, v5\nv_lshrrev_b32 v5, 9, v5\nv_subrev_u32 v5, s4, v5\nv_and_b32 v5, 7, v5\nv_lshlrev_b32 v5, 2, v5\nv_lshl_add_u32 v29, v29, 5, v5")
    a(f"s_mul_i32 s66, s4, {WSLICE}\ns_add_u32 s66, s66, {W4T_OFF}\ns_mov_b32 s68, s66")
    a(f"s_lshl_b32 s10, s4, 5\ns_add_u32 s10, s10, s5\ns_mul_i32 s67, s10, 73728\ns_add_u32 s67, s67, {PART_OFF}")
    a(f"s_mul_i32 s69, s5, 1152\ns_add_u32 s69, s69, {FT_OFF}")

def stores(a, nt, log=None):
    a.nop(8)
    for t in range(nt):
        a(f"s_lshl_b32 s6, s{STL+t}, 1\ns_add_u32 s6, s6, s67")
        for mp in range(2):
            for x in kb4.pstore(a, MACC, t, mp, 6, mp * 1024, 2 * t + mp): a(x)
            if log: log("e" if (t, mp) == (nt - 1, 1) else "x")

def flags(a, nt):
    a(f"s_mov_b64 exec, {(1 << nt) - 1}\nbuffer_store_dword v{V1}, v29, s[56:59], s69 offen sc1\ns_mov_b64 exec, -1")

def ex_base(a, d):
    a(f"s_lshr_b32 s{d}, s4, 1\ns_lshl_b32 s{d}, s{d}, 3\ns_lshr_b32 s{d}, 0x060e0005, s{d}\ns_and_b32 s{d}, s{d}, 0xff\ns_lshl_b32 s{d}, s{d}, 10")
    a(f"s_and_b32 s7, s3, 3\ns_mul_i32 s7, s7, 18432\ns_add_u32 s{d}, s{d}, s7")

def final(a, cOwn, mid):
    RM = kb4.RM
    U = lambda u: 32 + 64 * u
    PR, AC, X1, XV, SV, RAW = 0, 16, 24, 32, 40, 48
    T = 240
    TO = 224
    a.srd(48, P_OUT, ACT)
    a("s_sub_u32 s60, s3, 4")
    fin_consts(a)
    a("v_and_b32 v5, 15, v1\nv_lshrrev_b32 v6, 4, v1")
    a("v_mul_u32_u24 v7, 160, v5\nv_lshl_add_u32 v7, v6, 3, v7\nv_add_u32 v7, s53, v7")
    a("v_lshrrev_b32 v8, 1, v6\nv_mul_u32_u24 v8, 18432, v8\nv_bfe_u32 v9, v1, 2, 3\nv_lshl_add_u32 v8, v9, 7, v8")
    a("v_and_b32 v9, 3, v1\nv_lshl_add_u32 v8, v9, 3, v8\nv_add_u32 v8, s53, v8\nv_add_u32 v8, 3072, v8")
    a(f"v_lshlrev_b32 v11, 4, v5\nv_add_u32 v11, {RM}, v11")
    a("v_lshrrev_b32 v5, 5, v1\nv_bfe_u32 v6, v1, 1, 4\nv_and_b32 v9, 1, v1")
    a("v_mul_u32_u24 v18, 18432, v5\nv_lshl_add_u32 v18, v9, 4, v18\nv_mul_u32_u24 v19, 160, v6\nv_add3_u32 v19, v19, v18, s53")
    a("v_mul_u32_u24 v6, 1152, v6\nv_add_u32 v18, v18, v6")
    a("s_cmp_lt_u32 s60, 2\ns_cselect_b32 s63, s62, 0")
    ex_base(a, 64)
    a("v_add_u32 v10, s64, v2")
    def opt(u, fn):
        if u < 2: fn(); return
        l = a.lab("FU")
        a(f"s_cmp_eq_u32 s63, 0\ns_cbranch_scc1 {l}")
        fn()
        a(f"{l}:")
    SO, SP, SF = (65, 66, 67), (68, 70, 71), (96, 97)
    def side(u):
        b = U(u)
        if u < 2: a(f"s_mov_b32 s6, s60\ns_mov_b32 s7, {u}")
        else: a("s_mov_b32 s6, 4\ns_mov_b32 s7, s60")
        a("s_add_u32 s8, s6, s52\ns_mul_i32 s9, s7, 36864")
        a("s_lshr_b32 s10, s8, 1\ns_lshl_b32 s10, s10, 10\ns_and_b32 s11, s8, 1\ns_lshl_b32 s11, s11, 3\ns_add_u32 s10, s10, s11\ns_add_u32 s10, s10, s9")
        a("v_add_u32 v12, s10, v2")
        a(f"s_lshl_b32 s10, s6, 5\ns_add_u32 s{SO[u]}, s10, s9\nv_add_u32 v13, s{SO[u]}, v7")
        a("s_lshl_b32 s10, s7, 9\nv_add_u32 v14, s10, v11")
        a("s_and_b32 s10, s6, 1\ns_mul_i32 s10, s10, 36864\ns_lshr_b32 s11, s6, 1\ns_lshl_b32 s11, s11, 10\ns_add_u32 s10, s10, s11\ns_lshl_b32 s11, s7, 6\ns_add_u32 s10, s10, s11")
        a("v_add_u32 v15, s10, v8")
        for mt in range(2):
            a(f"ds_read_b64 {v(T+2*mt,2)}, v12 offset:{18432*mt}")
            a(f"ds_read_b64 {v(T+4+2*mt,2)}, v13 offset:{18432*mt}")
            a(f"ds_read_b128 {v(b+RAW+4*mt,4)}, v14 offset:{256*mt}")
            a(f"ds_read_b64_tr_b16 {v(T+8+2*mt,2)}, v15 offset:{32*mt}")
        a(f"s_lshl_b32 s9, s8, 11\ns_lshl_b32 s11, s7, 10\ns_add_u32 s9, s9, s11\ns_add_u32 s9, s9, s54\ns_add_u32 s{SP[u]}, s9, {PART_OFF}")
        if u != 1: a(f"s_lshl_b32 s9, s8, 5\ns_add_u32 s{SF[u>>1]}, s9, s69")
        a("s_waitcnt lgkmcnt(0)")
        for e in range(4):
            r = b + RAW + 4 * (e >> 1)
            a(f"v_lshlrev_b32 v{b+XV+2*e}, 16, v{T+4+e}\nv_and_b32 v{b+XV+2*e+1}, 0xffff0000, v{T+4+e}")
            a(f"v_lshlrev_b32 v{b+X1+2*e}, 16, v{T+e}\nv_and_b32 v{b+X1+2*e+1}, 0xffff0000, v{T+e}")
            a(f"v_lshlrev_b32 v{b+SV+2*e}, 16, v{T+8+e}\nv_and_b32 v{b+SV+2*e+1}, 0xffff0000, v{T+8+e}")
            a(f"v_fma_f32 v{T+12}, v{b+XV+2*e}, v{r+2}, v{r+3}\nv_fma_f32 v{T+13}, v{b+XV+2*e+1}, v{r+2}, v{r+3}")
            a(f"v_add_f32 v{b+X1+2*e}, v{b+X1+2*e}, v{r+1}\nv_add_f32 v{b+X1+2*e+1}, v{b+X1+2*e+1}, v{r+1}")
            a(f"v_mul_f32 v{b+SV+2*e}, v{b+SV+2*e}, v{T+12}\nv_mul_f32 v{b+SV+2*e+1}, v{b+SV+2*e+1}, v{T+13}")
        for e in range(8): a(f"v_mov_b32 v{b+AC+e}, 0")
    def poll(sf, lo, words):
        l = a.lab("FP"); d = a.lab("FD")
        a(f"s_add_u32 s12, s{sf}, {lo}\ns_mov_b32 s13, 0x40000\n{l}:")
        a(f"s_load_dwordx4 s[16:19], {s(P_WS,2)}, s12 glc\ns_waitcnt lgkmcnt(0)")
        a("s_and_b32 s18, s18, s19\ns_and_b32 s18, s18, s17")
        if words == 4: a("s_and_b32 s18, s18, s16")
        a(f"s_cbranch_scc1 {d}\ns_sleep {optval('FSL', 1)}\ns_sub_u32 s13, s13, 1\ns_cbranch_scc0 {l}\n{d}:")
    def loads(u, ds):
        for i, d in enumerate(ds):
            a(f"s_sub_u32 s6, s4, {d}\ns_and_b32 s6, s6, 7\ns_mul_i32 s6, s6, {ACT}\ns_add_u32 s6, s6, s{SP[u]}")
            a(f"buffer_load_dwordx4 {v(U(u)+PR+4*i,4)}, v2, s[56:59], s6 offen sc1")
    def accum(u, n):
        b = U(u)
        for i in range(n):
            for e in range(4): a(f"v_lshlrev_b32 v{T+2*e}, 16, v{b+PR+4*i+e}\nv_and_b32 v{T+2*e+1}, 0xffff0000, v{b+PR+4*i+e}")
            for e in range(8): a(f"v_add_f32 v{b+AC+e}, v{b+AC+e}, v{T+e}")
    def finish(us):
        for u in us:
            for r in range(8): a(f"v_fma_f32 v{U(u)+AC+r}, v{U(u)+AC+r}, v{U(u)+RAW+4*(r>>2)}, v{U(u)+X1+r}")
        for op in range(6):
            for u in us:
                b = U(u); t = b + PR
                for r in range(8):
                    a([f"v_mul_f32 v{t+r}, {fh(-LOG2E)}, v{b+AC+r}", f"v_exp_f32 v{t+r}, v{t+r}", f"v_add_f32 v{t+r}, 1.0, v{t+r}", f"v_rcp_f32 v{t+r}, v{t+r}",
                       f"v_mul_f32 v{b+AC+r}, v{b+AC+r}, v{b+SV+r}", f"v_fma_f32 v{b+AC+r}, v{b+AC+r}, v{t+r}, v{b+XV+r}"][op])
        for u in us:
            b = U(u)
            for e in range(4): a(f"v_cvt_pk_bf16_f32 v{b+PR+8+e}, v{b+AC+2*e}, v{b+AC+2*e+1}")
            a(f"v_add_u32 v13, s{SO[u]}, v7\nv_add_u32 v20, s{SO[u]}, v19\ns_add_u32 s{SO[u]}, s{SO[u]}, s55")
            for mt in range(2): a(f"ds_write_b64 v13, {v(b+PR+8+2*mt,2)} offset:{18432*mt}")
            a(f"ds_read_b128 {v(b+PR+12,4)}, v20")
        a("s_waitcnt lgkmcnt(0)")
        for u in us: a(f"buffer_store_dwordx4 {v(U(u)+PR+12,4)}, v18, s[48:51], s{SO[u]} offen")
    side(0)
    mid()
    side(1)
    opt(2, lambda: side(2))
    a.stamp(1)
    poll(SF[0], 16, 4)
    loads(0, (4, 5, 6, 7)); loads(1, (4, 5, 6, 7))
    opt(2, lambda: (poll(SF[1], 16, 4), loads(2, (4, 5, 6, 7))))
    a("s_waitcnt vmcnt(0)")
    for u in range(3): opt(u, lambda: accum(u, 4))
    a.stamp(8)
    a(f"s_setprio {optval('QL', 2)}")
    poll(SF[0], 0, 3)
    a.stamp(6)
    loads(0, (1, 2, 3)); loads(1, (1, 2, 3))
    opt(2, lambda: (poll(SF[1], 0, 4), loads(2, (0, 1, 2, 3))))
    a("s_lshl_b32 s6, s60, 2")
    a(f"v_add_u32 v21, s6, v{VC}")
    a.ldswait(21, 5, 7, 1, cOwn)
    for i in range(4): a(f"ds_read_b128 {v(TO+4*i,4)}, v10 offset:{1024*i}")
    a("s_waitcnt lgkmcnt(0)")
    for u in range(2):
        for e in range(8): a(f"v_add_f32 v{U(u)+AC+e}, v{U(u)+AC+e}, v{TO+8*u+e}")
    a("s_waitcnt vmcnt(0)")
    a.stamp(9)
    for u in range(2): accum(u, 3)
    finish([0, 1])
    opt(2, lambda: (accum(2, 4), finish([2])))
```

```python
from common import *
from kb4 import VC, V1
FA, FB, ACC = 96, 160, 224
KF = 4 * 4160

def setup(a):
    a("s_lshl_b32 s8, s6, 1\ns_and_b32 s8, s8, 0xfffffffc")
    a(f"s_load_dword s15, {s(P_SSMD,2)}, s8")
    a("v_lshlrev_b32 v5, 3, v1\nv_add_u32 v5, s7, v5\nv_mov_b32 v18, 0\nv_mov_b32 v19, 0")
    a(f"ds_write_b64 v5, v[18:19] offset:{KF}")
    a("v_and_b32 v6, 15, v1\nv_lshrrev_b32 v7, 4, v1")
    a("v_sub_u32 v8, 3, v6\nv_and_b32 v8, 3, v8\nv_mul_u32_u24 v8, 4160, v8")
    a("v_and_b32 v9, 12, v6\nv_lshlrev_b32 v9, 1, v9\nv_sub_u32 v8, v8, v9")
    a("v_lshlrev_b32 v9, 4, v7\nv_sub_u32 v8, v8, v9")
    a(f"v_add_u32 v8, {4104-3584}, v8\nv_add_u32 v8, s7, v8")
    a("v_lshlrev_b32 v10, 5, v6\nv_sub_u32 v10, v10, v9")
    a(f"v_add_u32 v10, {KF+512+16}, v10\nv_add_u32 v10, s7, v10")
    a("v_add_u32 v11, s7, v2")
    a("v_min_u32 v12, 16, v2\nv_add_u32 v12, s7, v12\nv_add_u32 v12, 4096, v12")
    a("v_lshlrev_b32 v20, 5, v6\nv_lshl_add_u32 v20, v7, 3, v20")
    a(f"v_sub_u32 v21, {4088-3584}, v20\nv_add_u32 v21, s7, v21")
    for r in range(32): a(f"v_mov_b32 v{ACC+r}, 0")

def build(a, chunks):
    n = len(chunks)
    for c, (ad, o) in enumerate(chunks):
        b = FA + 12 * c
        a(f"ds_read_b128 {v(b,4)}, v{ad} offset:{o}")
        a(f"ds_read_b128 {v(b+4,4)}, v{ad} offset:{o+2*4160}")
        a(f"ds_read_b64 {v(b+8,2)}, v{ad} offset:{o+16}")
    for c, (ad, o) in enumerate(chunks):
        b = FA + 12 * c; d = FB + 8 * c
        a(f"s_waitcnt lgkmcnt({3*(n-1)-c})")
        for e in range(4): a(f"v_alignbit_b32 v{d+e}, v{b+4+e}, v{b+e}, 16")
        for e in range(4): a(f"v_alignbit_b32 v{d+4+e}, v{b+2+e if e < 2 else b+6+e}, v{b+4+e}, 16")
        a(f"ds_write_b128 v{ad}, {v(d,4)} offset:{o+4160}")
        a(f"ds_write_b128 v{ad}, {v(d+4,4)} offset:{o+3*4160}")

def reads(st):
    o = []
    for m in range(8):
        o.append(f"ds_read_b128 {v(FB+32*st+4*m,4)}, v10 offset:{512*m}")
        o.append(f"ds_read_b64 {v(FA+32*st+4*m,2)}, v8 offset:{512*(7-m)}")
        o.append(f"ds_read_b64 {v(FA+32*st+4*m+2,2)}, v8 offset:{512*(7-m)+8}")
    return o
def _rr():
    left = {i: list(range(i + 1)) for i in range(8)}
    out = []
    while any(left.values()):
        rec = [i for i, _ in out[-3:]]
        cand = sorted([i for i in left if left[i]], key=lambda i: (i in rec, -len(left[i])))
        i = cand[0]
        out.append((i, left[i].pop(0)))
    return out
ORDER = _rr() if "rr" in OPT else sorted([(i, m) for i in range(8) for m in range(i + 1)], key=lambda im: (max(im[1], im[0] - im[1]), im[1], im[0]))

def body(a, extra=None, last=False, step=1):
    for st in range(2):
        a("v_subrev_u32 v8, 64, v8\nv_subrev_u32 v10, 64, v10")
        a("s_waitcnt lgkmcnt(0)")
        rd = reads(1 - st) if not (last and st == 1) else []
        for n, (i, m) in enumerate(ORDER):
            a.mfma(ACC + 4 * i, FA + 32 * st + 4 * m, FB + 32 * st + 4 * (i - m))
            if n < len(rd): a(rd[n])
            if extra and n >= 24 and ((n < 32) if step == 1 else (n % 3 == 0)): extra()

def dval(a):
    a("s_lshl_b32 s13, s15, 16\ns_and_b32 s14, s15, 0xffff0000\ns_bitcmp1_b32 s6, 0\ns_cselect_b32 s13, s14, s13")

def out_tile(a, acc, kv, pk, off):
    T = 22
    a(f"v_and_b32 v{T}, 0xffff0000, v{kv+1}\nv_lshlrev_b32 v{T+1}, 16, v{kv+1}")
    a(f"v_and_b32 v{T+2}, 0xffff0000, v{kv}\nv_lshlrev_b32 v{T+3}, 16, v{kv}")
    for r in range(4): a(f"v_fmac_f32 v{acc+r}, s13, v{T+r}")
    a(f"v_cvt_pk_bf16_f32 v{pk}, v{acc}, v{acc+1}\nv_cvt_pk_bf16_f32 v{pk+1}, v{acc+2}, v{acc+3}")
    a(f"buffer_store_dwordx2 {v(pk,2)}, v20, s[56:59], s10 offen offset:{off} sc1")

def fy_addr(a):
    a(f"s_lshl_b32 s6, s6, 5\ns_add_u32 s6, s6, {FYW_OFF}")

def kv_flag_addr(a, d):
    a(f"s_lshr_b32 s{d}, s6, 6\ns_mul_i32 s9, s{d}, 86\ns_lshr_b32 s9, s9, 8\ns_mul_i32 s9, s9, {FB_STRIDE-384}\ns_lshl_b32 s{d}, s{d}, 7\ns_add_u32 s{d}, s{d}, s9\ns_add_u32 s{d}, s{d}, {FKV_OFF}")

def single(a, wait_kv, gate, extra):
    a.srd(48, P_SSMK, ACT)
    a(f"s_lshl_b32 s10, s6, 12\ns_add_u32 m0, s7, {KF+512}\ns_mul_i32 s54, s6, {KV_PITCH}\ns_add_u32 s54, s54, {KV_OFF}\ns_add_u32 s11, s54, 4")
    for i in range(4): a(f"buffer_load_dwordx4 v2, s[48:51], s10 offen offset:{i*1024} nt lds")
    setup(a)
    wait_kv()
    a("s_mov_b32 m0, s7\ns_nop 0")
    for i in range(4): a(f"buffer_load_dwordx4 v2, s[56:59], s54 offen offset:{i*1024} sc1 lds")
    a(f"s_add_u32 m0, s7, {2*4160}\ns_nop 0")
    for i in range(4): a(f"buffer_load_dwordx4 v2, s[56:59], s11 offen offset:{i*1024} sc1 lds")
    a("s_mov_b64 exec, 7\ns_add_u32 m0, s7, 4096\ns_nop 0")
    a("buffer_load_dwordx4 v3, s[56:59], s54 offen sc1 lds")
    a(f"s_add_u32 m0, s7, {2*4160+4096}\ns_nop 0")
    a("buffer_load_dwordx4 v3, s[56:59], s11 offen sc1 lds")
    a("s_mov_b64 exec, -1")
    a("s_waitcnt vmcnt(0) lgkmcnt(0)")
    a.stamp(5)
    build(a, [(11, c * 1024) for c in range(4)] + [(12, 0)])
    for t in reads(0): a(t)
    if "cvt" in OPT: a.stamp(1)
    body(a)
    gate(True)
    body(a)
    a.stamp(6)
    gate(False)
    a.stamp(7)
    body(a, extra, False, 3)
    if "cvt" in OPT: a.stamp(2)
    body(a, extra, True, 3)
    if "cvt" in OPT: a.stamp(3)
    for i in range(8): a(f"ds_read_b64 {v(FA+2*i,2)}, v21 offset:{512*(7-i)}")
    dval(a)
    a(f"s_add_u32 s10, s10, {Y_OFF}")
    a("s_waitcnt lgkmcnt(0)")
    for i in range(8): out_tile(a, ACC + 4 * i, FA + 2 * i, FB + 2 * i, 512 * i)
    fy_addr(a)

def team(a, base, red, c1, c2, c3, gate, extra):
    a.srd(48, P_SSMK, ACT)
    a(f"s_mov_b32 s7, {base}\ns_sub_u32 s55, s3, 4\ns_lshl_b32 s12, s55, 10")
    a(f"s_lshl_b32 s10, s6, 12\ns_mul_i32 s54, s6, {KV_PITCH}\ns_add_u32 s54, s54, {KV_OFF}\ns_add_u32 s11, s54, 4")
    a(f"v_add_u32 v5, s12, v2\ns_add_u32 m0, s12, {base}\ns_nop 0")
    a("buffer_load_dwordx4 v5, s[56:59], s54 offen sc1 lds")
    a(f"s_add_u32 m0, s12, {base+2*4160}\ns_nop 0")
    a("buffer_load_dwordx4 v5, s[56:59], s11 offen sc1 lds")
    a(f"s_add_u32 m0, s12, {base+KF+512}\ns_nop 0")
    a("buffer_load_dwordx4 v5, s[48:51], s10 offen nt lds")
    a(f"s_mov_b64 exec, 7\ns_mov_b32 m0, {base+4096}\ns_nop 0")
    a("buffer_load_dwordx4 v3, s[56:59], s54 offen sc1 lds")
    a(f"s_mov_b32 m0, {base+2*4160+4096}\ns_nop 0")
    a("buffer_load_dwordx4 v3, s[56:59], s11 offen sc1 lds")
    a("s_mov_b64 exec, -1")
    setup(a)
    a("v_add_u32 v11, s12, v11\ns_lshl_b32 s8, s55, 7\nv_subrev_u32 v8, s8, v8\nv_subrev_u32 v10, s8, v10\nv_subrev_u32 v21, s12, v21\nv_add_u32 v20, s12, v20")
    a(f"s_lshl_b32 s8, s55, 13\ns_add_u32 s8, s8, {red}\nv_add_u32 v26, s8, v2\ns_lshl_b32 s8, s55, 11\ns_add_u32 s8, s8, {red}\nv_add_u32 v27, s8, v2")
    a("s_waitcnt vmcnt(0)")
    a.subbar(VC, 5, 8, 4, off=c1)
    build(a, [(11, 0), (12, 0)])
    a.subbar(VC, 5, 8, 4, off=c2)
    gate()
    for t in reads(0): a(t)
    body(a, extra, True)
    for i in range(2): a(f"ds_read_b64 {v(FA+2*i,2)}, v21 offset:{512*(7-i)}")
    dval(a)
    a(f"s_add_u32 s10, s10, {Y_OFF}")
    a.nop(4)
    for i in range(8): a(f"ds_write_b128 v26, {v(ACC+4*i,4)} offset:{1024*i}")
    a.subbar(VC, 5, 8, 4, off=c3)
    for i in range(2):
        for w in range(4): a(f"ds_read_b128 {v(FB+16*i+4*w,4)}, v27 offset:{8192*w+1024*i}")
    a("s_waitcnt lgkmcnt(0)")
    for i in range(2):
        b = FB + 16 * i
        for e in range(4): a(f"v_add_f32 v{b+e}, v{b+e}, v{b+4+e}\nv_add_f32 v{b+8+e}, v{b+8+e}, v{b+12+e}")
        for e in range(4): a(f"v_add_f32 v{b+e}, v{b+e}, v{b+8+e}")
        out_tile(a, b, FA + 2 * i, FB + 32 + 2 * i, 512 * i)
    fy_addr(a)
```

```python
from common import *
import kb4, km
from g1 import gelu_pk
import conv, tail
from kb4 import Stream, mphase, gphase, h_addr, pstore, stage_x, stage_y, gen_final, gen_conv_load, paced, NS, RING, BF, MACC, KC, GT, ML_H, VC, V1

G2_WM, G2_W = 0, 2560
SLOT = 24576
G1_BASE = 76800
G1_AUX = 150528
CV_SZ = 21248
FSCR = 4 * CV_SZ
CNT = 158592
RM = CNT + 128
K6_LDS = RM + 1024
kb4.RM = RM
cG2, cX1, cX2, cFX, cSide, cH1, cA, cH2, cW4, cG1, cFH, cU, cW3, cHs, cW3a, cKV, cXs, cT1, cT2, cT3, cT0, cOwn = [4 * i for i in range(22)]
km.cG1 = cG1

W4F = optval('W4F', 432)

def last_of(a, off, n, skip):
    a(f"s_mov_b64 exec, 1\nds_add_rtn_u32 v5, v{VC}, v{V1} offset:{off}\ns_mov_b64 exec, -1")
    a("s_waitcnt lgkmcnt(0)")
    a("v_readfirstlane_b32 s7, v5")
    a(f"s_cmp_lg_u32 s7, {n-1}\ns_cbranch_scc1 {skip}")

def gen_g(a):
    BUF, ACC, STA, CSA, SQ, SM, CS, ONE, XA, WA = 32, 96, 112, 124, 140, 144, 148, 152, 184, 188
    log = []
    DM = (18, 20, 22, 28)
    a("v_lshrrev_b32 v2, 2, v1\nv_and_b32 v3, 3, v1\nv_mul_u32_u24 v4, 1152, v2")
    a("v_lshrrev_b32 v6, 5, v1\nv_lshlrev_b32 v6, 1, v6\nv_xor_b32 v6, v6, v3\nv_lshl_add_u32 v6, v6, 4, v4")
    a("s_mul_i32 s10, s60, 147456\ns_mul_i32 s9, s3, 18432\ns_add_u32 s10, s10, s9")
    a("s_lshr_b32 s8, s3, 1\ns_mul_i32 s11, s8, 18432\ns_lshl_b32 s9, s61, 7\ns_add_u32 s11, s11, s9\ns_and_b32 s9, s3, 1\ns_lshl_b32 s9, s9, 6\ns_add_u32 s11, s11, s9")
    a("s_mul_i32 s14, s62, 7\ns_add_u32 s14, s14, 1\ns_mov_b32 s12, s61")
    a("s_lshl_b32 s13, s3, 10")
    a("s_waitcnt lgkmcnt(0)")
    a.srd(48, P_Q, ACT)
    a.srd(44, P_W1, D * D * 2)
    SB = [G2_W, G2_W + SLOT, G2_W + 2 * SLOT, G1_BASE, G1_BASE + SLOT, G1_BASE + 2 * SLOT, G2_W, G2_W + SLOT, G1_BASE]
    def issue(gi):
        sl = SB[gi]
        a("s_add_u32 s12, s12, s14\ns_sub_u32 s9, s12, 9\ns_cmp_ge_u32 s12, 9\ns_cselect_b32 s12, s9, s12")
        a(f"s_lshl_b32 s15, s12, 7\ns_add_u32 s15, s15, s10\ns_add_u32 m0, s13, {sl}\ns_mul_i32 s9, s12, 73728")
        a("buffer_load_dwordx4 v6, s[48:51], s15 offen lds")
        a("s_add_u32 m0, m0, 8128\ns_add_u32 s9, s9, s11")
        a("buffer_load_dwordx4 v6, s[48:51], s15 offen offset:64 lds")
        a("s_add_u32 m0, m0, 8256\ns_nop 0")
        a("buffer_load_dwordx4 v6, s[44:47], s9 offen lds")
        log.extend(["x", "x", f"g{gi}"])
    younger = lambda key: len(log) - 1 - log.index(key)
    issue(0); issue(1)
    if "w1t" in OPT:
        a("s_mul_i32 s8, s62, 288\ns_lshl_b32 s9, s61, 6\ns_add_u32 s8, s8, s9\ns_add_u32 s8, s8, 32\ns_mul_i32 s9, s3, 36\ns_add_u32 s8, s8, s9")
        a("v_min_u32 v7, 35, v1\nv_add_u32 v7, s8, v7\nv_subrev_u32 v8, 576, v7\nv_min_u32 v7, v7, v8\nv_mul_u32_u24 v7, 1152, v7\ns_lshl_b32 s9, s61, 7")
        a("buffer_load_dword v31, v7, s[44:47], s9 offen")
        log.append("t")
    a.srd(56, P_WS, WS_BYTES)
    a("s_cmp_lg_u32 s3, 0\ns_cbranch_scc1 G_pf")
    a("s_mov_b64 exec, 0xffff")
    a(f"v_lshl_add_u32 v7, v1, 2, v{VC}\nv_mov_b32 v8, 0\nds_write2_b32 v7, v8, v8 offset0:0 offset1:16")
    a("s_mov_b64 exec, -1")
    a("G_pf:")
    a.srd(52, P_W2, D * D * 2)
    a("v_bfe_u32 v7, v1, 4, 1\nv_lshlrev_b32 v8, 1, v7\nv_xor_b32 v8, v8, v3\nv_lshl_add_u32 v30, v8, 4, v4")
    a(f"v_lshlrev_b32 v12, 6, v2\nv_lshl_add_u32 v12, v7, 5, v12\nv_lshl_add_u32 v12, v3, 3, v12\nv_add_u32 v22, {G2_W}, v12\nv_xor_b32 v23, 32, v22")
    a(f"s_mov_b32 s66, s11\ns_lshl_b32 s67, s3, 10\ns_add_u32 s67, s67, {G2_W}")
    a("v_and_b32 v2, 15, v1\nv_lshrrev_b32 v3, 4, v1")
    a("v_bfe_u32 v4, v1, 3, 1\nv_lshlrev_b32 v4, 1, v4")
    a("v_xor_b32 v5, v4, v3\nv_lshl_add_u32 v5, v2, 2, v5\nv_lshlrev_b32 v5, 4, v5")
    a("s_and_b32 s63, s3, 3\ns_lshr_b32 s64, s3, 2\ns_and_b32 s69, s3, 1\ns_lshr_b32 s70, s63, 1\ns_lshl_b32 s71, s63, 1\ns_add_u32 s71, s71, s64")
    a("s_lshl_b32 s9, s71, 10\ns_lshl_b32 s8, s69, 13\ns_add_u32 s9, s9, s8\nv_add_u32 v5, s9, v5")
    for i, x in enumerate((0, 1024, 8192, 9216)): a(f"v_xor_b32 v{XA+i}, {x}, v5\nv_add_u32 v{XA+i}, {G2_W}, v{XA+i}")
    a("v_lshrrev_b32 v5, 1, v3\nv_lshlrev_b32 v11, 11, v5\nv_and_b32 v8, 1, v3\nv_lshl_add_u32 v11, v8, 9, v11")
    a("v_lshrrev_b32 v7, 2, v2\nv_lshl_add_u32 v11, v7, 6, v11\nv_and_b32 v7, 3, v1\nv_lshl_add_u32 v11, v7, 3, v11\nv_lshl_add_u32 v11, v8, 5, v11")
    a("s_lshl_b32 s9, s64, 10\ns_lshl_b32 s8, s69, 12\ns_add_u32 s9, s9, s8\nv_add_u32 v11, s9, v11\ns_lshl_b32 s8, s70, 5\nv_xor_b32 v11, s8, v11")
    for i, x in enumerate((0, 32, 4096, 4128)): a(f"v_xor_b32 v{WA+i}, {x}, v11\nv_add_u32 v{WA+i}, {G2_W+16384}, v{WA+i}")
    a(f"v_xor_b32 v5, v5, v4\nv_lshl_add_u32 v5, v2, 2, v5\nv_lshlrev_b32 v20, 4, v5\nv_lshl_add_u32 v20, v8, 3, v20\ns_add_u32 s9, s13, {G1_BASE}\nv_add_u32 v20, s9, v20\nv_xor_b32 v21, 32, v20")
    a("v_lshlrev_b32 v13, 4, v2\nv_lshlrev_b32 v18, 4, v3\nv_lshlrev_b32 v25, 4, v1")
    a(f"s_lshl_b32 s9, s71, 8\ns_add_u32 s9, s9, {G1_AUX}\nv_add_u32 v26, s9, v13\nv_xor_b32 v27, 256, v26")
    a(f"s_lshl_b32 s9, s64, 8\ns_lshl_b32 s8, s70, 7\ns_add_u32 s9, s9, s8\ns_add_u32 s9, s9, {G1_AUX+2048}\nv_add_u32 v28, s9, v18\nv_xor_b32 v29, 128, v28\ns_lshl_b32 s8, s69, 6\nv_add_u32 v24, s8, v28")
    a(f"s_lshl_b32 s65, s60, 3\ns_add_u32 s65, s65, s71\ns_lshl_b32 s68, s65, 8\ns_add_u32 s68, s68, {ST1_OFF}\ns_xor_b32 s98, s65, 1")
    a(f"s_lshl_b32 s9, s61, 11\ns_lshl_b32 s8, s64, 10\ns_add_u32 s9, s9, s8\ns_add_u32 s9, s9, {H_OFF}\ns_mul_i32 s65, s65, 18432\ns_add_u32 s65, s65, s9\ns_mul_i32 s98, s98, 18432\ns_add_u32 s98, s98, s9")
    a(f"v_mov_b32 v160, {fh(GC0)}\nv_mov_b32 v161, {fh(GC0)}\nv_mov_b32 v162, {fh(GC1)}\nv_mov_b32 v163, {fh(GC1)}\nv_mov_b32 v164, 1.0\nv_mov_b32 v165, 1.0")
    for r in range(4): a(f"v_mov_b32 v{ONE+r}, 0x3f803f80")
    a("v_lshlrev_b32 v7, 2, v3\nv_sub_u32 v19, v2, v7")
    def w2issue(part):
        for i in range(3 * part, 3 * part + 3):
            a(f"s_add_u32 m0, s67, {8192*i}\ns_add_u32 s9, s66, {73728*i}")
            a("buffer_load_dwordx4 v30, s[52:55], s9 offen lds")
            log.append("w")
    def reads(gi):
        o0 = SB[gi] - (G2_W if SB[gi] < G1_BASE else G1_BASE)
        b = BUF + 32 * (gi & 1)
        o = []
        for k2 in range(2):
            for mi in range(2): o.append(f"ds_read_b128 {v(b+16*k2+4*mi,4)}, v{XA+2*k2+mi} offset:{o0}")
            for t in range(2):
                for jh in range(2): o.append(f"ds_read_b64_tr_b16 {v(b+16*k2+8+4*t+2*jh,2)}, v{WA+2*k2+t} offset:{o0+256*jh}")
        return o
    for r in range(4): a(f"v_cmp_eq_u32 {s(DM[r],2)}, {r}, v19")
    fin = [f"v_cndmask_b32 v{STA}, 0, v{SQ}, {s(DM[0],2)}"] + [f"v_cndmask_b32 v{STA}, v{STA}, v{SQ+r}, {s(DM[r],2)}" for r in range(1, 4)]
    fin += [f"v_mul_f32 v{STA+2}, {fh(-1.0/D)}, v{SM}"]
    fin += [f"v_mov_b32 v7, v{STA}", "s_nop 1", f"v_permlane32_swap_b32 v{STA}, v7", f"v_add_f32 v{STA}, v{STA}, v7"]
    fin += [f"v_mov_b32 v7, v{STA}", "s_nop 1", f"v_permlane16_swap_b32 v{STA}, v7", f"v_add_f32 v{STA}, v{STA}, v7"]
    fin += f"v_mul_f32 v7, {fh(1.0/D)}, v{STA}\nv_fma_f32 v7, -v{STA+2}, v{STA+2}, v7\nv_max_f32 v7, 0, v7\nv_add_f32 v8, {fh(EPS)}, v7\nv_rsq_f32 v{STA}, v8\ns_nop 0".split("\n")
    fin += f"v_mul_f32 v8, v{STA}, v{STA}\nv_fmaak_f32 v8, v8, v7, {fh(EPS)}\nv_rsq_f32 v8, v8\nv_mul_f32 v{STA+1}, v{STA+2}, v{STA}\nv_mul_f32 v{STA+3}, v8, v{STA}".split("\n")
    LP, LQ = optval("LP", 2), optval("LQ", 3)
    log0 = list(log); fin0 = list(fin)
    a("s_cmp_ge_u32 s3, 4\ns_cbranch_scc1 G_lq")
    for role in "PQ":
        log[:] = log0; fin[:] = fin0
        LA = LP if role == "P" else LQ
        if role == "Q": a("G_lq:")
        for g in range(2, LA): issue(g)
        for gi in range(10):
            rd = []
            if gi < 9:
                if gi in (3, 6, 8):
                    for r in range(8): a(f"v_add_u32 v{XA+r}, {(G1_BASE-G2_W) if gi != 6 else -(G1_BASE-G2_W)}, v{XA+r}")
                a(f"s_waitcnt vmcnt({younger(f'g{gi}')}) lgkmcnt(0)\ns_barrier")
                if gi == 0 or "g1t" in OPT: a.stamp(1 + gi)
                rd = reads(gi)
            else: a("s_waitcnt lgkmcnt(0)")
            def mem():
                if gi + LA < 9: issue(gi + LA)
            for _ in range(optval("RF", 0)):
                if rd: a(rd.pop(0))
            if role == "P" and gi < 7: mem()
            if gi > 0:
                b = BUF + 32 * ((gi - 1) & 1)
                z = "0" if gi == 1 else None
                mm = [(SQ, b, b, z), (SM, ONE, b, z), (SQ, b + 16, b + 16, None), (SM, ONE, b + 16, None), (CS, b + 8, ONE, z)]
                mm += [(ACC + 8 * mi + 4 * t, b + 16 * k2 + 8 + 4 * t, b + 16 * k2 + 4 * mi, z if k2 == 0 else None) for k2 in range(2) for t in range(2) for mi in range(2)]
                for n, (d, x, y, c) in enumerate(mm):
                    if rd: a(rd.pop(0))
                    a.mfma(d, x, y, c)
                    if gi == 9 and n == 5: a.nop(5)
                    if gi == 9 and n >= 5:
                        for _ in range(5):
                            if fin: a(fin.pop(0))
            for r in rd: a(r)
            if role == "Q": mem()
            if gi in (6, 7, 8): w2issue((2, 0, 1)[gi - 6])
            if gi == 8: a(f"s_load_dword s69, {s(P_DBG,2)}, 0")
        if role == "P": a("s_branch G_lj")
    a("G_lj:")
    for x in fin: a(x)
    a(f"ds_write_b128 v24, {v(CS,4)}")
    a(f"ds_write_b128 v26, {v(STA,4)}")
    a("s_waitcnt lgkmcnt(0)\ns_barrier")
    a.stamp(2 if "g1t" not in OPT else 10)
    if "g1t" in OPT: a.end()
    for t in range(2):
        for q in range(2): a(f"ds_read_b128 {v(CSA+8*t+4*q,4)}, v{28+t} offset:{64*q}")
    a(f"ds_read_b128 {v(STA+4,4)}, v27")
    a(f"s_mov_b32 s63, {W2M_OFF}\nv_min_u32 v31, 240, v25\nv_mov_b32 v192, 0\ns_cmp_eq_u32 s69, 0\ns_cselect_b32 s9, 0, s3\ns_cmp_lg_u32 s9, 7\ns_cbranch_scc1 G_w0")
    a("buffer_load_dwordx4 v[192:195], v25, s[56:59], s63 offen sc1\nbuffer_load_dwordx4 v[196:199], v25, s[56:59], s63 offen offset:1024 sc1\nbuffer_load_dwordx4 v[200:203], v31, s[56:59], s63 offen offset:2048 sc1")
    a("G_w0:")
    a("s_cmp_lg_u32 s61, 0\ns_cbranch_scc1 G_ns")
    a(f"s_mov_b64 exec, 0xffff\nbuffer_store_dwordx4 {v(STA,4)}, v13, s[56:59], s68 offen sc1\ns_mov_b64 exec, -1")
    a("G_ns:")
    a(f"v_mov_b32 v{STA+8}, v{STA+2}\nv_mov_b32 v{STA+9}, v{STA+2}\nv_mov_b32 v{STA+10}, v{STA+3}\nv_mov_b32 v{STA+11}, v{STA+3}")
    a("s_waitcnt lgkmcnt(0)")
    for t in range(2):
        for e in range(0, 4, 2): a(f"v_pk_add_f32 {v(CSA+8*t+e,2)}, {v(CSA+8*t+e,2)}, {v(CSA+8*t+4+e,2)}")
    a(f"v_mov_b32 v{STA+4}, v{STA+6}\nv_mov_b32 v{STA+5}, v{STA+6}\nv_mov_b32 v{STA+6}, v{STA+7}")
    for mi in range(2):
        c = STA + 8 - 4 * mi
        regs = [ACC + 8 * mi + e for e in range(8)]
        for e in range(0, 8, 2): a(f"v_pk_fma_f32 {v(regs[e],2)}, {v(c,2)}, {v(CSA+8*(e>>2)+(e&3),2)}, {v(regs[e],2)}")
        for e in range(0, 8, 2): a(f"v_pk_mul_f32 {v(regs[e],2)}, {v(regs[e],2)}, {v(c+2,2)}")
        gelu_pk(a, regs, list(range(168, 176)), "v[160:161]", "v[162:163]", "v[164:165]")
        l1 = a.lab("GS"); l2 = a.lab("GT")
        a(f"s_cmp_lg_u32 s70, 0\ns_cbranch_scc1 {l1}")
        for e in range(4): a(f"v_cvt_pk_bf16_f32 v{176+4*mi+e}, v{regs[2*e]}, v{regs[2*e+1]}")
        a(f"s_branch {l2}\n{l1}:")
        for e in range(4): a(f"v_cvt_pk_bf16_f32 v{176+4*mi+(e^2)}, v{regs[2*e]}, v{regs[2*e+1]}")
        a(f"{l2}:")
        a(f"buffer_store_dwordx4 {v(176+4*mi,4)}, v25, s[56:59], s{65 if mi == 0 else 98} offen sc1")
    a.stamp(3)
    HB, AR, AC2 = 32, 104, 224
    a("v_lshlrev_b32 v2, 4, v1\nv_add_u32 v3, 4096, v2\nv_lshlrev_b32 v4, 2, v1")
    a("s_lshl_b32 s8, s60, 3\ns_add_u32 s8, s8, s3")
    a("v_and_b32 v11, 1, v1\nv_lshlrev_b32 v11, 6, v11\nv_add_u32 v11, v11, v18")
    a("v_add_u32 v28, 36864, v22\nv_add_u32 v29, 36864, v23")
    a("v_and_b32 v8, 15, v1\ns_lshl_b32 s10, s8, 4\nv_add_u32 v8, s10, v8\nv_lshlrev_b32 v9, 4, v18\ns_movk_i32 s13, 18432\nv_mov_b32 v10, 0x80000000")
    for gam, sh in enumerate((-1, 1, -2, 2)):
        a(f"v_add_u32 v5, {sh}, v8\nv_cmp_gt_u32 vcc, {S}, v5\nv_lshrrev_b32 v6, 4, v5\nv_mad_u32_u24 v6, v6, s13, v9\nv_and_b32 v5, 15, v5\nv_lshl_add_u32 v6, v5, 4, v6")
        a(f"v_cndmask_b32 v{24+gam}, v10, v6, vcc")
    a(f"s_mul_i32 s11, s8, 18432\ns_lshl_b32 s9, s61, 11\ns_add_u32 s11, s11, s9\ns_add_u32 s11, s11, {X1_OFF}")
    a(f"s_mul_i32 s6, s60, {FB_STRIDE}\ns_add_u32 s6, s6, {FH_OFF}\ns_lshl_b32 s10, s3, 8\ns_add_u32 s10, s10, {G1_AUX}\nv_add_u32 v13, s10, v13\ns_mov_b32 s14, {H_OFF}")
    a("ds_read_b64 v[18:19], v13")
    a("s_cmp_lg_u32 s69, 0\ns_cbranch_scc1 G_zk")
    a.zcheck(14, 9, False)
    a("G_zk:")
    G2E = "g2l" not in OPT
    if not G2E: a("s_waitcnt vmcnt(0)")
    def hsig():
        last_of(a, cHs, 8, "G_hs")
        a.sadd(6, 7)
        a("G_hs:")
        a.stamp(4)
    if not G2E: hsig()
    else: a("s_waitcnt vmcnt(2)")
    a("s_cmp_lg_u32 s3, 7\ns_cbranch_scc1 G_wm")
    a("s_mov_b32 s13, 0x20000")
    a("W2_m:")
    a("v_min3_u32 v6, v192, v196, v200\nv_cmp_eq_u32 vcc, 0, v6\ns_cbranch_vccz W2_n")
    a("buffer_load_dwordx4 v[192:195], v2, s[56:59], s63 offen sc1\nbuffer_load_dwordx4 v[196:199], v2, s[56:59], s63 offen offset:1024 sc1\nbuffer_load_dwordx4 v[200:203], v31, s[56:59], s63 offen offset:2048 sc1")
    a("s_waitcnt vmcnt(0)\ns_sleep 2\ns_sub_u32 s13, s13, 1\ns_cbranch_scc0 W2_m")
    a("W2_n:")
    a(f"ds_write_b128 v2, v[192:195] offset:{G2_WM}\nds_write_b128 v2, v[196:199] offset:{G2_WM+1024}\nds_write_b128 v31, v[200:203] offset:{G2_WM+2048}")
    a("s_waitcnt lgkmcnt(0)")
    a("G_wm:")
    if G2E:
        a("s_waitcnt vmcnt(0)")
        hsig()
    a("s_barrier")
    NA = 6
    def ard(ks):
        b = AR + 20 * (ks % NA)
        o = [f"ds_read_b128 {v(b,4)}, v11 offset:{G2_WM+128*ks}"]
        for t in range(4):
            for jh in range(2):
                off = ((ks * 2 + jh) * 2 + (t >> 1)) * 1024
                ad = 22 + (t & 1)
                if off >= 36864: off -= 36864; ad += 6
                o.append(f"ds_read_b64_tr_b16 {v(b+4+4*t+2*jh,2)}, v{ad} offset:{off}")
        return o
    for ks in range(NA):
        for r in ard(ks): a(r)
    for t in range(4): a(f"ds_read_b64 {v(244+2*t,2)}, v{20+(t&1)} offset:{8192*(t>>1)}")
    a("s_cmp_lg_u32 s3, 1\ns_cbranch_scc1 G2_hw")
    a.cpoll(6, 9, 48, 13, 1)
    a("G2_hw:")
    a(f"s_sub_u32 s7, s6, {FB_STRIDE}\ns_add_u32 s12, s6, {FB_STRIDE}\ns_cmp_eq_u32 s3, 0\ns_cselect_b32 s12, s7, s12")
    a("s_waitcnt lgkmcnt(0)\ns_barrier")
    a("s_add_u32 s7, s8, 1\ns_and_b32 s9, s7, 7\ns_cmp_ge_u32 s9, 2\ns_cbranch_scc1 G2_hg\ns_and_b32 s7, s7, 127\ns_cmp_lt_u32 s7, 2\ns_cbranch_scc1 G2_hg")
    a.cpoll(12, 9, 48, 13, 1)
    a("G2_hg:")
    a.stamp(5)
    hl = []
    for ks in range(18):
        pre = "s_add_u32 s14, s14, 4096\n" if ks and ks % 4 == 0 else ""
        g0, g1_ = (2 * ks) // 9, (2 * ks + 1) // 9
        if g0 == g1_: hl.append((pre + f"buffer_load_dwordx4 {v(HB+4*ks,4)}, v{24+g0}, s[56:59], s14 offen offset:{(ks%4)*1024} sc1", 1))
        else: hl.append((pre + f"buffer_load_dwordx2 {v(HB+4*ks,2)}, v{24+g0}, s[56:59], s14 offen offset:{(ks%4)*1024} sc1\nbuffer_load_dwordx2 {v(HB+4*ks+2,2)}, v{24+g1_}, s[56:59], s14 offen offset:{(ks%4)*1024+8} sc1", 2))
    if 'hpl' in OPT: hl = [(x.replace(' sc1', ''), n) for x, n in hl]
    HD = optval("HD", 5)
    log2 = []
    def hissue(ks):
        a(hl[ks][0]); log2.extend(["x"] * (hl[ks][1] - 1) + [ks])
    for ks in range(HD): hissue(ks)
    for ks in range(18):
        lg = "" if ks < NA else f" lgkmcnt({min(15, 9*min(NA-1, 17-ks))})"
        a(f"s_waitcnt vmcnt({len(log2)-1-log2.index(ks)}){lg}")
        if ks + HD < 18: hissue(ks + HD)
        rd = ard(ks + NA) if ks + NA < 18 else []
        b = AR + 20 * (ks % NA)
        for t in range(5):
            a.mfma(AC2 + 4 * t, b + 4 * t, HB + 4 * ks, "0" if ks == 0 else None)
            for _ in range(1 if t == 0 else 2):
                if rd: a(rd.pop(0))
    a.stamp(6)
    for e in range(8): a(f"v_lshlrev_b32 v{HB+2*e}, 16, v{244+e}\nv_and_b32 v{HB+2*e+1}, 0xffff0000, v{244+e}")
    a(f"v_add_f32 v9, v{AC2}, v{AC2+1}")
    a("v_sub_f32 v28, v19, v9\nv_sub_f32 v29, v19, v9\nv_mov_b32 v19, v18\nv_mov_b32 v10, 0\nv_mov_b32 v11, 0")
    for p in range(2):
        for e in range(0, 8, 2): a(f"v_pk_fma_f32 {v(HB+8*p+e,2)}, {v(HB+8*p+e,2)}, v[18:19], v[28:29]")
        for e in range(0, 8, 2): a(f"v_pk_add_f32 {v(HB+8*p+e,2)}, {v(HB+8*p+e,2)}, {v(AC2+4+8*p+e,2)}")
        for e in range(4): a(f"v_cvt_pk_bf16_f32 v{AR+4*p+e}, v{HB+8*p+2*e}, v{HB+8*p+2*e+1}")
        a(f"buffer_store_dwordx4 {v(AR+4*p,4)}, v2, s[56:59], s11 offen offset:{p*1024} sc1")
    for e in range(0, 16, 2): a(f"v_pk_fma_f32 v[10:11], {v(HB+e,2)}, {v(HB+e,2)}, v[10:11]")
    a("v_add_f32 v10, v10, v11")
    gsum(a, 10, 11)
    a(f"s_mul_i32 s10, s60, 9\ns_add_u32 s10, s10, s61\ns_lshl_b32 s10, s10, 9\ns_lshl_b32 s12, s3, 6\ns_add_u32 s10, s10, s12\ns_add_u32 s10, s10, {SS_OFF}")
    a(f"s_lshl_b32 s12, s8, 6\ns_add_u32 s12, s12, {MEAN_OFF}")
    a("s_mov_b64 exec, 0xffff")
    a("buffer_store_dword v10, v4, s[56:59], s10 offen sc1")
    a("s_cmp_lg_u32 s61, 0\ns_cbranch_scc1 G2_m")
    a("buffer_store_dword v9, v4, s[56:59], s12 offen sc1")
    a("G2_m:")
    a("s_mov_b64 exec, -1")
    a(f"s_sub_u32 s6, s6, {FH_OFF-FX_OFF}")
    consts(a)
    a("s_waitcnt vmcnt(0)")
    last_of(a, cG2, 8, "G_xs")
    a.sadd(6, 7)
    a("G_xs:")
    a.stamp(7)

def gen_stats(a):
    R = 32
    a("v_lshrrev_b32 v2, 2, v1\nv_and_b32 v3, 3, v1\nv_mul_u32_u24 v4, 1152, v2\nv_lshl_add_u32 v4, v3, 4, v4")
    a("s_mul_i32 s7, s6, 18432")
    a.srd(44, P_Q, ACT)
    for i in range(18): a(f"buffer_load_dwordx4 {v(R+4*i,4)}, v4, s[44:47], s7 offen offset:{64*i}")
    a("s_barrier")
    a("v_mov_b32 v8, 0x3f803f80")
    for r in range(4): a(f"v_mov_b32 v{20+r}, 0")
    for i in range(18):
        if i % 3 == 0: a(f"s_waitcnt vmcnt({15-i})")
        for d in range(4):
            a(f"v_dot2c_f32_bf16 v{20+(d&1)}, v{R+4*i+d}, v8\nv_dot2c_f32_bf16 v{22+(d&1)}, v{R+4*i+d}, v{R+4*i+d}")
    a.ldsadd(VC, V1, cG1)
    a("v_add_f32 v20, v20, v21\nv_add_f32 v22, v22, v23\ns_nop 1")
    for qp in ("[1,0,3,2]", "[2,3,0,1]"):
        a(f"v_add_f32_dpp v20, v20, v20 quad_perm:{qp} row_mask:0xf bank_mask:0xf")
        a(f"v_add_f32_dpp v22, v22, v22 quad_perm:{qp} row_mask:0xf bank_mask:0xf")
        a("s_nop 1")
    a(f"v_mul_f32 v26, {fh(-1.0/D)}, v20\nv_mul_f32 v22, {fh(1.0/D)}, v22")
    a("v_fma_f32 v22, -v26, v26, v22\nv_max_f32 v22, 0, v22")
    a(f"v_add_f32 v21, {fh(EPS)}, v22\nv_rsq_f32 v24, v21\ns_nop 0")
    a(f"v_mul_f32 v21, v24, v24\nv_fmaak_f32 v21, v21, v22, {fh(EPS)}\nv_rsq_f32 v21, v21")
    a("v_mul_f32 v25, v26, v24\nv_mul_f32 v27, v21, v24\nv_or_b32 v24, 1, v24")
    a(f"v_lshlrev_b32 v5, 4, v2\ns_lshl_b32 s7, s6, 8\ns_add_u32 s7, s7, {ST1_OFF}")
    a.zcheck(14, 9, False)
    a("s_mov_b32 exec_lo, 0x11111111\ns_mov_b32 exec_hi, 0x11111111")
    a("buffer_store_dwordx4 v[24:27], v5, s[56:59], s7 offen sc1")
    a("s_mov_b64 exec, -1")

def gen_colsum(a):
    R = 32
    a("s_mul_i32 s7, s6, 57\ns_lshr_b32 s7, s7, 9\ns_mul_i32 s8, s7, 9\ns_sub_u32 s8, s6, s8")
    a("v_lshrrev_b32 v2, 3, v1\nv_and_b32 v3, 7, v1\nv_mul_u32_u24 v4, 1152, v2\nv_lshl_add_u32 v4, v3, 4, v4")
    a("s_mul_i32 s10, s7, 165888\ns_lshl_b32 s11, s8, 7\ns_add_u32 s10, s10, s11")
    a.srd(44, P_W1, D * D * 2)
    for i in range(18):
        a(f"buffer_load_dwordx4 {v(R+4*i,4)}, v4, s[44:47], s10 offen\ns_add_u32 s10, s10, 9216")
    a("s_barrier")
    for i in range(18):
        if i % 3 == 0: a(f"s_waitcnt vmcnt({15-i})")
        d = 20 if i == 0 else 104
        for e in range(4): a(f"v_lshlrev_b32 v{d+2*e}, 16, v{R+4*i+e}\nv_and_b32 v{d+2*e+1}, 0xffff0000, v{R+4*i+e}")
        if i:
            for e in range(4): a(f"v_pk_add_f32 {v(20+2*e,2)}, {v(20+2*e,2)}, {v(104+2*e,2)}")
    a.ldsadd(VC, V1, cG1)
    for e in range(8): a(f"v_add_f32_dpp v{20+e}, v{20+e}, v{20+e} row_ror:8 row_mask:0xf bank_mask:0xf")
    for e in range(8): gsum(a, 20 + e, 5)
    for e in range(8): a(f"v_or_b32 v{20+e}, 1, v{20+e}")
    a(f"v_lshlrev_b32 v5, 5, v1\ns_mul_i32 s7, s7, 2304\ns_lshl_b32 s8, s8, 8\ns_add_u32 s7, s7, s8\ns_add_u32 s7, s7, {CSUM_OFF}")
    a.zcheck(14, 9, False)
    a("s_mov_b64 exec, 0xff")
    a("buffer_store_dwordx4 v[20:23], v5, s[56:59], s7 offen sc1\nbuffer_store_dwordx4 v[24:27], v5, s[56:59], s7 offen offset:16 sc1")
    a("s_mov_b64 exec, -1")

def consts(a):
    if "nf1" in OPT: a("s_mov_b32 s4, s96\ns_mov_b32 s5, s97")
    elif "nf2" in OPT:
        a("s_and_b32 s4, s96, 3\ns_lshl_b32 s4, s4, 1\ns_and_b32 s7, s97, 1\ns_add_u32 s4, s4, s7\ns_lshr_b32 s5, s96, 2\ns_lshl_b32 s5, s5, 4\ns_lshr_b32 s7, s97, 1\ns_add_u32 s5, s5, s7")
    else:
        a("s_and_b32 s4, s96, 1\ns_lshl_b32 s4, s4, 2\ns_and_b32 s7, s97, 3\ns_add_u32 s4, s4, s7\ns_lshr_b32 s5, s96, 1\ns_lshl_b32 s5, s5, 3\ns_lshr_b32 s7, s97, 2\ns_add_u32 s5, s5, s7")
    km.consts2(a)

def gen_f(a, stP):
    a("s_cmp_lg_u32 s3, 0\ns_cbranch_scc1 F_pf")
    a("s_mov_b64 exec, 0xffff")
    a(f"v_lshl_add_u32 v7, v1, 2, v{VC}\nv_mov_b32 v8, 0\nds_write2_b32 v7, v8, v8 offset0:0 offset1:16")
    a("s_mov_b64 exec, -1")
    a("F_pf:")
    a(f"s_mul_i32 s61, s3, {CV_SZ}\ns_lshl_b32 s7, s3, 12\ns_add_u32 s7, s7, {FSCR-4*4096}\ns_cmp_ge_u32 s3, 4\ns_cselect_b32 s61, s7, s61")
    a("s_mul_i32 s12, s3, 112\ns_add_u32 s12, s12, s60\ns_mov_b32 s13, s61")
    a("s_waitcnt lgkmcnt(0)")
    a.srd(56, P_WS, WS_BYTES)
    a("s_cmp_eq_u32 s99, 1\ns_cbranch_scc1 F_pt\ns_barrier")
    a("s_cmp_ge_u32 s12, 306\ns_cbranch_scc1 F_pt")
    a("s_setprio 2\ns_cmp_lt_u32 s12, 288\ns_cbranch_scc1 F_kv")
    a("s_sub_u32 s6, s12, 288")
    km.gen_meantile(a)
    a.ldsadd(VC, V1, cKV)
    a("s_branch F_done")
    a("F_kv:\ns_mov_b32 s6, s12")
    if "nobulk" in OPT: a("s_sleep 100\ns_branch F_end")
    st = a.stamps; a.stamps = False
    km.gen_kv(a)
    a.stamps = st
    a.stamp(5)
    a(f"s_mul_i32 s11, s8, {FB_STRIDE}\ns_add_u32 s11, s11, {FKC_OFF}")
    a("s_branch F_sig")
    a("F_pt:")
    if "nobulk" in OPT or "nopt" in OPT: a("s_sleep 100\ns_branch F_end")
    a(f"s_cmp_lt_u32 s12, 450\ns_cbranch_scc1 F_job\ns_mov_b32 s8, {optval('FJW', 4)}")
    if "fjk" in OPT: a.ldswait(VC, 5, 7, 1, cXs, sleep=4)
    if "fj2" in OPT: a("s_cmp_ge_u32 s3, 6\ns_cselect_b32 s8, 6, s8")
    a.ldswait(VC, 5, 7, "s8", cKV, sleep=4)
    a("F_job:")
    a("s_sub_u32 s12, s12, 306\ns_and_b32 s62, s12, 7\ns_lshr_b32 s12, s12, 3\ns_mov_b32 s9, s61")
    n0 = len(a.L)
    km.job_setup(a, "JS")
    a.L[n0:] = [x.replace("s96", "s62") for x in a.L[n0:]]
    gen_pretile(a, 128)
    a("s_mov_b32 s6, s98")
    a(f"s_add_u32 s11, s6, {FCNT}")
    a("F_sig:")
    a.zcheck(14, 13)
    a.ldsadd(VC, V1, cKV)
    a.stamp(6)
    a.sarrive(6, "s100", 8, 11)
    a("F_done:")
    a.stamp(2)
    a("s_cmp_lt_u32 s3, 4\ns_cbranch_scc1 F_cv")
    a(f"s_mov_b64 exec, 1\nds_add_rtn_u32 v5, v{VC}, v{V1} offset:{cU}\ns_mov_b64 exec, -1")
    a("s_waitcnt lgkmcnt(0)")
    a("v_readfirstlane_b32 s12, v5")
    a("s_mul_i32 s12, s12, 112\ns_add_u32 s12, s12, s60\ns_add_u32 s12, s12, 896\ns_cmp_lt_u32 s12, 1170\ns_cbranch_scc1 F_job")
    a("F_end:")
    if "g1t" in OPT: a.end()
    a("v_lshlrev_b32 v2, 4, v1\nv_add_u32 v3, 4096, v2\nv_lshlrev_b32 v4, 2, v1")
    consts(a)
    a("s_branch K6_q")
    a("F_cv:")
    if "g1t" in OPT: a.end()
    a("v_lshlrev_b32 v2, 4, v1\nv_add_u32 v3, 4096, v2\nv_lshlrev_b32 v4, 2, v1")
    consts(a)
    a("s_lshl_b32 s6, s60, 2\ns_add_u32 s6, s6, s3\ns_mov_b32 s7, s61\ns_setprio 3")
    def wait_kv():
        a("s_cmp_lg_u32 s3, 0\ns_cbranch_scc1 F_kw")
        conv.kv_flag_addr(a, 8)
        a.cpoll(8, 1, 44, 13, 2)
        a.ldsadd(VC, V1, cXs)
        a("F_kw:")
        a.ldswait(VC, 5, 8, 1, cXs)
        a.stamp(3)
    def gate(pre):
        if pre:
            a(f"s_add_u32 s55, s70, 128\ns_load_dword s53, {s(P_WS,2)}, s55")
            return
        a("s_cmp_lg_u32 s53, 0\ns_cbranch_scc1 F_w3")
        a.cpoll(55, 1, 44, 13, 8)
        a("F_w3:")
    conv.single(a, wait_kv, gate, stP.issue)
    assert stP.issued == 16
    a.stamp(4)
    a("v_mov_b32 v5, 2\ns_mov_b32 s98, s6")
    a.ldsadd(VC, 5, cG2)
    a("s_branch K6_p2")

def gen_k6(a, name):
    fine = "fine" in OPT
    a(f".p2align 8\n{name}:\nK6_start:")
    a("s_cmp_ge_u32 s2, 256\ns_cbranch_scc1 K6_end")
    a.stamp_init()
    if "skew" in OPT:
        a("s_mul_i32 s4, s2, 5\ns_and_b32 s4, s4, 7\nSK_l:\ns_sub_u32 s4, s4, 1\ns_cbranch_scc1 SK_d\ns_sleep 12\ns_branch SK_l\nSK_d:")
    a.kernargs()
    a("v_lshrrev_b32 v2, 6, v0\nv_and_b32 v1, 63, v0")
    a("v_readfirstlane_b32 s3, v2")
    a("s_and_b32 s96, s2, 7\ns_lshr_b32 s97, s2, 3\ns_mov_b32 s101, 1\ns_mov_b32 s99, 0")
    a(f"v_mov_b32 v{VC}, {CNT}\nv_mov_b32 v{V1}, 1")
    a("s_sub_u32 s60, s2, 144\ns_cmp_lt_u32 s97, 18\ns_cbranch_scc1 K6_g")
    a("s_cmp_lt_u32 s3, 6\ns_cbranch_scc1 K6_f\ns_cmp_eq_u32 s3, 7\ns_cbranch_scc1 K6_pf")
    a(f"s_sub_u32 s11, 255, s2\ns_cmp_ge_u32 s11, {FLAG_WAVES}\ns_cbranch_scc1 K6_f")
    a(f"v_lshrrev_b32 v7, 5, v1\nv_mul_u32_u24 v7, {FB_STRIDE-512}, v7\nv_lshl_add_u32 v7, v1, 4, v7\nv_lshlrev_b32 v6, 4, v1")
    a("v_mov_b32 v8, 0\nv_mov_b32 v9, 0\nv_mov_b32 v10, 0\nv_mov_b32 v11, 0")
    a(f"s_lshl_b32 s8, s11, 12\ns_add_u32 s8, s8, {W2M_OFF}\ns_mul_i32 s9, s11, {4*FB_STRIDE}\ns_add_u32 s9, s9, {FLAG_OFF}\ns_add_u32 s10, s9, {2*FB_STRIDE}")
    a("s_waitcnt lgkmcnt(0)")
    a.srd(56, P_WS, WS_BYTES)
    for i in range(4): a(f"buffer_store_dwordx4 v[8:11], v6, s[56:59], s8 offen offset:{1024*i} sc1")
    a("buffer_store_dwordx4 v[8:11], v7, s[56:59], s9 offen sc1\nbuffer_store_dwordx4 v[8:11], v7, s[56:59], s10 offen sc1")
    a("s_barrier\ns_mov_b32 s99, 1\ns_mov_b32 s8, 1\ns_waitcnt vmcnt(0)")
    a(f"s_atomic_add s8, {s(P_DBG,2)}, 128 glc\ns_waitcnt lgkmcnt(0)\ns_cmp_lg_u32 s8, {FLAG_WAVES-1}\ns_cbranch_scc1 K6_f")
    a(f"s_atomic_add s101, {s(P_DBG,2)}, 0")
    a.stamp(1)
    a("s_branch K6_f")
    a("K6_pf:")
    a("s_getpc_b64 s[8:9]\nF_pc:")
    a("s_sub_u32 s10, s97, 18\nv_min_u32 v2, 39, v1\nv_mul_u32_u24 v2, 14, v2\nv_add_lshl_u32 v2, s10, v2, 7\nv_min_u32 v2, CODE_END-F_pc-4, v2")
    a("global_load_dword v31, v2, s[8:9]")
    a("s_branch K6_f")
    a("K6_g:")
    a("s_cmp_ge_u32 s97, 9\ns_cselect_b32 s62, 1, 0\ns_mul_i32 s61, s62, 9\ns_sub_u32 s61, s97, s61\ns_lshl_b32 s60, s96, 1\ns_add_u32 s60, s60, s62")
    A3 = [(2, 0), (2, 1024), (2, 2048)]
    stP = Stream(a, [(64, A3, " sc1"), (65, A3, " sc1"), (66, [(tail.VT + i, 0) for i in range(3)], " sc1"), (68, [(tail.VT + 3, 0)], " sc1")])
    stQ = Stream(a, [(64, A3, " sc1"), (66, [(tail.VT + i, 0) for i in range(5)], " sc1")])
    gen_g(a)
    a("s_cmp_lt_u32 s3, 4\ns_cbranch_scc1 K6_p")
    a("s_cmp_ge_u32 s2, 128\ns_cbranch_scc1 K6_q")
    a("s_add_u32 s6, s2, 448\ns_cmp_lg_u32 s3, 4\ns_cbranch_scc1 G_kw")
    conv.kv_flag_addr(a, 8)
    a.dpoll(8, 44, 13)
    a.ldsadd(VC, V1, cT0)
    a("G_kw:")
    a("s_setprio 3\ns_cmp_lg_u32 s3, 7\ns_cbranch_scc1 G_k2\ns_add_u32 s8, s70, 256")
    a.dpoll(8, 44, 13, 8)
    a.ldsadd(VC, V1, cW3)
    a("G_k2:")
    a.ldswait(VC, 5, 8, 1, cT0)
    a.ldswait(VC, 5, 8, 8, cG2)
    conv.team(a, G1_BASE, G1_BASE + 21504, cT1, cT2, cT3, lambda: None, stQ.issue)
    assert stQ.issued == 16
    a.ldsadd(VC, V1, cSide)
    a.stamp(8 if not fine else 2)
    a("s_waitcnt vmcnt(0)")
    last_of(a, cU, 4, "K6_q2")
    a.setflag("s6", 14)
    a("s_branch K6_q2")
    a("K6_f:")
    gen_f(a, stP)
    def addrs():
        a(f"v_mov_b32 v6, v2\nv_add_u32 v7, 36864, v2\nv_add_u32 v8, {ML_H}, v2\nv_add_u32 v9, {ML_H+36864}, v2")
        h_addr(a, 71, 10, 12)
    def rk():
        a(f"v_and_b32 v5, 15, v1\nv_lshlrev_b32 v5, 4, v5\nv_add_u32 v5, {RM}, v5")
        for m in range(4): a(f"ds_read_b32 v{GT+m}, v5 offset:{256*m}")
        a("s_waitcnt lgkmcnt(0)")
        for m in range(4):
            r = GT + m
            a(f"v_mul_f32 v{KC+2*m}, {fh(GC0)}, v{r}\nv_mul_f32 v{r}, v{r}, v{r}\nv_mul_f32 v{r}, {fh(0.044715)}, v{r}\nv_mul_f32 v{KC+2*m+1}, v{r}, v{KC+2*m}")
    a("K6_p:")
    a("s_cmp_lg_u32 s3, 1\ns_cbranch_scc1 KB_w3")
    a("s_add_u32 s6, s70, 128")
    a.dpoll(6, 48, 13, 8)
    a.ldsadd(VC, V1, cW3a)
    a("KB_w3:")
    a.ldswait(VC, 5, 7, 1, cW3a)
    paced(a, Stream(a, stP.segs), 16, optval("PPACE", 8))
    a("s_mov_b32 s98, 0")
    a("K6_p2:")
    a("s_setprio 2")
    PRE = NS
    for i in range(NS - 16): stP.issue()
    addrs()
    a(f"s_lshr_b32 s11, s5, 1\ns_mul_i32 s6, s11, {FB_STRIDE}\ns_add_u32 s6, s6, {FX_OFF}")
    a(f"s_mul_i32 s9, s3, 18432\ns_mov_b32 m0, s9\ns_mul_i32 s7, s5, 73728\ns_add_u32 s7, s7, s9\ns_add_u32 s7, s7, {X1_OFF}")
    a.stamp(8)
    a("s_cmp_lg_u32 s3, 0\ns_cbranch_scc1 KB_xw")
    a.cpoll(6, 9, 44, 13, optval('FXS', 1))
    a.ldswait(VC, 5, 8, 8, cG2)
    a.ldsadd(VC, V1, cFX)
    a("s_branch KB_xg")
    a("KB_xw:")
    a.ldswait(VC, 5, 8, 1, cFX)
    a("KB_xg:")
    a.stamp(9)
    def xdma(i):
        if i and i % 4 == 0: a("s_add_u32 m0, m0, 4096\ns_add_u32 s7, s7, 4096")
        a(f"buffer_load_dwordx4 v2, s[56:59], s7 offen offset:{(i%4)*1024} sc1 lds")
        stP.other(f"x{i}")
    XP = optval("XP", 6)
    for i in range(XP): xdma(i)
    for i in range(NS - PRE): stP.issue()
    late = [(lambda i=i: xdma(i)) for i in range(XP, 18)]
    def stat(ins, tag="x"):
        a(ins); stP.other(tag)
    for i in range(optval("XE", 12)): late.pop(0)()
    a(f"s_waitcnt vmcnt({stP.younger(f'x{XP-1}')})")
    a("s_cmp_eq_u32 s98, 0\ns_cbranch_scc1 KB_fy")
    a.setflag("s98", 14)
    a("KB_fy:")
    a.subbar(VC, 5, 10, 4, off=cX1)
    a.stamp(10 if not fine else 1)
    def xhook(ks, i):
        if i in (0, 4, 8, 10, 11, 3) and late: late.pop(0)()
    mphase(a, stP, 0, 6, 0, XP, prio=2, hook=xhook)
    assert not late
    if "s1" in OPT: a.stamp(8)
    a(f"s_waitcnt vmcnt({stP.younger('x17')})")
    if "s1" in OPT: a.stamp(9)
    a.subbar(VC, 5, 7, 4, off=cX2)
    kw = 18 - (NS + 2) // 3
    def w3hook(ks, i):
        if ks == kw - 1 and i == 10: a.ldswait(VC, 5, 7, 1, cW3)
    mphase(a, stP, 0, 6, XP, 18, first=False, prio=2, hook=w3hook)
    if fine: a.stamp(2)
    a.ldswait(VC, 5, 7, 5, cSide)
    rk()
    gphase(a, 10, 12)
    a.ldsadd(VC, V1, cH1)
    if fine: a.stamp(3)
    a("s_add_u32 s71, s71, 24")
    h_addr(a, 71, 10, 12)
    tail.consts_b(a)
    a.ldswait(VC, 5, 7, 1, cW4)
    mphase(a, stP, 1, 6, prio=1)
    a.ldsadd(VC, V1, cA)
    if fine: a.stamp(4)
    def sthook(i):
        if i == 1:
            a.ldswait(VC, 5, 7, 4, cA)
            a.ldswait(VC, 5, 7, 8, cH1)
            stage_x(a)
            stage_y(a)
    gphase(a, 10, 12, sthook)
    a("s_waitcnt vmcnt(0)")
    a.subbar(VC, 5, 7, 4, off=cH2)
    if fine: a.stamp(5)
    mphase(a, stP, 2, 8)
    if fine: a.stamp(6)
    tail.stores(a, 3, stP.other)
    tail.ex_base(a, 8)
    a(f"v_add_u32 v10, s8, v2\ns_lshl_b32 s6, s3, 2\nv_add_u32 v11, s6, v{VC}")
    def hook(ks, i):
        if ks == optval("EFLAG", 12) and i == 0:
            a("s_waitcnt vmcnt(0)")
            tail.flags(a, 3); stP.other()
    mphase(a, stP, 3, 8, acc=MACC + 64, hook=hook, bufs=[BF, BF + 16, MACC, MACC + 16], prio=optval("P2P", 1))
    if fine: a.stamp(7)
    a.nop(8)
    for i in range(4): a(f"ds_write_b128 v10, {v(MACC+64+4*i,4)} offset:{1024*i}")
    a.ldsadd(11, V1, cOwn)
    a.end()
    a("K6_q:")
    a("s_setprio 0")
    a.stamp(8 if not fine else 2)
    a.ldsadd(VC, V1, cSide)
    a("s_cmp_lg_u32 s3, 7\ns_cbranch_scc1 KB_q3")
    a("s_add_u32 s8, s70, 256")
    if not ({"nobulk", "nopt"} & set(OPT)): a.dpoll(8, 44, 13, 16)
    a.ldsadd(VC, V1, cW3)
    a("KB_q3:")
    a.ldswait(VC, 5, 7, 1, cW3, sleep=2)
    QW = optval("QRW", -1)
    if QW >= 0: a.ldswait(VC, 5, 7, 4, QW, sleep=2)
    paced(a, Stream(a, stQ.segs), 16, optval("QPACE", 4))
    a("K6_q2:")
    a("s_setprio 0")
    for i in range(NS - 16): stQ.issue()
    a.stamp(9 if not fine else 3)
    addrs()
    a("s_cmp_lg_u32 s3, 6\ns_cbranch_scc1 KB_rs")
    a.ldswait(VC, 5, 7, 1, cFX)
    a(f"s_lshr_b32 s11, s5, 1\ns_mul_i32 s6, s11, 4608\ns_and_b32 s8, s5, 1\ns_lshl_b32 s8, s8, 8\ns_add_u32 s6, s6, s8\ns_add_u32 s6, s6, {SS_OFF}\ns_add_u32 s11, s6, 4096")
    a(f"s_lshl_b32 s8, s5, 8\ns_add_u32 s8, s8, {MEAN_OFF}\ns_lshl_b32 s9, s5, 10\ns_add_u32 s9, s9, {ST1_OFF}\ns_setprio 3")
    for i in range(8): a(f"buffer_load_dword v{GT+i}, v4, s[56:59], s6 offen offset:{512*i} sc1")
    a(f"buffer_load_dword v{GT+8}, v4, s[56:59], s11 offen sc1\nbuffer_load_dword v{GT+13}, v4, s[56:59], s8 offen sc1\nbuffer_load_dwordx2 {v(GT+14,2)}, v2, s[56:59], s9 offen sc1")
    a("s_waitcnt vmcnt(0)")
    for i in range(1, 9): a(f"v_add_f32 v{GT}, v{GT}, v{GT+i}")
    a(f"v_mov_b32 v{GT+1}, {fh(1.0/D)}\nv_fmaak_f32 v{GT}, v{GT+1}, v{GT}, {fh(EPS)}")
    a(f"v_rsq_f32 v{GT+12}, v{GT}")
    a(f"v_add_u32 v5, {RM}, v2\ns_nop 0")
    a(f"ds_write_b128 v5, {v(GT+12,4)}")
    a.ldsadd(VC, V1, cSide)
    a("KB_rs:")
    a.ldswait(VC, 5, 7, 4, cX2)
    mphase(a, stQ, 0, 6, 0, kw, prio=2)
    a("s_cmp_lg_u32 s3, 7\ns_cbranch_scc1 KB_q2c")
    if not ({"nobulk", "nopt"} & set(OPT)): a.dpoll(70, 44, 13, 8)
    a.ldsadd(VC, V1, cW4)
    a("KB_q2c:")
    tail.consts_b(a)
    a.ldswait(VC, 5, 7, 1, cW4)
    mphase(a, stQ, 0, 6, kw, 18, first=False, prio=2)
    a.ldswait(VC, 5, 7, 5, cSide)
    if fine: a.stamp(4)
    rk()
    def yhook(i):
        ld = "buffer_load_dword v18, v14, s[56:59], s8 offen sc1\nbuffer_load_dword v19, v14, s[56:59], s8 offen offset:1280 sc1"
        if i == 0:
            a(f"s_mul_i32 s8, s4, 9\ns_lshr_b32 s8, s8, 1\ns_lshl_b32 s8, s8, 9\ns_add_u32 s8, s8, {FYW_OFF}\nv_min_u32 v14, 39, v1\nv_lshlrev_b32 v14, 5, v14")
            a(f"s_cmp_lg_u32 s3, 7\ns_cbranch_scc1 KB_y0\n{ld}\nKB_y0:")
        if i == 4:
            a("s_cmp_lg_u32 s3, 7\ns_cbranch_scc1 KB_ys\ns_mov_b32 s13, 0x20000\nKB_y1:")
            a("s_waitcnt vmcnt(0)\nv_and_b32 v18, v18, v19\nv_cmp_ne_u32 vcc, 1, v18\ns_cbranch_vccz KB_ys")
            a(f"s_sleep 16\n{ld}\ns_sub_u32 s13, s13, 1\ns_cbranch_scc0 KB_y1")
            a("KB_ys:")
    gphase(a, 10, 12, yhook)
    a.subbar(VC, 5, 7, 8, off=cH1)
    if fine: a.stamp(5)
    mphase(a, stQ, 1, 8, 0, 12, prio=1)
    a.ldswait(VC, 5, 7, 4, cH2)
    if fine: a.stamp(7)
    mphase(a, stQ, 1, 8, 12, 18, first=False, prio=1)
    a(f"s_setprio {optval('QT', 1)}")
    a.stamp(10)
    tail.stores(a, 5)
    def mid():
        a("s_waitcnt vmcnt(0)")
        tail.flags(a, 5)
        a(f"s_setprio {optval('QF', 1)}")
    st = a.stamps; a.stamps = st and fine
    tail.final(a, cOwn, mid)
    a.stamps = st
    a.end()
    a("K6_end:")
    a("s_endpgm")
```

```python
S, D, F = 2048, 576, 4608
ACT = S * D * 2
H_OFF    = 0x0000000
X1_OFF   = 0x0240000
KV_OFF   = 0x0480000
KV_PITCH = 4224
Y_OFF    = 0x0700000
W2M_OFF  = 0x0940000
FT_OFF   = W2M_OFF + 3072
CSUM_OFF = FT_OFF
FYW_OFF  = FT_OFF + 36864
ST1_OFF  = 0x09E0000
SS_OFF   = 0x0950000
MEAN_OFF = 0x0968000
FLAG_OFF = 0x0970000
FB_STRIDE = 4352
FX_OFF   = FLAG_OFF
FP_OFF   = FLAG_OFF + 128
FW4_OFF  = FLAG_OFF + 32 * FB_STRIDE
FY_OFF   = FLAG_OFF + 40 * FB_STRIDE
FH_OFF   = FLAG_OFF + 16 * FB_STRIDE
FW3A_OFF = FW4_OFF + 128
FW3R_OFF = FW4_OFF + 256
FKV_OFF  = FY_OFF + 128
FM_OFF   = FY_OFF + 3 * FB_STRIDE + 128
FCNT = 12 * FB_STRIDE
FKC_OFF  = FLAG_OFF + 56 * FB_STRIDE
FLAG_WAVES = 17
W3T_OFF  = 0x0A00000
W4T_OFF  = 0x0F10000
PART_OFF = 0x1420000
STAMP_OFF = 0x2620000
WS_BYTES = 0x2700000
WSLICE = 18 * 36 * 1024

EPS = 1e-5
import struct, os
def f2u(x): return struct.unpack("<I", struct.pack("<f", x))[0]
def fh(x): return "0x%08x" % f2u(x)

def v(n, c=1): return f"v{n}" if c == 1 else f"v[{n}:{n+c-1}]"
def s(n, c=1): return f"s{n}" if c == 1 else f"s[{n}:{n+c-1}]"

P_Q, P_K, P_V, P_SHK, P_SSMK, P_SSMD, P_BX, P_W1, P_W2, P_W3, P_W4, P_OUT, P_DBG, P_WS = [16 + 2 * i for i in range(14)]

class Asm:
    def __init__(self):
        self.L = []
        self.n = 0
        self.stamps = False
        self.kid = 0
    def stamp(self, i):
        if self.stamps: self(f"{'s_memtime' if 'cyc' in os.environ.get('OPT','') else 's_memrealtime'} s[{72+2*i}:{73+2*i}]")
    def stamp_init(self):
        if self.stamps:
            for i in range(12): self(f"s_mov_b32 s{72+2*i}, 0")
            self.stamp(0)
    def end(self, i=11):
        if self.stamps:
            self("s_waitcnt vmcnt(0) lgkmcnt(0)")
            self.stamp(i)
            self.srd(56, P_WS, WS_BYTES)
            self("s_mov_b64 exec, 1")
            self(f"s_lshl_b32 s6, s2, 3\ns_add_u32 s6, s6, s3\ns_lshl_b32 s6, s6, 6\ns_add_u32 s6, s6, {STAMP_OFF + self.kid * 0x28000}")
            self("v_mov_b32 v4, 0\ns_waitcnt lgkmcnt(0)")
            for q in range(3):
                for e in range(4): self(f"v_mov_b32 v{8+4*q+e}, s{72+8*q+2*e}")
                self(f"buffer_store_dwordx4 v[{8+4*q}:{11+4*q}], v4, s[56:59], s6 offen offset:{16*q}")
            if os.environ.get("HOLD"):
                idx, wid = os.environ["HOLD"].split(",")
                l = self.lab("HS"); l2 = self.lab("HL")
                if wid.startswith("w"): self(f"s_cmp_lg_u32 s3, {wid[1:]}\ns_cbranch_scc1 {l}")
                else: self(f"s_lshl_b32 s6, s2, 3\ns_add_u32 s6, s6, s3\ns_cmp_lg_u32 s6, {wid}\ns_cbranch_scc1 {l}")
                self(f"{l2}:\ns_sleep 1\ns_memrealtime s[8:9]\ns_waitcnt lgkmcnt(0)\ns_sub_u32 s8, s8, s{72+2*int(idx)}\ns_cmp_lt_u32 s8, 10000\ns_cbranch_scc1 {l2}")
                self(f"{l}:")
            if "dbgst" in os.environ.get("OPT", ""):
                l = self.lab("DS")
                self(f"s_lshl_b32 s6, s2, 3\ns_add_u32 s6, s6, s3\ns_cmp_lg_u32 s6, {os.environ.get('DBGW', '41')}\ns_cbranch_scc1 {l}")
                for i in range(1, 12):
                    self(f"v_subrev_u32 v20, s72, v{8+i}\nglobal_store_dword v4, v20, {s(P_DBG,2)} offset:{4+4*i}")
                self(f"{l}:")
        self("s_endpgm")
    def __call__(self, t):
        for line in t.split("\n"):
            line = line.strip()
            if line:
                self.L.append(("" if line.endswith(":") or line.startswith(".") else "  ") + line)
    def lab(self, p="L"):
        self.n += 1
        return f"{p}_{self.n}"
    def text(self): return "\n".join(self.L) + "\n"
    def kernargs(self):
        self("s_load_dwordx16 s[16:31], s[0:1], 0")
        self("s_load_dwordx8 s[32:39], s[0:1], 64")
        self("s_load_dwordx4 s[40:43], s[0:1], 96")
    def srd(self, d, p, nbytes):
        self(f"s_mov_b32 s{d}, s{p}\ns_mov_b32 s{d+1}, s{p+1}\ns_mov_b32 s{d+2}, {nbytes}\ns_mov_b32 s{d+3}, 0x20000")
    def mfma(self, d, a, b, c=None):
        cc = v(d, 4) if c is None else c
        self(f"v_mfma_f32_16x16x32_bf16 {v(d,4)}, {v(a,4)}, {v(b,4)}, {cc}")
    def nop(self, n):
        while n > 0:
            k = min(n, 16)
            self(f"s_nop {k-1}")
            n -= k
    def prefetch_code(self, endlabel, vtmp, vdst, stmp):
        l = self.lab("PF")
        self(f"s_getpc_b64 {s(stmp,2)}")
        self(f"{l}:")
        self(f"v_and_b32 {v(vtmp)}, 15, v0")
        self(f"v_lshlrev_b32 {v(vtmp)}, 5, {v(vtmp)}")
        self(f"s_lshr_b32 s{stmp+2}, s2, 3")
        self(f"v_add_lshl_u32 {v(vtmp)}, s{stmp+2}, {v(vtmp)}, 7")
        self(f"v_min_u32 {v(vtmp)}, {endlabel}-{l}-4, {v(vtmp)}")
        self(f"global_load_dword {v(vdst)}, {v(vtmp)}, {s(stmp,2)} nt")
    def subbar(self, vaddr, vtmp, stmp, n, off=0):
        self("s_mov_b64 exec, 1")
        self(f"v_mov_b32 {v(vtmp)}, 1")
        self(f"ds_add_u32 {v(vaddr)}, {v(vtmp)} offset:{off}")
        self("s_mov_b64 exec, -1")
        self.ldswait(vaddr, vtmp, stmp, n, off)
    def ldswait(self, vaddr, vtmp, stmp, n, off=0, sleep=1):
        l = self.lab("LW"); d = self.lab("LD")
        self(f"{l}:")
        self(f"ds_read_b32 {v(vtmp)}, {v(vaddr)} offset:{off}")
        self("s_waitcnt lgkmcnt(0)")
        self(f"v_readfirstlane_b32 s{stmp}, {v(vtmp)}")
        self(f"s_cmp_ge_u32 s{stmp}, {n}")
        self(f"s_cbranch_scc1 {d}")
        self(f"s_sleep {max(sleep, int(os.environ.get('LSLEEP', '1')))}")
        self(f"s_branch {l}")
        self(f"{d}:")
    def poll(self, vaddr, soff, vtmp, stmp, sleep=1):
        l = self.lab("PL"); d = self.lab("PD")
        self(f"s_mov_b32 s{stmp}, 0x40000")
        self(f"{l}:")
        self(f"buffer_load_dword {v(vtmp)}, {v(vaddr)}, s[56:59], {soff} offen sc1")
        self("s_waitcnt vmcnt(0)")
        self(f"v_cmp_eq_u32 vcc, 0, {v(vtmp)}")
        self(f"s_cbranch_vccz {d}")
        self(f"s_sleep {sleep}")
        self(f"s_sub_u32 s{stmp}, s{stmp}, 1")
        self(f"s_cbranch_scc0 {l}")
        self(f"{d}:")
    def spoll(self, n, soff, sd, stmp, sleep=1):
        l = self.lab("SP"); d = self.lab("SD")
        self(f"s_mov_b32 s{stmp}, 0x40000")
        self(f"{l}:")
        self(f"s_load_dwordx{n} {s(sd,n)}, {s(P_WS,2)}, s{soff} glc")
        self("s_waitcnt lgkmcnt(0)")
        k = n
        while k > 2:
            k //= 2
            for i in range(0, k, 2): self(f"s_and_b64 {s(sd+i,2)}, {s(sd+i,2)}, {s(sd+k+i,2)}")
        self(f"s_and_b32 s{sd}, s{sd}, s{sd+1}")
        self(f"s_cbranch_scc1 {d}")
        if sleep: self(f"s_sleep {sleep}")
        self(f"s_sub_u32 s{stmp}, s{stmp}, 1")
        self(f"s_cbranch_scc0 {l}")
        self(f"{d}:")
    def cpoll(self, soff, n, sd, stmp, sleep=1):
        l = self.lab("CP"); d = self.lab("CD")
        self(f"s_mov_b32 s{stmp}, 0x40000")
        self(f"{l}:")
        self(f"s_load_dword s{sd}, {s(P_WS,2)}, s{soff} glc")
        self("s_waitcnt lgkmcnt(0)")
        self(f"s_cmp_ge_u32 s{sd}, {n}")
        self(f"s_cbranch_scc1 {d}")
        if sleep: self(f"s_sleep {sleep}")
        self(f"s_sub_u32 s{stmp}, s{stmp}, 1")
        self(f"s_cbranch_scc0 {l}")
        self(f"{d}:")
    def vpoll(self, soff, n, vtmp, stmp, sleep=8):
        l = self.lab("VP"); d = self.lab("VD")
        self(f"s_mov_b32 s{stmp}, 0x20000\nv_mov_b32 {v(vtmp)}, 0")
        self(f"{l}:")
        self(f"buffer_load_dword {v(vtmp+1)}, {v(vtmp)}, s[56:59], s{soff} offen sc1")
        self("s_waitcnt vmcnt(0)")
        self(f"v_cmp_gt_u32 vcc, {n}, {v(vtmp+1)}")
        self(f"s_cbranch_vccz {d}")
        self(f"s_sleep {sleep}")
        self(f"s_sub_u32 s{stmp}, s{stmp}, 1")
        self(f"s_cbranch_scc0 {l}")
        self(f"{d}:")
    def zcheck(self, vtmp, stmp, drain=True):
        l = self.lab("ZP"); d = self.lab("ZD")
        self(f"s_load_dword s{stmp}, {s(P_DBG,2)}, 0")
        self("s_waitcnt vmcnt(0) lgkmcnt(0)" if drain else "s_waitcnt lgkmcnt(0)")
        self(f"s_cmp_lg_u32 s{stmp}, 0\ns_cbranch_scc1 {d}")
        self(f"s_mov_b32 s{stmp}, 0x20000\nv_mov_b32 {v(vtmp)}, 0")
        self(f"{l}:")
        self(f"global_load_dword {v(vtmp+1)}, {v(vtmp)}, {s(P_DBG,2)} sc1")
        self("s_waitcnt vmcnt(0)")
        self(f"v_cmp_eq_u32 vcc, 0, {v(vtmp+1)}")
        self(f"s_cbranch_vccz {d}")
        self("s_sleep 4")
        self(f"s_sub_u32 s{stmp}, s{stmp}, 1")
        self(f"s_cbranch_scc0 {l}")
        self(f"{d}:")
    def sarrive(self, soff, n, stmp, scnt=None):
        d = self.lab("SA")
        if scnt is None:
            scnt = stmp + 1
            self(f"s_add_u32 s{scnt}, s{soff}, {FCNT}")
        self(f"s_mov_b32 s{stmp}, 1\ns_atomic_add s{stmp}, {s(P_WS,2)}, s{scnt} glc")
        self(f"s_waitcnt lgkmcnt(0)\ns_add_u32 s{stmp}, s{stmp}, 1\ns_cmp_lg_u32 s{stmp}, {n}\ns_cbranch_scc1 {d}")
        self(f"s_atomic_add s101, {s(P_WS,2)}, s{soff}")
        self(f"{d}:")
    def dpoll(self, soff, sd, stmp, sleep=4):
        d = self.lab("DP")
        self(f"s_load_dword s{sd}, {s(P_WS,2)}, s{soff}\ns_waitcnt lgkmcnt(0)\ns_cmp_lg_u32 s{sd}, 0\ns_cbranch_scc1 {d}")
        self.cpoll(soff, 1, sd, stmp, sleep)
        self(f"{d}:")
    def sadd(self, soff, stmp):
        self(f"s_atomic_add s101, {s(P_WS,2)}, s{soff}")
    def arrive(self, soff, n, vtmp, stmp):
        d = self.lab("AR")
        self("s_mov_b64 exec, 1")
        self(f"v_mov_b32 {v(vtmp)}, {FCNT}\nv_mov_b32 {v(vtmp+1)}, 1")
        self(f"buffer_atomic_add {v(vtmp+1)}, {v(vtmp)}, s[56:59], s{soff} offen sc0 sc1")
        self("s_waitcnt vmcnt(0)")
        self(f"v_readfirstlane_b32 s{stmp}, {v(vtmp+1)}")
        self(f"s_add_u32 s{stmp}, s{stmp}, 1\ns_cmp_lg_u32 s{stmp}, {n}")
        self(f"s_cbranch_scc1 {d}")
        self(f"v_mov_b32 {v(vtmp)}, 0\nv_mov_b32 {v(vtmp+1)}, 1")
        self(f"buffer_store_dword {v(vtmp+1)}, {v(vtmp)}, s[56:59], s{soff} offen sc1")
        self("s_waitcnt vmcnt(0)")
        self(f"{d}:")
        self("s_mov_b64 exec, -1")
    def addflag(self, soff, vtmp):
        self("s_mov_b64 exec, 1")
        self(f"v_mov_b32 {v(vtmp)}, 0\nv_mov_b32 {v(vtmp+1)}, 1")
        self(f"buffer_atomic_add {v(vtmp+1)}, {v(vtmp)}, s[56:59], {soff} offen sc1")
        self("s_mov_b64 exec, -1")
    def ldsadd(self, vaddr, vone, off):
        self("s_mov_b64 exec, 1")
        self(f"ds_add_u32 {v(vaddr)}, {v(vone)} offset:{off}")
        self("s_mov_b64 exec, -1")
    def setflag(self, soff, vtmp):
        self("s_mov_b64 exec, 1")
        self(f"v_mov_b32 {v(vtmp)}, 0\nv_mov_b32 {v(vtmp+1)}, 1")
        self(f"buffer_store_dword {v(vtmp+1)}, {v(vtmp)}, s[56:59], {soff} offen sc1")
        self("s_mov_b64 exec, -1")

def desc(name, nv, ns=100):
    nv = (nv + 7) // 8 * 8
    return f""".p2align 6
.amdhsa_kernel {name}
  .amdhsa_next_free_vgpr {nv}
  .amdhsa_next_free_sgpr {ns}
  .amdhsa_accum_offset {min(nv, 256)}
  .amdhsa_group_segment_fixed_size 0
  .amdhsa_kernarg_size 112
  .amdhsa_user_sgpr_count 2
  .amdhsa_user_sgpr_kernarg_segment_ptr 1
  .amdhsa_system_sgpr_workgroup_id_x 1
  .amdhsa_float_denorm_mode_32 3
.end_amdhsa_kernel
"""

GC0 = -2.0 * 0.7978845608028654 * 1.4426950408889634
GC1 = GC0 * 0.044715
LOG2E = 1.4426950408889634

import os
OPT = os.environ.get("OPT", "").split(",")
def optval(name, default):
    return int(os.environ.get(name, default))

def gelu_vals(a, regs, tmps, k0, k1):
    n = len(regs)
    K0 = k0 if isinstance(k0, list) else [k0] * n
    K1 = k1 if isinstance(k1, list) else [k1] * n
    nt = len(tmps)
    for b in range(0, n, nt):
        idx = list(range(b, min(b + nt, n)))
        for i in idx: a(f"v_mul_f32 {v(tmps[i-b])}, {v(regs[i])}, {v(regs[i])}")
        for i in idx: a(f"v_fma_f32 {v(tmps[i-b])}, {v(tmps[i-b])}, {K1[i]}, {K0[i]}")
        for i in idx: a(f"v_mul_f32 {v(tmps[i-b])}, {v(tmps[i-b])}, {v(regs[i])}")
        for i in idx: a(f"v_exp_f32 {v(tmps[i-b])}, {v(tmps[i-b])}")
        for i in idx: a(f"v_add_f32 {v(tmps[i-b])}, 1.0, {v(tmps[i-b])}")
        for i in idx: a(f"v_rcp_f32 {v(tmps[i-b])}, {v(tmps[i-b])}")
        for i in idx: a(f"v_mul_f32 {v(regs[i])}, {v(tmps[i-b])}, {v(regs[i])}")

def gsum(a, r, t):
    a(f"v_mov_b32 v{t}, v{r}\ns_nop 1\nv_permlane32_swap_b32 v{r}, v{t}\nv_add_f32 v{r}, v{r}, v{t}")
    a(f"v_mov_b32 v{t}, v{r}\ns_nop 1\nv_permlane16_swap_b32 v{r}, v{t}\nv_add_f32 v{r}, v{r}, v{t}")

def gen_pretile(a, R=32):
    a("v_lshrrev_b32 v18, 3, v1\nv_and_b32 v19, 7, v1")
    a("v_mul_lo_u32 v20, v18, s7")
    a("v_lshl_add_u32 v20, v19, 4, v20")
    a("s_lshl_b32 s10, s7, 3")
    if "rgm" in OPT:
        for rg in range(4):
            for i in range(3):
                a(f"buffer_load_dwordx4 {v(R+16*i+4*rg,4)}, v20, s[44:47], s6 offen offset:{128*i} nt")
            if rg < 3: a("s_add_u32 s6, s6, s10")
    else:
        for i in range(3):
            if i: a("s_sub_u32 s6, s6, s11")
            for rg in range(4):
                a(f"buffer_load_dwordx4 {v(R+16*i+4*rg,4)}, v20, s[44:47], s6 offen offset:{128*i} nt")
                if rg < 3: a("s_add_u32 s6, s6, s10")
            if i == 0: a("s_mul_i32 s11, s10, 3")
    a("v_lshlrev_b32 v21, 4, v1\nv_add_u32 v22, s9, v21")
    a("v_lshrrev_b32 v23, 2, v1\nv_lshlrev_b32 v23, 7, v23\nv_and_b32 v19, 3, v1\nv_lshl_add_u32 v23, v19, 3, v23\nv_add_u32 v23, s9, v23")
    for i in range(3):
        a(f"s_waitcnt vmcnt({8 if 'rgm' not in OPT else 2+3*i})")
        for rg in range(4):
            a(f"ds_write_b128 v22, {v(R+16*i+4*rg,4)} offset:{1024*rg}")
        for tn in range(4):
            a(f"ds_read_b64_tr_b16 {v(R+48+16*i+4*tn,2)}, v23 offset:{tn*32}")
            a(f"ds_read_b64_tr_b16 {v(R+48+16*i+4*tn+2,2)}, v23 offset:{2048+tn*32}")
        a("s_waitcnt lgkmcnt(0)")
        for tn in range(4):
            a(f"buffer_store_dwordx4 {v(R+48+16*i+4*tn,4)}, v21, s[56:59], s8 offen offset:{tn*1024} sc1")
        a("s_add_u32 s8, s8, 4096")
```

```python
from common import *
from kb4 import VC, V1
FA, FB, ACC = 96, 160, 224
KF = 4 * 4160

def setup(a):
    a("s_lshl_b32 s8, s6, 1\ns_and_b32 s8, s8, 0xfffffffc")
    a(f"s_load_dword s15, {s(P_SSMD,2)}, s8")
    a("v_lshlrev_b32 v5, 3, v1\nv_add_u32 v5, s7, v5\nv_mov_b32 v18, 0\nv_mov_b32 v19, 0")
    a(f"ds_write_b64 v5, v[18:19] offset:{KF}")
    a("v_and_b32 v6, 15, v1\nv_lshrrev_b32 v7, 4, v1")
    a("v_sub_u32 v8, 3, v6\nv_and_b32 v8, 3, v8\nv_mul_u32_u24 v8, 4160, v8")
    a("v_and_b32 v9, 12, v6\nv_lshlrev_b32 v9, 1, v9\nv_sub_u32 v8, v8, v9")
    a("v_lshlrev_b32 v9, 4, v7\nv_sub_u32 v8, v8, v9")
    a(f"v_add_u32 v8, {4104-3584}, v8\nv_add_u32 v8, s7, v8")
    a("v_lshlrev_b32 v10, 5, v6\nv_sub_u32 v10, v10, v9")
    a(f"v_add_u32 v10, {KF+512+16}, v10\nv_add_u32 v10, s7, v10")
    a("v_add_u32 v11, s7, v2")
    a("v_min_u32 v12, 16, v2\nv_add_u32 v12, s7, v12\nv_add_u32 v12, 4096, v12")
    a("v_lshlrev_b32 v20, 5, v6\nv_lshl_add_u32 v20, v7, 3, v20")
    a(f"v_sub_u32 v21, {4088-3584}, v20\nv_add_u32 v21, s7, v21")
    for r in range(32): a(f"v_mov_b32 v{ACC+r}, 0")

def build(a, chunks):
    n = len(chunks)
    for c, (ad, o) in enumerate(chunks):
        b = FA + 12 * c
        a(f"ds_read_b128 {v(b,4)}, v{ad} offset:{o}")
        a(f"ds_read_b128 {v(b+4,4)}, v{ad} offset:{o+2*4160}")
        a(f"ds_read_b64 {v(b+8,2)}, v{ad} offset:{o+16}")
    for c, (ad, o) in enumerate(chunks):
        b = FA + 12 * c; d = FB + 8 * c
        a(f"s_waitcnt lgkmcnt({3*(n-1)-c})")
        for e in range(4): a(f"v_alignbit_b32 v{d+e}, v{b+4+e}, v{b+e}, 16")
        for e in range(4): a(f"v_alignbit_b32 v{d+4+e}, v{b+2+e if e < 2 else b+6+e}, v{b+4+e}, 16")
        a(f"ds_write_b128 v{ad}, {v(d,4)} offset:{o+4160}")
        a(f"ds_write_b128 v{ad}, {v(d+4,4)} offset:{o+3*4160}")

def reads(st):
    o = []
    for m in range(8):
        o.append(f"ds_read_b128 {v(FB+32*st+4*m,4)}, v10 offset:{512*m}")
        o.append(f"ds_read_b64 {v(FA+32*st+4*m,2)}, v8 offset:{512*(7-m)}")
        o.append(f"ds_read_b64 {v(FA+32*st+4*m+2,2)}, v8 offset:{512*(7-m)+8}")
    return o
def _rr():
    left = {i: list(range(i + 1)) for i in range(8)}
    out = []
    while any(left.values()):
        rec = [i for i, _ in out[-3:]]
        cand = sorted([i for i in left if left[i]], key=lambda i: (i in rec, -len(left[i])))
        i = cand[0]
        out.append((i, left[i].pop(0)))
    return out
ORDER = _rr() if "rr" in OPT else sorted([(i, m) for i in range(8) for m in range(i + 1)], key=lambda im: (max(im[1], im[0] - im[1]), im[1], im[0]))

def body(a, extra=None, last=False, step=1):
    for st in range(2):
        a("v_subrev_u32 v8, 64, v8\nv_subrev_u32 v10, 64, v10")
        a("s_waitcnt lgkmcnt(0)")
        rd = reads(1 - st) if not (last and st == 1) else []
        for n, (i, m) in enumerate(ORDER):
            a.mfma(ACC + 4 * i, FA + 32 * st + 4 * m, FB + 32 * st + 4 * (i - m))
            if n < len(rd): a(rd[n])
            if extra and n >= 24 and ((n < 32) if step == 1 else (n % 3 == 0)): extra()

def dval(a):
    a("s_lshl_b32 s13, s15, 16\ns_and_b32 s14, s15, 0xffff0000\ns_bitcmp1_b32 s6, 0\ns_cselect_b32 s13, s14, s13")

def out_tile(a, acc, kv, pk, off):
    T = 22
    a(f"v_and_b32 v{T}, 0xffff0000, v{kv+1}\nv_lshlrev_b32 v{T+1}, 16, v{kv+1}")
    a(f"v_and_b32 v{T+2}, 0xffff0000, v{kv}\nv_lshlrev_b32 v{T+3}, 16, v{kv}")
    for r in range(4): a(f"v_fmac_f32 v{acc+r}, s13, v{T+r}")
    a(f"v_cvt_pk_bf16_f32 v{pk}, v{acc}, v{acc+1}\nv_cvt_pk_bf16_f32 v{pk+1}, v{acc+2}, v{acc+3}")
    a(f"buffer_store_dwordx2 {v(pk,2)}, v20, s[56:59], s10 offen offset:{off} sc1")

def fy_addr(a):
    a(f"s_lshl_b32 s6, s6, 5\ns_add_u32 s6, s6, {FYW_OFF}")

def kv_flag_addr(a, d):
    a(f"s_lshr_b32 s{d}, s6, 6\ns_mul_i32 s9, s{d}, 86\ns_lshr_b32 s9, s9, 8\ns_mul_i32 s9, s9, {FB_STRIDE-384}\ns_lshl_b32 s{d}, s{d}, 7\ns_add_u32 s{d}, s{d}, s9\ns_add_u32 s{d}, s{d}, {FKV_OFF}")

def single(a, wait_kv, gate, extra):
    a.srd(48, P_SSMK, ACT)
    a(f"s_lshl_b32 s10, s6, 12\ns_add_u32 m0, s7, {KF+512}\ns_mul_i32 s54, s6, {KV_PITCH}\ns_add_u32 s54, s54, {KV_OFF}\ns_add_u32 s11, s54, 4")
    for i in range(4): a(f"buffer_load_dwordx4 v2, s[48:51], s10 offen offset:{i*1024} nt lds")
    setup(a)
    wait_kv()
    a("s_mov_b32 m0, s7\ns_nop 0")
    for i in range(4): a(f"buffer_load_dwordx4 v2, s[56:59], s54 offen offset:{i*1024} sc1 lds")
    a(f"s_add_u32 m0, s7, {2*4160}\ns_nop 0")
    for i in range(4): a(f"buffer_load_dwordx4 v2, s[56:59], s11 offen offset:{i*1024} sc1 lds")
    a("s_mov_b64 exec, 7\ns_add_u32 m0, s7, 4096\ns_nop 0")
    a("buffer_load_dwordx4 v3, s[56:59], s54 offen sc1 lds")
    a(f"s_add_u32 m0, s7, {2*4160+4096}\ns_nop 0")
    a("buffer_load_dwordx4 v3, s[56:59], s11 offen sc1 lds")
    a("s_mov_b64 exec, -1")
    a("s_waitcnt vmcnt(0) lgkmcnt(0)")
    a.stamp(5)
    build(a, [(11, c * 1024) for c in range(4)] + [(12, 0)])
    for t in reads(0): a(t)
    if "cvt" in OPT: a.stamp(1)
    body(a)
    gate(True)
    body(a)
    a.stamp(6)
    gate(False)
    a.stamp(7)
    body(a, extra, False, 3)
    if "cvt" in OPT: a.stamp(2)
    body(a, extra, True, 3)
    if "cvt" in OPT: a.stamp(3)
    for i in range(8): a(f"ds_read_b64 {v(FA+2*i,2)}, v21 offset:{512*(7-i)}")
    dval(a)
    a(f"s_add_u32 s10, s10, {Y_OFF}")
    a("s_waitcnt lgkmcnt(0)")
    for i in range(8): out_tile(a, ACC + 4 * i, FA + 2 * i, FB + 2 * i, 512 * i)
    fy_addr(a)

def team_k(a, base, vl, vt):
    a.srd(44, P_SSMK, ACT)
    a(f"s_add_u32 s9, s2, 448\ns_lshl_b32 s9, s9, 12\ns_sub_u32 s15, s3, 4\ns_lshl_b32 s15, s15, 10\ns_add_u32 s9, s9, s15\ns_add_u32 m0, s15, {base+KF+512}\ns_nop 0")
    a(f"buffer_load_dwordx4 v{vl}, s[44:47], s9 offen nt lds")

def team_kv(a, base):
    a(f"s_add_u32 s9, s2, 448\ns_mul_i32 s9, s9, {KV_PITCH}\ns_add_u32 s9, s9, {KV_OFF}\ns_sub_u32 s15, s3, 4\ns_lshl_b32 s15, s15, 10")
    a(f"v_add_u32 v5, s15, v2\ns_add_u32 m0, s15, {base}\ns_add_u32 s7, s9, 4")
    a("buffer_load_dwordx4 v5, s[56:59], s9 offen sc1 lds")
    a(f"s_add_u32 m0, s15, {base+2*4160}\ns_nop 0")
    a("buffer_load_dwordx4 v5, s[56:59], s7 offen sc1 lds")
    a(f"s_mov_b64 exec, 7\ns_mov_b32 m0, {base+4096}\ns_nop 0")
    a("buffer_load_dwordx4 v3, s[56:59], s9 offen sc1 lds")
    a(f"s_mov_b32 m0, {base+2*4160+4096}\ns_nop 0")
    a("buffer_load_dwordx4 v3, s[56:59], s7 offen sc1 lds")
    a("s_mov_b64 exec, -1")

def team(a, base, red, c1, c2, c3, gate, extra):
    a(f"s_mov_b32 s7, {base}\ns_sub_u32 s55, s3, 4\ns_lshl_b32 s12, s55, 10\ns_lshl_b32 s10, s6, 12")
    setup(a)
    a("v_add_u32 v11, s12, v11\ns_lshl_b32 s8, s55, 7\nv_subrev_u32 v8, s8, v8\nv_subrev_u32 v10, s8, v10\nv_subrev_u32 v21, s12, v21\nv_add_u32 v20, s12, v20")
    a(f"s_lshl_b32 s8, s55, 13\ns_add_u32 s8, s8, {red}\nv_add_u32 v26, s8, v2\ns_lshl_b32 s8, s55, 11\ns_add_u32 s8, s8, {red}\nv_add_u32 v27, s8, v2")
    a("s_waitcnt vmcnt(0)")
    a.subbar(VC, 5, 8, 4, off=c1)
    build(a, [(11, 0), (12, 0)])
    a.subbar(VC, 5, 8, 4, off=c2)
    gate()
    for t in reads(0): a(t)
    body(a, extra, True)
    for i in range(2): a(f"ds_read_b64 {v(FA+2*i,2)}, v21 offset:{512*(7-i)}")
    dval(a)
    a(f"s_add_u32 s10, s10, {Y_OFF}")
    a.nop(4)
    for i in range(8): a(f"ds_write_b128 v26, {v(ACC+4*i,4)} offset:{1024*i}")
    a.subbar(VC, 5, 8, 4, off=c3)
    for i in range(2):
        for w in range(4): a(f"ds_read_b128 {v(FB+16*i+4*w,4)}, v27 offset:{8192*w+1024*i}")
    a("s_waitcnt lgkmcnt(0)")
    for i in range(2):
        b = FB + 16 * i
        for e in range(4): a(f"v_add_f32 v{b+e}, v{b+e}, v{b+4+e}\nv_add_f32 v{b+8+e}, v{b+8+e}, v{b+12+e}")
        for e in range(4): a(f"v_add_f32 v{b+e}, v{b+e}, v{b+8+e}")
        out_tile(a, b, FA + 2 * i, FB + 32 + 2 * i, 512 * i)
    fy_addr(a)
```

```python
from common import *
import kb4, km
from g1 import gelu_pk
import conv, tail
from kb4 import Stream, mphase, gphase, h_addr, pstore, stage_x, stage_y, gen_final, gen_conv_load, paced, NS, RING, BF, MACC, KC, GT, ML_H, VC, V1

G2_WM, G2_W = 0, 2560
SLOT = 24576
G1_BASE = 76800
G1_AUX = 150528
CV_SZ = 21248
FSCR = 4 * CV_SZ
CNT = 158592
RM = CNT + 128
K6_LDS = RM + 1024
kb4.RM = RM
cG2, cX1, cX2, cFX, cSide, cH1, cA, cH2, cW4, cG1, cFH, cU, cW3, cHs, cW3a, cKV, cXs, cT1, cT2, cT3, cT0, cOwn = [4 * i for i in range(22)]
cU2 = cOwn + 16
km.cG1 = cG1

TB = G1_BASE + SLOT
W4F = optval('W4F', 432)

def last_of(a, off, n, skip):
    a(f"s_mov_b64 exec, 1\nds_add_rtn_u32 v5, v{VC}, v{V1} offset:{off}\ns_mov_b64 exec, -1")
    a("s_waitcnt lgkmcnt(0)")
    a("v_readfirstlane_b32 s7, v5")
    a(f"s_cmp_lg_u32 s7, {n-1}\ns_cbranch_scc1 {skip}")

def gen_g(a):
    BUF, ACC, STA, CSA, SQ, SM, CS, ONE, XA, WA = 32, 96, 112, 124, 140, 144, 148, 152, 184, 188
    log = []
    DM = (18, 20, 22, 28)
    a("v_lshrrev_b32 v2, 2, v1\nv_and_b32 v3, 3, v1\nv_mul_u32_u24 v4, 1152, v2")
    a("v_lshrrev_b32 v6, 5, v1\nv_lshlrev_b32 v6, 1, v6\nv_xor_b32 v6, v6, v3\nv_lshl_add_u32 v6, v6, 4, v4")
    a("s_mul_i32 s10, s60, 147456\ns_mul_i32 s9, s3, 18432\ns_add_u32 s10, s10, s9")
    a("s_lshr_b32 s8, s3, 1\ns_mul_i32 s11, s8, 18432\ns_lshl_b32 s9, s61, 7\ns_add_u32 s11, s11, s9\ns_and_b32 s9, s3, 1\ns_lshl_b32 s9, s9, 6\ns_add_u32 s11, s11, s9")
    a("s_mul_i32 s14, s62, 7\ns_add_u32 s14, s14, 1\ns_mov_b32 s12, s61")
    a("s_lshl_b32 s13, s3, 10")
    a("s_waitcnt lgkmcnt(0)")
    a.srd(48, P_Q, ACT)
    a.srd(44, P_W1, D * D * 2)
    SB = [G2_W, G2_W + SLOT, G2_W + 2 * SLOT, G1_BASE, G1_BASE + SLOT, G1_BASE + 2 * SLOT, G2_W, G2_W + SLOT, G1_BASE]
    def issue(gi):
        sl = SB[gi]
        a("s_add_u32 s12, s12, s14\ns_sub_u32 s9, s12, 9\ns_cmp_ge_u32 s12, 9\ns_cselect_b32 s12, s9, s12")
        a(f"s_lshl_b32 s15, s12, 7\ns_add_u32 s15, s15, s10\ns_add_u32 m0, s13, {sl}\ns_mul_i32 s9, s12, 73728")
        a("buffer_load_dwordx4 v6, s[48:51], s15 offen" + (" nt" if "xnt" in OPT else "") + " lds")
        a("s_add_u32 m0, m0, 8128\ns_add_u32 s9, s9, s11")
        a("buffer_load_dwordx4 v6, s[48:51], s15 offen offset:64" + (" nt" if "xnt" in OPT else "") + " lds")
        a("s_add_u32 m0, m0, 8256\ns_nop 0")
        a("buffer_load_dwordx4 v6, s[44:47], s9 offen" + (" nt" if "wnt" in OPT else "") + " lds")
        log.extend(["x", "x", f"g{gi}"])
    younger = lambda key: len(log) - 1 - log.index(key)
    issue(0); issue(1)
    if "w1t" in OPT:
        a("s_mul_i32 s8, s62, 288\ns_lshl_b32 s9, s61, 6\ns_add_u32 s8, s8, s9\ns_add_u32 s8, s8, 32\ns_mul_i32 s9, s3, 36\ns_add_u32 s8, s8, s9")
        a("v_min_u32 v7, 35, v1\nv_add_u32 v7, s8, v7\nv_subrev_u32 v8, 576, v7\nv_min_u32 v7, v7, v8\nv_mul_u32_u24 v7, 1152, v7\ns_lshl_b32 s9, s61, 7")
        a("buffer_load_dword v31, v7, s[44:47], s9 offen")
        log.append("t")
    a.srd(56, P_WS, WS_BYTES)
    a("s_cmp_lg_u32 s3, 0\ns_cbranch_scc1 G_pf")
    a("s_mov_b64 exec, 0xffff")
    a(f"v_lshl_add_u32 v7, v1, 2, v{VC}\nv_mov_b32 v8, 0\nds_write2_b32 v7, v8, v8 offset0:0 offset1:16")
    a("s_mov_b64 exec, -1")
    a("G_pf:")
    a.srd(52, P_W2, D * D * 2)
    a("v_bfe_u32 v7, v1, 4, 1\nv_lshlrev_b32 v8, 1, v7\nv_xor_b32 v8, v8, v3\nv_lshl_add_u32 v30, v8, 4, v4")
    a(f"v_lshlrev_b32 v12, 6, v2\nv_lshl_add_u32 v12, v7, 5, v12\nv_lshl_add_u32 v12, v3, 3, v12\nv_add_u32 v22, {G2_W}, v12\nv_xor_b32 v23, 32, v22")
    a(f"s_mov_b32 s66, s11\ns_lshl_b32 s67, s3, 10\ns_add_u32 s67, s67, {G2_W}")
    a("v_and_b32 v2, 15, v1\nv_lshrrev_b32 v3, 4, v1")
    a("v_bfe_u32 v4, v1, 3, 1\nv_lshlrev_b32 v4, 1, v4")
    a("v_xor_b32 v5, v4, v3\nv_lshl_add_u32 v5, v2, 2, v5\nv_lshlrev_b32 v5, 4, v5")
    a("s_and_b32 s63, s3, 3\ns_lshr_b32 s64, s3, 2\ns_and_b32 s69, s3, 1\ns_lshr_b32 s70, s63, 1\ns_lshl_b32 s71, s63, 1\ns_add_u32 s71, s71, s64")
    a("s_lshl_b32 s9, s71, 10\ns_lshl_b32 s8, s69, 13\ns_add_u32 s9, s9, s8\nv_add_u32 v5, s9, v5")
    for i, x in enumerate((0, 1024, 8192, 9216)): a(f"v_xor_b32 v{XA+i}, {x}, v5\nv_add_u32 v{XA+i}, {G2_W}, v{XA+i}")
    a("v_lshrrev_b32 v5, 1, v3\nv_lshlrev_b32 v11, 11, v5\nv_and_b32 v8, 1, v3\nv_lshl_add_u32 v11, v8, 9, v11")
    a("v_lshrrev_b32 v7, 2, v2\nv_lshl_add_u32 v11, v7, 6, v11\nv_and_b32 v7, 3, v1\nv_lshl_add_u32 v11, v7, 3, v11\nv_lshl_add_u32 v11, v8, 5, v11")
    a("s_lshl_b32 s9, s64, 10\ns_lshl_b32 s8, s69, 12\ns_add_u32 s9, s9, s8\nv_add_u32 v11, s9, v11\ns_lshl_b32 s8, s70, 5\nv_xor_b32 v11, s8, v11")
    for i, x in enumerate((0, 32, 4096, 4128)): a(f"v_xor_b32 v{WA+i}, {x}, v11\nv_add_u32 v{WA+i}, {G2_W+16384}, v{WA+i}")
    a(f"v_xor_b32 v5, v5, v4\nv_lshl_add_u32 v5, v2, 2, v5\nv_lshlrev_b32 v20, 4, v5\nv_lshl_add_u32 v20, v8, 3, v20\ns_add_u32 s9, s13, {G1_BASE}\nv_add_u32 v20, s9, v20\nv_xor_b32 v21, 32, v20")
    a("v_lshlrev_b32 v13, 4, v2\nv_lshlrev_b32 v18, 4, v3\nv_lshlrev_b32 v25, 4, v1")
    a(f"s_lshl_b32 s9, s71, 8\ns_add_u32 s9, s9, {G1_AUX}\nv_add_u32 v26, s9, v13\nv_xor_b32 v27, 256, v26")
    a(f"s_lshl_b32 s9, s64, 8\ns_lshl_b32 s8, s70, 7\ns_add_u32 s9, s9, s8\ns_add_u32 s9, s9, {G1_AUX+2048}\nv_add_u32 v28, s9, v18\nv_xor_b32 v29, 128, v28\ns_lshl_b32 s8, s69, 6\nv_add_u32 v24, s8, v28")
    a(f"s_lshl_b32 s65, s60, 3\ns_add_u32 s65, s65, s71\ns_lshl_b32 s68, s65, 8\ns_add_u32 s68, s68, {ST1_OFF}\ns_xor_b32 s98, s65, 1")
    a(f"s_lshl_b32 s9, s61, 11\ns_lshl_b32 s8, s64, 10\ns_add_u32 s9, s9, s8\ns_add_u32 s9, s9, {H_OFF}\ns_mul_i32 s65, s65, 18432\ns_add_u32 s65, s65, s9\ns_mul_i32 s98, s98, 18432\ns_add_u32 s98, s98, s9")
    a(f"v_mov_b32 v160, {fh(GC0)}\nv_mov_b32 v161, {fh(GC0)}\nv_mov_b32 v162, {fh(GC1)}\nv_mov_b32 v163, {fh(GC1)}\nv_mov_b32 v164, 1.0\nv_mov_b32 v165, 1.0")
    for r in range(4): a(f"v_mov_b32 v{ONE+r}, 0x3f803f80")
    a("v_lshlrev_b32 v7, 2, v3\nv_sub_u32 v19, v2, v7")
    def w2issue(part):
        for i in range(3 * part, 3 * part + 3):
            a(f"s_add_u32 m0, s67, {8192*i}\ns_add_u32 s9, s66, {73728*i}")
            a("buffer_load_dwordx4 v30, s[52:55], s9 offen" + (" nt" if "w2nt" in OPT else "") + " lds")
            log.append("w")
    def reads(gi):
        o0 = SB[gi] - (G2_W if SB[gi] < G1_BASE else G1_BASE)
        b = BUF + 32 * (gi & 1)
        o = []
        for k2 in range(2):
            for mi in range(2): o.append(f"ds_read_b128 {v(b+16*k2+4*mi,4)}, v{XA+2*k2+mi} offset:{o0}")
            for t in range(2):
                for jh in range(2): o.append(f"ds_read_b64_tr_b16 {v(b+16*k2+8+4*t+2*jh,2)}, v{WA+2*k2+t} offset:{o0+256*jh}")
        return o
    for r in range(4): a(f"v_cmp_eq_u32 {s(DM[r],2)}, {r}, v19")
    fin = [f"v_cndmask_b32 v{STA}, 0, v{SQ}, {s(DM[0],2)}"] + [f"v_cndmask_b32 v{STA}, v{STA}, v{SQ+r}, {s(DM[r],2)}" for r in range(1, 4)]
    fin += [f"v_mul_f32 v{STA+2}, {fh(-1.0/D)}, v{SM}"]
    fin += [f"v_mov_b32 v7, v{STA}", "s_nop 1", f"v_permlane32_swap_b32 v{STA}, v7", f"v_add_f32 v{STA}, v{STA}, v7"]
    fin += [f"v_mov_b32 v7, v{STA}", "s_nop 1", f"v_permlane16_swap_b32 v{STA}, v7", f"v_add_f32 v{STA}, v{STA}, v7"]
    fin += f"v_mul_f32 v7, {fh(1.0/D)}, v{STA}\nv_fma_f32 v7, -v{STA+2}, v{STA+2}, v7\nv_max_f32 v7, 0, v7\nv_add_f32 v8, {fh(EPS)}, v7\nv_rsq_f32 v{STA}, v8\ns_nop 0".split("\n")
    fin += f"v_mul_f32 v8, v{STA}, v{STA}\nv_fmaak_f32 v8, v8, v7, {fh(EPS)}\nv_rsq_f32 v8, v8\nv_mul_f32 v{STA+1}, v{STA+2}, v{STA}\nv_mul_f32 v{STA+3}, v8, v{STA}".split("\n")
    LP, LQ = optval("LP", 2), optval("LQ", 3)
    log0 = list(log); fin0 = list(fin)
    a("s_cmp_ge_u32 s3, 4\ns_cbranch_scc1 G_lq")
    for role in "PQ":
        log[:] = log0; fin[:] = fin0
        LA = LP if role == "P" else LQ
        if role == "Q": a("G_lq:")
        for g in range(2, LA): issue(g)
        for gi in range(10):
            rd = []
            if gi < 9:
                if gi in (3, 6, 8):
                    for r in range(8): a(f"v_add_u32 v{XA+r}, {(G1_BASE-G2_W) if gi != 6 else -(G1_BASE-G2_W)}, v{XA+r}")
                a(f"s_waitcnt vmcnt({younger(f'g{gi}')}) lgkmcnt(0)\ns_barrier")
                if gi == 0 or "g1t" in OPT: a.stamp(1 + gi)
                rd = reads(gi)
            else: a("s_waitcnt lgkmcnt(0)")
            def mem():
                if gi + LA < 9: issue(gi + LA)
            for _ in range(optval("RF", 0)):
                if rd: a(rd.pop(0))
            if role == "P" and gi < 7: mem()
            if gi > 0:
                b = BUF + 32 * ((gi - 1) & 1)
                z = "0" if gi == 1 else None
                mm = [(SQ, b, b, z), (SM, ONE, b, z), (SQ, b + 16, b + 16, None), (SM, ONE, b + 16, None), (CS, b + 8, ONE, z)]
                mm += [(ACC + 8 * mi + 4 * t, b + 16 * k2 + 8 + 4 * t, b + 16 * k2 + 4 * mi, z if k2 == 0 else None) for k2 in range(2) for t in range(2) for mi in range(2)]
                for n, (d, x, y, c) in enumerate(mm):
                    if rd: a(rd.pop(0))
                    a.mfma(d, x, y, c)
                    if gi == 9 and n == 5: a.nop(5)
                    if gi == 9 and n >= 5:
                        for _ in range(5):
                            if fin: a(fin.pop(0))
            for r in rd: a(r)
            if role == "Q": mem()
            if gi in (6, 7, 8): w2issue((2, 0, 1)[gi - 6])
            if gi == 8: a(f"s_load_dword s69, {s(P_DBG,2)}, 0")
        if role == "P": a("s_branch G_lj")
    a("G_lj:")
    for x in fin: a(x)
    a(f"ds_write_b128 v24, {v(CS,4)}")
    a(f"ds_write_b128 v26, {v(STA,4)}")
    a("s_waitcnt lgkmcnt(0)\ns_barrier")
    a.stamp(2 if "g1t" not in OPT else 10)
    if "g1t" in OPT: a.end()
    for t in range(2):
        for q in range(2): a(f"ds_read_b128 {v(CSA+8*t+4*q,4)}, v{28+t} offset:{64*q}")
    a(f"ds_read_b128 {v(STA+4,4)}, v27")
    a(f"s_mov_b32 s63, {W2M_OFF}\nv_min_u32 v31, 240, v25\nv_mov_b32 v192, 0\ns_cmp_eq_u32 s69, 0\ns_cselect_b32 s9, 0, s3\ns_cmp_lg_u32 s9, 7\ns_cbranch_scc1 G_w0")
    a("buffer_load_dwordx4 v[192:195], v25, s[56:59], s63 offen sc1\nbuffer_load_dwordx4 v[196:199], v25, s[56:59], s63 offen offset:1024 sc1\nbuffer_load_dwordx4 v[200:203], v31, s[56:59], s63 offen offset:2048 sc1")
    a("G_w0:")
    a("s_mov_b32 s100, 2\ns_cmp_lt_u32 s3, 4\ns_cbranch_scc1 G_t0\ns_cmp_ge_u32 s2, 128\ns_cbranch_scc1 G_t0\ns_mov_b32 s100, 0")
    conv.team_k(a, TB, 25, 5)
    a("G_t0:")
    a("s_cmp_lg_u32 s61, 0\ns_cbranch_scc1 G_ns")
    a(f"s_mov_b64 exec, 0xffff\nbuffer_store_dwordx4 {v(STA,4)}, v13, s[56:59], s68 offen sc1\ns_mov_b64 exec, -1")
    a("G_ns:")
    a(f"v_mov_b32 v{STA+8}, v{STA+2}\nv_mov_b32 v{STA+9}, v{STA+2}\nv_mov_b32 v{STA+10}, v{STA+3}\nv_mov_b32 v{STA+11}, v{STA+3}")
    a("s_waitcnt lgkmcnt(0)")
    for t in range(2):
        for e in range(0, 4, 2): a(f"v_pk_add_f32 {v(CSA+8*t+e,2)}, {v(CSA+8*t+e,2)}, {v(CSA+8*t+4+e,2)}")
    a(f"v_mov_b32 v{STA+4}, v{STA+6}\nv_mov_b32 v{STA+5}, v{STA+6}\nv_mov_b32 v{STA+6}, v{STA+7}")
    for mi in range(2):
        c = STA + 8 - 4 * mi
        regs = [ACC + 8 * mi + e for e in range(8)]
        for e in range(0, 8, 2): a(f"v_pk_fma_f32 {v(regs[e],2)}, {v(c,2)}, {v(CSA+8*(e>>2)+(e&3),2)}, {v(regs[e],2)}")
        for e in range(0, 8, 2): a(f"v_pk_mul_f32 {v(regs[e],2)}, {v(regs[e],2)}, {v(c+2,2)}")
        gelu_pk(a, regs, list(range(168, 176)), "v[160:161]", "v[162:163]", "v[164:165]")
        l1 = a.lab("GS"); l2 = a.lab("GT")
        a(f"s_cmp_lg_u32 s70, 0\ns_cbranch_scc1 {l1}")
        for e in range(4): a(f"v_cvt_pk_bf16_f32 v{176+4*mi+e}, v{regs[2*e]}, v{regs[2*e+1]}")
        a(f"s_branch {l2}\n{l1}:")
        for e in range(4): a(f"v_cvt_pk_bf16_f32 v{176+4*mi+(e^2)}, v{regs[2*e]}, v{regs[2*e+1]}")
        a(f"{l2}:")
        a(f"buffer_store_dwordx4 {v(176+4*mi,4)}, v25, s[56:59], s{65 if mi == 0 else 98} offen sc1")
    a.stamp(3)
    HB, AR, AC2 = 32, 104, 224
    a("v_lshlrev_b32 v2, 4, v1\nv_add_u32 v3, 4096, v2\nv_lshlrev_b32 v4, 2, v1")
    a("s_lshl_b32 s8, s60, 3\ns_add_u32 s8, s8, s3")
    a("v_and_b32 v11, 1, v1\nv_lshlrev_b32 v11, 6, v11\nv_add_u32 v11, v11, v18")
    a("v_add_u32 v28, 36864, v22\nv_add_u32 v29, 36864, v23")
    a("v_and_b32 v8, 15, v1\ns_lshl_b32 s10, s8, 4\nv_add_u32 v8, s10, v8\nv_lshlrev_b32 v9, 4, v18\ns_movk_i32 s13, 18432\nv_mov_b32 v10, 0x80000000")
    for gam, sh in enumerate((-1, 1, -2, 2)):
        a(f"v_add_u32 v5, {sh}, v8\nv_cmp_gt_u32 vcc, {S}, v5\nv_lshrrev_b32 v6, 4, v5\nv_mad_u32_u24 v6, v6, s13, v9\nv_and_b32 v5, 15, v5\nv_lshl_add_u32 v6, v5, 4, v6")
        a(f"v_cndmask_b32 v{24+gam}, v10, v6, vcc")
    a(f"s_mul_i32 s11, s8, 18432\ns_lshl_b32 s9, s61, 11\ns_add_u32 s11, s11, s9\ns_add_u32 s11, s11, {X1_OFF}")
    a(f"s_mul_i32 s6, s60, {FB_STRIDE}\ns_add_u32 s6, s6, {FH_OFF}\ns_lshl_b32 s10, s3, 8\ns_add_u32 s10, s10, {G1_AUX}\nv_add_u32 v13, s10, v13\ns_mov_b32 s14, {H_OFF}")
    a("ds_read_b64 v[18:19], v13")
    a("s_cmp_lg_u32 s69, 0\ns_cbranch_scc1 G_zk")
    a.zcheck(14, 9, False)
    a("G_zk:")
    G2E = "g2l" not in OPT
    if not G2E: a("s_waitcnt vmcnt(0)")
    def hsig():
        last_of(a, cHs, 8, "G_hs")
        a.sadd(6, 7)
        a("G_hs:")
        a.stamp(4)
    if not G2E: hsig()
    else: a("s_waitcnt vmcnt(2)")
    a("s_cmp_lg_u32 s3, 7\ns_cbranch_scc1 G_wm")
    a("s_mov_b32 s13, 0x20000")
    a("W2_m:")
    a("v_min3_u32 v6, v192, v196, v200\nv_cmp_eq_u32 vcc, 0, v6\ns_cbranch_vccz W2_n")
    a("buffer_load_dwordx4 v[192:195], v2, s[56:59], s63 offen sc1\nbuffer_load_dwordx4 v[196:199], v2, s[56:59], s63 offen offset:1024 sc1\nbuffer_load_dwordx4 v[200:203], v31, s[56:59], s63 offen offset:2048 sc1")
    a("s_waitcnt vmcnt(0)\ns_sleep 2\ns_sub_u32 s13, s13, 1\ns_cbranch_scc0 W2_m")
    a("W2_n:")
    a(f"ds_write_b128 v2, v[192:195] offset:{G2_WM}\nds_write_b128 v2, v[196:199] offset:{G2_WM+1024}\nds_write_b128 v31, v[200:203] offset:{G2_WM+2048}")
    a("s_waitcnt lgkmcnt(0)")
    a("G_wm:")
    if G2E:
        a("s_waitcnt vmcnt(0)")
        hsig()
    a("s_barrier")
    NA = 6
    def ard(ks):
        b = AR + 20 * (ks % NA)
        o = [f"ds_read_b128 {v(b,4)}, v11 offset:{G2_WM+128*ks}"]
        for t in range(4):
            for jh in range(2):
                off = ((ks * 2 + jh) * 2 + (t >> 1)) * 1024
                ad = 22 + (t & 1)
                if off >= 36864: off -= 36864; ad += 6
                o.append(f"ds_read_b64_tr_b16 {v(b+4+4*t+2*jh,2)}, v{ad} offset:{off}")
        return o
    for ks in range(NA):
        for r in ard(ks): a(r)
    for t in range(4): a(f"ds_read_b64 {v(244+2*t,2)}, v{20+(t&1)} offset:{8192*(t>>1)}")
    a("s_cmp_lg_u32 s3, 1\ns_cbranch_scc1 G2_hw")
    a.cpoll(6, 9, 48, 13, 1)
    a("G2_hw:")
    a("s_cmp_lg_u32 s100, 0\ns_cbranch_scc1 G_t1")
    a(f"s_add_u32 s7, s2, 448\ns_lshr_b32 s7, s7, 6\ns_lshl_b32 s7, s7, 7\ns_add_u32 s99, s7, {FKV_OFF+2*(FB_STRIDE-384)}")
    a("G_t1:")
    a(f"s_sub_u32 s7, s6, {FB_STRIDE}\ns_add_u32 s12, s6, {FB_STRIDE}\ns_cmp_eq_u32 s3, 0\ns_cselect_b32 s12, s7, s12")
    a("s_waitcnt lgkmcnt(0)\ns_barrier")
    a("s_add_u32 s7, s8, 1\ns_and_b32 s9, s7, 7\ns_cmp_ge_u32 s9, 2\ns_cbranch_scc1 G2_hg\ns_and_b32 s7, s7, 127\ns_cmp_lt_u32 s7, 2\ns_cbranch_scc1 G2_hg")
    a.cpoll(12, 9, 48, 13, 1)
    a("G2_hg:")
    a(f"s_cmp_lg_u32 s100, 0\ns_cbranch_scc1 G_t3\ns_load_dword s49, {s(P_WS,2)}, s99\nG_t3:")
    a.stamp(5)
    hl = []
    for ks in range(18):
        pre = "s_add_u32 s14, s14, 4096\n" if ks and ks % 4 == 0 else ""
        g0, g1_ = (2 * ks) // 9, (2 * ks + 1) // 9
        if g0 == g1_: hl.append((pre + f"buffer_load_dwordx4 {v(HB+4*ks,4)}, v{24+g0}, s[56:59], s14 offen offset:{(ks%4)*1024} sc1", 1))
        else: hl.append((pre + f"buffer_load_dwordx2 {v(HB+4*ks,2)}, v{24+g0}, s[56:59], s14 offen offset:{(ks%4)*1024} sc1\nbuffer_load_dwordx2 {v(HB+4*ks+2,2)}, v{24+g1_}, s[56:59], s14 offen offset:{(ks%4)*1024+8} sc1", 2))
    if 'hpl' in OPT: hl = [(x.replace(' sc1', ''), n) for x, n in hl]
    HD = optval("HD", 5)
    log2 = []
    def hissue(ks):
        a(hl[ks][0]); log2.extend(["x"] * (hl[ks][1] - 1) + [ks])
    for ks in range(HD): hissue(ks)
    for ks in range(18):
        lg = "" if ks < NA else f" lgkmcnt({min(15, 9*min(NA-1, 17-ks))})"
        a(f"s_waitcnt vmcnt({len(log2)-1-log2.index(ks)}){lg}")
        if ks + HD < 18: hissue(ks + HD)
        if ks == 1:
            a("s_cmp_lg_u32 s100, 0\ns_cbranch_scc1 G_t2\ns_waitcnt lgkmcnt(0)\ns_cmp_eq_u32 s49, 0\ns_cbranch_scc1 G_t2\ns_mov_b32 s100, 1")
            conv.team_kv(a, TB)
            a("G_t2:")
        rd = ard(ks + NA) if ks + NA < 18 else []
        b = AR + 20 * (ks % NA)
        for t in range(5):
            a.mfma(AC2 + 4 * t, b + 4 * t, HB + 4 * ks, "0" if ks == 0 else None)
            for _ in range(1 if t == 0 else 2):
                if rd: a(rd.pop(0))
    a.stamp(6)
    for e in range(8): a(f"v_lshlrev_b32 v{HB+2*e}, 16, v{244+e}\nv_and_b32 v{HB+2*e+1}, 0xffff0000, v{244+e}")
    a(f"v_add_f32 v9, v{AC2}, v{AC2+1}")
    a("v_sub_f32 v28, v19, v9\nv_sub_f32 v29, v19, v9\nv_mov_b32 v19, v18\nv_mov_b32 v10, 0\nv_mov_b32 v11, 0")
    for p in range(2):
        for e in range(0, 8, 2): a(f"v_pk_fma_f32 {v(HB+8*p+e,2)}, {v(HB+8*p+e,2)}, v[18:19], v[28:29]")
        for e in range(0, 8, 2): a(f"v_pk_add_f32 {v(HB+8*p+e,2)}, {v(HB+8*p+e,2)}, {v(AC2+4+8*p+e,2)}")
        for e in range(4): a(f"v_cvt_pk_bf16_f32 v{AR+4*p+e}, v{HB+8*p+2*e}, v{HB+8*p+2*e+1}")
        a(f"buffer_store_dwordx4 {v(AR+4*p,4)}, v2, s[56:59], s11 offen offset:{p*1024} sc1")
    for e in range(0, 16, 2): a(f"v_pk_fma_f32 v[10:11], {v(HB+e,2)}, {v(HB+e,2)}, v[10:11]")
    a("v_add_f32 v10, v10, v11")
    gsum(a, 10, 11)
    a(f"s_mul_i32 s10, s60, 9\ns_add_u32 s10, s10, s61\ns_lshl_b32 s10, s10, 9\ns_lshl_b32 s12, s3, 6\ns_add_u32 s10, s10, s12\ns_add_u32 s10, s10, {SS_OFF}")
    a(f"s_lshl_b32 s12, s8, 6\ns_add_u32 s12, s12, {MEAN_OFF}")
    a("s_mov_b64 exec, 0xffff")
    a("buffer_store_dword v10, v4, s[56:59], s10 offen sc1")
    a("s_cmp_lg_u32 s61, 0\ns_cbranch_scc1 G2_m")
    a("buffer_store_dword v9, v4, s[56:59], s12 offen sc1")
    a("G2_m:")
    a("s_mov_b64 exec, -1")
    a(f"s_sub_u32 s6, s6, {FH_OFF-FX_OFF}")
    consts(a)
    a("s_waitcnt vmcnt(0)")
    last_of(a, cG2, 8, "G_xs")
    a.sadd(6, 7)
    a("G_xs:")
    a.stamp(7)

def gen_stats(a):
    R = 32
    a("v_lshrrev_b32 v2, 2, v1\nv_and_b32 v3, 3, v1\nv_mul_u32_u24 v4, 1152, v2\nv_lshl_add_u32 v4, v3, 4, v4")
    a("s_mul_i32 s7, s6, 18432")
    a.srd(44, P_Q, ACT)
    for i in range(18): a(f"buffer_load_dwordx4 {v(R+4*i,4)}, v4, s[44:47], s7 offen offset:{64*i}")
    a("s_barrier")
    a("v_mov_b32 v8, 0x3f803f80")
    for r in range(4): a(f"v_mov_b32 v{20+r}, 0")
    for i in range(18):
        if i % 3 == 0: a(f"s_waitcnt vmcnt({15-i})")
        for d in range(4):
            a(f"v_dot2c_f32_bf16 v{20+(d&1)}, v{R+4*i+d}, v8\nv_dot2c_f32_bf16 v{22+(d&1)}, v{R+4*i+d}, v{R+4*i+d}")
    a.ldsadd(VC, V1, cG1)
    a("v_add_f32 v20, v20, v21\nv_add_f32 v22, v22, v23\ns_nop 1")
    for qp in ("[1,0,3,2]", "[2,3,0,1]"):
        a(f"v_add_f32_dpp v20, v20, v20 quad_perm:{qp} row_mask:0xf bank_mask:0xf")
        a(f"v_add_f32_dpp v22, v22, v22 quad_perm:{qp} row_mask:0xf bank_mask:0xf")
        a("s_nop 1")
    a(f"v_mul_f32 v26, {fh(-1.0/D)}, v20\nv_mul_f32 v22, {fh(1.0/D)}, v22")
    a("v_fma_f32 v22, -v26, v26, v22\nv_max_f32 v22, 0, v22")
    a(f"v_add_f32 v21, {fh(EPS)}, v22\nv_rsq_f32 v24, v21\ns_nop 0")
    a(f"v_mul_f32 v21, v24, v24\nv_fmaak_f32 v21, v21, v22, {fh(EPS)}\nv_rsq_f32 v21, v21")
    a("v_mul_f32 v25, v26, v24\nv_mul_f32 v27, v21, v24\nv_or_b32 v24, 1, v24")
    a(f"v_lshlrev_b32 v5, 4, v2\ns_lshl_b32 s7, s6, 8\ns_add_u32 s7, s7, {ST1_OFF}")
    a.zcheck(14, 9, False)
    a("s_mov_b32 exec_lo, 0x11111111\ns_mov_b32 exec_hi, 0x11111111")
    a("buffer_store_dwordx4 v[24:27], v5, s[56:59], s7 offen sc1")
    a("s_mov_b64 exec, -1")

def gen_colsum(a):
    R = 32
    a("s_mul_i32 s7, s6, 57\ns_lshr_b32 s7, s7, 9\ns_mul_i32 s8, s7, 9\ns_sub_u32 s8, s6, s8")
    a("v_lshrrev_b32 v2, 3, v1\nv_and_b32 v3, 7, v1\nv_mul_u32_u24 v4, 1152, v2\nv_lshl_add_u32 v4, v3, 4, v4")
    a("s_mul_i32 s10, s7, 165888\ns_lshl_b32 s11, s8, 7\ns_add_u32 s10, s10, s11")
    a.srd(44, P_W1, D * D * 2)
    for i in range(18):
        a(f"buffer_load_dwordx4 {v(R+4*i,4)}, v4, s[44:47], s10 offen\ns_add_u32 s10, s10, 9216")
    a("s_barrier")
    for i in range(18):
        if i % 3 == 0: a(f"s_waitcnt vmcnt({15-i})")
        d = 20 if i == 0 else 104
        for e in range(4): a(f"v_lshlrev_b32 v{d+2*e}, 16, v{R+4*i+e}\nv_and_b32 v{d+2*e+1}, 0xffff0000, v{R+4*i+e}")
        if i:
            for e in range(4): a(f"v_pk_add_f32 {v(20+2*e,2)}, {v(20+2*e,2)}, {v(104+2*e,2)}")
    a.ldsadd(VC, V1, cG1)
    for e in range(8): a(f"v_add_f32_dpp v{20+e}, v{20+e}, v{20+e} row_ror:8 row_mask:0xf bank_mask:0xf")
    for e in range(8): gsum(a, 20 + e, 5)
    for e in range(8): a(f"v_or_b32 v{20+e}, 1, v{20+e}")
    a(f"v_lshlrev_b32 v5, 5, v1\ns_mul_i32 s7, s7, 2304\ns_lshl_b32 s8, s8, 8\ns_add_u32 s7, s7, s8\ns_add_u32 s7, s7, {CSUM_OFF}")
    a.zcheck(14, 9, False)
    a("s_mov_b64 exec, 0xff")
    a("buffer_store_dwordx4 v[20:23], v5, s[56:59], s7 offen sc1\nbuffer_store_dwordx4 v[24:27], v5, s[56:59], s7 offen offset:16 sc1")
    a("s_mov_b64 exec, -1")

def consts(a):
    if "nf1" in OPT: a("s_mov_b32 s4, s96\ns_mov_b32 s5, s97")
    elif "nf2" in OPT:
        a("s_and_b32 s4, s96, 3\ns_lshl_b32 s4, s4, 1\ns_and_b32 s7, s97, 1\ns_add_u32 s4, s4, s7\ns_lshr_b32 s5, s96, 2\ns_lshl_b32 s5, s5, 4\ns_lshr_b32 s7, s97, 1\ns_add_u32 s5, s5, s7")
    else:
        a("s_and_b32 s4, s96, 1\ns_lshl_b32 s4, s4, 2\ns_and_b32 s7, s97, 3\ns_add_u32 s4, s4, s7\ns_lshr_b32 s5, s96, 1\ns_lshl_b32 s5, s5, 3\ns_lshr_b32 s7, s97, 2\ns_add_u32 s5, s5, s7")
    km.consts2(a)

def gen_f(a, stP):
    a("s_cmp_lg_u32 s3, 0\ns_cbranch_scc1 F_pf")
    a("s_mov_b64 exec, 0xffff")
    a(f"v_lshl_add_u32 v7, v1, 2, v{VC}\nv_mov_b32 v8, 0\nds_write2_b32 v7, v8, v8 offset0:0 offset1:16")
    a("s_mov_b64 exec, -1")
    a("F_pf:")
    a(f"s_mul_i32 s61, s3, {CV_SZ}\ns_lshl_b32 s7, s3, 12\ns_add_u32 s7, s7, {FSCR-4*4096}\ns_cmp_ge_u32 s3, 4\ns_cselect_b32 s61, s7, s61")
    a("s_mul_i32 s12, s3, 112\ns_add_u32 s12, s12, s60\ns_mov_b32 s13, s61")
    a("s_waitcnt lgkmcnt(0)")
    a.srd(56, P_WS, WS_BYTES)
    a("s_cmp_eq_u32 s99, 1\ns_cbranch_scc1 F_pt\ns_barrier")
    a("s_cmp_ge_u32 s12, 306\ns_cbranch_scc1 F_pt")
    a("s_setprio 2\ns_cmp_lt_u32 s12, 288\ns_cbranch_scc1 F_kv")
    a("s_sub_u32 s6, s12, 288")
    km.gen_meantile(a)
    a.ldsadd(VC, V1, cKV)
    a("s_branch F_done")
    a("F_kv:\ns_mov_b32 s6, s12")
    if "nobulk" in OPT: a("s_sleep 100\ns_branch F_end")
    st = a.stamps; a.stamps = False
    km.gen_kv(a)
    a.stamps = st
    a.stamp(5)
    a(f"s_mul_i32 s11, s8, {FB_STRIDE}\ns_add_u32 s11, s11, {FKC_OFF}")
    a("s_branch F_sig")
    a("F_pt:")
    if "nobulk" in OPT or "nopt" in OPT: a("s_sleep 100\ns_branch F_end")
    a(f"s_cmp_lt_u32 s12, {optval('FUN', 450)}\ns_cbranch_scc1 F_job\ns_mov_b32 s8, {optval('FJW', 4)}")
    if "fjk" in OPT: a.ldswait(VC, 5, 7, 1, cXs, sleep=4)
    if "fj2" in OPT: a("s_cmp_ge_u32 s3, 6\ns_cselect_b32 s8, 6, s8")
    a.ldswait(VC, 5, 7, "s8", cKV, sleep=4)
    a("F_job:")
    a("s_sub_u32 s12, s12, 306\ns_and_b32 s62, s12, 7\ns_lshr_b32 s12, s12, 3\ns_mov_b32 s9, s61")
    n0 = len(a.L)
    km.job_setup(a, "JS")
    a.L[n0:] = [x.replace("s96", "s62") for x in a.L[n0:]]
    gen_pretile(a, 128)
    a("s_mov_b32 s6, s98")
    a(f"s_add_u32 s11, s6, {FCNT}")
    a("F_sig:")
    a.zcheck(14, 13)
    a.ldsadd(VC, V1, cKV)
    a.stamp(6)
    a.sarrive(6, "s100", 8, 11)
    a("F_done:")
    a.stamp(2)
    a("s_cmp_lt_u32 s3, 4\ns_cbranch_scc1 F_cv")
    a(f"s_mul_i32 s8, s96, {FB_STRIDE}\ns_add_u32 s8, s8, {FKC_OFF+128}\ns_mov_b32 s12, 1\ns_atomic_add s12, {s(P_WS,2)}, s8 glc\ns_waitcnt lgkmcnt(0)")
    a("s_lshl_b32 s12, s12, 3\ns_add_u32 s12, s12, s96\ns_add_u32 s12, s12, 896\ns_cmp_lt_u32 s12, 1170\ns_cbranch_scc1 F_job")
    a("F_end:")
    if "g1t" in OPT: a.end()
    a("v_lshlrev_b32 v2, 4, v1\nv_add_u32 v3, 4096, v2\nv_lshlrev_b32 v4, 2, v1")
    consts(a)
    a("s_branch K6_q")
    a("F_cv:")
    if "g1t" in OPT: a.end()
    a("v_lshlrev_b32 v2, 4, v1\nv_add_u32 v3, 4096, v2\nv_lshlrev_b32 v4, 2, v1")
    consts(a)
    a("s_lshl_b32 s6, s60, 2\ns_add_u32 s6, s6, s3\ns_mov_b32 s7, s61\ns_setprio 3")
    def wait_kv():
        a("s_cmp_lg_u32 s3, 0\ns_cbranch_scc1 F_kw")
        conv.kv_flag_addr(a, 8)
        a.cpoll(8, 1, 44, 13, 2)
        a.ldsadd(VC, V1, cXs)
        a("F_kw:")
        a.ldswait(VC, 5, 8, 1, cXs)
        a.stamp(3)
    def gate(pre):
        if pre:
            a(f"s_add_u32 s55, s70, 128\ns_load_dword s53, {s(P_WS,2)}, s55")
            return
        a("s_cmp_lg_u32 s53, 0\ns_cbranch_scc1 F_w3")
        a.cpoll(55, 1, 44, 13, 8)
        a("F_w3:")
    conv.single(a, wait_kv, gate, stP.issue)
    assert stP.issued == 16
    a.stamp(4)
    a("v_mov_b32 v5, 2\ns_mov_b32 s98, s6")
    a.ldsadd(VC, 5, cG2)
    a("s_branch K6_p2")

def gen_k6(a, name):
    fine = "fine" in OPT
    a(f".p2align 8\n{name}:\nK6_start:")
    a("s_cmp_ge_u32 s2, 256\ns_cbranch_scc1 K6_end")
    a.stamp_init()
    if "skew" in OPT:
        a("s_mul_i32 s4, s2, 5\ns_and_b32 s4, s4, 7\nSK_l:\ns_sub_u32 s4, s4, 1\ns_cbranch_scc1 SK_d\ns_sleep 12\ns_branch SK_l\nSK_d:")
    a.kernargs()
    a("v_lshrrev_b32 v2, 6, v0\nv_and_b32 v1, 63, v0")
    a("v_readfirstlane_b32 s3, v2")
    a("s_and_b32 s96, s2, 7\ns_lshr_b32 s97, s2, 3\ns_mov_b32 s101, 1\ns_mov_b32 s99, 0")
    a(f"v_mov_b32 v{VC}, {CNT}\nv_mov_b32 v{V1}, 1")
    a("s_sub_u32 s60, s2, 144\ns_cmp_lt_u32 s97, 18\ns_cbranch_scc1 K6_g")
    if "now12" not in OPT:
        a("s_cmp_lg_u32 s3, 5\ns_cbranch_scc1 K6_n5\ns_mul_i32 s8, s60, 6016\nv_min_u32 v2, 46, v1\nv_lshlrev_b32 v2, 7, v2\nv_add_u32 v2, s8, v2\nv_min_u32 v2, 663424, v2\ns_waitcnt lgkmcnt(0)")
        a(f"global_load_dword v30, v2, {s(P_W1,2)}\nglobal_load_dword v31, v2, {s(P_W2,2)}\ns_branch K6_f\nK6_n5:")
    a("s_cmp_lt_u32 s3, 6\ns_cbranch_scc1 K6_f\ns_cmp_eq_u32 s3, 7\ns_cbranch_scc1 K6_pf")
    a(f"s_sub_u32 s11, 255, s2\ns_cmp_ge_u32 s11, {FLAG_WAVES}\ns_cbranch_scc1 K6_f")
    a(f"v_lshrrev_b32 v7, 5, v1\nv_mul_u32_u24 v7, {FB_STRIDE-512}, v7\nv_lshl_add_u32 v7, v1, 4, v7\nv_lshlrev_b32 v6, 4, v1")
    a("v_mov_b32 v8, 0\nv_mov_b32 v9, 0\nv_mov_b32 v10, 0\nv_mov_b32 v11, 0")
    a(f"s_lshl_b32 s8, s11, 12\ns_add_u32 s8, s8, {W2M_OFF}\ns_mul_i32 s9, s11, {4*FB_STRIDE}\ns_add_u32 s9, s9, {FLAG_OFF}\ns_add_u32 s10, s9, {2*FB_STRIDE}")
    a("s_waitcnt lgkmcnt(0)")
    a.srd(56, P_WS, WS_BYTES)
    for i in range(4): a(f"buffer_store_dwordx4 v[8:11], v6, s[56:59], s8 offen offset:{1024*i} sc1")
    a("buffer_store_dwordx4 v[8:11], v7, s[56:59], s9 offen sc1\nbuffer_store_dwordx4 v[8:11], v7, s[56:59], s10 offen sc1")
    a("s_barrier\ns_mov_b32 s99, 1\ns_mov_b32 s8, 1\ns_waitcnt vmcnt(0)")
    a(f"s_atomic_add s8, {s(P_DBG,2)}, 128 glc\ns_waitcnt lgkmcnt(0)\ns_cmp_lg_u32 s8, {FLAG_WAVES-1}\ns_cbranch_scc1 K6_f")
    a(f"s_atomic_add s101, {s(P_DBG,2)}, 0")
    a.stamp(1)
    a("s_branch K6_f")
    a("K6_pf:")
    a("s_getpc_b64 s[8:9]\nF_pc:")
    a("s_sub_u32 s10, s97, 18\nv_min_u32 v2, 39, v1\nv_mul_u32_u24 v2, 14, v2\nv_add_lshl_u32 v2, s10, v2, 7\nv_min_u32 v2, CODE_END-F_pc-4, v2")
    a("global_load_dword v31, v2, s[8:9]")
    a("s_branch K6_f")
    a("K6_g:")
    a("s_cmp_ge_u32 s97, 9\ns_cselect_b32 s62, 1, 0\ns_mul_i32 s61, s62, 9\ns_sub_u32 s61, s97, s61\ns_lshl_b32 s60, s96, 1\ns_add_u32 s60, s60, s62")
    A3 = [(2, 0), (2, 1024), (2, 2048)]
    stP = Stream(a, [(64, A3, " sc1"), (65, A3, " sc1"), (66, [(tail.VT + i, 0) for i in range(3)], " sc1"), (68, [(tail.VT + 3, 0)], " sc1")])
    stQ = Stream(a, [(64, A3, " sc1"), (66, [(tail.VT + i, 0) for i in range(5)], " sc1")])
    gen_g(a)
    a("s_cmp_lt_u32 s3, 4\ns_cbranch_scc1 K6_p")
    a("s_cmp_ge_u32 s2, 128\ns_cbranch_scc1 K6_q")
    a("s_setprio 3\ns_cmp_lg_u32 s100, 0\ns_cbranch_scc1 G_kw")
    a.cpoll(99, 1, 44, 13, 8)
    conv.team_kv(a, TB)
    a("G_kw:")
    a(f"s_add_u32 s6, s2, 448\ns_add_u32 s52, s70, 256\ns_load_dword s53, {s(P_WS,2)}, s52")
    def tgate():
        a("s_cmp_lg_u32 s53, 0\ns_cbranch_scc1 G_k2")
        a.cpoll(52, 1, 53, 13, 8)
        a("G_k2:")
    conv.team(a, TB, TB + 21504, cT1, cT2, cT3, tgate, stQ.issue)
    assert stQ.issued == 16
    a.ldsadd(VC, V1, cSide)
    a.stamp(8 if not fine else 2)
    a("s_waitcnt vmcnt(0)")
    last_of(a, cU, 4, "K6_q2")
    a.setflag("s6", 14)
    a("s_branch K6_q2")
    a("K6_f:")
    gen_f(a, stP)
    def addrs():
        a(f"v_mov_b32 v6, v2\nv_add_u32 v7, 36864, v2\nv_add_u32 v8, {ML_H}, v2\nv_add_u32 v9, {ML_H+36864}, v2")
        h_addr(a, 71, 10, 12)
    def rk():
        a(f"v_and_b32 v5, 15, v1\nv_lshlrev_b32 v5, 4, v5\nv_add_u32 v5, {RM}, v5")
        for m in range(4): a(f"ds_read_b32 v{GT+m}, v5 offset:{256*m}")
        a("s_waitcnt lgkmcnt(0)")
        for m in range(4):
            r = GT + m
            a(f"v_mul_f32 v{KC+2*m}, {fh(GC0)}, v{r}\nv_mul_f32 v{r}, v{r}, v{r}\nv_mul_f32 v{r}, {fh(0.044715)}, v{r}\nv_mul_f32 v{KC+2*m+1}, v{r}, v{KC+2*m}")
    a("K6_p:")
    a("s_cmp_lg_u32 s3, 1\ns_cbranch_scc1 KB_w3")
    a("s_add_u32 s6, s70, 128")
    a.dpoll(6, 48, 13, 8)
    a.ldsadd(VC, V1, cW3a)
    a("KB_w3:")
    a.ldswait(VC, 5, 7, 1, cW3a)
    paced(a, Stream(a, stP.segs), 16, optval("PPACE", 8))
    a("s_mov_b32 s98, 0")
    a("K6_p2:")
    a("s_setprio 2")
    PRE = NS
    for i in range(NS - 16): stP.issue()
    addrs()
    a(f"s_lshr_b32 s11, s5, 1\ns_mul_i32 s6, s11, {FB_STRIDE}\ns_add_u32 s6, s6, {FX_OFF}")
    a(f"s_mul_i32 s9, s3, 18432\ns_mov_b32 m0, s9\ns_mul_i32 s7, s5, 73728\ns_add_u32 s7, s7, s9\ns_add_u32 s7, s7, {X1_OFF}")
    a.stamp(8)
    a("s_cmp_lg_u32 s3, 0\ns_cbranch_scc1 KB_xw")
    a.cpoll(6, 9, 44, 13, optval('FXS', 1))
    a.ldswait(VC, 5, 8, 8, cG2)
    a.ldsadd(VC, V1, cFX)
    a("s_branch KB_xg")
    a("KB_xw:")
    a.ldswait(VC, 5, 8, 1, cFX)
    a("KB_xg:")
    a.stamp(9)
    def xdma(i):
        if i and i % 4 == 0: a("s_add_u32 m0, m0, 4096\ns_add_u32 s7, s7, 4096")
        a(f"buffer_load_dwordx4 v2, s[56:59], s7 offen offset:{(i%4)*1024} sc1 lds")
        stP.other(f"x{i}")
    XP = optval("XP", 6)
    for i in range(XP): xdma(i)
    for i in range(NS - PRE): stP.issue()
    late = [(lambda i=i: xdma(i)) for i in range(XP, 18)]
    def stat(ins, tag="x"):
        a(ins); stP.other(tag)
    for i in range(optval("XE", 12)): late.pop(0)()
    a(f"s_waitcnt vmcnt({stP.younger(f'x{XP-1}')})")
    a("s_cmp_eq_u32 s98, 0\ns_cbranch_scc1 KB_fy")
    a.setflag("s98", 14)
    a("KB_fy:")
    a.subbar(VC, 5, 10, 4, off=cX1)
    a.stamp(10 if not fine else 1)
    def xhook(ks, i):
        if i in (0, 4, 8, 10, 11, 3) and late: late.pop(0)()
    mphase(a, stP, 0, 6, 0, XP, prio=2, hook=xhook)
    assert not late
    if "s1" in OPT: a.stamp(8)
    a(f"s_waitcnt vmcnt({stP.younger('x17')})")
    if "s1" in OPT: a.stamp(9)
    a.subbar(VC, 5, 7, 4, off=cX2)
    kw = 18 - (NS + 2) // 3
    def w3hook(ks, i):
        if ks == kw - 1 and i == 10: a.ldswait(VC, 5, 7, 1, cW3)
    mphase(a, stP, 0, 6, XP, 18, first=False, prio=2, hook=w3hook)
    if fine: a.stamp(2)
    a.ldswait(VC, 5, 7, 5, cSide)
    rk()
    def pthook(i):
        if "ptouch" in OPT and i in (0, 2, 4):
            a(f"s_lshl_b32 s6, s4, 5\ns_add_u32 s6, s6, s5\ns_mul_i32 s6, s6, 73728\ns_mul_i32 s7, s3, 18432\ns_add_u32 s6, s6, s7\ns_add_u32 s6, s6, {PART_OFF+3072*i}")
            a("v_min_u32 v14, 47, v1\nv_lshlrev_b32 v14, 7, v14\ns_setprio 3\nbuffer_load_dword v18, v14, s[56:59], s6 offen sc1\ns_setprio 0"); stP.other()
    gphase(a, 10, 12, pthook)
    a.ldsadd(VC, V1, cH1)
    if fine: a.stamp(3)
    a("s_add_u32 s71, s71, 24")
    h_addr(a, 71, 10, 12)
    tail.consts_b(a)
    def w4hook(ks, i):
        if ks == kw - 1 and i == 10: a.ldswait(VC, 5, 7, 1, cW4)
    mphase(a, stP, 1, 6, prio=1, hook=w4hook)
    if fine: a.stamp(4)
    a.ldsadd(VC, V1, cU2)
    def sthook(i):
        if i == 0 and "w4t" in OPT:
            a("v_bfe_u32 v5, v1, 3, 2\nv_mov_b32 v14, s44")
            for t in range(1, 4): a(f"v_cmp_eq_u32 vcc, {t}, v5\nv_mov_b32 v15, s{44+t}\ns_nop 0\nv_cndmask_b32 v14, v14, v15, vcc")
            a("v_and_b32 v5, 7, v1\nv_lshl_add_u32 v14, v5, 7, v14\nv_lshrrev_b32 v5, 5, v1\nv_mul_u32_u24 v5, 36864, v5\nv_add_u32 v14, v14, v5")
            a("s_and_b32 s6, s5, 7\ns_add_u32 s6, s6, 1\ns_mul_i32 s6, s6, 73728\ns_add_u32 s6, s6, s68")
            a("s_setprio 3\nbuffer_load_dword v18, v14, s[56:59], s6 offen sc1\ns_setprio 0"); stP.other()
        if i == optval("SGI", 0):
            a.ldswait(VC, 5, 7, 4, cU2)
            a.ldswait(VC, 5, 7, 8, cH1)
            a("s_setprio 3")
            stage_x(a)
            stage_y(a, True)
            a("s_setprio 0")
            for j in range(6): stP.other()
    gphase(a, 10, 12, sthook)
    a.ldsadd(VC, V1, cH2)
    a("s_waitcnt vmcnt(0)")
    a.ldsadd(VC, V1, cA)
    a.ldswait(VC, 5, 7, 4, cH2)
    if fine: a.stamp(5)
    mphase(a, stP, 2, 8)
    if fine: a.stamp(6)
    tail.stores(a, 3, stP.other)
    tail.ex_base(a, 8)
    a(f"v_add_u32 v10, s8, v2\ns_lshl_b32 s6, s3, 2\nv_add_u32 v11, s6, v{VC}")
    def hook(ks, i):
        if ks == optval("EFLAG", 12) and i == 0:
            a("s_waitcnt vmcnt(0)")
            tail.flags(a, 3); stP.other()
    mphase(a, stP, 3, 8, acc=MACC + 64, hook=hook, bufs=[BF, BF + 16, MACC, MACC + 16], prio=optval("P2P", 1))
    if fine: a.stamp(7)
    a.nop(8)
    for i in range(4): a(f"ds_write_b128 v10, {v(MACC+64+4*i,4)} offset:{1024*i}")
    a.ldsadd(11, V1, cOwn)
    a.end()
    a("K6_q:")
    a("s_setprio 0")
    a.stamp(8 if not fine else 2)
    a.ldsadd(VC, V1, cSide)
    a("s_cmp_lg_u32 s3, 7\ns_cbranch_scc1 KB_q3")
    a("s_add_u32 s8, s70, 256")
    a.dpoll(8, 44, 13, 8)
    a.ldsadd(VC, V1, cT0)
    a("KB_q3:")
    a.ldswait(VC, 5, 7, 1, cT0, sleep=2)
    QW = optval("QRW", -1)
    if QW >= 0: a.ldswait(VC, 5, 7, 4, QW, sleep=2)
    paced(a, Stream(a, stQ.segs), 16, optval("QPACE", 4))
    a("K6_q2:")
    a("s_setprio 0")
    for i in range(NS - 16): stQ.issue()
    a.stamp(9 if not fine else 3)
    addrs()
    a("s_cmp_lg_u32 s3, 5\ns_cbranch_scc1 KB_w3c\ns_add_u32 s8, s70, 384")
    a.dpoll(8, 52, 13, 8)
    a.ldsadd(VC, V1, cW3)
    a("KB_w3c:")
    a("s_cmp_lg_u32 s3, 6\ns_cbranch_scc1 KB_rs")
    a.ldswait(VC, 5, 7, 1, cFX)
    a(f"s_lshr_b32 s11, s5, 1\ns_mul_i32 s6, s11, 4608\ns_and_b32 s8, s5, 1\ns_lshl_b32 s8, s8, 8\ns_add_u32 s6, s6, s8\ns_add_u32 s6, s6, {SS_OFF}\ns_add_u32 s11, s6, 4096")
    a(f"s_lshl_b32 s8, s5, 8\ns_add_u32 s8, s8, {MEAN_OFF}\ns_lshl_b32 s9, s5, 10\ns_add_u32 s9, s9, {ST1_OFF}\ns_setprio 3")
    for i in range(8): a(f"buffer_load_dword v{GT+i}, v4, s[56:59], s6 offen offset:{512*i} sc1")
    a(f"buffer_load_dword v{GT+8}, v4, s[56:59], s11 offen sc1\nbuffer_load_dword v{GT+13}, v4, s[56:59], s8 offen sc1\nbuffer_load_dwordx2 {v(GT+14,2)}, v2, s[56:59], s9 offen sc1")
    a("s_waitcnt vmcnt(0)")
    for i in range(1, 9): a(f"v_add_f32 v{GT}, v{GT}, v{GT+i}")
    a(f"v_mov_b32 v{GT+1}, {fh(1.0/D)}\nv_fmaak_f32 v{GT}, v{GT+1}, v{GT}, {fh(EPS)}")
    a(f"v_rsq_f32 v{GT+12}, v{GT}")
    a(f"v_add_u32 v5, {RM}, v2\ns_nop 0")
    a(f"ds_write_b128 v5, {v(GT+12,4)}")
    a.ldsadd(VC, V1, cSide)
    a("KB_rs:")
    tail.consts_b(a)
    a.ldswait(VC, 5, 7, 4, cX2)
    def qhook(ks, i):
        if ks == kw - 4 and i == 10:
            a(f"s_cmp_lg_u32 s3, 7\ns_cbranch_scc1 KB_q2a\ns_load_dword s53, {s(P_WS,2)}, s70\nKB_q2a:")
        if ks == kw - 3 and i == 10:
            a("s_cmp_lg_u32 s3, 7\ns_cbranch_scc1 KB_q2c\ns_cmp_lg_u32 s53, 0\ns_cbranch_scc1 KB_q2b")
            a.cpoll(70, 1, 53, 13, 8)
            a("KB_q2b:")
            a.ldsadd(VC, V1, cW4)
            a("KB_q2c:")
        if ks == kw - 1 and i == 10: a.ldswait(VC, 5, 7, 1, cW4)
    mphase(a, stQ, 0, 6, prio=2, hook=qhook)
    a.ldswait(VC, 5, 7, 5, cSide)
    if fine: a.stamp(4)
    rk()
    def yhook(i):
        ld = "buffer_load_dword v18, v14, s[56:59], s8 offen sc1\nbuffer_load_dword v19, v14, s[56:59], s8 offen offset:1280 sc1"
        if i == 0:
            a(f"s_mul_i32 s8, s4, 9\ns_lshr_b32 s8, s8, 1\ns_lshl_b32 s8, s8, 9\ns_add_u32 s8, s8, {FYW_OFF}\nv_min_u32 v14, 39, v1\nv_lshlrev_b32 v14, 5, v14")
            a(f"s_cmp_lg_u32 s3, 7\ns_cbranch_scc1 KB_y0\n{ld}\nKB_y0:")
        if i == 4:
            a("s_cmp_lg_u32 s3, 7\ns_cbranch_scc1 KB_ys\ns_mov_b32 s13, 0x20000\nKB_y1:")
            a("s_waitcnt vmcnt(0)\nv_and_b32 v18, v18, v19\nv_cmp_ne_u32 vcc, 1, v18\ns_cbranch_vccz KB_ys")
            a(f"s_sleep 16\n{ld}\ns_sub_u32 s13, s13, 1\ns_cbranch_scc0 KB_y1")
            a("KB_ys:")
    gphase(a, 10, 12, yhook)
    a.subbar(VC, 5, 7, 8, off=cH1)
    if fine: a.stamp(5)
    mphase(a, stQ, 1, 8, 0, 12, prio=1)
    a.ldswait(VC, 5, 7, 4, cH2)
    if fine: a.stamp(7)
    mphase(a, stQ, 1, 8, 12, 18, first=False, prio=1)
    a(f"s_setprio {optval('QT', 1)}")
    a.stamp(10)
    tail.stores(a, 5)
    a.ldswait(VC, 5, 7, 4, cA)
    def mid():
        a("s_waitcnt vmcnt(0)")
        tail.flags(a, 5)
        a(f"s_setprio {optval('QF', 1)}")
    st = a.stamps; a.stamps = st and fine
    tail.final(a, cOwn, mid)
    a.stamps = st
    a.end()
    a("K6_end:")
    a("s_endpgm")
```

```python
from common import *
import g1b as g1
import kb4
from kb4 import Stream, mphase, gphase, h_addr, pstore, stage_x, stage_y, gen_final, gen_conv_load, paced, NS, RING, BF, MACC, KC, GT, ML_H, VC, V1

G2_WM, G2_XT, G2_W = 0, 2560, 14848
SCR = G2_W + 110592
CV, CV_SZ = 92160, 21248
CNT = 158656 - 64
RM = CNT + 128
PT7 = RM + 1024
KM_LDS = PT7 + 4096
kb4.RM = RM
cG2, cX1, cX2, cFX, cSide, cH1, cA, cH2, cW4, cG1, cP1, cFH, cU, cW2, cW3, cHs = [4 * i for i in range(16)]
cW3a = cHs + 4
cKV = cHs + 8
cHl = cHs + 12

def gen_kv(a):
    KR, VR, SH, SP, KU, RES, PK, OUT = 32, 76, 108, 124, 132, 156, 172, 188
    a("s_mul_i32 s7, s6, 7282\ns_lshr_b32 s7, s7, 16")
    a("s_mul_i32 s8, s7, 9\ns_sub_u32 s8, s6, s8")
    a("v_and_b32 v2, 7, v1\nv_lshrrev_b32 v3, 3, v1")
    a("s_lshl_b32 s9, s7, 6")
    a("v_lshl_add_u32 v4, v3, 3, s9")
    a("v_mul_u32_u24 v5, 1152, v4")
    a("s_lshl_b32 s10, s8, 7")
    a("v_lshl_add_u32 v5, v2, 4, v5\nv_add_u32 v5, s10, v5")
    a("v_subrev_u32 v6, 3456, v5")
    a("v_cmp_eq_u32 vcc, 0, v4")
    a("v_mov_b32 v7, 0x80000000\ns_lshl_b32 s11, s8, 9")
    a("v_cndmask_b32 v6, v6, v7, vcc")
    a("v_lshlrev_b32 v7, 6, v2")
    a("s_movk_i32 s12, 4608")
    a.srd(44, P_K, ACT)
    a.srd(48, P_V, ACT)
    a.srd(52, P_SHK, D * 8)
    for i in range(4):
        a(f"buffer_load_dwordx4 {v(SH+4*i,4)}, v7, s[52:55], s11 offen offset:{16*i}")
    for j in range(8):
        so = "0" if j < 4 else "s12"
        a(f"buffer_load_dwordx4 {v(KR+12+4*j,4)}, v5, s[44:47], {so} offen offset:{1152*(j&3)}" + (" nt" if (j < 5 or "kpl" not in OPT) else ""))
    for j in range(3):
        a(f"buffer_load_dwordx4 {v(KR+4*j,4)}, v6, s[44:47], 0 offen offset:{1152*j}" + (" nt" if "kpl" not in OPT else ""))
    if optval("KVP", 0): a(f"s_waitcnt vmcnt({optval('KVP', 0)})")
    for j in range(8):
        so = "0" if j < 4 else "s12"
        a(f"buffer_load_dwordx4 {v(VR+4*j,4)}, v5, s[48:51], {so} offen offset:{1152*(j&3)} nt")
    a("v_sub_u32 v8, 7, v3\nv_xor_b32 v8, v8, v2\nv_lshlrev_b32 v8, 4, v8\nv_lshl_add_u32 v8, v2, 9, v8\nv_add_u32 v8, s13, v8")
    a("v_lshrrev_b32 v11, 5, v1\nv_xor_b32 v9, v11, v1\nv_lshlrev_b32 v9, 4, v9")
    a(f"v_and_b32 v10, 3, v3\nv_lshl_add_u32 v10, v11, 3, v10\nv_mul_u32_u24 v10, {KV_PITCH}, v10\nv_lshl_add_u32 v10, v2, 4, v10")
    a(f"s_mul_i32 s14, s8, {64*KV_PITCH}\ns_lshl_b32 s15, s7, 7\ns_sub_u32 s14, s14, s15\ns_add_u32 s14, s14, {KV_OFF+3968}")
    for i in range(4): a(f"v_xor_b32 v{12+i}, {32*i}, v9\nv_add_u32 v{12+i}, s13, v{12+i}")
    a.stamp(2)
    for q in range(4):
        if q == 0: a("s_waitcnt vmcnt(8)")
        for d in range(4):
            for h in range(2):
                src = SH + 4 * q + 2 * h + (d >> 1)
                if d & 1: a(f"v_and_b32 v{SP+2*d+h}, 0xffff0000, v{src}")
                else: a(f"v_lshlrev_b32 v{SP+2*d+h}, 16, v{src}")
        for j in range(11):
            a(f"v_lshlrev_b32 v{KU+2*j}, 16, v{KR+4*j+q}")
            a(f"v_and_b32 v{KU+2*j+1}, 0xffff0000, v{KR+4*j+q}")
        for j in range(8):
            a(f"v_pk_mul_f32 {v(RES+2*j,2)}, {v(KU+2*(j+3),2)}, {v(SP,2)}")
        for d in range(1, 4):
            for j in range(8):
                a(f"v_pk_fma_f32 {v(RES+2*j,2)}, {v(KU+2*(j+3-d),2)}, {v(SP+2*d,2)}, {v(RES+2*j,2)}")
        if q == 0:
            a("s_waitcnt vmcnt(0)")
            a.ldsadd(VC, V1, cG1)
        for j in range(8):
            a(f"v_lshlrev_b32 v{KU+2*j}, 16, v{VR+4*j+q}")
            a(f"v_and_b32 v{KU+2*j+1}, 0xffff0000, v{VR+4*j+q}")
        for j in range(8):
            a(f"v_pk_mul_f32 {v(RES+2*j,2)}, {v(RES+2*j,2)}, {v(KU+2*j,2)}")
        p = PK + 8 * (q & 1)
        for h in range(2):
            for e in range(4):
                a(f"v_cvt_pk_bf16_f32 v{p+4*h+e}, v{RES+2*(7-2*e)+h}, v{RES+2*(6-2*e)+h}")
            a(f"ds_write_b128 v8, {v(p+4*h,4)} offset:{(2*(q&1)+h)*128}")
        if q & 1:
            o = OUT + 16 * (q >> 1)
            for i in range(4): a(f"ds_read_b128 {v(o+4*i,4)}, v{12+i} offset:{1024*i}")
            a(f"s_add_u32 s15, s14, {4*(q>>1)*KV_PITCH}")
            for i in range(4):
                a(f"s_waitcnt lgkmcnt({3-i})")
                a(f"buffer_store_dwordx4 {v(o+4*i,4)}, v10, s[56:59], s15 offen sc1")
                a(f"s_add_u32 s15, s15, {16*KV_PITCH}")
    a("s_cmp_lg_u32 s7, 0\ns_cbranch_scc1 KV_z")
    for r in range(4): a(f"v_mov_b32 v{KU+r}, 0")
    for i in range(8):
        a(f"buffer_store_dwordx4 {v(KU,4)}, v10, s[56:59], s14 offen offset:128 sc1")
        a(f"s_add_u32 s14, s14, {(4 if i % 2 == 0 else 12)*KV_PITCH}")
    a("KV_z:")
    a(f"s_mul_i32 s9, s8, 86\ns_lshr_b32 s9, s9, 8\ns_mul_i32 s10, s9, {FB_STRIDE-384}\ns_lshl_b32 s6, s8, 7\ns_add_u32 s6, s6, s10\ns_add_u32 s6, s6, {FKV_OFF}\ns_mov_b32 s100, 32")

def gen_meantile(a):
    R = 32
    a("v_lshrrev_b32 v2, 2, v1\nv_and_b32 v3, 3, v1")
    a("v_mul_u32_u24 v4, 1152, v2\nv_lshl_add_u32 v4, v3, 4, v4")
    a("s_mul_i32 s7, s6, 36864\ns_add_u32 s8, s7, 18432")
    a.srd(44, P_W2, D * D * 2)
    for jh in range(2):
        for i in range(18):
            a(f"buffer_load_dwordx4 {v(R+72*jh+4*i,4)}, v4, s[44:47], s{7+jh} offen offset:{64*i}")
    a("v_mov_b32 v8, 0x3f803f80")
    for r in range(4): a(f"v_mov_b32 v{20+r}, 0")
    a("v_lshrrev_b32 v5, 2, v2\nv_and_b32 v6, 3, v2\nv_lshlrev_b32 v5, 4, v5\nv_lshl_add_u32 v5, v6, 1, v5\nv_add_u32 v5, s13, v5")
    a("v_lshlrev_b32 v6, 4, v1\nv_add_u32 v7, s13, v6")
    for jh in range(2):
        if jh == 0: a("s_waitcnt vmcnt(18)")
        else: a.zcheck(14, 9, True)
        for r in range(72): a(f"v_dot2c_f32_bf16 v{20+2*jh+(r&1)}, v{R+72*jh+r}, v8")
    a("s_nop 2\nv_add_f32 v20, v20, v21\nv_add_f32 v22, v22, v23\ns_nop 1")
    for qp in ("[1,0,3,2]", "[2,3,0,1]"):
        a(f"v_add_f32_dpp v20, v20, v20 quad_perm:{qp} row_mask:0xf bank_mask:0xf")
        a(f"v_add_f32_dpp v22, v22, v22 quad_perm:{qp} row_mask:0xf bank_mask:0xf")
        a("s_nop 1")
    a(f"v_mul_f32 v20, {fh(1.0/D)}, v20\nv_mul_f32 v22, {fh(1.0/D)}, v22")
    a("v_cvt_pk_bf16_f32 v24, v20, v22\nv_or_b32 v24, 0x10001, v24")
    a("v_lshlrev_b32 v21, 16, v24\nv_and_b32 v23, 0xffff0000, v24\nv_sub_f32 v20, v20, v21\nv_sub_f32 v22, v22, v23")
    a("v_cvt_pk_bf16_f32 v25, v20, v22\nv_or_b32 v25, 0x10001, v25")
    a("ds_write_b16 v5, v24\nds_write_b16_d16_hi v5, v24 offset:8\nds_write_b16 v5, v25 offset:64\nds_write_b16_d16_hi v5, v25 offset:72")
    a("ds_read_b128 v[20:23], v7")
    a(f"s_lshl_b32 s7, s6, 7\ns_add_u32 s7, s7, {W2M_OFF}")
    a("s_waitcnt lgkmcnt(0)\ns_mov_b64 exec, 0xff")
    a("buffer_store_dwordx4 v[20:23], v6, s[56:59], s7 offen sc1")
    a("s_mov_b64 exec, -1")

def job_setup(a, lab):
    a(f"s_mul_i32 s15, s96, {WSLICE}\ns_mul_i32 s98, s96, {FB_STRIDE}")
    a(f"s_cmp_ge_u32 s12, 54\ns_cbranch_scc1 {lab}_4")
    a.srd(44, P_W3, D * F * 2)
    a("s_mul_i32 s14, s12, 57\ns_lshr_b32 s14, s14, 10\ns_mul_i32 s13, s14, 18\ns_sub_u32 s13, s12, s13")
    a("s_mul_i32 s6, s13, 294912\ns_mul_i32 s7, s96, 1152\ns_add_u32 s6, s6, s7\ns_movk_i32 s7, 9216")
    a(f"s_add_u32 s8, s15, {W3T_OFF}\ns_add_u32 s15, s14, 1\ns_mov_b32 s100, 18\ns_lshl_b32 s15, s15, 7\ns_add_u32 s98, s98, s15")
    a(f"s_branch {lab}_j")
    a(f"{lab}_4:")
    a.srd(44, P_W4, D * F * 2)
    a("s_sub_u32 s6, s12, 54\ns_mul_i32 s13, s6, 86\ns_lshr_b32 s13, s13, 8\ns_mul_i32 s14, s13, 3\ns_sub_u32 s14, s6, s14")
    a(f"s_mul_i32 s6, s13, 36864\ns_add_u32 s6, s6, s15\ns_movk_i32 s7, 1152\ns_mov_b32 s100, 54\ns_add_u32 s8, s15, {W4T_OFF}")
    a(f"{lab}_j:")
    a(f"s_mul_i32 s15, s14, 384\ns_add_u32 s6, s6, s15\ns_mul_i32 s15, s13, 36864\ns_add_u32 s8, s8, s15\ns_mul_i32 s15, s14, 12288\ns_add_u32 s8, s8, s15\ns_add_u32 s98, s98, {FW4_OFF}")

def consts(a):
    a("s_and_b32 s60, s97, 7\ns_and_b32 s61, s97, 24\ns_add_u32 s61, s61, s96")
    if "nf1" in OPT: a("s_mov_b32 s4, s96\ns_mov_b32 s5, s97")
    elif "tok" in OPT: a("s_mov_b32 s4, s60\ns_mov_b32 s5, s61")
    elif "nf2" in OPT:
        a("s_and_b32 s4, s96, 3\ns_lshl_b32 s4, s4, 1\ns_and_b32 s7, s97, 1\ns_add_u32 s4, s4, s7\ns_lshr_b32 s5, s96, 2\ns_lshl_b32 s5, s5, 4\ns_lshr_b32 s7, s97, 1\ns_add_u32 s5, s5, s7")
    else:
        a("s_and_b32 s4, s96, 1\ns_lshl_b32 s4, s4, 2\ns_and_b32 s7, s97, 3\ns_add_u32 s4, s4, s7\ns_lshr_b32 s5, s96, 1\ns_lshl_b32 s5, s5, 3\ns_lshr_b32 s7, s97, 2\ns_add_u32 s5, s5, s7")
    a("s_lshr_b32 s62, s60, 2\ns_lshl_b32 s7, s60, 1\ns_add_u32 s62, s62, s7")
    a("s_and_b32 s7, s60, 3\ns_cmp_eq_u32 s7, 3\ns_cselect_b32 s63, 3, 2")
    a("v_lshlrev_b32 v2, 4, v1\nv_add_u32 v3, 4096, v2\nv_lshlrev_b32 v4, 2, v1")

def consts2(a):
    a(f"s_mul_i32 s8, s4, {WSLICE}")
    a("s_mul_i32 s71, s3, 3")
    a(f"s_lshl_b32 s64, s71, 10\ns_add_u32 s64, s64, s8\ns_add_u32 s64, s64, {W3T_OFF}")
    a("s_add_u32 s65, s64, 24576")
    a("s_and_b32 s9, s3, 3\ns_mul_i32 s9, s9, 9\ns_lshr_b32 s10, s3, 2\ns_lshl_b32 s10, s10, 1\ns_add_u32 s9, s9, s10")
    a(f"s_lshl_b32 s66, s9, 10\ns_add_u32 s66, s66, s8\ns_add_u32 s66, s66, {W4T_OFF}\ns_add_u32 s68, s66, 1024")
    a(f"s_lshl_b32 s10, s4, 5\ns_add_u32 s10, s10, s5\ns_mul_i32 s67, s10, 73728\ns_lshl_b32 s9, s9, 11\ns_add_u32 s67, s67, s9\ns_add_u32 s67, s67, {PART_OFF}")
    a(f"s_and_b32 s69, s3, 3\ns_lshl_b32 s69, s69, 3\ns_add_u32 s69, s69, s4\ns_lshl_b32 s69, s69, 2\ns_mul_i32 s10, s5, {FB_STRIDE}\ns_add_u32 s69, s69, s10\ns_add_u32 s69, s69, {FP_OFF}")
    a(f"s_mul_i32 s70, s4, {FB_STRIDE}\ns_add_u32 s70, s70, {FW4_OFF}")

def gen_gemm2(a):
    HB, BUF, ACC = 32, 104, 216
    a("s_lshl_b32 s8, s61, 2\ns_add_u32 s8, s8, s3")
    a("s_mul_i32 s9, s8, 18432")
    a.srd(44, P_Q, ACT)
    a("v_lshrrev_b32 v5, 2, v1\nv_and_b32 v6, 3, v1\nv_mul_u32_u24 v7, 1152, v5\nv_lshl_add_u32 v7, v6, 4, v7")
    a(f"s_mul_i32 s12, s3, 3072\ns_add_u32 s12, s12, {G2_XT}\ns_mov_b32 m0, s12\ns_lshl_b32 s10, s62, 6\ns_add_u32 s10, s10, s9")
    for p in range(3):
        if p: a("s_add_u32 m0, m0, 960\ns_nop 0")
        a(f"buffer_load_dwordx4 v7, s[44:47], s10 offen offset:{64*p} lds")
    a(f"v_lshrrev_b32 v9, 4, v1\nv_lshlrev_b32 v12, 6, v5\nv_and_b32 v13, 1, v9\nv_lshl_add_u32 v12, v13, 5, v12\nv_lshl_add_u32 v12, v6, 3, v12\nv_add_u32 v12, {G2_W}, v12")
    a("v_xor_b32 v13, 32, v12\nv_add_u32 v22, 49152, v12\nv_add_u32 v23, 49152, v13")
    a("v_and_b32 v11, 1, v1\nv_lshlrev_b32 v11, 6, v11\nv_lshl_add_u32 v11, v9, 4, v11")
    a("v_and_b32 v8, 15, v1\nv_lshlrev_b32 v21, 3, v8\nv_lshlrev_b32 v20, 6, v8\nv_lshl_add_u32 v20, v9, 3, v20\nv_add_u32 v20, s12, v20")
    a("s_lshl_b32 s10, s8, 4\nv_add_u32 v8, s10, v8\nv_lshlrev_b32 v9, 8, v9\ns_movk_i32 s13, 18432\nv_mov_b32 v10, 0x80000000")
    for gam, sh in enumerate((-1, 1, -2, 2)):
        a(f"v_add_u32 v5, {sh}, v8\nv_cmp_gt_u32 vcc, {S}, v5\nv_lshrrev_b32 v6, 4, v5\nv_mad_u32_u24 v6, v6, s13, v9\nv_and_b32 v5, 15, v5\nv_lshl_add_u32 v6, v5, 4, v6")
        a(f"v_cndmask_b32 v{24+gam}, v10, v6, vcc")
    a(f"s_lshl_b32 s11, s62, 10\ns_add_u32 s11, s11, s9\ns_add_u32 s11, s11, {X1_OFF}")
    a(f"s_lshl_b32 s10, s8, 7\ns_add_u32 s10, s10, {ST1_OFF}\ns_mov_b32 s14, {H_OFF}\nv_mov_b32 v10, 0")
    a("s_cmp_lg_u32 s3, 0\ns_cbranch_scc1 G2_hw")
    a(f"s_mul_i32 s6, s61, {FB_STRIDE}\ns_add_u32 s6, s6, {FH_OFF}\ns_sub_u32 s7, s6, {FB_STRIDE}\ns_cmp_eq_u32 s61, 0\ns_cselect_b32 s7, s6, s7\ns_add_u32 s12, s6, {FB_STRIDE}\ns_cmp_eq_u32 s61, 31\ns_cselect_b32 s12, s6, s12")
    a("s_mov_b32 s13, 0x40000")
    a("G2_hp:")
    for r, o in ((48, 6), (49, 7), (50, 12)): a(f"s_load_dword s{r}, {s(P_WS,2)}, s{o} glc")
    a("s_waitcnt lgkmcnt(0)")
    a("s_min_u32 s48, s48, s49\ns_min_u32 s48, s48, s50\ns_cmp_ge_u32 s48, 6\ns_cbranch_scc1 G2_hd")
    a("s_sleep 1\ns_sub_u32 s13, s13, 1\ns_cbranch_scc0 G2_hp")
    a("G2_hd:")
    a.ldsadd(VC, V1, cFH)
    a("s_branch G2_hg")
    a("G2_hw:")
    a.ldswait(VC, 5, 7, 1, cFH)
    a(f"s_cmp_lg_u32 s3, 1\ns_cbranch_scc1 G2_hg\ns_add_u32 s6, s70, 128\ns_load_dword s48, {s(P_WS,2)}, s6 glc")
    a("G2_hg:")
    a.stamp(6)
    for ks in range(18):
        if ks and ks % 4 == 0: a("s_add_u32 s14, s14, 4096")
        g0, g1_ = (2 * ks) // 9, (2 * ks + 1) // 9
        if g0 == g1_: a(f"buffer_load_dwordx4 {v(HB+4*ks,4)}, v{24+g0}, s[56:59], s14 offen offset:{(ks%4)*1024} sc1")
        else:
            a(f"buffer_load_dwordx2 {v(HB+4*ks,2)}, v{24+g0}, s[56:59], s14 offen offset:{(ks%4)*1024} sc1")
            a(f"buffer_load_dwordx2 {v(HB+4*ks+2,2)}, v{24+g1_}, s[56:59], s14 offen offset:{(ks%4)*1024+8} sc1")
    a("buffer_load_dwordx2 v[18:19], v21, s[56:59], s10 offen sc1")
    a.ldswait(VC, 5, 7, 13, cW2)
    a.stamp(7)
    a("s_cmp_eq_u32 s63, 3\ns_cbranch_scc1 G2_n3")
    for npair in (2, 3):
        nt = 1 + 2 * npair
        if npair == 3: a("G2_n3:")
        def reads(gi):
            b = BUF + 56 * (gi & 1)
            o = []
            for k2 in range(2):
                ks = 2 * gi + k2
                o.append(f"ds_read_b128 {v(b+28*k2,4)}, v11 offset:{G2_WM+128*ks}")
                for t in range(2 * npair):
                    for jh in range(2):
                        off = ((ks * 2 + jh) * npair + (t >> 1)) * 1024
                        ad = 12 + (t & 1)
                        if off >= 49152: off -= 49152; ad += 10
                        o.append(f"ds_read_b64_tr_b16 {v(b+28*k2+4+4*t+2*jh,2)}, v{ad} offset:{off}")
            return o
        for gi in range(10):
            rd = reads(gi) if gi < 9 else [f"ds_read_b64 {v(BUF+56+2*t,2)}, v20 offset:{(t>>1)*1024+(t&1)*32}" for t in range(2 * npair)]
            if gi > 0:
                g = gi - 1
                a(f"s_waitcnt vmcnt({19-2*gi+(2*gi <= 4)+(2*gi <= 13)})" if gi < 9 else "s_waitcnt vmcnt(0)")
                if gi == optval("HLAT", 6): a.ldsadd(VC, V1, cHl)
                b = BUF + 56 * (g & 1)
                for k2 in range(2):
                    for t in range(nt):
                        for _ in range(2):
                            if rd: a(rd.pop(0))
                        a.mfma(ACC + 4 * t, b + 28 * k2 + 4 * t, HB + 4 * (2 * g + k2), "0" if (g == 0 and k2 == 0) else None)
            for r in rd: a(r)
            a("s_waitcnt lgkmcnt(0)")
        XS = BUF + 56
        for e in range(4 * npair):
            a(f"v_lshlrev_b32 v{HB+2*e}, 16, v{XS+e}\nv_and_b32 v{HB+2*e+1}, 0xffff0000, v{XS+e}")
        a(f"v_add_f32 v9, v{ACC}, v{ACC+1}")
        a("v_sub_f32 v28, v19, v9\nv_sub_f32 v29, v19, v9\nv_mov_b32 v19, v18")
        for p in range(npair):
            for e in range(0, 8, 2): a(f"v_pk_fma_f32 {v(HB+8*p+e,2)}, {v(HB+8*p+e,2)}, v[18:19], v[28:29]")
            for e in range(0, 8, 2): a(f"v_pk_add_f32 {v(HB+8*p+e,2)}, {v(HB+8*p+e,2)}, {v(ACC+4+8*p+e,2)}")
            for e in range(4): a(f"v_cvt_pk_bf16_f32 v{BUF+4*p+e}, v{HB+8*p+2*e}, v{HB+8*p+2*e+1}")
            a(f"buffer_store_dwordx4 {v(BUF+4*p,4)}, v2, s[56:59], s11 offen offset:{p*1024} sc1")
        a("v_mov_b32 v11, 0")
        for e in range(0, 8 * npair, 2): a(f"v_pk_fma_f32 v[10:11], {v(HB+e,2)}, {v(HB+e,2)}, v[10:11]")
        if npair == 2: a("s_branch G2_j")
    a("G2_j:")
    a("v_add_f32 v10, v10, v11")
    gsum(a, 10, 11)
    a(f"s_lshl_b32 s10, s61, 3\ns_add_u32 s10, s10, s60\ns_lshl_b32 s10, s10, 8\ns_lshl_b32 s12, s3, 6\ns_add_u32 s10, s10, s12\ns_add_u32 s10, s10, {SS_OFF}")
    a(f"s_lshl_b32 s12, s8, 6\ns_add_u32 s12, s12, {MEAN_OFF}")
    a("s_mov_b64 exec, 0xffff")
    a("buffer_store_dword v10, v4, s[56:59], s10 offen sc1")
    a(f"s_cmp_lg_u32 s60, 0\ns_cbranch_scc1 G2_m")
    a("buffer_store_dword v9, v4, s[56:59], s12 offen sc1")
    a("G2_m:")
    a("s_mov_b64 exec, -1")

def w2_pre(a):
    a.srd(52, P_W2, D * D * 2)
    a("v_lshrrev_b32 v5, 2, v1\nv_and_b32 v8, 3, v1\nv_mul_u32_u24 v7, 1152, v5")
    a("v_bfe_u32 v5, v1, 4, 1\nv_lshlrev_b32 v5, 1, v5\nv_xor_b32 v5, v5, v8\nv_lshl_add_u32 v7, v5, 4, v7")
    a("s_lshl_b32 s64, s63, 10\ns_lshl_b32 s65, s62, 6\nv_mov_b32 v9, 0")

def w2_rg(a):
    l = a.lab("W2A")
    a("s_mov_b32 m0, s66\ns_nop 0")
    a("buffer_load_dwordx4 v7, s[52:55], s67 offen lds")
    a("s_add_u32 m0, m0, 960\ns_cmp_eq_u32 s63, 2")
    a("buffer_load_dwordx4 v7, s[52:55], s67 offen offset:64 lds")
    a(f"s_cbranch_scc1 {l}")
    a("s_add_u32 m0, m0, 960\ns_nop 0")
    a("buffer_load_dwordx4 v7, s[52:55], s67 offen offset:128 lds")
    a(f"{l}:")

def gen_w2load(a):
    if "w7skip" in OPT: a("s_mov_b32 s12, 13\ns_cmp_eq_u32 s68, 4\ns_cselect_b32 s13, s3, 0\ns_cmp_eq_u32 s13, 7\ns_cbranch_scc1 W2_e")
    a("W2_l:")
    a(f"s_mov_b64 exec, 1\nds_add_rtn_u32 v5, v{VC}, v{V1} offset:{cU}\ns_mov_b64 exec, -1")
    a(f"s_waitcnt vmcnt({optval('W2PACE', 6)}) lgkmcnt(0)")
    a("v_readfirstlane_b32 s12, v5")
    a("s_add_u32 s12, s12, s68\ns_cmp_ge_u32 s12, 12\ns_cbranch_scc1 W2_e")
    a(f"s_mul_i32 s67, s12, 55296\ns_add_u32 s67, s67, s65\ns_mul_i32 s66, s12, s64\ns_mul_i32 s66, s66, 3\ns_add_u32 s66, s66, {G2_W}")
    a("v_add_u32 v9, 1, v9")
    for r in range(3):
        w2_rg(a)
        a("s_add_u32 s67, s67, 18432\ns_add_u32 s66, s66, s64")
    a("s_branch W2_l")
    a("W2_e:")
    a.zcheck(14, 13)
    a("s_cmp_lg_u32 s12, 12\ns_cbranch_scc1 W2_f")
    a(f"s_mov_b32 s8, {W2M_OFF}\nv_add_u32 v9, 1, v9\nv_min_u32 v5, 240, v2\ns_mov_b32 s13, 0x20000")
    a("W2_m:")
    a("buffer_load_dwordx4 v[32:35], v2, s[56:59], s8 offen sc1\nbuffer_load_dwordx4 v[36:39], v2, s[56:59], s8 offen offset:1024 sc1\nbuffer_load_dwordx4 v[40:43], v5, s[56:59], s8 offen offset:2048 sc1")
    a("s_waitcnt vmcnt(0)")
    a("v_min_u32 v6, v32, v36\nv_min_u32 v6, v6, v40\nv_cmp_eq_u32 vcc, 0, v6\ns_cbranch_vccz W2_n")
    a("s_sleep 8\ns_sub_u32 s13, s13, 1\ns_cbranch_scc0 W2_m")
    a("W2_n:")
    a(f"ds_write_b128 v2, v[32:35] offset:{G2_WM}\nds_write_b128 v2, v[36:39] offset:{G2_WM+1024}\nds_write_b128 v5, v[40:43] offset:{G2_WM+2048}")
    a("W2_f:")
    a.ldsadd(VC, 9, cW2)

def gen_km(a, name):
    fine = "fine" in OPT
    a(f".p2align 8\n{name}:")
    a("s_cmp_ge_u32 s2, 256\ns_cbranch_scc1 KM_end")
    a.stamp_init()
    if "skew" in OPT:
        a("s_mul_i32 s4, s2, 5\ns_and_b32 s4, s4, 7\nSK_l:\ns_sub_u32 s4, s4, 1\ns_cbranch_scc1 SK_d\ns_sleep 12\ns_branch SK_l\nSK_d:")
    a.kernargs()
    a("v_lshrrev_b32 v2, 6, v0\nv_and_b32 v1, 63, v0")
    a("v_readfirstlane_b32 s3, v2")
    a("s_and_b32 s96, s2, 7\ns_lshr_b32 s97, s2, 3")
    a("s_mul_i32 s60, s97, 43\ns_lshr_b32 s60, s60, 8")
    a("s_mul_i32 s7, s60, 6\ns_sub_u32 s7, s97, s7")
    a("s_lshl_b32 s6, s60, 3\ns_add_u32 s6, s6, s96")
    a(f"v_mov_b32 v{VC}, {CNT}\nv_mov_b32 v{V1}, 1")
    a("s_cmp_lt_u32 s3, 4\ns_cbranch_scc1 KM_lo")
    a("s_cmp_ge_u32 s97, 24\ns_cbranch_scc1 KM_free")
    g1.loader_pre(a)
    a("s_waitcnt lgkmcnt(0)")
    def w2pre():
        a("s_mov_b32 s101, s61")
        consts(a)
        a("s_mov_b32 s98, s61\ns_mov_b32 s61, s101")
        w2_pre(a)
        a("s_lshr_b32 s68, s97, 3\ns_lshl_b32 s68, s68, 2\ns_add_u32 s68, s68, s8")
    def w2issue():
        a(f"s_mul_i32 s67, s68, 18432\ns_add_u32 s67, s67, s65\ns_mul_i32 s66, s68, s64\ns_add_u32 s66, s66, {G2_W}")
        w2_rg(a)
        a("s_add_u32 s68, s68, 4\ns_sub_u32 s66, s68, 12\ns_cmp_ge_u32 s68, 12\ns_cselect_b32 s68, s66, s68")
    g1.gen_loader(a, w2pre, w2issue)
    a.srd(56, P_WS, WS_BYTES)
    a("s_mov_b32 s61, s98\ns_mov_b32 s68, 4\nv_mov_b32 v9, 1")
    a("s_barrier")
    a("s_branch KM_qj")
    a("KM_lo:")
    a("s_cmp_lg_u32 s3, 0\ns_cbranch_scc1 KM_pf")
    a("s_mov_b64 exec, 0xffff")
    a.prefetch_code("CODE_END", 2, 31, 8)
    a(f"v_lshl_add_u32 v2, v1, 2, v{VC}\nv_mov_b32 v3, 0\nds_write2_b32 v2, v3, v3 offset0:0 offset1:16")
    a("s_mov_b64 exec, -1")
    a("KM_pf:")
    a("s_cmp_ge_u32 s97, 24\ns_cbranch_scc1 KM_free")
    a("s_waitcnt lgkmcnt(0)")
    a.srd(56, P_WS, WS_BYTES)
    a(f"s_mov_b32 s99, 0\ns_cmp_lg_u32 s3, 1\ns_cbranch_scc1 KM_nz\ns_cmp_ge_u32 s2, {FLAG_WAVES}\ns_cbranch_scc1 KM_nz")
    a(f"s_mov_b32 s99, 3\ns_mul_i32 s8, s2, {2*FB_STRIDE}\ns_add_u32 s8, s8, {FLAG_OFF}")
    a(f"s_movk_i32 s9, {FB_STRIDE-512}\ns_cmp_lt_u32 s2, 28\ns_cbranch_scc1 KM_z1")
    a(f"s_mov_b32 s9, 0\ns_lshl_b32 s8, s2, 10\ns_add_u32 s8, s8, {W2M_OFF-28*1024}")
    a("KM_z1:")
    a(f"v_lshrrev_b32 v3, 5, v1\nv_mul_u32_u24 v3, s9, v3\nv_lshl_add_u32 v2, v1, 4, v3")
    a("v_mov_b32 v192, 0\nv_mov_b32 v193, 0\nv_mov_b32 v194, 0\nv_mov_b32 v195, 0")
    a("buffer_store_dwordx4 v[192:195], v2, s[56:59], s8 offen sc1")
    a("KM_nz:")
    def after1():
        a(f"s_cmp_lg_u32 s99, 3\ns_cbranch_scc1 KM_z2\ns_waitcnt vmcnt(0)\ns_mov_b64 exec, 1\nglobal_atomic_add v192, v{V1}, {s(P_DBG,2)} sc1\ns_mov_b64 exec, -1\nKM_z2:")
    a(f"s_setprio {optval('PFP', 3)}")
    a.stamp(1)
    g1.gen_consumer(a, VC, cG1, " sc1", after1)
    a.stamp(4)
    a(f"s_mul_i32 s6, s6, {FB_STRIDE}\ns_add_u32 s6, s6, {FH_OFF}")
    a.zcheck(14, 13)
    a(f"s_mov_b64 exec, 1\nds_add_rtn_u32 v5, v{VC}, v{V1} offset:{cHs}\ns_mov_b64 exec, -1")
    a("s_waitcnt lgkmcnt(0)")
    a("v_readfirstlane_b32 s7, v5")
    a("s_cmp_lg_u32 s7, 3\ns_cbranch_scc1 KM_pj")
    a.addflag("s6", 14)
    a("s_branch KM_pj")
    a("KM_free:")
    a("s_waitcnt lgkmcnt(0)\ns_barrier")
    a.srd(56, P_WS, WS_BYTES)
    a(f"s_lshl_b32 s13, s3, 12\ns_add_u32 s13, s13, {SCR}")
    a("s_lshl_b32 s12, s3, 3\ns_add_u32 s12, s12, s97\ns_sub_u32 s12, s12, 24")
    a("s_cmp_ge_u32 s12, 39\ns_cbranch_scc1 KM_fpt")
    a("s_cmp_lt_u32 s12, 3\ns_cbranch_scc1 KM_mean")
    a("s_mul_i32 s6, s96, 36\ns_add_u32 s6, s6, s12\ns_sub_u32 s6, s6, 3")
    if "nokv" in OPT:
        a.ldsadd(VC, V1, cG1)
        a("s_sleep 60\ns_branch KM_fz")
    a("s_setprio 2")
    gen_kv(a)
    a("s_branch KM_fsig")
    a("KM_mean:")
    a("s_mul_i32 s6, s96, 3\ns_add_u32 s6, s6, s12")
    a("s_cmp_ge_u32 s6, 18\ns_cbranch_scc1 KM_fz")
    a("s_setprio 3")
    gen_meantile(a)
    a("s_branch KM_fdone")
    a("KM_fpt:")
    a("s_sub_u32 s12, s12, 39\ns_cmp_ge_u32 s12, 18\ns_cbranch_scc1 KM_fidle")
    a("s_mov_b32 s9, s13\ns_mov_b32 s99, 0")
    if optval("FJW", 0): a.ldswait(VC, 5, 7, optval("FJW", 0), cG1, sleep=4)
    a("KM_job:")
    job_setup(a, "JS")
    gen_pretile(a, 128)
    a("s_mov_b32 s6, s98")
    a("s_cmp_lg_u32 s99, 0\ns_cbranch_scc1 KM_jret")
    a("KM_fsig:")
    a.stamp(3)
    a.zcheck(14, 13)
    a.addflag("s6", 14)
    a("s_branch KM_fdone")
    a("KM_fz:")
    a.zcheck(14, 13)
    a("s_branch KM_fdone")
    a("KM_fidle:")
    a("KM_fi2:")
    a("s_setprio 0")
    a.ldswait(VC, 5, 7, optval("FIDLE", 4), cG1, sleep=4)
    a("KM_fdone:")
    a.stamp(4)
    a("s_cmp_lt_u32 s3, 4\ns_cbranch_scc1 KM_pj")
    consts(a)
    w2_pre(a)
    a("s_mov_b32 s68, 0")
    a("s_branch KM_qj")

    A3 = [(2, 0), (2, 1024), (2, 2048)]
    stP = Stream(a, [(64, A3, " sc1"), (65, A3, " sc1"), (66, [(2, 0), (3, 3072)], " sc1"), (68, [(2, 0), (3, 3072)], " sc1")])
    stQ = Stream(a, [(64, A3, " sc1"), (66, [(2, 0), (2, 1024), (2, 2048), (2, 3072), (3, 0)], " sc1")])
    def addrs():
        a(f"v_mov_b32 v6, v2\nv_add_u32 v7, 36864, v2\nv_add_u32 v8, {ML_H}, v2\nv_add_u32 v9, {ML_H+36864}, v2")
        h_addr(a, 71, 10, 12)
    def rk():
        a(f"v_and_b32 v5, 15, v1\nv_lshlrev_b32 v5, 4, v5\nv_add_u32 v5, {RM}, v5")
        for m in range(4): a(f"ds_read_b32 v{GT+m}, v5 offset:{256*m}")
        a("s_waitcnt lgkmcnt(0)")
        for m in range(4):
            r = GT + m
            a(f"v_mul_f32 v{KC+2*m}, {fh(GC0)}, v{r}\nv_mul_f32 v{r}, v{r}, v{r}\nv_mul_f32 v{r}, {fh(0.044715)}, v{r}\nv_mul_f32 v{KC+2*m+1}, v{r}, v{KC+2*m}")
    a("KM_pj:")
    a(f"s_setprio {optval('PFP', 3)}")
    a.stamp(5)
    a.ldsadd(VC, V1, cP1)
    consts(a)
    consts2(a)
    gen_gemm2(a)
    a.stamp(8)
    a(f"s_mul_i32 s6, s61, {FB_STRIDE}\ns_lshl_b32 s7, s60, 2\ns_add_u32 s6, s6, s7\ns_add_u32 s6, s6, {FX_OFF}")
    P0 = 0
    a("s_waitcnt vmcnt(0)")
    a(f"s_mov_b64 exec, 1\nds_add_rtn_u32 v5, v{VC}, v{V1} offset:{cG2}\ns_mov_b64 exec, -1")
    a("s_waitcnt lgkmcnt(0)")
    a("v_readfirstlane_b32 s7, v5")
    a("s_cmp_lg_u32 s7, 3\ns_cbranch_scc1 KB_nosig")
    a.setflag("s6", 14)
    a("KB_nosig:")
    a("s_cmp_lg_u32 s3, 1\ns_cbranch_scc1 KB_w3\ns_cmp_ge_u32 s48, 18\ns_cbranch_scc1 KB_w3b")
    a("s_add_u32 s6, s70, 128")
    a.cpoll(6, 18, 48, 13, 8)
    a("KB_w3b:")
    a.ldsadd(VC, V1, cW3a)
    a("KB_w3:")
    a.ldswait(VC, 5, 7, 1, cW3a)
    a.ldswait(VC, 5, 7, 4, cG2)
    PRE = optval("PPRE", NS)
    paced(a, stP, PRE - P0, optval("PPACE", 8))
    addrs()
    a(f"s_mul_i32 s6, s5, {FB_STRIDE}\ns_add_u32 s6, s6, {FX_OFF}")
    a(f"s_mul_i32 s9, s3, 18432\ns_mov_b32 m0, s9\ns_mul_i32 s7, s5, 73728\ns_add_u32 s7, s7, s9\ns_add_u32 s7, s7, {X1_OFF}")
    a("s_cmp_lg_u32 s3, 0\ns_cbranch_scc1 KB_xw")
    a.spoll(8, 6, 44, 13, 1)
    a.ldsadd(VC, V1, cFX)
    a("s_branch KB_xg")
    a("KB_xw:")
    a.ldswait(VC, 5, 8, 1, cFX)
    a("KB_xg:")
    a.stamp(9)
    def xdma(i):
        if i and i % 4 == 0: a("s_add_u32 m0, m0, 4096\ns_add_u32 s7, s7, 4096")
        a(f"buffer_load_dwordx4 v2, s[56:59], s7 offen offset:{(i%4)*1024} sc1 lds")
        stP.other(f"x{i}")
    XP = optval("XP", 6)
    for i in range(XP): xdma(i)
    for i in range(NS - PRE): stP.issue()
    a(f"s_lshl_b32 s6, s5, 11\ns_add_u32 s6, s6, {SS_OFF}\ns_lshl_b32 s8, s5, 8\ns_add_u32 s8, s8, {MEAN_OFF}\ns_lshl_b32 s9, s5, 9\ns_add_u32 s9, s9, {ST1_OFF}")
    a("v_lshlrev_b32 v18, 3, v1")
    late = [(lambda i=i: xdma(i)) for i in range(XP, 18)]
    def stat(ins, tag="x"):
        a(ins); stP.other(tag)
    late += [(lambda i=i: stat(f"buffer_load_dword v{GT+i}, v4, s[56:59], s6 offen offset:{256*i} sc1")) for i in range(8)]
    late += [lambda: stat(f"buffer_load_dword v{GT+9}, v4, s[56:59], s8 offen sc1")]
    late += [lambda: stat(f"buffer_load_dwordx2 {v(GT+10,2)}, v18, s[56:59], s9 offen sc1", "st")]
    for i in range(optval("XE", 4)): late.pop(0)()
    a(f"s_waitcnt vmcnt({stP.younger(f'x{XP-1}')})")
    a.subbar(VC, 5, 10, 4, off=cX1)
    a.stamp(10 if not fine else 1)
    def xhook(ks, i):
        if i in (0, 4, 8, 10, 11, 3) and late: late.pop(0)()
    mphase(a, stP, 0, 6, 0, XP, prio=2, hook=xhook)
    assert not late
    a(f"s_waitcnt vmcnt({stP.younger('st')})")
    for i in range(1, 8): a(f"v_add_f32 v{GT}, v{GT}, v{GT+i}")
    a(f"v_mov_b32 v{GT+1}, {fh(1.0/D)}\nv_fmaak_f32 v{GT}, v{GT+1}, v{GT}, {fh(EPS)}")
    a(f"v_rsq_f32 v{GT+8}, v{GT}")
    a(f"v_add_u32 v5, {RM}, v2\ns_nop 0")
    a(f"ds_write_b128 v5, {v(GT+8,4)}")
    a.subbar(VC, 5, 7, 4, off=cX2)
    kw = 18 - (NS + 2) // 3
    def w3hook(ks, i):
        if ks == kw - 1 and i == 10: a.ldswait(VC, 5, 7, 1, cW3)
    mphase(a, stP, 0, 6, XP, 18, first=False, prio=2, hook=w3hook)
    if fine: a.stamp(2)
    rk()
    a.ldswait(VC, 5, 7, 4, cSide, sleep=1)
    gphase(a, 10, 12)
    a.ldsadd(VC, V1, cH1)
    if fine: a.stamp(3)
    a("s_add_u32 s71, s71, 24")
    h_addr(a, 71, 10, 12)
    a.ldswait(VC, 5, 7, 1, cW4, sleep=1)
    mphase(a, stP, 1, 6, prio=1)
    a.ldsadd(VC, V1, cA)
    if fine: a.stamp(4)
    def sthook(i):
        if i == 1:
            a.ldswait(VC, 5, 7, 4, cA, sleep=1)
            a.ldswait(VC, 5, 7, 8, cH1, sleep=1)
            stage_x(a)
            stage_y(a)
    gphase(a, 10, 12, sthook)
    a("s_waitcnt vmcnt(0)")
    a.subbar(VC, 5, 7, 4, off=cH2)
    if fine: a.stamp(5)
    mphase(a, stP, 2, 8)
    if fine: a.stamp(6)
    a("s_add_u32 s6, s67, 14336\ns_add_u32 s7, s69, 128")
    pend = []
    for k, (t, mp) in enumerate([(0, 0), (0, 1), (1, 0), (1, 1)]):
        pend += pstore(a, MACC, t, mp, 67 if t == 0 else 6, mp * 1024, k)
    state = {"flag": False}
    def hook(ks, i):
        if (ks >= 1 or i >= 3) and i not in (1, 5) and pend:
            ins = pend.pop(0); a(ins)
            if ins.startswith("buffer"): stP.other("e" if not pend else "x")
        if not pend and not state["flag"] and ks == optval("EFLAG", 14) and i == 0:
            a(f"s_waitcnt vmcnt({stP.younger('e')})")
            a.setflag("s7", 14); stP.other()
            state["flag"] = True
    mphase(a, stP, 3, 8, acc=MACC + 32, hook=hook)
    assert state["flag"]
    if fine: a.stamp(7)
    a("s_setprio 3")
    a.nop(8)
    for k, (t, mp) in enumerate([(0, 0), (0, 1), (1, 0), (1, 1)]):
        for ins in pstore(a, MACC + 32, t, mp, 67 if t == 0 else 6, 2048 + mp * 1024, k): a(ins)
    a("s_add_u32 s7, s69, 256")
    a("s_waitcnt vmcnt(0)")
    a.setflag("s7", 14)
    a.end()
    a("KM_qj:")
    a("s_setprio 0")
    a.stamp(5)
    a.ldsadd(VC, V1, cP1)
    gen_w2load(a)
    a.stamp(7 if not fine else 2)
    consts2(a)
    if "noside" in OPT:
        a.ldsadd(VC, V1, cW3)
        a.ldswait(VC, 5, 7, 4, cX1, sleep=2)
        a("s_branch KB_q2b")
    a("s_cmp_eq_u32 s3, 7\ns_cbranch_scc1 KB_w7")
    a("s_cmp_eq_u32 s63, 3\ns_cbranch_scc1 KB_nc")
    a("s_lshr_b32 s6, s60, 2\ns_sub_u32 s6, s60, s6\ns_mul_i32 s7, s61, 6\ns_add_u32 s6, s6, s7\ns_mul_i32 s6, s6, 3")
    a("s_sub_u32 s7, s3, 4\ns_add_u32 s52, s6, s7")
    a(f"s_mul_i32 s7, s7, {CV_SZ}\ns_add_u32 s53, s7, {CV}")
    a("s_cmp_lg_u32 s3, 4\ns_cbranch_scc1 KB_kw")
    for d in (0, 2):
        a(f"s_add_u32 s8, s52, {d}\ns_lshr_b32 s8, s8, 6\ns_mul_i32 s9, s8, 86\ns_lshr_b32 s9, s9, 8\ns_mul_i32 s9, s9, {FB_STRIDE-384}\ns_lshl_b32 s8, s8, 7\ns_add_u32 s8, s8, s9\ns_add_u32 s8, s8, {FKV_OFF}")
        a.cpoll(8, 32, 44, 13, 12)
    a.ldsadd(VC, V1, cKV)
    a("KB_kw:")
    a.ldswait(VC, 5, 7, 1, cKV, sleep=2)
    a.ldswait(VC, 5, 7, 8, cP1, sleep=1)
    if "cvearly" not in OPT: a.ldswait(VC, 5, 7, 4, cHl, sleep=2)
    if not fine: a.stamp(8)
    gen_conv_load(a, " sc1")
    st_save = a.stamps
    a.stamps = st_save and not fine
    kb4.gen_conv(a, None, " sc1", "none")
    a.stamps = st_save
    a(f"s_lshr_b32 s6, s6, 4\ns_mul_i32 s6, s6, 57\ns_lshr_b32 s6, s6, 9\ns_mul_i32 s6, s6, {FB_STRIDE}\ns_add_u32 s6, s6, {FY_OFF}")
    a.ldsadd(VC, V1, cSide)
    a("s_waitcnt vmcnt(0)")
    a.addflag("s6", 14)
    a("s_branch KB_q3")
    a("KB_w7:")
    a(f"s_add_u32 s52, s97, 18\ns_add_u32 s53, s97, 54\ns_mov_b32 s54, {PT7}")
    a("s_branch KB_q2")
    a("KB_nc:")
    a("s_lshr_b32 s12, s97, 2\ns_mul_i32 s12, s12, 3\ns_add_u32 s12, s12, s3\ns_sub_u32 s12, s12, 4")
    a("s_add_u32 s52, s12, 50\ns_cmp_ge_u32 s12, 4\ns_cselect_b32 s52, 108, s52\ns_add_u32 s53, s12, 86")
    a(f"s_lshl_b32 s54, s3, 12\ns_add_u32 s54, s54, {SCR}")
    a("KB_q2:")
    a.ldswait(VC, 5, 7, 8, cP1, sleep=2)
    a(f"s_mov_b32 s99, 1\ns_mov_b32 s12, s52\ns_setprio {optval('J1P', 0)}")
    a("KB_jl:")
    a("s_mov_b32 s9, s54\ns_cmp_lt_u32 s12, 108\ns_cbranch_scc1 KM_job")
    a("s_branch KB_jn")
    a("KM_jret:")
    a("s_waitcnt vmcnt(0)")
    a.addflag("s6", 14)
    a("KB_jn:")
    a("s_cmp_eq_u32 s99, 2\ns_cbranch_scc1 KB_q2b")
    if not fine: a.stamp(8)
    W4W = optval("W4W", 0)
    if W4W < 0: a("s_cmp_eq_u32 s3, 7\ns_cbranch_scc1 KB_j3")
    a.ldswait(VC, 5, 7, 4, max(W4W, 0), sleep=2)
    a("KB_j3:")
    a(f"s_mov_b32 s99, 2\ns_mov_b32 s12, s53\ns_setprio {optval('J2P', 3)}\ns_branch KB_jl")
    a("KB_q2b:")
    a.ldsadd(VC, V1, cSide)
    a("s_cmp_lg_u32 s3, 7\ns_cbranch_scc1 KB_q3")
    a("s_add_u32 s8, s70, 256")
    if "noside" not in OPT: a.cpoll(8, 36, 44, 13, 16)
    a.ldsadd(VC, V1, cW3)
    a("KB_q3:")
    a.stamp(9 if not fine else 3)
    a("s_setprio 0")
    a.ldswait(VC, 5, 7, 1, cW3, sleep=2)
    QW = optval("QRW", -1)
    if QW >= 0: a.ldswait(VC, 5, 7, 4, QW, sleep=2)
    paced(a, stQ, NS, optval("QPACE", 6))
    if not fine: a.stamp(6)
    addrs()
    a.ldswait(VC, 5, 7, 4, cX2, sleep=1)
    rk()
    mphase(a, stQ, 0, 6, 0, kw, prio=2)
    a("s_cmp_lg_u32 s3, 7\ns_cbranch_scc1 KB_q2c")
    if "noside" not in OPT: a.cpoll(70, 54, 44, 13, 16)
    a.ldsadd(VC, V1, cW4)
    a("KB_q2c:")
    a.ldswait(VC, 5, 7, 1, cW4)
    mphase(a, stQ, 0, 6, kw, 18, first=False, prio=2)
    a.ldswait(VC, 5, 7, 4, cSide)
    if fine: a.stamp(4)
    a(f"s_lshr_b32 s8, s4, 1\ns_mul_i32 s8, s8, {FB_STRIDE}\ns_add_u32 s8, s8, {FY_OFF}")
    def yhook(i):
        if i == 3:
            a("s_cmp_lg_u32 s3, 7\ns_cbranch_scc1 KB_ys")
            if "noside" not in OPT: a.vpoll(8, 144, 14, 13, 32)
            a("KB_ys:")
    gphase(a, 10, 12, yhook)
    a.subbar(VC, 5, 7, 8, off=cH1)
    if fine: a.stamp(5)
    mphase(a, stQ, 1, 8, 0, 12, prio=1)
    a.ldswait(VC, 5, 7, 4, cH2, sleep=1)
    if fine: a.stamp(7)
    mphase(a, stQ, 1, 8, 12, 18, first=False, prio=1)
    a(f"s_setprio {optval('QT', 1)}")
    a.stamp(10)
    a.nop(8)
    for k in range(10):
        if k and k % 4 == 0: a("s_add_u32 s67, s67, 4096")
        for x in pstore(a, MACC, k >> 1, k & 1, 67, (k % 4) * 1024, k): a(x)
    a("s_waitcnt vmcnt(0)")
    a.setflag("s69", 14)
    a(f"s_setprio {optval('QF', 0)}")
    gen_final(a)
    a.end()
    a("KM_end:")
    a("s_endpgm")
```

```python
from common import *
import kb4, km
from g1 import gelu_pk
import conv, tail
from kb4 import Stream, mphase, gphase, h_addr, pstore, stage_x, stage_y, gen_final, gen_conv_load, paced, NS, RING, BF, MACC, KC, GT, ML_H, VC, V1

G2_WM, G2_W = 0, 2560
SLOT = 24576
G1_BASE = 76800
G1_AUX = 150528
CV_SZ = 21248
FSCR = 4 * CV_SZ
CNT = 158592
RM = CNT + 128
K6_LDS = RM + 1024
kb4.RM = RM
cG2, cX1, cX2, cFX, cSide, cH1, cA, cH2, cW4, cG1, cFH, cU, cW3, cHs, cW3a, cKV, cXs, cT1, cT2, cT3, cT0, cOwn = [4 * i for i in range(22)]
cU2 = cOwn + 16
km.cG1 = cG1

TB = G1_BASE + SLOT
W4F = optval('W4F', 432)

def last_of(a, off, n, skip):
    a(f"s_mov_b64 exec, 1\nds_add_rtn_u32 v5, v{VC}, v{V1} offset:{off}\ns_mov_b64 exec, -1")
    a("s_waitcnt lgkmcnt(0)")
    a("v_readfirstlane_b32 s7, v5")
    a(f"s_cmp_lg_u32 s7, {n-1}\ns_cbranch_scc1 {skip}")

def gen_g(a):
    BUF, ACC, STA, CSA, SQ, SM, CS, ONE, XA, WA = 32, 96, 112, 124, 140, 144, 148, 152, 184, 188
    log = []
    DM = (18, 20, 22, 28)
    a("v_lshrrev_b32 v2, 2, v1\nv_and_b32 v3, 3, v1\nv_mul_u32_u24 v4, 1152, v2")
    a("v_lshrrev_b32 v6, 5, v1\nv_lshlrev_b32 v6, 1, v6\nv_xor_b32 v6, v6, v3\nv_lshl_add_u32 v6, v6, 4, v4")
    a("s_mul_i32 s10, s60, 147456\ns_mul_i32 s9, s3, 18432\ns_add_u32 s10, s10, s9")
    a("s_lshr_b32 s8, s3, 1\ns_mul_i32 s11, s8, 18432\ns_lshl_b32 s9, s61, 7\ns_add_u32 s11, s11, s9\ns_and_b32 s9, s3, 1\ns_lshl_b32 s9, s9, 6\ns_add_u32 s11, s11, s9")
    a("s_mul_i32 s14, s62, 7\ns_add_u32 s14, s14, 1\ns_mov_b32 s12, s61")
    a("s_lshl_b32 s13, s3, 10")
    a("s_waitcnt lgkmcnt(0)")
    a.srd(48, P_Q, ACT)
    a.srd(44, P_W1, D * D * 2)
    SB = [G2_W, G2_W + SLOT, G2_W + 2 * SLOT, G1_BASE, G1_BASE + SLOT, G1_BASE + 2 * SLOT, G2_W, G2_W + SLOT, G1_BASE]
    def issue(gi):
        sl = SB[gi]
        a("s_add_u32 s12, s12, s14\ns_sub_u32 s9, s12, 9\ns_cmp_ge_u32 s12, 9\ns_cselect_b32 s12, s9, s12")
        a(f"s_lshl_b32 s15, s12, 7\ns_add_u32 s15, s15, s10\ns_add_u32 m0, s13, {sl}\ns_mul_i32 s9, s12, 73728")
        a("buffer_load_dwordx4 v6, s[48:51], s15 offen" + (" nt" if "xnt" in OPT else "") + " lds")
        a("s_add_u32 m0, m0, 8128\ns_add_u32 s9, s9, s11")
        a("buffer_load_dwordx4 v6, s[48:51], s15 offen offset:64" + (" nt" if "xnt" in OPT else "") + " lds")
        a("s_add_u32 m0, m0, 8256\ns_nop 0")
        a("buffer_load_dwordx4 v6, s[44:47], s9 offen" + (" nt" if "wnt" in OPT else "") + " lds")
        log.extend(["x", "x", f"g{gi}"])
    younger = lambda key: len(log) - 1 - log.index(key)
    issue(0); issue(1)
    if "w1t" in OPT:
        a("s_mul_i32 s8, s62, 288\ns_lshl_b32 s9, s61, 6\ns_add_u32 s8, s8, s9\ns_add_u32 s8, s8, 32\ns_mul_i32 s9, s3, 36\ns_add_u32 s8, s8, s9")
        a("v_min_u32 v7, 35, v1\nv_add_u32 v7, s8, v7\nv_subrev_u32 v8, 576, v7\nv_min_u32 v7, v7, v8\nv_mul_u32_u24 v7, 1152, v7\ns_lshl_b32 s9, s61, 7")
        a("buffer_load_dword v31, v7, s[44:47], s9 offen")
        log.append("t")
    a.srd(56, P_WS, WS_BYTES)
    a("s_cmp_lg_u32 s3, 0\ns_cbranch_scc1 G_pf")
    a("s_mov_b64 exec, 0xffff")
    a(f"v_lshl_add_u32 v7, v1, 2, v{VC}\nv_mov_b32 v8, 0\nds_write2_b32 v7, v8, v8 offset0:0 offset1:16")
    a("s_mov_b64 exec, -1")
    a("G_pf:")
    a.srd(52, P_W2, D * D * 2)
    a("v_bfe_u32 v7, v1, 4, 1\nv_lshlrev_b32 v8, 1, v7\nv_xor_b32 v8, v8, v3\nv_lshl_add_u32 v30, v8, 4, v4")
    a(f"v_lshlrev_b32 v12, 6, v2\nv_lshl_add_u32 v12, v7, 5, v12\nv_lshl_add_u32 v12, v3, 3, v12\nv_add_u32 v22, {G2_W}, v12\nv_xor_b32 v23, 32, v22")
    a(f"s_mov_b32 s66, s11\ns_lshl_b32 s67, s3, 10\ns_add_u32 s67, s67, {G2_W}")
    a("v_and_b32 v2, 15, v1\nv_lshrrev_b32 v3, 4, v1")
    a("v_bfe_u32 v4, v1, 3, 1\nv_lshlrev_b32 v4, 1, v4")
    a("v_xor_b32 v5, v4, v3\nv_lshl_add_u32 v5, v2, 2, v5\nv_lshlrev_b32 v5, 4, v5")
    a("s_and_b32 s63, s3, 3\ns_lshr_b32 s64, s3, 2\ns_and_b32 s69, s3, 1\ns_lshr_b32 s70, s63, 1\ns_lshl_b32 s71, s63, 1\ns_add_u32 s71, s71, s64")
    a("s_lshl_b32 s9, s71, 10\ns_lshl_b32 s8, s69, 13\ns_add_u32 s9, s9, s8\nv_add_u32 v5, s9, v5")
    for i, x in enumerate((0, 1024, 8192, 9216)): a(f"v_xor_b32 v{XA+i}, {x}, v5\nv_add_u32 v{XA+i}, {G2_W}, v{XA+i}")
    a("v_lshrrev_b32 v5, 1, v3\nv_lshlrev_b32 v11, 11, v5\nv_and_b32 v8, 1, v3\nv_lshl_add_u32 v11, v8, 9, v11")
    a("v_lshrrev_b32 v7, 2, v2\nv_lshl_add_u32 v11, v7, 6, v11\nv_and_b32 v7, 3, v1\nv_lshl_add_u32 v11, v7, 3, v11\nv_lshl_add_u32 v11, v8, 5, v11")
    a("s_lshl_b32 s9, s64, 10\ns_lshl_b32 s8, s69, 12\ns_add_u32 s9, s9, s8\nv_add_u32 v11, s9, v11\ns_lshl_b32 s8, s70, 5\nv_xor_b32 v11, s8, v11")
    for i, x in enumerate((0, 32, 4096, 4128)): a(f"v_xor_b32 v{WA+i}, {x}, v11\nv_add_u32 v{WA+i}, {G2_W+16384}, v{WA+i}")
    a(f"v_xor_b32 v5, v5, v4\nv_lshl_add_u32 v5, v2, 2, v5\nv_lshlrev_b32 v20, 4, v5\nv_lshl_add_u32 v20, v8, 3, v20\ns_add_u32 s9, s13, {G1_BASE}\nv_add_u32 v20, s9, v20\nv_xor_b32 v21, 32, v20")
    a("v_lshlrev_b32 v13, 4, v2\nv_lshlrev_b32 v18, 4, v3\nv_lshlrev_b32 v25, 4, v1")
    a(f"s_lshl_b32 s9, s71, 8\ns_add_u32 s9, s9, {G1_AUX}\nv_add_u32 v26, s9, v13\nv_xor_b32 v27, 256, v26")
    a(f"s_lshl_b32 s9, s64, 8\ns_lshl_b32 s8, s70, 7\ns_add_u32 s9, s9, s8\ns_add_u32 s9, s9, {G1_AUX+2048}\nv_add_u32 v28, s9, v18\nv_xor_b32 v29, 128, v28\ns_lshl_b32 s8, s69, 6\nv_add_u32 v24, s8, v28")
    a(f"s_lshl_b32 s65, s60, 3\ns_add_u32 s65, s65, s71\ns_lshl_b32 s68, s65, 8\ns_add_u32 s68, s68, {ST1_OFF}\ns_xor_b32 s98, s65, 1")
    a(f"s_lshl_b32 s9, s61, 11\ns_lshl_b32 s8, s64, 10\ns_add_u32 s9, s9, s8\ns_add_u32 s9, s9, {H_OFF}\ns_mul_i32 s65, s65, 18432\ns_add_u32 s65, s65, s9\ns_mul_i32 s98, s98, 18432\ns_add_u32 s98, s98, s9")
    a(f"v_mov_b32 v160, {fh(GC0)}\nv_mov_b32 v161, {fh(GC0)}\nv_mov_b32 v162, {fh(GC1)}\nv_mov_b32 v163, {fh(GC1)}\nv_mov_b32 v164, 1.0\nv_mov_b32 v165, 1.0")
    for r in range(4): a(f"v_mov_b32 v{ONE+r}, 0x3f803f80")
    a("v_lshlrev_b32 v7, 2, v3\nv_sub_u32 v19, v2, v7")
    def w2issue(part):
        for i in range(3 * part, 3 * part + 3):
            a(f"s_add_u32 m0, s67, {8192*i}\ns_add_u32 s9, s66, {73728*i}")
            a("buffer_load_dwordx4 v30, s[52:55], s9 offen" + (" nt" if "w2nt" in OPT else "") + " lds")
            log.append("w")
    def reads(gi):
        o0 = SB[gi] - (G2_W if SB[gi] < G1_BASE else G1_BASE)
        b = BUF + 32 * (gi & 1)
        o = []
        for k2 in range(2):
            for mi in range(2): o.append(f"ds_read_b128 {v(b+16*k2+4*mi,4)}, v{XA+2*k2+mi} offset:{o0}")
            for t in range(2):
                for jh in range(2): o.append(f"ds_read_b64_tr_b16 {v(b+16*k2+8+4*t+2*jh,2)}, v{WA+2*k2+t} offset:{o0+256*jh}")
        return o
    for r in range(4): a(f"v_cmp_eq_u32 {s(DM[r],2)}, {r}, v19")
    fin = [f"v_cndmask_b32 v{STA}, 0, v{SQ}, {s(DM[0],2)}"] + [f"v_cndmask_b32 v{STA}, v{STA}, v{SQ+r}, {s(DM[r],2)}" for r in range(1, 4)]
    fin += [f"v_mul_f32 v{STA+2}, {fh(-1.0/D)}, v{SM}"]
    fin += [f"v_mov_b32 v7, v{STA}", "s_nop 1", f"v_permlane32_swap_b32 v{STA}, v7", f"v_add_f32 v{STA}, v{STA}, v7"]
    fin += [f"v_mov_b32 v7, v{STA}", "s_nop 1", f"v_permlane16_swap_b32 v{STA}, v7", f"v_add_f32 v{STA}, v{STA}, v7"]
    fin += f"v_mul_f32 v7, {fh(1.0/D)}, v{STA}\nv_fma_f32 v7, -v{STA+2}, v{STA+2}, v7\nv_max_f32 v7, 0, v7\nv_add_f32 v8, {fh(EPS)}, v7\nv_rsq_f32 v{STA}, v8\ns_nop 0".split("\n")
    fin += f"v_mul_f32 v8, v{STA}, v{STA}\nv_fmaak_f32 v8, v8, v7, {fh(EPS)}\nv_rsq_f32 v8, v8\nv_mul_f32 v{STA+1}, v{STA+2}, v{STA}\nv_mul_f32 v{STA+3}, v8, v{STA}".split("\n")
    LP, LQ = optval("LP", 2), optval("LQ", 3)
    log0 = list(log); fin0 = list(fin)
    a("s_cmp_ge_u32 s3, 4\ns_cbranch_scc1 G_lq")
    for role in "PQ":
        log[:] = log0; fin[:] = fin0
        LA = LP if role == "P" else LQ
        if role == "Q": a("G_lq:")
        for g in range(2, LA): issue(g)
        for gi in range(10):
            rd = []
            if gi < 9:
                if gi in (3, 6, 8):
                    for r in range(8): a(f"v_add_u32 v{XA+r}, {(G1_BASE-G2_W) if gi != 6 else -(G1_BASE-G2_W)}, v{XA+r}")
                a(f"s_waitcnt vmcnt({younger(f'g{gi}')}) lgkmcnt(0)\ns_barrier")
                if gi == 0 or "g1t" in OPT: a.stamp(1 + gi)
                rd = reads(gi)
            else: a("s_waitcnt lgkmcnt(0)")
            def mem():
                if gi + LA < 9: issue(gi + LA)
            for _ in range(optval("RF", 0)):
                if rd: a(rd.pop(0))
            if role == "P" and gi < 7: mem()
            if gi > 0:
                b = BUF + 32 * ((gi - 1) & 1)
                z = "0" if gi == 1 else None
                mm = [(SQ, b, b, z), (SM, ONE, b, z), (SQ, b + 16, b + 16, None), (SM, ONE, b + 16, None), (CS, b + 8, ONE, z)]
                mm += [(ACC + 8 * mi + 4 * t, b + 16 * k2 + 8 + 4 * t, b + 16 * k2 + 4 * mi, z if k2 == 0 else None) for k2 in range(2) for t in range(2) for mi in range(2)]
                for n, (d, x, y, c) in enumerate(mm):
                    if rd: a(rd.pop(0))
                    a.mfma(d, x, y, c)
                    if gi == 9 and n == 5: a.nop(5)
                    if gi == 9 and n >= 5:
                        for _ in range(5):
                            if fin: a(fin.pop(0))
            for r in rd: a(r)
            if role == "Q": mem()
            if gi in (6, 7, 8): w2issue((2, 0, 1)[gi - 6])
            if gi == 8: a(f"s_load_dword s69, {s(P_DBG,2)}, 0")
        if role == "P": a("s_branch G_lj")
    a("G_lj:")
    for x in fin: a(x)
    a(f"ds_write_b128 v24, {v(CS,4)}")
    a(f"ds_write_b128 v26, {v(STA,4)}")
    a("s_waitcnt lgkmcnt(0)\ns_barrier")
    a.stamp(2 if "g1t" not in OPT else 10)
    if "g1t" in OPT: a.end()
    for t in range(2):
        for q in range(2): a(f"ds_read_b128 {v(CSA+8*t+4*q,4)}, v{28+t} offset:{64*q}")
    a(f"ds_read_b128 {v(STA+4,4)}, v27")
    a(f"s_mov_b32 s63, {W2M_OFF}\nv_min_u32 v31, 240, v25\nv_mov_b32 v192, 0\ns_cmp_eq_u32 s69, 0\ns_cselect_b32 s9, 0, s3\ns_cmp_lg_u32 s9, 7\ns_cbranch_scc1 G_w0")
    a("buffer_load_dwordx4 v[192:195], v25, s[56:59], s63 offen sc1\nbuffer_load_dwordx4 v[196:199], v25, s[56:59], s63 offen offset:1024 sc1\nbuffer_load_dwordx4 v[200:203], v31, s[56:59], s63 offen offset:2048 sc1")
    a("G_w0:")
    a("s_mov_b32 s100, 2\ns_cmp_lt_u32 s3, 4\ns_cbranch_scc1 G_t0\ns_cmp_ge_u32 s2, 128\ns_cbranch_scc1 G_t0\ns_mov_b32 s100, 0")
    conv.team_k(a, TB, 25, 5)
    a("G_t0:")
    a("s_cmp_lg_u32 s61, 0\ns_cbranch_scc1 G_ns")
    a(f"s_mov_b64 exec, 0xffff\nbuffer_store_dwordx4 {v(STA,4)}, v13, s[56:59], s68 offen sc1\ns_mov_b64 exec, -1")
    a("G_ns:")
    a(f"v_mov_b32 v{STA+8}, v{STA+2}\nv_mov_b32 v{STA+9}, v{STA+2}\nv_mov_b32 v{STA+10}, v{STA+3}\nv_mov_b32 v{STA+11}, v{STA+3}")
    a("s_waitcnt lgkmcnt(0)")
    for t in range(2):
        for e in range(0, 4, 2): a(f"v_pk_add_f32 {v(CSA+8*t+e,2)}, {v(CSA+8*t+e,2)}, {v(CSA+8*t+4+e,2)}")
    a(f"v_mov_b32 v{STA+4}, v{STA+6}\nv_mov_b32 v{STA+5}, v{STA+6}\nv_mov_b32 v{STA+6}, v{STA+7}")
    for mi in range(2):
        c = STA + 8 - 4 * mi
        regs = [ACC + 8 * mi + e for e in range(8)]
        for e in range(0, 8, 2): a(f"v_pk_fma_f32 {v(regs[e],2)}, {v(c,2)}, {v(CSA+8*(e>>2)+(e&3),2)}, {v(regs[e],2)}")
        for e in range(0, 8, 2): a(f"v_pk_mul_f32 {v(regs[e],2)}, {v(regs[e],2)}, {v(c+2,2)}")
        gelu_pk(a, regs, list(range(168, 176)), "v[160:161]", "v[162:163]", "v[164:165]")
        l1 = a.lab("GS"); l2 = a.lab("GT")
        a(f"s_cmp_lg_u32 s70, 0\ns_cbranch_scc1 {l1}")
        for e in range(4): a(f"v_cvt_pk_bf16_f32 v{176+4*mi+e}, v{regs[2*e]}, v{regs[2*e+1]}")
        a(f"s_branch {l2}\n{l1}:")
        for e in range(4): a(f"v_cvt_pk_bf16_f32 v{176+4*mi+(e^2)}, v{regs[2*e]}, v{regs[2*e+1]}")
        a(f"{l2}:")
        a(f"buffer_store_dwordx4 {v(176+4*mi,4)}, v25, s[56:59], s{65 if mi == 0 else 98} offen sc1")
    a.stamp(3)
    HB, AR, AC2 = 32, 104, 224
    a("v_lshlrev_b32 v2, 4, v1\nv_add_u32 v3, 4096, v2\nv_lshlrev_b32 v4, 2, v1")
    a("s_lshl_b32 s8, s60, 3\ns_add_u32 s8, s8, s3")
    a("v_and_b32 v11, 1, v1\nv_lshlrev_b32 v11, 6, v11\nv_add_u32 v11, v11, v18")
    a("v_add_u32 v28, 36864, v22\nv_add_u32 v29, 36864, v23")
    a("v_and_b32 v8, 15, v1\ns_lshl_b32 s10, s8, 4\nv_add_u32 v8, s10, v8\nv_lshlrev_b32 v9, 4, v18\ns_movk_i32 s13, 18432\nv_mov_b32 v10, 0x80000000")
    for gam, sh in enumerate((-1, 1, -2, 2)):
        a(f"v_add_u32 v5, {sh}, v8\nv_cmp_gt_u32 vcc, {S}, v5\nv_lshrrev_b32 v6, 4, v5\nv_mad_u32_u24 v6, v6, s13, v9\nv_and_b32 v5, 15, v5\nv_lshl_add_u32 v6, v5, 4, v6")
        a(f"v_cndmask_b32 v{24+gam}, v10, v6, vcc")
    a(f"s_mul_i32 s11, s8, 18432\ns_lshl_b32 s9, s61, 11\ns_add_u32 s11, s11, s9\ns_add_u32 s11, s11, {X1_OFF}")
    a(f"s_mul_i32 s6, s60, {FB_STRIDE}\ns_add_u32 s6, s6, {FH_OFF}\ns_lshl_b32 s10, s3, 8\ns_add_u32 s10, s10, {G1_AUX}\nv_add_u32 v13, s10, v13\ns_mov_b32 s14, {H_OFF}")
    a("ds_read_b64 v[18:19], v13")
    a("s_cmp_lg_u32 s69, 0\ns_cbranch_scc1 G_zk")
    a.zcheck(14, 9, False)
    a("G_zk:")
    G2E = "g2l" not in OPT
    if not G2E: a("s_waitcnt vmcnt(0)")
    def hsig():
        last_of(a, cHs, 8, "G_hs")
        a.sadd(6, 7)
        a("G_hs:")
        a.stamp(4)
    if not G2E: hsig()
    else: a("s_waitcnt vmcnt(2)")
    a("s_cmp_lg_u32 s3, 7\ns_cbranch_scc1 G_wm")
    a("s_mov_b32 s13, 0x20000")
    a("W2_m:")
    a("v_min3_u32 v6, v192, v196, v200\nv_cmp_eq_u32 vcc, 0, v6\ns_cbranch_vccz W2_n")
    a("buffer_load_dwordx4 v[192:195], v2, s[56:59], s63 offen sc1\nbuffer_load_dwordx4 v[196:199], v2, s[56:59], s63 offen offset:1024 sc1\nbuffer_load_dwordx4 v[200:203], v31, s[56:59], s63 offen offset:2048 sc1")
    a("s_waitcnt vmcnt(0)\ns_sleep 2\ns_sub_u32 s13, s13, 1\ns_cbranch_scc0 W2_m")
    a("W2_n:")
    a(f"ds_write_b128 v2, v[192:195] offset:{G2_WM}\nds_write_b128 v2, v[196:199] offset:{G2_WM+1024}\nds_write_b128 v31, v[200:203] offset:{G2_WM+2048}")
    a("s_waitcnt lgkmcnt(0)")
    a("G_wm:")
    if G2E:
        a("s_waitcnt vmcnt(0)")
        hsig()
    a("s_barrier")
    NA = 6
    def ard(ks):
        b = AR + 20 * (ks % NA)
        o = [f"ds_read_b128 {v(b,4)}, v11 offset:{G2_WM+128*ks}"]
        for t in range(4):
            for jh in range(2):
                off = ((ks * 2 + jh) * 2 + (t >> 1)) * 1024
                ad = 22 + (t & 1)
                if off >= 36864: off -= 36864; ad += 6
                o.append(f"ds_read_b64_tr_b16 {v(b+4+4*t+2*jh,2)}, v{ad} offset:{off}")
        return o
    for ks in range(NA):
        for r in ard(ks): a(r)
    for t in range(4): a(f"ds_read_b64 {v(244+2*t,2)}, v{20+(t&1)} offset:{8192*(t>>1)}")
    a("s_cmp_lg_u32 s3, 1\ns_cbranch_scc1 G2_hw")
    a.cpoll(6, 9, 48, 13, 1)
    a("G2_hw:")
    a("s_cmp_lg_u32 s100, 0\ns_cbranch_scc1 G_t1")
    a(f"s_add_u32 s7, s2, 448\ns_lshr_b32 s7, s7, 6\ns_lshl_b32 s7, s7, 7\ns_add_u32 s99, s7, {FKV_OFF+2*(FB_STRIDE-384)}")
    a("G_t1:")
    a(f"s_sub_u32 s7, s6, {FB_STRIDE}\ns_add_u32 s12, s6, {FB_STRIDE}\ns_cmp_eq_u32 s3, 0\ns_cselect_b32 s12, s7, s12")
    a("s_waitcnt lgkmcnt(0)\ns_barrier")
    a("s_add_u32 s7, s8, 1\ns_and_b32 s9, s7, 7\ns_cmp_ge_u32 s9, 2\ns_cbranch_scc1 G2_hg\ns_and_b32 s7, s7, 127\ns_cmp_lt_u32 s7, 2\ns_cbranch_scc1 G2_hg")
    a.cpoll(12, 9, 48, 13, 1)
    a("G2_hg:")
    a(f"s_cmp_lg_u32 s100, 0\ns_cbranch_scc1 G_t3\ns_load_dword s49, {s(P_WS,2)}, s99\nG_t3:")
    a.stamp(5)
    hl = []
    for ks in range(18):
        pre = "s_add_u32 s14, s14, 4096\n" if ks and ks % 4 == 0 else ""
        g0, g1_ = (2 * ks) // 9, (2 * ks + 1) // 9
        if g0 == g1_: hl.append((pre + f"buffer_load_dwordx4 {v(HB+4*ks,4)}, v{24+g0}, s[56:59], s14 offen offset:{(ks%4)*1024} sc1", 1))
        else: hl.append((pre + f"buffer_load_dwordx2 {v(HB+4*ks,2)}, v{24+g0}, s[56:59], s14 offen offset:{(ks%4)*1024} sc1\nbuffer_load_dwordx2 {v(HB+4*ks+2,2)}, v{24+g1_}, s[56:59], s14 offen offset:{(ks%4)*1024+8} sc1", 2))
    if 'hpl' in OPT: hl = [(x.replace(' sc1', ''), n) for x, n in hl]
    HD = optval("HD", 5)
    log2 = []
    def hissue(ks):
        a(hl[ks][0]); log2.extend(["x"] * (hl[ks][1] - 1) + [ks])
    for ks in range(HD): hissue(ks)
    for ks in range(18):
        lg = "" if ks < NA else f" lgkmcnt({min(15, 9*min(NA-1, 17-ks))})"
        a(f"s_waitcnt vmcnt({len(log2)-1-log2.index(ks)}){lg}")
        if ks + HD < 18: hissue(ks + HD)
        if ks == 1:
            a("s_cmp_lg_u32 s100, 0\ns_cbranch_scc1 G_t2\ns_waitcnt lgkmcnt(0)\ns_cmp_eq_u32 s49, 0\ns_cbranch_scc1 G_t2\ns_mov_b32 s100, 1")
            conv.team_kv(a, TB)
            a("G_t2:")
        rd = ard(ks + NA) if ks + NA < 18 else []
        b = AR + 20 * (ks % NA)
        for t in range(5):
            a.mfma(AC2 + 4 * t, b + 4 * t, HB + 4 * ks, "0" if ks == 0 else None)
            for _ in range(1 if t == 0 else 2):
                if rd: a(rd.pop(0))
    a.stamp(6)
    for e in range(8): a(f"v_lshlrev_b32 v{HB+2*e}, 16, v{244+e}\nv_and_b32 v{HB+2*e+1}, 0xffff0000, v{244+e}")
    a(f"v_add_f32 v9, v{AC2}, v{AC2+1}")
    a("v_sub_f32 v28, v19, v9\nv_sub_f32 v29, v19, v9\nv_mov_b32 v19, v18\nv_mov_b32 v10, 0\nv_mov_b32 v11, 0")
    for p in range(2):
        for e in range(0, 8, 2): a(f"v_pk_fma_f32 {v(HB+8*p+e,2)}, {v(HB+8*p+e,2)}, v[18:19], v[28:29]")
        for e in range(0, 8, 2): a(f"v_pk_add_f32 {v(HB+8*p+e,2)}, {v(HB+8*p+e,2)}, {v(AC2+4+8*p+e,2)}")
        for e in range(4): a(f"v_cvt_pk_bf16_f32 v{AR+4*p+e}, v{HB+8*p+2*e}, v{HB+8*p+2*e+1}")
        a(f"buffer_store_dwordx4 {v(AR+4*p,4)}, v2, s[56:59], s11 offen offset:{p*1024} sc1")
    for e in range(0, 16, 2): a(f"v_pk_fma_f32 v[10:11], {v(HB+e,2)}, {v(HB+e,2)}, v[10:11]")
    a("v_add_f32 v10, v10, v11")
    gsum(a, 10, 11)
    a(f"s_mul_i32 s10, s60, 9\ns_add_u32 s10, s10, s61\ns_lshl_b32 s10, s10, 9\ns_lshl_b32 s12, s3, 6\ns_add_u32 s10, s10, s12\ns_add_u32 s10, s10, {SS_OFF}")
    a(f"s_lshl_b32 s12, s8, 6\ns_add_u32 s12, s12, {MEAN_OFF}")
    a("s_mov_b64 exec, 0xffff")
    a("buffer_store_dword v10, v4, s[56:59], s10 offen sc1")
    a("s_cmp_lg_u32 s61, 0\ns_cbranch_scc1 G2_m")
    a("buffer_store_dword v9, v4, s[56:59], s12 offen sc1")
    a("G2_m:")
    a("s_mov_b64 exec, -1")
    a(f"s_sub_u32 s6, s6, {FH_OFF-FX_OFF}")
    consts(a)
    a("s_waitcnt vmcnt(0)")
    last_of(a, cG2, 8, "G_xs")
    a.sadd(6, 7)
    a("G_xs:")
    a.stamp(7)

def gen_stats(a):
    R = 32
    a("v_lshrrev_b32 v2, 2, v1\nv_and_b32 v3, 3, v1\nv_mul_u32_u24 v4, 1152, v2\nv_lshl_add_u32 v4, v3, 4, v4")
    a("s_mul_i32 s7, s6, 18432")
    a.srd(44, P_Q, ACT)
    for i in range(18): a(f"buffer_load_dwordx4 {v(R+4*i,4)}, v4, s[44:47], s7 offen offset:{64*i}")
    a("s_barrier")
    a("v_mov_b32 v8, 0x3f803f80")
    for r in range(4): a(f"v_mov_b32 v{20+r}, 0")
    for i in range(18):
        if i % 3 == 0: a(f"s_waitcnt vmcnt({15-i})")
        for d in range(4):
            a(f"v_dot2c_f32_bf16 v{20+(d&1)}, v{R+4*i+d}, v8\nv_dot2c_f32_bf16 v{22+(d&1)}, v{R+4*i+d}, v{R+4*i+d}")
    a.ldsadd(VC, V1, cG1)
    a("v_add_f32 v20, v20, v21\nv_add_f32 v22, v22, v23\ns_nop 1")
    for qp in ("[1,0,3,2]", "[2,3,0,1]"):
        a(f"v_add_f32_dpp v20, v20, v20 quad_perm:{qp} row_mask:0xf bank_mask:0xf")
        a(f"v_add_f32_dpp v22, v22, v22 quad_perm:{qp} row_mask:0xf bank_mask:0xf")
        a("s_nop 1")
    a(f"v_mul_f32 v26, {fh(-1.0/D)}, v20\nv_mul_f32 v22, {fh(1.0/D)}, v22")
    a("v_fma_f32 v22, -v26, v26, v22\nv_max_f32 v22, 0, v22")
    a(f"v_add_f32 v21, {fh(EPS)}, v22\nv_rsq_f32 v24, v21\ns_nop 0")
    a(f"v_mul_f32 v21, v24, v24\nv_fmaak_f32 v21, v21, v22, {fh(EPS)}\nv_rsq_f32 v21, v21")
    a("v_mul_f32 v25, v26, v24\nv_mul_f32 v27, v21, v24\nv_or_b32 v24, 1, v24")
    a(f"v_lshlrev_b32 v5, 4, v2\ns_lshl_b32 s7, s6, 8\ns_add_u32 s7, s7, {ST1_OFF}")
    a.zcheck(14, 9, False)
    a("s_mov_b32 exec_lo, 0x11111111\ns_mov_b32 exec_hi, 0x11111111")
    a("buffer_store_dwordx4 v[24:27], v5, s[56:59], s7 offen sc1")
    a("s_mov_b64 exec, -1")

def gen_colsum(a):
    R = 32
    a("s_mul_i32 s7, s6, 57\ns_lshr_b32 s7, s7, 9\ns_mul_i32 s8, s7, 9\ns_sub_u32 s8, s6, s8")
    a("v_lshrrev_b32 v2, 3, v1\nv_and_b32 v3, 7, v1\nv_mul_u32_u24 v4, 1152, v2\nv_lshl_add_u32 v4, v3, 4, v4")
    a("s_mul_i32 s10, s7, 165888\ns_lshl_b32 s11, s8, 7\ns_add_u32 s10, s10, s11")
    a.srd(44, P_W1, D * D * 2)
    for i in range(18):
        a(f"buffer_load_dwordx4 {v(R+4*i,4)}, v4, s[44:47], s10 offen\ns_add_u32 s10, s10, 9216")
    a("s_barrier")
    for i in range(18):
        if i % 3 == 0: a(f"s_waitcnt vmcnt({15-i})")
        d = 20 if i == 0 else 104
        for e in range(4): a(f"v_lshlrev_b32 v{d+2*e}, 16, v{R+4*i+e}\nv_and_b32 v{d+2*e+1}, 0xffff0000, v{R+4*i+e}")
        if i:
            for e in range(4): a(f"v_pk_add_f32 {v(20+2*e,2)}, {v(20+2*e,2)}, {v(104+2*e,2)}")
    a.ldsadd(VC, V1, cG1)
    for e in range(8): a(f"v_add_f32_dpp v{20+e}, v{20+e}, v{20+e} row_ror:8 row_mask:0xf bank_mask:0xf")
    for e in range(8): gsum(a, 20 + e, 5)
    for e in range(8): a(f"v_or_b32 v{20+e}, 1, v{20+e}")
    a(f"v_lshlrev_b32 v5, 5, v1\ns_mul_i32 s7, s7, 2304\ns_lshl_b32 s8, s8, 8\ns_add_u32 s7, s7, s8\ns_add_u32 s7, s7, {CSUM_OFF}")
    a.zcheck(14, 9, False)
    a("s_mov_b64 exec, 0xff")
    a("buffer_store_dwordx4 v[20:23], v5, s[56:59], s7 offen sc1\nbuffer_store_dwordx4 v[24:27], v5, s[56:59], s7 offen offset:16 sc1")
    a("s_mov_b64 exec, -1")

def consts(a):
    if "nf1" in OPT: a("s_mov_b32 s4, s96\ns_mov_b32 s5, s97")
    elif "nf2" in OPT:
        a("s_and_b32 s4, s96, 3\ns_lshl_b32 s4, s4, 1\ns_and_b32 s7, s97, 1\ns_add_u32 s4, s4, s7\ns_lshr_b32 s5, s96, 2\ns_lshl_b32 s5, s5, 4\ns_lshr_b32 s7, s97, 1\ns_add_u32 s5, s5, s7")
    else:
        a("s_and_b32 s4, s96, 1\ns_lshl_b32 s4, s4, 2\ns_and_b32 s7, s97, 3\ns_add_u32 s4, s4, s7\ns_lshr_b32 s5, s96, 1\ns_lshl_b32 s5, s5, 3\ns_lshr_b32 s7, s97, 2\ns_add_u32 s5, s5, s7")
    km.consts2(a)

def gen_f(a, stP):
    a("s_cmp_lg_u32 s3, 0\ns_cbranch_scc1 F_pf")
    a("s_mov_b64 exec, 0xffff")
    a(f"v_lshl_add_u32 v7, v1, 2, v{VC}\nv_mov_b32 v8, 0\nds_write2_b32 v7, v8, v8 offset0:0 offset1:16")
    a("s_mov_b64 exec, -1")
    a("F_pf:")
    a(f"s_mul_i32 s61, s3, {CV_SZ}\ns_lshl_b32 s7, s3, 12\ns_add_u32 s7, s7, {FSCR-4*4096}\ns_cmp_ge_u32 s3, 4\ns_cselect_b32 s61, s7, s61")
    a("s_mul_i32 s12, s3, 112\ns_add_u32 s12, s12, s60\ns_mov_b32 s13, s61")
    a("s_waitcnt lgkmcnt(0)")
    a.srd(56, P_WS, WS_BYTES)
    a("s_cmp_eq_u32 s99, 1\ns_cbranch_scc1 F_pt\ns_barrier")
    a("s_cmp_ge_u32 s12, 306\ns_cbranch_scc1 F_pt")
    a("s_setprio 2\ns_cmp_lt_u32 s12, 288\ns_cbranch_scc1 F_kv")
    a("s_sub_u32 s6, s12, 288")
    km.gen_meantile(a)
    a.ldsadd(VC, V1, cKV)
    a("s_branch F_done")
    a("F_kv:\ns_mov_b32 s6, s12")
    if "nobulk" in OPT: a("s_sleep 100\ns_branch F_end")
    st = a.stamps; a.stamps = False
    km.gen_kv(a)
    a.stamps = st
    a.stamp(5)
    a(f"s_mul_i32 s11, s8, {FB_STRIDE}\ns_add_u32 s11, s11, {FKC_OFF}")
    a("s_branch F_sig")
    a("F_pt:")
    if "nobulk" in OPT or "nopt" in OPT: a("s_sleep 100\ns_branch F_end")
    a(f"s_cmp_lt_u32 s12, {optval('FUN', 450)}\ns_cbranch_scc1 F_job\ns_mov_b32 s8, {optval('FJW', 4)}")
    if "fjk" in OPT: a.ldswait(VC, 5, 7, 1, cXs, sleep=4)
    if "fj2" in OPT: a("s_cmp_ge_u32 s3, 6\ns_cselect_b32 s8, 6, s8")
    a.ldswait(VC, 5, 7, "s8", cKV, sleep=4)
    a("F_job:")
    a("s_sub_u32 s12, s12, 306\ns_and_b32 s62, s12, 7\ns_lshr_b32 s12, s12, 3\ns_mov_b32 s9, s61")
    n0 = len(a.L)
    km.job_setup(a, "JS")
    a.L[n0:] = [x.replace("s96", "s62") for x in a.L[n0:]]
    gen_pretile(a, 128)
    a("s_mov_b32 s6, s98")
    a(f"s_add_u32 s11, s6, {FCNT}")
    a("F_sig:")
    a.zcheck(14, 13)
    a.ldsadd(VC, V1, cKV)
    a.stamp(6)
    a.sarrive(6, "s100", 8, 11)
    a("F_done:")
    a.stamp(2)
    a("s_cmp_lt_u32 s3, 4\ns_cbranch_scc1 F_cv")
    a(f"s_mul_i32 s8, s96, {FB_STRIDE}\ns_add_u32 s8, s8, {FKC_OFF+128}\ns_mov_b32 s12, 1\ns_atomic_add s12, {s(P_WS,2)}, s8 glc\ns_waitcnt lgkmcnt(0)")
    a("s_lshl_b32 s12, s12, 3\ns_add_u32 s12, s12, s96\ns_add_u32 s12, s12, 896\ns_cmp_lt_u32 s12, 1170\ns_cbranch_scc1 F_job")
    a("F_end:")
    if "g1t" in OPT: a.end()
    a("v_lshlrev_b32 v2, 4, v1\nv_add_u32 v3, 4096, v2\nv_lshlrev_b32 v4, 2, v1")
    consts(a)
    a("s_branch K6_q")
    a("F_cv:")
    if "g1t" in OPT: a.end()
    a("v_lshlrev_b32 v2, 4, v1\nv_add_u32 v3, 4096, v2\nv_lshlrev_b32 v4, 2, v1")
    consts(a)
    a("s_lshl_b32 s6, s60, 2\ns_add_u32 s6, s6, s3\ns_mov_b32 s7, s61\ns_setprio 3")
    def wait_kv():
        a("s_cmp_lg_u32 s3, 0\ns_cbranch_scc1 F_kw")
        conv.kv_flag_addr(a, 8)
        a.cpoll(8, 1, 44, 13, 2)
        a.ldsadd(VC, V1, cXs)
        a("F_kw:")
        a.ldswait(VC, 5, 8, 1, cXs)
        a.stamp(3)
    def gate(pre):
        if pre:
            a(f"s_add_u32 s55, s70, 128\ns_load_dword s53, {s(P_WS,2)}, s55")
            return
        a("s_cmp_lg_u32 s53, 0\ns_cbranch_scc1 F_w3")
        a.cpoll(55, 1, 44, 13, 8)
        a("F_w3:")
    conv.single(a, wait_kv, gate, stP.issue)
    assert stP.issued == 16
    a.stamp(4)
    a("v_mov_b32 v5, 2\ns_mov_b32 s98, s6")
    a.ldsadd(VC, 5, cG2)
    a("s_branch K6_p2")

def gen_k6(a, name):
    fine = "fine" in OPT
    a(f".p2align 8\n{name}:\nK6_start:")
    a("s_cmp_ge_u32 s2, 256\ns_cbranch_scc1 K6_end")
    a.stamp_init()
    if "skew" in OPT:
        a("s_mul_i32 s4, s2, 5\ns_and_b32 s4, s4, 7\nSK_l:\ns_sub_u32 s4, s4, 1\ns_cbranch_scc1 SK_d\ns_sleep 12\ns_branch SK_l\nSK_d:")
    a.kernargs()
    a("v_lshrrev_b32 v2, 6, v0\nv_and_b32 v1, 63, v0")
    a("v_readfirstlane_b32 s3, v2")
    a("s_and_b32 s96, s2, 7\ns_lshr_b32 s97, s2, 3\ns_mov_b32 s101, 1\ns_mov_b32 s99, 0")
    a(f"v_mov_b32 v{VC}, {CNT}\nv_mov_b32 v{V1}, 1")
    a("s_sub_u32 s60, s2, 144\ns_cmp_lt_u32 s97, 18\ns_cbranch_scc1 K6_g")
    if "now12" not in OPT:
        a("s_cmp_lg_u32 s3, 5\ns_cbranch_scc1 K6_n5\ns_mul_i32 s8, s60, 6016\nv_min_u32 v2, 46, v1\nv_lshlrev_b32 v2, 7, v2\nv_add_u32 v2, s8, v2\nv_min_u32 v2, 663424, v2\ns_waitcnt lgkmcnt(0)")
        a(f"global_load_dword v30, v2, {s(P_W1,2)}\nglobal_load_dword v31, v2, {s(P_W2,2)}\ns_branch K6_f\nK6_n5:")
    a("s_cmp_lt_u32 s3, 6\ns_cbranch_scc1 K6_f\ns_cmp_eq_u32 s3, 7\ns_cbranch_scc1 K6_pf")
    a(f"s_sub_u32 s11, 255, s2\ns_cmp_ge_u32 s11, {FLAG_WAVES}\ns_cbranch_scc1 K6_f")
    a(f"v_lshrrev_b32 v7, 5, v1\nv_mul_u32_u24 v7, {FB_STRIDE-512}, v7\nv_lshl_add_u32 v7, v1, 4, v7\nv_lshlrev_b32 v6, 4, v1")
    a("v_mov_b32 v8, 0\nv_mov_b32 v9, 0\nv_mov_b32 v10, 0\nv_mov_b32 v11, 0")
    a(f"s_lshl_b32 s8, s11, 12\ns_add_u32 s8, s8, {W2M_OFF}\ns_mul_i32 s9, s11, {4*FB_STRIDE}\ns_add_u32 s9, s9, {FLAG_OFF}\ns_add_u32 s10, s9, {2*FB_STRIDE}")
    a("s_waitcnt lgkmcnt(0)")
    a.srd(56, P_WS, WS_BYTES)
    for i in range(4): a(f"buffer_store_dwordx4 v[8:11], v6, s[56:59], s8 offen offset:{1024*i} sc1")
    a("buffer_store_dwordx4 v[8:11], v7, s[56:59], s9 offen sc1\nbuffer_store_dwordx4 v[8:11], v7, s[56:59], s10 offen sc1")
    a("s_barrier\ns_mov_b32 s99, 1\ns_mov_b32 s8, 1\ns_waitcnt vmcnt(0)")
    a(f"s_atomic_add s8, {s(P_DBG,2)}, 128 glc\ns_waitcnt lgkmcnt(0)\ns_cmp_lg_u32 s8, {FLAG_WAVES-1}\ns_cbranch_scc1 K6_f")
    a(f"s_atomic_add s101, {s(P_DBG,2)}, 0")
    a.stamp(1)
    a("s_branch K6_f")
    a("K6_pf:")
    a("s_getpc_b64 s[8:9]\nF_pc:")
    a("s_sub_u32 s10, s97, 18\nv_min_u32 v2, 39, v1\nv_mul_u32_u24 v2, 14, v2\nv_add_lshl_u32 v2, s10, v2, 7\nv_min_u32 v2, CODE_END-F_pc-4, v2")
    a("global_load_dword v31, v2, s[8:9]")
    a("s_branch K6_f")
    a("K6_g:")
    a("s_cmp_ge_u32 s97, 9\ns_cselect_b32 s62, 1, 0\ns_mul_i32 s61, s62, 9\ns_sub_u32 s61, s97, s61\ns_lshl_b32 s60, s96, 1\ns_add_u32 s60, s60, s62")
    A3 = [(2, 0), (2, 1024), (2, 2048)]
    stP = Stream(a, [(64, A3, " sc1"), (65, A3, " sc1"), (66, [(tail.VT + i, 0) for i in range(3)], " sc1"), (68, [(tail.VT + 3, 0)], " sc1")])
    stQ = Stream(a, [(64, A3, " sc1"), (66, [(tail.VT + i, 0) for i in range(5)], " sc1")])
    gen_g(a)
    a("s_cmp_lt_u32 s3, 4\ns_cbranch_scc1 K6_p")
    a("s_cmp_ge_u32 s2, 128\ns_cbranch_scc1 K6_q")
    a("s_setprio 3\ns_cmp_lg_u32 s100, 0\ns_cbranch_scc1 G_kw")
    a.cpoll(99, 1, 44, 13, 8)
    conv.team_kv(a, TB)
    a("G_kw:")
    a(f"s_add_u32 s6, s2, 448\ns_add_u32 s52, s70, 256\ns_load_dword s53, {s(P_WS,2)}, s52")
    def tgate():
        a("s_cmp_lg_u32 s53, 0\ns_cbranch_scc1 G_k2")
        a.cpoll(52, 1, 53, 13, 8)
        a("G_k2:")
    conv.team(a, TB, TB + 21504, cT1, cT2, cT3, tgate, stQ.issue)
    assert stQ.issued == 16
    a.ldsadd(VC, V1, cSide)
    a.stamp(8 if not fine else 2)
    a("s_waitcnt vmcnt(0)")
    last_of(a, cU, 4, "K6_q2")
    a.setflag("s6", 14)
    a("s_branch K6_q2")
    a("K6_f:")
    gen_f(a, stP)
    def addrs():
        a(f"v_mov_b32 v6, v2\nv_add_u32 v7, 36864, v2\nv_add_u32 v8, {ML_H}, v2\nv_add_u32 v9, {ML_H+36864}, v2")
        h_addr(a, 71, 10, 12)
    def rk():
        a(f"v_and_b32 v5, 15, v1\nv_lshlrev_b32 v5, 4, v5\nv_add_u32 v5, {RM}, v5")
        for m in range(4): a(f"ds_read_b32 v{GT+m}, v5 offset:{256*m}")
        a("s_waitcnt lgkmcnt(0)")
        for m in range(4):
            r = GT + m
            a(f"v_mul_f32 v{KC+2*m}, {fh(GC0)}, v{r}\nv_mul_f32 v{r}, v{r}, v{r}\nv_mul_f32 v{r}, {fh(0.044715)}, v{r}\nv_mul_f32 v{KC+2*m+1}, v{r}, v{KC+2*m}")
    a("K6_p:")
    a("s_cmp_lg_u32 s3, 1\ns_cbranch_scc1 KB_w3")
    a("s_add_u32 s6, s70, 128")
    a.dpoll(6, 48, 13, 8)
    a.ldsadd(VC, V1, cW3a)
    a("KB_w3:")
    a.ldswait(VC, 5, 7, 1, cW3a)
    paced(a, Stream(a, stP.segs), 16, optval("PPACE", 8))
    a("s_mov_b32 s98, 0")
    a("K6_p2:")
    a("s_setprio 2")
    PRE = NS
    for i in range(NS - 16): stP.issue()
    addrs()
    a(f"s_lshr_b32 s11, s5, 1\ns_mul_i32 s6, s11, {FB_STRIDE}\ns_add_u32 s6, s6, {FX_OFF}")
    a(f"s_mul_i32 s9, s3, 18432\ns_mov_b32 m0, s9\ns_mul_i32 s7, s5, 73728\ns_add_u32 s7, s7, s9\ns_add_u32 s7, s7, {X1_OFF}")
    a.stamp(8)
    a("s_cmp_lg_u32 s3, 0\ns_cbranch_scc1 KB_xw")
    a.cpoll(6, 9, 44, 13, optval('FXS', 1))
    a.ldswait(VC, 5, 8, 8, cG2)
    a.ldsadd(VC, V1, cFX)
    a("s_branch KB_xg")
    a("KB_xw:")
    a.ldswait(VC, 5, 8, 1, cFX)
    a("KB_xg:")
    a.stamp(9)
    def xdma(i):
        if i and i % 4 == 0: a("s_add_u32 m0, m0, 4096\ns_add_u32 s7, s7, 4096")
        a(f"buffer_load_dwordx4 v2, s[56:59], s7 offen offset:{(i%4)*1024} sc1 lds")
        stP.other(f"x{i}")
    XP = optval("XP", 6)
    for i in range(XP): xdma(i)
    for i in range(NS - PRE): stP.issue()
    late = [(lambda i=i: xdma(i)) for i in range(XP, 18)]
    def stat(ins, tag="x"):
        a(ins); stP.other(tag)
    for i in range(optval("XE", 12)): late.pop(0)()
    a(f"s_waitcnt vmcnt({stP.younger(f'x{XP-1}')})")
    a("s_cmp_eq_u32 s98, 0\ns_cbranch_scc1 KB_fy")
    a.setflag("s98", 14)
    a("KB_fy:")
    a.subbar(VC, 5, 10, 4, off=cX1)
    a.stamp(10 if not fine else 1)
    def xhook(ks, i):
        if i in (0, 4, 8, 10, 11, 3) and late: late.pop(0)()
    mphase(a, stP, 0, 6, 0, XP, prio=2, hook=xhook)
    assert not late
    if "s1" in OPT: a.stamp(8)
    a(f"s_waitcnt vmcnt({stP.younger('x17')})")
    if "s1" in OPT: a.stamp(9)
    a.subbar(VC, 5, 7, 4, off=cX2)
    kw = 18 - (NS + 2) // 3
    def w3hook(ks, i):
        if ks == kw - 1 and i == 10: a.ldswait(VC, 5, 7, 1, cW3)
    mphase(a, stP, 0, 6, XP, 18, first=False, prio=2, hook=w3hook)
    if fine: a.stamp(2)
    a.ldswait(VC, 5, 7, 5, cSide)
    rk()
    def pthook(i):
        if "ptouch" in OPT and i in (0, 2, 4):
            a(f"s_lshl_b32 s6, s4, 5\ns_add_u32 s6, s6, s5\ns_mul_i32 s6, s6, 73728\ns_mul_i32 s7, s3, 18432\ns_add_u32 s6, s6, s7\ns_add_u32 s6, s6, {PART_OFF+3072*i}")
            a("v_min_u32 v14, 47, v1\nv_lshlrev_b32 v14, 7, v14\ns_setprio 3\nbuffer_load_dword v18, v14, s[56:59], s6 offen sc1\ns_setprio 0"); stP.other()
    gphase(a, 10, 12, pthook)
    a.ldsadd(VC, V1, cH1)
    if fine: a.stamp(3)
    a("s_add_u32 s71, s71, 24")
    h_addr(a, 71, 10, 12)
    tail.consts_b(a)
    def w4hook(ks, i):
        if ks == kw - 1 and i == 10: a.ldswait(VC, 5, 7, 1, cW4)
    mphase(a, stP, 1, 6, prio=1, hook=w4hook)
    if fine: a.stamp(4)
    a.ldsadd(VC, V1, cU2)
    def sthook(i):
        if i == 0 and "w4t" in OPT:
            a("v_bfe_u32 v5, v1, 3, 2\nv_mov_b32 v14, s44")
            for t in range(1, 4): a(f"v_cmp_eq_u32 vcc, {t}, v5\nv_mov_b32 v15, s{44+t}\ns_nop 0\nv_cndmask_b32 v14, v14, v15, vcc")
            a("v_and_b32 v5, 7, v1\nv_lshl_add_u32 v14, v5, 7, v14\nv_lshrrev_b32 v5, 5, v1\nv_mul_u32_u24 v5, 36864, v5\nv_add_u32 v14, v14, v5")
            a("s_and_b32 s6, s5, 7\ns_add_u32 s6, s6, 1\ns_mul_i32 s6, s6, 73728\ns_add_u32 s6, s6, s68")
            a("s_setprio 3\nbuffer_load_dword v18, v14, s[56:59], s6 offen sc1\ns_setprio 0"); stP.other()
        if i == optval("SGI", 0):
            a.ldswait(VC, 5, 7, 4, cU2)
            a.ldswait(VC, 5, 7, 8, cH1)
            a("s_setprio 3")
            stage_x(a)
            stage_y(a, True)
            a("s_setprio 0")
            for j in range(6): stP.other()
    gphase(a, 10, 12, sthook)
    a.ldsadd(VC, V1, cH2)
    a("s_waitcnt vmcnt(0)")
    a.ldsadd(VC, V1, cA)
    a.ldswait(VC, 5, 7, 4, cH2)
    if fine: a.stamp(5)
    PF = 'pfirst' in OPT or 'pfin' in OPT
    mphase(a, stP, 2, 8, prio=(2 if PF else None))
    if PF: a('s_setprio 3')
    if fine: a.stamp(6)
    tail.stores(a, 3, stP.other)
    tail.ex_base(a, 8)
    a(f"v_add_u32 v10, s8, v2\ns_lshl_b32 s6, s3, 2\nv_add_u32 v11, s6, v{VC}")
    if PF:
        a("s_waitcnt vmcnt(0)")
        tail.flags(a, 3); stP.other()
    def hook(ks, i):
        if not PF and ks == optval("EFLAG", 12) and i == 0:
            a("s_waitcnt vmcnt(0)")
            tail.flags(a, 3); stP.other()
    mphase(a, stP, 3, 8, acc=MACC + 64, hook=hook, bufs=[BF, BF + 16, MACC, MACC + 16], prio=optval("P2P", 0 if PF else 1))
    if fine: a.stamp(7)
    if "pfin" in OPT:
        a("s_setprio 2")
        a.ldswait(VC, 5, 7, 4, cA)
        st = a.stamps; a.stamps = st and fine
        tail.final(a, cOwn, None, "P", MACC + 64)
        a.stamps = st
    else:
        a.nop(8)
        for i in range(4): a(f"ds_write_b128 v10, {v(MACC+64+4*i,4)} offset:{1024*i}")
        a.ldsadd(11, V1, cOwn)
    a.end()
    a("K6_q:")
    a("s_setprio 0")
    a.stamp(8 if not fine else 2)
    a.ldsadd(VC, V1, cSide)
    a("s_cmp_lg_u32 s3, 7\ns_cbranch_scc1 KB_q3")
    a("s_add_u32 s8, s70, 256")
    a.dpoll(8, 44, 13, 8)
    a.ldsadd(VC, V1, cT0)
    a("KB_q3:")
    a.ldswait(VC, 5, 7, 1, cT0, sleep=2)
    QW = optval("QRW", -1)
    if QW >= 0: a.ldswait(VC, 5, 7, 4, QW, sleep=2)
    paced(a, Stream(a, stQ.segs), 16, optval("QPACE", 4))
    a("K6_q2:")
    a("s_setprio 0")
    for i in range(NS - 16): stQ.issue()
    a.stamp(9 if not fine else 3)
    addrs()
    a("s_cmp_lg_u32 s3, 5\ns_cbranch_scc1 KB_w3c\ns_add_u32 s8, s70, 384")
    a.dpoll(8, 52, 13, 8)
    a.ldsadd(VC, V1, cW3)
    a("KB_w3c:")
    a("s_cmp_lg_u32 s3, 6\ns_cbranch_scc1 KB_rs")
    a.ldswait(VC, 5, 7, 1, cFX)
    a(f"s_lshr_b32 s11, s5, 1\ns_mul_i32 s6, s11, 4608\ns_and_b32 s8, s5, 1\ns_lshl_b32 s8, s8, 8\ns_add_u32 s6, s6, s8\ns_add_u32 s6, s6, {SS_OFF}\ns_add_u32 s11, s6, 4096")
    a(f"s_lshl_b32 s8, s5, 8\ns_add_u32 s8, s8, {MEAN_OFF}\ns_lshl_b32 s9, s5, 10\ns_add_u32 s9, s9, {ST1_OFF}\ns_setprio 3")
    for i in range(8): a(f"buffer_load_dword v{GT+i}, v4, s[56:59], s6 offen offset:{512*i} sc1")
    a(f"buffer_load_dword v{GT+8}, v4, s[56:59], s11 offen sc1\nbuffer_load_dword v{GT+13}, v4, s[56:59], s8 offen sc1\nbuffer_load_dwordx2 {v(GT+14,2)}, v2, s[56:59], s9 offen sc1")
    a("s_waitcnt vmcnt(0)")
    for i in range(1, 9): a(f"v_add_f32 v{GT}, v{GT}, v{GT+i}")
    a(f"v_mov_b32 v{GT+1}, {fh(1.0/D)}\nv_fmaak_f32 v{GT}, v{GT+1}, v{GT}, {fh(EPS)}")
    a(f"v_rsq_f32 v{GT+12}, v{GT}")
    a(f"v_add_u32 v5, {RM}, v2\ns_nop 0")
    a(f"ds_write_b128 v5, {v(GT+12,4)}")
    a.ldsadd(VC, V1, cSide)
    a("KB_rs:")
    tail.consts_b(a)
    a.ldswait(VC, 5, 7, 4, cX2)
    def qhook(ks, i):
        if ks == kw - 4 and i == 10:
            a(f"s_cmp_lg_u32 s3, 7\ns_cbranch_scc1 KB_q2a\ns_load_dword s53, {s(P_WS,2)}, s70\nKB_q2a:")
        if ks == kw - 3 and i == 10:
            a("s_cmp_lg_u32 s3, 7\ns_cbranch_scc1 KB_q2c\ns_cmp_lg_u32 s53, 0\ns_cbranch_scc1 KB_q2b")
            a.cpoll(70, 1, 53, 13, 8)
            a("KB_q2b:")
            a.ldsadd(VC, V1, cW4)
            a("KB_q2c:")
        if ks == kw - 1 and i == 10: a.ldswait(VC, 5, 7, 1, cW4)
    mphase(a, stQ, 0, 6, prio=2, hook=qhook)
    a.ldswait(VC, 5, 7, 5, cSide)
    if fine: a.stamp(4)
    rk()
    def yhook(i):
        ld = "buffer_load_dword v18, v14, s[56:59], s8 offen sc1\nbuffer_load_dword v19, v14, s[56:59], s8 offen offset:1280 sc1"
        if i == 0:
            a(f"s_mul_i32 s8, s4, 9\ns_lshr_b32 s8, s8, 1\ns_lshl_b32 s8, s8, 9\ns_add_u32 s8, s8, {FYW_OFF}\nv_min_u32 v14, 39, v1\nv_lshlrev_b32 v14, 5, v14")
            a(f"s_cmp_lg_u32 s3, 7\ns_cbranch_scc1 KB_y0\n{ld}\nKB_y0:")
        if i == 4:
            a("s_cmp_lg_u32 s3, 7\ns_cbranch_scc1 KB_ys\ns_mov_b32 s13, 0x20000\nKB_y1:")
            a("s_waitcnt vmcnt(0)\nv_and_b32 v18, v18, v19\nv_cmp_ne_u32 vcc, 1, v18\ns_cbranch_vccz KB_ys")
            a(f"s_sleep 16\n{ld}\ns_sub_u32 s13, s13, 1\ns_cbranch_scc0 KB_y1")
            a("KB_ys:")
    gphase(a, 10, 12, yhook)
    a.subbar(VC, 5, 7, 8, off=cH1)
    if fine: a.stamp(5)
    mphase(a, stQ, 1, 8, 0, 12, prio=1)
    a.ldswait(VC, 5, 7, 4, cH2)
    if fine: a.stamp(7)
    mphase(a, stQ, 1, 8, 12, 18, first=False, prio=1)
    a(f"s_setprio {optval('QT', 1)}")
    a.stamp(10)
    tail.stores(a, 5)
    a.ldswait(VC, 5, 7, 4, cA)
    def mid():
        a("s_waitcnt vmcnt(0)")
        tail.flags(a, 5)
        a(f"s_setprio {optval('QF', 1)}")
    st = a.stamps; a.stamps = st and fine
    if "pfin" in OPT:
        mid()
        a.stamp(1)
        a("s_and_b32 s6, s4, 1\ns_cmp_lt_u32 s3, 6\ns_cselect_b32 s6, s6, 0\ns_cmp_eq_u32 s6, 0\ns_cbranch_scc1 K6_qe")
        tail.final(a, cOwn, None, "Q")
        a("K6_qe:")
    else: tail.final(a, cOwn, mid)
    a.stamps = st
    a.end()
    a("K6_end:")
    a("s_endpgm")
```

```python
from common import *
import kb4
from kb4 import MACC, GT, VC, V1, fin_consts

VT = 24
STL = 44

def consts_b(a):
    a("s_mul_i32 s6, s4, 9\ns_lshr_b32 s6, s6, 1")
    a("s_and_b32 s7, s3, 3\ns_mul_i32 s8, s7, 3\ns_add_u32 s8, s8, 4\ns_mul_i32 s9, s7, 5\ns_add_u32 s9, s9, 16\ns_cmp_ge_u32 s3, 4\ns_cselect_b32 s8, s9, s8\ns_add_u32 s8, s8, s6")
    a("v_add_u32 v29, s8, v1\nv_subrev_u32 v5, 36, v29\nv_min_u32 v29, v29, v5")
    for i in range(5):
        a(f"s_add_u32 s9, s8, {i}")
        if i == 3: a("s_add_u32 s10, s6, s7\ns_cmp_lt_u32 s3, 4\ns_cselect_b32 s9, s10, s9")
        a(f"s_sub_u32 s10, s9, 36\ns_min_u32 s9, s9, s10\ns_lshl_b32 s{STL+i}, s9, 10\nv_add_u32 v{VT+i}, s{STL+i}, v2")
    a("v_lshl_add_u32 v5, v29, 1, 1\nv_mul_u32_u24 v5, 57, v5\nv_lshrrev_b32 v5, 9, v5\nv_subrev_u32 v5, s4, v5\nv_and_b32 v5, 7, v5\nv_lshlrev_b32 v5, 2, v5\nv_lshl_add_u32 v29, v29, 5, v5")
    a(f"s_mul_i32 s66, s4, {WSLICE}\ns_add_u32 s66, s66, {W4T_OFF}\ns_mov_b32 s68, s66")
    a(f"s_lshl_b32 s10, s4, 5\ns_add_u32 s10, s10, s5\ns_mul_i32 s67, s10, 73728\ns_add_u32 s67, s67, {PART_OFF}")
    a(f"s_mul_i32 s69, s5, 1152\ns_add_u32 s69, s69, {FT_OFF}")

def stores(a, nt, log=None):
    a.nop(8)
    for t in range(nt):
        a(f"s_lshl_b32 s6, s{STL+t}, 1\ns_add_u32 s6, s6, s67")
        for mp in range(2):
            for x in kb4.pstore(a, MACC, t, mp, 6, mp * 1024, 2 * t + mp): a(x)
            if log: log("e" if (t, mp) == (nt - 1, 1) else "x")

def flags(a, nt):
    a(f"s_mov_b64 exec, {(1 << nt) - 1}\nbuffer_store_dword v{V1}, v29, s[56:59], s69 offen sc1\ns_mov_b64 exec, -1")

def ex_base(a, d):
    a(f"s_lshr_b32 s{d}, s4, 1\ns_lshl_b32 s{d}, s{d}, 3\ns_lshr_b32 s{d}, 0x060e0005, s{d}\ns_and_b32 s{d}, s{d}, 0xff\ns_lshl_b32 s{d}, s{d}, 10")
    a(f"s_and_b32 s7, s3, 3\ns_mul_i32 s7, s7, 18432\ns_add_u32 s{d}, s{d}, s7")

def final(a, cOwn, mid, role=None, own_acc=None):
    RM = kb4.RM
    U = lambda u: 32 + 64 * u
    PR, AC, X1, XV, SV, RAW = 0, 24, 32, 40, 48, 56
    T = 240
    TO = 224
    a.srd(48, P_OUT, ACT)
    a("s_and_b32 s60, s3, 3")
    fin_consts(a)
    a("v_and_b32 v5, 15, v1\nv_lshrrev_b32 v6, 4, v1")
    a("v_mul_u32_u24 v7, 160, v5\nv_lshl_add_u32 v7, v6, 3, v7\nv_add_u32 v7, s53, v7")
    a("v_lshrrev_b32 v8, 1, v6\nv_mul_u32_u24 v8, 18432, v8\nv_bfe_u32 v9, v1, 2, 3\nv_lshl_add_u32 v8, v9, 7, v8")
    a("v_and_b32 v9, 3, v1\nv_lshl_add_u32 v8, v9, 3, v8\nv_add_u32 v8, s53, v8\nv_add_u32 v8, 3072, v8")
    a(f"v_lshlrev_b32 v11, 4, v5\nv_add_u32 v11, {RM}, v11")
    a("v_lshrrev_b32 v5, 5, v1\nv_bfe_u32 v6, v1, 1, 4\nv_and_b32 v9, 1, v1")
    a("v_mul_u32_u24 v18, 18432, v5\nv_lshl_add_u32 v18, v9, 4, v18\nv_mul_u32_u24 v19, 160, v6\nv_add3_u32 v19, v19, v18, s53")
    a("v_mul_u32_u24 v6, 1152, v6\nv_add_u32 v18, v18, v6")
    a("s_cmp_lt_u32 s60, 2\ns_cselect_b32 s63, s62, 0")
    ex_base(a, 64)
    a("v_add_u32 v10, s64, v2")
    def opt(u, fn):
        if u < 2: fn(); return
        l = a.lab("FU")
        a(f"s_cmp_eq_u32 s63, 0\ns_cbranch_scc1 {l}")
        fn()
        a(f"{l}:")
    SO, SP, SF = (65, 66, 67), (68, 70, 71), (96, 97)
    def side(u):
        b = U(u)
        if u < 2: a(f"s_mov_b32 s6, s60\ns_mov_b32 s7, {u}")
        else: a("s_mov_b32 s6, 4\ns_mov_b32 s7, s60")
        a("s_add_u32 s8, s6, s52\ns_mul_i32 s9, s7, 36864")
        a("s_lshr_b32 s10, s8, 1\ns_lshl_b32 s10, s10, 10\ns_and_b32 s11, s8, 1\ns_lshl_b32 s11, s11, 3\ns_add_u32 s10, s10, s11\ns_add_u32 s10, s10, s9")
        if kb4.ML_X: a(f"s_add_u32 s10, s10, {kb4.ML_X}")
        a("v_add_u32 v12, s10, v2")
        a(f"s_lshl_b32 s10, s6, 5\ns_add_u32 s{SO[u]}, s10, s9\nv_add_u32 v13, s{SO[u]}, v7")
        a("s_lshl_b32 s10, s7, 9\nv_add_u32 v14, s10, v11")
        a("s_and_b32 s10, s6, 1\ns_mul_i32 s10, s10, 36864\ns_lshr_b32 s11, s6, 1\ns_lshl_b32 s11, s11, 10\ns_add_u32 s10, s10, s11\ns_lshl_b32 s11, s7, 6\ns_add_u32 s10, s10, s11")
        a("v_add_u32 v15, s10, v8")
        for mt in range(2):
            a(f"ds_read_b64 {v(T+2*mt,2)}, v12 offset:{18432*mt}")
            a(f"ds_read_b64 {v(T+4+2*mt,2)}, v13 offset:{18432*mt}")
            a(f"ds_read_b128 {v(b+RAW+4*mt,4)}, v14 offset:{256*mt}")
            a(f"ds_read_b64_tr_b16 {v(T+8+2*mt,2)}, v15 offset:{32*mt}")
        a(f"s_lshl_b32 s9, s8, 11\ns_lshl_b32 s11, s7, 10\ns_add_u32 s9, s9, s11\ns_add_u32 s9, s9, s54\ns_add_u32 s{SP[u]}, s9, {PART_OFF}")
        if u != 1: a(f"s_lshl_b32 s9, s8, 5\ns_add_u32 s{SF[u>>1]}, s9, s69")
        a("s_waitcnt lgkmcnt(0)")
        for e in range(4):
            r = b + RAW + 4 * (e >> 1)
            a(f"v_lshlrev_b32 v{b+XV+2*e}, 16, v{T+4+e}\nv_and_b32 v{b+XV+2*e+1}, 0xffff0000, v{T+4+e}")
            a(f"v_lshlrev_b32 v{b+X1+2*e}, 16, v{T+e}\nv_and_b32 v{b+X1+2*e+1}, 0xffff0000, v{T+e}")
            a(f"v_lshlrev_b32 v{b+SV+2*e}, 16, v{T+8+e}\nv_and_b32 v{b+SV+2*e+1}, 0xffff0000, v{T+8+e}")
            a(f"v_fma_f32 v{T+12}, v{b+XV+2*e}, v{r+2}, v{r+3}\nv_fma_f32 v{T+13}, v{b+XV+2*e+1}, v{r+2}, v{r+3}")
            a(f"v_add_f32 v{b+X1+2*e}, v{b+X1+2*e}, v{r+1}\nv_add_f32 v{b+X1+2*e+1}, v{b+X1+2*e+1}, v{r+1}")
            a(f"v_mul_f32 v{b+SV+2*e}, v{b+SV+2*e}, v{T+12}\nv_mul_f32 v{b+SV+2*e+1}, v{b+SV+2*e+1}, v{T+13}")
        for e in range(8): a(f"v_mov_b32 v{b+AC+e}, " + ("0" if role != "P" else f"v{own_acc+8*u+e}"))
    def poll(sf, ds):
        l = a.lab("FP"); d = a.lab("FD")
        a(f"s_mov_b32 s13, 0x40000\n{l}:")
        a(f"s_load_dwordx8 s[16:23], {s(P_WS,2)}, s{sf} glc\ns_waitcnt lgkmcnt(0)")
        for x in ds[1:]: a(f"s_and_b32 s{16+ds[0]}, s{16+ds[0]}, s{16+x}")
        a(f"s_cbranch_scc1 {d}\ns_sleep {optval('FSL', 1)}\ns_sub_u32 s13, s13, 1\ns_cbranch_scc0 {l}\n{d}:")
    def loads(u, ds):
        for i, d in enumerate(ds):
            a(f"s_sub_u32 s6, s4, {d}\ns_and_b32 s6, s6, 7\ns_mul_i32 s6, s6, {ACT}\ns_add_u32 s6, s6, s{SP[u]}")
            a(f"buffer_load_dwordx4 {v(U(u)+PR+4*i,4)}, v2, s[56:59], s6 offen sc1")
    def accum(u, n, pk=False):
        b = U(u)
        for i in range(n):
            for e in range(4): a(f"v_lshlrev_b32 v{T+2*e}, 16, v{b+PR+4*i+e}\nv_and_b32 v{T+2*e+1}, 0xffff0000, v{b+PR+4*i+e}")
            if pk:
                for e in range(0, 8, 2): a(f"v_pk_add_f32 {v(b+AC+e,2)}, {v(b+AC+e,2)}, {v(T+e,2)}")
            else:
                for e in range(8): a(f"v_add_f32 v{b+AC+e}, v{b+AC+e}, v{T+e}")
    def finish(us):
        for u in us:
            for r in range(8): a(f"v_fma_f32 v{U(u)+AC+r}, v{U(u)+AC+r}, v{U(u)+RAW+4*(r>>2)}, v{U(u)+X1+r}")
        for op in range(6):
            for u in us:
                b = U(u); t = b + PR
                for r in range(8):
                    a([f"v_mul_f32 v{t+r}, {fh(-LOG2E)}, v{b+AC+r}", f"v_exp_f32 v{t+r}, v{t+r}", f"v_add_f32 v{t+r}, 1.0, v{t+r}", f"v_rcp_f32 v{t+r}, v{t+r}",
                       f"v_mul_f32 v{b+AC+r}, v{b+AC+r}, v{b+SV+r}", f"v_fma_f32 v{b+AC+r}, v{b+AC+r}, v{t+r}, v{b+XV+r}"][op])
        for u in us:
            b = U(u)
            for e in range(4): a(f"v_cvt_pk_bf16_f32 v{b+PR+8+e}, v{b+AC+2*e}, v{b+AC+2*e+1}")
            a(f"v_add_u32 v13, s{SO[u]}, v7\nv_add_u32 v20, s{SO[u]}, v19\ns_add_u32 s{SO[u]}, s{SO[u]}, s55")
            for mt in range(2): a(f"ds_write_b64 v13, {v(b+PR+8+2*mt,2)} offset:{18432*mt}")
            a(f"ds_read_b128 {v(b+PR+12,4)}, v20")
        a("s_waitcnt lgkmcnt(0)")
        for u in us: a(f"buffer_store_dwordx4 {v(U(u)+PR+12,4)}, v18, s[48:51], s{SO[u]} offen" + os.environ.get("OFL", ""))
    if role == "P":
        E, L = (1, 2), (3, 4, 5, 6, 7)
        side(0); side(1)
        a.stamp(8)
        poll(SF[0], E)
        loads(0, E); loads(1, E)
        a("s_waitcnt vmcnt(0)")
        for u in range(2): accum(u, 2, True)
        a.stamp(9)
        poll(SF[0], L)
        a.stamp(10)
        loads(0, L); loads(1, L)
        a("s_waitcnt vmcnt(5)")
        accum(0, 5, True)
        a("s_waitcnt vmcnt(0)")
        accum(1, 5, True)
        finish([0, 1])
        return
    if role == "Q":
        side(2)
        for ds in ((0, 1, 2), (3, 4, 5, 6, 7)):
            poll(SF[1], ds)
            loads(2, ds)
            a("s_waitcnt vmcnt(0)")
            accum(2, len(ds), True)
        finish([2])
        return
    if "pfirst" in OPT: E, L, E2, L2 = (1, 2), (3, 4, 5, 6, 7), (0, 1, 2), (3, 4, 5, 6, 7)
    else: E, L, E2, L2 = (4, 5, 6, 7), (1, 2, 3), (4, 5, 6, 7), (0, 1, 2, 3)
    if "pfirst" in OPT:
        side(0); side(1)
        opt(2, lambda: side(2))
        mid()
    else:
        side(0)
        mid()
        side(1)
        opt(2, lambda: side(2))
    a.stamp(1)
    poll(SF[0], E)
    loads(0, E); loads(1, E)
    opt(2, lambda: (poll(SF[1], E2), loads(2, E2)))
    a("s_lshl_b32 s6, s60, 2")
    a(f"v_add_u32 v21, s6, v{VC}")
    def own():
        a.ldswait(21, 5, 7, 1, cOwn)
        for i in range(4): a(f"ds_read_b128 {v(TO+4*i,4)}, v10 offset:{1024*i}")
        a("s_waitcnt lgkmcnt(0)")
        for u in range(2):
            for e in range(8): a(f"v_add_f32 v{U(u)+AC+e}, v{U(u)+AC+e}, v{TO+8*u+e}")
    a("s_waitcnt vmcnt(0)")
    for u in range(3): opt(u, lambda: accum(u, len(E) if u < 2 else len(E2)))
    a.stamp(8)
    a(f"s_setprio {optval('QL', 2)}")
    poll(SF[0], L)
    a.stamp(6)
    loads(0, L); loads(1, L)
    opt(2, lambda: (poll(SF[1], L2), loads(2, L2)))
    own()
    a("s_waitcnt vmcnt(0)")
    a.stamp(9)
    for u in range(2): accum(u, len(L), True)
    finish([0, 1])
    opt(2, lambda: (accum(2, len(L2), True), finish([2])))
```

```python
S, D, F = 2048, 576, 4608
ACT = S * D * 2
H_OFF    = 0x0000000
X1_OFF   = 0x0240000
KV_OFF   = 0x0480000
KV_PITCH = 4224
Y_OFF    = KV_OFF
W2M_OFF  = 0x0940000
FT_OFF   = W2M_OFF + 3072
CSUM_OFF = FT_OFF
FYW_OFF  = FT_OFF + 36864
ST1_OFF  = 0x09E0000
SS_OFF   = 0x0950000
MEAN_OFF = 0x0968000
FLAG_OFF = 0x0970000
FB_STRIDE = 4352
FX_OFF   = FLAG_OFF
FP_OFF   = FLAG_OFF + 128
FW4_OFF  = FLAG_OFF + 32 * FB_STRIDE
FY_OFF   = FLAG_OFF + 40 * FB_STRIDE
FH_OFF   = FLAG_OFF + int(__import__('os').environ.get('FHO', 69632))
FW3A_OFF = FW4_OFF + 128
FW3R_OFF = FW4_OFF + 256
FKV_OFF  = FY_OFF + 128
FM_OFF   = FY_OFF + 3 * FB_STRIDE + 128
FCNT = 12 * FB_STRIDE
FKC_OFF  = FLAG_OFF + 56 * FB_STRIDE
FLAG_WAVES = 17
W3T_OFF  = 0x0A00000
W4T_OFF  = 0x0F10000
PART_OFF = 0x1420000
if "ovl" in __import__("os").environ.get("OPT", ""):
    H_OFF, X1_OFF, W3T_OFF = PART_OFF, PART_OFF + 0x480000, PART_OFF + 0x900000
STAMP_OFF = 0x2620000
WS_BYTES = 0x2700000
WSLICE = 18 * 36 * 1024

EPS = 1e-5
import struct, os
def f2u(x): return struct.unpack("<I", struct.pack("<f", x))[0]
def fh(x): return "0x%08x" % f2u(x)

def v(n, c=1): return f"v{n}" if c == 1 else f"v[{n}:{n+c-1}]"
def s(n, c=1): return f"s{n}" if c == 1 else f"s[{n}:{n+c-1}]"

P_Q, P_K, P_V, P_SHK, P_SSMK, P_SSMD, P_BX, P_W1, P_W2, P_W3, P_W4, P_OUT, P_DBG, P_WS = [16 + 2 * i for i in range(14)]

class Asm:
    def __init__(self):
        self.L = []
        self.n = 0
        self.stamps = False
        self.kid = 0
    def stamp(self, i):
        if self.stamps: self(f"{'s_memtime' if 'cyc' in os.environ.get('OPT','') else 's_memrealtime'} s[{72+2*i}:{73+2*i}]")
    def stamp_init(self):
        if self.stamps:
            for i in range(12): self(f"s_mov_b32 s{72+2*i}, 0")
            self.stamp(0)
    def end(self, i=11):
        if self.stamps:
            self("s_waitcnt vmcnt(0) lgkmcnt(0)")
            self.stamp(i)
            self.srd(56, P_WS, WS_BYTES)
            self("s_mov_b64 exec, 1")
            self(f"s_lshl_b32 s6, s2, 3\ns_add_u32 s6, s6, s3\ns_lshl_b32 s6, s6, 6\ns_add_u32 s6, s6, {STAMP_OFF + self.kid * 0x28000}")
            self("v_mov_b32 v4, 0\ns_waitcnt lgkmcnt(0)")
            for q in range(3):
                for e in range(4): self(f"v_mov_b32 v{8+4*q+e}, s{72+8*q+2*e}")
                self(f"buffer_store_dwordx4 v[{8+4*q}:{11+4*q}], v4, s[56:59], s6 offen offset:{16*q}")
            if os.environ.get("HOLD"):
                idx, wid = os.environ["HOLD"].split(",")
                l = self.lab("HS"); l2 = self.lab("HL")
                if wid.startswith("w"): self(f"s_cmp_lg_u32 s3, {wid[1:]}\ns_cbranch_scc1 {l}")
                else: self(f"s_lshl_b32 s6, s2, 3\ns_add_u32 s6, s6, s3\ns_cmp_lg_u32 s6, {wid}\ns_cbranch_scc1 {l}")
                self(f"{l2}:\ns_sleep 1\ns_memrealtime s[8:9]\ns_waitcnt lgkmcnt(0)\ns_sub_u32 s8, s8, s{72+2*int(idx)}\ns_cmp_lt_u32 s8, 10000\ns_cbranch_scc1 {l2}")
                self(f"{l}:")
            if "dbgst" in os.environ.get("OPT", ""):
                l = self.lab("DS")
                self(f"s_lshl_b32 s6, s2, 3\ns_add_u32 s6, s6, s3\ns_cmp_lg_u32 s6, {os.environ.get('DBGW', '41')}\ns_cbranch_scc1 {l}")
                for i in range(1, 12):
                    self(f"v_subrev_u32 v20, s72, v{8+i}\nglobal_store_dword v4, v20, {s(P_DBG,2)} offset:{4+4*i}")
                self(f"{l}:")
        self("s_endpgm")
    def __call__(self, t):
        for line in t.split("\n"):
            line = line.strip()
            if line:
                self.L.append(("" if line.endswith(":") or line.startswith(".") else "  ") + line)
    def lab(self, p="L"):
        self.n += 1
        return f"{p}_{self.n}"
    def text(self): return "\n".join(self.L) + "\n"
    def kernargs(self):
        self("s_load_dwordx16 s[16:31], s[0:1], 0")
        self("s_load_dwordx8 s[32:39], s[0:1], 64")
        self("s_load_dwordx4 s[40:43], s[0:1], 96")
    def srd(self, d, p, nbytes):
        self(f"s_mov_b32 s{d}, s{p}\ns_mov_b32 s{d+1}, s{p+1}\ns_mov_b32 s{d+2}, {nbytes}\ns_mov_b32 s{d+3}, 0x20000")
    def mfma(self, d, a, b, c=None):
        cc = v(d, 4) if c is None else c
        self(f"v_mfma_f32_16x16x32_bf16 {v(d,4)}, {v(a,4)}, {v(b,4)}, {cc}")
    def nop(self, n):
        while n > 0:
            k = min(n, 16)
            self(f"s_nop {k-1}")
            n -= k
    def prefetch_code(self, endlabel, vtmp, vdst, stmp):
        l = self.lab("PF")
        self(f"s_getpc_b64 {s(stmp,2)}")
        self(f"{l}:")
        self(f"v_and_b32 {v(vtmp)}, 15, v0")
        self(f"v_lshlrev_b32 {v(vtmp)}, 5, {v(vtmp)}")
        self(f"s_lshr_b32 s{stmp+2}, s2, 3")
        self(f"v_add_lshl_u32 {v(vtmp)}, s{stmp+2}, {v(vtmp)}, 7")
        self(f"v_min_u32 {v(vtmp)}, {endlabel}-{l}-4, {v(vtmp)}")
        self(f"global_load_dword {v(vdst)}, {v(vtmp)}, {s(stmp,2)} nt")
    def subbar(self, vaddr, vtmp, stmp, n, off=0):
        self("s_mov_b64 exec, 1")
        self(f"v_mov_b32 {v(vtmp)}, 1")
        self(f"ds_add_u32 {v(vaddr)}, {v(vtmp)} offset:{off}")
        self("s_mov_b64 exec, -1")
        self.ldswait(vaddr, vtmp, stmp, n, off)
    def ldswait(self, vaddr, vtmp, stmp, n, off=0, sleep=1):
        l = self.lab("LW"); d = self.lab("LD")
        self(f"{l}:")
        self(f"ds_read_b32 {v(vtmp)}, {v(vaddr)} offset:{off}")
        self("s_waitcnt lgkmcnt(0)")
        self(f"v_readfirstlane_b32 s{stmp}, {v(vtmp)}")
        self(f"s_cmp_ge_u32 s{stmp}, {n}")
        self(f"s_cbranch_scc1 {d}")
        self(f"s_sleep {max(sleep, int(os.environ.get('LSLEEP', '1')))}")
        self(f"s_branch {l}")
        self(f"{d}:")
    def poll(self, vaddr, soff, vtmp, stmp, sleep=1):
        l = self.lab("PL"); d = self.lab("PD")
        self(f"s_mov_b32 s{stmp}, 0x40000")
        self(f"{l}:")
        self(f"buffer_load_dword {v(vtmp)}, {v(vaddr)}, s[56:59], {soff} offen sc1")
        self("s_waitcnt vmcnt(0)")
        self(f"v_cmp_eq_u32 vcc, 0, {v(vtmp)}")
        self(f"s_cbranch_vccz {d}")
        self(f"s_sleep {sleep}")
        self(f"s_sub_u32 s{stmp}, s{stmp}, 1")
        self(f"s_cbranch_scc0 {l}")
        self(f"{d}:")
    def spoll(self, n, soff, sd, stmp, sleep=1):
        l = self.lab("SP"); d = self.lab("SD")
        self(f"s_mov_b32 s{stmp}, 0x40000")
        self(f"{l}:")
        self(f"s_load_dwordx{n} {s(sd,n)}, {s(P_WS,2)}, s{soff} glc")
        self("s_waitcnt lgkmcnt(0)")
        k = n
        while k > 2:
            k //= 2
            for i in range(0, k, 2): self(f"s_and_b64 {s(sd+i,2)}, {s(sd+i,2)}, {s(sd+k+i,2)}")
        self(f"s_and_b32 s{sd}, s{sd}, s{sd+1}")
        self(f"s_cbranch_scc1 {d}")
        if sleep: self(f"s_sleep {sleep}")
        self(f"s_sub_u32 s{stmp}, s{stmp}, 1")
        self(f"s_cbranch_scc0 {l}")
        self(f"{d}:")
    def cpoll(self, soff, n, sd, stmp, sleep=1):
        l = self.lab("CP"); d = self.lab("CD")
        self(f"s_mov_b32 s{stmp}, 0x40000")
        self(f"{l}:")
        self(f"s_load_dword s{sd}, {s(P_WS,2)}, s{soff} glc")
        self("s_waitcnt lgkmcnt(0)")
        self(f"s_cmp_ge_u32 s{sd}, {n}")
        self(f"s_cbranch_scc1 {d}")
        if sleep: self(f"s_sleep {sleep}")
        self(f"s_sub_u32 s{stmp}, s{stmp}, 1")
        self(f"s_cbranch_scc0 {l}")
        self(f"{d}:")
    def vpoll(self, soff, n, vtmp, stmp, sleep=8):
        l = self.lab("VP"); d = self.lab("VD")
        self(f"s_mov_b32 s{stmp}, 0x20000\nv_mov_b32 {v(vtmp)}, 0")
        self(f"{l}:")
        self(f"buffer_load_dword {v(vtmp+1)}, {v(vtmp)}, s[56:59], s{soff} offen sc1")
        self("s_waitcnt vmcnt(0)")
        self(f"v_cmp_gt_u32 vcc, {n}, {v(vtmp+1)}")
        self(f"s_cbranch_vccz {d}")
        self(f"s_sleep {sleep}")
        self(f"s_sub_u32 s{stmp}, s{stmp}, 1")
        self(f"s_cbranch_scc0 {l}")
        self(f"{d}:")
    def zcheck(self, vtmp, stmp, drain=True):
        l = self.lab("ZP"); d = self.lab("ZD")
        self(f"s_load_dword s{stmp}, {s(P_DBG,2)}, 0")
        self("s_waitcnt vmcnt(0) lgkmcnt(0)" if drain else "s_waitcnt lgkmcnt(0)")
        self(f"s_cmp_lg_u32 s{stmp}, 0\ns_cbranch_scc1 {d}")
        self(f"s_mov_b32 s{stmp}, 0x20000\nv_mov_b32 {v(vtmp)}, 0")
        self(f"{l}:")
        self(f"global_load_dword {v(vtmp+1)}, {v(vtmp)}, {s(P_DBG,2)} sc1")
        self("s_waitcnt vmcnt(0)")
        self(f"v_cmp_eq_u32 vcc, 0, {v(vtmp+1)}")
        self(f"s_cbranch_vccz {d}")
        self("s_sleep 4")
        self(f"s_sub_u32 s{stmp}, s{stmp}, 1")
        self(f"s_cbranch_scc0 {l}")
        self(f"{d}:")
    def sarrive(self, soff, n, stmp, scnt=None):
        d = self.lab("SA")
        if scnt is None:
            scnt = stmp + 1
            self(f"s_add_u32 s{scnt}, s{soff}, {FCNT}")
        self(f"s_mov_b32 s{stmp}, 1\ns_atomic_add s{stmp}, {s(P_WS,2)}, s{scnt} glc")
        self(f"s_waitcnt lgkmcnt(0)\ns_add_u32 s{stmp}, s{stmp}, 1\ns_cmp_lg_u32 s{stmp}, {n}\ns_cbranch_scc1 {d}")
        self(f"s_atomic_add s101, {s(P_WS,2)}, s{soff}")
        self(f"{d}:")
    def dpoll(self, soff, sd, stmp, sleep=4):
        d = self.lab("DP")
        self(f"s_load_dword s{sd}, {s(P_WS,2)}, s{soff}\ns_waitcnt lgkmcnt(0)\ns_cmp_lg_u32 s{sd}, 0\ns_cbranch_scc1 {d}")
        self.cpoll(soff, 1, sd, stmp, sleep)
        self(f"{d}:")
    def sadd(self, soff, stmp):
        self(f"s_atomic_add s101, {s(P_WS,2)}, s{soff}")
    def arrive(self, soff, n, vtmp, stmp):
        d = self.lab("AR")
        self("s_mov_b64 exec, 1")
        self(f"v_mov_b32 {v(vtmp)}, {FCNT}\nv_mov_b32 {v(vtmp+1)}, 1")
        self(f"buffer_atomic_add {v(vtmp+1)}, {v(vtmp)}, s[56:59], s{soff} offen sc0 sc1")
        self("s_waitcnt vmcnt(0)")
        self(f"v_readfirstlane_b32 s{stmp}, {v(vtmp+1)}")
        self(f"s_add_u32 s{stmp}, s{stmp}, 1\ns_cmp_lg_u32 s{stmp}, {n}")
        self(f"s_cbranch_scc1 {d}")
        self(f"v_mov_b32 {v(vtmp)}, 0\nv_mov_b32 {v(vtmp+1)}, 1")
        self(f"buffer_store_dword {v(vtmp+1)}, {v(vtmp)}, s[56:59], s{soff} offen sc1")
        self("s_waitcnt vmcnt(0)")
        self(f"{d}:")
        self("s_mov_b64 exec, -1")
    def addflag(self, soff, vtmp):
        self("s_mov_b64 exec, 1")
        self(f"v_mov_b32 {v(vtmp)}, 0\nv_mov_b32 {v(vtmp+1)}, 1")
        self(f"buffer_atomic_add {v(vtmp+1)}, {v(vtmp)}, s[56:59], {soff} offen sc1")
        self("s_mov_b64 exec, -1")
    def ldsadd(self, vaddr, vone, off):
        self("s_mov_b64 exec, 1")
        self(f"ds_add_u32 {v(vaddr)}, {v(vone)} offset:{off}")
        self("s_mov_b64 exec, -1")
    def setflag(self, soff, vtmp):
        self("s_mov_b64 exec, 1")
        self(f"v_mov_b32 {v(vtmp)}, 0\nv_mov_b32 {v(vtmp+1)}, 1")
        self(f"buffer_store_dword {v(vtmp+1)}, {v(vtmp)}, s[56:59], {soff} offen sc1")
        self("s_mov_b64 exec, -1")

def desc(name, nv, ns=100):
    nv = (nv + 7) // 8 * 8
    return f""".p2align 6
.amdhsa_kernel {name}
  .amdhsa_next_free_vgpr {nv}
  .amdhsa_next_free_sgpr {ns}
  .amdhsa_accum_offset {min(nv, 256)}
  .amdhsa_group_segment_fixed_size 0
  .amdhsa_kernarg_size 112
  .amdhsa_user_sgpr_count 2
  .amdhsa_user_sgpr_kernarg_segment_ptr 1
  .amdhsa_system_sgpr_workgroup_id_x 1
  .amdhsa_float_denorm_mode_32 3
.end_amdhsa_kernel
"""

GC0 = -2.0 * 0.7978845608028654 * 1.4426950408889634
GC1 = GC0 * 0.044715
LOG2E = 1.4426950408889634

import os
OPT = os.environ.get("OPT", "").split(",")
def optval(name, default):
    return int(os.environ.get(name, default))

def gelu_vals(a, regs, tmps, k0, k1):
    n = len(regs)
    K0 = k0 if isinstance(k0, list) else [k0] * n
    K1 = k1 if isinstance(k1, list) else [k1] * n
    nt = len(tmps)
    for b in range(0, n, nt):
        idx = list(range(b, min(b + nt, n)))
        for i in idx: a(f"v_mul_f32 {v(tmps[i-b])}, {v(regs[i])}, {v(regs[i])}")
        for i in idx: a(f"v_fma_f32 {v(tmps[i-b])}, {v(tmps[i-b])}, {K1[i]}, {K0[i]}")
        for i in idx: a(f"v_mul_f32 {v(tmps[i-b])}, {v(tmps[i-b])}, {v(regs[i])}")
        for i in idx: a(f"v_exp_f32 {v(tmps[i-b])}, {v(tmps[i-b])}")
        for i in idx: a(f"v_add_f32 {v(tmps[i-b])}, 1.0, {v(tmps[i-b])}")
        for i in idx: a(f"v_rcp_f32 {v(tmps[i-b])}, {v(tmps[i-b])}")
        for i in idx: a(f"v_mul_f32 {v(regs[i])}, {v(tmps[i-b])}, {v(regs[i])}")

def gsum(a, r, t):
    a(f"v_mov_b32 v{t}, v{r}\ns_nop 1\nv_permlane32_swap_b32 v{r}, v{t}\nv_add_f32 v{r}, v{r}, v{t}")
    a(f"v_mov_b32 v{t}, v{r}\ns_nop 1\nv_permlane16_swap_b32 v{r}, v{t}\nv_add_f32 v{r}, v{r}, v{t}")

def gen_pretile(a, R=32):
    a("v_lshrrev_b32 v18, 3, v1\nv_and_b32 v19, 7, v1")
    a("v_mul_lo_u32 v20, v18, s7")
    a("v_lshl_add_u32 v20, v19, 4, v20")
    a("s_lshl_b32 s10, s7, 3")
    if "rgm" in OPT:
        for rg in range(4):
            for i in range(3):
                a(f"buffer_load_dwordx4 {v(R+16*i+4*rg,4)}, v20, s[44:47], s6 offen offset:{128*i} nt")
            if rg < 3: a("s_add_u32 s6, s6, s10")
    else:
        for i in range(3):
            if i: a("s_sub_u32 s6, s6, s11")
            for rg in range(4):
                a(f"buffer_load_dwordx4 {v(R+16*i+4*rg,4)}, v20, s[44:47], s6 offen offset:{128*i} nt")
                if rg < 3: a("s_add_u32 s6, s6, s10")
            if i == 0: a("s_mul_i32 s11, s10, 3")
    a("v_lshlrev_b32 v21, 4, v1\nv_add_u32 v22, s9, v21")
    a("v_lshrrev_b32 v23, 2, v1\nv_lshlrev_b32 v23, 7, v23\nv_and_b32 v19, 3, v1\nv_lshl_add_u32 v23, v19, 3, v23\nv_add_u32 v23, s9, v23")
    for i in range(3):
        a(f"s_waitcnt vmcnt({8 if 'rgm' not in OPT else 2+3*i})")
        for rg in range(4):
            a(f"ds_write_b128 v22, {v(R+16*i+4*rg,4)} offset:{1024*rg}")
        for tn in range(4):
            a(f"ds_read_b64_tr_b16 {v(R+48+16*i+4*tn,2)}, v23 offset:{tn*32}")
            a(f"ds_read_b64_tr_b16 {v(R+48+16*i+4*tn+2,2)}, v23 offset:{2048+tn*32}")
        a("s_waitcnt lgkmcnt(0)")
        for tn in range(4):
            a(f"buffer_store_dwordx4 {v(R+48+16*i+4*tn,4)}, v21, s[56:59], s8 offen offset:{tn*1024} sc1")
        a("s_add_u32 s8, s8, 4096")

def pt_load(a, R):
    a("v_lshrrev_b32 v18, 3, v1\nv_and_b32 v19, 7, v1\nv_mul_lo_u32 v20, v18, s7\nv_lshl_add_u32 v20, v19, 4, v20\ns_lshl_b32 s10, s7, 3\ns_mul_i32 s7, s10, 3")
    for i in range(3):
        if i: a("s_sub_u32 s6, s6, s7")
        for rg in range(4):
            a(f"buffer_load_dwordx4 {v(R+16*i+4*rg,4)}, v20, s[44:47], s6 offen offset:{128*i} nt")
            if rg < 3: a("s_add_u32 s6, s6, s10")

def pt_addr(a, sbase):
    a(f"v_lshlrev_b32 v21, 4, v1\nv_add_u32 v22, s{sbase}, v21")
    a(f"v_lshrrev_b32 v23, 2, v1\nv_lshlrev_b32 v23, 7, v23\nv_and_b32 v19, 3, v1\nv_lshl_add_u32 v23, v19, 3, v23\nv_add_u32 v23, s{sbase}, v23")

def pt_store(a, R, sdst):
    for i in range(3):
        a("s_waitcnt vmcnt(8)")
        for rg in range(4):
            a(f"ds_write_b128 v22, {v(R+16*i+4*rg,4)} offset:{1024*rg}")
        for tn in range(4):
            a(f"ds_read_b64_tr_b16 {v(R+48+16*i+4*tn,2)}, v23 offset:{tn*32}")
            a(f"ds_read_b64_tr_b16 {v(R+48+16*i+4*tn+2,2)}, v23 offset:{2048+tn*32}")
        a("s_waitcnt lgkmcnt(0)")
        for tn in range(4):
            a(f"buffer_store_dwordx4 {v(R+48+16*i+4*tn,4)}, v21, s[56:59], s{sdst} offen offset:{tn*1024} sc1")
        a(f"s_add_u32 s{sdst}, s{sdst}, 4096")
```

```python
from common import *
from kb4 import VC, V1
FA, FB, ACC = 96, 160, 224
KF = 4 * 4160

def setup(a):
    a("s_lshl_b32 s8, s6, 1\ns_and_b32 s8, s8, 0xfffffffc")
    a(f"s_load_dword s15, {s(P_SSMD,2)}, s8")
    a("v_lshlrev_b32 v5, 3, v1\nv_add_u32 v5, s7, v5\nv_mov_b32 v18, 0\nv_mov_b32 v19, 0")
    a(f"ds_write_b64 v5, v[18:19] offset:{KF}")
    a("v_and_b32 v6, 15, v1\nv_lshrrev_b32 v7, 4, v1")
    a("v_sub_u32 v8, 3, v6\nv_and_b32 v8, 3, v8\nv_mul_u32_u24 v8, 4160, v8")
    a("v_and_b32 v9, 12, v6\nv_lshlrev_b32 v9, 1, v9\nv_sub_u32 v8, v8, v9")
    a("v_lshlrev_b32 v9, 4, v7\nv_sub_u32 v8, v8, v9")
    a(f"v_add_u32 v8, {4104-3584}, v8\nv_add_u32 v8, s7, v8")
    a("v_lshlrev_b32 v10, 5, v6\nv_sub_u32 v10, v10, v9")
    a(f"v_add_u32 v10, {KF+512+16}, v10\nv_add_u32 v10, s7, v10")
    a("v_add_u32 v11, s7, v2")
    a("v_min_u32 v12, 16, v2\nv_add_u32 v12, s7, v12\nv_add_u32 v12, 4096, v12")
    a("v_lshlrev_b32 v20, 5, v6\nv_lshl_add_u32 v20, v7, 3, v20")
    a(f"v_sub_u32 v21, {4088-3584}, v20\nv_add_u32 v21, s7, v21")
    for r in range(32): a(f"v_mov_b32 v{ACC+r}, 0")

def build(a, chunks):
    n = len(chunks)
    for c, (ad, o) in enumerate(chunks):
        b = FA + 12 * c
        a(f"ds_read_b128 {v(b,4)}, v{ad} offset:{o}")
        a(f"ds_read_b128 {v(b+4,4)}, v{ad} offset:{o+2*4160}")
        a(f"ds_read_b64 {v(b+8,2)}, v{ad} offset:{o+16}")
    for c, (ad, o) in enumerate(chunks):
        b = FA + 12 * c; d = FB + 8 * c
        a(f"s_waitcnt lgkmcnt({3*(n-1)-c})")
        for e in range(4): a(f"v_alignbit_b32 v{d+e}, v{b+4+e}, v{b+e}, 16")
        for e in range(4): a(f"v_alignbit_b32 v{d+4+e}, v{b+2+e if e < 2 else b+6+e}, v{b+4+e}, 16")
        a(f"ds_write_b128 v{ad}, {v(d,4)} offset:{o+4160}")
        a(f"ds_write_b128 v{ad}, {v(d+4,4)} offset:{o+3*4160}")

def reads(st):
    o = []
    for m in range(8):
        o.append(f"ds_read_b128 {v(FB+32*st+4*m,4)}, v10 offset:{512*m}")
        o.append(f"ds_read_b64 {v(FA+32*st+4*m,2)}, v8 offset:{512*(7-m)}")
        o.append(f"ds_read_b64 {v(FA+32*st+4*m+2,2)}, v8 offset:{512*(7-m)+8}")
    return o
def _rr():
    left = {i: list(range(i + 1)) for i in range(8)}
    out = []
    while any(left.values()):
        rec = [i for i, _ in out[-3:]]
        cand = sorted([i for i in left if left[i]], key=lambda i: (i in rec, -len(left[i])))
        i = cand[0]
        out.append((i, left[i].pop(0)))
    return out
ORDER = _rr() if "rr" in OPT else sorted([(i, m) for i in range(8) for m in range(i + 1)], key=lambda im: (max(im[1], im[0] - im[1]), im[1], im[0]))

def body(a, extra=None, last=False, step=1):
    for st in range(2):
        a("v_subrev_u32 v8, 64, v8\nv_subrev_u32 v10, 64, v10")
        a("s_waitcnt lgkmcnt(0)")
        rd = reads(1 - st) if not (last and st == 1) else []
        for n, (i, m) in enumerate(ORDER):
            a.mfma(ACC + 4 * i, FA + 32 * st + 4 * m, FB + 32 * st + 4 * (i - m))
            if n < len(rd): a(rd[n])
            if extra and n >= 24 and ((n < 32) if step == 1 else (n % 3 == 0)): extra()

def dval(a):
    a("s_lshl_b32 s13, s15, 16\ns_and_b32 s14, s15, 0xffff0000\ns_bitcmp1_b32 s6, 0\ns_cselect_b32 s13, s14, s13")

def out_tile(a, acc, kv, pk, off):
    T = 22
    a(f"v_and_b32 v{T}, 0xffff0000, v{kv+1}\nv_lshlrev_b32 v{T+1}, 16, v{kv+1}")
    a(f"v_and_b32 v{T+2}, 0xffff0000, v{kv}\nv_lshlrev_b32 v{T+3}, 16, v{kv}")
    for r in range(4): a(f"v_fmac_f32 v{acc+r}, s13, v{T+r}")
    a(f"v_cvt_pk_bf16_f32 v{pk}, v{acc}, v{acc+1}\nv_cvt_pk_bf16_f32 v{pk+1}, v{acc+2}, v{acc+3}")
    a(f"buffer_store_dwordx2 {v(pk,2)}, v20, s[56:59], s10 offen offset:{off} sc1")

def fy_addr(a):
    a(f"s_lshl_b32 s6, s6, 5\ns_add_u32 s6, s6, {FYW_OFF}")

def kv_flag_addr(a, d):
    a(f"s_lshr_b32 s{d}, s6, 6\ns_mul_i32 s9, s{d}, 86\ns_lshr_b32 s9, s9, 8\ns_mul_i32 s9, s9, {FB_STRIDE-384}\ns_lshl_b32 s{d}, s{d}, 7\ns_add_u32 s{d}, s{d}, s9\ns_add_u32 s{d}, s{d}, {FKV_OFF}")

def single(a, wait_kv, gate, extra):
    a.srd(48, P_SSMK, ACT)
    a(f"s_lshl_b32 s10, s6, 12\ns_add_u32 m0, s7, {KF+512}\ns_mul_i32 s54, s6, {KV_PITCH}\ns_add_u32 s54, s54, {KV_OFF}\ns_add_u32 s11, s54, 4")
    for i in range(4): a(f"buffer_load_dwordx4 v2, s[48:51], s10 offen offset:{i*1024} nt lds")
    setup(a)
    wait_kv()
    a("s_mov_b32 m0, s7\ns_nop 0")
    for i in range(4): a(f"buffer_load_dwordx4 v2, s[56:59], s54 offen offset:{i*1024} sc1 lds")
    a(f"s_add_u32 m0, s7, {2*4160}\ns_nop 0")
    for i in range(4): a(f"buffer_load_dwordx4 v2, s[56:59], s11 offen offset:{i*1024} sc1 lds")
    a("s_mov_b64 exec, 7\ns_add_u32 m0, s7, 4096\ns_nop 0")
    a("buffer_load_dwordx4 v3, s[56:59], s54 offen sc1 lds")
    a(f"s_add_u32 m0, s7, {2*4160+4096}\ns_nop 0")
    a("buffer_load_dwordx4 v3, s[56:59], s11 offen sc1 lds")
    a("s_mov_b64 exec, -1")
    a("s_waitcnt vmcnt(0) lgkmcnt(0)")
    a.stamp(5)
    gate(2)
    a("s_waitcnt lgkmcnt(0)")
    build(a, [(11, c * 1024) for c in range(4)] + [(12, 0)])
    for t in reads(0): a(t)
    if "cvt" in OPT: a.stamp(1)
    body(a)
    gate(True)
    body(a)
    a.stamp(6)
    gate(False)
    a.stamp(7)
    body(a, extra, False, 3)
    if "cvt" in OPT: a.stamp(2)
    body(a, extra, True, 3)
    if "cvt" in OPT: a.stamp(3)
    for i in range(8): a(f"ds_read_b64 {v(FA+2*i,2)}, v21 offset:{512*(7-i)}")
    dval(a)
    a(f"s_mul_i32 s10, s6, {KV_PITCH}\ns_add_u32 s10, s10, {Y_OFF}")
    a("s_waitcnt lgkmcnt(0)")
    for i in range(8): out_tile(a, ACC + 4 * i, FA + 2 * i, FB + 2 * i, 512 * i)
    fy_addr(a)

def team_k(a, base, vl, vt):
    a.srd(44, P_SSMK, ACT)
    a(f"s_add_u32 s9, s2, 448\ns_lshl_b32 s9, s9, 12\ns_sub_u32 s15, s3, 4\ns_lshl_b32 s15, s15, 10\ns_add_u32 s9, s9, s15\ns_add_u32 m0, s15, {base+KF+512}\ns_nop 0")
    a(f"buffer_load_dwordx4 v{vl}, s[44:47], s9 offen nt lds")

def team_kv(a, base):
    a(f"s_add_u32 s9, s2, 448\ns_mul_i32 s9, s9, {KV_PITCH}\ns_add_u32 s9, s9, {KV_OFF}\ns_sub_u32 s15, s3, 4\ns_lshl_b32 s15, s15, 10")
    a(f"v_add_u32 v5, s15, v2\ns_add_u32 m0, s15, {base}\ns_add_u32 s7, s9, 4")
    a("buffer_load_dwordx4 v5, s[56:59], s9 offen sc1 lds")
    a(f"s_add_u32 m0, s15, {base+2*4160}\ns_nop 0")
    a("buffer_load_dwordx4 v5, s[56:59], s7 offen sc1 lds")
    a(f"s_mov_b64 exec, 7\ns_mov_b32 m0, {base+4096}\ns_nop 0")
    a("buffer_load_dwordx4 v3, s[56:59], s9 offen sc1 lds")
    a(f"s_mov_b32 m0, {base+2*4160+4096}\ns_nop 0")
    a("buffer_load_dwordx4 v3, s[56:59], s7 offen sc1 lds")
    a("s_mov_b64 exec, -1")

def team(a, base, red, c1, c2, c3, gate, extra):
    a(f"s_mov_b32 s7, {base}\ns_sub_u32 s55, s3, 4\ns_lshl_b32 s12, s55, 10\ns_lshl_b32 s10, s6, 12")
    setup(a)
    a("v_add_u32 v11, s12, v11\ns_lshl_b32 s8, s55, 7\nv_subrev_u32 v8, s8, v8\nv_subrev_u32 v10, s8, v10\nv_subrev_u32 v21, s12, v21\nv_add_u32 v20, s12, v20")
    a(f"s_lshl_b32 s8, s55, 13\ns_add_u32 s8, s8, {red}\nv_add_u32 v26, s8, v2\ns_lshl_b32 s8, s55, 11\ns_add_u32 s8, s8, {red}\nv_add_u32 v27, s8, v2")
    a("s_waitcnt vmcnt(0)")
    a.subbar(VC, 5, 8, 4, off=c1)
    build(a, [(11, 0), (12, 0)])
    a.subbar(VC, 5, 8, 4, off=c2)
    gate()
    for t in reads(0): a(t)
    body(a, extra, True)
    for i in range(2): a(f"ds_read_b64 {v(FA+2*i,2)}, v21 offset:{512*(7-i)}")
    dval(a)
    a(f"s_mul_i32 s10, s6, {KV_PITCH}\ns_add_u32 s10, s10, {Y_OFF}")
    a.nop(4)
    for i in range(8): a(f"ds_write_b128 v26, {v(ACC+4*i,4)} offset:{1024*i}")
    a.subbar(VC, 5, 8, 4, off=c3)
    for i in range(2):
        for w in range(4): a(f"ds_read_b128 {v(FB+16*i+4*w,4)}, v27 offset:{8192*w+1024*i}")
    a("s_waitcnt lgkmcnt(0)")
    for i in range(2):
        b = FB + 16 * i
        for e in range(4): a(f"v_add_f32 v{b+e}, v{b+e}, v{b+4+e}\nv_add_f32 v{b+8+e}, v{b+8+e}, v{b+12+e}")
        for e in range(4): a(f"v_add_f32 v{b+e}, v{b+e}, v{b+8+e}")
        out_tile(a, b, FA + 2 * i, FB + 32 + 2 * i, 512 * i)
    fy_addr(a)
```

```python
from common import *
import kb4, km
from g1 import gelu_pk
import conv, tail
from kb4 import Stream, mphase, gphase, h_addr, pstore, stage_x, stage_y, gen_final, gen_conv_load, paced, NS, RING, BF, MACC, KC, GT, ML_H, VC, V1

G2_WM, G2_W = 0, 2560
SLOT = 24576
G1_BASE = 76800
G1_AUX = 150528
CV_SZ = 21248
FSCR = 4 * CV_SZ
CNT = 158592
RM = CNT + 128
K6_LDS = RM + 1024
kb4.RM = RM
cG2, cX1, cX2, cFX, cSide, cH1, cA, cH2, cW4, cG1, cFH, cU, cW3, cHs, cW3a, cKV, cXs, cT1, cT2, cT3, cT0, cOwn = [4 * i for i in range(22)]
cU2 = cOwn + 16
km.cG1 = cG1

TB = G1_BASE + SLOT
W4F = optval('W4F', 432)

def last_of(a, off, n, skip):
    a(f"s_mov_b64 exec, 1\nds_add_rtn_u32 v5, v{VC}, v{V1} offset:{off}\ns_mov_b64 exec, -1")
    a("s_waitcnt lgkmcnt(0)")
    a("v_readfirstlane_b32 s7, v5")
    a(f"s_cmp_lg_u32 s7, {n-1}\ns_cbranch_scc1 {skip}")

def gen_g(a):
    BUF, ACC, STA, CSA, SQ, SM, CS, ONE, XA, WA = 32, 96, 112, 124, 140, 144, 148, 152, 184, 188
    log = []
    DM = (18, 20, 22, 28)
    a("v_lshrrev_b32 v2, 2, v1\nv_and_b32 v3, 3, v1\nv_mul_u32_u24 v4, 1152, v2")
    a("v_lshrrev_b32 v6, 5, v1\nv_lshlrev_b32 v6, 1, v6\nv_xor_b32 v6, v6, v3\nv_lshl_add_u32 v6, v6, 4, v4")
    a("s_mul_i32 s10, s60, 147456\ns_mul_i32 s9, s3, 18432\ns_add_u32 s10, s10, s9")
    a("s_lshr_b32 s8, s3, 1\ns_mul_i32 s11, s8, 18432\ns_lshl_b32 s9, s61, 7\ns_add_u32 s11, s11, s9\ns_and_b32 s9, s3, 1\ns_lshl_b32 s9, s9, 6\ns_add_u32 s11, s11, s9")
    a("s_mul_i32 s14, s62, 7\ns_add_u32 s14, s14, 1\ns_mov_b32 s12, s61")
    a("s_lshl_b32 s13, s3, 10")
    a("s_waitcnt lgkmcnt(0)")
    a.srd(48, P_Q, ACT)
    a.srd(44, P_W1, D * D * 2)
    SB = [G2_W, G2_W + SLOT, G2_W + 2 * SLOT, G1_BASE, G1_BASE + SLOT, G1_BASE + 2 * SLOT, G2_W, G2_W + SLOT, G1_BASE]
    def issue(gi):
        sl = SB[gi]
        a("s_add_u32 s12, s12, s14\ns_sub_u32 s9, s12, 9\ns_cmp_ge_u32 s12, 9\ns_cselect_b32 s12, s9, s12")
        a(f"s_lshl_b32 s15, s12, 7\ns_add_u32 s15, s15, s10\ns_add_u32 m0, s13, {sl}\ns_mul_i32 s9, s12, 73728")
        a("buffer_load_dwordx4 v6, s[48:51], s15 offen" + (" nt" if "xnt" in OPT else "") + " lds")
        a("s_add_u32 m0, m0, 8128\ns_add_u32 s9, s9, s11")
        a("buffer_load_dwordx4 v6, s[48:51], s15 offen offset:64" + (" nt" if "xnt" in OPT else "") + " lds")
        a("s_add_u32 m0, m0, 8256\ns_nop 0")
        a("buffer_load_dwordx4 v6, s[44:47], s9 offen" + (" nt" if "wnt" in OPT else "") + " lds")
        log.extend(["x", "x", f"g{gi}"])
    younger = lambda key: len(log) - 1 - log.index(key)
    issue(0); issue(1)
    if "w1t" in OPT:
        a("s_mul_i32 s8, s62, 288\ns_lshl_b32 s9, s61, 6\ns_add_u32 s8, s8, s9\ns_add_u32 s8, s8, 32\ns_mul_i32 s9, s3, 36\ns_add_u32 s8, s8, s9")
        a("v_min_u32 v7, 35, v1\nv_add_u32 v7, s8, v7\nv_subrev_u32 v8, 576, v7\nv_min_u32 v7, v7, v8\nv_mul_u32_u24 v7, 1152, v7\ns_lshl_b32 s9, s61, 7")
        a("buffer_load_dword v31, v7, s[44:47], s9 offen")
        log.append("t")
    a.srd(56, P_WS, WS_BYTES)
    a("s_cmp_lg_u32 s3, 0\ns_cbranch_scc1 G_pf")
    a("s_mov_b64 exec, 0xffff")
    a(f"v_lshl_add_u32 v7, v1, 2, v{VC}\nv_mov_b32 v8, 0\nds_write2_b32 v7, v8, v8 offset0:0 offset1:16")
    a("s_mov_b64 exec, -1")
    a("G_pf:")
    a.srd(52, P_W2, D * D * 2)
    a("v_bfe_u32 v7, v1, 4, 1\nv_lshlrev_b32 v8, 1, v7\nv_xor_b32 v8, v8, v3\nv_lshl_add_u32 v30, v8, 4, v4")
    a(f"v_lshlrev_b32 v12, 6, v2\nv_lshl_add_u32 v12, v7, 5, v12\nv_lshl_add_u32 v12, v3, 3, v12\nv_add_u32 v22, {G2_W}, v12\nv_xor_b32 v23, 32, v22")
    a(f"s_mov_b32 s66, s11\ns_lshl_b32 s67, s3, 10\ns_add_u32 s67, s67, {G2_W}")
    a("v_and_b32 v2, 15, v1\nv_lshrrev_b32 v3, 4, v1")
    a("v_bfe_u32 v4, v1, 3, 1\nv_lshlrev_b32 v4, 1, v4")
    a("v_xor_b32 v5, v4, v3\nv_lshl_add_u32 v5, v2, 2, v5\nv_lshlrev_b32 v5, 4, v5")
    a("s_and_b32 s63, s3, 3\ns_lshr_b32 s64, s3, 2\ns_and_b32 s69, s3, 1\ns_lshr_b32 s70, s63, 1\ns_lshl_b32 s71, s63, 1\ns_add_u32 s71, s71, s64")
    a("s_lshl_b32 s9, s71, 10\ns_lshl_b32 s8, s69, 13\ns_add_u32 s9, s9, s8\nv_add_u32 v5, s9, v5")
    for i, x in enumerate((0, 1024, 8192, 9216)): a(f"v_xor_b32 v{XA+i}, {x}, v5\nv_add_u32 v{XA+i}, {G2_W}, v{XA+i}")
    a("v_lshrrev_b32 v5, 1, v3\nv_lshlrev_b32 v11, 11, v5\nv_and_b32 v8, 1, v3\nv_lshl_add_u32 v11, v8, 9, v11")
    a("v_lshrrev_b32 v7, 2, v2\nv_lshl_add_u32 v11, v7, 6, v11\nv_and_b32 v7, 3, v1\nv_lshl_add_u32 v11, v7, 3, v11\nv_lshl_add_u32 v11, v8, 5, v11")
    a("s_lshl_b32 s9, s64, 10\ns_lshl_b32 s8, s69, 12\ns_add_u32 s9, s9, s8\nv_add_u32 v11, s9, v11\ns_lshl_b32 s8, s70, 5\nv_xor_b32 v11, s8, v11")
    for i, x in enumerate((0, 32, 4096, 4128)): a(f"v_xor_b32 v{WA+i}, {x}, v11\nv_add_u32 v{WA+i}, {G2_W+16384}, v{WA+i}")
    a(f"v_xor_b32 v5, v5, v4\nv_lshl_add_u32 v5, v2, 2, v5\nv_lshlrev_b32 v20, 4, v5\nv_lshl_add_u32 v20, v8, 3, v20\ns_add_u32 s9, s13, {G1_BASE}\nv_add_u32 v20, s9, v20\nv_xor_b32 v21, 32, v20")
    a("v_lshlrev_b32 v13, 4, v2\nv_lshlrev_b32 v18, 4, v3\nv_lshlrev_b32 v25, 4, v1")
    a(f"s_lshl_b32 s9, s71, 8\ns_add_u32 s9, s9, {G1_AUX}\nv_add_u32 v26, s9, v13\nv_xor_b32 v27, 256, v26")
    a(f"s_lshl_b32 s9, s64, 8\ns_lshl_b32 s8, s70, 7\ns_add_u32 s9, s9, s8\ns_add_u32 s9, s9, {G1_AUX+2048}\nv_add_u32 v28, s9, v18\nv_xor_b32 v29, 128, v28\ns_lshl_b32 s8, s69, 6\nv_add_u32 v24, s8, v28")
    a(f"s_lshl_b32 s65, s60, 3\ns_add_u32 s65, s65, s71\ns_lshl_b32 s68, s65, 8\ns_add_u32 s68, s68, {ST1_OFF}\ns_xor_b32 s98, s65, 1")
    a(f"s_lshl_b32 s9, s61, 11\ns_lshl_b32 s8, s64, 10\ns_add_u32 s9, s9, s8\ns_add_u32 s9, s9, {H_OFF}\ns_mul_i32 s65, s65, 18432\ns_add_u32 s65, s65, s9\ns_mul_i32 s98, s98, 18432\ns_add_u32 s98, s98, s9")
    a(f"v_mov_b32 v160, {fh(GC0)}\nv_mov_b32 v161, {fh(GC0)}\nv_mov_b32 v162, {fh(GC1)}\nv_mov_b32 v163, {fh(GC1)}\nv_mov_b32 v164, 1.0\nv_mov_b32 v165, 1.0")
    for r in range(4): a(f"v_mov_b32 v{ONE+r}, 0x3f803f80")
    a("v_lshlrev_b32 v7, 2, v3\nv_sub_u32 v19, v2, v7")
    def w2issue(part):
        for i in range(3 * part, 3 * part + 3):
            a(f"s_add_u32 m0, s67, {8192*i}\ns_add_u32 s9, s66, {73728*i}")
            a("buffer_load_dwordx4 v30, s[52:55], s9 offen" + (" nt" if "w2nt" in OPT else "") + " lds")
            log.append("w")
    def reads(gi):
        o0 = SB[gi] - (G2_W if SB[gi] < G1_BASE else G1_BASE)
        b = BUF + 32 * (gi & 1)
        o = []
        for k2 in range(2):
            for mi in range(2): o.append(f"ds_read_b128 {v(b+16*k2+4*mi,4)}, v{XA+2*k2+mi} offset:{o0}")
            for t in range(2):
                for jh in range(2): o.append(f"ds_read_b64_tr_b16 {v(b+16*k2+8+4*t+2*jh,2)}, v{WA+2*k2+t} offset:{o0+256*jh}")
        return o
    for r in range(4): a(f"v_cmp_eq_u32 {s(DM[r],2)}, {r}, v19")
    fin = [f"v_cndmask_b32 v{STA}, 0, v{SQ}, {s(DM[0],2)}"] + [f"v_cndmask_b32 v{STA}, v{STA}, v{SQ+r}, {s(DM[r],2)}" for r in range(1, 4)]
    fin += [f"v_mul_f32 v{STA+2}, {fh(-1.0/D)}, v{SM}"]
    fin += [f"v_mov_b32 v7, v{STA}", "s_nop 1", f"v_permlane32_swap_b32 v{STA}, v7", f"v_add_f32 v{STA}, v{STA}, v7"]
    fin += [f"v_mov_b32 v7, v{STA}", "s_nop 1", f"v_permlane16_swap_b32 v{STA}, v7", f"v_add_f32 v{STA}, v{STA}, v7"]
    fin += f"v_mul_f32 v7, {fh(1.0/D)}, v{STA}\nv_fma_f32 v7, -v{STA+2}, v{STA+2}, v7\nv_max_f32 v7, 0, v7\nv_add_f32 v8, {fh(EPS)}, v7\nv_rsq_f32 v{STA}, v8\ns_nop 0".split("\n")
    fin += f"v_mul_f32 v8, v{STA}, v{STA}\nv_fmaak_f32 v8, v8, v7, {fh(EPS)}\nv_rsq_f32 v8, v8\nv_mul_f32 v{STA+1}, v{STA+2}, v{STA}\nv_mul_f32 v{STA+3}, v8, v{STA}".split("\n")
    LP, LQ = optval("LP", 2), optval("LQ", 3)
    log0 = list(log); fin0 = list(fin)
    a("s_cmp_ge_u32 s3, 4\ns_cbranch_scc1 G_lq")
    for role in "PQ":
        log[:] = log0; fin[:] = fin0
        LA = LP if role == "P" else LQ
        if role == "Q": a("G_lq:")
        for g in range(2, LA): issue(g)
        for gi in range(10):
            rd = []
            if gi < 9:
                if gi in (3, 6, 8):
                    for r in range(8): a(f"v_add_u32 v{XA+r}, {(G1_BASE-G2_W) if gi != 6 else -(G1_BASE-G2_W)}, v{XA+r}")
                a(f"s_waitcnt vmcnt({younger(f'g{gi}')}) lgkmcnt(0)\ns_barrier")
                if gi == 0 or "g1t" in OPT: a.stamp(1 + gi)
                rd = reads(gi)
            else: a("s_waitcnt lgkmcnt(0)")
            def mem():
                if gi + LA < 9: issue(gi + LA)
            for _ in range(optval("RF", 0)):
                if rd: a(rd.pop(0))
            if role == "P" and gi < 7: mem()
            if gi > 0:
                b = BUF + 32 * ((gi - 1) & 1)
                z = "0" if gi == 1 else None
                mm = [(SQ, b, b, z), (SM, ONE, b, z), (SQ, b + 16, b + 16, None), (SM, ONE, b + 16, None), (CS, b + 8, ONE, z)]
                mm += [(ACC + 8 * mi + 4 * t, b + 16 * k2 + 8 + 4 * t, b + 16 * k2 + 4 * mi, z if k2 == 0 else None) for k2 in range(2) for t in range(2) for mi in range(2)]
                for n, (d, x, y, c) in enumerate(mm):
                    if rd: a(rd.pop(0))
                    a.mfma(d, x, y, c)
                    if gi == 9 and n == 5: a.nop(5)
                    if gi == 9 and n >= 5:
                        for _ in range(5):
                            if fin: a(fin.pop(0))
            for r in rd: a(r)
            if role == "Q": mem()
            if gi in (6, 7, 8): w2issue((2, 0, 1)[gi - 6])
            if gi == 8: a(f"s_load_dword s69, {s(P_DBG,2)}, 0")
        if role == "P": a("s_branch G_lj")
    a("G_lj:")
    for x in fin: a(x)
    a(f"ds_write_b128 v24, {v(CS,4)}")
    a(f"ds_write_b128 v26, {v(STA,4)}")
    a("s_waitcnt lgkmcnt(0)\ns_barrier")
    a.stamp(2 if "g1t" not in OPT else 10)
    if "g1t" in OPT: a.end()
    for t in range(2):
        for q in range(2): a(f"ds_read_b128 {v(CSA+8*t+4*q,4)}, v{28+t} offset:{64*q}")
    a(f"ds_read_b128 {v(STA+4,4)}, v27")
    a(f"s_mov_b32 s63, {W2M_OFF}\nv_min_u32 v31, 240, v25\nv_mov_b32 v192, 0\ns_cmp_eq_u32 s69, 0\ns_cselect_b32 s9, 0, s3\ns_cmp_lg_u32 s9, 7\ns_cbranch_scc1 G_w0")
    a("buffer_load_dwordx4 v[192:195], v25, s[56:59], s63 offen sc1\nbuffer_load_dwordx4 v[196:199], v25, s[56:59], s63 offen offset:1024 sc1\nbuffer_load_dwordx4 v[200:203], v31, s[56:59], s63 offen offset:2048 sc1")
    a("G_w0:")
    a("s_mov_b32 s100, 2\ns_cmp_lt_u32 s3, 4\ns_cbranch_scc1 G_t0\ns_cmp_ge_u32 s2, 128\ns_cbranch_scc1 G_t0\ns_mov_b32 s100, 0")
    conv.team_k(a, TB, 25, 5)
    a("G_t0:")
    a("s_cmp_lg_u32 s61, 0\ns_cbranch_scc1 G_ns")
    a(f"s_mov_b64 exec, 0xffff\nbuffer_store_dwordx4 {v(STA,4)}, v13, s[56:59], s68 offen sc1\ns_mov_b64 exec, -1")
    a("G_ns:")
    a(f"v_mov_b32 v{STA+8}, v{STA+2}\nv_mov_b32 v{STA+9}, v{STA+2}\nv_mov_b32 v{STA+10}, v{STA+3}\nv_mov_b32 v{STA+11}, v{STA+3}")
    a("s_waitcnt lgkmcnt(0)")
    for t in range(2):
        for e in range(0, 4, 2): a(f"v_pk_add_f32 {v(CSA+8*t+e,2)}, {v(CSA+8*t+e,2)}, {v(CSA+8*t+4+e,2)}")
    a(f"v_mov_b32 v{STA+4}, v{STA+6}\nv_mov_b32 v{STA+5}, v{STA+6}\nv_mov_b32 v{STA+6}, v{STA+7}")
    for mi in range(2):
        c = STA + 8 - 4 * mi
        regs = [ACC + 8 * mi + e for e in range(8)]
        for e in range(0, 8, 2): a(f"v_pk_fma_f32 {v(regs[e],2)}, {v(c,2)}, {v(CSA+8*(e>>2)+(e&3),2)}, {v(regs[e],2)}")
        for e in range(0, 8, 2): a(f"v_pk_mul_f32 {v(regs[e],2)}, {v(regs[e],2)}, {v(c+2,2)}")
        gelu_pk(a, regs, list(range(168, 176)), "v[160:161]", "v[162:163]", "v[164:165]")
        l1 = a.lab("GS"); l2 = a.lab("GT")
        a(f"s_cmp_lg_u32 s70, 0\ns_cbranch_scc1 {l1}")
        for e in range(4): a(f"v_cvt_pk_bf16_f32 v{176+4*mi+e}, v{regs[2*e]}, v{regs[2*e+1]}")
        a(f"s_branch {l2}\n{l1}:")
        for e in range(4): a(f"v_cvt_pk_bf16_f32 v{176+4*mi+(e^2)}, v{regs[2*e]}, v{regs[2*e+1]}")
        a(f"{l2}:")
        a(f"buffer_store_dwordx4 {v(176+4*mi,4)}, v25, s[56:59], s{65 if mi == 0 else 98} offen sc1")
    a.stamp(3)
    HB, AR, AC2 = 32, 104, 224
    a("v_lshlrev_b32 v2, 4, v1\nv_add_u32 v3, 4096, v2\nv_lshlrev_b32 v4, 2, v1")
    a("s_lshl_b32 s8, s60, 3\ns_add_u32 s8, s8, s3")
    a("v_and_b32 v11, 1, v1\nv_lshlrev_b32 v11, 6, v11\nv_add_u32 v11, v11, v18")
    a("v_add_u32 v28, 36864, v22\nv_add_u32 v29, 36864, v23")
    a("v_and_b32 v8, 15, v1\ns_lshl_b32 s10, s8, 4\nv_add_u32 v8, s10, v8\nv_lshlrev_b32 v9, 4, v18\ns_movk_i32 s13, 18432\nv_mov_b32 v10, 0x80000000")
    for gam, sh in enumerate((-1, 1, -2, 2)):
        a(f"v_add_u32 v5, {sh}, v8\nv_cmp_gt_u32 vcc, {S}, v5\nv_lshrrev_b32 v6, 4, v5\nv_mad_u32_u24 v6, v6, s13, v9\nv_and_b32 v5, 15, v5\nv_lshl_add_u32 v6, v5, 4, v6")
        a(f"v_cndmask_b32 v{24+gam}, v10, v6, vcc")
    a(f"s_mul_i32 s11, s8, 18432\ns_lshl_b32 s9, s61, 11\ns_add_u32 s11, s11, s9\ns_add_u32 s11, s11, {X1_OFF}")
    a(f"s_mul_i32 s6, s60, {FB_STRIDE}\ns_add_u32 s6, s6, {FH_OFF}\ns_lshl_b32 s10, s3, 8\ns_add_u32 s10, s10, {G1_AUX}\nv_add_u32 v13, s10, v13\ns_mov_b32 s14, {H_OFF}")
    a("ds_read_b64 v[18:19], v13")
    a("s_cmp_lg_u32 s69, 0\ns_cbranch_scc1 G_zk")
    a.zcheck(14, 9, False)
    a("G_zk:")
    G2E = "g2l" not in OPT
    if not G2E: a("s_waitcnt vmcnt(0)")
    def hsig():
        last_of(a, cHs, 8, "G_hs")
        a.sadd(6, 7)
        a("G_hs:")
        a.stamp(4)
    if not G2E: hsig()
    else: a("s_waitcnt vmcnt(2)")
    a("s_cmp_lg_u32 s3, 7\ns_cbranch_scc1 G_wm")
    a("s_mov_b32 s13, 0x20000")
    a("W2_m:")
    a("v_min3_u32 v6, v192, v196, v200\nv_cmp_eq_u32 vcc, 0, v6\ns_cbranch_vccz W2_n")
    a("buffer_load_dwordx4 v[192:195], v2, s[56:59], s63 offen sc1\nbuffer_load_dwordx4 v[196:199], v2, s[56:59], s63 offen offset:1024 sc1\nbuffer_load_dwordx4 v[200:203], v31, s[56:59], s63 offen offset:2048 sc1")
    a("s_waitcnt vmcnt(0)\ns_sleep 2\ns_sub_u32 s13, s13, 1\ns_cbranch_scc0 W2_m")
    a("W2_n:")
    a(f"ds_write_b128 v2, v[192:195] offset:{G2_WM}\nds_write_b128 v2, v[196:199] offset:{G2_WM+1024}\nds_write_b128 v31, v[200:203] offset:{G2_WM+2048}")
    a("s_waitcnt lgkmcnt(0)")
    a("G_wm:")
    if G2E:
        a("s_waitcnt vmcnt(0)")
        hsig()
    a("s_barrier")
    NA = 6
    def ard(ks):
        b = AR + 20 * (ks % NA)
        o = [f"ds_read_b128 {v(b,4)}, v11 offset:{G2_WM+128*ks}"]
        for t in range(4):
            for jh in range(2):
                off = ((ks * 2 + jh) * 2 + (t >> 1)) * 1024
                ad = 22 + (t & 1)
                if off >= 36864: off -= 36864; ad += 6
                o.append(f"ds_read_b64_tr_b16 {v(b+4+4*t+2*jh,2)}, v{ad} offset:{off}")
        return o
    for ks in range(NA):
        for r in ard(ks): a(r)
    for t in range(4): a(f"ds_read_b64 {v(244+2*t,2)}, v{20+(t&1)} offset:{8192*(t>>1)}")
    a("s_cmp_lg_u32 s3, 1\ns_cbranch_scc1 G2_hw")
    a.cpoll(6, 9, 48, 13, 1)
    a("G2_hw:")
    a("s_cmp_lg_u32 s100, 0\ns_cbranch_scc1 G_t1")
    a(f"s_add_u32 s7, s2, 448\ns_lshr_b32 s7, s7, 6\ns_lshl_b32 s7, s7, 7\ns_add_u32 s99, s7, {FKV_OFF+2*(FB_STRIDE-384)}")
    a("G_t1:")
    a(f"s_sub_u32 s7, s6, {FB_STRIDE}\ns_add_u32 s12, s6, {FB_STRIDE}\ns_cmp_eq_u32 s3, 0\ns_cselect_b32 s12, s7, s12")
    a("s_waitcnt lgkmcnt(0)\ns_barrier")
    a("s_add_u32 s7, s8, 1\ns_and_b32 s9, s7, 7\ns_cmp_ge_u32 s9, 2\ns_cbranch_scc1 G2_hg\ns_and_b32 s7, s7, 127\ns_cmp_lt_u32 s7, 2\ns_cbranch_scc1 G2_hg")
    a.cpoll(12, 9, 48, 13, 1)
    a("G2_hg:")
    a(f"s_cmp_lg_u32 s100, 0\ns_cbranch_scc1 G_t3\ns_load_dword s49, {s(P_WS,2)}, s99\nG_t3:")
    a.stamp(5)
    hl = []
    for ks in range(18):
        pre = "s_add_u32 s14, s14, 4096\n" if ks and ks % 4 == 0 else ""
        g0, g1_ = (2 * ks) // 9, (2 * ks + 1) // 9
        if g0 == g1_: hl.append((pre + f"buffer_load_dwordx4 {v(HB+4*ks,4)}, v{24+g0}, s[56:59], s14 offen offset:{(ks%4)*1024} sc1", 1))
        else: hl.append((pre + f"buffer_load_dwordx2 {v(HB+4*ks,2)}, v{24+g0}, s[56:59], s14 offen offset:{(ks%4)*1024} sc1\nbuffer_load_dwordx2 {v(HB+4*ks+2,2)}, v{24+g1_}, s[56:59], s14 offen offset:{(ks%4)*1024+8} sc1", 2))
    if 'hpl' in OPT: hl = [(x.replace(' sc1', ''), n) for x, n in hl]
    HD = optval("HD", 5)
    log2 = []
    def hissue(ks):
        a(hl[ks][0]); log2.extend(["x"] * (hl[ks][1] - 1) + [ks])
    for ks in range(HD): hissue(ks)
    for ks in range(18):
        lg = "" if ks < NA else f" lgkmcnt({min(15, 9*min(NA-1, 17-ks))})"
        a(f"s_waitcnt vmcnt({len(log2)-1-log2.index(ks)}){lg}")
        if ks + HD < 18: hissue(ks + HD)
        if ks == 1:
            a("s_cmp_lg_u32 s100, 0\ns_cbranch_scc1 G_t2\ns_waitcnt lgkmcnt(0)\ns_cmp_eq_u32 s49, 0\ns_cbranch_scc1 G_t2\ns_mov_b32 s100, 1")
            conv.team_kv(a, TB)
            a("G_t2:")
        rd = ard(ks + NA) if ks + NA < 18 else []
        b = AR + 20 * (ks % NA)
        for t in range(5):
            a.mfma(AC2 + 4 * t, b + 4 * t, HB + 4 * ks, "0" if ks == 0 else None)
            for _ in range(1 if t == 0 else 2):
                if rd: a(rd.pop(0))
    a.stamp(6)
    for e in range(8): a(f"v_lshlrev_b32 v{HB+2*e}, 16, v{244+e}\nv_and_b32 v{HB+2*e+1}, 0xffff0000, v{244+e}")
    a(f"v_add_f32 v9, v{AC2}, v{AC2+1}")
    a("v_sub_f32 v28, v19, v9\nv_sub_f32 v29, v19, v9\nv_mov_b32 v19, v18\nv_mov_b32 v10, 0\nv_mov_b32 v11, 0")
    for p in range(2):
        for e in range(0, 8, 2): a(f"v_pk_fma_f32 {v(HB+8*p+e,2)}, {v(HB+8*p+e,2)}, v[18:19], v[28:29]")
        for e in range(0, 8, 2): a(f"v_pk_add_f32 {v(HB+8*p+e,2)}, {v(HB+8*p+e,2)}, {v(AC2+4+8*p+e,2)}")
        for e in range(4): a(f"v_cvt_pk_bf16_f32 v{AR+4*p+e}, v{HB+8*p+2*e}, v{HB+8*p+2*e+1}")
        a(f"buffer_store_dwordx4 {v(AR+4*p,4)}, v2, s[56:59], s11 offen offset:{p*1024} sc1")
    for e in range(0, 16, 2): a(f"v_pk_fma_f32 v[10:11], {v(HB+e,2)}, {v(HB+e,2)}, v[10:11]")
    a("v_add_f32 v10, v10, v11")
    gsum(a, 10, 11)
    a(f"s_mul_i32 s10, s60, 9\ns_add_u32 s10, s10, s61\ns_lshl_b32 s10, s10, 9\ns_lshl_b32 s12, s3, 6\ns_add_u32 s10, s10, s12\ns_add_u32 s10, s10, {SS_OFF}")
    a(f"s_lshl_b32 s12, s8, 6\ns_add_u32 s12, s12, {MEAN_OFF}")
    a("s_mov_b64 exec, 0xffff")
    a("buffer_store_dword v10, v4, s[56:59], s10 offen sc1")
    a("s_cmp_lg_u32 s61, 0\ns_cbranch_scc1 G2_m")
    a("buffer_store_dword v9, v4, s[56:59], s12 offen sc1")
    a("G2_m:")
    a("s_mov_b64 exec, -1")
    a(f"s_sub_u32 s6, s6, {FH_OFF-FX_OFF}")
    consts(a)
    a("s_waitcnt vmcnt(0)")
    last_of(a, cG2, 8, "G_xs")
    a.sadd(6, 7)
    a("G_xs:")
    a.stamp(7)

def gen_stats(a):
    R = 32
    a("v_lshrrev_b32 v2, 2, v1\nv_and_b32 v3, 3, v1\nv_mul_u32_u24 v4, 1152, v2\nv_lshl_add_u32 v4, v3, 4, v4")
    a("s_mul_i32 s7, s6, 18432")
    a.srd(44, P_Q, ACT)
    for i in range(18): a(f"buffer_load_dwordx4 {v(R+4*i,4)}, v4, s[44:47], s7 offen offset:{64*i}")
    a("s_barrier")
    a("v_mov_b32 v8, 0x3f803f80")
    for r in range(4): a(f"v_mov_b32 v{20+r}, 0")
    for i in range(18):
        if i % 3 == 0: a(f"s_waitcnt vmcnt({15-i})")
        for d in range(4):
            a(f"v_dot2c_f32_bf16 v{20+(d&1)}, v{R+4*i+d}, v8\nv_dot2c_f32_bf16 v{22+(d&1)}, v{R+4*i+d}, v{R+4*i+d}")
    a.ldsadd(VC, V1, cG1)
    a("v_add_f32 v20, v20, v21\nv_add_f32 v22, v22, v23\ns_nop 1")
    for qp in ("[1,0,3,2]", "[2,3,0,1]"):
        a(f"v_add_f32_dpp v20, v20, v20 quad_perm:{qp} row_mask:0xf bank_mask:0xf")
        a(f"v_add_f32_dpp v22, v22, v22 quad_perm:{qp} row_mask:0xf bank_mask:0xf")
        a("s_nop 1")
    a(f"v_mul_f32 v26, {fh(-1.0/D)}, v20\nv_mul_f32 v22, {fh(1.0/D)}, v22")
    a("v_fma_f32 v22, -v26, v26, v22\nv_max_f32 v22, 0, v22")
    a(f"v_add_f32 v21, {fh(EPS)}, v22\nv_rsq_f32 v24, v21\ns_nop 0")
    a(f"v_mul_f32 v21, v24, v24\nv_fmaak_f32 v21, v21, v22, {fh(EPS)}\nv_rsq_f32 v21, v21")
    a("v_mul_f32 v25, v26, v24\nv_mul_f32 v27, v21, v24\nv_or_b32 v24, 1, v24")
    a(f"v_lshlrev_b32 v5, 4, v2\ns_lshl_b32 s7, s6, 8\ns_add_u32 s7, s7, {ST1_OFF}")
    a.zcheck(14, 9, False)
    a("s_mov_b32 exec_lo, 0x11111111\ns_mov_b32 exec_hi, 0x11111111")
    a("buffer_store_dwordx4 v[24:27], v5, s[56:59], s7 offen sc1")
    a("s_mov_b64 exec, -1")

def gen_colsum(a):
    R = 32
    a("s_mul_i32 s7, s6, 57\ns_lshr_b32 s7, s7, 9\ns_mul_i32 s8, s7, 9\ns_sub_u32 s8, s6, s8")
    a("v_lshrrev_b32 v2, 3, v1\nv_and_b32 v3, 7, v1\nv_mul_u32_u24 v4, 1152, v2\nv_lshl_add_u32 v4, v3, 4, v4")
    a("s_mul_i32 s10, s7, 165888\ns_lshl_b32 s11, s8, 7\ns_add_u32 s10, s10, s11")
    a.srd(44, P_W1, D * D * 2)
    for i in range(18):
        a(f"buffer_load_dwordx4 {v(R+4*i,4)}, v4, s[44:47], s10 offen\ns_add_u32 s10, s10, 9216")
    a("s_barrier")
    for i in range(18):
        if i % 3 == 0: a(f"s_waitcnt vmcnt({15-i})")
        d = 20 if i == 0 else 104
        for e in range(4): a(f"v_lshlrev_b32 v{d+2*e}, 16, v{R+4*i+e}\nv_and_b32 v{d+2*e+1}, 0xffff0000, v{R+4*i+e}")
        if i:
            for e in range(4): a(f"v_pk_add_f32 {v(20+2*e,2)}, {v(20+2*e,2)}, {v(104+2*e,2)}")
    a.ldsadd(VC, V1, cG1)
    for e in range(8): a(f"v_add_f32_dpp v{20+e}, v{20+e}, v{20+e} row_ror:8 row_mask:0xf bank_mask:0xf")
    for e in range(8): gsum(a, 20 + e, 5)
    for e in range(8): a(f"v_or_b32 v{20+e}, 1, v{20+e}")
    a(f"v_lshlrev_b32 v5, 5, v1\ns_mul_i32 s7, s7, 2304\ns_lshl_b32 s8, s8, 8\ns_add_u32 s7, s7, s8\ns_add_u32 s7, s7, {CSUM_OFF}")
    a.zcheck(14, 9, False)
    a("s_mov_b64 exec, 0xff")
    a("buffer_store_dwordx4 v[20:23], v5, s[56:59], s7 offen sc1\nbuffer_store_dwordx4 v[24:27], v5, s[56:59], s7 offen offset:16 sc1")
    a("s_mov_b64 exec, -1")

def consts(a):
    if "nf1" in OPT: a("s_mov_b32 s4, s96\ns_mov_b32 s5, s97")
    elif "nf2" in OPT:
        a("s_and_b32 s4, s96, 3\ns_lshl_b32 s4, s4, 1\ns_and_b32 s7, s97, 1\ns_add_u32 s4, s4, s7\ns_lshr_b32 s5, s96, 2\ns_lshl_b32 s5, s5, 4\ns_lshr_b32 s7, s97, 1\ns_add_u32 s5, s5, s7")
    else:
        a("s_and_b32 s4, s96, 1\ns_lshl_b32 s4, s4, 2\ns_and_b32 s7, s97, 3\ns_add_u32 s4, s4, s7\ns_lshr_b32 s5, s96, 1\ns_lshl_b32 s5, s5, 3\ns_lshr_b32 s7, s97, 2\ns_add_u32 s5, s5, s7")
    km.consts2(a)

def gen_f(a, stP):
    a("s_cmp_lg_u32 s3, 0\ns_cbranch_scc1 F_pf")
    a("s_mov_b64 exec, 0xffff")
    a(f"v_lshl_add_u32 v7, v1, 2, v{VC}\nv_mov_b32 v8, 0\nds_write2_b32 v7, v8, v8 offset0:0 offset1:16")
    a("s_mov_b64 exec, -1")
    a("F_pf:")
    a(f"s_mul_i32 s61, s3, {CV_SZ}\ns_lshl_b32 s7, s3, 12\ns_add_u32 s7, s7, {FSCR-4*4096}\ns_cmp_ge_u32 s3, 4\ns_cselect_b32 s61, s7, s61")
    a("s_sub_u32 s65, 111, s60\ns_cmp_lt_u32 s3, 4\ns_cselect_b32 s65, s60, s65" if "norev" not in OPT else "s_mov_b32 s65, s60")
    a("s_mul_i32 s12, s3, 112\ns_add_u32 s12, s12, s65\ns_mov_b32 s13, s61")
    a("s_waitcnt lgkmcnt(0)")
    a.srd(56, P_WS, WS_BYTES)
    a("s_cmp_eq_u32 s99, 1\ns_cbranch_scc1 F_pt\ns_barrier")
    a("s_cmp_ge_u32 s12, 306\ns_cbranch_scc1 F_pt")
    a("s_setprio 2\ns_cmp_lt_u32 s12, 288\ns_cbranch_scc1 F_kv")
    a("s_sub_u32 s6, s12, 288")
    km.gen_meantile(a)
    a.ldsadd(VC, V1, cKV)
    a("s_branch F_done")
    a("F_kv:\ns_mov_b32 s6, s12")
    if "nobulk" in OPT: a("s_sleep 100\ns_branch F_end")
    st = a.stamps; a.stamps = False
    km.gen_kv(a)
    a.stamps = st
    a.stamp(5)
    a(f"s_mul_i32 s11, s8, {FB_STRIDE}\ns_add_u32 s11, s11, {FKC_OFF}")
    a("s_branch F_sig")
    a("F_pt:")
    a(f"s_mov_b32 s64, 0\ns_cmp_lt_u32 s12, {optval('FUN', 450)}\ns_cbranch_scc1 F_job")
    a("s_cmp_ge_u32 s12, 738\ns_cbranch_scc1 F_r2")
    a.ldswait(VC, 5, 7, optval('FJW', 4), cKV, sleep=4)
    a("F_job:")
    a(f"s_setprio {optval('JP', 1)}")
    a("s_sub_u32 s12, s12, 306\ns_and_b32 s62, s12, 7\ns_lshr_b32 s12, s12, 3\ns_mov_b32 s9, s61")
    n0 = len(a.L)
    km.job_setup(a, "JS")
    a.L[n0:] = [x.replace("s96", "s62") for x in a.L[n0:]]
    gen_pretile(a, 128)
    a(f"s_mov_b32 s6, s98\ns_add_u32 s11, s6, {FCNT}")
    a("F_sig:")
    a.zcheck(14, 13)
    a.ldsadd(VC, V1, cKV)
    a.stamp(6)
    a.sarrive(6, "s100", 8, 11)
    a("F_done:")
    a.stamp(2)
    a("s_cmp_lt_u32 s3, 4\ns_cbranch_scc1 F_cv")
    a("s_cmp_lg_u32 s64, 0\ns_cbranch_scc1 F_end")
    a("F_r2:")
    R2 = os.environ.get("R2", "kv6")
    if R2 == "kv6": a.ldswait(VC, 5, 7, 6, cKV, sleep=4)
    if R2 == "cv": a.ldswait(VC, 5, 7, 4, cT1, sleep=4)
    if R2 == "cv2": a.ldswait(VC, 5, 7, 4, cT2, sleep=4)
    a("s_mov_b32 s64, 1\ns_sub_u32 s12, 7, s3\ns_mul_i32 s12, s12, 112\ns_add_u32 s12, s12, s65\ns_add_u32 s12, s12, 738\ns_cmp_lt_u32 s12, 1170\ns_cbranch_scc1 F_job")
    a("F_end:")
    if "g1t" in OPT: a.end()
    a("v_lshlrev_b32 v2, 4, v1\nv_add_u32 v3, 4096, v2\nv_lshlrev_b32 v4, 2, v1")
    consts(a)
    a("s_branch K6_q")
    a("F_cv:")
    if "g1t" in OPT: a.end()
    a("v_lshlrev_b32 v2, 4, v1\nv_add_u32 v3, 4096, v2\nv_lshlrev_b32 v4, 2, v1")
    consts(a)
    a("s_lshl_b32 s6, s60, 2\ns_add_u32 s6, s6, s3\ns_mov_b32 s7, s61\ns_setprio 3")
    def wait_kv():
        a("s_cmp_lg_u32 s3, 0\ns_cbranch_scc1 F_kw")
        conv.kv_flag_addr(a, 8)
        a.cpoll(8, 1, 44, 13, 2)
        a.ldsadd(VC, V1, cXs)
        a("F_kw:")
        a.ldswait(VC, 5, 8, 1, cXs)
        a.stamp(3)
    def gate(pre):
        if pre == 2:
            a.ldsadd(VC, V1, cT1)
            return
        if not pre: a.ldsadd(VC, V1, cT2)
        if pre:
            a(f"s_add_u32 s55, s70, 128\ns_load_dword s53, {s(P_WS,2)}, s55")
            return
        a("s_cmp_lg_u32 s53, 0\ns_cbranch_scc1 F_w3")
        a.cpoll(55, 1, 44, 13, 8)
        a("F_w3:")
    conv.single(a, wait_kv, gate, stP.issue)
    assert stP.issued == 16
    a.stamp(4)
    a("v_mov_b32 v5, 2\ns_mov_b32 s98, s6")
    a.ldsadd(VC, 5, cG2)
    a("s_branch K6_p2")

def gen_k6(a, name):
    fine = "fine" in OPT
    a(f".p2align 8\n{name}:\nK6_start:")
    a("s_cmp_ge_u32 s2, 256\ns_cbranch_scc1 K6_end")
    a.stamp_init()
    if "skew" in OPT:
        a("s_mul_i32 s4, s2, 5\ns_and_b32 s4, s4, 7\nSK_l:\ns_sub_u32 s4, s4, 1\ns_cbranch_scc1 SK_d\ns_sleep 12\ns_branch SK_l\nSK_d:")
    a.kernargs()
    a("v_lshrrev_b32 v2, 6, v0\nv_and_b32 v1, 63, v0")
    a("v_readfirstlane_b32 s3, v2")
    a("s_and_b32 s96, s2, 7\ns_lshr_b32 s97, s2, 3\ns_mov_b32 s101, 1\ns_mov_b32 s99, 0")
    a(f"v_mov_b32 v{VC}, {CNT}\nv_mov_b32 v{V1}, 1")
    a("s_sub_u32 s60, s2, 144\ns_cmp_lt_u32 s97, 18\ns_cbranch_scc1 K6_g")
    if "now12" not in OPT:
        a("s_cmp_lg_u32 s3, 5\ns_cbranch_scc1 K6_n5\ns_mul_i32 s8, s60, 6016\nv_min_u32 v2, 46, v1\nv_lshlrev_b32 v2, 7, v2\nv_add_u32 v2, s8, v2\nv_min_u32 v2, 663424, v2\ns_waitcnt lgkmcnt(0)")
        a(f"global_load_dword v30, v2, {s(P_W1,2)}\nglobal_load_dword v31, v2, {s(P_W2,2)}\ns_branch K6_f\nK6_n5:")
    a("s_cmp_lt_u32 s3, 6\ns_cbranch_scc1 K6_f\ns_cmp_eq_u32 s3, 7\ns_cbranch_scc1 K6_pf")
    a(f"s_sub_u32 s11, 255, s2\ns_cmp_ge_u32 s11, {FLAG_WAVES}\ns_cbranch_scc1 K6_f")
    a(f"v_lshrrev_b32 v7, 5, v1\nv_mul_u32_u24 v7, {FB_STRIDE-512}, v7\nv_lshl_add_u32 v7, v1, 4, v7\nv_lshlrev_b32 v6, 4, v1")
    a("v_mov_b32 v8, 0\nv_mov_b32 v9, 0\nv_mov_b32 v10, 0\nv_mov_b32 v11, 0")
    a(f"s_lshl_b32 s8, s11, 12\ns_add_u32 s8, s8, {W2M_OFF}\ns_mul_i32 s9, s11, {4*FB_STRIDE}\ns_add_u32 s9, s9, {FLAG_OFF}\ns_add_u32 s10, s9, {2*FB_STRIDE}")
    a("s_waitcnt lgkmcnt(0)")
    a.srd(56, P_WS, WS_BYTES)
    for i in range(4): a(f"buffer_store_dwordx4 v[8:11], v6, s[56:59], s8 offen offset:{1024*i} sc1")
    a("buffer_store_dwordx4 v[8:11], v7, s[56:59], s9 offen sc1\nbuffer_store_dwordx4 v[8:11], v7, s[56:59], s10 offen sc1")
    a("s_barrier\ns_mov_b32 s99, 1\ns_mov_b32 s8, 1\ns_waitcnt vmcnt(0)")
    a(f"s_atomic_add s8, {s(P_DBG,2)}, 128 glc\ns_waitcnt lgkmcnt(0)\ns_cmp_lg_u32 s8, {FLAG_WAVES-1}\ns_cbranch_scc1 K6_f")
    a(f"s_atomic_add s101, {s(P_DBG,2)}, 0")
    a.stamp(1)
    a("s_branch K6_f")
    a("K6_pf:")
    a("s_getpc_b64 s[8:9]\nF_pc:")
    a("s_sub_u32 s10, s97, 18\nv_min_u32 v2, 39, v1\nv_mul_u32_u24 v2, 14, v2\nv_add_lshl_u32 v2, s10, v2, 7\nv_min_u32 v2, CODE_END-F_pc-4, v2")
    a("global_load_dword v31, v2, s[8:9]")
    a("s_branch K6_f")
    a("K6_g:")
    a("s_cmp_ge_u32 s97, 9\ns_cselect_b32 s62, 1, 0\ns_mul_i32 s61, s62, 9\ns_sub_u32 s61, s97, s61\ns_lshl_b32 s60, s96, 1\ns_add_u32 s60, s60, s62")
    A3 = [(2, 0), (2, 1024), (2, 2048)]
    stP = Stream(a, [(64, A3, " sc1"), (65, A3, " sc1"), (66, [(tail.VT + i, 0) for i in range(3)], " sc1"), (68, [(tail.VT + 3, 0)], " sc1")])
    stQ = Stream(a, [(64, A3, " sc1"), (66, [(tail.VT + i, 0) for i in range(5)], " sc1")])
    gen_g(a)
    a("s_cmp_lt_u32 s3, 4\ns_cbranch_scc1 K6_p")
    a("s_cmp_ge_u32 s2, 128\ns_cbranch_scc1 K6_q")
    a("s_setprio 3\ns_cmp_lg_u32 s100, 0\ns_cbranch_scc1 G_kw")
    a.cpoll(99, 1, 44, 13, 8)
    conv.team_kv(a, TB)
    a("G_kw:")
    a(f"s_add_u32 s6, s2, 448\ns_add_u32 s52, s70, 256\ns_load_dword s53, {s(P_WS,2)}, s52")
    def tgate():
        a("s_cmp_lg_u32 s53, 0\ns_cbranch_scc1 G_k2")
        a.cpoll(52, 1, 53, 13, 8)
        a("G_k2:")
    conv.team(a, TB, TB + 21504, cT1, cT2, cT3, tgate, stQ.issue)
    assert stQ.issued == 16
    a.ldsadd(VC, V1, cSide)
    a.stamp(8 if not fine else 2)
    a("s_waitcnt vmcnt(0)")
    last_of(a, cU, 4, "K6_q2")
    a.setflag("s6", 14)
    a("s_branch K6_q2")
    a("K6_f:")
    gen_f(a, stP)
    def addrs():
        a(f"v_mov_b32 v6, v2\nv_add_u32 v7, 36864, v2\nv_add_u32 v8, {ML_H}, v2\nv_add_u32 v9, {ML_H+36864}, v2")
        h_addr(a, 71, 10, 12)
    def rk():
        a(f"v_and_b32 v5, 15, v1\nv_lshlrev_b32 v5, 4, v5\nv_add_u32 v5, {RM}, v5")
        for m in range(4): a(f"ds_read_b32 v{GT+m}, v5 offset:{256*m}")
        a("s_waitcnt lgkmcnt(0)")
        for m in range(4):
            r = GT + m
            a(f"v_mul_f32 v{KC+2*m}, {fh(GC0)}, v{r}\nv_mul_f32 v{r}, v{r}, v{r}\nv_mul_f32 v{r}, {fh(0.044715)}, v{r}\nv_mul_f32 v{KC+2*m+1}, v{r}, v{KC+2*m}")
    a("K6_p:")
    a("s_cmp_lg_u32 s3, 1\ns_cbranch_scc1 KB_w3")
    a("s_add_u32 s6, s70, 128")
    a.dpoll(6, 48, 13, 8)
    a.ldsadd(VC, V1, cW3a)
    a("KB_w3:")
    a.ldswait(VC, 5, 7, 1, cW3a)
    paced(a, Stream(a, stP.segs), 16, optval("PPACE", 8))
    a("s_mov_b32 s98, 0")
    a("K6_p2:")
    a("s_setprio 2")
    PRE = NS
    for i in range(NS - 16): stP.issue()
    addrs()
    a(f"s_lshr_b32 s11, s5, 1\ns_mul_i32 s6, s11, {FB_STRIDE}\ns_add_u32 s6, s6, {FX_OFF}")
    a(f"s_mul_i32 s9, s3, 18432\ns_mov_b32 m0, s9\ns_mul_i32 s7, s5, 73728\ns_add_u32 s7, s7, s9\ns_add_u32 s7, s7, {X1_OFF}")
    a.stamp(8)
    a("s_cmp_lg_u32 s3, 0\ns_cbranch_scc1 KB_xw")
    a.cpoll(6, 9, 44, 13, optval('FXS', 1))
    a.ldswait(VC, 5, 8, 8, cG2)
    a.ldsadd(VC, V1, cFX)
    a("s_branch KB_xg")
    a("KB_xw:")
    a.ldswait(VC, 5, 8, 1, cFX)
    a("KB_xg:")
    a.stamp(9)
    def xdma(i):
        if i and i % 4 == 0: a("s_add_u32 m0, m0, 4096\ns_add_u32 s7, s7, 4096")
        a(f"buffer_load_dwordx4 v2, s[56:59], s7 offen offset:{(i%4)*1024} sc1 lds")
        stP.other(f"x{i}")
    XP = optval("XP", 6)
    for i in range(XP): xdma(i)
    for i in range(NS - PRE): stP.issue()
    late = [(lambda i=i: xdma(i)) for i in range(XP, 18)]
    def stat(ins, tag="x"):
        a(ins); stP.other(tag)
    for i in range(optval("XE", 12)): late.pop(0)()
    a(f"s_waitcnt vmcnt({stP.younger(f'x{XP-1}')})")
    a("s_cmp_eq_u32 s98, 0\ns_cbranch_scc1 KB_fy")
    a.setflag("s98", 14)
    a("KB_fy:")
    a.subbar(VC, 5, 10, 4, off=cX1)
    a.stamp(10 if not fine else 1)
    def xhook(ks, i):
        if i in (0, 4, 8, 10, 11, 3) and late: late.pop(0)()
    mphase(a, stP, 0, 6, 0, XP, prio=2, hook=xhook)
    assert not late
    if "s1" in OPT: a.stamp(8)
    a(f"s_waitcnt vmcnt({stP.younger('x17')})")
    if "s1" in OPT: a.stamp(9)
    a.subbar(VC, 5, 7, 4, off=cX2)
    kw = 18 - (NS + 2) // 3
    def w3hook(ks, i):
        if ks == kw - 1 and i == 10: a.ldswait(VC, 5, 7, 1, cW3)
    mphase(a, stP, 0, 6, XP, 18, first=False, prio=2, hook=w3hook)
    if fine: a.stamp(2)
    a.ldswait(VC, 5, 7, 5, cSide)
    rk()
    def pthook(i):
        if "ptouch" in OPT and i in (0, 2, 4):
            a(f"s_lshl_b32 s6, s4, 5\ns_add_u32 s6, s6, s5\ns_mul_i32 s6, s6, 73728\ns_mul_i32 s7, s3, 18432\ns_add_u32 s6, s6, s7\ns_add_u32 s6, s6, {PART_OFF+3072*i}")
            a("v_min_u32 v14, 47, v1\nv_lshlrev_b32 v14, 7, v14\ns_setprio 3\nbuffer_load_dword v18, v14, s[56:59], s6 offen sc1\ns_setprio 0"); stP.other()
    gphase(a, 10, 12, pthook)
    a.ldsadd(VC, V1, cH1)
    if fine: a.stamp(3)
    a("s_add_u32 s71, s71, 24")
    h_addr(a, 71, 10, 12)
    tail.consts_b(a)
    def w4hook(ks, i):
        if ks == kw - 1 and i == 10: a.ldswait(VC, 5, 7, 1, cW4)
    mphase(a, stP, 1, 6, prio=1, hook=w4hook)
    if fine: a.stamp(4)
    a.ldsadd(VC, V1, cU2)
    def sthook(i):
        if i == 0 and "w4t" in OPT:
            a("v_bfe_u32 v5, v1, 3, 2\nv_mov_b32 v14, s44")
            for t in range(1, 4): a(f"v_cmp_eq_u32 vcc, {t}, v5\nv_mov_b32 v15, s{44+t}\ns_nop 0\nv_cndmask_b32 v14, v14, v15, vcc")
            a("v_and_b32 v5, 7, v1\nv_lshl_add_u32 v14, v5, 7, v14\nv_lshrrev_b32 v5, 5, v1\nv_mul_u32_u24 v5, 36864, v5\nv_add_u32 v14, v14, v5")
            a("s_and_b32 s6, s5, 7\ns_add_u32 s6, s6, 1\ns_mul_i32 s6, s6, 73728\ns_add_u32 s6, s6, s68")
            a("s_setprio 3\nbuffer_load_dword v18, v14, s[56:59], s6 offen sc1\ns_setprio 0"); stP.other()
        if i == optval("SGI", 0):
            a.ldswait(VC, 5, 7, 4, cU2)
            a.ldswait(VC, 5, 7, 8, cH1)
            a("s_setprio 3")
            stage_x(a)
            stage_y(a, True)
            a("s_setprio 0")
            for j in range(6): stP.other()
    gphase(a, 10, 12, sthook)
    a.ldsadd(VC, V1, cH2)
    a("s_waitcnt vmcnt(0)")
    a.ldsadd(VC, V1, cA)
    a.ldswait(VC, 5, 7, 4, cH2)
    if fine: a.stamp(5)
    PF = 'pfirst' in OPT or 'pfin' in OPT
    mphase(a, stP, 2, 8, prio=(2 if PF else None))
    if PF: a('s_setprio 3')
    if fine: a.stamp(6)
    tail.stores(a, 3, stP.other)
    tail.ex_base(a, 8)
    a(f"v_add_u32 v10, s8, v2\ns_lshl_b32 s6, s3, 2\nv_add_u32 v11, s6, v{VC}")
    if PF:
        a("s_waitcnt vmcnt(0)")
        tail.flags(a, 3); stP.other()
    def hook(ks, i):
        if not PF and ks == optval("EFLAG", 12) and i == 0:
            a("s_waitcnt vmcnt(0)")
            tail.flags(a, 3); stP.other()
    mphase(a, stP, 3, 8, acc=MACC + 64, hook=hook, bufs=[BF, BF + 16, MACC, MACC + 16], prio=optval("P2P", 0 if PF else 1))
    if fine: a.stamp(7)
    if "pfin" in OPT:
        a("s_setprio 2")
        a.ldswait(VC, 5, 7, 4, cA)
        st = a.stamps; a.stamps = st and fine
        tail.final(a, cOwn, None, "P", MACC + 64)
        a.stamps = st
    else:
        a.nop(8)
        for i in range(4): a(f"ds_write_b128 v10, {v(MACC+64+4*i,4)} offset:{1024*i}")
        a.ldsadd(11, V1, cOwn)
    a.end()
    a("K6_q:")
    a("s_setprio 0")
    a.stamp(8 if not fine else 2)
    a.ldsadd(VC, V1, cSide)
    a("s_cmp_lg_u32 s3, 7\ns_cbranch_scc1 KB_q3")
    a("s_add_u32 s8, s70, 256")
    a.dpoll(8, 44, 13, 8)
    a.ldsadd(VC, V1, cT0)
    a("KB_q3:")
    a.ldswait(VC, 5, 7, 1, cT0, sleep=2)
    QW = optval("QRW", -1)
    if QW >= 0: a.ldswait(VC, 5, 7, 4, QW, sleep=2)
    paced(a, Stream(a, stQ.segs), 16, optval("QPACE", 4))
    a("K6_q2:")
    a("s_setprio 0")
    for i in range(NS - 16): stQ.issue()
    a.stamp(9 if not fine else 3)
    addrs()
    a("s_cmp_lg_u32 s3, 5\ns_cbranch_scc1 KB_w3c\ns_add_u32 s8, s70, 384")
    a.dpoll(8, 52, 13, 8)
    a.ldsadd(VC, V1, cW3)
    a("KB_w3c:")
    a("s_cmp_lg_u32 s3, 6\ns_cbranch_scc1 KB_rs")
    a.ldswait(VC, 5, 7, 1, cFX)
    a(f"s_lshr_b32 s11, s5, 1\ns_mul_i32 s6, s11, 4608\ns_and_b32 s8, s5, 1\ns_lshl_b32 s8, s8, 8\ns_add_u32 s6, s6, s8\ns_add_u32 s6, s6, {SS_OFF}\ns_add_u32 s11, s6, 4096")
    a(f"s_lshl_b32 s8, s5, 8\ns_add_u32 s8, s8, {MEAN_OFF}\ns_lshl_b32 s9, s5, 10\ns_add_u32 s9, s9, {ST1_OFF}\ns_setprio 3")
    for i in range(8): a(f"buffer_load_dword v{GT+i}, v4, s[56:59], s6 offen offset:{512*i} sc1")
    a(f"buffer_load_dword v{GT+8}, v4, s[56:59], s11 offen sc1\nbuffer_load_dword v{GT+13}, v4, s[56:59], s8 offen sc1\nbuffer_load_dwordx2 {v(GT+14,2)}, v2, s[56:59], s9 offen sc1")
    a("s_waitcnt vmcnt(0)")
    for i in range(1, 9): a(f"v_add_f32 v{GT}, v{GT}, v{GT+i}")
    a(f"v_mov_b32 v{GT+1}, {fh(1.0/D)}\nv_fmaak_f32 v{GT}, v{GT+1}, v{GT}, {fh(EPS)}")
    a(f"v_rsq_f32 v{GT+12}, v{GT}")
    a(f"v_add_u32 v5, {RM}, v2\ns_nop 0")
    a(f"ds_write_b128 v5, {v(GT+12,4)}")
    a.ldsadd(VC, V1, cSide)
    a("KB_rs:")
    tail.consts_b(a)
    a.ldswait(VC, 5, 7, 4, cX2)
    def qhook(ks, i):
        if ks == kw - 4 and i == 10:
            a(f"s_cmp_lg_u32 s3, 7\ns_cbranch_scc1 KB_q2a\ns_load_dword s53, {s(P_WS,2)}, s70\nKB_q2a:")
        if ks == kw - 3 and i == 10:
            a("s_cmp_lg_u32 s3, 7\ns_cbranch_scc1 KB_q2c\ns_cmp_lg_u32 s53, 0\ns_cbranch_scc1 KB_q2b")
            a.cpoll(70, 1, 53, 13, 8)
            a("KB_q2b:")
            a.ldsadd(VC, V1, cW4)
            a("KB_q2c:")
        if ks == kw - 1 and i == 10: a.ldswait(VC, 5, 7, 1, cW4)
    mphase(a, stQ, 0, 6, prio=2, hook=qhook)
    a.ldswait(VC, 5, 7, 5, cSide)
    if fine: a.stamp(4)
    rk()
    def yhook(i):
        ld = "buffer_load_dword v18, v14, s[56:59], s8 offen sc1\nbuffer_load_dword v19, v14, s[56:59], s8 offen offset:1280 sc1"
        if i == 0:
            a(f"s_mul_i32 s8, s4, 9\ns_lshr_b32 s8, s8, 1\ns_lshl_b32 s8, s8, 9\ns_add_u32 s8, s8, {FYW_OFF}\nv_min_u32 v14, 39, v1\nv_lshlrev_b32 v14, 5, v14")
            a(f"s_cmp_lg_u32 s3, 7\ns_cbranch_scc1 KB_y0\n{ld}\nKB_y0:")
        if i == 4:
            a("s_cmp_lg_u32 s3, 7\ns_cbranch_scc1 KB_ys\ns_mov_b32 s13, 0x20000\nKB_y1:")
            a("s_waitcnt vmcnt(0)\nv_and_b32 v18, v18, v19\nv_cmp_ne_u32 vcc, 1, v18\ns_cbranch_vccz KB_ys")
            a(f"s_sleep 16\n{ld}\ns_sub_u32 s13, s13, 1\ns_cbranch_scc0 KB_y1")
            a("KB_ys:")
    gphase(a, 10, 12, yhook)
    a.subbar(VC, 5, 7, 8, off=cH1)
    if fine: a.stamp(5)
    mphase(a, stQ, 1, 8, 0, 12, prio=1)
    a.ldswait(VC, 5, 7, 4, cH2)
    if fine: a.stamp(7)
    mphase(a, stQ, 1, 8, 12, 18, first=False, prio=1)
    a(f"s_setprio {optval('QT', 1)}")
    a.stamp(10)
    tail.stores(a, 5)
    a.ldswait(VC, 5, 7, 4, cA)
    def mid():
        a("s_waitcnt vmcnt(0)")
        tail.flags(a, 5)
        a(f"s_setprio {optval('QF', 1)}")
    st = a.stamps; a.stamps = st and fine
    if "pfin" in OPT:
        mid()
        a.stamp(1)
        a("s_and_b32 s6, s4, 1\ns_cmp_lt_u32 s3, 6\ns_cselect_b32 s6, s6, 0\ns_cmp_eq_u32 s6, 0\ns_cbranch_scc1 K6_qe")
        tail.final(a, cOwn, None, "Q")
        a("K6_qe:")
    else: tail.final(a, cOwn, mid)
    a.stamps = st
    a.end()
    a("K6_end:")
    a("s_endpgm")
```

```python
from common import *

G2_WM, G2_XT, G2_W = 0, 3072, 15360
CV, CV_SZ = 92160, 21248
CNT = CV + 3 * CV_SZ
RM = CNT + 64
PT7 = RM + 1024
KB_LDS = PT7 + 4096
ML_H = 73728
VC, V1 = 16, 17
NS = optval("NS", 18)
RING = 32
BF = RING + 4 * NS
MACC = BF + 32
KC = MACC + 80
GT = KC + 8
assert GT + 16 <= 256

class Stream:
    def __init__(self, a, segs):
        self.a = a
        self.items = [(sg, ks, t) for sg, sd in enumerate(segs) for ks in range(18) for t in range(len(sd[1]))]
        self.segs = segs
        self.issued = 0
        self.log = []
        self.owed = 0
        self.pre_done = -1
    def pre(self):
        if self.issued >= len(self.items) or self.pre_done == self.issued: return
        sg, ks, t = self.items[self.issued]
        if t == 0 and ks > 0:
            self.a(f"s_add_u32 s{self.segs[sg][0]}, s{self.segs[sg][0]}, 36864")
            self.pre_done = self.issued
    def issue(self):
        if self.issued >= len(self.items): return
        sg, ks, t = self.items[self.issued]
        sr, tl, fl = self.segs[sg]
        if t == 0 and ks > 0 and self.pre_done != self.issued: self.a(f"s_add_u32 s{sr}, s{sr}, 36864")
        vo, off = tl[t]
        if not ("nold" in OPT and self.issued >= NS): self.a(f"buffer_load_dwordx4 {v(RING+4*(self.issued % NS),4)}, v{vo}, s[56:59], s{sr} offen offset:{off}{fl}")
        self.log.append(self.issued)
        self.issued += 1
    def other(self, tag="x"): self.log.append(tag)
    def index(self, sg, ks, t): return self.items.index((sg, ks, t))
    def younger(self, key): return len(self.log) - 1 - self.log.index(key)

def mphase(a, st, sg, vb, ks0=0, ks1=18, first=True, acc=None, hook=None, prio=None, bufs=None):
    if acc is None: acc = MACC
    if bufs is None: bufs = [BF, BF + 16]
    nb = len(bufs); dist = nb - 1
    nt = len(st.segs[sg][1])
    def rd(ks, m): a(f"ds_read_b128 {v(bufs[ks%nb]+4*m,4)}, v{vb + (m >> 1)} offset:{(m&1)*18432+ks*1024}")
    if prio is not None: a(f"s_setprio {prio}")
    for ks in range(ks0, min(ks0 + dist, ks1)):
        for m in range(4): rd(ks, m)
    rslots = {1: (0, 1, 2, 3), 2: (0, 2, 3, 4), 3: (2, 3, 6, 7)}.get(nt, (2, 6, 10, 14))
    for ks in range(ks0, ks1):
        vm = st.younger(st.index(sg, ks, nt - 1))
        a(f"s_waitcnt vmcnt({min(vm,63)}) lgkmcnt({4*min(dist-1, ks1-1-ks)})")
        for t in range(nt):
            n = st.index(sg, ks, t)
            for m in range(4):
                i = 4 * t + m
                a.mfma(acc + 16 * t + 4 * m, RING + 4 * (n % NS), bufs[ks % nb] + 4 * m, "0" if (first and ks == ks0) else None)
                if m == 0 and st.owed: st.pre()
                if m == 1 and st.owed: st.issue(); st.owed = 0
                if m == 3: st.owed = 1
                if i in rslots and ks + dist < ks1 and "nord" not in OPT: rd(ks + dist, rslots.index(i))
                if hook: hook(ks, i)
    if st.owed: st.issue(); st.owed = 0
    if prio is not None: a("s_setprio 0")

def gphase(a, ve, vo, hook=None):
    a.nop(8)
    for t in range(3):
        for mp in range(2):
            regs = [MACC + 16 * t + 8 * mp + e for e in range(8)]
            k0 = [f"v{KC + 2*(2*mp + (e >> 2))}" for e in range(8)]
            k1 = [f"v{KC + 2*(2*mp + (e >> 2)) + 1}" for e in range(8)]
            if "nog" not in OPT: gelu_vals(a, regs, list(range(GT, GT + 8)), k0, k1)
            else: a("s_sleep 8")
            p = GT + 8 + 4 * (mp & 1)
            for e in range(4): a(f"v_cvt_pk_bf16_f32 v{p+e}, v{regs[2*e]}, v{regs[2*e+1]}")
            ad = (ve if t != 1 else vo) + mp
            for mm in range(2):
                a(f"ds_write_b64 v{ad}, {v(p+2*mm,2)} offset:{mm*18432+(t>>1)*1024}")
            if hook: hook(2 * t + mp)

def h_addr(a, sT, ve, vo):
    for k, dst in ((0, ve), (1, vo)):
        a(f"s_add_u32 s12, s{sT}, {k}\ns_lshr_b32 s13, s12, 1\ns_lshl_b32 s13, s13, 10\ns_and_b32 s12, s12, 1\ns_lshl_b32 s12, s12, 3\ns_add_u32 s12, s12, s13\ns_add_u32 s12, s12, {ML_H}")
        a(f"v_add_u32 v{dst}, s12, v2\nv_add_u32 v{dst+1}, 36864, v{dst}")

def pstore(a, acc, t, mp, sreg, off, k):
    p = GT + 4 * (k % 4)
    o = [f"v_cvt_pk_bf16_f32 v{p+e}, v{acc+16*t+8*mp+2*e}, v{acc+16*t+8*mp+2*e+1}" for e in range(4)]
    o.append(f"buffer_store_dwordx4 {v(p,4)}, v2, s[56:59], s{sreg} offen offset:{off} sc1")
    return o

HFL = ''
def gen_gemm2(a):
    HB, BUF, ACC = 32, 104, 216
    a("s_lshl_b32 s8, s61, 2\ns_add_u32 s8, s8, s3")
    a("s_mul_i32 s9, s8, 18432")
    a("v_and_b32 v8, 15, v1\ns_lshl_b32 s10, s8, 4\nv_add_u32 v8, s10, v8\nv_and_b32 v9, 48, v1\nv_lshlrev_b32 v9, 4, v9\ns_movk_i32 s13, 18432\nv_mov_b32 v10, 0x80000000")
    for gam, sh in enumerate((-1, 1, -2, 2)):
        a(f"v_add_u32 v5, {sh}, v8\nv_cmp_gt_u32 vcc, {S}, v5\nv_lshrrev_b32 v6, 4, v5\nv_mad_u32_u24 v6, v6, s13, v9\nv_and_b32 v5, 15, v5\nv_lshl_add_u32 v6, v5, 4, v6")
        a(f"v_cndmask_b32 v{24+gam}, v10, v6, vcc")
    a(f"s_mov_b32 s14, {H_OFF}")
    hl = []
    for ks in range(18):
        pre = "s_add_u32 s14, s14, 4096\n" if ks and ks % 4 == 0 else ""
        g0, g1 = (2 * ks) // 9, (2 * ks + 1) // 9
        if g0 == g1: hl.append(pre + f"buffer_load_dwordx4 {v(HB+4*ks,4)}, v{24+g0}, s[56:59], s14 offen offset:{(ks%4)*1024}{HFL}")
        else: hl.append(pre + f"buffer_load_dwordx2 {v(HB+4*ks,2)}, v{24+g0}, s[56:59], s14 offen offset:{(ks%4)*1024}{HFL}\nbuffer_load_dwordx2 {v(HB+4*ks+2,2)}, v{24+g1}, s[56:59], s14 offen offset:{(ks%4)*1024+8}{HFL}")
    for x in hl: a(x)
    a.srd(44, P_Q, ACT)
    a("v_lshrrev_b32 v5, 2, v1\nv_and_b32 v6, 3, v1\nv_mul_u32_u24 v7, 1152, v5\nv_lshl_add_u32 v7, v6, 4, v7")
    a(f"s_mul_i32 s12, s3, 3072\ns_add_u32 s12, s12, {G2_XT}\ns_mov_b32 m0, s12\ns_lshl_b32 s10, s62, 6\ns_add_u32 s10, s10, s9")
    for p in range(3):
        if p: a("s_add_u32 m0, m0, 960\ns_nop 0")
        a(f"buffer_load_dwordx4 v7, s[44:47], s10 offen offset:{64*p} lds")
    a("v_and_b32 v8, 15, v1\nv_lshrrev_b32 v9, 4, v1\nv_lshlrev_b32 v10, 3, v8")
    a(f"s_lshl_b32 s10, s8, 7\ns_add_u32 s10, s10, {ST1_OFF}")
    a("buffer_load_dwordx2 v[18:19], v10, s[56:59], s10 offen")
    a(f"s_lshl_b32 s11, s62, 10\ns_add_u32 s11, s11, s9\ns_add_u32 s11, s11, {X1_OFF}")
    a(f"v_lshlrev_b32 v12, 6, v5\nv_and_b32 v13, 1, v9\nv_lshl_add_u32 v12, v13, 5, v12\nv_lshl_add_u32 v12, v6, 3, v12\nv_add_u32 v12, {G2_W}, v12")
    a("v_xor_b32 v13, 32, v12\nv_add_u32 v14, 49152, v12\nv_add_u32 v15, 49152, v13")
    a("v_and_b32 v11, 1, v1\nv_lshlrev_b32 v11, 6, v11\nv_lshl_add_u32 v11, v9, 4, v11")
    a("v_lshlrev_b32 v20, 6, v8\nv_lshl_add_u32 v20, v9, 3, v20\nv_add_u32 v20, s12, v20")
    a("v_mov_b32 v10, 0")
    a.stamp(1)
    a("s_cmp_eq_u32 s63, 3\ns_cbranch_scc1 G2_n3")
    for npair in (2, 3):
        nt = 1 + 2 * npair
        if npair == 3: a("G2_n3:")
        def reads(gi):
            b = BUF + 56 * (gi & 1)
            o = []
            for k2 in range(2):
                ks = 2 * gi + k2
                o.append(f"ds_read_b128 {v(b+28*k2,4)}, v11 offset:{G2_WM+128*ks}")
                for t in range(2 * npair):
                    for jh in range(2):
                        off = ((ks * 2 + jh) * npair + (t >> 1)) * 1024
                        ad = 12 + (t & 1)
                        if off >= 49152: off -= 49152; ad += 2
                        o.append(f"ds_read_b64_tr_b16 {v(b+28*k2+4+4*t+2*jh,2)}, v{ad} offset:{off}")
            return o
        for gi in range(10):
            rd = []
            if gi < 9:
                a("s_barrier")
                if gi == 0 and npair == 2: a.stamp(2)
                rd = reads(gi)
            if gi == 9:
                a("s_waitcnt vmcnt(0)")
                rd = [f"ds_read_b64 {v(BUF+56+2*t,2)}, v20 offset:{(t>>1)*1024+(t&1)*32}" for t in range(2 * npair)]
            if gi > 0:
                g = gi - 1
                if gi < 9: a(f"s_waitcnt vmcnt({22-2*gi+(2*gi <= 4)+(2*gi <= 13)})")
                b = BUF + 56 * (g & 1)
                for k2 in range(2):
                    for t in range(nt):
                        for _ in range(2):
                            if rd: a(rd.pop(0))
                        a.mfma(ACC + 4 * t, b + 28 * k2 + 4 * t, HB + 4 * (2 * g + k2), "0" if (g == 0 and k2 == 0) else None)
            for r in rd: a(r)
            a("s_waitcnt lgkmcnt(0)")
        XS = BUF + 56
        for e in range(4 * npair):
            a(f"v_lshlrev_b32 v{HB+2*e}, 16, v{XS+e}\nv_and_b32 v{HB+2*e+1}, 0xffff0000, v{XS+e}")
        a(f"v_add_f32 v9, v{ACC}, v{ACC+1}")
        a("v_sub_f32 v19, v19, v9")
        for p in range(npair):
            for e in range(8): a(f"v_fma_f32 v{HB+8*p+e}, v{HB+8*p+e}, v18, v19")
            for e in range(8): a(f"v_add_f32 v{HB+8*p+e}, v{HB+8*p+e}, v{ACC+4+8*p+e}")
            for e in range(4): a(f"v_cvt_pk_bf16_f32 v{BUF+4*p+e}, v{HB+8*p+2*e}, v{HB+8*p+2*e+1}")
            a(f"buffer_store_dwordx4 {v(BUF+4*p,4)}, v2, s[56:59], s11 offen offset:{p*1024} sc1")
        for e in range(8 * npair): a(f"v_fmac_f32 v10, v{HB+e}, v{HB+e}")
        if npair == 2: a("s_branch G2_j")
    a("G2_j:")
    gsum(a, 10, 11)
    a(f"s_lshl_b32 s10, s61, 3\ns_add_u32 s10, s10, s60\ns_lshl_b32 s10, s10, 8\ns_lshl_b32 s12, s3, 6\ns_add_u32 s10, s10, s12\ns_add_u32 s10, s10, {SS_OFF}")
    a(f"s_lshl_b32 s12, s8, 6\ns_add_u32 s12, s12, {MEAN_OFF}")
    a("s_mov_b64 exec, 0xffff")
    a("buffer_store_dword v10, v4, s[56:59], s10 offen sc1")
    a(f"s_cmp_lg_u32 s60, 0\ns_cbranch_scc1 G2_m")
    a("buffer_store_dword v9, v4, s[56:59], s12 offen sc1")
    a("G2_m:")
    a("s_mov_b64 exec, -1")

def gen_w2load(a):
    a.srd(44, P_W2, D * D * 2)
    a("v_lshrrev_b32 v5, 2, v1\nv_and_b32 v6, 3, v1\nv_mul_u32_u24 v7, 1152, v5")
    a("v_bfe_u32 v8, v1, 4, 1\nv_lshlrev_b32 v8, 1, v8\nv_xor_b32 v8, v8, v6\nv_lshl_add_u32 v7, v8, 4, v7")
    a("s_sub_u32 s12, s3, 4")
    a(f"s_min_u32 s8, s12, 2\ns_lshl_b32 s8, s8, 10\ns_mov_b32 m0, s8\ns_add_u32 s8, s8, {W2M_OFF}")
    a("buffer_load_dwordx4 v2, s[56:59], s8 offen lds")
    a(f"s_lshl_b32 s6, s63, 10\ns_mul_i32 s7, s12, s6\ns_add_u32 s7, s7, {G2_W}\ns_lshl_b32 s6, s6, 2")
    a("s_mul_i32 s9, s12, 18432\ns_lshl_b32 s10, s62, 6\ns_add_u32 s9, s9, s10")
    DEP = optval("G2DEP", 3)
    a(f"s_mov_b32 s14, {9+DEP}")
    def wait(n):
        l1 = a.lab("WA"); l2 = a.lab("WB")
        if n == 0: a("s_waitcnt vmcnt(0)")
        else: a(f"s_cmp_eq_u32 s63, 2\ns_cbranch_scc1 {l1}\ns_waitcnt vmcnt({3*n})\ns_branch {l2}\n{l1}:\ns_waitcnt vmcnt({2*n})\n{l2}:")
        a("s_barrier")
    a("W2_l:")
    a("s_cmp_gt_u32 s14, 9\ns_cbranch_scc1 W2_i")
    wait(DEP - 1)
    a("W2_i:")
    a("s_mov_b32 m0, s7\ns_add_u32 s7, s7, s6")
    a("buffer_load_dwordx4 v7, s[44:47], s9 offen lds")
    a("s_add_u32 m0, m0, 960\ns_cmp_eq_u32 s63, 2")
    a("buffer_load_dwordx4 v7, s[44:47], s9 offen offset:64 lds")
    a("s_cbranch_scc1 W2_a")
    a("s_add_u32 m0, m0, 960\ns_nop 0")
    a("buffer_load_dwordx4 v7, s[44:47], s9 offen offset:128 lds")
    a("W2_a:")
    a("s_add_u32 s9, s9, 73728")
    a(f"s_sub_u32 s14, s14, 1\ns_cmp_gt_u32 s14, {DEP}\ns_cbranch_scc1 W2_l")
    a("s_cmp_eq_u32 s55, 0\ns_cbranch_scc1 W2_t")
    gen_conv_load(a)
    for i in range(DEP): a(f"s_waitcnt vmcnt({10+2*(DEP-1-i)})\ns_barrier")
    a("s_branch KB_conv")
    a("W2_t:")
    for i in range(DEP): wait(DEP - 1 - i)

def gen_conv_load(a, fl=''):
    a.srd(48, P_SSMK, ACT)
    a(f"s_mul_i32 s54, s52, {KV_PITCH}\ns_add_u32 s54, s54, {KV_OFF}")
    a("s_lshl_b32 s10, s52, 12")
    a(f"s_mov_b32 m0, s53\ns_add_u32 s11, s54, 4")
    for i in range(4): a(f"buffer_load_dwordx4 v2, s[56:59], s54 offen offset:{i*1024}{fl} lds")
    a("s_mov_b64 exec, 7")
    a("s_add_u32 m0, s53, 4096\ns_nop 0")
    a(f"buffer_load_dwordx4 v3, s[56:59], s54 offen{fl} lds")
    a(f"s_add_u32 m0, s53, {2*4160+4096}\ns_nop 0")
    a(f"buffer_load_dwordx4 v3, s[56:59], s11 offen{fl} lds")
    a("s_mov_b64 exec, -1")
    a(f"s_add_u32 m0, s53, {4*4160+512}\ns_nop 0")
    for i in range(4): a(f"buffer_load_dwordx4 v2, s[48:51], s10 offen offset:{i*1024} nt lds")

def gen_conv(a, mid, fl='', gate=None):
    FA, FB, ACC = 96, 160, 224
    a("s_mov_b32 s6, s52\ns_mov_b32 s7, s53")
    a("s_lshl_b32 s8, s6, 1\ns_and_b32 s8, s8, 0xfffffffc")
    a(f"s_load_dword s15, {s(P_SSMD,2)}, s8")
    a(f"s_add_u32 m0, s7, {2*4160}")
    a("s_waitcnt vmcnt(6)")
    for i in range(4): a(f"buffer_load_dwordx4 v2, s[56:59], s11 offen offset:{i*1024}{fl} lds")
    a("v_lshlrev_b32 v5, 3, v1\nv_add_u32 v5, s7, v5\nv_mov_b32 v18, 0\nv_mov_b32 v19, 0")
    a(f"ds_write_b64 v5, v[18:19] offset:{4*4160}")
    a("v_and_b32 v6, 15, v1\nv_lshrrev_b32 v7, 4, v1")
    a("v_sub_u32 v8, 3, v6\nv_and_b32 v8, 3, v8\nv_mul_u32_u24 v8, 4160, v8")
    a("v_and_b32 v9, 12, v6\nv_lshlrev_b32 v9, 1, v9\nv_sub_u32 v8, v8, v9")
    a("v_lshlrev_b32 v9, 4, v7\nv_sub_u32 v8, v8, v9")
    a(f"v_add_u32 v8, {4104-3584}, v8\nv_add_u32 v8, s7, v8")
    a("v_lshlrev_b32 v10, 5, v6\nv_sub_u32 v10, v10, v9")
    a(f"v_add_u32 v10, {4*4160+512+16}, v10\nv_add_u32 v10, s7, v10")
    a("v_add_u32 v11, s7, v2")
    a("v_min_u32 v12, 16, v2\nv_add_u32 v12, s7, v12\nv_add_u32 v12, 4096, v12")
    for r in range(32): a(f"v_mov_b32 v{ACC+r}, 0")
    a.stamp(2)
    a("s_waitcnt vmcnt(0)")
    a.stamp(3)
    for c in range(5):
        ad, o = (11, c * 1024) if c < 4 else (12, 0)
        b = FA + 12 * c
        a(f"ds_read_b128 {v(b,4)}, v{ad} offset:{o}")
        a(f"ds_read_b128 {v(b+4,4)}, v{ad} offset:{o+2*4160}")
        a(f"ds_read_b64 {v(b+8,2)}, v{ad} offset:{o+16}")
    for c in range(5):
        ad, o = (11, c * 1024) if c < 4 else (12, 0)
        b = FA + 12 * c; d = FB + 8 * c
        a(f"s_waitcnt lgkmcnt({12-c})")
        for e in range(4): a(f"v_alignbit_b32 v{d+e}, v{b+4+e}, v{b+e}, 16")
        for e in range(4): a(f"v_alignbit_b32 v{d+4+e}, v{b+2+e if e < 2 else b+6+e}, v{b+4+e}, 16")
        a(f"ds_write_b128 v{ad}, {v(d,4)} offset:{o+4160}")
        a(f"ds_write_b128 v{ad}, {v(d+4,4)} offset:{o+3*4160}")
    a("s_waitcnt lgkmcnt(0)")
    def reads(st):
        o = []
        for m in range(8):
            o.append(f"ds_read_b128 {v(FB+32*st+4*m,4)}, v10 offset:{512*m}")
            o.append(f"ds_read_b64 {v(FA+32*st+4*m,2)}, v8 offset:{512*(7-m)}")
            o.append(f"ds_read_b64 {v(FA+32*st+4*m+2,2)}, v8 offset:{512*(7-m)+8}")
        return o
    for t in reads(0): a(t)
    order = sorted([(i, m) for i in range(8) for m in range(i + 1)], key=lambda im: (max(im[1], im[0] - im[1]), im[1], im[0]))
    def body(extra=None):
        for st in range(2):
            a("v_subrev_u32 v8, 64, v8\nv_subrev_u32 v10, 64, v10")
            a("s_waitcnt lgkmcnt(0)")
            rd = reads(1 - st)
            for n, (i, m) in enumerate(order):
                a.mfma(ACC + 4 * i, FA + 32 * st + 4 * m, FB + 32 * st + 4 * (i - m))
                if n < 24: a(rd[n])
                if extra and n % 4 == 3 and n < 32: extra()
    a(f"s_setprio {optval('CVP', 3)}")
    n1 = optval("CVMID", 1 if gate is None else 2)
    if gate == "none": n1 = 4
    a(f"s_mov_b32 s12, {n1}")
    a("CV_k:")
    body()
    a("s_sub_u32 s12, s12, 1\ns_cmp_lg_u32 s12, 0\ns_cbranch_scc1 CV_k")
    if n1 < 4:
        if gate: gate()
        body(mid)
    if n1 < 3:
        a(f"s_mov_b32 s12, {3-n1}")
        a("CV_l:")
        body()
        a("s_sub_u32 s12, s12, 1\ns_cmp_lg_u32 s12, 0\ns_cbranch_scc1 CV_l")
    a.stamp(4)
    a("s_waitcnt lgkmcnt(0)")
    a("v_lshlrev_b32 v11, 5, v6\nv_lshl_add_u32 v11, v7, 3, v11")
    a(f"v_sub_u32 v12, {4088-3584}, v11\nv_add_u32 v12, s7, v12")
    for i in range(8): a(f"ds_read_b64 {v(FA+2*i,2)}, v12 offset:{512*(7-i)}")
    a("s_lshl_b32 s13, s15, 16\ns_and_b32 s14, s15, 0xffff0000\ns_bitcmp1_b32 s6, 0\ns_cselect_b32 s13, s14, s13")
    a(f"s_add_u32 s10, s10, {Y_OFF}")
    a("s_waitcnt lgkmcnt(0)")
    for i in range(8):
        a(f"v_and_b32 v{FB}, 0xffff0000, v{FA+2*i+1}\nv_lshlrev_b32 v{FB+1}, 16, v{FA+2*i+1}")
        a(f"v_and_b32 v{FB+2}, 0xffff0000, v{FA+2*i}\nv_lshlrev_b32 v{FB+3}, 16, v{FA+2*i}")
        for r in range(4): a(f"v_fmac_f32 v{ACC+4*i+r}, s13, v{FB+r}")
        a(f"v_cvt_pk_bf16_f32 v{FB+8+2*i}, v{ACC+4*i}, v{ACC+4*i+1}\nv_cvt_pk_bf16_f32 v{FB+9+2*i}, v{ACC+4*i+2}, v{ACC+4*i+3}")
        a(f"buffer_store_dwordx2 {v(FB+8+2*i,2)}, v11, s[56:59], s10 offen offset:{512*i} sc1")

def fin_consts(a):
    a("s_lshr_b32 s61, s4, 1\ns_and_b32 s62, s4, 1")
    a("s_mul_i32 s52, s61, 9\ns_lshl_b32 s6, s62, 2\ns_add_u32 s52, s52, s6")
    a("s_cmp_lt_u32 s4, 4\ns_cselect_b32 s53, 12288, 0")
    a("s_mul_i32 s54, s5, 73728\ns_lshl_b32 s6, s52, 5\ns_add_u32 s55, s54, s6")

def stage_x(a):
    a.srd(12, P_Q, ACT)
    fin_consts(a)
    a("s_mul_i32 s6, s3, 18432\ns_add_u32 s7, s6, s53\ns_mov_b32 m0, s7\ns_add_u32 s6, s6, s55\ns_movk_i32 s8, 6554\ns_movk_i32 s9, 992")
    for i in range(3):
        a(f"v_add_u32 v5, {64*i}, v1\nv_min_u32 v5, 159, v5\nv_mul_lo_u32 v14, v5, s8\nv_lshrrev_b32 v14, 16, v14")
        a("v_lshlrev_b32 v5, 4, v5\nv_mad_u32_u24 v5, v14, s9, v5")
        a("buffer_load_dwordx4 v5, s[12:15], s6 offen nt lds")
        a("s_add_u32 m0, m0, 1024")

def stage_y(a, uniform=False):
    a(f"v_lshrrev_b32 v5, 3, v1\nv_and_b32 v14, 7, v1\nv_mul_u32_u24 v5, {KV_PITCH}, v5\nv_lshl_add_u32 v5, v14, 4, v5")
    a(f"s_mul_i32 s6, s52, {16*KV_PITCH}\ns_mul_i32 s7, s3, {8*KV_PITCH}\ns_add_u32 s6, s6, s7\ns_lshl_b32 s7, s5, 7\ns_add_u32 s6, s6, s7\ns_add_u32 s6, s6, {Y_OFF}")
    for i in range(3):
        if i == 2 and not uniform: a("s_cmp_ge_u32 s3, 2\ns_cbranch_scc1 FN_y")
        if i == 2 and uniform: a(f"s_sub_u32 s7, s6, {32*KV_PITCH}\ns_cmp_ge_u32 s3, 2\ns_cselect_b32 s6, s7, s6")
        a("buffer_load_dwordx4 v5, s[56:59], s6 offen sc1 lds")
        a(f"s_add_u32 m0, m0, 1024\ns_add_u32 s6, s6, {32*KV_PITCH}")
    a("FN_y:")

def gen_final(a):
    PR, YR, XR, X1R, RMR, AC, T = 32, 64, 68, 72, 76, 88, 96
    a.srd(48, P_OUT, ACT)
    a("s_sub_u32 s60, s3, 4")
    fin_consts(a)
    a("v_and_b32 v5, 15, v1\nv_lshrrev_b32 v6, 4, v1")
    a("v_mul_u32_u24 v7, 160, v5\nv_lshl_add_u32 v7, v6, 3, v7\nv_add_u32 v7, s53, v7")
    a("v_lshrrev_b32 v8, 1, v6\nv_mul_u32_u24 v8, 18432, v8\nv_bfe_u32 v9, v1, 2, 3\nv_lshl_add_u32 v8, v9, 7, v8")
    a("v_and_b32 v9, 3, v1\nv_lshl_add_u32 v8, v9, 3, v8\nv_add_u32 v8, s53, v8\nv_add_u32 v8, 3072, v8")
    a(f"v_lshlrev_b32 v11, 4, v5\nv_add_u32 v11, {RM}, v11")
    a("v_lshrrev_b32 v5, 5, v1\nv_bfe_u32 v6, v1, 1, 4\nv_and_b32 v9, 1, v1")
    a("v_mul_u32_u24 v18, 18432, v5\nv_lshl_add_u32 v18, v9, 4, v18\nv_mul_u32_u24 v19, 160, v6\nv_add3_u32 v19, v19, v18, s53")
    a("v_mul_u32_u24 v6, 1152, v6\nv_add_u32 v18, v18, v6")
    a.stamp(1)
    lists = {0: [[(4,0),(8,0),(3,2)], [(5,0),(0,1)], [(6,0),(1,1)], [(7,0),(2,2)]],
             1: [[(1,0),(5,0),(9,2)], [(2,0),(6,1)], [(3,0),(7,1)], [(4,0),(8,2)]]}
    def enc(l): return sum(((u | (c << 4) | 0x80) << (8 * i)) for i, (u, c) in enumerate(l))
    for q in range(4):
        a(f"s_cmp_eq_u32 s62, 0\ns_cselect_b32 s6, {enc(lists[0][q])}, {enc(lists[1][q])}" if False else
          f"s_mov_b32 s6, {enc(lists[0][q])}\ns_mov_b32 s7, {enc(lists[1][q])}\ns_cmp_eq_u32 s62, 0\ns_cselect_b32 s6, s6, s7")
        if q == 0: a("s_mov_b32 s68, s6")
        else: a(f"s_cmp_eq_u32 s60, {q}\ns_cselect_b32 s68, s6, s68")
    a("FN_l:")
    a("s_and_b32 s63, s68, 15\ns_lshr_b32 s6, s63, 1\ns_and_b32 s7, s63, 1")
    a("s_add_u32 s8, s6, s52")
    a("s_mul_i32 s9, s7, 36864")
    a("s_lshr_b32 s10, s8, 1\ns_lshl_b32 s10, s10, 10\ns_and_b32 s11, s8, 1\ns_lshl_b32 s11, s11, 3\ns_add_u32 s10, s10, s11\ns_add_u32 s10, s10, s9")
    a("v_add_u32 v12, s10, v2")
    a("s_lshl_b32 s10, s6, 5\ns_add_u32 s69, s10, s9")
    a("v_add_u32 v13, s69, v7\nv_add_u32 v20, s69, v19")
    a("s_lshl_b32 s10, s7, 9\nv_add_u32 v14, s10, v11")
    a("s_and_b32 s10, s6, 1\ns_mul_i32 s10, s10, 36864\ns_lshr_b32 s11, s6, 1\ns_lshl_b32 s11, s11, 10\ns_add_u32 s10, s10, s11\ns_lshl_b32 s11, s7, 6\ns_add_u32 s10, s10, s11")
    a("v_add_u32 v15, s10, v8")
    for mt in range(2):
        a(f"ds_read_b64 {v(X1R+2*mt,2)}, v12 offset:{18432*mt}")
        a(f"ds_read_b64 {v(XR+2*mt,2)}, v13 offset:{18432*mt}")
        a(f"ds_read_b128 {v(RMR+4*mt,4)}, v14 offset:{256*mt}")
        a(f"ds_read_b64_tr_b16 {v(YR+2*mt,2)}, v15 offset:{32*mt}")
    a("s_add_u32 s69, s69, s55")
    a(f"s_bfe_u32 s10, s68, 0x20004\ns_lshl_b32 s10, s10, 2\ns_add_u32 s10, s10, s61\ns_lshl_b32 s10, s10, 5\ns_mul_i32 s11, s5, {FB_STRIDE}\ns_add_u32 s10, s10, s11\ns_add_u32 s10, s10, {FP_OFF}")
    a(f"s_lshl_b32 s9, s8, 11\ns_lshl_b32 s11, s7, 10\ns_add_u32 s9, s9, s11\ns_add_u32 s9, s9, s54\ns_add_u32 s9, s9, {PART_OFF}")
    a("s_waitcnt lgkmcnt(0)")
    for e in range(4):
        r = RMR + 4 * (e >> 1)
        a(f"v_lshlrev_b32 v{T+16+2*e}, 16, v{XR+e}\nv_and_b32 v{T+17+2*e}, 0xffff0000, v{XR+e}")
        a(f"v_lshlrev_b32 v{T+8+2*e}, 16, v{X1R+e}\nv_and_b32 v{T+9+2*e}, 0xffff0000, v{X1R+e}")
        a(f"v_lshlrev_b32 v{T+24+2*e}, 16, v{YR+e}\nv_and_b32 v{T+25+2*e}, 0xffff0000, v{YR+e}")
        a(f"v_fma_f32 v{T}, v{T+16+2*e}, v{r+2}, v{r+3}\nv_fma_f32 v{T+1}, v{T+17+2*e}, v{r+2}, v{r+3}")
        a(f"v_add_f32 v{T+8+2*e}, v{T+8+2*e}, v{r+1}\nv_add_f32 v{T+9+2*e}, v{T+9+2*e}, v{r+1}")
        a(f"v_mul_f32 v{T+24+2*e}, v{T+24+2*e}, v{T}\nv_mul_f32 v{T+25+2*e}, v{T+25+2*e}, v{T+1}")
    a.spoll(8, 10, 16, 13, 2)
    if 'fine' in OPT: a.stamp(6)
    for fb in range(8):
        a(f"buffer_load_dwordx4 {v(PR+4*fb,4)}, v2, s[56:59], s9 offen sc1")
        if fb < 7: a(f"s_add_u32 s9, s9, {ACT}")
    for fb in range(8):
        a(f"s_waitcnt vmcnt({7-fb})")
        d = AC if fb == 0 else T
        for e in range(4):
            a(f"v_lshlrev_b32 v{d+2*e}, 16, v{PR+4*fb+e}\nv_and_b32 v{d+2*e+1}, 0xffff0000, v{PR+4*fb+e}")
        if fb:
            for e in range(8): a(f"v_add_f32 v{AC+e}, v{AC+e}, v{T+e}")
    for r in range(8): a(f"v_fma_f32 v{AC+r}, v{AC+r}, v{RMR+4*(r>>2)}, v{T+8+r}")
    for r in range(8): a(f"v_mul_f32 v{T+r}, {fh(-LOG2E)}, v{AC+r}")
    for r in range(8): a(f"v_exp_f32 v{T+r}, v{T+r}")
    for r in range(8): a(f"v_add_f32 v{T+r}, 1.0, v{T+r}")
    for r in range(8): a(f"v_rcp_f32 v{T+r}, v{T+r}")
    for r in range(8): a(f"v_mul_f32 v{AC+r}, v{AC+r}, v{T+24+r}")
    for r in range(8): a(f"v_fma_f32 v{AC+r}, v{AC+r}, v{T+r}, v{T+16+r}")
    for e in range(4): a(f"v_cvt_pk_bf16_f32 v{T+32+e}, v{AC+2*e}, v{AC+2*e+1}")
    for mt in range(2): a(f"ds_write_b64 v13, {v(T+32+2*mt,2)} offset:{18432*mt}")
    a(f"ds_read_b128 {v(T+36,4)}, v20")
    a("s_waitcnt lgkmcnt(0)")
    a(f"buffer_store_dwordx4 {v(T+36,4)}, v18, s[48:51], s69 offen")
    a("s_lshr_b32 s68, s68, 8\ns_cbranch_scc1 FN_l")

def touch(a, sbase, nlines, vdst, vtmp, fl=""):
    for i in range((nlines + 63) // 64):
        a(f"v_add_u32 v{vtmp}, {64*i}, v1\nv_min_u32 v{vtmp}, {nlines-1}, v{vtmp}\nv_lshlrev_b32 v{vtmp}, 7, v{vtmp}")
        a(f"buffer_load_dword v{vdst+i%4}, v{vtmp}, s[56:59], s{sbase} offen{fl}")

def paced(a, st, n, depth):
    for i in range(n):
        if i >= depth: a(f"s_waitcnt vmcnt({depth-1})")
        st.issue()

def gen_kb(a):
    a(".p2align 8\nkb_kernel:")
    a("s_cmp_ge_u32 s2, 256\ns_cbranch_scc1 KB_end")
    a.stamp_init()
    a.kernargs()
    a("v_lshrrev_b32 v2, 6, v0\nv_and_b32 v1, 63, v0")
    a("v_readfirstlane_b32 s3, v2")
    a(f"v_mov_b32 v{VC}, {CNT}\nv_mov_b32 v{V1}, 1\nv_mov_b32 v4, 0\nv_mov_b32 v5, 0\nv_mov_b32 v6, 0\nv_mov_b32 v7, 0")
    a(f"ds_write_b128 v{VC}, v[4:7]\nds_write_b128 v{VC}, v[4:7] offset:16\nds_write_b128 v{VC}, v[4:7] offset:32")
    a("s_and_b32 s4, s2, 7\ns_lshr_b32 s5, s2, 3")
    a("s_and_b32 s60, s5, 7\ns_and_b32 s61, s5, 24\ns_add_u32 s61, s61, s4")
    a("s_mov_b32 s96, s4\ns_mov_b32 s97, s5")
    if "tok" in OPT: a("s_mov_b32 s4, s60\ns_mov_b32 s5, s61")
    if "nf2" in OPT:
        a("s_and_b32 s4, s96, 3\ns_lshl_b32 s4, s4, 1\ns_and_b32 s7, s97, 1\ns_add_u32 s4, s4, s7\ns_lshr_b32 s5, s96, 2\ns_lshl_b32 s5, s5, 4\ns_lshr_b32 s7, s97, 1\ns_add_u32 s5, s5, s7")
    if "nf4" in OPT:
        a("s_and_b32 s4, s96, 1\ns_lshl_b32 s4, s4, 2\ns_and_b32 s7, s97, 3\ns_add_u32 s4, s4, s7\ns_lshr_b32 s5, s96, 1\ns_lshl_b32 s5, s5, 3\ns_lshr_b32 s7, s97, 2\ns_add_u32 s5, s5, s7")
    a("s_lshr_b32 s62, s60, 2\ns_lshl_b32 s7, s60, 1\ns_add_u32 s62, s62, s7")
    a("s_and_b32 s7, s60, 3\ns_cmp_eq_u32 s7, 3\ns_cselect_b32 s63, 3, 2")
    a("v_lshlrev_b32 v2, 4, v1\nv_add_u32 v3, 4096, v2\nv_lshlrev_b32 v4, 2, v1")
    a(f"s_mul_i32 s8, s4, {WSLICE}")
    a("s_mul_i32 s71, s3, 3")
    a(f"s_lshl_b32 s64, s71, 10\ns_add_u32 s64, s64, s8\ns_add_u32 s64, s64, {W3T_OFF}")
    a("s_add_u32 s65, s64, 24576")
    a("s_and_b32 s9, s3, 3\ns_mul_i32 s9, s9, 9\ns_lshr_b32 s10, s3, 2\ns_lshl_b32 s10, s10, 1\ns_add_u32 s9, s9, s10")
    a(f"s_lshl_b32 s66, s9, 10\ns_add_u32 s66, s66, s8\ns_add_u32 s66, s66, {W4T_OFF}")
    a(f"s_lshl_b32 s10, s4, 5\ns_add_u32 s10, s10, s5\ns_mul_i32 s67, s10, 73728\ns_lshl_b32 s9, s9, 11\ns_add_u32 s67, s67, s9\ns_add_u32 s67, s67, {PART_OFF}")
    NSH = 32 if not ({"nf2", "nf4", "tok"} & set(OPT)) else (16 if "nf2" in OPT else 8)
    TL = 5184 // NSH
    a(f"s_and_b32 s9, s5, {NSH-1}\ns_mul_i32 s9, s9, {TL*128}\ns_add_u32 s70, s8, s9")
    a(f"s_and_b32 s69, s3, 3\ns_lshl_b32 s69, s69, 3\ns_add_u32 s69, s69, s4\ns_lshl_b32 s69, s69, 2\ns_mul_i32 s10, s5, {FB_STRIDE}\ns_add_u32 s69, s69, s10\ns_add_u32 s69, s69, {FP_OFF}")
    a("s_waitcnt lgkmcnt(0)")
    a.srd(56, P_WS, WS_BYTES)
    a("s_cmp_ge_u32 s3, 4\ns_cbranch_scc1 KB_q")
    PP, QP, PB = optval("PP", 1), optval("QP", 2), optval("PB", 0)
    A3 = [(2, 0), (2, 1024), (2, 2048)]
    stP = Stream(a, [(64, A3, ""), (65, A3, ""), (66, [(2, 0), (3, 3072)], " sc1"), (68, [(2, 0), (3, 3072)], " sc1")])
    stQ = Stream(a, [(64, A3, ""), (66, [(2, 0), (2, 1024), (2, 2048), (2, 3072), (3, 0)], " sc1")])
    def addrs():
        a(f"v_mov_b32 v6, v2\nv_add_u32 v7, 36864, v2\nv_add_u32 v8, {ML_H}, v2\nv_add_u32 v9, {ML_H+36864}, v2")
        h_addr(a, 71, 10, 12)
    def rk():
        a(f"v_and_b32 v5, 15, v1\nv_lshlrev_b32 v5, 4, v5\nv_add_u32 v5, {RM}, v5")
        for m in range(4): a(f"ds_read_b32 v{GT+m}, v5 offset:{256*m}")
        a("s_waitcnt lgkmcnt(0)")
        for m in range(4):
            r = GT + m
            a(f"v_mul_f32 v{KC+2*m}, {fh(GC0)}, v{r}\nv_mul_f32 v{r}, v{r}, v{r}\nv_mul_f32 v{r}, {fh(0.044715)}, v{r}\nv_mul_f32 v{KC+2*m+1}, v{r}, v{KC+2*m}")
    cG2, cX1, cX2, cFX, cSide, cH1, cA, cH2, cW4 = 0, 4, 8, 12, 16, 20, 24, 28, 32
    fine = "fine" in OPT
    gen_gemm2(a)
    a.stamp(3)
    a(f"s_mul_i32 s6, s61, {FB_STRIDE}\ns_lshl_b32 s7, s60, 2\ns_add_u32 s6, s6, s7\ns_add_u32 s6, s6, {FX_OFF}")
    a("s_add_u32 s68, s66, 1024")
    a("s_waitcnt vmcnt(0)")
    a(f"s_mov_b64 exec, 1\nds_add_rtn_u32 v5, v{VC}, v{V1}\ns_mov_b64 exec, -1")
    a("s_waitcnt lgkmcnt(0)")
    a("v_readfirstlane_b32 s7, v5")
    a("s_cmp_lg_u32 s7, 3\ns_cbranch_scc1 KB_nosig")
    a.setflag("s6", 14)
    a("KB_nosig:")
    a.stamp(4)
    a.ldswait(VC, 5, 7, 4, cG2)
    PRE = optval("PPRE", NS)
    paced(a, stP, PRE, optval("PPACE", 8))
    addrs()
    a(f"s_mul_i32 s6, s5, {FB_STRIDE}\ns_add_u32 s6, s6, {FX_OFF}")
    a(f"s_mul_i32 s9, s3, 18432\ns_mov_b32 m0, s9\ns_mul_i32 s7, s5, 73728\ns_add_u32 s7, s7, s9\ns_add_u32 s7, s7, {X1_OFF}")
    a("s_cmp_lg_u32 s3, 0\ns_cbranch_scc1 KB_xw")
    a.spoll(8, 6, 44, 13, 1)
    a.ldsadd(VC, V1, cFX)
    a("s_branch KB_xg")
    a("KB_xw:")
    a.ldswait(VC, 5, 8, 1, cFX)
    a("KB_xg:")
    a.stamp(5)
    def xdma(i):
        if i and i % 4 == 0: a("s_add_u32 m0, m0, 4096\ns_add_u32 s7, s7, 4096")
        a(f"buffer_load_dwordx4 v2, s[56:59], s7 offen offset:{(i%4)*1024} sc1 lds")
        stP.other(f"x{i}")
    XP = optval("XP", 6)
    for i in range(XP): xdma(i)
    for i in range(NS - PRE): stP.issue()
    a(f"s_lshl_b32 s6, s5, 11\ns_add_u32 s6, s6, {SS_OFF}\ns_lshl_b32 s8, s5, 8\ns_add_u32 s8, s8, {MEAN_OFF}\ns_lshl_b32 s9, s5, 9\ns_add_u32 s9, s9, {ST1_OFF}")
    a("v_lshlrev_b32 v18, 3, v1")
    late = [(lambda i=i: xdma(i)) for i in range(XP, 18)]
    def stat(ins, tag="x"):
        a(ins); stP.other(tag)
    late += [(lambda i=i: stat(f"buffer_load_dword v{GT+i}, v4, s[56:59], s6 offen offset:{256*i} sc1")) for i in range(8)]
    late += [lambda: stat(f"buffer_load_dword v{GT+9}, v4, s[56:59], s8 offen sc1")]
    late += [lambda: stat(f"buffer_load_dwordx2 {v(GT+10,2)}, v18, s[56:59], s9 offen", "st")]
    XE = optval("XE", 4)
    for i in range(XE): late.pop(0)()
    a(f"s_waitcnt vmcnt({stP.younger(f'x{XP-1}')})")
    a.subbar(VC, 5, 10, 4, off=cX1)
    a.stamp(6)
    def xhook(ks, i):
        if i in (0, 4, 8, 10, 11, 3) and late: late.pop(0)()
    mphase(a, stP, 0, 6, 0, XP, prio=2, hook=xhook)
    assert not late
    a(f"s_waitcnt vmcnt({stP.younger('st')})")
    for i in range(1, 8): a(f"v_add_f32 v{GT}, v{GT}, v{GT+i}")
    a(f"v_mov_b32 v{GT+1}, {fh(1.0/D)}\nv_fmaak_f32 v{GT}, v{GT+1}, v{GT}, {fh(EPS)}")
    a(f"v_rsq_f32 v{GT+8}, v{GT}")
    a(f"v_add_u32 v5, {RM}, v2\ns_nop 0")
    a(f"ds_write_b128 v5, {v(GT+8,4)}")
    a.subbar(VC, 5, 7, 4, off=cX2)
    mphase(a, stP, 0, 6, XP, 18, first=False, prio=2)
    a.stamp(7)
    rk()
    a.ldswait(VC, 5, 7, 4, cSide, sleep=1)
    gphase(a, 10, 12)
    a.ldsadd(VC, V1, cH1)
    if fine: a.stamp(1)
    a("s_add_u32 s71, s71, 24")
    h_addr(a, 71, 10, 12)
    a.ldswait(VC, 5, 7, 1, cW4, sleep=1)
    mphase(a, stP, 1, 6, prio=1)
    a.ldsadd(VC, V1, cA)
    a.stamp(8)
    def sthook(i):
        if i == 1:
            a.ldswait(VC, 5, 7, 4, cA, sleep=1)
            a.ldswait(VC, 5, 7, 8, cH1, sleep=1)
            stage_x(a)
            stage_y(a)
    gphase(a, 10, 12, sthook)
    if fine: a.stamp(3)
    a("s_waitcnt vmcnt(0)")
    a.subbar(VC, 5, 7, 4, off=cH2)
    a.stamp(9)
    mphase(a, stP, 2, 8)
    if fine: a.stamp(4)
    a("s_add_u32 s6, s67, 14336\ns_add_u32 s7, s69, 128")
    pend = []
    for k, (t, mp) in enumerate([(0, 0), (0, 1), (1, 0), (1, 1)]):
        pend += pstore(a, MACC, t, mp, 67 if t == 0 else 6, mp * 1024, k)
    state = {"flag": False}
    def hook(ks, i):
        if (ks >= 1 or i >= 3) and i not in (1, 5) and pend:
            ins = pend.pop(0); a(ins)
            if ins.startswith("buffer"): stP.other("e" if not pend else "x")
        if not pend and not state["flag"] and ks == optval("EFLAG", 16) and i == 0:
            a(f"s_waitcnt vmcnt({stP.younger('e')})")
            a.setflag("s7", 14); stP.other()
            state["flag"] = True
    mphase(a, stP, 3, 8, acc=MACC + 32, hook=hook)
    assert state["flag"]
    a.stamp(10)
    a("s_setprio 3")
    a.nop(8)
    for k, (t, mp) in enumerate([(0, 0), (0, 1), (1, 0), (1, 1)]):
        for ins in pstore(a, MACC + 32, t, mp, 67 if t == 0 else 6, 2048 + mp * 1024, k): a(ins)
    a("s_add_u32 s7, s69, 256")
    a("s_waitcnt vmcnt(0)")
    a.setflag("s7", 14)
    a.end()
    a("KB_q:")
    a("s_lshr_b32 s6, s60, 2\ns_sub_u32 s6, s60, s6\ns_mul_i32 s7, s61, 6\ns_add_u32 s6, s6, s7\ns_mul_i32 s6, s6, 3")
    a("s_sub_u32 s7, s3, 4\ns_add_u32 s52, s6, s7")
    a(f"s_mul_i32 s7, s7, {CV_SZ}\ns_add_u32 s53, s7, {CV}")
    a("s_cmp_eq_u32 s3, 7\ns_cselect_b32 s55, 0, 1\ns_cmp_eq_u32 s63, 3\ns_cselect_b32 s55, 0, s55")
    gen_w2load(a)
    a("s_cmp_eq_u32 s3, 7\ns_cbranch_scc1 KB_w7")
    a("s_branch KB_nc")
    a("KB_conv:")
    gen_conv(a, stQ.issue)
    assert stQ.issued == 16
    a(f"s_lshr_b32 s6, s6, 4\ns_mul_i32 s6, s6, 57\ns_lshr_b32 s6, s6, 9\ns_mul_i32 s6, s6, {FB_STRIDE}\ns_add_u32 s6, s6, {FY_OFF}")
    a.ldsadd(VC, V1, cSide)
    a("s_waitcnt vmcnt(0)")
    a.addflag("s6", 14)
    a("s_setprio 0")
    a.stamp(5)
    a("s_branch KB_q3")
    a("KB_w7:")
    a(f"s_mov_b32 s12, s97\ns_mov_b32 s9, {PT7}")
    a("s_branch KB_q2")
    a("KB_nc:")
    a("s_lshr_b32 s12, s97, 2\ns_mul_i32 s12, s12, 3\ns_add_u32 s12, s12, s3\ns_add_u32 s12, s12, 28")
    a(f"s_lshl_b32 s9, s3, 12\ns_add_u32 s9, s9, {CV+36864-4*4096}")
    a("KB_q2:")
    a("s_cmp_ge_u32 s12, 54\ns_cbranch_scc1 KB_q2b")
    W4W = optval("W4W", cG2)
    if W4W >= 0: a.ldswait(VC, 5, 7, 4, W4W, sleep=2)
    a.stamp(2)
    a("s_setprio 3")
    a.srd(44, P_W4, D * F * 2)
    a(f"s_mul_i32 s15, s96, {WSLICE}\ns_add_u32 s8, s15, {W4T_OFF}")
    a("s_mul_i32 s13, s12, 86\ns_lshr_b32 s13, s13, 8\ns_mul_i32 s14, s13, 3\ns_sub_u32 s14, s12, s14")
    a("s_mul_i32 s6, s13, 36864\ns_mul_i32 s14, s14, 384\ns_add_u32 s6, s6, s14\ns_add_u32 s6, s6, s15")
    a("s_movk_i32 s7, 1152\ns_mul_i32 s13, s12, 12288\ns_add_u32 s8, s8, s13")
    gen_pretile(a, 128)
    a(f"s_mul_i32 s6, s96, {FB_STRIDE}\ns_add_u32 s6, s6, {FW4_OFF}")
    a("s_waitcnt vmcnt(0)")
    a.addflag("s6", 14)
    a("s_setprio 0")
    a("KB_q2b:")
    a.stamp(5)
    stQ2 = Stream(a, stQ.segs)
    paced(a, stQ2, 16, 4)
    a("s_waitcnt vmcnt(0)")
    a.ldsadd(VC, V1, cSide)
    a("KB_q3:")
    stQ.other()
    for i in range(NS - 16): stQ.issue()
    addrs()
    a.ldswait(VC, 5, 7, 4, cX2, sleep=1)
    rk()
    a.stamp(7)
    kw = 18 - (NS + 2) // 3
    mphase(a, stQ, 0, 6, 0, kw, prio=2)
    a("s_cmp_lg_u32 s3, 7\ns_cbranch_scc1 KB_q2c")
    a(f"s_mul_i32 s6, s4, {FB_STRIDE}\ns_add_u32 s6, s6, {FW4_OFF}")
    a.cpoll(6, 54, 44, 13, 4)
    a.ldsadd(VC, V1, cW4)
    a("KB_q2c:")
    a.ldswait(VC, 5, 7, 1, cW4)
    mphase(a, stQ, 0, 6, kw, 18, first=False, prio=2)
    a.ldswait(VC, 5, 7, 4, cSide)
    if fine: a.stamp(2)
    a(f"s_lshr_b32 s8, s4, 1\ns_mul_i32 s8, s8, {FB_STRIDE}\ns_add_u32 s8, s8, {FY_OFF}")
    def yhook(i):
        if i == 3:
            a("s_cmp_lg_u32 s3, 7\ns_cbranch_scc1 KB_ys")
            a.vpoll(8, 144, 14, 13)
            a("KB_ys:")
    gphase(a, 10, 12, yhook)
    if fine: a.stamp(3)
    a.subbar(VC, 5, 7, 8, off=cH1)
    a.stamp(8)
    mphase(a, stQ, 1, 8, 0, 12, prio=1)
    if fine: a.stamp(4)
    a.ldswait(VC, 5, 7, 4, cH2, sleep=1)
    a.stamp(9)
    mphase(a, stQ, 1, 8, 12, 18, first=False, prio=1)
    a(f"s_setprio {optval('QT', 1)}")
    a.stamp(10)
    a.nop(8)
    QS = optval("QS", 10)
    for k in range(10):
        if k and k % 4 == 0: a("s_add_u32 s67, s67, 4096")
        ins = pstore(a, MACC, k >> 1, k & 1, 67, (k % 4) * 1024, k)
        for x in ins[:4]: a(x)
        if k >= QS: a(f"s_waitcnt vmcnt({QS-1})")
        a(ins[4])
    a("s_waitcnt vmcnt(0)")
    a.setflag("s69", 14)
    a(f"s_setprio {optval('QF', 0)}")
    gen_final(a)
    a.end()
    a("KB_end:")
    a("s_endpgm")
```

```python
from common import *
import g1b as g1
import kb4
from kb4 import Stream, mphase, gphase, h_addr, pstore, stage_x, stage_y, gen_final, gen_conv_load, paced, NS, RING, BF, MACC, KC, GT, ML_H, VC, V1

G2_WM, G2_XT, G2_W = 0, 2560, 14848
SCR = G2_W + 110592
CV, CV_SZ = 92160, 21248
CNT = 158656 - 64
RM = CNT + 128
PT7 = RM + 1024
KM_LDS = PT7 + 4096
kb4.RM = RM
cG2, cX1, cX2, cFX, cSide, cH1, cA, cH2, cW4, cG1, cP1, cFH, cU, cW2, cW3, cHs = [4 * i for i in range(16)]
cW3a = cHs + 4
cKV = cHs + 8
cHl = cHs + 12

def gen_kv(a):
    KR, VR, SH, SP, KU, RES, PK, OUT = 32, 76, 108, 124, 132, 156, 172, 188
    a("s_mul_i32 s7, s6, 7282\ns_lshr_b32 s7, s7, 16")
    a("s_mul_i32 s8, s7, 9\ns_sub_u32 s8, s6, s8")
    a("v_and_b32 v2, 7, v1\nv_lshrrev_b32 v3, 3, v1")
    a("s_lshl_b32 s9, s7, 6")
    a("v_lshl_add_u32 v4, v3, 3, s9")
    a("v_mul_u32_u24 v5, 1152, v4")
    a("s_lshl_b32 s10, s8, 7")
    a("v_lshl_add_u32 v5, v2, 4, v5\nv_add_u32 v5, s10, v5")
    a("v_subrev_u32 v6, 3456, v5")
    a("v_cmp_eq_u32 vcc, 0, v4")
    a("v_mov_b32 v7, 0x80000000\ns_lshl_b32 s11, s8, 9")
    a("v_cndmask_b32 v6, v6, v7, vcc")
    a("v_lshlrev_b32 v7, 6, v2")
    a("s_movk_i32 s12, 4608")
    a.srd(44, P_K, ACT)
    a.srd(48, P_V, ACT)
    a.srd(52, P_SHK, D * 8)
    for i in range(4):
        a(f"buffer_load_dwordx4 {v(SH+4*i,4)}, v7, s[52:55], s11 offen offset:{16*i}")
    for j in range(8):
        so = "0" if j < 4 else "s12"
        a(f"buffer_load_dwordx4 {v(KR+12+4*j,4)}, v5, s[44:47], {so} offen offset:{1152*(j&3)}" + (" nt" if (j < 5 or "kpl" not in OPT) else ""))
    HX = "nohx" not in OPT
    if HX: a("s_mov_b64 exec, 0xff")
    for j in range(3):
        a(f"buffer_load_dwordx4 {v(KR+4*j,4)}, v6, s[44:47], 0 offen offset:{1152*j}" + (" nt" if "kpl" not in OPT else ""))
    if HX: a("s_mov_b64 exec, -1\nv_lshlrev_b32 v18, 2, v1\nv_subrev_u32 v18, 32, v18")
    if optval("KVP", 0): a(f"s_waitcnt vmcnt({optval('KVP', 0)})")
    for j in range(8):
        so = "0" if j < 4 else "s12"
        a(f"buffer_load_dwordx4 {v(VR+4*j,4)}, v5, s[48:51], {so} offen offset:{1152*(j&3)} nt")
    a("v_sub_u32 v8, 7, v3\nv_xor_b32 v8, v8, v2\nv_lshlrev_b32 v8, 4, v8\nv_lshl_add_u32 v8, v2, 9, v8\nv_add_u32 v8, s13, v8")
    a("v_lshrrev_b32 v11, 5, v1\nv_xor_b32 v9, v11, v1\nv_lshlrev_b32 v9, 4, v9")
    a(f"v_and_b32 v10, 3, v3\nv_lshl_add_u32 v10, v11, 3, v10\nv_mul_u32_u24 v10, {KV_PITCH}, v10\nv_lshl_add_u32 v10, v2, 4, v10")
    a(f"s_mul_i32 s14, s8, {64*KV_PITCH}\ns_lshl_b32 s15, s7, 7\ns_sub_u32 s14, s14, s15\ns_add_u32 s14, s14, {KV_OFF+3968}")
    for i in range(4): a(f"v_xor_b32 v{12+i}, {32*i}, v9\nv_add_u32 v{12+i}, s13, v{12+i}")
    a.stamp(2)
    for q in range(4):
        if q == 0:
            a("s_waitcnt vmcnt(8)")
            if HX:
                for r in range(12): a(f"ds_bpermute_b32 v{RES+r}, v18, v{KR+32+r}")
                a("s_mov_b32 exec_lo, 0xffffff00\ns_waitcnt lgkmcnt(0)")
                for r in range(12): a(f"v_mov_b32 v{KR+r}, v{RES+r}")
                a("s_mov_b64 exec, -1")
        for d in range(4):
            for h in range(2):
                src = SH + 4 * q + 2 * h + (d >> 1)
                if d & 1: a(f"v_and_b32 v{SP+2*d+h}, 0xffff0000, v{src}")
                else: a(f"v_lshlrev_b32 v{SP+2*d+h}, 16, v{src}")
        for j in range(11):
            a(f"v_lshlrev_b32 v{KU+2*j}, 16, v{KR+4*j+q}")
            a(f"v_and_b32 v{KU+2*j+1}, 0xffff0000, v{KR+4*j+q}")
        for j in range(8):
            a(f"v_pk_mul_f32 {v(RES+2*j,2)}, {v(KU+2*(j+3),2)}, {v(SP,2)}")
        for d in range(1, 4):
            for j in range(8):
                a(f"v_pk_fma_f32 {v(RES+2*j,2)}, {v(KU+2*(j+3-d),2)}, {v(SP+2*d,2)}, {v(RES+2*j,2)}")
        if q == 0:
            a("s_waitcnt vmcnt(0)")
            a.ldsadd(VC, V1, cG1)
        for j in range(8):
            a(f"v_lshlrev_b32 v{KU+2*j}, 16, v{VR+4*j+q}")
            a(f"v_and_b32 v{KU+2*j+1}, 0xffff0000, v{VR+4*j+q}")
        for j in range(8):
            a(f"v_pk_mul_f32 {v(RES+2*j,2)}, {v(RES+2*j,2)}, {v(KU+2*j,2)}")
        p = PK + 8 * (q & 1)
        for h in range(2):
            for e in range(4):
                a(f"v_cvt_pk_bf16_f32 v{p+4*h+e}, v{RES+2*(7-2*e)+h}, v{RES+2*(6-2*e)+h}")
            a(f"ds_write_b128 v8, {v(p+4*h,4)} offset:{(2*(q&1)+h)*128}")
        if q & 1:
            o = OUT + 16 * (q >> 1)
            for i in range(4): a(f"ds_read_b128 {v(o+4*i,4)}, v{12+i} offset:{1024*i}")
            a(f"s_add_u32 s15, s14, {4*(q>>1)*KV_PITCH}")
            for i in range(4):
                a(f"s_waitcnt lgkmcnt({3-i})")
                a(f"buffer_store_dwordx4 {v(o+4*i,4)}, v10, s[56:59], s15 offen sc1")
                a(f"s_add_u32 s15, s15, {16*KV_PITCH}")
    a("s_cmp_lg_u32 s7, 0\ns_cbranch_scc1 KV_z")
    for r in range(4): a(f"v_mov_b32 v{KU+r}, 0")
    for i in range(8):
        a(f"buffer_store_dwordx4 {v(KU,4)}, v10, s[56:59], s14 offen offset:128 sc1")
        a(f"s_add_u32 s14, s14, {(4 if i % 2 == 0 else 12)*KV_PITCH}")
    a("KV_z:")
    a(f"s_mul_i32 s9, s8, 86\ns_lshr_b32 s9, s9, 8\ns_mul_i32 s10, s9, {FB_STRIDE-384}\ns_lshl_b32 s6, s8, 7\ns_add_u32 s6, s6, s10\ns_add_u32 s6, s6, {FKV_OFF}\ns_mov_b32 s100, 32")

def gen_meantile(a):
    R = 32
    a("v_lshrrev_b32 v2, 2, v1\nv_and_b32 v3, 3, v1")
    a("v_mul_u32_u24 v4, 1152, v2\nv_lshl_add_u32 v4, v3, 4, v4")
    a("s_mul_i32 s7, s6, 36864\ns_add_u32 s8, s7, 18432")
    a.srd(44, P_W2, D * D * 2)
    for jh in range(2):
        for i in range(18):
            a(f"buffer_load_dwordx4 {v(R+72*jh+4*i,4)}, v4, s[44:47], s{7+jh} offen offset:{64*i}")
    a("v_mov_b32 v8, 0x3f803f80")
    for r in range(4): a(f"v_mov_b32 v{20+r}, 0")
    a("v_lshrrev_b32 v5, 2, v2\nv_and_b32 v6, 3, v2\nv_lshlrev_b32 v5, 4, v5\nv_lshl_add_u32 v5, v6, 1, v5\nv_add_u32 v5, s13, v5")
    a("v_lshlrev_b32 v6, 4, v1\nv_add_u32 v7, s13, v6")
    for jh in range(2):
        if jh == 0: a("s_waitcnt vmcnt(18)")
        else: a.zcheck(14, 9, True)
        for r in range(72): a(f"v_dot2c_f32_bf16 v{20+2*jh+(r&1)}, v{R+72*jh+r}, v8")
    a("s_nop 2\nv_add_f32 v20, v20, v21\nv_add_f32 v22, v22, v23\ns_nop 1")
    for qp in ("[1,0,3,2]", "[2,3,0,1]"):
        a(f"v_add_f32_dpp v20, v20, v20 quad_perm:{qp} row_mask:0xf bank_mask:0xf")
        a(f"v_add_f32_dpp v22, v22, v22 quad_perm:{qp} row_mask:0xf bank_mask:0xf")
        a("s_nop 1")
    a(f"v_mul_f32 v20, {fh(1.0/D)}, v20\nv_mul_f32 v22, {fh(1.0/D)}, v22")
    a("v_cvt_pk_bf16_f32 v24, v20, v22\nv_or_b32 v24, 0x10001, v24")
    a("v_lshlrev_b32 v21, 16, v24\nv_and_b32 v23, 0xffff0000, v24\nv_sub_f32 v20, v20, v21\nv_sub_f32 v22, v22, v23")
    a("v_cvt_pk_bf16_f32 v25, v20, v22\nv_or_b32 v25, 0x10001, v25")
    a("ds_write_b16 v5, v24\nds_write_b16_d16_hi v5, v24 offset:8\nds_write_b16 v5, v25 offset:64\nds_write_b16_d16_hi v5, v25 offset:72")
    a("ds_read_b128 v[20:23], v7")
    a(f"s_lshl_b32 s7, s6, 7\ns_add_u32 s7, s7, {W2M_OFF}")
    a("s_waitcnt lgkmcnt(0)\ns_mov_b64 exec, 0xff")
    a("buffer_store_dwordx4 v[20:23], v6, s[56:59], s7 offen sc1")
    a("s_mov_b64 exec, -1")

def job_setup(a, lab):
    a(f"s_mul_i32 s15, s96, {WSLICE}\ns_mul_i32 s98, s96, {FB_STRIDE}")
    a(f"s_cmp_ge_u32 s12, 54\ns_cbranch_scc1 {lab}_4")
    a.srd(44, P_W3, D * F * 2)
    a("s_mul_i32 s14, s12, 57\ns_lshr_b32 s14, s14, 10\ns_mul_i32 s13, s14, 18\ns_sub_u32 s13, s12, s13")
    a("s_mul_i32 s6, s13, 294912\ns_mul_i32 s7, s96, 1152\ns_add_u32 s6, s6, s7\ns_movk_i32 s7, 9216")
    a(f"s_add_u32 s8, s15, {W3T_OFF}\ns_add_u32 s15, s14, 1\ns_mov_b32 s100, 18\ns_lshl_b32 s15, s15, 7\ns_add_u32 s98, s98, s15")
    a(f"s_branch {lab}_j")
    a(f"{lab}_4:")
    a.srd(44, P_W4, D * F * 2)
    a("s_sub_u32 s6, s12, 54\ns_mul_i32 s13, s6, 86\ns_lshr_b32 s13, s13, 8\ns_mul_i32 s14, s13, 3\ns_sub_u32 s14, s6, s14")
    a(f"s_mul_i32 s6, s13, 36864\ns_add_u32 s6, s6, s15\ns_movk_i32 s7, 1152\ns_mov_b32 s100, 54\ns_add_u32 s8, s15, {W4T_OFF}")
    a(f"{lab}_j:")
    a(f"s_mul_i32 s15, s14, 384\ns_add_u32 s6, s6, s15\ns_mul_i32 s15, s13, 36864\ns_add_u32 s8, s8, s15\ns_mul_i32 s15, s14, 12288\ns_add_u32 s8, s8, s15\ns_add_u32 s98, s98, {FW4_OFF}")

def consts(a):
    a("s_and_b32 s60, s97, 7\ns_and_b32 s61, s97, 24\ns_add_u32 s61, s61, s96")
    if "nf1" in OPT: a("s_mov_b32 s4, s96\ns_mov_b32 s5, s97")
    elif "tok" in OPT: a("s_mov_b32 s4, s60\ns_mov_b32 s5, s61")
    elif "nf2" in OPT:
        a("s_and_b32 s4, s96, 3\ns_lshl_b32 s4, s4, 1\ns_and_b32 s7, s97, 1\ns_add_u32 s4, s4, s7\ns_lshr_b32 s5, s96, 2\ns_lshl_b32 s5, s5, 4\ns_lshr_b32 s7, s97, 1\ns_add_u32 s5, s5, s7")
    else:
        a("s_and_b32 s4, s96, 1\ns_lshl_b32 s4, s4, 2\ns_and_b32 s7, s97, 3\ns_add_u32 s4, s4, s7\ns_lshr_b32 s5, s96, 1\ns_lshl_b32 s5, s5, 3\ns_lshr_b32 s7, s97, 2\ns_add_u32 s5, s5, s7")
    a("s_lshr_b32 s62, s60, 2\ns_lshl_b32 s7, s60, 1\ns_add_u32 s62, s62, s7")
    a("s_and_b32 s7, s60, 3\ns_cmp_eq_u32 s7, 3\ns_cselect_b32 s63, 3, 2")
    a("v_lshlrev_b32 v2, 4, v1\nv_add_u32 v3, 4096, v2\nv_lshlrev_b32 v4, 2, v1")

def consts2(a):
    a(f"s_mul_i32 s8, s4, {WSLICE}")
    a("s_mul_i32 s71, s3, 3")
    a(f"s_lshl_b32 s64, s71, 10\ns_add_u32 s64, s64, s8\ns_add_u32 s64, s64, {W3T_OFF}")
    a("s_add_u32 s65, s64, 24576")
    a("s_and_b32 s9, s3, 3\ns_mul_i32 s9, s9, 9\ns_lshr_b32 s10, s3, 2\ns_lshl_b32 s10, s10, 1\ns_add_u32 s9, s9, s10")
    a(f"s_lshl_b32 s66, s9, 10\ns_add_u32 s66, s66, s8\ns_add_u32 s66, s66, {W4T_OFF}\ns_add_u32 s68, s66, 1024")
    a(f"s_lshl_b32 s10, s4, 5\ns_add_u32 s10, s10, s5\ns_mul_i32 s67, s10, 73728\ns_lshl_b32 s9, s9, 11\ns_add_u32 s67, s67, s9\ns_add_u32 s67, s67, {PART_OFF}")
    a(f"s_and_b32 s69, s3, 3\ns_lshl_b32 s69, s69, 3\ns_add_u32 s69, s69, s4\ns_lshl_b32 s69, s69, 2\ns_mul_i32 s10, s5, {FB_STRIDE}\ns_add_u32 s69, s69, s10\ns_add_u32 s69, s69, {FP_OFF}")
    a(f"s_mul_i32 s70, s4, {FB_STRIDE}\ns_add_u32 s70, s70, {FW4_OFF}")

def gen_gemm2(a):
    HB, BUF, ACC = 32, 104, 216
    a("s_lshl_b32 s8, s61, 2\ns_add_u32 s8, s8, s3")
    a("s_mul_i32 s9, s8, 18432")
    a.srd(44, P_Q, ACT)
    a("v_lshrrev_b32 v5, 2, v1\nv_and_b32 v6, 3, v1\nv_mul_u32_u24 v7, 1152, v5\nv_lshl_add_u32 v7, v6, 4, v7")
    a(f"s_mul_i32 s12, s3, 3072\ns_add_u32 s12, s12, {G2_XT}\ns_mov_b32 m0, s12\ns_lshl_b32 s10, s62, 6\ns_add_u32 s10, s10, s9")
    for p in range(3):
        if p: a("s_add_u32 m0, m0, 960\ns_nop 0")
        a(f"buffer_load_dwordx4 v7, s[44:47], s10 offen offset:{64*p} lds")
    a(f"v_lshrrev_b32 v9, 4, v1\nv_lshlrev_b32 v12, 6, v5\nv_and_b32 v13, 1, v9\nv_lshl_add_u32 v12, v13, 5, v12\nv_lshl_add_u32 v12, v6, 3, v12\nv_add_u32 v12, {G2_W}, v12")
    a("v_xor_b32 v13, 32, v12\nv_add_u32 v22, 49152, v12\nv_add_u32 v23, 49152, v13")
    a("v_and_b32 v11, 1, v1\nv_lshlrev_b32 v11, 6, v11\nv_lshl_add_u32 v11, v9, 4, v11")
    a("v_and_b32 v8, 15, v1\nv_lshlrev_b32 v21, 3, v8\nv_lshlrev_b32 v20, 6, v8\nv_lshl_add_u32 v20, v9, 3, v20\nv_add_u32 v20, s12, v20")
    a("s_lshl_b32 s10, s8, 4\nv_add_u32 v8, s10, v8\nv_lshlrev_b32 v9, 8, v9\ns_movk_i32 s13, 18432\nv_mov_b32 v10, 0x80000000")
    for gam, sh in enumerate((-1, 1, -2, 2)):
        a(f"v_add_u32 v5, {sh}, v8\nv_cmp_gt_u32 vcc, {S}, v5\nv_lshrrev_b32 v6, 4, v5\nv_mad_u32_u24 v6, v6, s13, v9\nv_and_b32 v5, 15, v5\nv_lshl_add_u32 v6, v5, 4, v6")
        a(f"v_cndmask_b32 v{24+gam}, v10, v6, vcc")
    a(f"s_lshl_b32 s11, s62, 10\ns_add_u32 s11, s11, s9\ns_add_u32 s11, s11, {X1_OFF}")
    a(f"s_lshl_b32 s10, s8, 7\ns_add_u32 s10, s10, {ST1_OFF}\ns_mov_b32 s14, {H_OFF}\nv_mov_b32 v10, 0")
    a("s_cmp_lg_u32 s3, 0\ns_cbranch_scc1 G2_hw")
    a(f"s_mul_i32 s6, s61, {FB_STRIDE}\ns_add_u32 s6, s6, {FH_OFF}\ns_sub_u32 s7, s6, {FB_STRIDE}\ns_cmp_eq_u32 s61, 0\ns_cselect_b32 s7, s6, s7\ns_add_u32 s12, s6, {FB_STRIDE}\ns_cmp_eq_u32 s61, 31\ns_cselect_b32 s12, s6, s12")
    a("s_mov_b32 s13, 0x40000")
    a("G2_hp:")
    for r, o in ((48, 6), (49, 7), (50, 12)): a(f"s_load_dword s{r}, {s(P_WS,2)}, s{o} glc")
    a("s_waitcnt lgkmcnt(0)")
    a("s_min_u32 s48, s48, s49\ns_min_u32 s48, s48, s50\ns_cmp_ge_u32 s48, 6\ns_cbranch_scc1 G2_hd")
    a("s_sleep 1\ns_sub_u32 s13, s13, 1\ns_cbranch_scc0 G2_hp")
    a("G2_hd:")
    a.ldsadd(VC, V1, cFH)
    a("s_branch G2_hg")
    a("G2_hw:")
    a.ldswait(VC, 5, 7, 1, cFH)
    a(f"s_cmp_lg_u32 s3, 1\ns_cbranch_scc1 G2_hg\ns_add_u32 s6, s70, 128\ns_load_dword s48, {s(P_WS,2)}, s6 glc")
    a("G2_hg:")
    a.stamp(6)
    for ks in range(18):
        if ks and ks % 4 == 0: a("s_add_u32 s14, s14, 4096")
        g0, g1_ = (2 * ks) // 9, (2 * ks + 1) // 9
        if g0 == g1_: a(f"buffer_load_dwordx4 {v(HB+4*ks,4)}, v{24+g0}, s[56:59], s14 offen offset:{(ks%4)*1024} sc1")
        else:
            a(f"buffer_load_dwordx2 {v(HB+4*ks,2)}, v{24+g0}, s[56:59], s14 offen offset:{(ks%4)*1024} sc1")
            a(f"buffer_load_dwordx2 {v(HB+4*ks+2,2)}, v{24+g1_}, s[56:59], s14 offen offset:{(ks%4)*1024+8} sc1")
    a("buffer_load_dwordx2 v[18:19], v21, s[56:59], s10 offen sc1")
    a.ldswait(VC, 5, 7, 13, cW2)
    a.stamp(7)
    a("s_cmp_eq_u32 s63, 3\ns_cbranch_scc1 G2_n3")
    for npair in (2, 3):
        nt = 1 + 2 * npair
        if npair == 3: a("G2_n3:")
        def reads(gi):
            b = BUF + 56 * (gi & 1)
            o = []
            for k2 in range(2):
                ks = 2 * gi + k2
                o.append(f"ds_read_b128 {v(b+28*k2,4)}, v11 offset:{G2_WM+128*ks}")
                for t in range(2 * npair):
                    for jh in range(2):
                        off = ((ks * 2 + jh) * npair + (t >> 1)) * 1024
                        ad = 12 + (t & 1)
                        if off >= 49152: off -= 49152; ad += 10
                        o.append(f"ds_read_b64_tr_b16 {v(b+28*k2+4+4*t+2*jh,2)}, v{ad} offset:{off}")
            return o
        for gi in range(10):
            rd = reads(gi) if gi < 9 else [f"ds_read_b64 {v(BUF+56+2*t,2)}, v20 offset:{(t>>1)*1024+(t&1)*32}" for t in range(2 * npair)]
            if gi > 0:
                g = gi - 1
                a(f"s_waitcnt vmcnt({19-2*gi+(2*gi <= 4)+(2*gi <= 13)})" if gi < 9 else "s_waitcnt vmcnt(0)")
                if gi == optval("HLAT", 6): a.ldsadd(VC, V1, cHl)
                b = BUF + 56 * (g & 1)
                for k2 in range(2):
                    for t in range(nt):
                        for _ in range(2):
                            if rd: a(rd.pop(0))
                        a.mfma(ACC + 4 * t, b + 28 * k2 + 4 * t, HB + 4 * (2 * g + k2), "0" if (g == 0 and k2 == 0) else None)
            for r in rd: a(r)
            a("s_waitcnt lgkmcnt(0)")
        XS = BUF + 56
        for e in range(4 * npair):
            a(f"v_lshlrev_b32 v{HB+2*e}, 16, v{XS+e}\nv_and_b32 v{HB+2*e+1}, 0xffff0000, v{XS+e}")
        a(f"v_add_f32 v9, v{ACC}, v{ACC+1}")
        a("v_sub_f32 v28, v19, v9\nv_sub_f32 v29, v19, v9\nv_mov_b32 v19, v18")
        for p in range(npair):
            for e in range(0, 8, 2): a(f"v_pk_fma_f32 {v(HB+8*p+e,2)}, {v(HB+8*p+e,2)}, v[18:19], v[28:29]")
            for e in range(0, 8, 2): a(f"v_pk_add_f32 {v(HB+8*p+e,2)}, {v(HB+8*p+e,2)}, {v(ACC+4+8*p+e,2)}")
            for e in range(4): a(f"v_cvt_pk_bf16_f32 v{BUF+4*p+e}, v{HB+8*p+2*e}, v{HB+8*p+2*e+1}")
            a(f"buffer_store_dwordx4 {v(BUF+4*p,4)}, v2, s[56:59], s11 offen offset:{p*1024} sc1")
        a("v_mov_b32 v11, 0")
        for e in range(0, 8 * npair, 2): a(f"v_pk_fma_f32 v[10:11], {v(HB+e,2)}, {v(HB+e,2)}, v[10:11]")
        if npair == 2: a("s_branch G2_j")
    a("G2_j:")
    a("v_add_f32 v10, v10, v11")
    gsum(a, 10, 11)
    a(f"s_lshl_b32 s10, s61, 3\ns_add_u32 s10, s10, s60\ns_lshl_b32 s10, s10, 8\ns_lshl_b32 s12, s3, 6\ns_add_u32 s10, s10, s12\ns_add_u32 s10, s10, {SS_OFF}")
    a(f"s_lshl_b32 s12, s8, 6\ns_add_u32 s12, s12, {MEAN_OFF}")
    a("s_mov_b64 exec, 0xffff")
    a("buffer_store_dword v10, v4, s[56:59], s10 offen sc1")
    a(f"s_cmp_lg_u32 s60, 0\ns_cbranch_scc1 G2_m")
    a("buffer_store_dword v9, v4, s[56:59], s12 offen sc1")
    a("G2_m:")
    a("s_mov_b64 exec, -1")

def w2_pre(a):
    a.srd(52, P_W2, D * D * 2)
    a("v_lshrrev_b32 v5, 2, v1\nv_and_b32 v8, 3, v1\nv_mul_u32_u24 v7, 1152, v5")
    a("v_bfe_u32 v5, v1, 4, 1\nv_lshlrev_b32 v5, 1, v5\nv_xor_b32 v5, v5, v8\nv_lshl_add_u32 v7, v5, 4, v7")
    a("s_lshl_b32 s64, s63, 10\ns_lshl_b32 s65, s62, 6\nv_mov_b32 v9, 0")

def w2_rg(a):
    l = a.lab("W2A")
    a("s_mov_b32 m0, s66\ns_nop 0")
    a("buffer_load_dwordx4 v7, s[52:55], s67 offen lds")
    a("s_add_u32 m0, m0, 960\ns_cmp_eq_u32 s63, 2")
    a("buffer_load_dwordx4 v7, s[52:55], s67 offen offset:64 lds")
    a(f"s_cbranch_scc1 {l}")
    a("s_add_u32 m0, m0, 960\ns_nop 0")
    a("buffer_load_dwordx4 v7, s[52:55], s67 offen offset:128 lds")
    a(f"{l}:")

def gen_w2load(a):
    if "w7skip" in OPT: a("s_mov_b32 s12, 13\ns_cmp_eq_u32 s68, 4\ns_cselect_b32 s13, s3, 0\ns_cmp_eq_u32 s13, 7\ns_cbranch_scc1 W2_e")
    a("W2_l:")
    a(f"s_mov_b64 exec, 1\nds_add_rtn_u32 v5, v{VC}, v{V1} offset:{cU}\ns_mov_b64 exec, -1")
    a(f"s_waitcnt vmcnt({optval('W2PACE', 6)}) lgkmcnt(0)")
    a("v_readfirstlane_b32 s12, v5")
    a("s_add_u32 s12, s12, s68\ns_cmp_ge_u32 s12, 12\ns_cbranch_scc1 W2_e")
    a(f"s_mul_i32 s67, s12, 55296\ns_add_u32 s67, s67, s65\ns_mul_i32 s66, s12, s64\ns_mul_i32 s66, s66, 3\ns_add_u32 s66, s66, {G2_W}")
    a("v_add_u32 v9, 1, v9")
    for r in range(3):
        w2_rg(a)
        a("s_add_u32 s67, s67, 18432\ns_add_u32 s66, s66, s64")
    a("s_branch W2_l")
    a("W2_e:")
    a.zcheck(14, 13)
    a("s_cmp_lg_u32 s12, 12\ns_cbranch_scc1 W2_f")
    a(f"s_mov_b32 s8, {W2M_OFF}\nv_add_u32 v9, 1, v9\nv_min_u32 v5, 240, v2\ns_mov_b32 s13, 0x20000")
    a("W2_m:")
    a("buffer_load_dwordx4 v[32:35], v2, s[56:59], s8 offen sc1\nbuffer_load_dwordx4 v[36:39], v2, s[56:59], s8 offen offset:1024 sc1\nbuffer_load_dwordx4 v[40:43], v5, s[56:59], s8 offen offset:2048 sc1")
    a("s_waitcnt vmcnt(0)")
    a("v_min_u32 v6, v32, v36\nv_min_u32 v6, v6, v40\nv_cmp_eq_u32 vcc, 0, v6\ns_cbranch_vccz W2_n")
    a("s_sleep 8\ns_sub_u32 s13, s13, 1\ns_cbranch_scc0 W2_m")
    a("W2_n:")
    a(f"ds_write_b128 v2, v[32:35] offset:{G2_WM}\nds_write_b128 v2, v[36:39] offset:{G2_WM+1024}\nds_write_b128 v5, v[40:43] offset:{G2_WM+2048}")
    a("W2_f:")
    a.ldsadd(VC, 9, cW2)

def gen_km(a, name):
    fine = "fine" in OPT
    a(f".p2align 8\n{name}:")
    a("s_cmp_ge_u32 s2, 256\ns_cbranch_scc1 KM_end")
    a.stamp_init()
    if "skew" in OPT:
        a("s_mul_i32 s4, s2, 5\ns_and_b32 s4, s4, 7\nSK_l:\ns_sub_u32 s4, s4, 1\ns_cbranch_scc1 SK_d\ns_sleep 12\ns_branch SK_l\nSK_d:")
    a.kernargs()
    a("v_lshrrev_b32 v2, 6, v0\nv_and_b32 v1, 63, v0")
    a("v_readfirstlane_b32 s3, v2")
    a("s_and_b32 s96, s2, 7\ns_lshr_b32 s97, s2, 3")
    a("s_mul_i32 s60, s97, 43\ns_lshr_b32 s60, s60, 8")
    a("s_mul_i32 s7, s60, 6\ns_sub_u32 s7, s97, s7")
    a("s_lshl_b32 s6, s60, 3\ns_add_u32 s6, s6, s96")
    a(f"v_mov_b32 v{VC}, {CNT}\nv_mov_b32 v{V1}, 1")
    a("s_cmp_lt_u32 s3, 4\ns_cbranch_scc1 KM_lo")
    a("s_cmp_ge_u32 s97, 24\ns_cbranch_scc1 KM_free")
    g1.loader_pre(a)
    a("s_waitcnt lgkmcnt(0)")
    def w2pre():
        a("s_mov_b32 s101, s61")
        consts(a)
        a("s_mov_b32 s98, s61\ns_mov_b32 s61, s101")
        w2_pre(a)
        a("s_lshr_b32 s68, s97, 3\ns_lshl_b32 s68, s68, 2\ns_add_u32 s68, s68, s8")
    def w2issue():
        a(f"s_mul_i32 s67, s68, 18432\ns_add_u32 s67, s67, s65\ns_mul_i32 s66, s68, s64\ns_add_u32 s66, s66, {G2_W}")
        w2_rg(a)
        a("s_add_u32 s68, s68, 4\ns_sub_u32 s66, s68, 12\ns_cmp_ge_u32 s68, 12\ns_cselect_b32 s68, s66, s68")
    g1.gen_loader(a, w2pre, w2issue)
    a.srd(56, P_WS, WS_BYTES)
    a("s_mov_b32 s61, s98\ns_mov_b32 s68, 4\nv_mov_b32 v9, 1")
    a("s_barrier")
    a("s_branch KM_qj")
    a("KM_lo:")
    a("s_cmp_lg_u32 s3, 0\ns_cbranch_scc1 KM_pf")
    a("s_mov_b64 exec, 0xffff")
    a.prefetch_code("CODE_END", 2, 31, 8)
    a(f"v_lshl_add_u32 v2, v1, 2, v{VC}\nv_mov_b32 v3, 0\nds_write2_b32 v2, v3, v3 offset0:0 offset1:16")
    a("s_mov_b64 exec, -1")
    a("KM_pf:")
    a("s_cmp_ge_u32 s97, 24\ns_cbranch_scc1 KM_free")
    a("s_waitcnt lgkmcnt(0)")
    a.srd(56, P_WS, WS_BYTES)
    a(f"s_mov_b32 s99, 0\ns_cmp_lg_u32 s3, 1\ns_cbranch_scc1 KM_nz\ns_cmp_ge_u32 s2, {FLAG_WAVES}\ns_cbranch_scc1 KM_nz")
    a(f"s_mov_b32 s99, 3\ns_mul_i32 s8, s2, {2*FB_STRIDE}\ns_add_u32 s8, s8, {FLAG_OFF}")
    a(f"s_movk_i32 s9, {FB_STRIDE-512}\ns_cmp_lt_u32 s2, 28\ns_cbranch_scc1 KM_z1")
    a(f"s_mov_b32 s9, 0\ns_lshl_b32 s8, s2, 10\ns_add_u32 s8, s8, {W2M_OFF-28*1024}")
    a("KM_z1:")
    a(f"v_lshrrev_b32 v3, 5, v1\nv_mul_u32_u24 v3, s9, v3\nv_lshl_add_u32 v2, v1, 4, v3")
    a("v_mov_b32 v192, 0\nv_mov_b32 v193, 0\nv_mov_b32 v194, 0\nv_mov_b32 v195, 0")
    a("buffer_store_dwordx4 v[192:195], v2, s[56:59], s8 offen sc1")
    a("KM_nz:")
    def after1():
        a(f"s_cmp_lg_u32 s99, 3\ns_cbranch_scc1 KM_z2\ns_waitcnt vmcnt(0)\ns_mov_b64 exec, 1\nglobal_atomic_add v192, v{V1}, {s(P_DBG,2)} sc1\ns_mov_b64 exec, -1\nKM_z2:")
    a(f"s_setprio {optval('PFP', 3)}")
    a.stamp(1)
    g1.gen_consumer(a, VC, cG1, " sc1", after1)
    a.stamp(4)
    a(f"s_mul_i32 s6, s6, {FB_STRIDE}\ns_add_u32 s6, s6, {FH_OFF}")
    a.zcheck(14, 13)
    a(f"s_mov_b64 exec, 1\nds_add_rtn_u32 v5, v{VC}, v{V1} offset:{cHs}\ns_mov_b64 exec, -1")
    a("s_waitcnt lgkmcnt(0)")
    a("v_readfirstlane_b32 s7, v5")
    a("s_cmp_lg_u32 s7, 3\ns_cbranch_scc1 KM_pj")
    a.addflag("s6", 14)
    a("s_branch KM_pj")
    a("KM_free:")
    a("s_waitcnt lgkmcnt(0)\ns_barrier")
    a.srd(56, P_WS, WS_BYTES)
    a(f"s_lshl_b32 s13, s3, 12\ns_add_u32 s13, s13, {SCR}")
    a("s_lshl_b32 s12, s3, 3\ns_add_u32 s12, s12, s97\ns_sub_u32 s12, s12, 24")
    a("s_cmp_ge_u32 s12, 39\ns_cbranch_scc1 KM_fpt")
    a("s_cmp_lt_u32 s12, 3\ns_cbranch_scc1 KM_mean")
    a("s_mul_i32 s6, s96, 36\ns_add_u32 s6, s6, s12\ns_sub_u32 s6, s6, 3")
    if "nokv" in OPT:
        a.ldsadd(VC, V1, cG1)
        a("s_sleep 60\ns_branch KM_fz")
    a("s_setprio 2")
    gen_kv(a)
    a("s_branch KM_fsig")
    a("KM_mean:")
    a("s_mul_i32 s6, s96, 3\ns_add_u32 s6, s6, s12")
    a("s_cmp_ge_u32 s6, 18\ns_cbranch_scc1 KM_fz")
    a("s_setprio 3")
    gen_meantile(a)
    a("s_branch KM_fdone")
    a("KM_fpt:")
    a("s_sub_u32 s12, s12, 39\ns_cmp_ge_u32 s12, 18\ns_cbranch_scc1 KM_fidle")
    a("s_mov_b32 s9, s13\ns_mov_b32 s99, 0")
    if optval("FJW", 0): a.ldswait(VC, 5, 7, optval("FJW", 0), cG1, sleep=4)
    a("KM_job:")
    job_setup(a, "JS")
    gen_pretile(a, 128)
    a("s_mov_b32 s6, s98")
    a("s_cmp_lg_u32 s99, 0\ns_cbranch_scc1 KM_jret")
    a("KM_fsig:")
    a.stamp(3)
    a.zcheck(14, 13)
    a.addflag("s6", 14)
    a("s_branch KM_fdone")
    a("KM_fz:")
    a.zcheck(14, 13)
    a("s_branch KM_fdone")
    a("KM_fidle:")
    a("KM_fi2:")
    a("s_setprio 0")
    a.ldswait(VC, 5, 7, optval("FIDLE", 4), cG1, sleep=4)
    a("KM_fdone:")
    a.stamp(4)
    a("s_cmp_lt_u32 s3, 4\ns_cbranch_scc1 KM_pj")
    consts(a)
    w2_pre(a)
    a("s_mov_b32 s68, 0")
    a("s_branch KM_qj")

    A3 = [(2, 0), (2, 1024), (2, 2048)]
    stP = Stream(a, [(64, A3, " sc1"), (65, A3, " sc1"), (66, [(2, 0), (3, 3072)], " sc1"), (68, [(2, 0), (3, 3072)], " sc1")])
    stQ = Stream(a, [(64, A3, " sc1"), (66, [(2, 0), (2, 1024), (2, 2048), (2, 3072), (3, 0)], " sc1")])
    def addrs():
        a(f"v_mov_b32 v6, v2\nv_add_u32 v7, 36864, v2\nv_add_u32 v8, {ML_H}, v2\nv_add_u32 v9, {ML_H+36864}, v2")
        h_addr(a, 71, 10, 12)
    def rk():
        a(f"v_and_b32 v5, 15, v1\nv_lshlrev_b32 v5, 4, v5\nv_add_u32 v5, {RM}, v5")
        for m in range(4): a(f"ds_read_b32 v{GT+m}, v5 offset:{256*m}")
        a("s_waitcnt lgkmcnt(0)")
        for m in range(4):
            r = GT + m
            a(f"v_mul_f32 v{KC+2*m}, {fh(GC0)}, v{r}\nv_mul_f32 v{r}, v{r}, v{r}\nv_mul_f32 v{r}, {fh(0.044715)}, v{r}\nv_mul_f32 v{KC+2*m+1}, v{r}, v{KC+2*m}")
    a("KM_pj:")
    a(f"s_setprio {optval('PFP', 3)}")
    a.stamp(5)
    a.ldsadd(VC, V1, cP1)
    consts(a)
    consts2(a)
    gen_gemm2(a)
    a.stamp(8)
    a(f"s_mul_i32 s6, s61, {FB_STRIDE}\ns_lshl_b32 s7, s60, 2\ns_add_u32 s6, s6, s7\ns_add_u32 s6, s6, {FX_OFF}")
    P0 = 0
    a("s_waitcnt vmcnt(0)")
    a(f"s_mov_b64 exec, 1\nds_add_rtn_u32 v5, v{VC}, v{V1} offset:{cG2}\ns_mov_b64 exec, -1")
    a("s_waitcnt lgkmcnt(0)")
    a("v_readfirstlane_b32 s7, v5")
    a("s_cmp_lg_u32 s7, 3\ns_cbranch_scc1 KB_nosig")
    a.setflag("s6", 14)
    a("KB_nosig:")
    a("s_cmp_lg_u32 s3, 1\ns_cbranch_scc1 KB_w3\ns_cmp_ge_u32 s48, 18\ns_cbranch_scc1 KB_w3b")
    a("s_add_u32 s6, s70, 128")
    a.cpoll(6, 18, 48, 13, 8)
    a("KB_w3b:")
    a.ldsadd(VC, V1, cW3a)
    a("KB_w3:")
    a.ldswait(VC, 5, 7, 1, cW3a)
    a.ldswait(VC, 5, 7, 4, cG2)
    PRE = optval("PPRE", NS)
    paced(a, stP, PRE - P0, optval("PPACE", 8))
    addrs()
    a(f"s_mul_i32 s6, s5, {FB_STRIDE}\ns_add_u32 s6, s6, {FX_OFF}")
    a(f"s_mul_i32 s9, s3, 18432\ns_mov_b32 m0, s9\ns_mul_i32 s7, s5, 73728\ns_add_u32 s7, s7, s9\ns_add_u32 s7, s7, {X1_OFF}")
    a("s_cmp_lg_u32 s3, 0\ns_cbranch_scc1 KB_xw")
    a.spoll(8, 6, 44, 13, 1)
    a.ldsadd(VC, V1, cFX)
    a("s_branch KB_xg")
    a("KB_xw:")
    a.ldswait(VC, 5, 8, 1, cFX)
    a("KB_xg:")
    a.stamp(9)
    def xdma(i):
        if i and i % 4 == 0: a("s_add_u32 m0, m0, 4096\ns_add_u32 s7, s7, 4096")
        a(f"buffer_load_dwordx4 v2, s[56:59], s7 offen offset:{(i%4)*1024} sc1 lds")
        stP.other(f"x{i}")
    XP = optval("XP", 6)
    for i in range(XP): xdma(i)
    for i in range(NS - PRE): stP.issue()
    a(f"s_lshl_b32 s6, s5, 11\ns_add_u32 s6, s6, {SS_OFF}\ns_lshl_b32 s8, s5, 8\ns_add_u32 s8, s8, {MEAN_OFF}\ns_lshl_b32 s9, s5, 9\ns_add_u32 s9, s9, {ST1_OFF}")
    a("v_lshlrev_b32 v18, 3, v1")
    late = [(lambda i=i: xdma(i)) for i in range(XP, 18)]
    def stat(ins, tag="x"):
        a(ins); stP.other(tag)
    late += [(lambda i=i: stat(f"buffer_load_dword v{GT+i}, v4, s[56:59], s6 offen offset:{256*i} sc1")) for i in range(8)]
    late += [lambda: stat(f"buffer_load_dword v{GT+9}, v4, s[56:59], s8 offen sc1")]
    late += [lambda: stat(f"buffer_load_dwordx2 {v(GT+10,2)}, v18, s[56:59], s9 offen sc1", "st")]
    for i in range(optval("XE", 4)): late.pop(0)()
    a(f"s_waitcnt vmcnt({stP.younger(f'x{XP-1}')})")
    a.subbar(VC, 5, 10, 4, off=cX1)
    a.stamp(10 if not fine else 1)
    def xhook(ks, i):
        if i in (0, 4, 8, 10, 11, 3) and late: late.pop(0)()
    mphase(a, stP, 0, 6, 0, XP, prio=2, hook=xhook)
    assert not late
    a(f"s_waitcnt vmcnt({stP.younger('st')})")
    for i in range(1, 8): a(f"v_add_f32 v{GT}, v{GT}, v{GT+i}")
    a(f"v_mov_b32 v{GT+1}, {fh(1.0/D)}\nv_fmaak_f32 v{GT}, v{GT+1}, v{GT}, {fh(EPS)}")
    a(f"v_rsq_f32 v{GT+8}, v{GT}")
    a(f"v_add_u32 v5, {RM}, v2\ns_nop 0")
    a(f"ds_write_b128 v5, {v(GT+8,4)}")
    a.subbar(VC, 5, 7, 4, off=cX2)
    kw = 18 - (NS + 2) // 3
    def w3hook(ks, i):
        if ks == kw - 1 and i == 10: a.ldswait(VC, 5, 7, 1, cW3)
    mphase(a, stP, 0, 6, XP, 18, first=False, prio=2, hook=w3hook)
    if fine: a.stamp(2)
    rk()
    a.ldswait(VC, 5, 7, 4, cSide, sleep=1)
    gphase(a, 10, 12)
    a.ldsadd(VC, V1, cH1)
    if fine: a.stamp(3)
    a("s_add_u32 s71, s71, 24")
    h_addr(a, 71, 10, 12)
    a.ldswait(VC, 5, 7, 1, cW4, sleep=1)
    mphase(a, stP, 1, 6, prio=1)
    a.ldsadd(VC, V1, cA)
    if fine: a.stamp(4)
    def sthook(i):
        if i == 1:
            a.ldswait(VC, 5, 7, 4, cA, sleep=1)
            a.ldswait(VC, 5, 7, 8, cH1, sleep=1)
            stage_x(a)
            stage_y(a)
    gphase(a, 10, 12, sthook)
    a("s_waitcnt vmcnt(0)")
    a.subbar(VC, 5, 7, 4, off=cH2)
    if fine: a.stamp(5)
    mphase(a, stP, 2, 8)
    if fine: a.stamp(6)
    a("s_add_u32 s6, s67, 14336\ns_add_u32 s7, s69, 128")
    pend = []
    for k, (t, mp) in enumerate([(0, 0), (0, 1), (1, 0), (1, 1)]):
        pend += pstore(a, MACC, t, mp, 67 if t == 0 else 6, mp * 1024, k)
    state = {"flag": False}
    def hook(ks, i):
        if (ks >= 1 or i >= 3) and i not in (1, 5) and pend:
            ins = pend.pop(0); a(ins)
            if ins.startswith("buffer"): stP.other("e" if not pend else "x")
        if not pend and not state["flag"] and ks == optval("EFLAG", 14) and i == 0:
            a(f"s_waitcnt vmcnt({stP.younger('e')})")
            a.setflag("s7", 14); stP.other()
            state["flag"] = True
    mphase(a, stP, 3, 8, acc=MACC + 32, hook=hook)
    assert state["flag"]
    if fine: a.stamp(7)
    a("s_setprio 3")
    a.nop(8)
    for k, (t, mp) in enumerate([(0, 0), (0, 1), (1, 0), (1, 1)]):
        for ins in pstore(a, MACC + 32, t, mp, 67 if t == 0 else 6, 2048 + mp * 1024, k): a(ins)
    a("s_add_u32 s7, s69, 256")
    a("s_waitcnt vmcnt(0)")
    a.setflag("s7", 14)
    a.end()
    a("KM_qj:")
    a("s_setprio 0")
    a.stamp(5)
    a.ldsadd(VC, V1, cP1)
    gen_w2load(a)
    a.stamp(7 if not fine else 2)
    consts2(a)
    if "noside" in OPT:
        a.ldsadd(VC, V1, cW3)
        a.ldswait(VC, 5, 7, 4, cX1, sleep=2)
        a("s_branch KB_q2b")
    a("s_cmp_eq_u32 s3, 7\ns_cbranch_scc1 KB_w7")
    a("s_cmp_eq_u32 s63, 3\ns_cbranch_scc1 KB_nc")
    a("s_lshr_b32 s6, s60, 2\ns_sub_u32 s6, s60, s6\ns_mul_i32 s7, s61, 6\ns_add_u32 s6, s6, s7\ns_mul_i32 s6, s6, 3")
    a("s_sub_u32 s7, s3, 4\ns_add_u32 s52, s6, s7")
    a(f"s_mul_i32 s7, s7, {CV_SZ}\ns_add_u32 s53, s7, {CV}")
    a("s_cmp_lg_u32 s3, 4\ns_cbranch_scc1 KB_kw")
    for d in (0, 2):
        a(f"s_add_u32 s8, s52, {d}\ns_lshr_b32 s8, s8, 6\ns_mul_i32 s9, s8, 86\ns_lshr_b32 s9, s9, 8\ns_mul_i32 s9, s9, {FB_STRIDE-384}\ns_lshl_b32 s8, s8, 7\ns_add_u32 s8, s8, s9\ns_add_u32 s8, s8, {FKV_OFF}")
        a.cpoll(8, 32, 44, 13, 12)
    a.ldsadd(VC, V1, cKV)
    a("KB_kw:")
    a.ldswait(VC, 5, 7, 1, cKV, sleep=2)
    a.ldswait(VC, 5, 7, 8, cP1, sleep=1)
    if "cvearly" not in OPT: a.ldswait(VC, 5, 7, 4, cHl, sleep=2)
    if not fine: a.stamp(8)
    gen_conv_load(a, " sc1")
    st_save = a.stamps
    a.stamps = st_save and not fine
    kb4.gen_conv(a, None, " sc1", "none")
    a.stamps = st_save
    a(f"s_lshr_b32 s6, s6, 4\ns_mul_i32 s6, s6, 57\ns_lshr_b32 s6, s6, 9\ns_mul_i32 s6, s6, {FB_STRIDE}\ns_add_u32 s6, s6, {FY_OFF}")
    a.ldsadd(VC, V1, cSide)
    a("s_waitcnt vmcnt(0)")
    a.addflag("s6", 14)
    a("s_branch KB_q3")
    a("KB_w7:")
    a(f"s_add_u32 s52, s97, 18\ns_add_u32 s53, s97, 54\ns_mov_b32 s54, {PT7}")
    a("s_branch KB_q2")
    a("KB_nc:")
    a("s_lshr_b32 s12, s97, 2\ns_mul_i32 s12, s12, 3\ns_add_u32 s12, s12, s3\ns_sub_u32 s12, s12, 4")
    a("s_add_u32 s52, s12, 50\ns_cmp_ge_u32 s12, 4\ns_cselect_b32 s52, 108, s52\ns_add_u32 s53, s12, 86")
    a(f"s_lshl_b32 s54, s3, 12\ns_add_u32 s54, s54, {SCR}")
    a("KB_q2:")
    a.ldswait(VC, 5, 7, 8, cP1, sleep=2)
    a(f"s_mov_b32 s99, 1\ns_mov_b32 s12, s52\ns_setprio {optval('J1P', 0)}")
    a("KB_jl:")
    a("s_mov_b32 s9, s54\ns_cmp_lt_u32 s12, 108\ns_cbranch_scc1 KM_job")
    a("s_branch KB_jn")
    a("KM_jret:")
    a("s_waitcnt vmcnt(0)")
    a.addflag("s6", 14)
    a("KB_jn:")
    a("s_cmp_eq_u32 s99, 2\ns_cbranch_scc1 KB_q2b")
    if not fine: a.stamp(8)
    W4W = optval("W4W", 0)
    if W4W < 0: a("s_cmp_eq_u32 s3, 7\ns_cbranch_scc1 KB_j3")
    a.ldswait(VC, 5, 7, 4, max(W4W, 0), sleep=2)
    a("KB_j3:")
    a(f"s_mov_b32 s99, 2\ns_mov_b32 s12, s53\ns_setprio {optval('J2P', 3)}\ns_branch KB_jl")
    a("KB_q2b:")
    a.ldsadd(VC, V1, cSide)
    a("s_cmp_lg_u32 s3, 7\ns_cbranch_scc1 KB_q3")
    a("s_add_u32 s8, s70, 256")
    if "noside" not in OPT: a.cpoll(8, 36, 44, 13, 16)
    a.ldsadd(VC, V1, cW3)
    a("KB_q3:")
    a.stamp(9 if not fine else 3)
    a("s_setprio 0")
    a.ldswait(VC, 5, 7, 1, cW3, sleep=2)
    QW = optval("QRW", -1)
    if QW >= 0: a.ldswait(VC, 5, 7, 4, QW, sleep=2)
    paced(a, stQ, NS, optval("QPACE", 6))
    if not fine: a.stamp(6)
    addrs()
    a.ldswait(VC, 5, 7, 4, cX2, sleep=1)
    rk()
    mphase(a, stQ, 0, 6, 0, kw, prio=2)
    a("s_cmp_lg_u32 s3, 7\ns_cbranch_scc1 KB_q2c")
    if "noside" not in OPT: a.cpoll(70, 54, 44, 13, 16)
    a.ldsadd(VC, V1, cW4)
    a("KB_q2c:")
    a.ldswait(VC, 5, 7, 1, cW4)
    mphase(a, stQ, 0, 6, kw, 18, first=False, prio=2)
    a.ldswait(VC, 5, 7, 4, cSide)
    if fine: a.stamp(4)
    a(f"s_lshr_b32 s8, s4, 1\ns_mul_i32 s8, s8, {FB_STRIDE}\ns_add_u32 s8, s8, {FY_OFF}")
    def yhook(i):
        if i == 3:
            a("s_cmp_lg_u32 s3, 7\ns_cbranch_scc1 KB_ys")
            if "noside" not in OPT: a.vpoll(8, 144, 14, 13, 32)
            a("KB_ys:")
    gphase(a, 10, 12, yhook)
    a.subbar(VC, 5, 7, 8, off=cH1)
    if fine: a.stamp(5)
    mphase(a, stQ, 1, 8, 0, 12, prio=1)
    a.ldswait(VC, 5, 7, 4, cH2, sleep=1)
    if fine: a.stamp(7)
    mphase(a, stQ, 1, 8, 12, 18, first=False, prio=1)
    a(f"s_setprio {optval('QT', 1)}")
    a.stamp(10)
    a.nop(8)
    for k in range(10):
        if k and k % 4 == 0: a("s_add_u32 s67, s67, 4096")
        for x in pstore(a, MACC, k >> 1, k & 1, 67, (k % 4) * 1024, k): a(x)
    a("s_waitcnt vmcnt(0)")
    a.setflag("s69", 14)
    a(f"s_setprio {optval('QF', 0)}")
    gen_final(a)
    a.end()
    a("KM_end:")
    a("s_endpgm")
```

```python
from common import *
import kb4, km
from g1 import gelu_pk
import conv, tail
from kb4 import Stream, mphase, gphase, h_addr, pstore, stage_x, stage_y, gen_final, gen_conv_load, paced, NS, RING, BF, MACC, KC, GT, ML_H, VC, V1

G2_WM, G2_W = 0, 2560
SLOT = 24576
G1_BASE = 76800
G1_AUX = 150528
CV_SZ = 21248
FSCR = 4 * CV_SZ
CNT = 158592
RM = CNT + 128
K6_LDS = RM + 1024
kb4.RM = RM
cG2, cX1, cX2, cFX, cSide, cH1, cA, cH2, cW4, cG1, cFH, cU, cW3, cHs, cW3a, cKV, cXs, cT1, cT2, cT3, cT0, cOwn = [4 * i for i in range(22)]
cU2 = cOwn + 16
km.cG1 = cG1

TB = G1_BASE + SLOT
W4F = optval('W4F', 432)

def last_of(a, off, n, skip):
    a(f"s_mov_b64 exec, 1\nds_add_rtn_u32 v5, v{VC}, v{V1} offset:{off}\ns_mov_b64 exec, -1")
    a("s_waitcnt lgkmcnt(0)")
    a("v_readfirstlane_b32 s7, v5")
    a(f"s_cmp_lg_u32 s7, {n-1}\ns_cbranch_scc1 {skip}")

def gen_g(a):
    BUF, ACC, STA, CSA, SQ, SM, CS, ONE, XA, WA = 32, 96, 112, 124, 140, 144, 148, 152, 184, 188
    log = []
    DM = (18, 20, 22, 28)
    a("v_lshrrev_b32 v2, 2, v1\nv_and_b32 v3, 3, v1\nv_mul_u32_u24 v4, 1152, v2")
    a("v_lshrrev_b32 v6, 5, v1\nv_lshlrev_b32 v6, 1, v6\nv_xor_b32 v6, v6, v3\nv_lshl_add_u32 v6, v6, 4, v4")
    a("s_mul_i32 s10, s60, 147456\ns_mul_i32 s9, s3, 18432\ns_add_u32 s10, s10, s9")
    a("s_lshr_b32 s8, s3, 1\ns_mul_i32 s11, s8, 18432\ns_lshl_b32 s9, s61, 7\ns_add_u32 s11, s11, s9\ns_and_b32 s9, s3, 1\ns_lshl_b32 s9, s9, 6\ns_add_u32 s11, s11, s9")
    a("s_mul_i32 s14, s62, 7\ns_add_u32 s14, s14, 1\ns_mov_b32 s12, s61")
    a("s_lshl_b32 s13, s3, 10")
    a("s_waitcnt lgkmcnt(0)")
    a.srd(48, P_Q, ACT)
    a.srd(44, P_W1, D * D * 2)
    SB = [G2_W, G2_W + SLOT, G2_W + 2 * SLOT, G1_BASE, G1_BASE + SLOT, G1_BASE + 2 * SLOT, G2_W, G2_W + SLOT, G1_BASE]
    def issue(gi):
        sl = SB[gi]
        a("s_add_u32 s12, s12, s14\ns_sub_u32 s9, s12, 9\ns_cmp_ge_u32 s12, 9\ns_cselect_b32 s12, s9, s12")
        a(f"s_lshl_b32 s15, s12, 7\ns_add_u32 s15, s15, s10\ns_add_u32 m0, s13, {sl}\ns_mul_i32 s9, s12, 73728")
        a("buffer_load_dwordx4 v6, s[48:51], s15 offen" + (" nt" if "xnt" in OPT else "") + " lds")
        a("s_add_u32 m0, m0, 8128\ns_add_u32 s9, s9, s11")
        a("buffer_load_dwordx4 v6, s[48:51], s15 offen offset:64" + (" nt" if "xnt" in OPT else "") + " lds")
        a("s_add_u32 m0, m0, 8256\ns_nop 0")
        a("buffer_load_dwordx4 v6, s[44:47], s9 offen" + (" nt" if "wnt" in OPT else "") + " lds")
        log.extend(["x", "x", f"g{gi}"])
    younger = lambda key: len(log) - 1 - log.index(key)
    issue(0); issue(1)
    if "w1t" in OPT:
        a("s_mul_i32 s8, s62, 288\ns_lshl_b32 s9, s61, 6\ns_add_u32 s8, s8, s9\ns_add_u32 s8, s8, 32\ns_mul_i32 s9, s3, 36\ns_add_u32 s8, s8, s9")
        a("v_min_u32 v7, 35, v1\nv_add_u32 v7, s8, v7\nv_subrev_u32 v8, 576, v7\nv_min_u32 v7, v7, v8\nv_mul_u32_u24 v7, 1152, v7\ns_lshl_b32 s9, s61, 7")
        a("buffer_load_dword v31, v7, s[44:47], s9 offen")
        log.append("t")
    a.srd(56, P_WS, WS_BYTES)
    a("s_cmp_lg_u32 s3, 0\ns_cbranch_scc1 G_pf")
    a("s_mov_b64 exec, 0xffff")
    a(f"v_lshl_add_u32 v7, v1, 2, v{VC}\nv_mov_b32 v8, 0\nds_write2_b32 v7, v8, v8 offset0:0 offset1:16")
    a("s_mov_b64 exec, -1")
    a("G_pf:")
    a.srd(52, P_W2, D * D * 2)
    a("v_bfe_u32 v7, v1, 4, 1\nv_lshlrev_b32 v8, 1, v7\nv_xor_b32 v8, v8, v3\nv_lshl_add_u32 v30, v8, 4, v4")
    a(f"v_lshlrev_b32 v12, 6, v2\nv_lshl_add_u32 v12, v7, 5, v12\nv_lshl_add_u32 v12, v3, 3, v12\nv_add_u32 v22, {G2_W}, v12\nv_xor_b32 v23, 32, v22")
    a(f"s_mov_b32 s66, s11\ns_lshl_b32 s67, s3, 10\ns_add_u32 s67, s67, {G2_W}")
    a("v_and_b32 v2, 15, v1\nv_lshrrev_b32 v3, 4, v1")
    a("v_bfe_u32 v4, v1, 3, 1\nv_lshlrev_b32 v4, 1, v4")
    a("v_xor_b32 v5, v4, v3\nv_lshl_add_u32 v5, v2, 2, v5\nv_lshlrev_b32 v5, 4, v5")
    a("s_and_b32 s63, s3, 3\ns_lshr_b32 s64, s3, 2\ns_and_b32 s69, s3, 1\ns_lshr_b32 s70, s63, 1\ns_lshl_b32 s71, s63, 1\ns_add_u32 s71, s71, s64")
    a("s_lshl_b32 s9, s71, 10\ns_lshl_b32 s8, s69, 13\ns_add_u32 s9, s9, s8\nv_add_u32 v5, s9, v5")
    for i, x in enumerate((0, 1024, 8192, 9216)): a(f"v_xor_b32 v{XA+i}, {x}, v5\nv_add_u32 v{XA+i}, {G2_W}, v{XA+i}")
    a("v_lshrrev_b32 v5, 1, v3\nv_lshlrev_b32 v11, 11, v5\nv_and_b32 v8, 1, v3\nv_lshl_add_u32 v11, v8, 9, v11")
    a("v_lshrrev_b32 v7, 2, v2\nv_lshl_add_u32 v11, v7, 6, v11\nv_and_b32 v7, 3, v1\nv_lshl_add_u32 v11, v7, 3, v11\nv_lshl_add_u32 v11, v8, 5, v11")
    a("s_lshl_b32 s9, s64, 10\ns_lshl_b32 s8, s69, 12\ns_add_u32 s9, s9, s8\nv_add_u32 v11, s9, v11\ns_lshl_b32 s8, s70, 5\nv_xor_b32 v11, s8, v11")
    for i, x in enumerate((0, 32, 4096, 4128)): a(f"v_xor_b32 v{WA+i}, {x}, v11\nv_add_u32 v{WA+i}, {G2_W+16384}, v{WA+i}")
    a(f"v_xor_b32 v5, v5, v4\nv_lshl_add_u32 v5, v2, 2, v5\nv_lshlrev_b32 v20, 4, v5\nv_lshl_add_u32 v20, v8, 3, v20\ns_add_u32 s9, s13, {G1_BASE}\nv_add_u32 v20, s9, v20\nv_xor_b32 v21, 32, v20")
    a("v_lshlrev_b32 v13, 4, v2\nv_lshlrev_b32 v18, 4, v3\nv_lshlrev_b32 v25, 4, v1")
    a(f"s_lshl_b32 s9, s71, 8\ns_add_u32 s9, s9, {G1_AUX}\nv_add_u32 v26, s9, v13\nv_xor_b32 v27, 256, v26")
    a(f"s_lshl_b32 s9, s64, 8\ns_lshl_b32 s8, s70, 7\ns_add_u32 s9, s9, s8\ns_add_u32 s9, s9, {G1_AUX+2048}\nv_add_u32 v28, s9, v18\nv_xor_b32 v29, 128, v28\ns_lshl_b32 s8, s69, 6\nv_add_u32 v24, s8, v28")
    a(f"s_lshl_b32 s65, s60, 3\ns_add_u32 s65, s65, s71\ns_lshl_b32 s68, s65, 8\ns_add_u32 s68, s68, {ST1_OFF}\ns_xor_b32 s98, s65, 1")
    a(f"s_lshl_b32 s9, s61, 11\ns_lshl_b32 s8, s64, 10\ns_add_u32 s9, s9, s8\ns_add_u32 s9, s9, {H_OFF}\ns_mul_i32 s65, s65, 18432\ns_add_u32 s65, s65, s9\ns_mul_i32 s98, s98, 18432\ns_add_u32 s98, s98, s9")
    a(f"v_mov_b32 v160, {fh(GC0)}\nv_mov_b32 v161, {fh(GC0)}\nv_mov_b32 v162, {fh(GC1)}\nv_mov_b32 v163, {fh(GC1)}\nv_mov_b32 v164, 1.0\nv_mov_b32 v165, 1.0")
    for r in range(4): a(f"v_mov_b32 v{ONE+r}, 0x3f803f80")
    a("v_lshlrev_b32 v7, 2, v3\nv_sub_u32 v19, v2, v7")
    def w2issue(part):
        for i in range(3 * part, 3 * part + 3):
            a(f"s_add_u32 m0, s67, {8192*i}\ns_add_u32 s9, s66, {73728*i}")
            a("buffer_load_dwordx4 v30, s[52:55], s9 offen" + (" nt" if "w2nt" in OPT else "") + " lds")
            log.append("w")
    def reads(gi):
        o0 = SB[gi] - (G2_W if SB[gi] < G1_BASE else G1_BASE)
        b = BUF + 32 * (gi & 1)
        o = []
        for k2 in range(2):
            for mi in range(2): o.append(f"ds_read_b128 {v(b+16*k2+4*mi,4)}, v{XA+2*k2+mi} offset:{o0}")
            for t in range(2):
                for jh in range(2): o.append(f"ds_read_b64_tr_b16 {v(b+16*k2+8+4*t+2*jh,2)}, v{WA+2*k2+t} offset:{o0+256*jh}")
        return o
    for r in range(4): a(f"v_cmp_eq_u32 {s(DM[r],2)}, {r}, v19")
    fin = [f"v_cndmask_b32 v{STA}, 0, v{SQ}, {s(DM[0],2)}"] + [f"v_cndmask_b32 v{STA}, v{STA}, v{SQ+r}, {s(DM[r],2)}" for r in range(1, 4)]
    fin += [f"v_mul_f32 v{STA+2}, {fh(-1.0/D)}, v{SM}"]
    fin += [f"v_mov_b32 v7, v{STA}", "s_nop 1", f"v_permlane32_swap_b32 v{STA}, v7", f"v_add_f32 v{STA}, v{STA}, v7"]
    fin += [f"v_mov_b32 v7, v{STA}", "s_nop 1", f"v_permlane16_swap_b32 v{STA}, v7", f"v_add_f32 v{STA}, v{STA}, v7"]
    fin += f"v_mul_f32 v7, {fh(1.0/D)}, v{STA}\nv_fma_f32 v7, -v{STA+2}, v{STA+2}, v7\nv_max_f32 v7, 0, v7\nv_add_f32 v8, {fh(EPS)}, v7\nv_rsq_f32 v{STA}, v8\ns_nop 0".split("\n")
    fin += f"v_mul_f32 v8, v{STA}, v{STA}\nv_fmaak_f32 v8, v8, v7, {fh(EPS)}\nv_rsq_f32 v8, v8\nv_mul_f32 v{STA+1}, v{STA+2}, v{STA}\nv_mul_f32 v{STA+3}, v8, v{STA}".split("\n")
    LP, LQ = optval("LP", 2), optval("LQ", 3)
    log0 = list(log); fin0 = list(fin)
    a("s_cmp_ge_u32 s3, 4\ns_cbranch_scc1 G_lq")
    for role in "PQ":
        log[:] = log0; fin[:] = fin0
        LA = LP if role == "P" else LQ
        if role == "Q": a("G_lq:")
        for g in range(2, LA): issue(g)
        for gi in range(10):
            rd = []
            if gi < 9:
                if gi in (3, 6, 8):
                    for r in range(8): a(f"v_add_u32 v{XA+r}, {(G1_BASE-G2_W) if gi != 6 else -(G1_BASE-G2_W)}, v{XA+r}")
                a(f"s_waitcnt vmcnt({younger(f'g{gi}')}) lgkmcnt(0)\ns_barrier")
                if gi == 0 or "g1t" in OPT: a.stamp(1 + gi)
                rd = reads(gi)
            else: a("s_waitcnt lgkmcnt(0)")
            def mem():
                if gi + LA < 9: issue(gi + LA)
            for _ in range(optval("RF", 0)):
                if rd: a(rd.pop(0))
            if role == "P" and gi < 7: mem()
            if gi > 0:
                b = BUF + 32 * ((gi - 1) & 1)
                z = "0" if gi == 1 else None
                mm = [(SQ, b, b, z), (SM, ONE, b, z), (SQ, b + 16, b + 16, None), (SM, ONE, b + 16, None), (CS, b + 8, ONE, z)]
                mm += [(ACC + 8 * mi + 4 * t, b + 16 * k2 + 8 + 4 * t, b + 16 * k2 + 4 * mi, z if k2 == 0 else None) for k2 in range(2) for t in range(2) for mi in range(2)]
                for n, (d, x, y, c) in enumerate(mm):
                    if rd: a(rd.pop(0))
                    a.mfma(d, x, y, c)
                    if gi == 9 and n == 5: a.nop(5)
                    if gi == 9 and n >= 5:
                        for _ in range(5):
                            if fin: a(fin.pop(0))
            for r in rd: a(r)
            if role == "Q": mem()
            if gi in (6, 7, 8): w2issue((2, 0, 1)[gi - 6])
            if gi == 8: a(f"s_load_dword s69, {s(P_DBG,2)}, 0")
        if role == "P": a("s_branch G_lj")
    a("G_lj:")
    for x in fin: a(x)
    a(f"ds_write_b128 v24, {v(CS,4)}")
    a(f"ds_write_b128 v26, {v(STA,4)}")
    a("s_waitcnt lgkmcnt(0)\ns_barrier")
    a.stamp(2 if "g1t" not in OPT else 10)
    if "g1t" in OPT: a.end()
    for t in range(2):
        for q in range(2): a(f"ds_read_b128 {v(CSA+8*t+4*q,4)}, v{28+t} offset:{64*q}")
    a(f"ds_read_b128 {v(STA+4,4)}, v27")
    a(f"s_mov_b32 s63, {W2M_OFF}\nv_min_u32 v31, 240, v25\nv_mov_b32 v192, 0\ns_cmp_eq_u32 s69, 0\ns_cselect_b32 s9, 0, s3\ns_cmp_lg_u32 s9, 7\ns_cbranch_scc1 G_w0")
    a("buffer_load_dwordx4 v[192:195], v25, s[56:59], s63 offen sc1\nbuffer_load_dwordx4 v[196:199], v25, s[56:59], s63 offen offset:1024 sc1\nbuffer_load_dwordx4 v[200:203], v31, s[56:59], s63 offen offset:2048 sc1")
    a("G_w0:")
    a("s_mov_b32 s100, 2\ns_cmp_lt_u32 s3, 4\ns_cbranch_scc1 G_t0\ns_cmp_ge_u32 s2, 128\ns_cbranch_scc1 G_t0\ns_mov_b32 s100, 0")
    conv.team_k(a, TB, 25, 5)
    a("G_t0:")
    a("s_cmp_lg_u32 s61, 0\ns_cbranch_scc1 G_ns")
    a(f"s_mov_b64 exec, 0xffff\nbuffer_store_dwordx4 {v(STA,4)}, v13, s[56:59], s68 offen sc1\ns_mov_b64 exec, -1")
    a("G_ns:")
    a(f"v_mov_b32 v{STA+8}, v{STA+2}\nv_mov_b32 v{STA+9}, v{STA+2}\nv_mov_b32 v{STA+10}, v{STA+3}\nv_mov_b32 v{STA+11}, v{STA+3}")
    a("s_waitcnt lgkmcnt(0)")
    for t in range(2):
        for e in range(0, 4, 2): a(f"v_pk_add_f32 {v(CSA+8*t+e,2)}, {v(CSA+8*t+e,2)}, {v(CSA+8*t+4+e,2)}")
    a(f"v_mov_b32 v{STA+4}, v{STA+6}\nv_mov_b32 v{STA+5}, v{STA+6}\nv_mov_b32 v{STA+6}, v{STA+7}")
    for mi in range(2):
        c = STA + 8 - 4 * mi
        regs = [ACC + 8 * mi + e for e in range(8)]
        for e in range(0, 8, 2): a(f"v_pk_fma_f32 {v(regs[e],2)}, {v(c,2)}, {v(CSA+8*(e>>2)+(e&3),2)}, {v(regs[e],2)}")
        for e in range(0, 8, 2): a(f"v_pk_mul_f32 {v(regs[e],2)}, {v(regs[e],2)}, {v(c+2,2)}")
        gelu_pk(a, regs, list(range(168, 176)), "v[160:161]", "v[162:163]", "v[164:165]")
        l1 = a.lab("GS"); l2 = a.lab("GT")
        a(f"s_cmp_lg_u32 s70, 0\ns_cbranch_scc1 {l1}")
        for e in range(4): a(f"v_cvt_pk_bf16_f32 v{176+4*mi+e}, v{regs[2*e]}, v{regs[2*e+1]}")
        a(f"s_branch {l2}\n{l1}:")
        for e in range(4): a(f"v_cvt_pk_bf16_f32 v{176+4*mi+(e^2)}, v{regs[2*e]}, v{regs[2*e+1]}")
        a(f"{l2}:")
        a(f"buffer_store_dwordx4 {v(176+4*mi,4)}, v25, s[56:59], s{65 if mi == 0 else 98} offen sc1")
    a.stamp(3)
    HB, AR, AC2 = 32, 104, 224
    a("v_lshlrev_b32 v2, 4, v1\nv_add_u32 v3, 4096, v2\nv_lshlrev_b32 v4, 2, v1")
    a("s_lshl_b32 s8, s60, 3\ns_add_u32 s8, s8, s3")
    a("v_and_b32 v11, 1, v1\nv_lshlrev_b32 v11, 6, v11\nv_add_u32 v11, v11, v18")
    a("v_add_u32 v28, 36864, v22\nv_add_u32 v29, 36864, v23")
    a("v_and_b32 v8, 15, v1\ns_lshl_b32 s10, s8, 4\nv_add_u32 v8, s10, v8\nv_lshlrev_b32 v9, 4, v18\ns_movk_i32 s13, 18432\nv_mov_b32 v10, 0x80000000")
    for gam, sh in enumerate((-1, 1, -2, 2)):
        a(f"v_add_u32 v5, {sh}, v8\nv_cmp_gt_u32 vcc, {S}, v5\nv_lshrrev_b32 v6, 4, v5\nv_mad_u32_u24 v6, v6, s13, v9\nv_and_b32 v5, 15, v5\nv_lshl_add_u32 v6, v5, 4, v6")
        a(f"v_cndmask_b32 v{24+gam}, v10, v6, vcc")
    a(f"s_mul_i32 s11, s8, 18432\ns_lshl_b32 s9, s61, 11\ns_add_u32 s11, s11, s9\ns_add_u32 s11, s11, {X1_OFF}")
    a(f"s_mul_i32 s6, s60, {FB_STRIDE}\ns_add_u32 s6, s6, {FH_OFF}\ns_lshl_b32 s10, s3, 8\ns_add_u32 s10, s10, {G1_AUX}\nv_add_u32 v13, s10, v13\ns_mov_b32 s14, {H_OFF}")
    a("ds_read_b64 v[18:19], v13")
    a("s_cmp_lg_u32 s69, 0\ns_cbranch_scc1 G_zk")
    a.zcheck(14, 9, False)
    a("G_zk:")
    G2E = "g2l" not in OPT
    if not G2E: a("s_waitcnt vmcnt(0)")
    def hsig():
        last_of(a, cHs, 8, "G_hs")
        a.sadd(6, 7)
        a("G_hs:")
        a.stamp(4)
    if not G2E: hsig()
    else: a("s_waitcnt vmcnt(2)")
    a("s_cmp_lg_u32 s3, 7\ns_cbranch_scc1 G_wm")
    a("s_mov_b32 s13, 0x20000")
    a("W2_m:")
    a("v_min3_u32 v6, v192, v196, v200\nv_cmp_eq_u32 vcc, 0, v6\ns_cbranch_vccz W2_n")
    a("buffer_load_dwordx4 v[192:195], v2, s[56:59], s63 offen sc1\nbuffer_load_dwordx4 v[196:199], v2, s[56:59], s63 offen offset:1024 sc1\nbuffer_load_dwordx4 v[200:203], v31, s[56:59], s63 offen offset:2048 sc1")
    a("s_waitcnt vmcnt(0)\ns_sleep 2\ns_sub_u32 s13, s13, 1\ns_cbranch_scc0 W2_m")
    a("W2_n:")
    a(f"ds_write_b128 v2, v[192:195] offset:{G2_WM}\nds_write_b128 v2, v[196:199] offset:{G2_WM+1024}\nds_write_b128 v31, v[200:203] offset:{G2_WM+2048}")
    a("s_waitcnt lgkmcnt(0)")
    a("G_wm:")
    if G2E:
        a("s_waitcnt vmcnt(0)")
        hsig()
    a("s_barrier")
    NA = 6
    def ard(ks):
        b = AR + 20 * (ks % NA)
        o = [f"ds_read_b128 {v(b,4)}, v11 offset:{G2_WM+128*ks}"]
        for t in range(4):
            for jh in range(2):
                off = ((ks * 2 + jh) * 2 + (t >> 1)) * 1024
                ad = 22 + (t & 1)
                if off >= 36864: off -= 36864; ad += 6
                o.append(f"ds_read_b64_tr_b16 {v(b+4+4*t+2*jh,2)}, v{ad} offset:{off}")
        return o
    for ks in range(NA):
        for r in ard(ks): a(r)
    for t in range(4): a(f"ds_read_b64 {v(244+2*t,2)}, v{20+(t&1)} offset:{8192*(t>>1)}")
    a("s_cmp_lg_u32 s3, 1\ns_cbranch_scc1 G2_hw")
    a.cpoll(6, 9, 48, 13, 1)
    a("G2_hw:")
    a("s_cmp_lg_u32 s100, 0\ns_cbranch_scc1 G_t1")
    a(f"s_add_u32 s7, s2, 448\ns_lshr_b32 s7, s7, 6\ns_lshl_b32 s7, s7, 7\ns_add_u32 s99, s7, {FKV_OFF+2*(FB_STRIDE-384)}")
    a("G_t1:")
    a(f"s_sub_u32 s7, s6, {FB_STRIDE}\ns_add_u32 s12, s6, {FB_STRIDE}\ns_cmp_eq_u32 s3, 0\ns_cselect_b32 s12, s7, s12")
    a("s_waitcnt lgkmcnt(0)\ns_barrier")
    a("s_add_u32 s7, s8, 1\ns_and_b32 s9, s7, 7\ns_cmp_ge_u32 s9, 2\ns_cbranch_scc1 G2_hg\ns_and_b32 s7, s7, 127\ns_cmp_lt_u32 s7, 2\ns_cbranch_scc1 G2_hg")
    a.cpoll(12, 9, 48, 13, 1)
    a("G2_hg:")
    a(f"s_cmp_lg_u32 s100, 0\ns_cbranch_scc1 G_t3\ns_load_dword s49, {s(P_WS,2)}, s99\nG_t3:")
    a.stamp(5)
    hl = []
    for ks in range(18):
        pre = "s_add_u32 s14, s14, 4096\n" if ks and ks % 4 == 0 else ""
        g0, g1_ = (2 * ks) // 9, (2 * ks + 1) // 9
        if g0 == g1_: hl.append((pre + f"buffer_load_dwordx4 {v(HB+4*ks,4)}, v{24+g0}, s[56:59], s14 offen offset:{(ks%4)*1024} sc1", 1))
        else: hl.append((pre + f"buffer_load_dwordx2 {v(HB+4*ks,2)}, v{24+g0}, s[56:59], s14 offen offset:{(ks%4)*1024} sc1\nbuffer_load_dwordx2 {v(HB+4*ks+2,2)}, v{24+g1_}, s[56:59], s14 offen offset:{(ks%4)*1024+8} sc1", 2))
    if 'hpl' in OPT: hl = [(x.replace(' sc1', ''), n) for x, n in hl]
    HD = optval("HD", 5)
    log2 = []
    def hissue(ks):
        a(hl[ks][0]); log2.extend(["x"] * (hl[ks][1] - 1) + [ks])
    for ks in range(HD): hissue(ks)
    for ks in range(18):
        lg = "" if ks < NA else f" lgkmcnt({min(15, 9*min(NA-1, 17-ks))})"
        a(f"s_waitcnt vmcnt({len(log2)-1-log2.index(ks)}){lg}")
        if ks + HD < 18: hissue(ks + HD)
        if ks == 1:
            a("s_cmp_lg_u32 s100, 0\ns_cbranch_scc1 G_t2\ns_waitcnt lgkmcnt(0)\ns_cmp_eq_u32 s49, 0\ns_cbranch_scc1 G_t2\ns_mov_b32 s100, 1")
            conv.team_kv(a, TB)
            a("G_t2:")
        rd = ard(ks + NA) if ks + NA < 18 else []
        b = AR + 20 * (ks % NA)
        for t in range(5):
            a.mfma(AC2 + 4 * t, b + 4 * t, HB + 4 * ks, "0" if ks == 0 else None)
            for _ in range(1 if t == 0 else 2):
                if rd: a(rd.pop(0))
    a.stamp(6)
    for e in range(8): a(f"v_lshlrev_b32 v{HB+2*e}, 16, v{244+e}\nv_and_b32 v{HB+2*e+1}, 0xffff0000, v{244+e}")
    a(f"v_add_f32 v9, v{AC2}, v{AC2+1}")
    a("v_sub_f32 v28, v19, v9\nv_sub_f32 v29, v19, v9\nv_mov_b32 v19, v18\nv_mov_b32 v10, 0\nv_mov_b32 v11, 0")
    for p in range(2):
        for e in range(0, 8, 2): a(f"v_pk_fma_f32 {v(HB+8*p+e,2)}, {v(HB+8*p+e,2)}, v[18:19], v[28:29]")
        for e in range(0, 8, 2): a(f"v_pk_add_f32 {v(HB+8*p+e,2)}, {v(HB+8*p+e,2)}, {v(AC2+4+8*p+e,2)}")
        for e in range(4): a(f"v_cvt_pk_bf16_f32 v{AR+4*p+e}, v{HB+8*p+2*e}, v{HB+8*p+2*e+1}")
        a(f"buffer_store_dwordx4 {v(AR+4*p,4)}, v2, s[56:59], s11 offen offset:{p*1024} sc1")
    for e in range(0, 16, 2): a(f"v_pk_fma_f32 v[10:11], {v(HB+e,2)}, {v(HB+e,2)}, v[10:11]")
    a("v_add_f32 v10, v10, v11")
    gsum(a, 10, 11)
    a(f"s_mul_i32 s10, s60, 9\ns_add_u32 s10, s10, s61\ns_lshl_b32 s10, s10, 9\ns_lshl_b32 s12, s3, 6\ns_add_u32 s10, s10, s12\ns_add_u32 s10, s10, {SS_OFF}")
    a(f"s_lshl_b32 s12, s8, 6\ns_add_u32 s12, s12, {MEAN_OFF}")
    a("s_mov_b64 exec, 0xffff")
    a("buffer_store_dword v10, v4, s[56:59], s10 offen sc1")
    a("s_cmp_lg_u32 s61, 0\ns_cbranch_scc1 G2_m")
    a("buffer_store_dword v9, v4, s[56:59], s12 offen sc1")
    a("G2_m:")
    a("s_mov_b64 exec, -1")
    a(f"s_sub_u32 s6, s6, {FH_OFF-FX_OFF}")
    consts(a)
    a("s_waitcnt vmcnt(0)")
    last_of(a, cG2, 8, "G_xs")
    a.sadd(6, 7)
    a("G_xs:")
    a.stamp(7)

def gen_stats(a):
    R = 32
    a("v_lshrrev_b32 v2, 2, v1\nv_and_b32 v3, 3, v1\nv_mul_u32_u24 v4, 1152, v2\nv_lshl_add_u32 v4, v3, 4, v4")
    a("s_mul_i32 s7, s6, 18432")
    a.srd(44, P_Q, ACT)
    for i in range(18): a(f"buffer_load_dwordx4 {v(R+4*i,4)}, v4, s[44:47], s7 offen offset:{64*i}")
    a("s_barrier")
    a("v_mov_b32 v8, 0x3f803f80")
    for r in range(4): a(f"v_mov_b32 v{20+r}, 0")
    for i in range(18):
        if i % 3 == 0: a(f"s_waitcnt vmcnt({15-i})")
        for d in range(4):
            a(f"v_dot2c_f32_bf16 v{20+(d&1)}, v{R+4*i+d}, v8\nv_dot2c_f32_bf16 v{22+(d&1)}, v{R+4*i+d}, v{R+4*i+d}")
    a.ldsadd(VC, V1, cG1)
    a("v_add_f32 v20, v20, v21\nv_add_f32 v22, v22, v23\ns_nop 1")
    for qp in ("[1,0,3,2]", "[2,3,0,1]"):
        a(f"v_add_f32_dpp v20, v20, v20 quad_perm:{qp} row_mask:0xf bank_mask:0xf")
        a(f"v_add_f32_dpp v22, v22, v22 quad_perm:{qp} row_mask:0xf bank_mask:0xf")
        a("s_nop 1")
    a(f"v_mul_f32 v26, {fh(-1.0/D)}, v20\nv_mul_f32 v22, {fh(1.0/D)}, v22")
    a("v_fma_f32 v22, -v26, v26, v22\nv_max_f32 v22, 0, v22")
    a(f"v_add_f32 v21, {fh(EPS)}, v22\nv_rsq_f32 v24, v21\ns_nop 0")
    a(f"v_mul_f32 v21, v24, v24\nv_fmaak_f32 v21, v21, v22, {fh(EPS)}\nv_rsq_f32 v21, v21")
    a("v_mul_f32 v25, v26, v24\nv_mul_f32 v27, v21, v24\nv_or_b32 v24, 1, v24")
    a(f"v_lshlrev_b32 v5, 4, v2\ns_lshl_b32 s7, s6, 8\ns_add_u32 s7, s7, {ST1_OFF}")
    a.zcheck(14, 9, False)
    a("s_mov_b32 exec_lo, 0x11111111\ns_mov_b32 exec_hi, 0x11111111")
    a("buffer_store_dwordx4 v[24:27], v5, s[56:59], s7 offen sc1")
    a("s_mov_b64 exec, -1")

def gen_colsum(a):
    R = 32
    a("s_mul_i32 s7, s6, 57\ns_lshr_b32 s7, s7, 9\ns_mul_i32 s8, s7, 9\ns_sub_u32 s8, s6, s8")
    a("v_lshrrev_b32 v2, 3, v1\nv_and_b32 v3, 7, v1\nv_mul_u32_u24 v4, 1152, v2\nv_lshl_add_u32 v4, v3, 4, v4")
    a("s_mul_i32 s10, s7, 165888\ns_lshl_b32 s11, s8, 7\ns_add_u32 s10, s10, s11")
    a.srd(44, P_W1, D * D * 2)
    for i in range(18):
        a(f"buffer_load_dwordx4 {v(R+4*i,4)}, v4, s[44:47], s10 offen\ns_add_u32 s10, s10, 9216")
    a("s_barrier")
    for i in range(18):
        if i % 3 == 0: a(f"s_waitcnt vmcnt({15-i})")
        d = 20 if i == 0 else 104
        for e in range(4): a(f"v_lshlrev_b32 v{d+2*e}, 16, v{R+4*i+e}\nv_and_b32 v{d+2*e+1}, 0xffff0000, v{R+4*i+e}")
        if i:
            for e in range(4): a(f"v_pk_add_f32 {v(20+2*e,2)}, {v(20+2*e,2)}, {v(104+2*e,2)}")
    a.ldsadd(VC, V1, cG1)
    for e in range(8): a(f"v_add_f32_dpp v{20+e}, v{20+e}, v{20+e} row_ror:8 row_mask:0xf bank_mask:0xf")
    for e in range(8): gsum(a, 20 + e, 5)
    for e in range(8): a(f"v_or_b32 v{20+e}, 1, v{20+e}")
    a(f"v_lshlrev_b32 v5, 5, v1\ns_mul_i32 s7, s7, 2304\ns_lshl_b32 s8, s8, 8\ns_add_u32 s7, s7, s8\ns_add_u32 s7, s7, {CSUM_OFF}")
    a.zcheck(14, 9, False)
    a("s_mov_b64 exec, 0xff")
    a("buffer_store_dwordx4 v[20:23], v5, s[56:59], s7 offen sc1\nbuffer_store_dwordx4 v[24:27], v5, s[56:59], s7 offen offset:16 sc1")
    a("s_mov_b64 exec, -1")

def consts(a):
    if "nf1" in OPT: a("s_mov_b32 s4, s96\ns_mov_b32 s5, s97")
    elif "nf2" in OPT:
        a("s_and_b32 s4, s96, 3\ns_lshl_b32 s4, s4, 1\ns_and_b32 s7, s97, 1\ns_add_u32 s4, s4, s7\ns_lshr_b32 s5, s96, 2\ns_lshl_b32 s5, s5, 4\ns_lshr_b32 s7, s97, 1\ns_add_u32 s5, s5, s7")
    else:
        a("s_and_b32 s4, s96, 1\ns_lshl_b32 s4, s4, 2\ns_and_b32 s7, s97, 3\ns_add_u32 s4, s4, s7\ns_lshr_b32 s5, s96, 1\ns_lshl_b32 s5, s5, 3\ns_lshr_b32 s7, s97, 2\ns_add_u32 s5, s5, s7")
    km.consts2(a)

def gen_f(a, stP):
    a("s_cmp_lg_u32 s3, 0\ns_cbranch_scc1 F_pf")
    a("s_mov_b64 exec, 0xffff")
    a(f"v_lshl_add_u32 v7, v1, 2, v{VC}\nv_mov_b32 v8, 0\nds_write2_b32 v7, v8, v8 offset0:0 offset1:16")
    a("s_mov_b64 exec, -1")
    a("F_pf:")
    a(f"s_mul_i32 s61, s3, {CV_SZ}\ns_lshl_b32 s7, s3, 12\ns_add_u32 s7, s7, {FSCR-4*4096}\ns_cmp_ge_u32 s3, 4\ns_cselect_b32 s61, s7, s61")
    a("s_sub_u32 s65, 111, s60\ns_cmp_lt_u32 s3, 4\ns_cselect_b32 s65, s60, s65" if "rev" in OPT else "s_mov_b32 s65, s60")
    a("s_mul_i32 s12, s3, 112\ns_add_u32 s12, s12, s65\ns_mov_b32 s13, s61")
    a("s_waitcnt lgkmcnt(0)")
    a.srd(56, P_WS, WS_BYTES)
    a("s_cmp_eq_u32 s99, 1\ns_cbranch_scc1 F_pt\ns_barrier")
    if optval("FDLY", 0): a(f"s_sleep {optval('FDLY', 0)}")
    a("s_cmp_ge_u32 s12, 306\ns_cbranch_scc1 F_pt")
    a("s_setprio 2\ns_cmp_lt_u32 s12, 288\ns_cbranch_scc1 F_kv")
    a("s_sub_u32 s6, s12, 288")
    km.gen_meantile(a)
    a.ldsadd(VC, V1, cKV)
    a("s_branch F_done")
    a("F_kv:\ns_mov_b32 s6, s12")
    if "nobulk" in OPT: a("s_sleep 100\ns_branch F_end")
    st = a.stamps; a.stamps = False
    km.gen_kv(a)
    a.stamps = st
    a.stamp(5)
    a(f"s_mul_i32 s11, s8, {FB_STRIDE}\ns_add_u32 s11, s11, {FKC_OFF}")
    a("s_branch F_sig")
    a("F_pt:")
    a(f"s_mov_b32 s64, 0\ns_cmp_lt_u32 s12, {optval('FUN', 450)}\ns_cbranch_scc1 F_job")
    a("s_cmp_ge_u32 s12, 738\ns_cbranch_scc1 F_r2")
    a.ldswait(VC, 5, 7, optval('FJW', 4), cKV, sleep=4)
    a("F_job:")
    a(f"s_setprio {optval('JP', 1)}")
    a("s_sub_u32 s12, s12, 306\ns_and_b32 s62, s12, 7\ns_lshr_b32 s12, s12, 3\ns_mov_b32 s9, s61")
    n0 = len(a.L)
    km.job_setup(a, "JS")
    a.L[n0:] = [x.replace("s96", "s62") for x in a.L[n0:]]
    gen_pretile(a, 128)
    a(f"s_mov_b32 s6, s98\ns_add_u32 s11, s6, {FCNT}")
    a("F_sig:")
    a.zcheck(14, 13)
    a.ldsadd(VC, V1, cKV)
    a.stamp(6)
    a.sarrive(6, "s100", 8, 11)
    a("F_done:")
    a.stamp(2)
    a("s_cmp_lt_u32 s3, 4\ns_cbranch_scc1 F_cv")
    a("s_cmp_lg_u32 s64, 0\ns_cbranch_scc1 F_end")
    a("F_r2:")
    R2 = os.environ.get("R2", "kv6")
    if R2 == "kv6": a.ldswait(VC, 5, 7, 6, cKV, sleep=4)
    if R2 == "cv": a.ldswait(VC, 5, 7, 4, cT1, sleep=4)
    if R2 == "cv2": a.ldswait(VC, 5, 7, 4, cT2, sleep=4)
    a("s_mov_b32 s64, 1\ns_sub_u32 s12, 7, s3\ns_mul_i32 s12, s12, 112\ns_add_u32 s12, s12, s65\ns_add_u32 s12, s12, 738\ns_cmp_lt_u32 s12, 1170\ns_cbranch_scc1 F_job")
    a("F_end:")
    if "g1t" in OPT: a.end()
    a("v_lshlrev_b32 v2, 4, v1\nv_add_u32 v3, 4096, v2\nv_lshlrev_b32 v4, 2, v1")
    consts(a)
    a("s_branch K6_q")
    a("F_cv:")
    if "g1t" in OPT: a.end()
    a("v_lshlrev_b32 v2, 4, v1\nv_add_u32 v3, 4096, v2\nv_lshlrev_b32 v4, 2, v1")
    consts(a)
    a("s_lshl_b32 s6, s60, 2\ns_add_u32 s6, s6, s3\ns_mov_b32 s7, s61\ns_setprio 3")
    def wait_kv():
        a("s_cmp_lg_u32 s3, 0\ns_cbranch_scc1 F_kw")
        conv.kv_flag_addr(a, 8)
        a.cpoll(8, 1, 44, 13, 2)
        a.ldsadd(VC, V1, cXs)
        a("F_kw:")
        a.ldswait(VC, 5, 8, 1, cXs)
        a.stamp(3)
    def gate(pre):
        if pre == 2:
            a.ldsadd(VC, V1, cT1)
            return
        if not pre: a.ldsadd(VC, V1, cT2)
        if pre:
            a(f"s_add_u32 s55, s70, 128\ns_load_dword s53, {s(P_WS,2)}, s55")
            return
        a("s_cmp_lg_u32 s53, 0\ns_cbranch_scc1 F_w3")
        a.cpoll(55, 1, 44, 13, 8)
        a("F_w3:")
    conv.single(a, wait_kv, gate, stP.issue)
    assert stP.issued == 16
    a.stamp(4)
    a("v_mov_b32 v5, 2\ns_mov_b32 s98, s6")
    a.ldsadd(VC, 5, cG2)
    a("s_branch K6_p2")

def gen_k6(a, name):
    fine = "fine" in OPT
    a(f".p2align 8\n{name}:\nK6_start:")
    a("s_cmp_ge_u32 s2, 256\ns_cbranch_scc1 K6_end")
    a.stamp_init()
    if "skew" in OPT:
        a("s_mul_i32 s4, s2, 5\ns_and_b32 s4, s4, 7\nSK_l:\ns_sub_u32 s4, s4, 1\ns_cbranch_scc1 SK_d\ns_sleep 12\ns_branch SK_l\nSK_d:")
    a.kernargs()
    a("v_lshrrev_b32 v2, 6, v0\nv_and_b32 v1, 63, v0")
    a("v_readfirstlane_b32 s3, v2")
    a("s_and_b32 s96, s2, 7\ns_lshr_b32 s97, s2, 3\ns_mov_b32 s101, 1\ns_mov_b32 s99, 0")
    a(f"v_mov_b32 v{VC}, {CNT}\nv_mov_b32 v{V1}, 1")
    a("s_sub_u32 s60, s2, 144\ns_cmp_lt_u32 s97, 18\ns_cbranch_scc1 K6_g")
    if "now12" not in OPT:
        a("s_cmp_lg_u32 s3, 5\ns_cbranch_scc1 K6_n5\ns_mul_i32 s8, s60, 6016\nv_min_u32 v2, 46, v1\nv_lshlrev_b32 v2, 7, v2\nv_add_u32 v2, s8, v2\nv_min_u32 v2, 663424, v2\ns_waitcnt lgkmcnt(0)")
        a(f"global_load_dword v30, v2, {s(P_W1,2)}\nglobal_load_dword v31, v2, {s(P_W2,2)}\ns_branch K6_f\nK6_n5:")
    a("s_cmp_lt_u32 s3, 6\ns_cbranch_scc1 K6_f\ns_cmp_eq_u32 s3, 7\ns_cbranch_scc1 K6_pf")
    a(f"s_sub_u32 s11, 255, s2\ns_cmp_ge_u32 s11, {FLAG_WAVES}\ns_cbranch_scc1 K6_f")
    a(f"v_lshrrev_b32 v7, 5, v1\nv_mul_u32_u24 v7, {FB_STRIDE-512}, v7\nv_lshl_add_u32 v7, v1, 4, v7\nv_lshlrev_b32 v6, 4, v1")
    a("v_mov_b32 v8, 0\nv_mov_b32 v9, 0\nv_mov_b32 v10, 0\nv_mov_b32 v11, 0")
    a(f"s_lshl_b32 s8, s11, 12\ns_add_u32 s8, s8, {W2M_OFF}\ns_mul_i32 s9, s11, {4*FB_STRIDE}\ns_add_u32 s9, s9, {FLAG_OFF}\ns_add_u32 s10, s9, {2*FB_STRIDE}")
    a("s_waitcnt lgkmcnt(0)")
    a.srd(56, P_WS, WS_BYTES)
    for i in range(4): a(f"buffer_store_dwordx4 v[8:11], v6, s[56:59], s8 offen offset:{1024*i} sc1")
    a("buffer_store_dwordx4 v[8:11], v7, s[56:59], s9 offen sc1\nbuffer_store_dwordx4 v[8:11], v7, s[56:59], s10 offen sc1")
    a("s_barrier\ns_mov_b32 s99, 1\ns_mov_b32 s8, 1\ns_waitcnt vmcnt(0)")
    a(f"s_atomic_add s8, {s(P_DBG,2)}, 128 glc\ns_waitcnt lgkmcnt(0)\ns_cmp_lg_u32 s8, {FLAG_WAVES-1}\ns_cbranch_scc1 K6_f")
    a(f"s_atomic_add s101, {s(P_DBG,2)}, 0")
    a.stamp(1)
    a("s_branch K6_f")
    a("K6_pf:")
    a("s_getpc_b64 s[8:9]\nF_pc:")
    a("s_sub_u32 s10, s97, 18\nv_min_u32 v2, 39, v1\nv_mul_u32_u24 v2, 14, v2\nv_add_lshl_u32 v2, s10, v2, 7\nv_min_u32 v2, CODE_END-F_pc-4, v2")
    a("global_load_dword v31, v2, s[8:9]")
    a("s_branch K6_f")
    a("K6_g:")
    a("s_cmp_ge_u32 s97, 9\ns_cselect_b32 s62, 1, 0\ns_mul_i32 s61, s62, 9\ns_sub_u32 s61, s97, s61\ns_lshl_b32 s60, s96, 1\ns_add_u32 s60, s60, s62")
    A3 = [(2, 0), (2, 1024), (2, 2048)]
    stP = Stream(a, [(64, A3, " sc1"), (65, A3, " sc1"), (66, [(tail.VT + i, 0) for i in range(3)], " sc1"), (68, [(tail.VT + 3, 0)], " sc1")])
    stQ = Stream(a, [(64, A3, " sc1"), (66, [(tail.VT + i, 0) for i in range(5)], " sc1")])
    gen_g(a)
    a("s_cmp_lt_u32 s3, 4\ns_cbranch_scc1 K6_p")
    a("s_cmp_ge_u32 s2, 128\ns_cbranch_scc1 K6_q")
    a("s_setprio 3\ns_cmp_lg_u32 s100, 0\ns_cbranch_scc1 G_kw")
    a.cpoll(99, 1, 44, 13, 8)
    conv.team_kv(a, TB)
    a("G_kw:")
    a(f"s_add_u32 s6, s2, 448\ns_add_u32 s52, s70, 256\ns_load_dword s53, {s(P_WS,2)}, s52")
    def tgate():
        a("s_cmp_lg_u32 s53, 0\ns_cbranch_scc1 G_k2")
        a.cpoll(52, 1, 53, 13, 8)
        a("G_k2:")
    conv.team(a, TB, TB + 21504, cT1, cT2, cT3, tgate, stQ.issue)
    assert stQ.issued == 16
    a.ldsadd(VC, V1, cSide)
    a.stamp(8 if not fine else 2)
    a("s_waitcnt vmcnt(0)")
    last_of(a, cU, 4, "K6_q2")
    a.setflag("s6", 14)
    a("s_branch K6_q2")
    a("K6_f:")
    gen_f(a, stP)
    def addrs():
        a(f"v_mov_b32 v6, v2\nv_add_u32 v7, 36864, v2\nv_add_u32 v8, {ML_H}, v2\nv_add_u32 v9, {ML_H+36864}, v2")
        h_addr(a, 71, 10, 12)
    def rk():
        a(f"v_and_b32 v5, 15, v1\nv_lshlrev_b32 v5, 4, v5\nv_add_u32 v5, {RM}, v5")
        for m in range(4): a(f"ds_read_b32 v{GT+m}, v5 offset:{256*m}")
        a("s_waitcnt lgkmcnt(0)")
        for m in range(4):
            r = GT + m
            a(f"v_mul_f32 v{KC+2*m}, {fh(GC0)}, v{r}\nv_mul_f32 v{r}, v{r}, v{r}\nv_mul_f32 v{r}, {fh(0.044715)}, v{r}\nv_mul_f32 v{KC+2*m+1}, v{r}, v{KC+2*m}")
    a("K6_p:")
    a("s_cmp_lg_u32 s3, 1\ns_cbranch_scc1 KB_w3")
    a("s_add_u32 s6, s70, 128")
    a.dpoll(6, 48, 13, 8)
    a.ldsadd(VC, V1, cW3a)
    a("KB_w3:")
    a.ldswait(VC, 5, 7, 1, cW3a)
    paced(a, Stream(a, stP.segs), 16, optval("PPACE", 8))
    a("s_mov_b32 s98, 0")
    a("K6_p2:")
    a("s_setprio 2")
    PRE = NS
    for i in range(NS - 16): stP.issue()
    addrs()
    a(f"s_lshr_b32 s11, s5, 1\ns_mul_i32 s6, s11, {FB_STRIDE}\ns_add_u32 s6, s6, {FX_OFF}")
    a(f"s_mul_i32 s9, s3, 18432\ns_mov_b32 m0, s9\ns_mul_i32 s7, s5, 73728\ns_add_u32 s7, s7, s9\ns_add_u32 s7, s7, {X1_OFF}")
    a.stamp(8)
    a("s_cmp_lg_u32 s3, 0\ns_cbranch_scc1 KB_xw")
    a.cpoll(6, 9, 44, 13, optval('FXS', 1))
    a.ldswait(VC, 5, 8, 8, cG2)
    a.ldsadd(VC, V1, cFX)
    a("s_branch KB_xg")
    a("KB_xw:")
    a.ldswait(VC, 5, 8, 1, cFX)
    a("KB_xg:")
    a.stamp(9)
    def xdma(i):
        if i and i % 4 == 0: a("s_add_u32 m0, m0, 4096\ns_add_u32 s7, s7, 4096")
        a(f"buffer_load_dwordx4 v2, s[56:59], s7 offen offset:{(i%4)*1024} sc1 lds")
        stP.other(f"x{i}")
    XP = optval("XP", 6)
    for i in range(XP): xdma(i)
    for i in range(NS - PRE): stP.issue()
    late = [(lambda i=i: xdma(i)) for i in range(XP, 18)]
    def stat(ins, tag="x"):
        a(ins); stP.other(tag)
    for i in range(optval("XE", 12)): late.pop(0)()
    a(f"s_waitcnt vmcnt({stP.younger(f'x{XP-1}')})")
    a("s_cmp_eq_u32 s98, 0\ns_cbranch_scc1 KB_fy")
    a.setflag("s98", 14)
    a("KB_fy:")
    a.subbar(VC, 5, 10, 4, off=cX1)
    a.stamp(10 if not fine else 1)
    def xhook(ks, i):
        if i in (0, 4, 8, 10, 11, 3) and late: late.pop(0)()
    mphase(a, stP, 0, 6, 0, XP, prio=2, hook=xhook)
    assert not late
    if "s1" in OPT: a.stamp(8)
    a(f"s_waitcnt vmcnt({stP.younger('x17')})")
    if "s1" in OPT: a.stamp(9)
    a.subbar(VC, 5, 7, 4, off=cX2)
    kw = 18 - (NS + 2) // 3
    def w3hook(ks, i):
        if ks == kw - 1 and i == 10: a.ldswait(VC, 5, 7, 1, cW3)
    mphase(a, stP, 0, 6, XP, 18, first=False, prio=2, hook=w3hook)
    if fine: a.stamp(2)
    a.ldswait(VC, 5, 7, 5, cSide)
    rk()
    def pthook(i):
        if "ptouch" in OPT and i in (0, 2, 4):
            a(f"s_lshl_b32 s6, s4, 5\ns_add_u32 s6, s6, s5\ns_mul_i32 s6, s6, 73728\ns_mul_i32 s7, s3, 18432\ns_add_u32 s6, s6, s7\ns_add_u32 s6, s6, {PART_OFF+3072*i}")
            a("v_min_u32 v14, 47, v1\nv_lshlrev_b32 v14, 7, v14\ns_setprio 3\nbuffer_load_dword v18, v14, s[56:59], s6 offen sc1\ns_setprio 0"); stP.other()
    gphase(a, 10, 12, pthook)
    a.ldsadd(VC, V1, cH1)
    if fine: a.stamp(3)
    a("s_add_u32 s71, s71, 24")
    h_addr(a, 71, 10, 12)
    tail.consts_b(a)
    def w4hook(ks, i):
        if ks == kw - 1 and i == 10: a.ldswait(VC, 5, 7, 1, cW4)
    mphase(a, stP, 1, 6, prio=1, hook=w4hook)
    if fine: a.stamp(4)
    a.ldsadd(VC, V1, cU2)
    def sthook(i):
        if i == 0 and "w4t" in OPT:
            a("v_bfe_u32 v5, v1, 3, 2\nv_mov_b32 v14, s44")
            for t in range(1, 4): a(f"v_cmp_eq_u32 vcc, {t}, v5\nv_mov_b32 v15, s{44+t}\ns_nop 0\nv_cndmask_b32 v14, v14, v15, vcc")
            a("v_and_b32 v5, 7, v1\nv_lshl_add_u32 v14, v5, 7, v14\nv_lshrrev_b32 v5, 5, v1\nv_mul_u32_u24 v5, 36864, v5\nv_add_u32 v14, v14, v5")
            a("s_and_b32 s6, s5, 7\ns_add_u32 s6, s6, 1\ns_mul_i32 s6, s6, 73728\ns_add_u32 s6, s6, s68")
            a("s_setprio 3\nbuffer_load_dword v18, v14, s[56:59], s6 offen sc1\ns_setprio 0"); stP.other()
        if i == optval("SGI", 0):
            a.ldswait(VC, 5, 7, 4, cU2)
            a.ldswait(VC, 5, 7, 8, cH1)
            a("s_setprio 3")
            stage_x(a)
            stage_y(a, True)
            a("s_setprio 0")
            for j in range(6): stP.other()
    gphase(a, 10, 12, sthook)
    a.ldsadd(VC, V1, cH2)
    a("s_waitcnt vmcnt(0)")
    a.ldsadd(VC, V1, cA)
    a.ldswait(VC, 5, 7, 4, cH2)
    if fine: a.stamp(5)
    PF = 'pfirst' in OPT or 'qfin' not in OPT
    mphase(a, stP, 2, 8, prio=(2 if PF else None))
    if PF: a('s_setprio 3')
    if fine: a.stamp(6)
    tail.stores(a, 3, stP.other)
    tail.ex_base(a, 8)
    a(f"v_add_u32 v10, s8, v2\ns_lshl_b32 s6, s3, 2\nv_add_u32 v11, s6, v{VC}")
    if PF:
        a("s_waitcnt vmcnt(0)")
        tail.flags(a, 3); stP.other()
    def hook(ks, i):
        if not PF and ks == optval("EFLAG", 12) and i == 0:
            a("s_waitcnt vmcnt(0)")
            tail.flags(a, 3); stP.other()
    mphase(a, stP, 3, 8, acc=MACC + 64, hook=hook, bufs=[BF, BF + 16, MACC, MACC + 16], prio=optval("P2P", 0 if PF else 1))
    if fine: a.stamp(7)
    if "qfin" not in OPT:
        a("s_setprio 2")
        a.ldswait(VC, 5, 7, 4, cA)
        st = a.stamps; a.stamps = st and fine
        tail.final(a, cOwn, None, "P", MACC + 64)
        a.stamps = st
    else:
        a.nop(8)
        for i in range(4): a(f"ds_write_b128 v10, {v(MACC+64+4*i,4)} offset:{1024*i}")
        a.ldsadd(11, V1, cOwn)
    a.end()
    a("K6_q:")
    a("s_setprio 0")
    a.stamp(8 if not fine else 2)
    a.ldsadd(VC, V1, cSide)
    a("s_cmp_lg_u32 s3, 7\ns_cbranch_scc1 KB_q3")
    a("s_add_u32 s8, s70, 256")
    a.dpoll(8, 44, 13, 8)
    a.ldsadd(VC, V1, cT0)
    a("KB_q3:")
    a.ldswait(VC, 5, 7, 1, cT0, sleep=2)
    QW = optval("QRW", -1)
    if QW >= 0: a.ldswait(VC, 5, 7, 4, QW, sleep=2)
    paced(a, Stream(a, stQ.segs), 16, optval("QPACE", 4))
    a("K6_q2:")
    a("s_setprio 0")
    for i in range(NS - 16): stQ.issue()
    a.stamp(9 if not fine else 3)
    addrs()
    a("s_cmp_lg_u32 s3, 5\ns_cbranch_scc1 KB_w3c\ns_add_u32 s8, s70, 384")
    a.dpoll(8, 52, 13, 8)
    a.ldsadd(VC, V1, cW3)
    a("KB_w3c:")
    a("s_cmp_lg_u32 s3, 6\ns_cbranch_scc1 KB_rs")
    a.ldswait(VC, 5, 7, 1, cFX)
    a(f"s_lshr_b32 s11, s5, 1\ns_mul_i32 s6, s11, 4608\ns_and_b32 s8, s5, 1\ns_lshl_b32 s8, s8, 8\ns_add_u32 s6, s6, s8\ns_add_u32 s6, s6, {SS_OFF}\ns_add_u32 s11, s6, 4096")
    a(f"s_lshl_b32 s8, s5, 8\ns_add_u32 s8, s8, {MEAN_OFF}\ns_lshl_b32 s9, s5, 10\ns_add_u32 s9, s9, {ST1_OFF}\ns_setprio 3")
    for i in range(8): a(f"buffer_load_dword v{GT+i}, v4, s[56:59], s6 offen offset:{512*i} sc1")
    a(f"buffer_load_dword v{GT+8}, v4, s[56:59], s11 offen sc1\nbuffer_load_dword v{GT+13}, v4, s[56:59], s8 offen sc1\nbuffer_load_dwordx2 {v(GT+14,2)}, v2, s[56:59], s9 offen sc1")
    a("s_waitcnt vmcnt(0)")
    for i in range(1, 9): a(f"v_add_f32 v{GT}, v{GT}, v{GT+i}")
    a(f"v_mov_b32 v{GT+1}, {fh(1.0/D)}\nv_fmaak_f32 v{GT}, v{GT+1}, v{GT}, {fh(EPS)}")
    a(f"v_rsq_f32 v{GT+12}, v{GT}")
    a(f"v_add_u32 v5, {RM}, v2\ns_nop 0")
    a(f"ds_write_b128 v5, {v(GT+12,4)}")
    a.ldsadd(VC, V1, cSide)
    a("KB_rs:")
    tail.consts_b(a)
    a.ldswait(VC, 5, 7, 4, cX2)
    def qhook(ks, i):
        if ks == kw - 4 and i == 10:
            a(f"s_cmp_lg_u32 s3, 7\ns_cbranch_scc1 KB_q2a\ns_load_dword s53, {s(P_WS,2)}, s70\nKB_q2a:")
        if ks == kw - 3 and i == 10:
            a("s_cmp_lg_u32 s3, 7\ns_cbranch_scc1 KB_q2c\ns_cmp_lg_u32 s53, 0\ns_cbranch_scc1 KB_q2b")
            a.cpoll(70, 1, 53, 13, 8)
            a("KB_q2b:")
            a.ldsadd(VC, V1, cW4)
            a("KB_q2c:")
        if ks == kw - 1 and i == 10: a.ldswait(VC, 5, 7, 1, cW4)
    mphase(a, stQ, 0, 6, prio=2, hook=qhook)
    a.ldswait(VC, 5, 7, 5, cSide)
    if fine: a.stamp(4)
    rk()
    def yhook(i):
        ld = "buffer_load_dword v18, v14, s[56:59], s8 offen sc1\nbuffer_load_dword v19, v14, s[56:59], s8 offen offset:1280 sc1"
        if i == 0:
            a(f"s_mul_i32 s8, s4, 9\ns_lshr_b32 s8, s8, 1\ns_lshl_b32 s8, s8, 9\ns_add_u32 s8, s8, {FYW_OFF}\nv_min_u32 v14, 39, v1\nv_lshlrev_b32 v14, 5, v14")
            a(f"s_cmp_lg_u32 s3, 7\ns_cbranch_scc1 KB_y0\n{ld}\nKB_y0:")
        if i == 4:
            a("s_cmp_lg_u32 s3, 7\ns_cbranch_scc1 KB_ys\ns_mov_b32 s13, 0x20000\nKB_y1:")
            a("s_waitcnt vmcnt(0)\nv_and_b32 v18, v18, v19\nv_cmp_ne_u32 vcc, 1, v18\ns_cbranch_vccz KB_ys")
            a(f"s_sleep 16\n{ld}\ns_sub_u32 s13, s13, 1\ns_cbranch_scc0 KB_y1")
            a("KB_ys:")
    gphase(a, 10, 12, yhook)
    a.subbar(VC, 5, 7, 8, off=cH1)
    if fine: a.stamp(5)
    mphase(a, stQ, 1, 8, 0, 12, prio=1)
    a.ldswait(VC, 5, 7, 4, cH2)
    if fine: a.stamp(7)
    mphase(a, stQ, 1, 8, 12, 18, first=False, prio=1)
    a(f"s_setprio {optval('QT', 1)}")
    a.stamp(10)
    tail.stores(a, 5)
    a.ldswait(VC, 5, 7, 4, cA)
    def mid():
        a("s_waitcnt vmcnt(0)")
        tail.flags(a, 5)
        a(f"s_setprio {optval('QF', 1)}")
    st = a.stamps; a.stamps = st and fine
    if "qfin" not in OPT:
        mid()
        a.stamp(1)
        a("s_and_b32 s6, s4, 1\ns_cmp_lt_u32 s3, 6\ns_cselect_b32 s6, s6, 0\ns_cmp_eq_u32 s6, 0\ns_cbranch_scc1 K6_qe")
        tail.final(a, cOwn, None, "Q")
        a("K6_qe:")
    else: tail.final(a, cOwn, mid)
    a.stamps = st
    a.end()
    a("K6_end:")
    a("s_endpgm")
```

```python
from common import *
from kb4 import VC, V1
FA, FB, ACC = 96, 160, 224
KF = 4 * 4160

def setup(a):
    a("s_lshl_b32 s8, s6, 1\ns_and_b32 s8, s8, 0xfffffffc")
    a(f"s_load_dword s15, {s(P_SSMD,2)}, s8")
    a("v_lshlrev_b32 v5, 3, v1\nv_add_u32 v5, s7, v5\nv_mov_b32 v18, 0\nv_mov_b32 v19, 0")
    a(f"ds_write_b64 v5, v[18:19] offset:{KF}")
    a("v_and_b32 v6, 15, v1\nv_lshrrev_b32 v7, 4, v1")
    a("v_sub_u32 v8, 3, v6\nv_and_b32 v8, 3, v8\nv_mul_u32_u24 v8, 4160, v8")
    a("v_and_b32 v9, 12, v6\nv_lshlrev_b32 v9, 1, v9\nv_sub_u32 v8, v8, v9")
    a("v_lshlrev_b32 v9, 4, v7\nv_sub_u32 v8, v8, v9")
    a(f"v_add_u32 v8, {4104-3584}, v8\nv_add_u32 v8, s7, v8")
    a("v_lshlrev_b32 v10, 5, v6\nv_sub_u32 v10, v10, v9")
    a(f"v_add_u32 v10, {KF+512+16}, v10\nv_add_u32 v10, s7, v10")
    a("v_add_u32 v11, s7, v2")
    a("v_min_u32 v12, 16, v2\nv_add_u32 v12, s7, v12\nv_add_u32 v12, 4096, v12")
    a("v_lshlrev_b32 v20, 5, v6\nv_lshl_add_u32 v20, v7, 3, v20")
    a(f"v_sub_u32 v21, {4088-3584}, v20\nv_add_u32 v21, s7, v21")
    for r in range(32): a(f"v_mov_b32 v{ACC+r}, 0")

def build(a, chunks):
    n = len(chunks)
    for c, (ad, o) in enumerate(chunks):
        b = FA + 12 * c
        a(f"ds_read_b128 {v(b,4)}, v{ad} offset:{o}")
        a(f"ds_read_b128 {v(b+4,4)}, v{ad} offset:{o+2*4160}")
        a(f"ds_read_b64 {v(b+8,2)}, v{ad} offset:{o+16}")
    for c, (ad, o) in enumerate(chunks):
        b = FA + 12 * c; d = FB + 8 * c
        a(f"s_waitcnt lgkmcnt({3*(n-1)-c})")
        for e in range(4): a(f"v_alignbit_b32 v{d+e}, v{b+4+e}, v{b+e}, 16")
        for e in range(4): a(f"v_alignbit_b32 v{d+4+e}, v{b+2+e if e < 2 else b+6+e}, v{b+4+e}, 16")
        a(f"ds_write_b128 v{ad}, {v(d,4)} offset:{o+4160}")
        a(f"ds_write_b128 v{ad}, {v(d+4,4)} offset:{o+3*4160}")

def reads(st):
    o = []
    for m in range(8):
        o.append(f"ds_read_b128 {v(FB+32*st+4*m,4)}, v10 offset:{512*m}")
        o.append(f"ds_read_b64 {v(FA+32*st+4*m,2)}, v8 offset:{512*(7-m)}")
        o.append(f"ds_read_b64 {v(FA+32*st+4*m+2,2)}, v8 offset:{512*(7-m)+8}")
    return o
def _rr():
    left = {i: list(range(i + 1)) for i in range(8)}
    out = []
    while any(left.values()):
        rec = [i for i, _ in out[-3:]]
        cand = sorted([i for i in left if left[i]], key=lambda i: (i in rec, -len(left[i])))
        i = cand[0]
        out.append((i, left[i].pop(0)))
    return out
ORDER = _rr() if "rr" in OPT else sorted([(i, m) for i in range(8) for m in range(i + 1)], key=lambda im: (max(im[1], im[0] - im[1]), im[1], im[0]))

def body(a, extra=None, last=False, step=1):
    for st in range(2):
        a("v_subrev_u32 v8, 64, v8\nv_subrev_u32 v10, 64, v10")
        a("s_waitcnt lgkmcnt(0)")
        rd = reads(1 - st) if not (last and st == 1) else []
        for n, (i, m) in enumerate(ORDER):
            a.mfma(ACC + 4 * i, FA + 32 * st + 4 * m, FB + 32 * st + 4 * (i - m))
            if n < len(rd): a(rd[n])
            if extra and n >= 24 and ((n < 32) if step == 1 else (n % 3 == 0)): extra()

def dval(a):
    a("s_lshl_b32 s13, s15, 16\ns_and_b32 s14, s15, 0xffff0000\ns_bitcmp1_b32 s6, 0\ns_cselect_b32 s13, s14, s13")

def out_tile(a, acc, kv, pk, off):
    T = 22
    a(f"v_and_b32 v{T}, 0xffff0000, v{kv+1}\nv_lshlrev_b32 v{T+1}, 16, v{kv+1}")
    a(f"v_and_b32 v{T+2}, 0xffff0000, v{kv}\nv_lshlrev_b32 v{T+3}, 16, v{kv}")
    for r in range(4): a(f"v_fmac_f32 v{acc+r}, s13, v{T+r}")
    a(f"v_cvt_pk_bf16_f32 v{pk}, v{acc}, v{acc+1}\nv_cvt_pk_bf16_f32 v{pk+1}, v{acc+2}, v{acc+3}")
    a(f"buffer_store_dwordx2 {v(pk,2)}, v20, s[56:59], s10 offen offset:{off} sc1")

def fy_addr(a):
    a(f"s_lshl_b32 s6, s6, 5\ns_add_u32 s6, s6, {FYW_OFF}")

def kv_flag_addr(a, d):
    a(f"s_lshr_b32 s{d}, s6, 6\ns_mul_i32 s9, s{d}, 86\ns_lshr_b32 s9, s9, 8\ns_mul_i32 s9, s9, {FB_STRIDE-384}\ns_lshl_b32 s{d}, s{d}, 7\ns_add_u32 s{d}, s{d}, s9\ns_add_u32 s{d}, s{d}, {FKV_OFF}")

def single(a, wait_kv, gate, extra):
    a.srd(48, P_SSMK, ACT)
    a(f"s_lshl_b32 s10, s6, 12\ns_add_u32 m0, s7, {KF+512}\ns_mul_i32 s54, s6, {KV_PITCH}\ns_add_u32 s54, s54, {KV_OFF}\ns_add_u32 s11, s54, 4")
    for i in range(4): a(f"buffer_load_dwordx4 v2, s[48:51], s10 offen offset:{i*1024} nt lds")
    setup(a)
    wait_kv()
    a("s_mov_b32 m0, s7\ns_nop 0")
    for i in range(4): a(f"buffer_load_dwordx4 v2, s[56:59], s54 offen offset:{i*1024} sc1 lds")
    a(f"s_add_u32 m0, s7, {2*4160}\ns_nop 0")
    for i in range(4): a(f"buffer_load_dwordx4 v2, s[56:59], s11 offen offset:{i*1024} sc1 lds")
    a("s_mov_b64 exec, 7\ns_add_u32 m0, s7, 4096\ns_nop 0")
    a("buffer_load_dwordx4 v3, s[56:59], s54 offen sc1 lds")
    a(f"s_add_u32 m0, s7, {2*4160+4096}\ns_nop 0")
    a("buffer_load_dwordx4 v3, s[56:59], s11 offen sc1 lds")
    a("s_mov_b64 exec, -1")
    a("s_waitcnt vmcnt(0) lgkmcnt(0)")
    a.stamp(5)
    gate(2)
    a("s_waitcnt lgkmcnt(0)")
    build(a, [(11, c * 1024) for c in range(4)] + [(12, 0)])
    for t in reads(0): a(t)
    if "cvt" in OPT: a.stamp(1)
    body(a)
    gate(True)
    body(a)
    a.stamp(6)
    gate(False)
    a.stamp(7)
    body(a, extra, False, 3)
    if "cvt" in OPT: a.stamp(2)
    body(a, extra, True, 3)
    if "cvt" in OPT: a.stamp(3)
    for i in range(8): a(f"ds_read_b64 {v(FA+2*i,2)}, v21 offset:{512*(7-i)}")
    dval(a)
    a(f"s_mul_i32 s10, s6, {KV_PITCH}\ns_add_u32 s10, s10, {Y_OFF}")
    a("s_waitcnt lgkmcnt(0)")
    for i in range(8): out_tile(a, ACC + 4 * i, FA + 2 * i, FB + 2 * i, 512 * i)
    fy_addr(a)

CH = 's_add_u32 s9, s2, 448'
def team_k(a, base, vl, vt):
    a.srd(44, P_SSMK, ACT)
    a(f"{CH}\ns_lshl_b32 s9, s9, 12\ns_sub_u32 s15, s3, 4\ns_lshl_b32 s15, s15, 10\ns_add_u32 s9, s9, s15\ns_add_u32 m0, s15, {base+KF+512}\ns_nop 0")
    a(f"buffer_load_dwordx4 v{vl}, s[44:47], s9 offen nt lds")

def team_kv(a, base):
    a(f"{CH}\ns_mul_i32 s9, s9, {KV_PITCH}\ns_add_u32 s9, s9, {KV_OFF}\ns_sub_u32 s15, s3, 4\ns_lshl_b32 s15, s15, 10")
    a(f"v_add_u32 v5, s15, v2\ns_add_u32 m0, s15, {base}\ns_add_u32 s7, s9, 4")
    a("buffer_load_dwordx4 v5, s[56:59], s9 offen sc1 lds")
    a(f"s_add_u32 m0, s15, {base+2*4160}\ns_nop 0")
    a("buffer_load_dwordx4 v5, s[56:59], s7 offen sc1 lds")
    a(f"s_mov_b64 exec, 7\ns_mov_b32 m0, {base+4096}\ns_nop 0")
    a("buffer_load_dwordx4 v3, s[56:59], s9 offen sc1 lds")
    a(f"s_mov_b32 m0, {base+2*4160+4096}\ns_nop 0")
    a("buffer_load_dwordx4 v3, s[56:59], s7 offen sc1 lds")
    a("s_mov_b64 exec, -1")

def team(a, base, red, c1, c2, c3, gate, extra, n=4):
    a(f"s_mov_b32 s7, {base}\ns_sub_u32 s55, s3, 4\ns_lshl_b32 s12, s55, 10\ns_lshl_b32 s10, s6, 12")
    setup(a)
    a("v_add_u32 v11, s12, v11\ns_lshl_b32 s8, s55, 7\nv_subrev_u32 v8, s8, v8\nv_subrev_u32 v10, s8, v10\nv_subrev_u32 v21, s12, v21\nv_add_u32 v20, s12, v20")
    a(f"s_lshl_b32 s8, s55, 13\ns_add_u32 s8, s8, {red}\nv_add_u32 v26, s8, v2\ns_lshl_b32 s8, s55, 11\ns_add_u32 s8, s8, {red}\nv_add_u32 v27, s8, v2")
    a("s_waitcnt vmcnt(0)")
    a.subbar(VC, 5, 8, n, off=c1)
    build(a, [(11, 0), (12, 0)])
    a.subbar(VC, 5, 8, n, off=c2)
    gate()
    for t in reads(0): a(t)
    body(a, extra, True)
    for i in range(2): a(f"ds_read_b64 {v(FA+2*i,2)}, v21 offset:{512*(7-i)}")
    dval(a)
    a(f"s_mul_i32 s10, s6, {KV_PITCH}\ns_add_u32 s10, s10, {Y_OFF}")
    a.nop(4)
    for i in range(8): a(f"ds_write_b128 v26, {v(ACC+4*i,4)} offset:{1024*i}")
    a.subbar(VC, 5, 8, n, off=c3)
    for i in range(2):
        for w in range(4): a(f"ds_read_b128 {v(FB+16*i+4*w,4)}, v27 offset:{8192*w+1024*i}")
    a("s_waitcnt lgkmcnt(0)")
    for i in range(2):
        b = FB + 16 * i
        for e in range(4): a(f"v_add_f32 v{b+e}, v{b+e}, v{b+4+e}\nv_add_f32 v{b+8+e}, v{b+8+e}, v{b+12+e}")
        for e in range(4): a(f"v_add_f32 v{b+e}, v{b+e}, v{b+8+e}")
        out_tile(a, b, FA + 2 * i, FB + 32 + 2 * i, 512 * i)
    fy_addr(a)
```

```python
from common import *

G2_WM, G2_XT, G2_W = 0, 3072, 15360
CV, CV_SZ = 92160, 21248
CNT = CV + 3 * CV_SZ
RM = CNT + 64
PT7 = RM + 1024
KB_LDS = PT7 + 4096
ML_H = 73728
ML_X = 0
VC, V1 = 16, 17
NS = optval("NS", 18)
RING = 32
BF = RING + 4 * NS
MACC = BF + 32
KC = MACC + 80
GT = KC + 8
assert GT + 16 <= 256

class Stream:
    def __init__(self, a, segs):
        self.a = a
        self.items = [(sg, ks, t) for sg, sd in enumerate(segs) for ks in range(*(sd[3] if len(sd) > 3 else (0, 18))) for t in range(len(sd[1]))]
        self.segs = segs
        self.issued = 0
        self.log = []
        self.owed = 0
        self.pre_done = -1
    def pre(self):
        if self.issued >= len(self.items) or self.pre_done == self.issued: return
        sg, ks, t = self.items[self.issued]
        if t == 0 and ks > 0:
            self.a(f"s_add_u32 s{self.segs[sg][0]}, s{self.segs[sg][0]}, 36864")
            self.pre_done = self.issued
    def issue(self):
        if self.issued >= len(self.items): return
        sg, ks, t = self.items[self.issued]
        sr, tl, fl = self.segs[sg][:3]
        if t == 0 and ks > 0 and self.pre_done != self.issued: self.a(f"s_add_u32 s{sr}, s{sr}, 36864")
        vo, off = tl[t]
        if not ("nold" in OPT and self.issued >= NS): self.a(f"buffer_load_dwordx4 {v(RING+4*(self.issued % NS),4)}, v{vo}, s[56:59], s{sr} offen offset:{off}{fl}")
        self.log.append(self.issued)
        self.issued += 1
    def other(self, tag="x"): self.log.append(tag)
    def index(self, sg, ks, t): return self.items.index((sg, ks, t))
    def younger(self, key): return len(self.log) - 1 - self.log.index(key)

def mphase(a, st, sg, vb, ks0=0, ks1=18, first=True, acc=None, hook=None, prio=None, bufs=None, novm=False):
    if acc is None: acc = MACC
    if bufs is None: bufs = [BF, BF + 16]
    nb = len(bufs); dist = nb - 1
    nt = len(st.segs[sg][1])
    def rd(ks, m): a(f"ds_read_b128 {v(bufs[ks%nb]+4*m,4)}, v{vb + (m >> 1)} offset:{(m&1)*18432+ks*1024}")
    if prio is not None: a(f"s_setprio {prio}")
    for ks in range(ks0, min(ks0 + dist, ks1)):
        for m in range(4): rd(ks, m)
    rslots = {1: (0, 1, 2, 3), 2: (0, 2, 3, 4), 3: (2, 3, 6, 7)}.get(nt, (2, 6, 10, 14))
    for ks in range(ks0, ks1):
        vm = st.younger(st.index(sg, ks, nt - 1)) if not novm else 63
        a(f"s_waitcnt vmcnt({min(vm,63)}) lgkmcnt({4*min(dist-1, ks1-1-ks)})")
        if "al8" in OPT: a(".p2align 3")
        if "al4" in OPT: a(".p2align 3\ns_nop 0")
        for t in range(nt):
            n = st.index(sg, ks, t)
            for m in range(4):
                i = 4 * t + m
                a.mfma(acc + 16 * t + 4 * m, RING + 4 * (n % NS), bufs[ks % nb] + 4 * m, "0" if (first and ks == ks0) else None)
                if m == 0 and st.owed: st.pre()
                if m == 1 and st.owed: st.issue(); st.owed = 0
                if m == 3: st.owed = 1
                if i in rslots and ks + dist < ks1 and "nord" not in OPT: rd(ks + dist, rslots.index(i))
                if hook: hook(ks, i)
    if st.owed: st.issue(); st.owed = 0
    if prio is not None: a("s_setprio 0")

def gphase(a, ve, vo, hook=None):
    a.nop(8)
    for t in range(3):
        for mp in range(2):
            regs = [MACC + 16 * t + 8 * mp + e for e in range(8)]
            k0 = [f"v{KC + 2*(2*mp + (e >> 2))}" for e in range(8)]
            k1 = [f"v{KC + 2*(2*mp + (e >> 2)) + 1}" for e in range(8)]
            if "nog" not in OPT: gelu_vals(a, regs, list(range(GT, GT + 8)), k0, k1)
            else: a("s_sleep 8")
            p = GT + 8 + 4 * (mp & 1)
            for e in range(4): a(f"v_cvt_pk_bf16_f32 v{p+e}, v{regs[2*e]}, v{regs[2*e+1]}")
            ad = (ve if t != 1 else vo) + mp
            for mm in range(2):
                a(f"ds_write_b64 v{ad}, {v(p+2*mm,2)} offset:{mm*18432+(t>>1)*1024}")
            if hook: hook(2 * t + mp)

def h_addr(a, sT, ve, vo):
    for k, dst in ((0, ve), (1, vo)):
        a(f"s_add_u32 s12, s{sT}, {k}\ns_lshr_b32 s13, s12, 1\ns_lshl_b32 s13, s13, 10\ns_and_b32 s12, s12, 1\ns_lshl_b32 s12, s12, 3\ns_add_u32 s12, s12, s13\ns_add_u32 s12, s12, {ML_H}")
        a(f"v_add_u32 v{dst}, s12, v2\nv_add_u32 v{dst+1}, 36864, v{dst}")

def pstore(a, acc, t, mp, sreg, off, k):
    p = GT + 4 * (k % 4)
    o = [f"v_cvt_pk_bf16_f32 v{p+e}, v{acc+16*t+8*mp+2*e}, v{acc+16*t+8*mp+2*e+1}" for e in range(4)]
    o.append(f"buffer_store_dwordx4 {v(p,4)}, v2, s[56:59], s{sreg} offen offset:{off} sc1")
    return o

HFL = ''
def gen_gemm2(a):
    HB, BUF, ACC = 32, 104, 216
    a("s_lshl_b32 s8, s61, 2\ns_add_u32 s8, s8, s3")
    a("s_mul_i32 s9, s8, 18432")
    a("v_and_b32 v8, 15, v1\ns_lshl_b32 s10, s8, 4\nv_add_u32 v8, s10, v8\nv_and_b32 v9, 48, v1\nv_lshlrev_b32 v9, 4, v9\ns_movk_i32 s13, 18432\nv_mov_b32 v10, 0x80000000")
    for gam, sh in enumerate((-1, 1, -2, 2)):
        a(f"v_add_u32 v5, {sh}, v8\nv_cmp_gt_u32 vcc, {S}, v5\nv_lshrrev_b32 v6, 4, v5\nv_mad_u32_u24 v6, v6, s13, v9\nv_and_b32 v5, 15, v5\nv_lshl_add_u32 v6, v5, 4, v6")
        a(f"v_cndmask_b32 v{24+gam}, v10, v6, vcc")
    a(f"s_mov_b32 s14, {H_OFF}")
    hl = []
    for ks in range(18):
        pre = "s_add_u32 s14, s14, 4096\n" if ks and ks % 4 == 0 else ""
        g0, g1 = (2 * ks) // 9, (2 * ks + 1) // 9
        if g0 == g1: hl.append(pre + f"buffer_load_dwordx4 {v(HB+4*ks,4)}, v{24+g0}, s[56:59], s14 offen offset:{(ks%4)*1024}{HFL}")
        else: hl.append(pre + f"buffer_load_dwordx2 {v(HB+4*ks,2)}, v{24+g0}, s[56:59], s14 offen offset:{(ks%4)*1024}{HFL}\nbuffer_load_dwordx2 {v(HB+4*ks+2,2)}, v{24+g1}, s[56:59], s14 offen offset:{(ks%4)*1024+8}{HFL}")
    for x in hl: a(x)
    a.srd(44, P_Q, ACT)
    a("v_lshrrev_b32 v5, 2, v1\nv_and_b32 v6, 3, v1\nv_mul_u32_u24 v7, 1152, v5\nv_lshl_add_u32 v7, v6, 4, v7")
    a(f"s_mul_i32 s12, s3, 3072\ns_add_u32 s12, s12, {G2_XT}\ns_mov_b32 m0, s12\ns_lshl_b32 s10, s62, 6\ns_add_u32 s10, s10, s9")
    for p in range(3):
        if p: a("s_add_u32 m0, m0, 960\ns_nop 0")
        a(f"buffer_load_dwordx4 v7, s[44:47], s10 offen offset:{64*p} lds")
    a("v_and_b32 v8, 15, v1\nv_lshrrev_b32 v9, 4, v1\nv_lshlrev_b32 v10, 3, v8")
    a(f"s_lshl_b32 s10, s8, 7\ns_add_u32 s10, s10, {ST1_OFF}")
    a("buffer_load_dwordx2 v[18:19], v10, s[56:59], s10 offen")
    a(f"s_lshl_b32 s11, s62, 10\ns_add_u32 s11, s11, s9\ns_add_u32 s11, s11, {X1_OFF}")
    a(f"v_lshlrev_b32 v12, 6, v5\nv_and_b32 v13, 1, v9\nv_lshl_add_u32 v12, v13, 5, v12\nv_lshl_add_u32 v12, v6, 3, v12\nv_add_u32 v12, {G2_W}, v12")
    a("v_xor_b32 v13, 32, v12\nv_add_u32 v14, 49152, v12\nv_add_u32 v15, 49152, v13")
    a("v_and_b32 v11, 1, v1\nv_lshlrev_b32 v11, 6, v11\nv_lshl_add_u32 v11, v9, 4, v11")
    a("v_lshlrev_b32 v20, 6, v8\nv_lshl_add_u32 v20, v9, 3, v20\nv_add_u32 v20, s12, v20")
    a("v_mov_b32 v10, 0")
    a.stamp(1)
    a("s_cmp_eq_u32 s63, 3\ns_cbranch_scc1 G2_n3")
    for npair in (2, 3):
        nt = 1 + 2 * npair
        if npair == 3: a("G2_n3:")
        def reads(gi):
            b = BUF + 56 * (gi & 1)
            o = []
            for k2 in range(2):
                ks = 2 * gi + k2
                o.append(f"ds_read_b128 {v(b+28*k2,4)}, v11 offset:{G2_WM+128*ks}")
                for t in range(2 * npair):
                    for jh in range(2):
                        off = ((ks * 2 + jh) * npair + (t >> 1)) * 1024
                        ad = 12 + (t & 1)
                        if off >= 49152: off -= 49152; ad += 2
                        o.append(f"ds_read_b64_tr_b16 {v(b+28*k2+4+4*t+2*jh,2)}, v{ad} offset:{off}")
            return o
        for gi in range(10):
            rd = []
            if gi < 9:
                a("s_barrier")
                if gi == 0 and npair == 2: a.stamp(2)
                rd = reads(gi)
            if gi == 9:
                a("s_waitcnt vmcnt(0)")
                rd = [f"ds_read_b64 {v(BUF+56+2*t,2)}, v20 offset:{(t>>1)*1024+(t&1)*32}" for t in range(2 * npair)]
            if gi > 0:
                g = gi - 1
                if gi < 9: a(f"s_waitcnt vmcnt({22-2*gi+(2*gi <= 4)+(2*gi <= 13)})")
                b = BUF + 56 * (g & 1)
                for k2 in range(2):
                    for t in range(nt):
                        for _ in range(2):
                            if rd: a(rd.pop(0))
                        a.mfma(ACC + 4 * t, b + 28 * k2 + 4 * t, HB + 4 * (2 * g + k2), "0" if (g == 0 and k2 == 0) else None)
            for r in rd: a(r)
            a("s_waitcnt lgkmcnt(0)")
        XS = BUF + 56
        for e in range(4 * npair):
            a(f"v_lshlrev_b32 v{HB+2*e}, 16, v{XS+e}\nv_and_b32 v{HB+2*e+1}, 0xffff0000, v{XS+e}")
        a(f"v_add_f32 v9, v{ACC}, v{ACC+1}")
        a("v_sub_f32 v19, v19, v9")
        for p in range(npair):
            for e in range(8): a(f"v_fma_f32 v{HB+8*p+e}, v{HB+8*p+e}, v18, v19")
            for e in range(8): a(f"v_add_f32 v{HB+8*p+e}, v{HB+8*p+e}, v{ACC+4+8*p+e}")
            for e in range(4): a(f"v_cvt_pk_bf16_f32 v{BUF+4*p+e}, v{HB+8*p+2*e}, v{HB+8*p+2*e+1}")
            a(f"buffer_store_dwordx4 {v(BUF+4*p,4)}, v2, s[56:59], s11 offen offset:{p*1024} sc1")
        for e in range(8 * npair): a(f"v_fmac_f32 v10, v{HB+e}, v{HB+e}")
        if npair == 2: a("s_branch G2_j")
    a("G2_j:")
    gsum(a, 10, 11)
    a(f"s_lshl_b32 s10, s61, 3\ns_add_u32 s10, s10, s60\ns_lshl_b32 s10, s10, 8\ns_lshl_b32 s12, s3, 6\ns_add_u32 s10, s10, s12\ns_add_u32 s10, s10, {SS_OFF}")
    a(f"s_lshl_b32 s12, s8, 6\ns_add_u32 s12, s12, {MEAN_OFF}")
    a("s_mov_b64 exec, 0xffff")
    a("buffer_store_dword v10, v4, s[56:59], s10 offen sc1")
    a(f"s_cmp_lg_u32 s60, 0\ns_cbranch_scc1 G2_m")
    a("buffer_store_dword v9, v4, s[56:59], s12 offen sc1")
    a("G2_m:")
    a("s_mov_b64 exec, -1")

def gen_w2load(a):
    a.srd(44, P_W2, D * D * 2)
    a("v_lshrrev_b32 v5, 2, v1\nv_and_b32 v6, 3, v1\nv_mul_u32_u24 v7, 1152, v5")
    a("v_bfe_u32 v8, v1, 4, 1\nv_lshlrev_b32 v8, 1, v8\nv_xor_b32 v8, v8, v6\nv_lshl_add_u32 v7, v8, 4, v7")
    a("s_sub_u32 s12, s3, 4")
    a(f"s_min_u32 s8, s12, 2\ns_lshl_b32 s8, s8, 10\ns_mov_b32 m0, s8\ns_add_u32 s8, s8, {W2M_OFF}")
    a("buffer_load_dwordx4 v2, s[56:59], s8 offen lds")
    a(f"s_lshl_b32 s6, s63, 10\ns_mul_i32 s7, s12, s6\ns_add_u32 s7, s7, {G2_W}\ns_lshl_b32 s6, s6, 2")
    a("s_mul_i32 s9, s12, 18432\ns_lshl_b32 s10, s62, 6\ns_add_u32 s9, s9, s10")
    DEP = optval("G2DEP", 3)
    a(f"s_mov_b32 s14, {9+DEP}")
    def wait(n):
        l1 = a.lab("WA"); l2 = a.lab("WB")
        if n == 0: a("s_waitcnt vmcnt(0)")
        else: a(f"s_cmp_eq_u32 s63, 2\ns_cbranch_scc1 {l1}\ns_waitcnt vmcnt({3*n})\ns_branch {l2}\n{l1}:\ns_waitcnt vmcnt({2*n})\n{l2}:")
        a("s_barrier")
    a("W2_l:")
    a("s_cmp_gt_u32 s14, 9\ns_cbranch_scc1 W2_i")
    wait(DEP - 1)
    a("W2_i:")
    a("s_mov_b32 m0, s7\ns_add_u32 s7, s7, s6")
    a("buffer_load_dwordx4 v7, s[44:47], s9 offen lds")
    a("s_add_u32 m0, m0, 960\ns_cmp_eq_u32 s63, 2")
    a("buffer_load_dwordx4 v7, s[44:47], s9 offen offset:64 lds")
    a("s_cbranch_scc1 W2_a")
    a("s_add_u32 m0, m0, 960\ns_nop 0")
    a("buffer_load_dwordx4 v7, s[44:47], s9 offen offset:128 lds")
    a("W2_a:")
    a("s_add_u32 s9, s9, 73728")
    a(f"s_sub_u32 s14, s14, 1\ns_cmp_gt_u32 s14, {DEP}\ns_cbranch_scc1 W2_l")
    a("s_cmp_eq_u32 s55, 0\ns_cbranch_scc1 W2_t")
    gen_conv_load(a)
    for i in range(DEP): a(f"s_waitcnt vmcnt({10+2*(DEP-1-i)})\ns_barrier")
    a("s_branch KB_conv")
    a("W2_t:")
    for i in range(DEP): wait(DEP - 1 - i)

def gen_conv_load(a, fl=''):
    a.srd(48, P_SSMK, ACT)
    a(f"s_mul_i32 s54, s52, {KV_PITCH}\ns_add_u32 s54, s54, {KV_OFF}")
    a("s_lshl_b32 s10, s52, 12")
    a(f"s_mov_b32 m0, s53\ns_add_u32 s11, s54, 4")
    for i in range(4): a(f"buffer_load_dwordx4 v2, s[56:59], s54 offen offset:{i*1024}{fl} lds")
    a("s_mov_b64 exec, 7")
    a("s_add_u32 m0, s53, 4096\ns_nop 0")
    a(f"buffer_load_dwordx4 v3, s[56:59], s54 offen{fl} lds")
    a(f"s_add_u32 m0, s53, {2*4160+4096}\ns_nop 0")
    a(f"buffer_load_dwordx4 v3, s[56:59], s11 offen{fl} lds")
    a("s_mov_b64 exec, -1")
    a(f"s_add_u32 m0, s53, {4*4160+512}\ns_nop 0")
    for i in range(4): a(f"buffer_load_dwordx4 v2, s[48:51], s10 offen offset:{i*1024} nt lds")

def gen_conv(a, mid, fl='', gate=None):
    FA, FB, ACC = 96, 160, 224
    a("s_mov_b32 s6, s52\ns_mov_b32 s7, s53")
    a("s_lshl_b32 s8, s6, 1\ns_and_b32 s8, s8, 0xfffffffc")
    a(f"s_load_dword s15, {s(P_SSMD,2)}, s8")
    a(f"s_add_u32 m0, s7, {2*4160}")
    a("s_waitcnt vmcnt(6)")
    for i in range(4): a(f"buffer_load_dwordx4 v2, s[56:59], s11 offen offset:{i*1024}{fl} lds")
    a("v_lshlrev_b32 v5, 3, v1\nv_add_u32 v5, s7, v5\nv_mov_b32 v18, 0\nv_mov_b32 v19, 0")
    a(f"ds_write_b64 v5, v[18:19] offset:{4*4160}")
    a("v_and_b32 v6, 15, v1\nv_lshrrev_b32 v7, 4, v1")
    a("v_sub_u32 v8, 3, v6\nv_and_b32 v8, 3, v8\nv_mul_u32_u24 v8, 4160, v8")
    a("v_and_b32 v9, 12, v6\nv_lshlrev_b32 v9, 1, v9\nv_sub_u32 v8, v8, v9")
    a("v_lshlrev_b32 v9, 4, v7\nv_sub_u32 v8, v8, v9")
    a(f"v_add_u32 v8, {4104-3584}, v8\nv_add_u32 v8, s7, v8")
    a("v_lshlrev_b32 v10, 5, v6\nv_sub_u32 v10, v10, v9")
    a(f"v_add_u32 v10, {4*4160+512+16}, v10\nv_add_u32 v10, s7, v10")
    a("v_add_u32 v11, s7, v2")
    a("v_min_u32 v12, 16, v2\nv_add_u32 v12, s7, v12\nv_add_u32 v12, 4096, v12")
    for r in range(32): a(f"v_mov_b32 v{ACC+r}, 0")
    a.stamp(2)
    a("s_waitcnt vmcnt(0)")
    a.stamp(3)
    for c in range(5):
        ad, o = (11, c * 1024) if c < 4 else (12, 0)
        b = FA + 12 * c
        a(f"ds_read_b128 {v(b,4)}, v{ad} offset:{o}")
        a(f"ds_read_b128 {v(b+4,4)}, v{ad} offset:{o+2*4160}")
        a(f"ds_read_b64 {v(b+8,2)}, v{ad} offset:{o+16}")
    for c in range(5):
        ad, o = (11, c * 1024) if c < 4 else (12, 0)
        b = FA + 12 * c; d = FB + 8 * c
        a(f"s_waitcnt lgkmcnt({12-c})")
        for e in range(4): a(f"v_alignbit_b32 v{d+e}, v{b+4+e}, v{b+e}, 16")
        for e in range(4): a(f"v_alignbit_b32 v{d+4+e}, v{b+2+e if e < 2 else b+6+e}, v{b+4+e}, 16")
        a(f"ds_write_b128 v{ad}, {v(d,4)} offset:{o+4160}")
        a(f"ds_write_b128 v{ad}, {v(d+4,4)} offset:{o+3*4160}")
    a("s_waitcnt lgkmcnt(0)")
    def reads(st):
        o = []
        for m in range(8):
            o.append(f"ds_read_b128 {v(FB+32*st+4*m,4)}, v10 offset:{512*m}")
            o.append(f"ds_read_b64 {v(FA+32*st+4*m,2)}, v8 offset:{512*(7-m)}")
            o.append(f"ds_read_b64 {v(FA+32*st+4*m+2,2)}, v8 offset:{512*(7-m)+8}")
        return o
    for t in reads(0): a(t)
    order = sorted([(i, m) for i in range(8) for m in range(i + 1)], key=lambda im: (max(im[1], im[0] - im[1]), im[1], im[0]))
    def body(extra=None):
        for st in range(2):
            a("v_subrev_u32 v8, 64, v8\nv_subrev_u32 v10, 64, v10")
            a("s_waitcnt lgkmcnt(0)")
            rd = reads(1 - st)
            for n, (i, m) in enumerate(order):
                a.mfma(ACC + 4 * i, FA + 32 * st + 4 * m, FB + 32 * st + 4 * (i - m))
                if n < 24: a(rd[n])
                if extra and n % 4 == 3 and n < 32: extra()
    a(f"s_setprio {optval('CVP', 3)}")
    n1 = optval("CVMID", 1 if gate is None else 2)
    if gate == "none": n1 = 4
    a(f"s_mov_b32 s12, {n1}")
    a("CV_k:")
    body()
    a("s_sub_u32 s12, s12, 1\ns_cmp_lg_u32 s12, 0\ns_cbranch_scc1 CV_k")
    if n1 < 4:
        if gate: gate()
        body(mid)
    if n1 < 3:
        a(f"s_mov_b32 s12, {3-n1}")
        a("CV_l:")
        body()
        a("s_sub_u32 s12, s12, 1\ns_cmp_lg_u32 s12, 0\ns_cbranch_scc1 CV_l")
    a.stamp(4)
    a("s_waitcnt lgkmcnt(0)")
    a("v_lshlrev_b32 v11, 5, v6\nv_lshl_add_u32 v11, v7, 3, v11")
    a(f"v_sub_u32 v12, {4088-3584}, v11\nv_add_u32 v12, s7, v12")
    for i in range(8): a(f"ds_read_b64 {v(FA+2*i,2)}, v12 offset:{512*(7-i)}")
    a("s_lshl_b32 s13, s15, 16\ns_and_b32 s14, s15, 0xffff0000\ns_bitcmp1_b32 s6, 0\ns_cselect_b32 s13, s14, s13")
    a(f"s_add_u32 s10, s10, {Y_OFF}")
    a("s_waitcnt lgkmcnt(0)")
    for i in range(8):
        a(f"v_and_b32 v{FB}, 0xffff0000, v{FA+2*i+1}\nv_lshlrev_b32 v{FB+1}, 16, v{FA+2*i+1}")
        a(f"v_and_b32 v{FB+2}, 0xffff0000, v{FA+2*i}\nv_lshlrev_b32 v{FB+3}, 16, v{FA+2*i}")
        for r in range(4): a(f"v_fmac_f32 v{ACC+4*i+r}, s13, v{FB+r}")
        a(f"v_cvt_pk_bf16_f32 v{FB+8+2*i}, v{ACC+4*i}, v{ACC+4*i+1}\nv_cvt_pk_bf16_f32 v{FB+9+2*i}, v{ACC+4*i+2}, v{ACC+4*i+3}")
        a(f"buffer_store_dwordx2 {v(FB+8+2*i,2)}, v11, s[56:59], s10 offen offset:{512*i} sc1")

def fin_consts(a):
    a("s_lshr_b32 s61, s4, 1\ns_and_b32 s62, s4, 1")
    a("s_mul_i32 s52, s61, 9\ns_lshl_b32 s6, s62, 2\ns_add_u32 s52, s52, s6")
    a("s_cmp_lt_u32 s4, 4\ns_cselect_b32 s53, 12288, 0")
    if ML_X: a(f"s_add_u32 s53, s53, {ML_X}")
    a("s_mul_i32 s54, s5, 73728\ns_lshl_b32 s6, s52, 5\ns_add_u32 s55, s54, s6")

def stage_x(a):
    a.srd(12, P_Q, ACT)
    fin_consts(a)
    a("s_mul_i32 s6, s3, 18432\ns_add_u32 s7, s6, s53\ns_mov_b32 m0, s7\ns_add_u32 s6, s6, s55\ns_movk_i32 s8, 6554\ns_movk_i32 s9, 992")
    for i in range(3):
        a(f"v_add_u32 v5, {64*i}, v1\nv_min_u32 v5, 159, v5\nv_mul_lo_u32 v14, v5, s8\nv_lshrrev_b32 v14, 16, v14")
        a("v_lshlrev_b32 v5, 4, v5\nv_mad_u32_u24 v5, v14, s9, v5")
        a("buffer_load_dwordx4 v5, s[12:15], s6 offen nt lds")
        a("s_add_u32 m0, m0, 1024")

def stage_y(a, uniform=False):
    a(f"v_lshrrev_b32 v5, 3, v1\nv_and_b32 v14, 7, v1\nv_mul_u32_u24 v5, {KV_PITCH}, v5\nv_lshl_add_u32 v5, v14, 4, v5")
    a(f"s_mul_i32 s6, s52, {16*KV_PITCH}\ns_mul_i32 s7, s3, {8*KV_PITCH}\ns_add_u32 s6, s6, s7\ns_lshl_b32 s7, s5, 7\ns_add_u32 s6, s6, s7\ns_add_u32 s6, s6, {Y_OFF}")
    for i in range(3):
        if i == 2 and not uniform: a("s_cmp_ge_u32 s3, 2\ns_cbranch_scc1 FN_y")
        if i == 2 and uniform: a(f"s_sub_u32 s7, s6, {32*KV_PITCH}\ns_cmp_ge_u32 s3, 2\ns_cselect_b32 s6, s7, s6")
        a("buffer_load_dwordx4 v5, s[56:59], s6 offen sc1 lds")
        a(f"s_add_u32 m0, m0, 1024\ns_add_u32 s6, s6, {32*KV_PITCH}")
    a("FN_y:")

def gen_final(a):
    PR, YR, XR, X1R, RMR, AC, T = 32, 64, 68, 72, 76, 88, 96
    a.srd(48, P_OUT, ACT)
    a("s_sub_u32 s60, s3, 4")
    fin_consts(a)
    a("v_and_b32 v5, 15, v1\nv_lshrrev_b32 v6, 4, v1")
    a("v_mul_u32_u24 v7, 160, v5\nv_lshl_add_u32 v7, v6, 3, v7\nv_add_u32 v7, s53, v7")
    a("v_lshrrev_b32 v8, 1, v6\nv_mul_u32_u24 v8, 18432, v8\nv_bfe_u32 v9, v1, 2, 3\nv_lshl_add_u32 v8, v9, 7, v8")
    a("v_and_b32 v9, 3, v1\nv_lshl_add_u32 v8, v9, 3, v8\nv_add_u32 v8, s53, v8\nv_add_u32 v8, 3072, v8")
    a(f"v_lshlrev_b32 v11, 4, v5\nv_add_u32 v11, {RM}, v11")
    a("v_lshrrev_b32 v5, 5, v1\nv_bfe_u32 v6, v1, 1, 4\nv_and_b32 v9, 1, v1")
    a("v_mul_u32_u24 v18, 18432, v5\nv_lshl_add_u32 v18, v9, 4, v18\nv_mul_u32_u24 v19, 160, v6\nv_add3_u32 v19, v19, v18, s53")
    a("v_mul_u32_u24 v6, 1152, v6\nv_add_u32 v18, v18, v6")
    a.stamp(1)
    lists = {0: [[(4,0),(8,0),(3,2)], [(5,0),(0,1)], [(6,0),(1,1)], [(7,0),(2,2)]],
             1: [[(1,0),(5,0),(9,2)], [(2,0),(6,1)], [(3,0),(7,1)], [(4,0),(8,2)]]}
    def enc(l): return sum(((u | (c << 4) | 0x80) << (8 * i)) for i, (u, c) in enumerate(l))
    for q in range(4):
        a(f"s_cmp_eq_u32 s62, 0\ns_cselect_b32 s6, {enc(lists[0][q])}, {enc(lists[1][q])}" if False else
          f"s_mov_b32 s6, {enc(lists[0][q])}\ns_mov_b32 s7, {enc(lists[1][q])}\ns_cmp_eq_u32 s62, 0\ns_cselect_b32 s6, s6, s7")
        if q == 0: a("s_mov_b32 s68, s6")
        else: a(f"s_cmp_eq_u32 s60, {q}\ns_cselect_b32 s68, s6, s68")
    a("FN_l:")
    a("s_and_b32 s63, s68, 15\ns_lshr_b32 s6, s63, 1\ns_and_b32 s7, s63, 1")
    a("s_add_u32 s8, s6, s52")
    a("s_mul_i32 s9, s7, 36864")
    a("s_lshr_b32 s10, s8, 1\ns_lshl_b32 s10, s10, 10\ns_and_b32 s11, s8, 1\ns_lshl_b32 s11, s11, 3\ns_add_u32 s10, s10, s11\ns_add_u32 s10, s10, s9")
    a("v_add_u32 v12, s10, v2")
    a("s_lshl_b32 s10, s6, 5\ns_add_u32 s69, s10, s9")
    a("v_add_u32 v13, s69, v7\nv_add_u32 v20, s69, v19")
    a("s_lshl_b32 s10, s7, 9\nv_add_u32 v14, s10, v11")
    a("s_and_b32 s10, s6, 1\ns_mul_i32 s10, s10, 36864\ns_lshr_b32 s11, s6, 1\ns_lshl_b32 s11, s11, 10\ns_add_u32 s10, s10, s11\ns_lshl_b32 s11, s7, 6\ns_add_u32 s10, s10, s11")
    a("v_add_u32 v15, s10, v8")
    for mt in range(2):
        a(f"ds_read_b64 {v(X1R+2*mt,2)}, v12 offset:{18432*mt}")
        a(f"ds_read_b64 {v(XR+2*mt,2)}, v13 offset:{18432*mt}")
        a(f"ds_read_b128 {v(RMR+4*mt,4)}, v14 offset:{256*mt}")
        a(f"ds_read_b64_tr_b16 {v(YR+2*mt,2)}, v15 offset:{32*mt}")
    a("s_add_u32 s69, s69, s55")
    a(f"s_bfe_u32 s10, s68, 0x20004\ns_lshl_b32 s10, s10, 2\ns_add_u32 s10, s10, s61\ns_lshl_b32 s10, s10, 5\ns_mul_i32 s11, s5, {FB_STRIDE}\ns_add_u32 s10, s10, s11\ns_add_u32 s10, s10, {FP_OFF}")
    a(f"s_lshl_b32 s9, s8, 11\ns_lshl_b32 s11, s7, 10\ns_add_u32 s9, s9, s11\ns_add_u32 s9, s9, s54\ns_add_u32 s9, s9, {PART_OFF}")
    a("s_waitcnt lgkmcnt(0)")
    for e in range(4):
        r = RMR + 4 * (e >> 1)
        a(f"v_lshlrev_b32 v{T+16+2*e}, 16, v{XR+e}\nv_and_b32 v{T+17+2*e}, 0xffff0000, v{XR+e}")
        a(f"v_lshlrev_b32 v{T+8+2*e}, 16, v{X1R+e}\nv_and_b32 v{T+9+2*e}, 0xffff0000, v{X1R+e}")
        a(f"v_lshlrev_b32 v{T+24+2*e}, 16, v{YR+e}\nv_and_b32 v{T+25+2*e}, 0xffff0000, v{YR+e}")
        a(f"v_fma_f32 v{T}, v{T+16+2*e}, v{r+2}, v{r+3}\nv_fma_f32 v{T+1}, v{T+17+2*e}, v{r+2}, v{r+3}")
        a(f"v_add_f32 v{T+8+2*e}, v{T+8+2*e}, v{r+1}\nv_add_f32 v{T+9+2*e}, v{T+9+2*e}, v{r+1}")
        a(f"v_mul_f32 v{T+24+2*e}, v{T+24+2*e}, v{T}\nv_mul_f32 v{T+25+2*e}, v{T+25+2*e}, v{T+1}")
    a.spoll(8, 10, 16, 13, 2)
    if 'fine' in OPT: a.stamp(6)
    for fb in range(8):
        a(f"buffer_load_dwordx4 {v(PR+4*fb,4)}, v2, s[56:59], s9 offen sc1")
        if fb < 7: a(f"s_add_u32 s9, s9, {ACT}")
    for fb in range(8):
        a(f"s_waitcnt vmcnt({7-fb})")
        d = AC if fb == 0 else T
        for e in range(4):
            a(f"v_lshlrev_b32 v{d+2*e}, 16, v{PR+4*fb+e}\nv_and_b32 v{d+2*e+1}, 0xffff0000, v{PR+4*fb+e}")
        if fb:
            for e in range(8): a(f"v_add_f32 v{AC+e}, v{AC+e}, v{T+e}")
    for r in range(8): a(f"v_fma_f32 v{AC+r}, v{AC+r}, v{RMR+4*(r>>2)}, v{T+8+r}")
    for r in range(8): a(f"v_mul_f32 v{T+r}, {fh(-LOG2E)}, v{AC+r}")
    for r in range(8): a(f"v_exp_f32 v{T+r}, v{T+r}")
    for r in range(8): a(f"v_add_f32 v{T+r}, 1.0, v{T+r}")
    for r in range(8): a(f"v_rcp_f32 v{T+r}, v{T+r}")
    for r in range(8): a(f"v_mul_f32 v{AC+r}, v{AC+r}, v{T+24+r}")
    for r in range(8): a(f"v_fma_f32 v{AC+r}, v{AC+r}, v{T+r}, v{T+16+r}")
    for e in range(4): a(f"v_cvt_pk_bf16_f32 v{T+32+e}, v{AC+2*e}, v{AC+2*e+1}")
    for mt in range(2): a(f"ds_write_b64 v13, {v(T+32+2*mt,2)} offset:{18432*mt}")
    a(f"ds_read_b128 {v(T+36,4)}, v20")
    a("s_waitcnt lgkmcnt(0)")
    a(f"buffer_store_dwordx4 {v(T+36,4)}, v18, s[48:51], s69 offen")
    a("s_lshr_b32 s68, s68, 8\ns_cbranch_scc1 FN_l")

def touch(a, sbase, nlines, vdst, vtmp, fl=""):
    for i in range((nlines + 63) // 64):
        a(f"v_add_u32 v{vtmp}, {64*i}, v1\nv_min_u32 v{vtmp}, {nlines-1}, v{vtmp}\nv_lshlrev_b32 v{vtmp}, 7, v{vtmp}")
        a(f"buffer_load_dword v{vdst+i%4}, v{vtmp}, s[56:59], s{sbase} offen{fl}")

def paced(a, st, n, depth):
    for i in range(n):
        if i >= depth: a(f"s_waitcnt vmcnt({depth-1})")
        st.issue()

def gen_kb(a):
    a(".p2align 8\nkb_kernel:")
    a("s_cmp_ge_u32 s2, 256\ns_cbranch_scc1 KB_end")
    a.stamp_init()
    a.kernargs()
    a("v_lshrrev_b32 v2, 6, v0\nv_and_b32 v1, 63, v0")
    a("v_readfirstlane_b32 s3, v2")
    a(f"v_mov_b32 v{VC}, {CNT}\nv_mov_b32 v{V1}, 1\nv_mov_b32 v4, 0\nv_mov_b32 v5, 0\nv_mov_b32 v6, 0\nv_mov_b32 v7, 0")
    a(f"ds_write_b128 v{VC}, v[4:7]\nds_write_b128 v{VC}, v[4:7] offset:16\nds_write_b128 v{VC}, v[4:7] offset:32")
    a("s_and_b32 s4, s2, 7\ns_lshr_b32 s5, s2, 3")
    a("s_and_b32 s60, s5, 7\ns_and_b32 s61, s5, 24\ns_add_u32 s61, s61, s4")
    a("s_mov_b32 s96, s4\ns_mov_b32 s97, s5")
    if "tok" in OPT: a("s_mov_b32 s4, s60\ns_mov_b32 s5, s61")
    if "nf2" in OPT:
        a("s_and_b32 s4, s96, 3\ns_lshl_b32 s4, s4, 1\ns_and_b32 s7, s97, 1\ns_add_u32 s4, s4, s7\ns_lshr_b32 s5, s96, 2\ns_lshl_b32 s5, s5, 4\ns_lshr_b32 s7, s97, 1\ns_add_u32 s5, s5, s7")
    if "nf4" in OPT:
        a("s_and_b32 s4, s96, 1\ns_lshl_b32 s4, s4, 2\ns_and_b32 s7, s97, 3\ns_add_u32 s4, s4, s7\ns_lshr_b32 s5, s96, 1\ns_lshl_b32 s5, s5, 3\ns_lshr_b32 s7, s97, 2\ns_add_u32 s5, s5, s7")
    a("s_lshr_b32 s62, s60, 2\ns_lshl_b32 s7, s60, 1\ns_add_u32 s62, s62, s7")
    a("s_and_b32 s7, s60, 3\ns_cmp_eq_u32 s7, 3\ns_cselect_b32 s63, 3, 2")
    a("v_lshlrev_b32 v2, 4, v1\nv_add_u32 v3, 4096, v2\nv_lshlrev_b32 v4, 2, v1")
    a(f"s_mul_i32 s8, s4, {WSLICE}")
    a("s_mul_i32 s71, s3, 3")
    a(f"s_lshl_b32 s64, s71, 10\ns_add_u32 s64, s64, s8\ns_add_u32 s64, s64, {W3T_OFF}")
    a("s_add_u32 s65, s64, 24576")
    a("s_and_b32 s9, s3, 3\ns_mul_i32 s9, s9, 9\ns_lshr_b32 s10, s3, 2\ns_lshl_b32 s10, s10, 1\ns_add_u32 s9, s9, s10")
    a(f"s_lshl_b32 s66, s9, 10\ns_add_u32 s66, s66, s8\ns_add_u32 s66, s66, {W4T_OFF}")
    a(f"s_lshl_b32 s10, s4, 5\ns_add_u32 s10, s10, s5\ns_mul_i32 s67, s10, 73728\ns_lshl_b32 s9, s9, 11\ns_add_u32 s67, s67, s9\ns_add_u32 s67, s67, {PART_OFF}")
    NSH = 32 if not ({"nf2", "nf4", "tok"} & set(OPT)) else (16 if "nf2" in OPT else 8)
    TL = 5184 // NSH
    a(f"s_and_b32 s9, s5, {NSH-1}\ns_mul_i32 s9, s9, {TL*128}\ns_add_u32 s70, s8, s9")
    a(f"s_and_b32 s69, s3, 3\ns_lshl_b32 s69, s69, 3\ns_add_u32 s69, s69, s4\ns_lshl_b32 s69, s69, 2\ns_mul_i32 s10, s5, {FB_STRIDE}\ns_add_u32 s69, s69, s10\ns_add_u32 s69, s69, {FP_OFF}")
    a("s_waitcnt lgkmcnt(0)")
    a.srd(56, P_WS, WS_BYTES)
    a("s_cmp_ge_u32 s3, 4\ns_cbranch_scc1 KB_q")
    PP, QP, PB = optval("PP", 1), optval("QP", 2), optval("PB", 0)
    A3 = [(2, 0), (2, 1024), (2, 2048)]
    stP = Stream(a, [(64, A3, ""), (65, A3, ""), (66, [(2, 0), (3, 3072)], " sc1"), (68, [(2, 0), (3, 3072)], " sc1")])
    stQ = Stream(a, [(64, A3, ""), (66, [(2, 0), (2, 1024), (2, 2048), (2, 3072), (3, 0)], " sc1")])
    def addrs():
        a(f"v_mov_b32 v6, v2\nv_add_u32 v7, 36864, v2\nv_add_u32 v8, {ML_H}, v2\nv_add_u32 v9, {ML_H+36864}, v2")
        h_addr(a, 71, 10, 12)
    def rk():
        a(f"v_and_b32 v5, 15, v1\nv_lshlrev_b32 v5, 4, v5\nv_add_u32 v5, {RM}, v5")
        for m in range(4): a(f"ds_read_b32 v{GT+m}, v5 offset:{256*m}")
        a("s_waitcnt lgkmcnt(0)")
        for m in range(4):
            r = GT + m
            a(f"v_mul_f32 v{KC+2*m}, {fh(GC0)}, v{r}\nv_mul_f32 v{r}, v{r}, v{r}\nv_mul_f32 v{r}, {fh(0.044715)}, v{r}\nv_mul_f32 v{KC+2*m+1}, v{r}, v{KC+2*m}")
    cG2, cX1, cX2, cFX, cSide, cH1, cA, cH2, cW4 = 0, 4, 8, 12, 16, 20, 24, 28, 32
    fine = "fine" in OPT
    gen_gemm2(a)
    a.stamp(3)
    a(f"s_mul_i32 s6, s61, {FB_STRIDE}\ns_lshl_b32 s7, s60, 2\ns_add_u32 s6, s6, s7\ns_add_u32 s6, s6, {FX_OFF}")
    a("s_add_u32 s68, s66, 1024")
    a("s_waitcnt vmcnt(0)")
    a(f"s_mov_b64 exec, 1\nds_add_rtn_u32 v5, v{VC}, v{V1}\ns_mov_b64 exec, -1")
    a("s_waitcnt lgkmcnt(0)")
    a("v_readfirstlane_b32 s7, v5")
    a("s_cmp_lg_u32 s7, 3\ns_cbranch_scc1 KB_nosig")
    a.setflag("s6", 14)
    a("KB_nosig:")
    a.stamp(4)
    a.ldswait(VC, 5, 7, 4, cG2)
    PRE = optval("PPRE", NS)
    paced(a, stP, PRE, optval("PPACE", 8))
    addrs()
    a(f"s_mul_i32 s6, s5, {FB_STRIDE}\ns_add_u32 s6, s6, {FX_OFF}")
    a(f"s_mul_i32 s9, s3, 18432\ns_mov_b32 m0, s9\ns_mul_i32 s7, s5, 73728\ns_add_u32 s7, s7, s9\ns_add_u32 s7, s7, {X1_OFF}")
    a("s_cmp_lg_u32 s3, 0\ns_cbranch_scc1 KB_xw")
    a.spoll(8, 6, 44, 13, 1)
    a.ldsadd(VC, V1, cFX)
    a("s_branch KB_xg")
    a("KB_xw:")
    a.ldswait(VC, 5, 8, 1, cFX)
    a("KB_xg:")
    a.stamp(5)
    def xdma(i):
        if i and i % 4 == 0: a("s_add_u32 m0, m0, 4096\ns_add_u32 s7, s7, 4096")
        a(f"buffer_load_dwordx4 v2, s[56:59], s7 offen offset:{(i%4)*1024} sc1 lds")
        stP.other(f"x{i}")
    XP = optval("XP", 6)
    for i in range(XP): xdma(i)
    for i in range(NS - PRE): stP.issue()
    a(f"s_lshl_b32 s6, s5, 11\ns_add_u32 s6, s6, {SS_OFF}\ns_lshl_b32 s8, s5, 8\ns_add_u32 s8, s8, {MEAN_OFF}\ns_lshl_b32 s9, s5, 9\ns_add_u32 s9, s9, {ST1_OFF}")
    a("v_lshlrev_b32 v18, 3, v1")
    late = [(lambda i=i: xdma(i)) for i in range(XP, 18)]
    def stat(ins, tag="x"):
        a(ins); stP.other(tag)
    late += [(lambda i=i: stat(f"buffer_load_dword v{GT+i}, v4, s[56:59], s6 offen offset:{256*i} sc1")) for i in range(8)]
    late += [lambda: stat(f"buffer_load_dword v{GT+9}, v4, s[56:59], s8 offen sc1")]
    late += [lambda: stat(f"buffer_load_dwordx2 {v(GT+10,2)}, v18, s[56:59], s9 offen", "st")]
    XE = optval("XE", 4)
    for i in range(XE): late.pop(0)()
    a(f"s_waitcnt vmcnt({stP.younger(f'x{XP-1}')})")
    a.subbar(VC, 5, 10, 4, off=cX1)
    a.stamp(6)
    def xhook(ks, i):
        if i in (0, 4, 8, 10, 11, 3) and late: late.pop(0)()
    mphase(a, stP, 0, 6, 0, XP, prio=2, hook=xhook)
    assert not late
    a(f"s_waitcnt vmcnt({stP.younger('st')})")
    for i in range(1, 8): a(f"v_add_f32 v{GT}, v{GT}, v{GT+i}")
    a(f"v_mov_b32 v{GT+1}, {fh(1.0/D)}\nv_fmaak_f32 v{GT}, v{GT+1}, v{GT}, {fh(EPS)}")
    a(f"v_rsq_f32 v{GT+8}, v{GT}")
    a(f"v_add_u32 v5, {RM}, v2\ns_nop 0")
    a(f"ds_write_b128 v5, {v(GT+8,4)}")
    a.subbar(VC, 5, 7, 4, off=cX2)
    mphase(a, stP, 0, 6, XP, 18, first=False, prio=2)
    a.stamp(7)
    rk()
    a.ldswait(VC, 5, 7, 4, cSide, sleep=1)
    gphase(a, 10, 12)
    a.ldsadd(VC, V1, cH1)
    if fine: a.stamp(1)
    a("s_add_u32 s71, s71, 24")
    h_addr(a, 71, 10, 12)
    a.ldswait(VC, 5, 7, 1, cW4, sleep=1)
    mphase(a, stP, 1, 6, prio=1)
    a.ldsadd(VC, V1, cA)
    a.stamp(8)
    def sthook(i):
        if i == 1:
            a.ldswait(VC, 5, 7, 4, cA, sleep=1)
            a.ldswait(VC, 5, 7, 8, cH1, sleep=1)
            stage_x(a)
            stage_y(a)
    gphase(a, 10, 12, sthook)
    if fine: a.stamp(3)
    a("s_waitcnt vmcnt(0)")
    a.subbar(VC, 5, 7, 4, off=cH2)
    a.stamp(9)
    mphase(a, stP, 2, 8)
    if fine: a.stamp(4)
    a("s_add_u32 s6, s67, 14336\ns_add_u32 s7, s69, 128")
    pend = []
    for k, (t, mp) in enumerate([(0, 0), (0, 1), (1, 0), (1, 1)]):
        pend += pstore(a, MACC, t, mp, 67 if t == 0 else 6, mp * 1024, k)
    state = {"flag": False}
    def hook(ks, i):
        if (ks >= 1 or i >= 3) and i not in (1, 5) and pend:
            ins = pend.pop(0); a(ins)
            if ins.startswith("buffer"): stP.other("e" if not pend else "x")
        if not pend and not state["flag"] and ks == optval("EFLAG", 16) and i == 0:
            a(f"s_waitcnt vmcnt({stP.younger('e')})")
            a.setflag("s7", 14); stP.other()
            state["flag"] = True
    mphase(a, stP, 3, 8, acc=MACC + 32, hook=hook)
    assert state["flag"]
    a.stamp(10)
    a("s_setprio 3")
    a.nop(8)
    for k, (t, mp) in enumerate([(0, 0), (0, 1), (1, 0), (1, 1)]):
        for ins in pstore(a, MACC + 32, t, mp, 67 if t == 0 else 6, 2048 + mp * 1024, k): a(ins)
    a("s_add_u32 s7, s69, 256")
    a("s_waitcnt vmcnt(0)")
    a.setflag("s7", 14)
    a.end()
    a("KB_q:")
    a("s_lshr_b32 s6, s60, 2\ns_sub_u32 s6, s60, s6\ns_mul_i32 s7, s61, 6\ns_add_u32 s6, s6, s7\ns_mul_i32 s6, s6, 3")
    a("s_sub_u32 s7, s3, 4\ns_add_u32 s52, s6, s7")
    a(f"s_mul_i32 s7, s7, {CV_SZ}\ns_add_u32 s53, s7, {CV}")
    a("s_cmp_eq_u32 s3, 7\ns_cselect_b32 s55, 0, 1\ns_cmp_eq_u32 s63, 3\ns_cselect_b32 s55, 0, s55")
    gen_w2load(a)
    a("s_cmp_eq_u32 s3, 7\ns_cbranch_scc1 KB_w7")
    a("s_branch KB_nc")
    a("KB_conv:")
    gen_conv(a, stQ.issue)
    assert stQ.issued == 16
    a(f"s_lshr_b32 s6, s6, 4\ns_mul_i32 s6, s6, 57\ns_lshr_b32 s6, s6, 9\ns_mul_i32 s6, s6, {FB_STRIDE}\ns_add_u32 s6, s6, {FY_OFF}")
    a.ldsadd(VC, V1, cSide)
    a("s_waitcnt vmcnt(0)")
    a.addflag("s6", 14)
    a("s_setprio 0")
    a.stamp(5)
    a("s_branch KB_q3")
    a("KB_w7:")
    a(f"s_mov_b32 s12, s97\ns_mov_b32 s9, {PT7}")
    a("s_branch KB_q2")
    a("KB_nc:")
    a("s_lshr_b32 s12, s97, 2\ns_mul_i32 s12, s12, 3\ns_add_u32 s12, s12, s3\ns_add_u32 s12, s12, 28")
    a(f"s_lshl_b32 s9, s3, 12\ns_add_u32 s9, s9, {CV+36864-4*4096}")
    a("KB_q2:")
    a("s_cmp_ge_u32 s12, 54\ns_cbranch_scc1 KB_q2b")
    W4W = optval("W4W", cG2)
    if W4W >= 0: a.ldswait(VC, 5, 7, 4, W4W, sleep=2)
    a.stamp(2)
    a("s_setprio 3")
    a.srd(44, P_W4, D * F * 2)
    a(f"s_mul_i32 s15, s96, {WSLICE}\ns_add_u32 s8, s15, {W4T_OFF}")
    a("s_mul_i32 s13, s12, 86\ns_lshr_b32 s13, s13, 8\ns_mul_i32 s14, s13, 3\ns_sub_u32 s14, s12, s14")
    a("s_mul_i32 s6, s13, 36864\ns_mul_i32 s14, s14, 384\ns_add_u32 s6, s6, s14\ns_add_u32 s6, s6, s15")
    a("s_movk_i32 s7, 1152\ns_mul_i32 s13, s12, 12288\ns_add_u32 s8, s8, s13")
    gen_pretile(a, 128)
    a(f"s_mul_i32 s6, s96, {FB_STRIDE}\ns_add_u32 s6, s6, {FW4_OFF}")
    a("s_waitcnt vmcnt(0)")
    a.addflag("s6", 14)
    a("s_setprio 0")
    a("KB_q2b:")
    a.stamp(5)
    stQ2 = Stream(a, stQ.segs)
    paced(a, stQ2, 16, 4)
    a("s_waitcnt vmcnt(0)")
    a.ldsadd(VC, V1, cSide)
    a("KB_q3:")
    stQ.other()
    for i in range(NS - 16): stQ.issue()
    addrs()
    a.ldswait(VC, 5, 7, 4, cX2, sleep=1)
    rk()
    a.stamp(7)
    kw = 18 - (NS + 2) // 3
    mphase(a, stQ, 0, 6, 0, kw, prio=2)
    a("s_cmp_lg_u32 s3, 7\ns_cbranch_scc1 KB_q2c")
    a(f"s_mul_i32 s6, s4, {FB_STRIDE}\ns_add_u32 s6, s6, {FW4_OFF}")
    a.cpoll(6, 54, 44, 13, 4)
    a.ldsadd(VC, V1, cW4)
    a("KB_q2c:")
    a.ldswait(VC, 5, 7, 1, cW4)
    mphase(a, stQ, 0, 6, kw, 18, first=False, prio=2)
    a.ldswait(VC, 5, 7, 4, cSide)
    if fine: a.stamp(2)
    a(f"s_lshr_b32 s8, s4, 1\ns_mul_i32 s8, s8, {FB_STRIDE}\ns_add_u32 s8, s8, {FY_OFF}")
    def yhook(i):
        if i == 3:
            a("s_cmp_lg_u32 s3, 7\ns_cbranch_scc1 KB_ys")
            a.vpoll(8, 144, 14, 13)
            a("KB_ys:")
    gphase(a, 10, 12, yhook)
    if fine: a.stamp(3)
    a.subbar(VC, 5, 7, 8, off=cH1)
    a.stamp(8)
    mphase(a, stQ, 1, 8, 0, 12, prio=1)
    if fine: a.stamp(4)
    a.ldswait(VC, 5, 7, 4, cH2, sleep=1)
    a.stamp(9)
    mphase(a, stQ, 1, 8, 12, 18, first=False, prio=1)
    a(f"s_setprio {optval('QT', 1)}")
    a.stamp(10)
    a.nop(8)
    QS = optval("QS", 10)
    for k in range(10):
        if k and k % 4 == 0: a("s_add_u32 s67, s67, 4096")
        ins = pstore(a, MACC, k >> 1, k & 1, 67, (k % 4) * 1024, k)
        for x in ins[:4]: a(x)
        if k >= QS: a(f"s_waitcnt vmcnt({QS-1})")
        a(ins[4])
    a("s_waitcnt vmcnt(0)")
    a.setflag("s69", 14)
    a(f"s_setprio {optval('QF', 0)}")
    gen_final(a)
    a.end()
    a("KB_end:")
    a("s_endpgm")
```

```python
from common import *
import kb4, km
from g1 import gelu_pk
import conv, tail
from kb4 import Stream, mphase, gphase, h_addr, pstore, stage_x, stage_y, gen_final, gen_conv_load, paced, NS, RING, BF, MACC, KC, GT, ML_H, VC, V1

G2_WM, G2_W = 0, 2560
SLOT = 24576
G1_BASE = 76800
G1_AUX = 150528
CV_SZ = 21248
FSCR = 4 * CV_SZ
CNT = 158592
RM = CNT + 128
K6_LDS = RM + 1024
kb4.RM = RM
cG2, cX1, cX2, cFX, cSide, cH1, cA, cH2, cW4, cG1, cFH, cU, cW3, cHs, cW3a, cKV, cXs, cT1, cT2, cT3, cT0, cOwn = [4 * i for i in range(22)]
cU2 = cOwn + 16
km.cG1 = cG1

TB = G1_BASE + SLOT
W4F = optval('W4F', 432)

def last_of(a, off, n, skip):
    a(f"s_mov_b64 exec, 1\nds_add_rtn_u32 v5, v{VC}, v{V1} offset:{off}\ns_mov_b64 exec, -1")
    a("s_waitcnt lgkmcnt(0)")
    a("v_readfirstlane_b32 s7, v5")
    a(f"s_cmp_lg_u32 s7, {n-1}\ns_cbranch_scc1 {skip}")

def gen_g(a):
    BUF, ACC, STA, CSA, SQ, SM, CS, ONE, XA, WA = 32, 96, 112, 124, 140, 144, 148, 152, 184, 188
    log = []
    DM = (18, 20, 22, 28)
    a("v_lshrrev_b32 v2, 2, v1\nv_and_b32 v3, 3, v1\nv_mul_u32_u24 v4, 1152, v2")
    a("v_lshrrev_b32 v6, 5, v1\nv_lshlrev_b32 v6, 1, v6\nv_xor_b32 v6, v6, v3\nv_lshl_add_u32 v6, v6, 4, v4")
    a("s_mul_i32 s10, s60, 147456\ns_mul_i32 s9, s3, 18432\ns_add_u32 s10, s10, s9")
    a("s_lshr_b32 s8, s3, 1\ns_mul_i32 s11, s8, 18432\ns_lshl_b32 s9, s61, 7\ns_add_u32 s11, s11, s9\ns_and_b32 s9, s3, 1\ns_lshl_b32 s9, s9, 6\ns_add_u32 s11, s11, s9")
    a("s_mul_i32 s14, s62, 7\ns_add_u32 s14, s14, 1\ns_mov_b32 s12, s61")
    a("s_lshl_b32 s13, s3, 10")
    a("s_waitcnt lgkmcnt(0)")
    a.srd(48, P_Q, ACT)
    a.srd(44, P_W1, D * D * 2)
    SB = [G2_W, G2_W + SLOT, G2_W + 2 * SLOT, G1_BASE, G1_BASE + SLOT, G1_BASE + 2 * SLOT, G2_W, G2_W + SLOT, G1_BASE]
    def issue(gi):
        sl = SB[gi]
        a("s_add_u32 s12, s12, s14\ns_sub_u32 s9, s12, 9\ns_cmp_ge_u32 s12, 9\ns_cselect_b32 s12, s9, s12")
        a(f"s_lshl_b32 s15, s12, 7\ns_add_u32 s15, s15, s10\ns_add_u32 m0, s13, {sl}\ns_mul_i32 s9, s12, 73728")
        a("buffer_load_dwordx4 v6, s[48:51], s15 offen" + (" nt" if "xnt" in OPT else "") + " lds")
        a("s_add_u32 m0, m0, 8128\ns_add_u32 s9, s9, s11")
        a("buffer_load_dwordx4 v6, s[48:51], s15 offen offset:64" + (" nt" if "xnt" in OPT else "") + " lds")
        a("s_add_u32 m0, m0, 8256\ns_nop 0")
        a("buffer_load_dwordx4 v6, s[44:47], s9 offen" + (" nt" if "wnt" in OPT else "") + " lds")
        log.extend(["x", "x", f"g{gi}"])
    younger = lambda key: len(log) - 1 - log.index(key)
    issue(0); issue(1)
    if "w1t" in OPT:
        a("s_mul_i32 s8, s62, 288\ns_lshl_b32 s9, s61, 6\ns_add_u32 s8, s8, s9\ns_add_u32 s8, s8, 32\ns_mul_i32 s9, s3, 36\ns_add_u32 s8, s8, s9")
        a("v_min_u32 v7, 35, v1\nv_add_u32 v7, s8, v7\nv_subrev_u32 v8, 576, v7\nv_min_u32 v7, v7, v8\nv_mul_u32_u24 v7, 1152, v7\ns_lshl_b32 s9, s61, 7")
        a("buffer_load_dword v31, v7, s[44:47], s9 offen")
        log.append("t")
    a.srd(56, P_WS, WS_BYTES)
    a("s_cmp_lg_u32 s3, 0\ns_cbranch_scc1 G_pf")
    a("s_mov_b64 exec, 0xffff")
    a(f"v_lshl_add_u32 v7, v1, 2, v{VC}\nv_mov_b32 v8, 0\nds_write2_b32 v7, v8, v8 offset0:0 offset1:16")
    a("s_mov_b64 exec, -1")
    a("G_pf:")
    a.srd(52, P_W2, D * D * 2)
    a("v_bfe_u32 v7, v1, 4, 1\nv_lshlrev_b32 v8, 1, v7\nv_xor_b32 v8, v8, v3\nv_lshl_add_u32 v30, v8, 4, v4")
    a(f"v_lshlrev_b32 v12, 6, v2\nv_lshl_add_u32 v12, v7, 5, v12\nv_lshl_add_u32 v12, v3, 3, v12\nv_add_u32 v22, {G2_W}, v12\nv_xor_b32 v23, 32, v22")
    a(f"s_mov_b32 s66, s11\ns_lshl_b32 s67, s3, 10\ns_add_u32 s67, s67, {G2_W}")
    a("v_and_b32 v2, 15, v1\nv_lshrrev_b32 v3, 4, v1")
    a("v_bfe_u32 v4, v1, 3, 1\nv_lshlrev_b32 v4, 1, v4")
    a("v_xor_b32 v5, v4, v3\nv_lshl_add_u32 v5, v2, 2, v5\nv_lshlrev_b32 v5, 4, v5")
    a("s_and_b32 s63, s3, 3\ns_lshr_b32 s64, s3, 2\ns_and_b32 s69, s3, 1\ns_lshr_b32 s70, s63, 1\ns_lshl_b32 s71, s63, 1\ns_add_u32 s71, s71, s64")
    a("s_lshl_b32 s9, s71, 10\ns_lshl_b32 s8, s69, 13\ns_add_u32 s9, s9, s8\nv_add_u32 v5, s9, v5")
    for i, x in enumerate((0, 1024, 8192, 9216)): a(f"v_xor_b32 v{XA+i}, {x}, v5\nv_add_u32 v{XA+i}, {G2_W}, v{XA+i}")
    a("v_lshrrev_b32 v5, 1, v3\nv_lshlrev_b32 v11, 11, v5\nv_and_b32 v8, 1, v3\nv_lshl_add_u32 v11, v8, 9, v11")
    a("v_lshrrev_b32 v7, 2, v2\nv_lshl_add_u32 v11, v7, 6, v11\nv_and_b32 v7, 3, v1\nv_lshl_add_u32 v11, v7, 3, v11\nv_lshl_add_u32 v11, v8, 5, v11")
    a("s_lshl_b32 s9, s64, 10\ns_lshl_b32 s8, s69, 12\ns_add_u32 s9, s9, s8\nv_add_u32 v11, s9, v11\ns_lshl_b32 s8, s70, 5\nv_xor_b32 v11, s8, v11")
    for i, x in enumerate((0, 32, 4096, 4128)): a(f"v_xor_b32 v{WA+i}, {x}, v11\nv_add_u32 v{WA+i}, {G2_W+16384}, v{WA+i}")
    a(f"v_xor_b32 v5, v5, v4\nv_lshl_add_u32 v5, v2, 2, v5\nv_lshlrev_b32 v20, 4, v5\nv_lshl_add_u32 v20, v8, 3, v20\ns_add_u32 s9, s13, {G1_BASE}\nv_add_u32 v20, s9, v20\nv_xor_b32 v21, 32, v20")
    a("v_lshlrev_b32 v13, 4, v2\nv_lshlrev_b32 v18, 4, v3\nv_lshlrev_b32 v25, 4, v1")
    a(f"s_lshl_b32 s9, s71, 8\ns_add_u32 s9, s9, {G1_AUX}\nv_add_u32 v26, s9, v13\nv_xor_b32 v27, 256, v26")
    a(f"s_lshl_b32 s9, s64, 8\ns_lshl_b32 s8, s70, 7\ns_add_u32 s9, s9, s8\ns_add_u32 s9, s9, {G1_AUX+2048}\nv_add_u32 v28, s9, v18\nv_xor_b32 v29, 128, v28\ns_lshl_b32 s8, s69, 6\nv_add_u32 v24, s8, v28")
    a(f"s_lshl_b32 s65, s60, 3\ns_add_u32 s65, s65, s71\ns_lshl_b32 s68, s65, 8\ns_add_u32 s68, s68, {ST1_OFF}\ns_xor_b32 s98, s65, 1")
    a(f"s_lshl_b32 s9, s61, 11\ns_lshl_b32 s8, s64, 10\ns_add_u32 s9, s9, s8\ns_add_u32 s9, s9, {H_OFF}\ns_mul_i32 s65, s65, 18432\ns_add_u32 s65, s65, s9\ns_mul_i32 s98, s98, 18432\ns_add_u32 s98, s98, s9")
    a(f"v_mov_b32 v160, {fh(GC0)}\nv_mov_b32 v161, {fh(GC0)}\nv_mov_b32 v162, {fh(GC1)}\nv_mov_b32 v163, {fh(GC1)}\nv_mov_b32 v164, 1.0\nv_mov_b32 v165, 1.0")
    for r in range(4): a(f"v_mov_b32 v{ONE+r}, 0x3f803f80")
    a("v_lshlrev_b32 v7, 2, v3\nv_sub_u32 v19, v2, v7")
    def w2issue(part):
        for i in range(3 * part, 3 * part + 3):
            a(f"s_add_u32 m0, s67, {8192*i}\ns_add_u32 s9, s66, {73728*i}")
            a("buffer_load_dwordx4 v30, s[52:55], s9 offen" + (" nt" if "w2nt" in OPT else "") + " lds")
            log.append("w")
    def reads(gi):
        o0 = SB[gi] - (G2_W if SB[gi] < G1_BASE else G1_BASE)
        b = BUF + 32 * (gi & 1)
        o = []
        for k2 in range(2):
            for mi in range(2): o.append(f"ds_read_b128 {v(b+16*k2+4*mi,4)}, v{XA+2*k2+mi} offset:{o0}")
            for t in range(2):
                for jh in range(2): o.append(f"ds_read_b64_tr_b16 {v(b+16*k2+8+4*t+2*jh,2)}, v{WA+2*k2+t} offset:{o0+256*jh}")
        return o
    for r in range(4): a(f"v_cmp_eq_u32 {s(DM[r],2)}, {r}, v19")
    fin = [f"v_cndmask_b32 v{STA}, 0, v{SQ}, {s(DM[0],2)}"] + [f"v_cndmask_b32 v{STA}, v{STA}, v{SQ+r}, {s(DM[r],2)}" for r in range(1, 4)]
    fin += [f"v_mul_f32 v{STA+2}, {fh(-1.0/D)}, v{SM}"]
    fin += [f"v_mov_b32 v7, v{STA}", "s_nop 1", f"v_permlane32_swap_b32 v{STA}, v7", f"v_add_f32 v{STA}, v{STA}, v7"]
    fin += [f"v_mov_b32 v7, v{STA}", "s_nop 1", f"v_permlane16_swap_b32 v{STA}, v7", f"v_add_f32 v{STA}, v{STA}, v7"]
    fin += f"v_mul_f32 v7, {fh(1.0/D)}, v{STA}\nv_fma_f32 v7, -v{STA+2}, v{STA+2}, v7\nv_max_f32 v7, 0, v7\nv_add_f32 v8, {fh(EPS)}, v7\nv_rsq_f32 v{STA}, v8\ns_nop 0".split("\n")
    fin += f"v_mul_f32 v8, v{STA}, v{STA}\nv_fmaak_f32 v8, v8, v7, {fh(EPS)}\nv_rsq_f32 v8, v8\nv_mul_f32 v{STA+1}, v{STA+2}, v{STA}\nv_mul_f32 v{STA+3}, v8, v{STA}".split("\n")
    LP, LQ = optval("LP", 2), optval("LQ", 3)
    log0 = list(log); fin0 = list(fin)
    a("s_cmp_ge_u32 s3, 4\ns_cbranch_scc1 G_lq")
    for role in "PQ":
        log[:] = log0; fin[:] = fin0
        LA = LP if role == "P" else LQ
        if role == "Q": a("G_lq:")
        for g in range(2, LA): issue(g)
        for gi in range(10):
            rd = []
            if gi < 9:
                if gi in (3, 6, 8):
                    for r in range(8): a(f"v_add_u32 v{XA+r}, {(G1_BASE-G2_W) if gi != 6 else -(G1_BASE-G2_W)}, v{XA+r}")
                a(f"s_waitcnt vmcnt({younger(f'g{gi}')}) lgkmcnt(0)\ns_barrier")
                if gi == 0 or "g1t" in OPT: a.stamp(1 + gi)
                rd = reads(gi)
            else: a("s_waitcnt lgkmcnt(0)")
            def mem():
                if gi + LA < 9: issue(gi + LA)
            for _ in range(optval("RF", 0)):
                if rd: a(rd.pop(0))
            if role == "P" and gi < 7: mem()
            if gi > 0:
                b = BUF + 32 * ((gi - 1) & 1)
                z = "0" if gi == 1 else None
                mm = [(SQ, b, b, z), (SM, ONE, b, z), (SQ, b + 16, b + 16, None), (SM, ONE, b + 16, None), (CS, b + 8, ONE, z)]
                mm += [(ACC + 8 * mi + 4 * t, b + 16 * k2 + 8 + 4 * t, b + 16 * k2 + 4 * mi, z if k2 == 0 else None) for k2 in range(2) for t in range(2) for mi in range(2)]
                for n, (d, x, y, c) in enumerate(mm):
                    if rd: a(rd.pop(0))
                    a.mfma(d, x, y, c)
                    if gi == 9 and n == 5: a.nop(5)
                    if gi == 9 and n >= 5:
                        for _ in range(5):
                            if fin: a(fin.pop(0))
            for r in rd: a(r)
            if role == "Q": mem()
            if gi in (6, 7, 8): w2issue((2, 0, 1)[gi - 6])
            if gi == 8: a(f"s_load_dword s69, {s(P_DBG,2)}, 0")
        if role == "P": a("s_branch G_lj")
    a("G_lj:")
    for x in fin: a(x)
    a(f"ds_write_b128 v24, {v(CS,4)}")
    a(f"ds_write_b128 v26, {v(STA,4)}")
    a("s_waitcnt lgkmcnt(0)\ns_barrier")
    a.stamp(2 if "g1t" not in OPT else 10)
    if "g1t" in OPT: a.end()
    for t in range(2):
        for q in range(2): a(f"ds_read_b128 {v(CSA+8*t+4*q,4)}, v{28+t} offset:{64*q}")
    a(f"ds_read_b128 {v(STA+4,4)}, v27")
    a(f"s_mov_b32 s63, {W2M_OFF}\nv_min_u32 v31, 240, v25\nv_mov_b32 v192, 0\ns_cmp_eq_u32 s69, 0\ns_cselect_b32 s9, 0, s3\ns_cmp_lg_u32 s9, 7\ns_cbranch_scc1 G_w0")
    a("buffer_load_dwordx4 v[192:195], v25, s[56:59], s63 offen sc1\nbuffer_load_dwordx4 v[196:199], v25, s[56:59], s63 offen offset:1024 sc1\nbuffer_load_dwordx4 v[200:203], v31, s[56:59], s63 offen offset:2048 sc1")
    a("G_w0:")
    a("s_mov_b32 s100, 2\ns_cmp_lt_u32 s3, 4\ns_cbranch_scc1 G_t0\ns_cmp_ge_u32 s2, 128\ns_cbranch_scc1 G_t0\ns_mov_b32 s100, 0")
    conv.team_k(a, TB, 25, 5)
    a("G_t0:")
    a("s_cmp_lg_u32 s61, 0\ns_cbranch_scc1 G_ns")
    a(f"s_mov_b64 exec, 0xffff\nbuffer_store_dwordx4 {v(STA,4)}, v13, s[56:59], s68 offen sc1\ns_mov_b64 exec, -1")
    a("G_ns:")
    a(f"v_mov_b32 v{STA+8}, v{STA+2}\nv_mov_b32 v{STA+9}, v{STA+2}\nv_mov_b32 v{STA+10}, v{STA+3}\nv_mov_b32 v{STA+11}, v{STA+3}")
    a("s_waitcnt lgkmcnt(0)")
    for t in range(2):
        for e in range(0, 4, 2): a(f"v_pk_add_f32 {v(CSA+8*t+e,2)}, {v(CSA+8*t+e,2)}, {v(CSA+8*t+4+e,2)}")
    a(f"v_mov_b32 v{STA+4}, v{STA+6}\nv_mov_b32 v{STA+5}, v{STA+6}\nv_mov_b32 v{STA+6}, v{STA+7}")
    for mi in range(2):
        c = STA + 8 - 4 * mi
        regs = [ACC + 8 * mi + e for e in range(8)]
        for e in range(0, 8, 2): a(f"v_pk_fma_f32 {v(regs[e],2)}, {v(c,2)}, {v(CSA+8*(e>>2)+(e&3),2)}, {v(regs[e],2)}")
        for e in range(0, 8, 2): a(f"v_pk_mul_f32 {v(regs[e],2)}, {v(regs[e],2)}, {v(c+2,2)}")
        gelu_pk(a, regs, list(range(168, 176)), "v[160:161]", "v[162:163]", "v[164:165]")
        l1 = a.lab("GS"); l2 = a.lab("GT")
        a(f"s_cmp_lg_u32 s70, 0\ns_cbranch_scc1 {l1}")
        for e in range(4): a(f"v_cvt_pk_bf16_f32 v{176+4*mi+e}, v{regs[2*e]}, v{regs[2*e+1]}")
        a(f"s_branch {l2}\n{l1}:")
        for e in range(4): a(f"v_cvt_pk_bf16_f32 v{176+4*mi+(e^2)}, v{regs[2*e]}, v{regs[2*e+1]}")
        a(f"{l2}:")
        a(f"buffer_store_dwordx4 {v(176+4*mi,4)}, v25, s[56:59], s{65 if mi == 0 else 98} offen sc1")
    a.stamp(3)
    HB, AR, AC2 = 32, 104, 224
    a("v_lshlrev_b32 v2, 4, v1\nv_add_u32 v3, 4096, v2\nv_lshlrev_b32 v4, 2, v1")
    a("s_lshl_b32 s8, s60, 3\ns_add_u32 s8, s8, s3")
    a("v_and_b32 v11, 1, v1\nv_lshlrev_b32 v11, 6, v11\nv_add_u32 v11, v11, v18")
    a("v_add_u32 v28, 36864, v22\nv_add_u32 v29, 36864, v23")
    a("v_and_b32 v8, 15, v1\ns_lshl_b32 s10, s8, 4\nv_add_u32 v8, s10, v8\nv_lshlrev_b32 v9, 4, v18\ns_movk_i32 s13, 18432\nv_mov_b32 v10, 0x80000000")
    for gam, sh in enumerate((-1, 1, -2, 2)):
        a(f"v_add_u32 v5, {sh}, v8\nv_cmp_gt_u32 vcc, {S}, v5\nv_lshrrev_b32 v6, 4, v5\nv_mad_u32_u24 v6, v6, s13, v9\nv_and_b32 v5, 15, v5\nv_lshl_add_u32 v6, v5, 4, v6")
        a(f"v_cndmask_b32 v{24+gam}, v10, v6, vcc")
    a(f"s_mul_i32 s11, s8, 18432\ns_lshl_b32 s9, s61, 11\ns_add_u32 s11, s11, s9\ns_add_u32 s11, s11, {X1_OFF}")
    a(f"s_mul_i32 s6, s60, {FB_STRIDE}\ns_add_u32 s6, s6, {FH_OFF}\ns_lshl_b32 s10, s3, 8\ns_add_u32 s10, s10, {G1_AUX}\nv_add_u32 v13, s10, v13\ns_mov_b32 s14, {H_OFF}")
    a("ds_read_b64 v[18:19], v13")
    a("s_cmp_lg_u32 s69, 0\ns_cbranch_scc1 G_zk")
    a.zcheck(14, 9, False)
    a("G_zk:")
    G2E = "g2l" not in OPT
    if not G2E: a("s_waitcnt vmcnt(0)")
    def hsig():
        last_of(a, cHs, 8, "G_hs")
        a.sadd(6, 7)
        a("G_hs:")
        a.stamp(4)
    if not G2E: hsig()
    else: a("s_waitcnt vmcnt(2)")
    a("s_cmp_lg_u32 s3, 7\ns_cbranch_scc1 G_wm")
    a("s_mov_b32 s13, 0x20000")
    a("W2_m:")
    a("v_min3_u32 v6, v192, v196, v200\nv_cmp_eq_u32 vcc, 0, v6\ns_cbranch_vccz W2_n")
    a("buffer_load_dwordx4 v[192:195], v2, s[56:59], s63 offen sc1\nbuffer_load_dwordx4 v[196:199], v2, s[56:59], s63 offen offset:1024 sc1\nbuffer_load_dwordx4 v[200:203], v31, s[56:59], s63 offen offset:2048 sc1")
    a("s_waitcnt vmcnt(0)\ns_sleep 2\ns_sub_u32 s13, s13, 1\ns_cbranch_scc0 W2_m")
    a("W2_n:")
    a(f"ds_write_b128 v2, v[192:195] offset:{G2_WM}\nds_write_b128 v2, v[196:199] offset:{G2_WM+1024}\nds_write_b128 v31, v[200:203] offset:{G2_WM+2048}")
    a("s_waitcnt lgkmcnt(0)")
    a("G_wm:")
    if G2E:
        a("s_waitcnt vmcnt(0)")
        hsig()
    a("s_barrier")
    NA = 6
    def ard(ks):
        b = AR + 20 * (ks % NA)
        o = [f"ds_read_b128 {v(b,4)}, v11 offset:{G2_WM+128*ks}"]
        for t in range(4):
            for jh in range(2):
                off = ((ks * 2 + jh) * 2 + (t >> 1)) * 1024
                ad = 22 + (t & 1)
                if off >= 36864: off -= 36864; ad += 6
                o.append(f"ds_read_b64_tr_b16 {v(b+4+4*t+2*jh,2)}, v{ad} offset:{off}")
        return o
    for ks in range(NA):
        for r in ard(ks): a(r)
    for t in range(4): a(f"ds_read_b64 {v(244+2*t,2)}, v{20+(t&1)} offset:{8192*(t>>1)}")
    a("s_cmp_lg_u32 s3, 1\ns_cbranch_scc1 G2_hw")
    a.cpoll(6, 9, 48, 13, 1)
    a("G2_hw:")
    a("s_cmp_lg_u32 s100, 0\ns_cbranch_scc1 G_t1")
    a(f"s_add_u32 s7, s2, 448\ns_lshr_b32 s7, s7, 6\ns_lshl_b32 s7, s7, 7\ns_add_u32 s99, s7, {FKV_OFF+2*(FB_STRIDE-384)}")
    a("G_t1:")
    a(f"s_sub_u32 s7, s6, {FB_STRIDE}\ns_add_u32 s12, s6, {FB_STRIDE}\ns_cmp_eq_u32 s3, 0\ns_cselect_b32 s12, s7, s12")
    a("s_waitcnt lgkmcnt(0)\ns_barrier")
    a("s_add_u32 s7, s8, 1\ns_and_b32 s9, s7, 7\ns_cmp_ge_u32 s9, 2\ns_cbranch_scc1 G2_hg\ns_and_b32 s7, s7, 127\ns_cmp_lt_u32 s7, 2\ns_cbranch_scc1 G2_hg")
    a.cpoll(12, 9, 48, 13, 1)
    a("G2_hg:")
    a(f"s_cmp_lg_u32 s100, 0\ns_cbranch_scc1 G_t3\ns_load_dword s49, {s(P_WS,2)}, s99\nG_t3:")
    a.stamp(5)
    hl = []
    for ks in range(18):
        pre = "s_add_u32 s14, s14, 4096\n" if ks and ks % 4 == 0 else ""
        g0, g1_ = (2 * ks) // 9, (2 * ks + 1) // 9
        if g0 == g1_: hl.append((pre + f"buffer_load_dwordx4 {v(HB+4*ks,4)}, v{24+g0}, s[56:59], s14 offen offset:{(ks%4)*1024} sc1", 1))
        else: hl.append((pre + f"buffer_load_dwordx2 {v(HB+4*ks,2)}, v{24+g0}, s[56:59], s14 offen offset:{(ks%4)*1024} sc1\nbuffer_load_dwordx2 {v(HB+4*ks+2,2)}, v{24+g1_}, s[56:59], s14 offen offset:{(ks%4)*1024+8} sc1", 2))
    if 'hpl' in OPT: hl = [(x.replace(' sc1', ''), n) for x, n in hl]
    HD = optval("HD", 5)
    log2 = []
    def hissue(ks):
        a(hl[ks][0]); log2.extend(["x"] * (hl[ks][1] - 1) + [ks])
    for ks in range(HD): hissue(ks)
    for ks in range(18):
        lg = "" if ks < NA else f" lgkmcnt({min(15, 9*min(NA-1, 17-ks))})"
        a(f"s_waitcnt vmcnt({len(log2)-1-log2.index(ks)}){lg}")
        if ks + HD < 18: hissue(ks + HD)
        if ks == 1:
            a("s_cmp_lg_u32 s100, 0\ns_cbranch_scc1 G_t2\ns_waitcnt lgkmcnt(0)\ns_cmp_eq_u32 s49, 0\ns_cbranch_scc1 G_t2\ns_mov_b32 s100, 1")
            conv.team_kv(a, TB)
            a("G_t2:")
        rd = ard(ks + NA) if ks + NA < 18 else []
        b = AR + 20 * (ks % NA)
        for t in range(5):
            a.mfma(AC2 + 4 * t, b + 4 * t, HB + 4 * ks, "0" if ks == 0 else None)
            for _ in range(1 if t == 0 else 2):
                if rd: a(rd.pop(0))
    a.stamp(6)
    for e in range(8): a(f"v_lshlrev_b32 v{HB+2*e}, 16, v{244+e}\nv_and_b32 v{HB+2*e+1}, 0xffff0000, v{244+e}")
    a(f"v_add_f32 v9, v{AC2}, v{AC2+1}")
    a("v_sub_f32 v28, v19, v9\nv_sub_f32 v29, v19, v9\nv_mov_b32 v19, v18\nv_mov_b32 v10, 0\nv_mov_b32 v11, 0")
    for p in range(2):
        for e in range(0, 8, 2): a(f"v_pk_fma_f32 {v(HB+8*p+e,2)}, {v(HB+8*p+e,2)}, v[18:19], v[28:29]")
        for e in range(0, 8, 2): a(f"v_pk_add_f32 {v(HB+8*p+e,2)}, {v(HB+8*p+e,2)}, {v(AC2+4+8*p+e,2)}")
        for e in range(4): a(f"v_cvt_pk_bf16_f32 v{AR+4*p+e}, v{HB+8*p+2*e}, v{HB+8*p+2*e+1}")
        a(f"buffer_store_dwordx4 {v(AR+4*p,4)}, v2, s[56:59], s11 offen offset:{p*1024} sc1")
    for e in range(0, 16, 2): a(f"v_pk_fma_f32 v[10:11], {v(HB+e,2)}, {v(HB+e,2)}, v[10:11]")
    a("v_add_f32 v10, v10, v11")
    gsum(a, 10, 11)
    a(f"s_mul_i32 s10, s60, 9\ns_add_u32 s10, s10, s61\ns_lshl_b32 s10, s10, 9\ns_lshl_b32 s12, s3, 6\ns_add_u32 s10, s10, s12\ns_add_u32 s10, s10, {SS_OFF}")
    a(f"s_lshl_b32 s12, s8, 6\ns_add_u32 s12, s12, {MEAN_OFF}")
    a("s_mov_b64 exec, 0xffff")
    a("buffer_store_dword v10, v4, s[56:59], s10 offen sc1")
    a("s_cmp_lg_u32 s61, 0\ns_cbranch_scc1 G2_m")
    a("buffer_store_dword v9, v4, s[56:59], s12 offen sc1")
    a("G2_m:")
    a("s_mov_b64 exec, -1")
    a(f"s_sub_u32 s6, s6, {FH_OFF-FX_OFF}")
    consts(a)
    a("s_waitcnt vmcnt(0)")
    last_of(a, cG2, 8, "G_xs")
    a.sadd(6, 7)
    a("G_xs:")
    a.stamp(7)

def gen_stats(a):
    R = 32
    a("v_lshrrev_b32 v2, 2, v1\nv_and_b32 v3, 3, v1\nv_mul_u32_u24 v4, 1152, v2\nv_lshl_add_u32 v4, v3, 4, v4")
    a("s_mul_i32 s7, s6, 18432")
    a.srd(44, P_Q, ACT)
    for i in range(18): a(f"buffer_load_dwordx4 {v(R+4*i,4)}, v4, s[44:47], s7 offen offset:{64*i}")
    a("s_barrier")
    a("v_mov_b32 v8, 0x3f803f80")
    for r in range(4): a(f"v_mov_b32 v{20+r}, 0")
    for i in range(18):
        if i % 3 == 0: a(f"s_waitcnt vmcnt({15-i})")
        for d in range(4):
            a(f"v_dot2c_f32_bf16 v{20+(d&1)}, v{R+4*i+d}, v8\nv_dot2c_f32_bf16 v{22+(d&1)}, v{R+4*i+d}, v{R+4*i+d}")
    a.ldsadd(VC, V1, cG1)
    a("v_add_f32 v20, v20, v21\nv_add_f32 v22, v22, v23\ns_nop 1")
    for qp in ("[1,0,3,2]", "[2,3,0,1]"):
        a(f"v_add_f32_dpp v20, v20, v20 quad_perm:{qp} row_mask:0xf bank_mask:0xf")
        a(f"v_add_f32_dpp v22, v22, v22 quad_perm:{qp} row_mask:0xf bank_mask:0xf")
        a("s_nop 1")
    a(f"v_mul_f32 v26, {fh(-1.0/D)}, v20\nv_mul_f32 v22, {fh(1.0/D)}, v22")
    a("v_fma_f32 v22, -v26, v26, v22\nv_max_f32 v22, 0, v22")
    a(f"v_add_f32 v21, {fh(EPS)}, v22\nv_rsq_f32 v24, v21\ns_nop 0")
    a(f"v_mul_f32 v21, v24, v24\nv_fmaak_f32 v21, v21, v22, {fh(EPS)}\nv_rsq_f32 v21, v21")
    a("v_mul_f32 v25, v26, v24\nv_mul_f32 v27, v21, v24\nv_or_b32 v24, 1, v24")
    a(f"v_lshlrev_b32 v5, 4, v2\ns_lshl_b32 s7, s6, 8\ns_add_u32 s7, s7, {ST1_OFF}")
    a.zcheck(14, 9, False)
    a("s_mov_b32 exec_lo, 0x11111111\ns_mov_b32 exec_hi, 0x11111111")
    a("buffer_store_dwordx4 v[24:27], v5, s[56:59], s7 offen sc1")
    a("s_mov_b64 exec, -1")

def gen_colsum(a):
    R = 32
    a("s_mul_i32 s7, s6, 57\ns_lshr_b32 s7, s7, 9\ns_mul_i32 s8, s7, 9\ns_sub_u32 s8, s6, s8")
    a("v_lshrrev_b32 v2, 3, v1\nv_and_b32 v3, 7, v1\nv_mul_u32_u24 v4, 1152, v2\nv_lshl_add_u32 v4, v3, 4, v4")
    a("s_mul_i32 s10, s7, 165888\ns_lshl_b32 s11, s8, 7\ns_add_u32 s10, s10, s11")
    a.srd(44, P_W1, D * D * 2)
    for i in range(18):
        a(f"buffer_load_dwordx4 {v(R+4*i,4)}, v4, s[44:47], s10 offen\ns_add_u32 s10, s10, 9216")
    a("s_barrier")
    for i in range(18):
        if i % 3 == 0: a(f"s_waitcnt vmcnt({15-i})")
        d = 20 if i == 0 else 104
        for e in range(4): a(f"v_lshlrev_b32 v{d+2*e}, 16, v{R+4*i+e}\nv_and_b32 v{d+2*e+1}, 0xffff0000, v{R+4*i+e}")
        if i:
            for e in range(4): a(f"v_pk_add_f32 {v(20+2*e,2)}, {v(20+2*e,2)}, {v(104+2*e,2)}")
    a.ldsadd(VC, V1, cG1)
    for e in range(8): a(f"v_add_f32_dpp v{20+e}, v{20+e}, v{20+e} row_ror:8 row_mask:0xf bank_mask:0xf")
    for e in range(8): gsum(a, 20 + e, 5)
    for e in range(8): a(f"v_or_b32 v{20+e}, 1, v{20+e}")
    a(f"v_lshlrev_b32 v5, 5, v1\ns_mul_i32 s7, s7, 2304\ns_lshl_b32 s8, s8, 8\ns_add_u32 s7, s7, s8\ns_add_u32 s7, s7, {CSUM_OFF}")
    a.zcheck(14, 9, False)
    a("s_mov_b64 exec, 0xff")
    a("buffer_store_dwordx4 v[20:23], v5, s[56:59], s7 offen sc1\nbuffer_store_dwordx4 v[24:27], v5, s[56:59], s7 offen offset:16 sc1")
    a("s_mov_b64 exec, -1")

def consts(a):
    if "nf1" in OPT: a("s_mov_b32 s4, s96\ns_mov_b32 s5, s97")
    elif "nf2" in OPT:
        a("s_and_b32 s4, s96, 3\ns_lshl_b32 s4, s4, 1\ns_and_b32 s7, s97, 1\ns_add_u32 s4, s4, s7\ns_lshr_b32 s5, s96, 2\ns_lshl_b32 s5, s5, 4\ns_lshr_b32 s7, s97, 1\ns_add_u32 s5, s5, s7")
    else:
        a("s_and_b32 s4, s96, 1\ns_lshl_b32 s4, s4, 2\ns_and_b32 s7, s97, 3\ns_add_u32 s4, s4, s7\ns_lshr_b32 s5, s96, 1\ns_lshl_b32 s5, s5, 3\ns_lshr_b32 s7, s97, 2\ns_add_u32 s5, s5, s7")
    km.consts2(a)

def gen_f(a, stP):
    a("s_cmp_lg_u32 s3, 0\ns_cbranch_scc1 F_pf")
    a("s_mov_b64 exec, 0xffff")
    a(f"v_lshl_add_u32 v7, v1, 2, v{VC}\nv_mov_b32 v8, 0\nds_write2_b32 v7, v8, v8 offset0:0 offset1:16")
    a("s_mov_b64 exec, -1")
    a("F_pf:")
    a(f"s_mul_i32 s61, s3, {CV_SZ}\ns_lshl_b32 s7, s3, 12\ns_add_u32 s7, s7, {FSCR-4*4096}\ns_cmp_ge_u32 s3, 4\ns_cselect_b32 s61, s7, s61")
    a("s_sub_u32 s65, 111, s60\ns_cmp_lt_u32 s3, 4\ns_cselect_b32 s65, s60, s65" if "rev" in OPT else "s_mov_b32 s65, s60")
    a("s_mul_i32 s12, s3, 112\ns_add_u32 s12, s12, s65\ns_mov_b32 s13, s61")
    a("s_waitcnt lgkmcnt(0)")
    a.srd(56, P_WS, WS_BYTES)
    a("s_cmp_eq_u32 s99, 1\ns_cbranch_scc1 F_pt\ns_barrier")
    if optval("FDLY", 0): a(f"s_sleep {optval('FDLY', 0)}")
    a("s_cmp_ge_u32 s12, 306\ns_cbranch_scc1 F_pt")
    a("s_setprio 2\ns_cmp_lt_u32 s12, 288\ns_cbranch_scc1 F_kv")
    a("s_sub_u32 s6, s12, 288")
    km.gen_meantile(a)
    a.ldsadd(VC, V1, cKV)
    a("s_branch F_done")
    a("F_kv:\ns_mov_b32 s6, s12")
    if "nobulk" in OPT: a("s_sleep 100\ns_branch F_end")
    st = a.stamps; a.stamps = False
    km.gen_kv(a)
    a.stamps = st
    a.stamp(5)
    a(f"s_mul_i32 s11, s8, {FB_STRIDE}\ns_add_u32 s11, s11, {FKC_OFF}")
    a("s_branch F_sig")
    a("F_pt:")
    a(f"s_mov_b32 s64, 0\ns_cmp_lt_u32 s12, {optval('FUN', 450)}\ns_cbranch_scc1 F_job")
    a("s_cmp_ge_u32 s12, 738\ns_cbranch_scc1 F_r2")
    a.ldswait(VC, 5, 7, optval('FJW', 4), cKV, sleep=4)
    a("F_job:")
    a(f"s_setprio {optval('JP', 1)}")
    a("s_sub_u32 s12, s12, 306\ns_and_b32 s62, s12, 7\ns_lshr_b32 s12, s12, 3\ns_mov_b32 s9, s61")
    n0 = len(a.L)
    km.job_setup(a, "JS")
    a.L[n0:] = [x.replace("s96", "s62") for x in a.L[n0:]]
    gen_pretile(a, 128)
    a(f"s_mov_b32 s6, s98\ns_add_u32 s11, s6, {FCNT}")
    a("F_sig:")
    a.zcheck(14, 13)
    a.ldsadd(VC, V1, cKV)
    a.stamp(6)
    a.sarrive(6, "s100", 8, 11)
    a("F_done:")
    a.stamp(2)
    a("s_cmp_lt_u32 s3, 4\ns_cbranch_scc1 F_cv")
    a("s_cmp_lg_u32 s64, 0\ns_cbranch_scc1 F_end")
    a("F_r2:")
    R2 = os.environ.get("R2", "kv6")
    if R2 == "kv6": a.ldswait(VC, 5, 7, 6, cKV, sleep=4)
    if R2 == "cv": a.ldswait(VC, 5, 7, 4, cT1, sleep=4)
    if R2 == "cv2": a.ldswait(VC, 5, 7, 4, cT2, sleep=4)
    GJ = optval("GJ", 64)
    if GJ < 0:
        a("s_mov_b32 s64, 1\ns_sub_u32 s12, 7, s3\ns_mul_i32 s12, s12, 112\ns_add_u32 s12, s12, s65\ns_add_u32 s12, s12, 738\ns_cmp_lt_u32 s12, 1170\ns_cbranch_scc1 F_job")
    else:
        a.zcheck(14, 13, False)
        a(f"s_add_u32 s7, s96, s97\ns_and_b32 s7, s7, 7\ns_mul_i32 s8, s7, {FB_STRIDE}\ns_add_u32 s8, s8, {FKC_OFF+128}\ns_mov_b32 s12, 1\ns_atomic_add s12, {s(P_WS,2)}, s8 glc\ns_waitcnt lgkmcnt(0)")
        a(f"s_mov_b32 s64, 1\ns_lshl_b32 s12, s12, 3\ns_add_u32 s12, s12, s7\ns_add_u32 s12, s12, 738\ns_cmp_lt_u32 s12, {1170-GJ}\ns_cbranch_scc1 F_job")
    a("F_end:")
    if "g1t" in OPT: a.end()
    a("v_lshlrev_b32 v2, 4, v1\nv_add_u32 v3, 4096, v2\nv_lshlrev_b32 v4, 2, v1")
    consts(a)
    a("s_branch K6_q")
    a("F_cv:")
    if "g1t" in OPT: a.end()
    a("v_lshlrev_b32 v2, 4, v1\nv_add_u32 v3, 4096, v2\nv_lshlrev_b32 v4, 2, v1")
    consts(a)
    a("s_lshl_b32 s6, s60, 2\ns_add_u32 s6, s6, s3\ns_mov_b32 s7, s61\ns_setprio 3")
    def wait_kv():
        a("s_cmp_lg_u32 s3, 0\ns_cbranch_scc1 F_kw")
        conv.kv_flag_addr(a, 8)
        a.cpoll(8, 1, 44, 13, 2)
        a.ldsadd(VC, V1, cXs)
        a("F_kw:")
        a.ldswait(VC, 5, 8, 1, cXs)
        a.stamp(3)
    def gate(pre):
        if pre == 2:
            a.ldsadd(VC, V1, cT1)
            return
        if not pre: a.ldsadd(VC, V1, cT2)
        if pre:
            a(f"s_add_u32 s55, s70, 128\ns_load_dword s53, {s(P_WS,2)}, s55")
            return
        a("s_cmp_lg_u32 s53, 0\ns_cbranch_scc1 F_w3")
        a.cpoll(55, 1, 44, 13, 8)
        a("F_w3:")
    conv.single(a, wait_kv, gate, stP.issue)
    assert stP.issued == 16
    a.stamp(4)
    a("v_mov_b32 v5, 2\ns_mov_b32 s98, s6")
    a.ldsadd(VC, 5, cG2)
    a("s_branch K6_p2")

def gen_k6(a, name):
    fine = "fine" in OPT
    a(f".p2align 8\n{name}:\nK6_start:")
    a("s_cmp_ge_u32 s2, 256\ns_cbranch_scc1 K6_end")
    a.stamp_init()
    if "skew" in OPT:
        a("s_mul_i32 s4, s2, 5\ns_and_b32 s4, s4, 7\nSK_l:\ns_sub_u32 s4, s4, 1\ns_cbranch_scc1 SK_d\ns_sleep 12\ns_branch SK_l\nSK_d:")
    a.kernargs()
    a("v_lshrrev_b32 v2, 6, v0\nv_and_b32 v1, 63, v0")
    a("v_readfirstlane_b32 s3, v2")
    a("s_and_b32 s96, s2, 7\ns_lshr_b32 s97, s2, 3\ns_mov_b32 s101, 1\ns_mov_b32 s99, 0")
    a(f"v_mov_b32 v{VC}, {CNT}\nv_mov_b32 v{V1}, 1")
    a("s_sub_u32 s60, s2, 144\ns_cmp_lt_u32 s97, 18\ns_cbranch_scc1 K6_g")
    if "now12" not in OPT:
        a("s_cmp_lg_u32 s3, 5\ns_cbranch_scc1 K6_n5\ns_mul_i32 s8, s60, 6016\nv_min_u32 v2, 46, v1\nv_lshlrev_b32 v2, 7, v2\nv_add_u32 v2, s8, v2\nv_min_u32 v2, 663424, v2\ns_waitcnt lgkmcnt(0)")
        a(f"global_load_dword v30, v2, {s(P_W1,2)}\nglobal_load_dword v31, v2, {s(P_W2,2)}\ns_branch K6_f\nK6_n5:")
    a("s_cmp_lt_u32 s3, 6\ns_cbranch_scc1 K6_f\ns_cmp_eq_u32 s3, 7\ns_cbranch_scc1 K6_pf")
    a(f"s_sub_u32 s11, 255, s2\ns_cmp_ge_u32 s11, {FLAG_WAVES}\ns_cbranch_scc1 K6_f")
    a(f"v_lshrrev_b32 v7, 5, v1\nv_mul_u32_u24 v7, {FB_STRIDE-512}, v7\nv_lshl_add_u32 v7, v1, 4, v7\nv_lshlrev_b32 v6, 4, v1")
    a("v_mov_b32 v8, 0\nv_mov_b32 v9, 0\nv_mov_b32 v10, 0\nv_mov_b32 v11, 0")
    a(f"s_lshl_b32 s8, s11, 12\ns_add_u32 s8, s8, {W2M_OFF}\ns_mul_i32 s9, s11, {4*FB_STRIDE}\ns_add_u32 s9, s9, {FLAG_OFF}\ns_add_u32 s10, s9, {2*FB_STRIDE}")
    a("s_waitcnt lgkmcnt(0)")
    a.srd(56, P_WS, WS_BYTES)
    for i in range(4): a(f"buffer_store_dwordx4 v[8:11], v6, s[56:59], s8 offen offset:{1024*i} sc1")
    a("buffer_store_dwordx4 v[8:11], v7, s[56:59], s9 offen sc1\nbuffer_store_dwordx4 v[8:11], v7, s[56:59], s10 offen sc1")
    a("s_barrier\ns_mov_b32 s99, 1\ns_mov_b32 s8, 1\ns_waitcnt vmcnt(0)")
    a(f"s_atomic_add s8, {s(P_DBG,2)}, 128 glc\ns_waitcnt lgkmcnt(0)\ns_cmp_lg_u32 s8, {FLAG_WAVES-1}\ns_cbranch_scc1 K6_f")
    a(f"s_atomic_add s101, {s(P_DBG,2)}, 0")
    a.stamp(1)
    a("s_branch K6_f")
    a("K6_pf:")
    a("s_getpc_b64 s[8:9]\nF_pc:")
    a("s_sub_u32 s10, s97, 18\nv_min_u32 v2, 39, v1\nv_mul_u32_u24 v2, 14, v2\nv_add_lshl_u32 v2, s10, v2, 7\nv_min_u32 v2, CODE_END-F_pc-4, v2")
    a("global_load_dword v31, v2, s[8:9]")
    a("s_branch K6_f")
    a("K6_g:")
    a("s_cmp_ge_u32 s97, 9\ns_cselect_b32 s62, 1, 0\ns_mul_i32 s61, s62, 9\ns_sub_u32 s61, s97, s61\ns_lshl_b32 s60, s96, 1\ns_add_u32 s60, s60, s62")
    A3 = [(2, 0), (2, 1024), (2, 2048)]
    stP = Stream(a, [(64, A3, " sc1"), (65, A3, " sc1"), (66, [(tail.VT + i, 0) for i in range(3)], " sc1"), (68, [(tail.VT + 3, 0)], " sc1")])
    stQ = Stream(a, [(64, A3, " sc1"), (66, [(tail.VT + i, 0) for i in range(5)], " sc1")])
    gen_g(a)
    a("s_cmp_lt_u32 s3, 4\ns_cbranch_scc1 K6_p")
    if optval("GJ", 64) > 0:
        a("s_cmp_lt_u32 s2, 128\ns_cbranch_scc1 G_tm")
        JW = optval("JW", -1)
        if JW >= 0: a.ldswait(VC, 5, 7, 4, JW)
        a(f"s_lshl_b32 s12, s3, 4\ns_add_u32 s12, s12, s2\ns_add_u32 s12, s12, {1170-optval('GJ', 64)-192}\ns_cmp_ge_u32 s12, 1170\ns_cbranch_scc1 K6_q")
        a(f"s_lshl_b32 s61, s3, 12\ns_add_u32 s61, s61, {TB}\ns_mov_b32 s64, 1\ns_branch F_job")
        a("G_tm:")
    else: a("s_cmp_ge_u32 s2, 128\ns_cbranch_scc1 K6_q")
    a("s_setprio 3\ns_cmp_lg_u32 s100, 0\ns_cbranch_scc1 G_kw")
    a.cpoll(99, 1, 44, 13, 8)
    conv.team_kv(a, TB)
    a("G_kw:")
    a(f"s_add_u32 s6, s2, 448\ns_add_u32 s52, s70, 256\ns_load_dword s53, {s(P_WS,2)}, s52")
    def tgate():
        a("s_cmp_lg_u32 s53, 0\ns_cbranch_scc1 G_k2")
        a.cpoll(52, 1, 53, 13, 8)
        a("G_k2:")
    conv.team(a, TB, TB + 21504, cT1, cT2, cT3, tgate, stQ.issue)
    assert stQ.issued == 16
    a.ldsadd(VC, V1, cSide)
    a.stamp(8 if not fine else 2)
    a("s_waitcnt vmcnt(0)")
    last_of(a, cU, 4, "K6_q2")
    a.setflag("s6", 14)
    a("s_branch K6_q2")
    a("K6_f:")
    gen_f(a, stP)
    def addrs():
        a(f"v_mov_b32 v6, v2\nv_add_u32 v7, 36864, v2\nv_add_u32 v8, {ML_H}, v2\nv_add_u32 v9, {ML_H+36864}, v2")
        h_addr(a, 71, 10, 12)
    def rk():
        a(f"v_and_b32 v5, 15, v1\nv_lshlrev_b32 v5, 4, v5\nv_add_u32 v5, {RM}, v5")
        for m in range(4): a(f"ds_read_b32 v{GT+m}, v5 offset:{256*m}")
        a("s_waitcnt lgkmcnt(0)")
        for m in range(4):
            r = GT + m
            a(f"v_mul_f32 v{KC+2*m}, {fh(GC0)}, v{r}\nv_mul_f32 v{r}, v{r}, v{r}\nv_mul_f32 v{r}, {fh(0.044715)}, v{r}\nv_mul_f32 v{KC+2*m+1}, v{r}, v{KC+2*m}")
    a("K6_p:")
    a("s_cmp_lg_u32 s3, 1\ns_cbranch_scc1 KB_w3")
    a("s_add_u32 s6, s70, 128")
    a.dpoll(6, 48, 13, 8)
    a.ldsadd(VC, V1, cW3a)
    a("KB_w3:")
    a.ldswait(VC, 5, 7, 1, cW3a)
    paced(a, Stream(a, stP.segs), 16, optval("PPACE", 8))
    a("s_mov_b32 s98, 0")
    a("K6_p2:")
    a("s_setprio 2")
    PRE = NS
    for i in range(NS - 16): stP.issue()
    addrs()
    a(f"s_lshr_b32 s11, s5, 1\ns_mul_i32 s6, s11, {FB_STRIDE}\ns_add_u32 s6, s6, {FX_OFF}")
    a(f"s_mul_i32 s9, s3, 18432\ns_mov_b32 m0, s9\ns_mul_i32 s7, s5, 73728\ns_add_u32 s7, s7, s9\ns_add_u32 s7, s7, {X1_OFF}")
    a.stamp(8)
    a("s_cmp_lg_u32 s3, 0\ns_cbranch_scc1 KB_xw")
    a.cpoll(6, 9, 44, 13, optval('FXS', 1))
    a.ldswait(VC, 5, 8, 8, cG2)
    a.ldsadd(VC, V1, cFX)
    a("s_branch KB_xg")
    a("KB_xw:")
    a.ldswait(VC, 5, 8, 1, cFX)
    a("KB_xg:")
    a.stamp(9)
    def xdma(i):
        if i and i % 4 == 0: a("s_add_u32 m0, m0, 4096\ns_add_u32 s7, s7, 4096")
        a(f"buffer_load_dwordx4 v2, s[56:59], s7 offen offset:{(i%4)*1024} sc1 lds")
        stP.other(f"x{i}")
    XP = optval("XP", 6)
    for i in range(XP): xdma(i)
    for i in range(NS - PRE): stP.issue()
    late = [(lambda i=i: xdma(i)) for i in range(XP, 18)]
    def stat(ins, tag="x"):
        a(ins); stP.other(tag)
    for i in range(optval("XE", 12)): late.pop(0)()
    a(f"s_waitcnt vmcnt({stP.younger(f'x{XP-1}')})")
    a("s_cmp_eq_u32 s98, 0\ns_cbranch_scc1 KB_fy")
    a.setflag("s98", 14)
    a("KB_fy:")
    a.subbar(VC, 5, 10, 4, off=cX1)
    a.stamp(10 if not fine else 1)
    def xhook(ks, i):
        if i in (0, 4, 8, 10, 11, 3) and late: late.pop(0)()
    mphase(a, stP, 0, 6, 0, XP, prio=2, hook=xhook)
    assert not late
    if "s1" in OPT: a.stamp(8)
    a(f"s_waitcnt vmcnt({stP.younger('x17')})")
    if "s1" in OPT: a.stamp(9)
    a.subbar(VC, 5, 7, 4, off=cX2)
    kw = 18 - (NS + 2) // 3
    def w3hook(ks, i):
        if ks == kw - 1 and i == 10: a.ldswait(VC, 5, 7, 1, cW3)
    mphase(a, stP, 0, 6, XP, 18, first=False, prio=2, hook=w3hook)
    if fine: a.stamp(2)
    a.ldswait(VC, 5, 7, 5, cSide)
    rk()
    def pthook(i):
        if "ptouch" in OPT and i in (0, 2, 4):
            a(f"s_lshl_b32 s6, s4, 5\ns_add_u32 s6, s6, s5\ns_mul_i32 s6, s6, 73728\ns_mul_i32 s7, s3, 18432\ns_add_u32 s6, s6, s7\ns_add_u32 s6, s6, {PART_OFF+3072*i}")
            a("v_min_u32 v14, 47, v1\nv_lshlrev_b32 v14, 7, v14\ns_setprio 3\nbuffer_load_dword v18, v14, s[56:59], s6 offen sc1\ns_setprio 0"); stP.other()
    gphase(a, 10, 12, pthook)
    a.ldsadd(VC, V1, cH1)
    if fine: a.stamp(3)
    a("s_add_u32 s71, s71, 24")
    h_addr(a, 71, 10, 12)
    tail.consts_b(a)
    def w4hook(ks, i):
        if ks == kw - 1 and i == 10: a.ldswait(VC, 5, 7, 1, cW4)
    mphase(a, stP, 1, 6, prio=1, hook=w4hook)
    if fine: a.stamp(4)
    a.ldsadd(VC, V1, cU2)
    def sthook(i):
        if i == 0 and "w4t" in OPT:
            a("v_bfe_u32 v5, v1, 3, 2\nv_mov_b32 v14, s44")
            for t in range(1, 4): a(f"v_cmp_eq_u32 vcc, {t}, v5\nv_mov_b32 v15, s{44+t}\ns_nop 0\nv_cndmask_b32 v14, v14, v15, vcc")
            a("v_and_b32 v5, 7, v1\nv_lshl_add_u32 v14, v5, 7, v14\nv_lshrrev_b32 v5, 5, v1\nv_mul_u32_u24 v5, 36864, v5\nv_add_u32 v14, v14, v5")
            a("s_and_b32 s6, s5, 7\ns_add_u32 s6, s6, 1\ns_mul_i32 s6, s6, 73728\ns_add_u32 s6, s6, s68")
            a("s_setprio 3\nbuffer_load_dword v18, v14, s[56:59], s6 offen sc1\ns_setprio 0"); stP.other()
        if i == optval("SGI", 0):
            a.ldswait(VC, 5, 7, 4, cU2)
            a.ldswait(VC, 5, 7, 8, cH1)
            a("s_setprio 3")
            stage_x(a)
            stage_y(a, True)
            a("s_setprio 0")
            for j in range(6): stP.other()
    gphase(a, 10, 12, sthook)
    a.ldsadd(VC, V1, cH2)
    a("s_waitcnt vmcnt(0)")
    a.ldsadd(VC, V1, cA)
    a.ldswait(VC, 5, 7, 4, cH2)
    if fine: a.stamp(5)
    PF = 'pfirst' in OPT or 'qfin' not in OPT
    mphase(a, stP, 2, 8, prio=(2 if PF else None))
    if PF: a('s_setprio 3')
    if fine: a.stamp(6)
    tail.stores(a, 3, stP.other)
    if "pf1" not in OPT and "qfin" not in OPT:
        a(f"s_setprio {optval('PSP', 0)}")
        a.ldswait(VC, 5, 7, 4, cA)
        a.nop(2)
        def own_pass():
            mphase(a, stP, 3, 8, first=False, acc=MACC + 64, bufs=[BF, BF + 16, MACC, MACC + 16], prio=optval("P2P", 0))
            if fine: a.stamp(7)
        st = a.stamps; a.stamps = st and fine
        assert MACC == 136 and BF == 104
        tail.p_final(a, MACC + 64, own_pass)
        a.stamps = st
        a.end()
    else:
        tail.ex_base(a, 8)
        a(f"v_add_u32 v10, s8, v2\ns_lshl_b32 s6, s3, 2\nv_add_u32 v11, s6, v{VC}")
        if PF:
            a("s_waitcnt vmcnt(0)")
            tail.flags(a, 3); stP.other()
        def hook(ks, i):
            if not PF and ks == optval("EFLAG", 12) and i == 0:
                a("s_waitcnt vmcnt(0)")
                tail.flags(a, 3); stP.other()
        mphase(a, stP, 3, 8, acc=MACC + 64, hook=hook, bufs=[BF, BF + 16, MACC, MACC + 16], prio=optval("P2P", 0 if PF else 1))
        if fine: a.stamp(7)
        if "qfin" not in OPT:
            a("s_setprio 2")
            a.ldswait(VC, 5, 7, 4, cA)
            st = a.stamps; a.stamps = st and fine
            tail.final(a, cOwn, None, "P", MACC + 64)
            a.stamps = st
        else:
            a.nop(8)
            for i in range(4): a(f"ds_write_b128 v10, {v(MACC+64+4*i,4)} offset:{1024*i}")
            a.ldsadd(11, V1, cOwn)
        a.end()
    a("K6_q:")
    a("s_setprio 0")
    a.stamp(8 if not fine else 2)
    a.ldsadd(VC, V1, cSide)
    a("s_cmp_lg_u32 s3, 7\ns_cbranch_scc1 KB_q3")
    a("s_add_u32 s8, s70, 256")
    a.dpoll(8, 44, 13, 8)
    a.ldsadd(VC, V1, cT0)
    a("KB_q3:")
    a.ldswait(VC, 5, 7, 1, cT0, sleep=2)
    QW = optval("QRW", -1)
    if QW >= 0: a.ldswait(VC, 5, 7, 4, QW, sleep=2)
    paced(a, Stream(a, stQ.segs), 16, optval("QPACE", 4))
    a("K6_q2:")
    a("s_setprio 0")
    for i in range(NS - 16): stQ.issue()
    a.stamp(9 if not fine else 3)
    addrs()
    a("s_cmp_lg_u32 s3, 5\ns_cbranch_scc1 KB_w3c\ns_add_u32 s8, s70, 384")
    a.dpoll(8, 52, 13, 8)
    a.ldsadd(VC, V1, cW3)
    a("KB_w3c:")
    a("s_cmp_lg_u32 s3, 6\ns_cbranch_scc1 KB_rs")
    a.ldswait(VC, 5, 7, 1, cFX)
    a(f"s_lshr_b32 s11, s5, 1\ns_mul_i32 s6, s11, 4608\ns_and_b32 s8, s5, 1\ns_lshl_b32 s8, s8, 8\ns_add_u32 s6, s6, s8\ns_add_u32 s6, s6, {SS_OFF}\ns_add_u32 s11, s6, 4096")
    a(f"s_lshl_b32 s8, s5, 8\ns_add_u32 s8, s8, {MEAN_OFF}\ns_lshl_b32 s9, s5, 10\ns_add_u32 s9, s9, {ST1_OFF}\ns_setprio 3")
    for i in range(8): a(f"buffer_load_dword v{GT+i}, v4, s[56:59], s6 offen offset:{512*i} sc1")
    a(f"buffer_load_dword v{GT+8}, v4, s[56:59], s11 offen sc1\nbuffer_load_dword v{GT+13}, v4, s[56:59], s8 offen sc1\nbuffer_load_dwordx2 {v(GT+14,2)}, v2, s[56:59], s9 offen sc1")
    a("s_waitcnt vmcnt(0)")
    for i in range(1, 9): a(f"v_add_f32 v{GT}, v{GT}, v{GT+i}")
    a(f"v_mov_b32 v{GT+1}, {fh(1.0/D)}\nv_fmaak_f32 v{GT}, v{GT+1}, v{GT}, {fh(EPS)}")
    a(f"v_rsq_f32 v{GT+12}, v{GT}")
    a(f"v_add_u32 v5, {RM}, v2\ns_nop 0")
    a(f"ds_write_b128 v5, {v(GT+12,4)}")
    a.ldsadd(VC, V1, cSide)
    a("KB_rs:")
    tail.consts_b(a)
    a.ldswait(VC, 5, 7, 4, cX2)
    def qhook(ks, i):
        if ks == kw - 4 and i == 10:
            a(f"s_cmp_lg_u32 s3, 7\ns_cbranch_scc1 KB_q2a\ns_load_dword s53, {s(P_WS,2)}, s70\nKB_q2a:")
        if ks == kw - 3 and i == 10:
            a("s_cmp_lg_u32 s3, 7\ns_cbranch_scc1 KB_q2c\ns_cmp_lg_u32 s53, 0\ns_cbranch_scc1 KB_q2b")
            a.cpoll(70, 1, 53, 13, 8)
            a("KB_q2b:")
            a.ldsadd(VC, V1, cW4)
            a("KB_q2c:")
        if ks == kw - 1 and i == 10: a.ldswait(VC, 5, 7, 1, cW4)
    mphase(a, stQ, 0, 6, prio=2, hook=qhook)
    a.ldswait(VC, 5, 7, 5, cSide)
    if fine: a.stamp(4)
    rk()
    def yhook(i):
        ld = "buffer_load_dword v18, v14, s[56:59], s8 offen sc1\nbuffer_load_dword v19, v14, s[56:59], s8 offen offset:1280 sc1"
        if i == 0:
            a(f"s_mul_i32 s8, s4, 9\ns_lshr_b32 s8, s8, 1\ns_lshl_b32 s8, s8, 9\ns_add_u32 s8, s8, {FYW_OFF}\nv_min_u32 v14, 39, v1\nv_lshlrev_b32 v14, 5, v14")
            a(f"s_cmp_lg_u32 s3, 7\ns_cbranch_scc1 KB_y0\n{ld}\nKB_y0:")
        if i == 4:
            a("s_cmp_lg_u32 s3, 7\ns_cbranch_scc1 KB_ys\ns_mov_b32 s13, 0x20000\nKB_y1:")
            a("s_waitcnt vmcnt(0)\nv_and_b32 v18, v18, v19\nv_cmp_ne_u32 vcc, 1, v18\ns_cbranch_vccz KB_ys")
            a(f"s_sleep 16\n{ld}\ns_sub_u32 s13, s13, 1\ns_cbranch_scc0 KB_y1")
            a("KB_ys:")
    gphase(a, 10, 12, yhook)
    a.subbar(VC, 5, 7, 8, off=cH1)
    if fine: a.stamp(5)
    mphase(a, stQ, 1, 8, 0, 12, prio=1)
    a.ldswait(VC, 5, 7, 4, cH2)
    if fine: a.stamp(7)
    mphase(a, stQ, 1, 8, 12, 18, first=False, prio=1)
    a(f"s_setprio {optval('QT', 1)}")
    a.stamp(10)
    tail.stores(a, 5)
    a.ldswait(VC, 5, 7, 4, cA)
    def mid():
        a("s_waitcnt vmcnt(0)")
        tail.flags(a, 5)
        a(f"s_setprio {optval('QF', 1)}")
    st = a.stamps; a.stamps = st and fine
    if "qfin" not in OPT:
        mid()
        a.stamp(1)
        a("s_and_b32 s6, s4, 1\ns_cmp_lt_u32 s3, 6\ns_cselect_b32 s6, s6, 0\ns_cmp_eq_u32 s6, 0\ns_cbranch_scc1 K6_qe")
        tail.final(a, cOwn, None, "Q")
        a("K6_qe:")
    else: tail.final(a, cOwn, mid)
    a.stamps = st
    a.end()
    a("K6_end:")
    a("s_endpgm")
```

```python
from common import *
import kb4
from kb4 import MACC, GT, VC, V1, fin_consts

VT = 24
STL = 44

def consts_b(a):
    a("s_mul_i32 s6, s4, 9\ns_lshr_b32 s6, s6, 1")
    a("s_and_b32 s7, s3, 3\ns_mul_i32 s8, s7, 3\ns_add_u32 s8, s8, 4\ns_mul_i32 s9, s7, 5\ns_add_u32 s9, s9, 16\ns_cmp_ge_u32 s3, 4\ns_cselect_b32 s8, s9, s8\ns_add_u32 s8, s8, s6")
    a("v_add_u32 v29, s8, v1\nv_subrev_u32 v5, 36, v29\nv_min_u32 v29, v29, v5")
    for i in range(5):
        a(f"s_add_u32 s9, s8, {i}")
        if i == 3: a("s_add_u32 s10, s6, s7\ns_cmp_lt_u32 s3, 4\ns_cselect_b32 s9, s10, s9")
        a(f"s_sub_u32 s10, s9, 36\ns_min_u32 s9, s9, s10\ns_lshl_b32 s{STL+i}, s9, 10\nv_add_u32 v{VT+i}, s{STL+i}, v2")
    a("v_lshl_add_u32 v5, v29, 1, 1\nv_mul_u32_u24 v5, 57, v5\nv_lshrrev_b32 v5, 9, v5\nv_subrev_u32 v5, s4, v5\nv_and_b32 v5, 7, v5\nv_lshlrev_b32 v5, 2, v5\nv_lshl_add_u32 v29, v29, 5, v5")
    a(f"s_mul_i32 s66, s4, {WSLICE}\ns_add_u32 s66, s66, {W4T_OFF}\ns_mov_b32 s68, s66")
    a(f"s_lshl_b32 s10, s4, 5\ns_add_u32 s10, s10, s5\ns_mul_i32 s67, s10, 73728\ns_add_u32 s67, s67, {PART_OFF}")
    a(f"s_mul_i32 s69, s5, 1152\ns_add_u32 s69, s69, {FT_OFF}")

def stores(a, nt, log=None):
    a.nop(8)
    for t in range(nt):
        a(f"s_lshl_b32 s6, s{STL+t}, 1\ns_add_u32 s6, s6, s67")
        for mp in range(2):
            for x in kb4.pstore(a, MACC, t, mp, 6, mp * 1024, 2 * t + mp): a(x)
            if log: log("e" if (t, mp) == (nt - 1, 1) else "x")

def flags(a, nt):
    a(f"s_mov_b64 exec, {(1 << nt) - 1}\nbuffer_store_dword v{V1}, v29, s[56:59], s69 offen sc1\ns_mov_b64 exec, -1")

def ex_base(a, d):
    a(f"s_lshr_b32 s{d}, s4, 1\ns_lshl_b32 s{d}, s{d}, 3\ns_lshr_b32 s{d}, 0x060e0005, s{d}\ns_and_b32 s{d}, s{d}, 0xff\ns_lshl_b32 s{d}, s{d}, 10")
    a(f"s_and_b32 s7, s3, 3\ns_mul_i32 s7, s7, 18432\ns_add_u32 s{d}, s{d}, s7")

def final(a, cOwn, mid, role=None, own_acc=None):
    RM = kb4.RM
    U = lambda u: 32 + 64 * u
    PR, AC, X1, XV, SV, RAW = 0, 24, 32, 40, 48, 56
    T = 240
    TO = 224
    a.srd(48, P_OUT, ACT)
    a("s_and_b32 s60, s3, 3")
    fin_consts(a)
    a("v_and_b32 v5, 15, v1\nv_lshrrev_b32 v6, 4, v1")
    a("v_mul_u32_u24 v7, 160, v5\nv_lshl_add_u32 v7, v6, 3, v7\nv_add_u32 v7, s53, v7")
    a("v_lshrrev_b32 v8, 1, v6\nv_mul_u32_u24 v8, 18432, v8\nv_bfe_u32 v9, v1, 2, 3\nv_lshl_add_u32 v8, v9, 7, v8")
    a("v_and_b32 v9, 3, v1\nv_lshl_add_u32 v8, v9, 3, v8\nv_add_u32 v8, s53, v8\nv_add_u32 v8, 3072, v8")
    a(f"v_lshlrev_b32 v11, 4, v5\nv_add_u32 v11, {RM}, v11")
    a("v_lshrrev_b32 v5, 5, v1\nv_bfe_u32 v6, v1, 1, 4\nv_and_b32 v9, 1, v1")
    a("v_mul_u32_u24 v18, 18432, v5\nv_lshl_add_u32 v18, v9, 4, v18\nv_mul_u32_u24 v19, 160, v6\nv_add3_u32 v19, v19, v18, s53")
    a("v_mul_u32_u24 v6, 1152, v6\nv_add_u32 v18, v18, v6")
    a("s_cmp_lt_u32 s60, 2\ns_cselect_b32 s63, s62, 0")
    ex_base(a, 64)
    a("v_add_u32 v10, s64, v2")
    def opt(u, fn):
        if u < 2: fn(); return
        l = a.lab("FU")
        a(f"s_cmp_eq_u32 s63, 0\ns_cbranch_scc1 {l}")
        fn()
        a(f"{l}:")
    SO, SP, SF = (65, 66, 67), (68, 70, 71), (96, 97)
    def side(u):
        b = U(u)
        if u < 2: a(f"s_mov_b32 s6, s60\ns_mov_b32 s7, {u}")
        else: a("s_mov_b32 s6, 4\ns_mov_b32 s7, s60")
        a("s_add_u32 s8, s6, s52\ns_mul_i32 s9, s7, 36864")
        a("s_lshr_b32 s10, s8, 1\ns_lshl_b32 s10, s10, 10\ns_and_b32 s11, s8, 1\ns_lshl_b32 s11, s11, 3\ns_add_u32 s10, s10, s11\ns_add_u32 s10, s10, s9")
        if kb4.ML_X: a(f"s_add_u32 s10, s10, {kb4.ML_X}")
        a("v_add_u32 v12, s10, v2")
        a(f"s_lshl_b32 s10, s6, 5\ns_add_u32 s{SO[u]}, s10, s9\nv_add_u32 v13, s{SO[u]}, v7")
        a("s_lshl_b32 s10, s7, 9\nv_add_u32 v14, s10, v11")
        a("s_and_b32 s10, s6, 1\ns_mul_i32 s10, s10, 36864\ns_lshr_b32 s11, s6, 1\ns_lshl_b32 s11, s11, 10\ns_add_u32 s10, s10, s11\ns_lshl_b32 s11, s7, 6\ns_add_u32 s10, s10, s11")
        a("v_add_u32 v15, s10, v8")
        for mt in range(2):
            a(f"ds_read_b64 {v(T+2*mt,2)}, v12 offset:{18432*mt}")
            a(f"ds_read_b64 {v(T+4+2*mt,2)}, v13 offset:{18432*mt}")
            a(f"ds_read_b128 {v(b+RAW+4*mt,4)}, v14 offset:{256*mt}")
            a(f"ds_read_b64_tr_b16 {v(T+8+2*mt,2)}, v15 offset:{32*mt}")
        a(f"s_lshl_b32 s9, s8, 11\ns_lshl_b32 s11, s7, 10\ns_add_u32 s9, s9, s11\ns_add_u32 s9, s9, s54\ns_add_u32 s{SP[u]}, s9, {PART_OFF}")
        if u != 1: a(f"s_lshl_b32 s9, s8, 5\ns_add_u32 s{SF[u>>1]}, s9, s69")
        a("s_waitcnt lgkmcnt(0)")
        for e in range(4):
            r = b + RAW + 4 * (e >> 1)
            a(f"v_lshlrev_b32 v{b+XV+2*e}, 16, v{T+4+e}\nv_and_b32 v{b+XV+2*e+1}, 0xffff0000, v{T+4+e}")
            a(f"v_lshlrev_b32 v{b+X1+2*e}, 16, v{T+e}\nv_and_b32 v{b+X1+2*e+1}, 0xffff0000, v{T+e}")
            a(f"v_lshlrev_b32 v{b+SV+2*e}, 16, v{T+8+e}\nv_and_b32 v{b+SV+2*e+1}, 0xffff0000, v{T+8+e}")
            a(f"v_fma_f32 v{T+12}, v{b+XV+2*e}, v{r+2}, v{r+3}\nv_fma_f32 v{T+13}, v{b+XV+2*e+1}, v{r+2}, v{r+3}")
            a(f"v_add_f32 v{b+X1+2*e}, v{b+X1+2*e}, v{r+1}\nv_add_f32 v{b+X1+2*e+1}, v{b+X1+2*e+1}, v{r+1}")
            a(f"v_mul_f32 v{b+SV+2*e}, v{b+SV+2*e}, v{T+12}\nv_mul_f32 v{b+SV+2*e+1}, v{b+SV+2*e+1}, v{T+13}")
        for e in range(8): a(f"v_mov_b32 v{b+AC+e}, " + ("0" if role != "P" else f"v{own_acc+8*u+e}"))
    def poll(sf, ds):
        l = a.lab("FP"); d = a.lab("FD")
        a(f"s_mov_b32 s13, 0x40000\n{l}:")
        a(f"s_load_dwordx8 s[16:23], {s(P_WS,2)}, s{sf} glc\ns_waitcnt lgkmcnt(0)")
        for x in ds[1:]: a(f"s_and_b32 s{16+ds[0]}, s{16+ds[0]}, s{16+x}")
        a(f"s_cbranch_scc1 {d}\ns_sleep {optval('FSL', 1)}\ns_sub_u32 s13, s13, 1\ns_cbranch_scc0 {l}\n{d}:")
    def loads(u, ds):
        for i, d in enumerate(ds):
            a(f"s_sub_u32 s6, s4, {d}\ns_and_b32 s6, s6, 7\ns_mul_i32 s6, s6, {ACT}\ns_add_u32 s6, s6, s{SP[u]}")
            a(f"buffer_load_dwordx4 {v(U(u)+PR+4*i,4)}, v2, s[56:59], s6 offen sc1")
    def accum(u, n, pk=False):
        b = U(u)
        for i in range(n):
            for e in range(4): a(f"v_lshlrev_b32 v{T+2*e}, 16, v{b+PR+4*i+e}\nv_and_b32 v{T+2*e+1}, 0xffff0000, v{b+PR+4*i+e}")
            if pk:
                for e in range(0, 8, 2): a(f"v_pk_add_f32 {v(b+AC+e,2)}, {v(b+AC+e,2)}, {v(T+e,2)}")
            else:
                for e in range(8): a(f"v_add_f32 v{b+AC+e}, v{b+AC+e}, v{T+e}")
    def finish(us):
        for u in us:
            for r in range(8): a(f"v_fma_f32 v{U(u)+AC+r}, v{U(u)+AC+r}, v{U(u)+RAW+4*(r>>2)}, v{U(u)+X1+r}")
        for op in range(6):
            for u in us:
                b = U(u); t = b + PR
                for r in range(8):
                    a([f"v_mul_f32 v{t+r}, {fh(-LOG2E)}, v{b+AC+r}", f"v_exp_f32 v{t+r}, v{t+r}", f"v_add_f32 v{t+r}, 1.0, v{t+r}", f"v_rcp_f32 v{t+r}, v{t+r}",
                       f"v_mul_f32 v{b+AC+r}, v{b+AC+r}, v{b+SV+r}", f"v_fma_f32 v{b+AC+r}, v{b+AC+r}, v{t+r}, v{b+XV+r}"][op])
        for u in us:
            b = U(u)
            for e in range(4): a(f"v_cvt_pk_bf16_f32 v{b+PR+8+e}, v{b+AC+2*e}, v{b+AC+2*e+1}")
            a(f"v_add_u32 v13, s{SO[u]}, v7\nv_add_u32 v20, s{SO[u]}, v19\ns_add_u32 s{SO[u]}, s{SO[u]}, s55")
            for mt in range(2): a(f"ds_write_b64 v13, {v(b+PR+8+2*mt,2)} offset:{18432*mt}")
            a(f"ds_read_b128 {v(b+PR+12,4)}, v20")
        a("s_waitcnt lgkmcnt(0)")
        for u in us: a(f"buffer_store_dwordx4 {v(U(u)+PR+12,4)}, v18, s[48:51], s{SO[u]} offen" + os.environ.get("OFL", ""))
    if role == "P":
        E, L = (1, 2), (3, 4, 5, 6, 7)
        side(0); side(1)
        a.stamp(8)
        poll(SF[0], E)
        loads(0, E); loads(1, E)
        a("s_waitcnt vmcnt(0)")
        for u in range(2): accum(u, 2, True)
        a.stamp(9)
        poll(SF[0], L)
        a.stamp(10)
        loads(0, L); loads(1, L)
        a("s_waitcnt vmcnt(5)")
        accum(0, 5, True)
        a("s_waitcnt vmcnt(0)")
        accum(1, 5, True)
        finish([0, 1])
        return
    if role == "Q":
        side(2)
        for ds in ((0, 1, 2), (3, 4, 5, 6, 7)):
            poll(SF[1], ds)
            loads(2, ds)
            a("s_waitcnt vmcnt(0)")
            accum(2, len(ds), True)
        finish([2])
        return
    if "pfirst" in OPT: E, L, E2, L2 = (1, 2), (3, 4, 5, 6, 7), (0, 1, 2), (3, 4, 5, 6, 7)
    else: E, L, E2, L2 = (4, 5, 6, 7), (1, 2, 3), (4, 5, 6, 7), (0, 1, 2, 3)
    if "pfirst" in OPT:
        side(0); side(1)
        opt(2, lambda: side(2))
        mid()
    else:
        side(0)
        mid()
        side(1)
        opt(2, lambda: side(2))
    a.stamp(1)
    poll(SF[0], E)
    loads(0, E); loads(1, E)
    opt(2, lambda: (poll(SF[1], E2), loads(2, E2)))
    a("s_lshl_b32 s6, s60, 2")
    a(f"v_add_u32 v21, s6, v{VC}")
    def own():
        a.ldswait(21, 5, 7, 1, cOwn)
        for i in range(4): a(f"ds_read_b128 {v(TO+4*i,4)}, v10 offset:{1024*i}")
        a("s_waitcnt lgkmcnt(0)")
        for u in range(2):
            for e in range(8): a(f"v_add_f32 v{U(u)+AC+e}, v{U(u)+AC+e}, v{TO+8*u+e}")
    a("s_waitcnt vmcnt(0)")
    for u in range(3): opt(u, lambda: accum(u, len(E) if u < 2 else len(E2)))
    a.stamp(8)
    a(f"s_setprio {optval('QL', 2)}")
    poll(SF[0], L)
    a.stamp(6)
    loads(0, L); loads(1, L)
    opt(2, lambda: (poll(SF[1], L2), loads(2, L2)))
    own()
    a("s_waitcnt vmcnt(0)")
    a.stamp(9)
    for u in range(2): accum(u, len(L), True)
    finish([0, 1])
    opt(2, lambda: (accum(2, len(L2), True), finish([2])))

def p_final(a, acc, own_pass):
    RM = kb4.RM
    XV, SV, RR, T, PRE = 168, 184, 20, 216, 104
    a.srd(48, P_OUT, ACT)
    a("v_and_b32 v5, 15, v1\nv_lshrrev_b32 v6, 4, v1")
    a("s_lshl_b32 s65, s3, 5\ns_add_u32 s6, s65, s53")
    a("v_mul_u32_u24 v7, 160, v5\nv_lshl_add_u32 v7, v6, 3, v7\nv_add_u32 v7, s6, v7\nv_add_u32 v10, 36864, v7")
    a("v_lshrrev_b32 v15, 1, v6\nv_mul_u32_u24 v15, 18432, v15\nv_bfe_u32 v14, v1, 2, 3\nv_lshl_add_u32 v15, v14, 7, v15\nv_and_b32 v14, 3, v1\nv_lshl_add_u32 v15, v14, 3, v15")
    a("s_and_b32 s10, s3, 1\ns_mul_i32 s10, s10, 36864\ns_lshr_b32 s11, s3, 1\ns_lshl_b32 s11, s11, 10\ns_add_u32 s10, s10, s11\ns_add_u32 s10, s10, s53\ns_add_u32 s10, s10, 3072\nv_add_u32 v15, s10, v15")
    a(f"v_lshlrev_b32 v14, 4, v5\nv_add_u32 v14, {RM}, v14")
    a("s_add_u32 s8, s3, s52\ns_lshr_b32 s10, s8, 1\ns_lshl_b32 s10, s10, 10\ns_and_b32 s11, s8, 1\ns_lshl_b32 s11, s11, 3\ns_add_u32 s10, s10, s11")
    if kb4.ML_X: a(f"s_add_u32 s10, s10, {kb4.ML_X}")
    a("v_add_u32 v12, s10, v2\nv_add_u32 v13, 36864, v12")
    for m in range(4):
        a(f"ds_read_b64 {v(T+2*m,2)}, v{12+(m>>1)} offset:{18432*(m&1)}")
        a(f"ds_read_b64 {v(T+8+2*m,2)}, v{7 if m < 2 else 10} offset:{18432*(m&1)}")
        a(f"ds_read_b64_tr_b16 {v(T+16+2*m,2)}, v15 offset:{32*m}")
        a(f"ds_read_b128 {v(T+24+4*m,4)}, v14 offset:{256*m}")
    a(f"s_lshl_b32 s9, s8, 11\ns_add_u32 s9, s9, s54\ns_add_u32 s70, s9, {PART_OFF}\ns_lshl_b32 s9, s8, 5\ns_add_u32 s71, s9, s69\ns_add_u32 s65, s65, s55\ns_add_u32 s66, s65, 36864")
    a("v_lshrrev_b32 v5, 5, v1\nv_bfe_u32 v6, v1, 1, 4\nv_and_b32 v11, 1, v1")
    a("v_mul_u32_u24 v18, 18432, v5\nv_lshl_add_u32 v18, v11, 4, v18\nv_mul_u32_u24 v19, 160, v6\nv_add3_u32 v19, v19, v18, s6")
    a("v_mul_u32_u24 v6, 1152, v6\nv_add_u32 v18, v18, v6")
    def poll(ds):
        l = a.lab("FP"); d = a.lab("FD")
        a(f"s_mov_b32 s13, 0x40000\n{l}:")
        a(f"s_load_dwordx8 s[16:23], {s(P_WS,2)}, s71 glc\ns_waitcnt lgkmcnt(0)")
        for x in ds[1:]: a(f"s_and_b32 s{16+ds[0]}, s{16+ds[0]}, s{16+x}")
        a(f"s_cbranch_scc1 {d}\ns_sleep {optval('FSL', 1)}\ns_sub_u32 s13, s13, 1\ns_cbranch_scc0 {l}\n{d}:")
    def loads(ds, base):
        for i, d in enumerate(ds):
            a(f"s_sub_u32 s6, s4, {d}\ns_and_b32 s6, s6, 7\ns_mul_i32 s6, s6, {ACT}\ns_add_u32 s6, s6, s70")
            for mp in range(2): a(f"buffer_load_dwordx4 {v(base+8*i+4*mp,4)}, v2, s[56:59], s6 offen offset:{1024*mp} sc1")
    def accum(src, pk):
        for e in range(8): a(f"v_lshlrev_b32 v{T+2*e}, 16, v{src+e}\nv_and_b32 v{T+2*e+1}, 0xffff0000, v{src+e}")
        if pk:
            for e in range(0, 16, 2): a(f"v_pk_add_f32 {v(acc+e,2)}, {v(acc+e,2)}, {v(T+e,2)}")
        else:
            for e in range(16): a(f"v_add_f32 v{acc+e}, v{acc+e}, v{T+e}")
    a("s_waitcnt lgkmcnt(0)")
    for m in range(4): a(f"v_mov_b32 v{RR+m}, v{T+24+4*m}\nv_rcp_f32 v{T+24+4*m}, v{T+24+4*m}")
    for e in range(8):
        r = T + 24 + 4 * (e >> 1)
        a(f"v_lshlrev_b32 v{XV+2*e}, 16, v{T+8+e}\nv_and_b32 v{XV+2*e+1}, 0xffff0000, v{T+8+e}")
        a(f"v_lshlrev_b32 v{acc+2*e}, 16, v{T+e}\nv_and_b32 v{acc+2*e+1}, 0xffff0000, v{T+e}")
        a(f"v_lshlrev_b32 v{SV+2*e}, 16, v{T+16+e}\nv_and_b32 v{SV+2*e+1}, 0xffff0000, v{T+16+e}")
        a(f"v_fma_f32 v5, v{XV+2*e}, v{r+2}, v{r+3}\nv_fma_f32 v6, v{XV+2*e+1}, v{r+2}, v{r+3}")
        a(f"v_add_f32 v{acc+2*e}, v{acc+2*e}, v{r+1}\nv_add_f32 v{acc+2*e+1}, v{acc+2*e+1}, v{r+1}")
        a(f"v_mul_f32 v{SV+2*e}, v{SV+2*e}, v5\nv_mul_f32 v{SV+2*e+1}, v{SV+2*e+1}, v6")
        a(f"v_mul_f32 v{acc+2*e}, v{acc+2*e}, v{r}\nv_mul_f32 v{acc+2*e+1}, v{acc+2*e+1}, v{r}")
    a("s_waitcnt vmcnt(0)")
    flags(a, 3)
    a.stamp(8)
    poll((1, 2))
    loads((1, 2), PRE)
    a("s_waitcnt vmcnt(0)")
    for i in range(2): accum(PRE + 8 * i, False)
    a.stamp(9)
    own_pass()
    a("s_setprio 2")
    L = (3, 4, 5, 6, 7)
    poll(L)
    a.stamp(10)
    loads(L, 32)
    for i in range(5):
        a(f"s_waitcnt vmcnt({8-2*i})")
        accum(32 + 8 * i, True)
    for r in range(16): a(f"v_mul_f32 v{acc+r}, v{acc+r}, v{RR+(r>>2)}")
    for r in range(16): a(f"v_mul_f32 v{T+r}, {fh(-LOG2E)}, v{acc+r}")
    for r in range(16): a(f"v_exp_f32 v{T+r}, v{T+r}")
    for r in range(0, 16, 2): a(f"v_pk_mul_f32 {v(acc+r,2)}, {v(acc+r,2)}, {v(SV+r,2)}")
    for r in range(16): a(f"v_add_f32 v{T+r}, 1.0, v{T+r}")
    for r in range(16): a(f"v_rcp_f32 v{T+r}, v{T+r}")
    a("s_nop 0")
    for r in range(0, 16, 2): a(f"v_pk_fma_f32 {v(acc+r,2)}, {v(acc+r,2)}, {v(T+r,2)}, {v(XV+r,2)}")
    for e in range(8): a(f"v_cvt_pk_bf16_f32 v{T+16+e}, v{acc+2*e}, v{acc+2*e+1}")
    for m in range(4): a(f"ds_write_b64 v{7 if m < 2 else 10}, {v(T+16+2*m,2)} offset:{18432*(m&1)}")
    for mp in range(2): a(f"ds_read_b128 {v(T+24+4*mp,4)}, v19 offset:{36864*mp}")
    for mp in range(2):
        a(f"s_waitcnt lgkmcnt({1-mp})")
        a(f"buffer_store_dwordx4 {v(T+24+4*mp,4)}, v18, s[48:51], s{65+mp} offen")
```

```python
from common import *
import kb4, km
from g1 import gelu_pk
import conv, tail
from kb4 import Stream, mphase, gphase, h_addr, pstore, stage_x, stage_y, gen_final, gen_conv_load, paced, NS, RING, BF, MACC, KC, GT, ML_H, VC, V1

G2_WM, G2_W = 0, 2560
SLOT = 24576
G1_BASE = 76800
G1_AUX = 150528
CV_SZ = 21248
FSCR = 4 * CV_SZ
CNT = 158592
RM = CNT + 128
K6_LDS = RM + 1024
kb4.RM = RM
cG2, cX1, cX2, cFX, cSide, cH1, cA, cH2, cW4, cG1, cFH, cU, cW3, cHs, cW3a, cKV, cXs, cT1, cT2, cT3, cT0, cOwn = [4 * i for i in range(22)]
cU2 = cOwn + 16
km.cG1 = cG1

TB = G1_BASE + SLOT
W4F = optval('W4F', 432)

def last_of(a, off, n, skip):
    a(f"s_mov_b64 exec, 1\nds_add_rtn_u32 v5, v{VC}, v{V1} offset:{off}\ns_mov_b64 exec, -1")
    a("s_waitcnt lgkmcnt(0)")
    a("v_readfirstlane_b32 s7, v5")
    a(f"s_cmp_lg_u32 s7, {n-1}\ns_cbranch_scc1 {skip}")

def gen_g(a):
    BUF, ACC, STA, CSA, SQ, SM, CS, ONE, XA, WA = 32, 96, 112, 124, 140, 144, 148, 152, 184, 188
    log = []
    DM = (18, 20, 22, 28)
    a("v_lshrrev_b32 v2, 2, v1\nv_and_b32 v3, 3, v1\nv_mul_u32_u24 v4, 1152, v2")
    a("v_lshrrev_b32 v6, 5, v1\nv_lshlrev_b32 v6, 1, v6\nv_xor_b32 v6, v6, v3\nv_lshl_add_u32 v6, v6, 4, v4")
    a("s_mul_i32 s10, s60, 147456\ns_mul_i32 s9, s3, 18432\ns_add_u32 s10, s10, s9")
    a("s_lshr_b32 s8, s3, 1\ns_mul_i32 s11, s8, 18432\ns_lshl_b32 s9, s61, 7\ns_add_u32 s11, s11, s9\ns_and_b32 s9, s3, 1\ns_lshl_b32 s9, s9, 6\ns_add_u32 s11, s11, s9")
    a("s_mul_i32 s14, s62, 7\ns_add_u32 s14, s14, 1\ns_mov_b32 s12, s61")
    a("s_lshl_b32 s13, s3, 10")
    a("s_waitcnt lgkmcnt(0)")
    a.srd(48, P_Q, ACT)
    a.srd(44, P_W1, D * D * 2)
    SB = [G2_W, G2_W + SLOT, G2_W + 2 * SLOT, G1_BASE, G1_BASE + SLOT, G1_BASE + 2 * SLOT, G2_W, G2_W + SLOT, G1_BASE]
    def issue(gi):
        sl = SB[gi]
        a("s_add_u32 s12, s12, s14\ns_sub_u32 s9, s12, 9\ns_cmp_ge_u32 s12, 9\ns_cselect_b32 s12, s9, s12")
        a(f"s_lshl_b32 s15, s12, 7\ns_add_u32 s15, s15, s10\ns_add_u32 m0, s13, {sl}\ns_mul_i32 s9, s12, 73728")
        a("buffer_load_dwordx4 v6, s[48:51], s15 offen" + (" nt" if "xnt" in OPT else "") + " lds")
        a("s_add_u32 m0, m0, 8128\ns_add_u32 s9, s9, s11")
        a("buffer_load_dwordx4 v6, s[48:51], s15 offen offset:64" + (" nt" if "xnt" in OPT else "") + " lds")
        a("s_add_u32 m0, m0, 8256\ns_nop 0")
        a("buffer_load_dwordx4 v6, s[44:47], s9 offen" + (" nt" if "wnt" in OPT else "") + " lds")
        log.extend(["x", "x", f"g{gi}"])
    younger = lambda key: len(log) - 1 - log.index(key)
    issue(0); issue(1)
    if "w1t" in OPT:
        a("s_mul_i32 s8, s62, 288\ns_lshl_b32 s9, s61, 6\ns_add_u32 s8, s8, s9\ns_add_u32 s8, s8, 32\ns_mul_i32 s9, s3, 36\ns_add_u32 s8, s8, s9")
        a("v_min_u32 v7, 35, v1\nv_add_u32 v7, s8, v7\nv_subrev_u32 v8, 576, v7\nv_min_u32 v7, v7, v8\nv_mul_u32_u24 v7, 1152, v7\ns_lshl_b32 s9, s61, 7")
        a("buffer_load_dword v31, v7, s[44:47], s9 offen")
        log.append("t")
    a.srd(56, P_WS, WS_BYTES)
    a("s_cmp_lg_u32 s3, 0\ns_cbranch_scc1 G_pf")
    a("s_mov_b64 exec, 0xffff")
    a(f"v_lshl_add_u32 v7, v1, 2, v{VC}\nv_mov_b32 v8, 0\nds_write2_b32 v7, v8, v8 offset0:0 offset1:16")
    a("s_mov_b64 exec, -1")
    a("G_pf:")
    a.srd(52, P_W2, D * D * 2)
    a("v_bfe_u32 v7, v1, 4, 1\nv_lshlrev_b32 v8, 1, v7\nv_xor_b32 v8, v8, v3\nv_lshl_add_u32 v30, v8, 4, v4")
    a(f"v_lshlrev_b32 v12, 6, v2\nv_lshl_add_u32 v12, v7, 5, v12\nv_lshl_add_u32 v12, v3, 3, v12\nv_add_u32 v22, {G2_W}, v12\nv_xor_b32 v23, 32, v22")
    a(f"s_mov_b32 s66, s11\ns_lshl_b32 s67, s3, 10\ns_add_u32 s67, s67, {G2_W}")
    a("v_and_b32 v2, 15, v1\nv_lshrrev_b32 v3, 4, v1")
    a("v_bfe_u32 v4, v1, 3, 1\nv_lshlrev_b32 v4, 1, v4")
    a("v_xor_b32 v5, v4, v3\nv_lshl_add_u32 v5, v2, 2, v5\nv_lshlrev_b32 v5, 4, v5")
    a("s_and_b32 s63, s3, 3\ns_lshr_b32 s64, s3, 2\ns_and_b32 s69, s3, 1\ns_lshr_b32 s70, s63, 1\ns_lshl_b32 s71, s63, 1\ns_add_u32 s71, s71, s64")
    a("s_lshl_b32 s9, s71, 10\ns_lshl_b32 s8, s69, 13\ns_add_u32 s9, s9, s8\nv_add_u32 v5, s9, v5")
    for i, x in enumerate((0, 1024, 8192, 9216)): a(f"v_xor_b32 v{XA+i}, {x}, v5\nv_add_u32 v{XA+i}, {G2_W}, v{XA+i}")
    a("v_lshrrev_b32 v5, 1, v3\nv_lshlrev_b32 v11, 11, v5\nv_and_b32 v8, 1, v3\nv_lshl_add_u32 v11, v8, 9, v11")
    a("v_lshrrev_b32 v7, 2, v2\nv_lshl_add_u32 v11, v7, 6, v11\nv_and_b32 v7, 3, v1\nv_lshl_add_u32 v11, v7, 3, v11\nv_lshl_add_u32 v11, v8, 5, v11")
    a("s_lshl_b32 s9, s64, 10\ns_lshl_b32 s8, s69, 12\ns_add_u32 s9, s9, s8\nv_add_u32 v11, s9, v11\ns_lshl_b32 s8, s70, 5\nv_xor_b32 v11, s8, v11")
    for i, x in enumerate((0, 32, 4096, 4128)): a(f"v_xor_b32 v{WA+i}, {x}, v11\nv_add_u32 v{WA+i}, {G2_W+16384}, v{WA+i}")
    a(f"v_xor_b32 v5, v5, v4\nv_lshl_add_u32 v5, v2, 2, v5\nv_lshlrev_b32 v20, 4, v5\nv_lshl_add_u32 v20, v8, 3, v20\ns_add_u32 s9, s13, {G1_BASE}\nv_add_u32 v20, s9, v20\nv_xor_b32 v21, 32, v20")
    a("v_lshlrev_b32 v13, 4, v2\nv_lshlrev_b32 v18, 4, v3\nv_lshlrev_b32 v25, 4, v1")
    a(f"s_lshl_b32 s9, s71, 8\ns_add_u32 s9, s9, {G1_AUX}\nv_add_u32 v26, s9, v13\nv_xor_b32 v27, 256, v26")
    a(f"s_lshl_b32 s9, s64, 8\ns_lshl_b32 s8, s70, 7\ns_add_u32 s9, s9, s8\ns_add_u32 s9, s9, {G1_AUX+2048}\nv_add_u32 v28, s9, v18\nv_xor_b32 v29, 128, v28\ns_lshl_b32 s8, s69, 6\nv_add_u32 v24, s8, v28")
    a(f"s_lshl_b32 s65, s60, 3\ns_add_u32 s65, s65, s71\ns_lshl_b32 s68, s65, 8\ns_add_u32 s68, s68, {ST1_OFF}\ns_xor_b32 s98, s65, 1")
    a(f"s_lshl_b32 s9, s61, 11\ns_lshl_b32 s8, s64, 10\ns_add_u32 s9, s9, s8\ns_add_u32 s9, s9, {H_OFF}\ns_mul_i32 s65, s65, 18432\ns_add_u32 s65, s65, s9\ns_mul_i32 s98, s98, 18432\ns_add_u32 s98, s98, s9")
    a(f"v_mov_b32 v160, {fh(GC0)}\nv_mov_b32 v161, {fh(GC0)}\nv_mov_b32 v162, {fh(GC1)}\nv_mov_b32 v163, {fh(GC1)}\nv_mov_b32 v164, 1.0\nv_mov_b32 v165, 1.0")
    for r in range(4): a(f"v_mov_b32 v{ONE+r}, 0x3f803f80")
    a("v_lshlrev_b32 v7, 2, v3\nv_sub_u32 v19, v2, v7")
    def w2issue(part):
        for i in range(3 * part, 3 * part + 3):
            a(f"s_add_u32 m0, s67, {8192*i}\ns_add_u32 s9, s66, {73728*i}")
            a("buffer_load_dwordx4 v30, s[52:55], s9 offen" + (" nt" if "w2nt" in OPT else "") + " lds")
            log.append("w")
    def reads(gi):
        o0 = SB[gi] - (G2_W if SB[gi] < G1_BASE else G1_BASE)
        b = BUF + 32 * (gi & 1)
        o = []
        for k2 in range(2):
            for mi in range(2): o.append(f"ds_read_b128 {v(b+16*k2+4*mi,4)}, v{XA+2*k2+mi} offset:{o0}")
            for t in range(2):
                for jh in range(2): o.append(f"ds_read_b64_tr_b16 {v(b+16*k2+8+4*t+2*jh,2)}, v{WA+2*k2+t} offset:{o0+256*jh}")
        return o
    for r in range(4): a(f"v_cmp_eq_u32 {s(DM[r],2)}, {r}, v19")
    fin = [f"v_cndmask_b32 v{STA}, 0, v{SQ}, {s(DM[0],2)}"] + [f"v_cndmask_b32 v{STA}, v{STA}, v{SQ+r}, {s(DM[r],2)}" for r in range(1, 4)]
    fin += [f"v_mul_f32 v{STA+2}, {fh(-1.0/D)}, v{SM}"]
    fin += [f"v_mov_b32 v7, v{STA}", "s_nop 1", f"v_permlane32_swap_b32 v{STA}, v7", f"v_add_f32 v{STA}, v{STA}, v7"]
    fin += [f"v_mov_b32 v7, v{STA}", "s_nop 1", f"v_permlane16_swap_b32 v{STA}, v7", f"v_add_f32 v{STA}, v{STA}, v7"]
    fin += f"v_mul_f32 v7, {fh(1.0/D)}, v{STA}\nv_fma_f32 v7, -v{STA+2}, v{STA+2}, v7\nv_max_f32 v7, 0, v7\nv_add_f32 v8, {fh(EPS)}, v7\nv_rsq_f32 v{STA}, v8\ns_nop 0".split("\n")
    fin += f"v_mul_f32 v8, v{STA}, v{STA}\nv_fmaak_f32 v8, v8, v7, {fh(EPS)}\nv_rsq_f32 v8, v8\nv_mul_f32 v{STA+1}, v{STA+2}, v{STA}\nv_mul_f32 v{STA+3}, v8, v{STA}".split("\n")
    LP, LQ = optval("LP", 2), optval("LQ", 3)
    log0 = list(log); fin0 = list(fin)
    a("s_cmp_ge_u32 s3, 4\ns_cbranch_scc1 G_lq")
    for role in "PQ":
        log[:] = log0; fin[:] = fin0
        LA = LP if role == "P" else LQ
        if role == "Q": a("G_lq:")
        for g in range(2, LA): issue(g)
        for gi in range(10):
            rd = []
            if gi < 9:
                if gi in (3, 6, 8):
                    for r in range(8): a(f"v_add_u32 v{XA+r}, {(G1_BASE-G2_W) if gi != 6 else -(G1_BASE-G2_W)}, v{XA+r}")
                a(f"s_waitcnt vmcnt({younger(f'g{gi}')}) lgkmcnt(0)\ns_barrier")
                if gi == 0 or "g1t" in OPT: a.stamp(1 + gi)
                rd = reads(gi)
            else: a("s_waitcnt lgkmcnt(0)")
            def mem():
                if gi + LA < 9: issue(gi + LA)
            for _ in range(optval("RF", 0)):
                if rd: a(rd.pop(0))
            if role == "P" and gi < 7: mem()
            if gi > 0:
                b = BUF + 32 * ((gi - 1) & 1)
                z = "0" if gi == 1 else None
                mm = [(SQ, b, b, z), (SM, ONE, b, z), (SQ, b + 16, b + 16, None), (SM, ONE, b + 16, None), (CS, b + 8, ONE, z)]
                mm += [(ACC + 8 * mi + 4 * t, b + 16 * k2 + 8 + 4 * t, b + 16 * k2 + 4 * mi, z if k2 == 0 else None) for k2 in range(2) for t in range(2) for mi in range(2)]
                for n, (d, x, y, c) in enumerate(mm):
                    if rd: a(rd.pop(0))
                    a.mfma(d, x, y, c)
                    if gi == 9 and n == 5: a.nop(5)
                    if gi == 9 and n >= 5:
                        for _ in range(5):
                            if fin: a(fin.pop(0))
            for r in rd: a(r)
            if role == "Q": mem()
            if gi in (6, 7, 8): w2issue((2, 0, 1)[gi - 6])
            if gi == 8: a(f"s_load_dword s69, {s(P_DBG,2)}, 0")
        if role == "P": a("s_branch G_lj")
    a("G_lj:")
    for x in fin: a(x)
    a(f"ds_write_b128 v24, {v(CS,4)}")
    a(f"ds_write_b128 v26, {v(STA,4)}")
    a("s_waitcnt lgkmcnt(0)\ns_barrier")
    a.stamp(2 if "g1t" not in OPT else 10)
    if "g1t" in OPT: a.end()
    for t in range(2):
        for q in range(2): a(f"ds_read_b128 {v(CSA+8*t+4*q,4)}, v{28+t} offset:{64*q}")
    a(f"ds_read_b128 {v(STA+4,4)}, v27")
    a(f"s_mov_b32 s63, {W2M_OFF}\nv_min_u32 v31, 240, v25\nv_mov_b32 v192, 0\ns_cmp_eq_u32 s69, 0\ns_cselect_b32 s9, 0, s3\ns_cmp_lg_u32 s9, 7\ns_cbranch_scc1 G_w0")
    a("buffer_load_dwordx4 v[192:195], v25, s[56:59], s63 offen sc1\nbuffer_load_dwordx4 v[196:199], v25, s[56:59], s63 offen offset:1024 sc1\nbuffer_load_dwordx4 v[200:203], v31, s[56:59], s63 offen offset:2048 sc1")
    a("G_w0:")
    a("s_mov_b32 s100, 2\ns_cmp_lt_u32 s3, 4\ns_cbranch_scc1 G_t0\ns_cmp_ge_u32 s2, 128\ns_cbranch_scc1 G_t0\ns_mov_b32 s100, 0")
    conv.team_k(a, TB, 25, 5)
    a("G_t0:")
    a("s_cmp_lg_u32 s61, 0\ns_cbranch_scc1 G_ns")
    a(f"s_mov_b64 exec, 0xffff\nbuffer_store_dwordx4 {v(STA,4)}, v13, s[56:59], s68 offen sc1\ns_mov_b64 exec, -1")
    a("G_ns:")
    a(f"v_mov_b32 v{STA+8}, v{STA+2}\nv_mov_b32 v{STA+9}, v{STA+2}\nv_mov_b32 v{STA+10}, v{STA+3}\nv_mov_b32 v{STA+11}, v{STA+3}")
    a("s_waitcnt lgkmcnt(0)")
    for t in range(2):
        for e in range(0, 4, 2): a(f"v_pk_add_f32 {v(CSA+8*t+e,2)}, {v(CSA+8*t+e,2)}, {v(CSA+8*t+4+e,2)}")
    a(f"v_mov_b32 v{STA+4}, v{STA+6}\nv_mov_b32 v{STA+5}, v{STA+6}\nv_mov_b32 v{STA+6}, v{STA+7}")
    for mi in range(2):
        c = STA + 8 - 4 * mi
        regs = [ACC + 8 * mi + e for e in range(8)]
        for e in range(0, 8, 2): a(f"v_pk_fma_f32 {v(regs[e],2)}, {v(c,2)}, {v(CSA+8*(e>>2)+(e&3),2)}, {v(regs[e],2)}")
        for e in range(0, 8, 2): a(f"v_pk_mul_f32 {v(regs[e],2)}, {v(regs[e],2)}, {v(c+2,2)}")
        gelu_pk(a, regs, list(range(168, 176)), "v[160:161]", "v[162:163]", "v[164:165]")
        l1 = a.lab("GS"); l2 = a.lab("GT")
        a(f"s_cmp_lg_u32 s70, 0\ns_cbranch_scc1 {l1}")
        for e in range(4): a(f"v_cvt_pk_bf16_f32 v{176+4*mi+e}, v{regs[2*e]}, v{regs[2*e+1]}")
        a(f"s_branch {l2}\n{l1}:")
        for e in range(4): a(f"v_cvt_pk_bf16_f32 v{176+4*mi+(e^2)}, v{regs[2*e]}, v{regs[2*e+1]}")
        a(f"{l2}:")
        a(f"buffer_store_dwordx4 {v(176+4*mi,4)}, v25, s[56:59], s{65 if mi == 0 else 98} offen sc1")
    a.stamp(3)
    HB, AR, AC2 = 32, 104, 224
    a("v_lshlrev_b32 v2, 4, v1\nv_add_u32 v3, 4096, v2\nv_lshlrev_b32 v4, 2, v1")
    a("s_lshl_b32 s8, s60, 3\ns_add_u32 s8, s8, s3")
    a("v_and_b32 v11, 1, v1\nv_lshlrev_b32 v11, 6, v11\nv_add_u32 v11, v11, v18")
    a("v_add_u32 v28, 36864, v22\nv_add_u32 v29, 36864, v23")
    a("v_and_b32 v8, 15, v1\ns_lshl_b32 s10, s8, 4\nv_add_u32 v8, s10, v8\nv_lshlrev_b32 v9, 4, v18\ns_movk_i32 s13, 18432\nv_mov_b32 v10, 0x80000000")
    for gam, sh in enumerate((-1, 1, -2, 2)):
        a(f"v_add_u32 v5, {sh}, v8\nv_cmp_gt_u32 vcc, {S}, v5\nv_lshrrev_b32 v6, 4, v5\nv_mad_u32_u24 v6, v6, s13, v9\nv_and_b32 v5, 15, v5\nv_lshl_add_u32 v6, v5, 4, v6")
        a(f"v_cndmask_b32 v{24+gam}, v10, v6, vcc")
    a(f"s_mul_i32 s11, s8, 18432\ns_lshl_b32 s9, s61, 11\ns_add_u32 s11, s11, s9\ns_add_u32 s11, s11, {X1_OFF}")
    a(f"s_mul_i32 s6, s60, {FB_STRIDE}\ns_add_u32 s6, s6, {FH_OFF}\ns_lshl_b32 s10, s3, 8\ns_add_u32 s10, s10, {G1_AUX}\nv_add_u32 v13, s10, v13\ns_mov_b32 s14, {H_OFF}")
    a("ds_read_b64 v[18:19], v13")
    a("s_cmp_lg_u32 s69, 0\ns_cbranch_scc1 G_zk")
    a.zcheck(14, 9, False)
    a("G_zk:")
    G2E = "g2l" not in OPT
    if not G2E: a("s_waitcnt vmcnt(0)")
    def hsig():
        last_of(a, cHs, 8, "G_hs")
        a.sadd(6, 7)
        a("G_hs:")
        a.stamp(4)
    if not G2E: hsig()
    else: a("s_waitcnt vmcnt(2)")
    a("s_cmp_lg_u32 s3, 7\ns_cbranch_scc1 G_wm")
    a("s_mov_b32 s13, 0x20000")
    a("W2_m:")
    a("v_min3_u32 v6, v192, v196, v200\nv_cmp_eq_u32 vcc, 0, v6\ns_cbranch_vccz W2_n")
    a("buffer_load_dwordx4 v[192:195], v2, s[56:59], s63 offen sc1\nbuffer_load_dwordx4 v[196:199], v2, s[56:59], s63 offen offset:1024 sc1\nbuffer_load_dwordx4 v[200:203], v31, s[56:59], s63 offen offset:2048 sc1")
    a("s_waitcnt vmcnt(0)\ns_sleep 2\ns_sub_u32 s13, s13, 1\ns_cbranch_scc0 W2_m")
    a("W2_n:")
    a(f"ds_write_b128 v2, v[192:195] offset:{G2_WM}\nds_write_b128 v2, v[196:199] offset:{G2_WM+1024}\nds_write_b128 v31, v[200:203] offset:{G2_WM+2048}")
    a("s_waitcnt lgkmcnt(0)")
    a("G_wm:")
    if G2E:
        a("s_waitcnt vmcnt(0)")
        hsig()
    a("s_barrier")
    NA = 6
    def ard(ks):
        b = AR + 20 * (ks % NA)
        o = [f"ds_read_b128 {v(b,4)}, v11 offset:{G2_WM+128*ks}"]
        for t in range(4):
            for jh in range(2):
                off = ((ks * 2 + jh) * 2 + (t >> 1)) * 1024
                ad = 22 + (t & 1)
                if off >= 36864: off -= 36864; ad += 6
                o.append(f"ds_read_b64_tr_b16 {v(b+4+4*t+2*jh,2)}, v{ad} offset:{off}")
        return o
    for ks in range(NA):
        for r in ard(ks): a(r)
    for t in range(4): a(f"ds_read_b64 {v(244+2*t,2)}, v{20+(t&1)} offset:{8192*(t>>1)}")
    a("s_cmp_lg_u32 s3, 1\ns_cbranch_scc1 G2_hw")
    a.cpoll(6, 9, 48, 13, 1)
    a("G2_hw:")
    a("s_cmp_lg_u32 s100, 0\ns_cbranch_scc1 G_t1")
    a(f"s_add_u32 s7, s2, 448\ns_lshr_b32 s7, s7, 6\ns_lshl_b32 s7, s7, 7\ns_add_u32 s99, s7, {FKV_OFF+2*(FB_STRIDE-384)}")
    a("G_t1:")
    a(f"s_sub_u32 s7, s6, {FB_STRIDE}\ns_add_u32 s12, s6, {FB_STRIDE}\ns_cmp_eq_u32 s3, 0\ns_cselect_b32 s12, s7, s12")
    a("s_waitcnt lgkmcnt(0)\ns_barrier")
    a("s_add_u32 s7, s8, 1\ns_and_b32 s9, s7, 7\ns_cmp_ge_u32 s9, 2\ns_cbranch_scc1 G2_hg\ns_and_b32 s7, s7, 127\ns_cmp_lt_u32 s7, 2\ns_cbranch_scc1 G2_hg")
    a.cpoll(12, 9, 48, 13, 1)
    a("G2_hg:")
    a(f"s_cmp_lg_u32 s100, 0\ns_cbranch_scc1 G_t3\ns_load_dword s49, {s(P_WS,2)}, s99\nG_t3:")
    a.stamp(5)
    hl = []
    for ks in range(18):
        pre = "s_add_u32 s14, s14, 4096\n" if ks and ks % 4 == 0 else ""
        g0, g1_ = (2 * ks) // 9, (2 * ks + 1) // 9
        if g0 == g1_: hl.append((pre + f"buffer_load_dwordx4 {v(HB+4*ks,4)}, v{24+g0}, s[56:59], s14 offen offset:{(ks%4)*1024} sc1", 1))
        else: hl.append((pre + f"buffer_load_dwordx2 {v(HB+4*ks,2)}, v{24+g0}, s[56:59], s14 offen offset:{(ks%4)*1024} sc1\nbuffer_load_dwordx2 {v(HB+4*ks+2,2)}, v{24+g1_}, s[56:59], s14 offen offset:{(ks%4)*1024+8} sc1", 2))
    if 'hpl' in OPT: hl = [(x.replace(' sc1', ''), n) for x, n in hl]
    HD = optval("HD", 5)
    log2 = []
    def hissue(ks):
        a(hl[ks][0]); log2.extend(["x"] * (hl[ks][1] - 1) + [ks])
    for ks in range(HD): hissue(ks)
    for ks in range(18):
        lg = "" if ks < NA else f" lgkmcnt({min(15, 9*min(NA-1, 17-ks))})"
        a(f"s_waitcnt vmcnt({len(log2)-1-log2.index(ks)}){lg}")
        if ks + HD < 18: hissue(ks + HD)
        if ks == 1:
            a("s_cmp_lg_u32 s100, 0\ns_cbranch_scc1 G_t2\ns_waitcnt lgkmcnt(0)\ns_cmp_eq_u32 s49, 0\ns_cbranch_scc1 G_t2\ns_mov_b32 s100, 1")
            conv.team_kv(a, TB)
            a("G_t2:")
        rd = ard(ks + NA) if ks + NA < 18 else []
        b = AR + 20 * (ks % NA)
        for t in range(5):
            a.mfma(AC2 + 4 * t, b + 4 * t, HB + 4 * ks, "0" if ks == 0 else None)
            for _ in range(1 if t == 0 else 2):
                if rd: a(rd.pop(0))
    a.stamp(6)
    for e in range(8): a(f"v_lshlrev_b32 v{HB+2*e}, 16, v{244+e}\nv_and_b32 v{HB+2*e+1}, 0xffff0000, v{244+e}")
    a(f"v_add_f32 v9, v{AC2}, v{AC2+1}")
    a("v_sub_f32 v28, v19, v9\nv_sub_f32 v29, v19, v9\nv_mov_b32 v19, v18\nv_mov_b32 v10, 0\nv_mov_b32 v11, 0")
    for p in range(2):
        for e in range(0, 8, 2): a(f"v_pk_fma_f32 {v(HB+8*p+e,2)}, {v(HB+8*p+e,2)}, v[18:19], v[28:29]")
        for e in range(0, 8, 2): a(f"v_pk_add_f32 {v(HB+8*p+e,2)}, {v(HB+8*p+e,2)}, {v(AC2+4+8*p+e,2)}")
        for e in range(4): a(f"v_cvt_pk_bf16_f32 v{AR+4*p+e}, v{HB+8*p+2*e}, v{HB+8*p+2*e+1}")
        a(f"buffer_store_dwordx4 {v(AR+4*p,4)}, v2, s[56:59], s11 offen offset:{p*1024} sc1")
    for e in range(0, 16, 2): a(f"v_pk_fma_f32 v[10:11], {v(HB+e,2)}, {v(HB+e,2)}, v[10:11]")
    a("v_add_f32 v10, v10, v11")
    gsum(a, 10, 11)
    a(f"s_mul_i32 s10, s60, 9\ns_add_u32 s10, s10, s61\ns_lshl_b32 s10, s10, 9\ns_lshl_b32 s12, s3, 6\ns_add_u32 s10, s10, s12\ns_add_u32 s10, s10, {SS_OFF}")
    a(f"s_lshl_b32 s12, s8, 6\ns_add_u32 s12, s12, {MEAN_OFF}")
    a("s_mov_b64 exec, 0xffff")
    a("buffer_store_dword v10, v4, s[56:59], s10 offen sc1")
    a("s_cmp_lg_u32 s61, 0\ns_cbranch_scc1 G2_m")
    a("buffer_store_dword v9, v4, s[56:59], s12 offen sc1")
    a("G2_m:")
    a("s_mov_b64 exec, -1")
    a(f"s_sub_u32 s6, s6, {FH_OFF-FX_OFF}")
    consts(a)
    a("s_waitcnt vmcnt(0)")
    last_of(a, cG2, 8, "G_xs")
    a.sadd(6, 7)
    a("G_xs:")
    a.stamp(7)

def gen_stats(a):
    R = 32
    a("v_lshrrev_b32 v2, 2, v1\nv_and_b32 v3, 3, v1\nv_mul_u32_u24 v4, 1152, v2\nv_lshl_add_u32 v4, v3, 4, v4")
    a("s_mul_i32 s7, s6, 18432")
    a.srd(44, P_Q, ACT)
    for i in range(18): a(f"buffer_load_dwordx4 {v(R+4*i,4)}, v4, s[44:47], s7 offen offset:{64*i}")
    a("s_barrier")
    a("v_mov_b32 v8, 0x3f803f80")
    for r in range(4): a(f"v_mov_b32 v{20+r}, 0")
    for i in range(18):
        if i % 3 == 0: a(f"s_waitcnt vmcnt({15-i})")
        for d in range(4):
            a(f"v_dot2c_f32_bf16 v{20+(d&1)}, v{R+4*i+d}, v8\nv_dot2c_f32_bf16 v{22+(d&1)}, v{R+4*i+d}, v{R+4*i+d}")
    a.ldsadd(VC, V1, cG1)
    a("v_add_f32 v20, v20, v21\nv_add_f32 v22, v22, v23\ns_nop 1")
    for qp in ("[1,0,3,2]", "[2,3,0,1]"):
        a(f"v_add_f32_dpp v20, v20, v20 quad_perm:{qp} row_mask:0xf bank_mask:0xf")
        a(f"v_add_f32_dpp v22, v22, v22 quad_perm:{qp} row_mask:0xf bank_mask:0xf")
        a("s_nop 1")
    a(f"v_mul_f32 v26, {fh(-1.0/D)}, v20\nv_mul_f32 v22, {fh(1.0/D)}, v22")
    a("v_fma_f32 v22, -v26, v26, v22\nv_max_f32 v22, 0, v22")
    a(f"v_add_f32 v21, {fh(EPS)}, v22\nv_rsq_f32 v24, v21\ns_nop 0")
    a(f"v_mul_f32 v21, v24, v24\nv_fmaak_f32 v21, v21, v22, {fh(EPS)}\nv_rsq_f32 v21, v21")
    a("v_mul_f32 v25, v26, v24\nv_mul_f32 v27, v21, v24\nv_or_b32 v24, 1, v24")
    a(f"v_lshlrev_b32 v5, 4, v2\ns_lshl_b32 s7, s6, 8\ns_add_u32 s7, s7, {ST1_OFF}")
    a.zcheck(14, 9, False)
    a("s_mov_b32 exec_lo, 0x11111111\ns_mov_b32 exec_hi, 0x11111111")
    a("buffer_store_dwordx4 v[24:27], v5, s[56:59], s7 offen sc1")
    a("s_mov_b64 exec, -1")

def gen_colsum(a):
    R = 32
    a("s_mul_i32 s7, s6, 57\ns_lshr_b32 s7, s7, 9\ns_mul_i32 s8, s7, 9\ns_sub_u32 s8, s6, s8")
    a("v_lshrrev_b32 v2, 3, v1\nv_and_b32 v3, 7, v1\nv_mul_u32_u24 v4, 1152, v2\nv_lshl_add_u32 v4, v3, 4, v4")
    a("s_mul_i32 s10, s7, 165888\ns_lshl_b32 s11, s8, 7\ns_add_u32 s10, s10, s11")
    a.srd(44, P_W1, D * D * 2)
    for i in range(18):
        a(f"buffer_load_dwordx4 {v(R+4*i,4)}, v4, s[44:47], s10 offen\ns_add_u32 s10, s10, 9216")
    a("s_barrier")
    for i in range(18):
        if i % 3 == 0: a(f"s_waitcnt vmcnt({15-i})")
        d = 20 if i == 0 else 104
        for e in range(4): a(f"v_lshlrev_b32 v{d+2*e}, 16, v{R+4*i+e}\nv_and_b32 v{d+2*e+1}, 0xffff0000, v{R+4*i+e}")
        if i:
            for e in range(4): a(f"v_pk_add_f32 {v(20+2*e,2)}, {v(20+2*e,2)}, {v(104+2*e,2)}")
    a.ldsadd(VC, V1, cG1)
    for e in range(8): a(f"v_add_f32_dpp v{20+e}, v{20+e}, v{20+e} row_ror:8 row_mask:0xf bank_mask:0xf")
    for e in range(8): gsum(a, 20 + e, 5)
    for e in range(8): a(f"v_or_b32 v{20+e}, 1, v{20+e}")
    a(f"v_lshlrev_b32 v5, 5, v1\ns_mul_i32 s7, s7, 2304\ns_lshl_b32 s8, s8, 8\ns_add_u32 s7, s7, s8\ns_add_u32 s7, s7, {CSUM_OFF}")
    a.zcheck(14, 9, False)
    a("s_mov_b64 exec, 0xff")
    a("buffer_store_dwordx4 v[20:23], v5, s[56:59], s7 offen sc1\nbuffer_store_dwordx4 v[24:27], v5, s[56:59], s7 offen offset:16 sc1")
    a("s_mov_b64 exec, -1")

def consts(a):
    if "nf1" in OPT: a("s_mov_b32 s4, s96\ns_mov_b32 s5, s97")
    elif "nf2" in OPT:
        a("s_and_b32 s4, s96, 3\ns_lshl_b32 s4, s4, 1\ns_and_b32 s7, s97, 1\ns_add_u32 s4, s4, s7\ns_lshr_b32 s5, s96, 2\ns_lshl_b32 s5, s5, 4\ns_lshr_b32 s7, s97, 1\ns_add_u32 s5, s5, s7")
    else:
        a("s_and_b32 s4, s96, 1\ns_lshl_b32 s4, s4, 2\ns_and_b32 s7, s97, 3\ns_add_u32 s4, s4, s7\ns_lshr_b32 s5, s96, 1\ns_lshl_b32 s5, s5, 3\ns_lshr_b32 s7, s97, 2\ns_add_u32 s5, s5, s7")
    km.consts2(a)

def gen_f(a, stP):
    a("s_cmp_lg_u32 s3, 0\ns_cbranch_scc1 F_pf")
    a("s_mov_b64 exec, 0xffff")
    a(f"v_lshl_add_u32 v7, v1, 2, v{VC}\nv_mov_b32 v8, 0\nds_write2_b32 v7, v8, v8 offset0:0 offset1:16")
    a("s_mov_b64 exec, -1")
    a("F_pf:")
    a(f"s_mul_i32 s61, s3, {CV_SZ}\ns_lshl_b32 s7, s3, 12\ns_add_u32 s7, s7, {FSCR-4*4096}\ns_cmp_ge_u32 s3, 4\ns_cselect_b32 s61, s7, s61")
    a("s_sub_u32 s65, 111, s60\ns_cmp_lt_u32 s3, 4\ns_cselect_b32 s65, s60, s65" if "rev" in OPT else "s_mov_b32 s65, s60")
    a("s_mul_i32 s12, s3, 112\ns_add_u32 s12, s12, s65\ns_mov_b32 s13, s61")
    a("s_waitcnt lgkmcnt(0)")
    a.srd(56, P_WS, WS_BYTES)
    a("s_cmp_eq_u32 s99, 1\ns_cbranch_scc1 F_pt\ns_barrier")
    if optval("FDLY", 0): a(f"s_sleep {optval('FDLY', 0)}")
    a("s_cmp_ge_u32 s12, 306\ns_cbranch_scc1 F_pt")
    a("s_setprio 2\ns_cmp_lt_u32 s12, 288\ns_cbranch_scc1 F_kv")
    a("s_sub_u32 s6, s12, 288")
    km.gen_meantile(a)
    a.ldsadd(VC, V1, cKV)
    a("s_branch F_done")
    a("F_kv:\ns_mov_b32 s6, s12")
    if "nobulk" in OPT: a("s_sleep 100\ns_branch F_end")
    st = a.stamps; a.stamps = False
    km.gen_kv(a)
    a.stamps = st
    a.stamp(5)
    a(f"s_mul_i32 s11, s8, {FB_STRIDE}\ns_add_u32 s11, s11, {FKC_OFF}")
    a("s_branch F_sig")
    a("F_pt:")
    a(f"s_mov_b32 s64, 0\ns_cmp_lt_u32 s12, {optval('FUN', 450)}\ns_cbranch_scc1 F_job")
    a("s_cmp_ge_u32 s12, 738\ns_cbranch_scc1 F_r2")
    a.ldswait(VC, 5, 7, optval('FJW', 4), cKV, sleep=4)
    a("F_job:")
    a(f"s_setprio {optval('JP', 1)}")
    a("s_sub_u32 s12, s12, 306\ns_and_b32 s62, s12, 7\ns_lshr_b32 s12, s12, 3\ns_mov_b32 s9, s61")
    n0 = len(a.L)
    km.job_setup(a, "JS")
    a.L[n0:] = [x.replace("s96", "s62") for x in a.L[n0:]]
    gen_pretile(a, 128)
    a(f"s_mov_b32 s6, s98\ns_add_u32 s11, s6, {FCNT}")
    a("F_sig:")
    a.zcheck(14, 13)
    a.ldsadd(VC, V1, cKV)
    a.stamp(6)
    a.sarrive(6, "s100", 8, 11)
    a("F_done:")
    a.stamp(2)
    a("s_cmp_lt_u32 s3, 4\ns_cbranch_scc1 F_cv")
    a("s_cmp_lg_u32 s64, 0\ns_cbranch_scc1 F_end")
    a("F_r2:")
    R2 = os.environ.get("R2", "kv6")
    if R2 == "kv6": a.ldswait(VC, 5, 7, 6, cKV, sleep=4)
    if R2 == "cv": a.ldswait(VC, 5, 7, 4, cT1, sleep=4)
    if R2 == "cv2": a.ldswait(VC, 5, 7, 4, cT2, sleep=4)
    GJ = optval("GJ", -1)
    if GJ < 0:
        a("s_mov_b32 s64, 1\ns_sub_u32 s12, 7, s3\ns_mul_i32 s12, s12, 112\ns_add_u32 s12, s12, s65\ns_add_u32 s12, s12, 738\ns_cmp_lt_u32 s12, 1170\ns_cbranch_scc1 F_job")
    else:
        a.zcheck(14, 13, False)
        a(f"s_add_u32 s7, s96, s97\ns_and_b32 s7, s7, 7\ns_mul_i32 s8, s7, {FB_STRIDE}\ns_add_u32 s8, s8, {FKC_OFF+128}\ns_mov_b32 s12, 1\ns_atomic_add s12, {s(P_WS,2)}, s8 glc\ns_waitcnt lgkmcnt(0)")
        a(f"s_mov_b32 s64, 1\ns_lshl_b32 s12, s12, 3\ns_add_u32 s12, s12, s7\ns_add_u32 s12, s12, 738\ns_cmp_lt_u32 s12, {1170-GJ}\ns_cbranch_scc1 F_job")
    a("F_end:")
    if "g1t" in OPT: a.end()
    a("v_lshlrev_b32 v2, 4, v1\nv_add_u32 v3, 4096, v2\nv_lshlrev_b32 v4, 2, v1")
    consts(a)
    a("s_branch K6_q")
    a("F_cv:")
    if "g1t" in OPT: a.end()
    a("v_lshlrev_b32 v2, 4, v1\nv_add_u32 v3, 4096, v2\nv_lshlrev_b32 v4, 2, v1")
    consts(a)
    a("s_lshl_b32 s6, s60, 2\ns_add_u32 s6, s6, s3\ns_mov_b32 s7, s61\ns_setprio 3")
    def wait_kv():
        a("s_cmp_lg_u32 s3, 0\ns_cbranch_scc1 F_kw")
        conv.kv_flag_addr(a, 8)
        a.cpoll(8, 1, 44, 13, 2)
        a.ldsadd(VC, V1, cXs)
        a("F_kw:")
        a.ldswait(VC, 5, 8, 1, cXs)
        a.stamp(3)
    def gate(pre):
        if pre == 2:
            a.ldsadd(VC, V1, cT1)
            return
        if not pre: a.ldsadd(VC, V1, cT2)
        if pre:
            a(f"s_add_u32 s55, s70, 128\ns_load_dword s53, {s(P_WS,2)}, s55")
            return
        a("s_cmp_lg_u32 s53, 0\ns_cbranch_scc1 F_w3")
        a.cpoll(55, 1, 44, 13, 8)
        a("F_w3:")
    conv.single(a, wait_kv, gate, stP.issue)
    assert stP.issued == 16
    a.stamp(4)
    a("v_mov_b32 v5, 2\ns_mov_b32 s98, s6")
    a.ldsadd(VC, 5, cG2)
    a("s_branch K6_p2")

def gen_k6(a, name):
    fine = "fine" in OPT
    a(f".p2align 8\n{name}:\nK6_start:")
    a("s_cmp_ge_u32 s2, 256\ns_cbranch_scc1 K6_end")
    a.stamp_init()
    if "skew" in OPT:
        a("s_mul_i32 s4, s2, 5\ns_and_b32 s4, s4, 7\nSK_l:\ns_sub_u32 s4, s4, 1\ns_cbranch_scc1 SK_d\ns_sleep 12\ns_branch SK_l\nSK_d:")
    a.kernargs()
    a("v_lshrrev_b32 v2, 6, v0\nv_and_b32 v1, 63, v0")
    a("v_readfirstlane_b32 s3, v2")
    a("s_and_b32 s96, s2, 7\ns_lshr_b32 s97, s2, 3\ns_mov_b32 s101, 1\ns_mov_b32 s99, 0")
    a(f"v_mov_b32 v{VC}, {CNT}\nv_mov_b32 v{V1}, 1")
    a("s_sub_u32 s60, s2, 144\ns_cmp_lt_u32 s97, 18\ns_cbranch_scc1 K6_g")
    if "now12" not in OPT:
        a("s_cmp_lg_u32 s3, 5\ns_cbranch_scc1 K6_n5\ns_mul_i32 s8, s60, 6016\nv_min_u32 v2, 46, v1\nv_lshlrev_b32 v2, 7, v2\nv_add_u32 v2, s8, v2\nv_min_u32 v2, 663424, v2\ns_waitcnt lgkmcnt(0)")
        a(f"global_load_dword v30, v2, {s(P_W1,2)}\nglobal_load_dword v31, v2, {s(P_W2,2)}\ns_branch K6_f\nK6_n5:")
    a("s_cmp_lt_u32 s3, 6\ns_cbranch_scc1 K6_f\ns_cmp_eq_u32 s3, 7\ns_cbranch_scc1 K6_pf")
    a(f"s_sub_u32 s11, 255, s2\ns_cmp_ge_u32 s11, {FLAG_WAVES}\ns_cbranch_scc1 K6_f")
    a(f"v_lshrrev_b32 v7, 5, v1\nv_mul_u32_u24 v7, {FB_STRIDE-512}, v7\nv_lshl_add_u32 v7, v1, 4, v7\nv_lshlrev_b32 v6, 4, v1")
    a("v_mov_b32 v8, 0\nv_mov_b32 v9, 0\nv_mov_b32 v10, 0\nv_mov_b32 v11, 0")
    a(f"s_lshl_b32 s8, s11, 12\ns_add_u32 s8, s8, {W2M_OFF}\ns_mul_i32 s9, s11, {4*FB_STRIDE}\ns_add_u32 s9, s9, {FLAG_OFF}\ns_add_u32 s10, s9, {2*FB_STRIDE}")
    a("s_waitcnt lgkmcnt(0)")
    a.srd(56, P_WS, WS_BYTES)
    for i in range(4): a(f"buffer_store_dwordx4 v[8:11], v6, s[56:59], s8 offen offset:{1024*i} sc1")
    a("buffer_store_dwordx4 v[8:11], v7, s[56:59], s9 offen sc1\nbuffer_store_dwordx4 v[8:11], v7, s[56:59], s10 offen sc1")
    a("s_barrier\ns_mov_b32 s99, 1\ns_mov_b32 s8, 1\ns_waitcnt vmcnt(0)")
    a(f"s_atomic_add s8, {s(P_DBG,2)}, 128 glc\ns_waitcnt lgkmcnt(0)\ns_cmp_lg_u32 s8, {FLAG_WAVES-1}\ns_cbranch_scc1 K6_f")
    a(f"s_atomic_add s101, {s(P_DBG,2)}, 0")
    a.stamp(1)
    a("s_branch K6_f")
    a("K6_pf:")
    a("s_getpc_b64 s[8:9]\nF_pc:")
    a("s_sub_u32 s10, s97, 18\nv_min_u32 v2, 39, v1\nv_mul_u32_u24 v2, 14, v2\nv_add_lshl_u32 v2, s10, v2, 7\nv_min_u32 v2, CODE_END-F_pc-4, v2")
    a("global_load_dword v31, v2, s[8:9]")
    a("s_branch K6_f")
    a("K6_g:")
    a("s_cmp_ge_u32 s97, 9\ns_cselect_b32 s62, 1, 0\ns_mul_i32 s61, s62, 9\ns_sub_u32 s61, s97, s61\ns_lshl_b32 s60, s96, 1\ns_add_u32 s60, s60, s62")
    A3 = [(2, 0), (2, 1024), (2, 2048)]
    QS = optval('QSP', 3)
    stP = Stream(a, [(64, A3, " sc1"), (65, A3, " sc1"), (66, [(tail.VT + i, 0) for i in range(3)], " sc1"), (68, [(tail.VT + 3, 0)], " sc1")])
    stQ = Stream(a, [(64, A3, " sc1"), (66, [(tail.VT + i, 0) for i in range(5)], " sc1", (0, 12 if QS else 18))] +
                  ([(66, [(tail.VT + i, 0) for i in range(QS)], " sc1", (12, 18)), (68, [(tail.VT + i, 0) for i in range(QS, 5)], " sc1", (12, 18))] if QS else []))
    gen_g(a)
    a("s_cmp_lt_u32 s3, 4\ns_cbranch_scc1 K6_p")
    if optval("GJ", -1) > 0:
        a("s_cmp_lt_u32 s2, 128\ns_cbranch_scc1 G_tm")
        JW = optval("JW", -1)
        if JW >= 0: a.ldswait(VC, 5, 7, 4, JW)
        a(f"s_lshl_b32 s12, s3, 4\ns_add_u32 s12, s12, s2\ns_add_u32 s12, s12, {1170-optval('GJ', -1)-192}\ns_cmp_ge_u32 s12, 1170\ns_cbranch_scc1 K6_q")
        a(f"s_lshl_b32 s61, s3, 12\ns_add_u32 s61, s61, {TB}\ns_mov_b32 s64, 1\ns_branch F_job")
        a("G_tm:")
    else: a("s_cmp_ge_u32 s2, 128\ns_cbranch_scc1 K6_q")
    a("s_setprio 3\ns_cmp_lg_u32 s100, 0\ns_cbranch_scc1 G_kw")
    a.cpoll(99, 1, 44, 13, 8)
    conv.team_kv(a, TB)
    a("G_kw:")
    a(f"s_add_u32 s6, s2, 448\ns_add_u32 s52, s70, 256\ns_load_dword s53, {s(P_WS,2)}, s52")
    def tgate():
        a("s_cmp_lg_u32 s53, 0\ns_cbranch_scc1 G_k2")
        a.cpoll(52, 1, 53, 13, 8)
        a("G_k2:")
    conv.team(a, TB, TB + 21504, cT1, cT2, cT3, tgate, stQ.issue)
    assert stQ.issued == 16
    a.ldsadd(VC, V1, cSide)
    a.stamp(8 if not fine else 2)
    a("s_waitcnt vmcnt(0)")
    last_of(a, cU, 4, "K6_q2")
    a.setflag("s6", 14)
    a("s_branch K6_q2")
    a("K6_f:")
    gen_f(a, stP)
    def addrs():
        a(f"v_mov_b32 v6, v2\nv_add_u32 v7, 36864, v2\nv_add_u32 v8, {ML_H}, v2\nv_add_u32 v9, {ML_H+36864}, v2")
        h_addr(a, 71, 10, 12)
    def rk():
        a(f"v_and_b32 v5, 15, v1\nv_lshlrev_b32 v5, 4, v5\nv_add_u32 v5, {RM}, v5")
        for m in range(4): a(f"ds_read_b32 v{GT+m}, v5 offset:{256*m}")
        a("s_waitcnt lgkmcnt(0)")
        for m in range(4):
            r = GT + m
            a(f"v_mul_f32 v{KC+2*m}, {fh(GC0)}, v{r}\nv_mul_f32 v{r}, v{r}, v{r}\nv_mul_f32 v{r}, {fh(0.044715)}, v{r}\nv_mul_f32 v{KC+2*m+1}, v{r}, v{KC+2*m}")
    a("K6_p:")
    a("s_cmp_lg_u32 s3, 1\ns_cbranch_scc1 KB_w3")
    a("s_add_u32 s6, s70, 128")
    a.dpoll(6, 48, 13, 8)
    a.ldsadd(VC, V1, cW3a)
    a("KB_w3:")
    a.ldswait(VC, 5, 7, 1, cW3a)
    paced(a, Stream(a, stP.segs), 16, optval("PPACE", 8))
    a("s_mov_b32 s98, 0")
    a("K6_p2:")
    a("s_setprio 2")
    PRE = NS
    for i in range(NS - 16): stP.issue()
    addrs()
    a(f"s_lshr_b32 s11, s5, 1\ns_mul_i32 s6, s11, {FB_STRIDE}\ns_add_u32 s6, s6, {FX_OFF}")
    a(f"s_mul_i32 s9, s3, 18432\ns_mov_b32 m0, s9\ns_mul_i32 s7, s5, 73728\ns_add_u32 s7, s7, s9\ns_add_u32 s7, s7, {X1_OFF}")
    a.stamp(8)
    a("s_cmp_lg_u32 s3, 0\ns_cbranch_scc1 KB_xw")
    a.cpoll(6, 9, 44, 13, optval('FXS', 1))
    a.ldswait(VC, 5, 8, 8, cG2)
    a.ldsadd(VC, V1, cFX)
    a("s_branch KB_xg")
    a("KB_xw:")
    a.ldswait(VC, 5, 8, 1, cFX)
    a("KB_xg:")
    a.stamp(9)
    def xdma(i):
        if i and i % 4 == 0: a("s_add_u32 m0, m0, 4096\ns_add_u32 s7, s7, 4096")
        a(f"buffer_load_dwordx4 v2, s[56:59], s7 offen offset:{(i%4)*1024} sc1 lds")
        stP.other(f"x{i}")
    XP = optval("XP", 6)
    for i in range(XP): xdma(i)
    for i in range(NS - PRE): stP.issue()
    late = [(lambda i=i: xdma(i)) for i in range(XP, 18)]
    def stat(ins, tag="x"):
        a(ins); stP.other(tag)
    for i in range(optval("XE", 12)): late.pop(0)()
    a(f"s_waitcnt vmcnt({stP.younger(f'x{XP-1}')})")
    a("s_cmp_eq_u32 s98, 0\ns_cbranch_scc1 KB_fy")
    a.setflag("s98", 14)
    a("KB_fy:")
    a.subbar(VC, 5, 10, 4, off=cX1)
    a.stamp(10 if not fine else 1)
    def xhook(ks, i):
        if i in (0, 4, 8, 10, 11, 3) and late: late.pop(0)()
    mphase(a, stP, 0, 6, 0, XP, prio=2, hook=xhook)
    assert not late
    if "s1" in OPT: a.stamp(8)
    a(f"s_waitcnt vmcnt({stP.younger('x17')})")
    if "s1" in OPT: a.stamp(9)
    a.subbar(VC, 5, 7, 4, off=cX2)
    kw = 18 - (NS + 2) // 3
    def w3hook(ks, i):
        if ks == kw - 1 and i == 10: a.ldswait(VC, 5, 7, 1, cW3)
    mphase(a, stP, 0, 6, XP, 18, first=False, prio=2, hook=w3hook)
    if fine: a.stamp(2)
    a.ldswait(VC, 5, 7, 5, cSide)
    rk()
    def pthook(i):
        if "ptouch" in OPT and i in (0, 2, 4):
            a(f"s_lshl_b32 s6, s4, 5\ns_add_u32 s6, s6, s5\ns_mul_i32 s6, s6, 73728\ns_mul_i32 s7, s3, 18432\ns_add_u32 s6, s6, s7\ns_add_u32 s6, s6, {PART_OFF+3072*i}")
            a("v_min_u32 v14, 47, v1\nv_lshlrev_b32 v14, 7, v14\ns_setprio 3\nbuffer_load_dword v18, v14, s[56:59], s6 offen sc1\ns_setprio 0"); stP.other()
    gphase(a, 10, 12, pthook)
    a.ldsadd(VC, V1, cH1)
    if fine: a.stamp(3)
    a("s_add_u32 s71, s71, 24")
    h_addr(a, 71, 10, 12)
    tail.consts_b(a)
    def w4hook(ks, i):
        if ks == kw - 1 and i == 10: a.ldswait(VC, 5, 7, 1, cW4)
    mphase(a, stP, 1, 6, prio=1, hook=w4hook)
    if fine: a.stamp(4)
    a.ldsadd(VC, V1, cU2)
    def sthook(i):
        if i == 0 and "w4t" in OPT:
            a("v_bfe_u32 v5, v1, 3, 2\nv_mov_b32 v14, s44")
            for t in range(1, 4): a(f"v_cmp_eq_u32 vcc, {t}, v5\nv_mov_b32 v15, s{44+t}\ns_nop 0\nv_cndmask_b32 v14, v14, v15, vcc")
            a("v_and_b32 v5, 7, v1\nv_lshl_add_u32 v14, v5, 7, v14\nv_lshrrev_b32 v5, 5, v1\nv_mul_u32_u24 v5, 36864, v5\nv_add_u32 v14, v14, v5")
            a("s_and_b32 s6, s5, 7\ns_add_u32 s6, s6, 1\ns_mul_i32 s6, s6, 73728\ns_add_u32 s6, s6, s68")
            a("s_setprio 3\nbuffer_load_dword v18, v14, s[56:59], s6 offen sc1\ns_setprio 0"); stP.other()
        if i == optval("SGI", 0):
            a.ldswait(VC, 5, 7, 4, cU2)
            a.ldswait(VC, 5, 7, 8, cH1)
            a("s_setprio 3")
            stage_x(a)
            stage_y(a, True)
            a("s_setprio 0")
            for j in range(6): stP.other()
    gphase(a, 10, 12, sthook)
    a.ldsadd(VC, V1, cH2)
    a("s_waitcnt vmcnt(0)")
    a.ldsadd(VC, V1, cA)
    a.ldswait(VC, 5, 7, 4, cH2)
    if fine: a.stamp(5)
    PF = 'pfirst' in OPT or 'qfin' not in OPT
    mphase(a, stP, 2, 8, prio=(2 if PF else None))
    if PF: a('s_setprio 3')
    if fine: a.stamp(6)
    tail.stores(a, 3, stP.other)
    if "pf1" not in OPT and "qfin" not in OPT:
        a(f"s_setprio {optval('PSP', 0)}")
        a.ldswait(VC, 5, 7, 4, cA)
        a.nop(2)
        def own_pass():
            mphase(a, stP, 3, 8, first=False, acc=MACC + 64, bufs=[BF, BF + 16, MACC, MACC + 16], prio=optval("P2P", 0), novm=True)
            if fine: a.stamp(7)
        st = a.stamps; a.stamps = st and fine
        assert MACC == 136 and BF == 104
        tail.p_final(a, MACC + 64, own_pass, cOwn)
        a.stamps = st
        a.end()
    else:
        tail.ex_base(a, 8)
        a(f"v_add_u32 v10, s8, v2\ns_lshl_b32 s6, s3, 2\nv_add_u32 v11, s6, v{VC}")
        if PF:
            a("s_waitcnt vmcnt(0)")
            tail.flags(a, 3); stP.other()
        def hook(ks, i):
            if not PF and ks == optval("EFLAG", 12) and i == 0:
                a("s_waitcnt vmcnt(0)")
                tail.flags(a, 3); stP.other()
        mphase(a, stP, 3, 8, acc=MACC + 64, hook=hook, bufs=[BF, BF + 16, MACC, MACC + 16], prio=optval("P2P", 0 if PF else 1))
        if fine: a.stamp(7)
        if "qfin" not in OPT:
            a("s_setprio 2")
            a.ldswait(VC, 5, 7, 4, cA)
            st = a.stamps; a.stamps = st and fine
            tail.final(a, cOwn, None, "P", MACC + 64)
            a.stamps = st
        else:
            a.nop(8)
            for i in range(4): a(f"ds_write_b128 v10, {v(MACC+64+4*i,4)} offset:{1024*i}")
            a.ldsadd(11, V1, cOwn)
        a.end()
    a("K6_q:")
    a("s_setprio 0")
    a.stamp(8 if not fine else 2)
    a.ldsadd(VC, V1, cSide)
    a("s_cmp_lg_u32 s3, 7\ns_cbranch_scc1 KB_q3")
    a("s_add_u32 s8, s70, 256")
    a.dpoll(8, 44, 13, 8)
    a.ldsadd(VC, V1, cT0)
    a("KB_q3:")
    a.ldswait(VC, 5, 7, 1, cT0, sleep=2)
    QW = optval("QRW", -1)
    if QW >= 0: a.ldswait(VC, 5, 7, 4, QW, sleep=2)
    paced(a, Stream(a, stQ.segs), 16, optval("QPACE", 4))
    a("K6_q2:")
    a("s_setprio 0")
    for i in range(NS - 16): stQ.issue()
    a.stamp(9 if not fine else 3)
    addrs()
    a("s_cmp_lg_u32 s3, 5\ns_cbranch_scc1 KB_w3c\ns_add_u32 s8, s70, 384")
    a.dpoll(8, 52, 13, 8)
    a.ldsadd(VC, V1, cW3)
    a("KB_w3c:")
    a("s_cmp_lg_u32 s3, 6\ns_cbranch_scc1 KB_rs")
    a.ldswait(VC, 5, 7, 1, cFX)
    a(f"s_lshr_b32 s11, s5, 1\ns_mul_i32 s6, s11, 4608\ns_and_b32 s8, s5, 1\ns_lshl_b32 s8, s8, 8\ns_add_u32 s6, s6, s8\ns_add_u32 s6, s6, {SS_OFF}\ns_add_u32 s11, s6, 4096")
    a(f"s_lshl_b32 s8, s5, 8\ns_add_u32 s8, s8, {MEAN_OFF}\ns_lshl_b32 s9, s5, 10\ns_add_u32 s9, s9, {ST1_OFF}\ns_setprio 3")
    for i in range(8): a(f"buffer_load_dword v{GT+i}, v4, s[56:59], s6 offen offset:{512*i} sc1")
    a(f"buffer_load_dword v{GT+8}, v4, s[56:59], s11 offen sc1\nbuffer_load_dword v{GT+13}, v4, s[56:59], s8 offen sc1\nbuffer_load_dwordx2 {v(GT+14,2)}, v2, s[56:59], s9 offen sc1")
    a("s_waitcnt vmcnt(0)")
    for i in range(1, 9): a(f"v_add_f32 v{GT}, v{GT}, v{GT+i}")
    a(f"v_mov_b32 v{GT+1}, {fh(1.0/D)}\nv_fmaak_f32 v{GT}, v{GT+1}, v{GT}, {fh(EPS)}")
    a(f"v_rsq_f32 v{GT+12}, v{GT}")
    a(f"v_add_u32 v5, {RM}, v2\ns_nop 0")
    a(f"ds_write_b128 v5, {v(GT+12,4)}")
    a.ldsadd(VC, V1, cSide)
    a("KB_rs:")
    tail.consts_b(a)
    a(f"s_add_u32 s68, s68, {11*36864}")
    a.ldswait(VC, 5, 7, 4, cX2)
    def qhook(ks, i):
        if ks == kw - 4 and i == 10:
            a(f"s_cmp_lg_u32 s3, 7\ns_cbranch_scc1 KB_q2a\ns_load_dword s53, {s(P_WS,2)}, s70\nKB_q2a:")
        if ks == kw - 3 and i == 10:
            a("s_cmp_lg_u32 s3, 7\ns_cbranch_scc1 KB_q2c\ns_cmp_lg_u32 s53, 0\ns_cbranch_scc1 KB_q2b")
            a.cpoll(70, 1, 53, 13, 8)
            a("KB_q2b:")
            a.ldsadd(VC, V1, cW4)
            a("KB_q2c:")
        if ks == kw - 1 and i == 10: a.ldswait(VC, 5, 7, 1, cW4)
    mphase(a, stQ, 0, 6, prio=2, hook=qhook)
    a.ldswait(VC, 5, 7, 5, cSide)
    if fine: a.stamp(4)
    rk()
    def yhook(i):
        ld = "buffer_load_dword v18, v14, s[56:59], s8 offen sc1\nbuffer_load_dword v19, v14, s[56:59], s8 offen offset:1280 sc1"
        if i == 0:
            a(f"s_mul_i32 s8, s4, 9\ns_lshr_b32 s8, s8, 1\ns_lshl_b32 s8, s8, 9\ns_add_u32 s8, s8, {FYW_OFF}\nv_min_u32 v14, 39, v1\nv_lshlrev_b32 v14, 5, v14")
            a(f"s_cmp_lg_u32 s3, 7\ns_cbranch_scc1 KB_y0\n{ld}\nKB_y0:")
        if i == 4:
            a("s_cmp_lg_u32 s3, 7\ns_cbranch_scc1 KB_ys\ns_mov_b32 s13, 0x20000\nKB_y1:")
            a("s_waitcnt vmcnt(0)\nv_and_b32 v18, v18, v19\nv_cmp_ne_u32 vcc, 1, v18\ns_cbranch_vccz KB_ys")
            a(f"s_sleep 16\n{ld}\ns_sub_u32 s13, s13, 1\ns_cbranch_scc0 KB_y1")
            a("KB_ys:")
    gphase(a, 10, 12, yhook)
    a.subbar(VC, 5, 7, 8, off=cH1)
    if fine: a.stamp(5)
    mphase(a, stQ, 1, 8, 0, 12, prio=1)
    a.ldswait(VC, 5, 7, 4, cH2)
    if fine: a.stamp(7)
    if QS:
        mphase(a, stQ, 2, 8, 12, 18, first=False, prio=1)
        pend = tail.store_list(a, range(QS))
        def shook(ks, i):
            if ks == optval("QSIG", 17) and i == 0: a.ldsadd(VC, V1, cOwn)
            if ks > 12 or i >= 3:
                for _ in range(optval("SPG", 1)):
                    if pend:
                        ins = pend.pop(0); a(ins)
                        if ins.startswith("buffer"): stQ.other()
        mphase(a, stQ, 3, 8, 12, 18, first=False, prio=1, acc=MACC + 16 * QS, hook=shook)
        a(f"s_setprio {optval('QT', 1)}")
        a.stamp(10)
        a.nop(8)
        for x in pend + tail.store_list(a, range(QS, 5)): a(x)
    else:
        mphase(a, stQ, 1, 8, 12, 18, first=False, prio=1)
        a(f"s_setprio {optval('QT', 1)}")
        a.stamp(10)
        tail.stores(a, 5)
    def mid():
        if QS:
            a(f"s_waitcnt vmcnt({2*(5-QS)})")
            tail.flags(a, QS)
            a("s_waitcnt vmcnt(1)")
            tail.flags(a, 5, QS)
        else:
            a("s_waitcnt vmcnt(0)")
            tail.flags(a, 5)
    st = a.stamps; a.stamps = st and fine
    a("s_and_b32 s6, s4, 1\ns_cmp_lt_u32 s3, 6\ns_cselect_b32 s6, s6, 0\ns_cmp_lg_u32 s6, 0\ns_cbranch_scc1 K6_qx")
    mid()
    a.stamp(1)
    a("s_branch K6_qe")
    a("K6_qx:")
    a.ldswait(VC, 5, 7, 4, cA)
    tail.final(a, cOwn, mid, "Q")
    a("K6_qe:")
    a.stamps = st
    a.end()
    a("K6_end:")
    a("s_endpgm")
```

```python
from common import *
import kb4
from kb4 import MACC, GT, VC, V1, fin_consts

VT = 24
STL = 44

def consts_b(a):
    a("s_mul_i32 s6, s4, 9\ns_lshr_b32 s6, s6, 1")
    a("s_and_b32 s7, s3, 3\ns_mul_i32 s8, s7, 3\ns_add_u32 s8, s8, 4\ns_mul_i32 s9, s7, 5\ns_add_u32 s9, s9, 16\ns_cmp_ge_u32 s3, 4\ns_cselect_b32 s8, s9, s8\ns_add_u32 s8, s8, s6")
    a("v_add_u32 v29, s8, v1\nv_subrev_u32 v5, 36, v29\nv_min_u32 v29, v29, v5")
    for i in range(5):
        a(f"s_add_u32 s9, s8, {i}")
        if i == 3: a("s_add_u32 s10, s6, s7\ns_cmp_lt_u32 s3, 4\ns_cselect_b32 s9, s10, s9")
        a(f"s_sub_u32 s10, s9, 36\ns_min_u32 s9, s9, s10\ns_lshl_b32 s{STL+i}, s9, 10\nv_add_u32 v{VT+i}, s{STL+i}, v2")
    a("v_lshl_add_u32 v5, v29, 1, 1\nv_mul_u32_u24 v5, 57, v5\nv_lshrrev_b32 v5, 9, v5\nv_subrev_u32 v5, s4, v5\nv_and_b32 v5, 7, v5\nv_lshlrev_b32 v5, 2, v5\nv_lshl_add_u32 v29, v29, 5, v5")
    a(f"s_mul_i32 s66, s4, {WSLICE}\ns_add_u32 s66, s66, {W4T_OFF}\ns_mov_b32 s68, s66")
    a(f"s_lshl_b32 s10, s4, 5\ns_add_u32 s10, s10, s5\ns_mul_i32 s67, s10, 73728\ns_add_u32 s67, s67, {PART_OFF}")
    a(f"s_mul_i32 s69, s5, 1152\ns_add_u32 s69, s69, {FT_OFF}")

def store_list(a, ts):
    o = []
    for t in ts:
        o.append(f"s_lshl_b32 s6, s{STL+t}, 1\ns_add_u32 s6, s6, s67")
        for mp in range(2): o += kb4.pstore(a, MACC, t, mp, 6, mp * 1024, 2 * t + mp)
    return o

def stores(a, nt, log=None):
    a.nop(8)
    for t in range(nt):
        a(f"s_lshl_b32 s6, s{STL+t}, 1\ns_add_u32 s6, s6, s67")
        for mp in range(2):
            for x in kb4.pstore(a, MACC, t, mp, 6, mp * 1024, 2 * t + mp): a(x)
            if log: log("e" if (t, mp) == (nt - 1, 1) else "x")

def flags(a, nt, lo=0):
    a(f"s_mov_b64 exec, {((1 << nt) - 1) & ~((1 << lo) - 1)}\nbuffer_store_dword v{V1}, v29, s[56:59], s69 offen sc1\ns_mov_b64 exec, -1")

def progressive(a, sf, issue, L=(3, 4, 5, 6, 7)):
    l = a.lab("PG"); e = a.lab("PE")
    a(f"s_mov_b32 s13, 0x40000\ns_mov_b32 s12, 0\n{l}:")
    a(f"s_load_dwordx8 s[16:23], {s(P_WS,2)}, s{sf} glc\ns_waitcnt lgkmcnt(0)")
    for i, d in enumerate(L):
        n = a.lab("PN")
        a(f"s_lshl_b32 s7, s{16+d}, {i}\ns_andn2_b32 s7, s7, s12\ns_cbranch_scc0 {n}\ns_or_b32 s12, s12, s7")
        issue(i, d)
        a(f"{n}:")
    a(f"s_cmp_eq_u32 s12, {(1 << len(L)) - 1}\ns_cbranch_scc1 {e}\ns_sleep {optval('FSL', 1)}\ns_sub_u32 s13, s13, 1\ns_cbranch_scc0 {l}\n{e}:")

def ex_base(a, d):
    a(f"s_lshr_b32 s{d}, s4, 1\ns_lshl_b32 s{d}, s{d}, 3\ns_lshr_b32 s{d}, 0x060e0005, s{d}\ns_and_b32 s{d}, s{d}, 0xff\ns_lshl_b32 s{d}, s{d}, 10")
    a(f"s_and_b32 s7, s3, 3\ns_mul_i32 s7, s7, 18432\ns_add_u32 s{d}, s{d}, s7")

def final(a, cOwn, mid, role=None, own_acc=None):
    RM = kb4.RM
    U = lambda u: 32 + 64 * u
    PR, AC, X1, XV, SV, RAW = 0, 24, 32, 40, 48, 56
    T = 240
    TO = 224
    a.srd(48, P_OUT, ACT)
    a("s_and_b32 s60, s3, 3")
    fin_consts(a)
    a("v_and_b32 v5, 15, v1\nv_lshrrev_b32 v6, 4, v1")
    a("v_mul_u32_u24 v7, 160, v5\nv_lshl_add_u32 v7, v6, 3, v7\nv_add_u32 v7, s53, v7")
    a("v_lshrrev_b32 v8, 1, v6\nv_mul_u32_u24 v8, 18432, v8\nv_bfe_u32 v9, v1, 2, 3\nv_lshl_add_u32 v8, v9, 7, v8")
    a("v_and_b32 v9, 3, v1\nv_lshl_add_u32 v8, v9, 3, v8\nv_add_u32 v8, s53, v8\nv_add_u32 v8, 3072, v8")
    a(f"v_lshlrev_b32 v11, 4, v5\nv_add_u32 v11, {RM}, v11")
    a("v_lshrrev_b32 v5, 5, v1\nv_bfe_u32 v6, v1, 1, 4\nv_and_b32 v9, 1, v1")
    a("v_mul_u32_u24 v18, 18432, v5\nv_lshl_add_u32 v18, v9, 4, v18\nv_mul_u32_u24 v19, 160, v6\nv_add3_u32 v19, v19, v18, s53")
    a("v_mul_u32_u24 v6, 1152, v6\nv_add_u32 v18, v18, v6")
    a("s_cmp_lt_u32 s60, 2\ns_cselect_b32 s63, s62, 0")
    ex_base(a, 64)
    a("v_add_u32 v10, s64, v2")
    def opt(u, fn):
        if u < 2: fn(); return
        l = a.lab("FU")
        a(f"s_cmp_eq_u32 s63, 0\ns_cbranch_scc1 {l}")
        fn()
        a(f"{l}:")
    SO, SP, SF = (65, 66, 67), (68, 70, 71), (96, 97)
    def side(u):
        b = U(u)
        if u < 2: a(f"s_mov_b32 s6, s60\ns_mov_b32 s7, {u}")
        else: a("s_mov_b32 s6, 4\ns_mov_b32 s7, s60")
        a("s_add_u32 s8, s6, s52\ns_mul_i32 s9, s7, 36864")
        a("s_lshr_b32 s10, s8, 1\ns_lshl_b32 s10, s10, 10\ns_and_b32 s11, s8, 1\ns_lshl_b32 s11, s11, 3\ns_add_u32 s10, s10, s11\ns_add_u32 s10, s10, s9")
        if kb4.ML_X: a(f"s_add_u32 s10, s10, {kb4.ML_X}")
        a("v_add_u32 v12, s10, v2")
        a(f"s_lshl_b32 s10, s6, 5\ns_add_u32 s{SO[u]}, s10, s9\nv_add_u32 v13, s{SO[u]}, v7")
        a("s_lshl_b32 s10, s7, 9\nv_add_u32 v14, s10, v11")
        a("s_and_b32 s10, s6, 1\ns_mul_i32 s10, s10, 36864\ns_lshr_b32 s11, s6, 1\ns_lshl_b32 s11, s11, 10\ns_add_u32 s10, s10, s11\ns_lshl_b32 s11, s7, 6\ns_add_u32 s10, s10, s11")
        a("v_add_u32 v15, s10, v8")
        for mt in range(2):
            a(f"ds_read_b64 {v(T+2*mt,2)}, v12 offset:{18432*mt}")
            a(f"ds_read_b64 {v(T+4+2*mt,2)}, v13 offset:{18432*mt}")
            a(f"ds_read_b128 {v(b+RAW+4*mt,4)}, v14 offset:{256*mt}")
            a(f"ds_read_b64_tr_b16 {v(T+8+2*mt,2)}, v15 offset:{32*mt}")
        a(f"s_lshl_b32 s9, s8, 11\ns_lshl_b32 s11, s7, 10\ns_add_u32 s9, s9, s11\ns_add_u32 s9, s9, s54\ns_add_u32 s{SP[u]}, s9, {PART_OFF}")
        if u != 1: a(f"s_lshl_b32 s9, s8, 5\ns_add_u32 s{SF[u>>1]}, s9, s69")
        a("s_waitcnt lgkmcnt(0)")
        for e in range(4):
            r = b + RAW + 4 * (e >> 1)
            a(f"v_lshlrev_b32 v{b+XV+2*e}, 16, v{T+4+e}\nv_and_b32 v{b+XV+2*e+1}, 0xffff0000, v{T+4+e}")
            a(f"v_lshlrev_b32 v{b+X1+2*e}, 16, v{T+e}\nv_and_b32 v{b+X1+2*e+1}, 0xffff0000, v{T+e}")
            a(f"v_lshlrev_b32 v{b+SV+2*e}, 16, v{T+8+e}\nv_and_b32 v{b+SV+2*e+1}, 0xffff0000, v{T+8+e}")
            a(f"v_fma_f32 v{T+12}, v{b+XV+2*e}, v{r+2}, v{r+3}\nv_fma_f32 v{T+13}, v{b+XV+2*e+1}, v{r+2}, v{r+3}")
            a(f"v_add_f32 v{b+X1+2*e}, v{b+X1+2*e}, v{r+1}\nv_add_f32 v{b+X1+2*e+1}, v{b+X1+2*e+1}, v{r+1}")
            a(f"v_mul_f32 v{b+SV+2*e}, v{b+SV+2*e}, v{T+12}\nv_mul_f32 v{b+SV+2*e+1}, v{b+SV+2*e+1}, v{T+13}")
        for e in range(8): a(f"v_mov_b32 v{b+AC+e}, " + ("0" if role != "P" else f"v{own_acc+8*u+e}"))
    def poll(sf, ds):
        l = a.lab("FP"); d = a.lab("FD")
        a(f"s_mov_b32 s13, 0x40000\n{l}:")
        a(f"s_load_dwordx8 s[16:23], {s(P_WS,2)}, s{sf} glc\ns_waitcnt lgkmcnt(0)")
        for x in ds[1:]: a(f"s_and_b32 s{16+ds[0]}, s{16+ds[0]}, s{16+x}")
        a(f"s_cbranch_scc1 {d}\ns_sleep {optval('FSL', 1)}\ns_sub_u32 s13, s13, 1\ns_cbranch_scc0 {l}\n{d}:")
    def loads(u, ds, i0=0):
        for i, d in enumerate(ds, i0):
            a(f"s_sub_u32 s6, s4, {d}\ns_and_b32 s6, s6, 7\ns_mul_i32 s6, s6, {ACT}\ns_add_u32 s6, s6, s{SP[u]}")
            a(f"buffer_load_dwordx4 {v(U(u)+PR+4*i,4)}, v2, s[56:59], s6 offen sc1")
    def accum(u, n, pk=False, src=None):
        b = U(u)
        if src is None: src = b + PR
        for i in range(n):
            for e in range(4): a(f"v_lshlrev_b32 v{T+2*e}, 16, v{src+4*i+e}\nv_and_b32 v{T+2*e+1}, 0xffff0000, v{src+4*i+e}")
            if pk:
                for e in range(0, 8, 2): a(f"v_pk_add_f32 {v(b+AC+e,2)}, {v(b+AC+e,2)}, {v(T+e,2)}")
            else:
                for e in range(8): a(f"v_add_f32 v{b+AC+e}, v{b+AC+e}, v{T+e}")
    def finish(us):
        for u in us:
            for r in range(8): a(f"v_fma_f32 v{U(u)+AC+r}, v{U(u)+AC+r}, v{U(u)+RAW+4*(r>>2)}, v{U(u)+X1+r}")
        for op in range(6):
            for u in us:
                b = U(u); t = b + PR
                for r in range(8):
                    a([f"v_mul_f32 v{t+r}, {fh(-LOG2E)}, v{b+AC+r}", f"v_exp_f32 v{t+r}, v{t+r}", f"v_add_f32 v{t+r}, 1.0, v{t+r}", f"v_rcp_f32 v{t+r}, v{t+r}",
                       f"v_mul_f32 v{b+AC+r}, v{b+AC+r}, v{b+SV+r}", f"v_fma_f32 v{b+AC+r}, v{b+AC+r}, v{t+r}, v{b+XV+r}"][op])
        for u in us:
            b = U(u)
            for e in range(4): a(f"v_cvt_pk_bf16_f32 v{b+PR+8+e}, v{b+AC+2*e}, v{b+AC+2*e+1}")
            a(f"v_add_u32 v13, s{SO[u]}, v7\nv_add_u32 v20, s{SO[u]}, v19\ns_add_u32 s{SO[u]}, s{SO[u]}, s55")
            for mt in range(2): a(f"ds_write_b64 v13, {v(b+PR+8+2*mt,2)} offset:{18432*mt}")
            a(f"ds_read_b128 {v(b+PR+12,4)}, v20")
        a("s_waitcnt lgkmcnt(0)")
        for u in us: a(f"buffer_store_dwordx4 {v(U(u)+PR+12,4)}, v18, s[48:51], s{SO[u]} offen" + os.environ.get("OFL", ""))
    if role == "P":
        E, L = (1, 2), (3, 4, 5, 6, 7)
        side(0); side(1)
        a.stamp(8)
        poll(SF[0], E)
        loads(0, E); loads(1, E)
        a("s_waitcnt vmcnt(0)")
        for u in range(2): accum(u, 2, True)
        a.stamp(9)
        poll(SF[0], L)
        a.stamp(10)
        loads(0, L); loads(1, L)
        a("s_waitcnt vmcnt(5)")
        accum(0, 5, True)
        a("s_waitcnt vmcnt(0)")
        accum(1, 5, True)
        finish([0, 1])
        return
    if role == "Q":
        side(2)
        mid()
        poll(SF[1], (0, 1, 2))
        for i, d in enumerate((0, 1, 2)):
            a(f"s_sub_u32 s6, s4, {d}\ns_and_b32 s6, s6, 7\ns_mul_i32 s6, s6, {ACT}\ns_add_u32 s6, s6, s{SP[2]}")
            a(f"buffer_load_dwordx4 {v(32+4*i,4)}, v2, s[56:59], s6 offen sc1")
        progressive(a, SF[1], lambda i, d: loads(2, (d,), i))
        a("s_waitcnt vmcnt(0)")
        accum(2, 3, True, 32)
        accum(2, 5, True)
        finish([2])
        return
    if "pfirst" in OPT: E, L, E2, L2 = (1, 2), (3, 4, 5, 6, 7), (0, 1, 2), (3, 4, 5, 6, 7)
    else: E, L, E2, L2 = (4, 5, 6, 7), (1, 2, 3), (4, 5, 6, 7), (0, 1, 2, 3)
    if "pfirst" in OPT:
        side(0); side(1)
        opt(2, lambda: side(2))
        mid()
    else:
        side(0)
        mid()
        side(1)
        opt(2, lambda: side(2))
    a.stamp(1)
    poll(SF[0], E)
    loads(0, E); loads(1, E)
    opt(2, lambda: (poll(SF[1], E2), loads(2, E2)))
    a("s_lshl_b32 s6, s60, 2")
    a(f"v_add_u32 v21, s6, v{VC}")
    def own():
        a.ldswait(21, 5, 7, 1, cOwn)
        for i in range(4): a(f"ds_read_b128 {v(TO+4*i,4)}, v10 offset:{1024*i}")
        a("s_waitcnt lgkmcnt(0)")
        for u in range(2):
            for e in range(8): a(f"v_add_f32 v{U(u)+AC+e}, v{U(u)+AC+e}, v{TO+8*u+e}")
    a("s_waitcnt vmcnt(0)")
    for u in range(3): opt(u, lambda: accum(u, len(E) if u < 2 else len(E2)))
    a.stamp(8)
    a(f"s_setprio {optval('QL', 2)}")
    poll(SF[0], L)
    a.stamp(6)
    loads(0, L); loads(1, L)
    opt(2, lambda: (poll(SF[1], L2), loads(2, L2)))
    own()
    a("s_waitcnt vmcnt(0)")
    a.stamp(9)
    for u in range(2): accum(u, len(L), True)
    finish([0, 1])
    opt(2, lambda: (accum(2, len(L2), True), finish([2])))

def p_final(a, acc, own_pass):
    RM = kb4.RM
    XV, SV, RR, T, PRE = 168, 184, 20, 216, 104
    a.srd(48, P_OUT, ACT)
    a("v_and_b32 v5, 15, v1\nv_lshrrev_b32 v6, 4, v1")
    a("s_lshl_b32 s65, s3, 5\ns_add_u32 s6, s65, s53")
    a("v_mul_u32_u24 v7, 160, v5\nv_lshl_add_u32 v7, v6, 3, v7\nv_add_u32 v7, s6, v7\nv_add_u32 v10, 36864, v7")
    a("v_lshrrev_b32 v15, 1, v6\nv_mul_u32_u24 v15, 18432, v15\nv_bfe_u32 v14, v1, 2, 3\nv_lshl_add_u32 v15, v14, 7, v15\nv_and_b32 v14, 3, v1\nv_lshl_add_u32 v15, v14, 3, v15")
    a("s_and_b32 s10, s3, 1\ns_mul_i32 s10, s10, 36864\ns_lshr_b32 s11, s3, 1\ns_lshl_b32 s11, s11, 10\ns_add_u32 s10, s10, s11\ns_add_u32 s10, s10, s53\ns_add_u32 s10, s10, 3072\nv_add_u32 v15, s10, v15")
    a(f"v_lshlrev_b32 v14, 4, v5\nv_add_u32 v14, {RM}, v14")
    a("s_add_u32 s8, s3, s52\ns_lshr_b32 s10, s8, 1\ns_lshl_b32 s10, s10, 10\ns_and_b32 s11, s8, 1\ns_lshl_b32 s11, s11, 3\ns_add_u32 s10, s10, s11")
    if kb4.ML_X: a(f"s_add_u32 s10, s10, {kb4.ML_X}")
    a("v_add_u32 v12, s10, v2\nv_add_u32 v13, 36864, v12")
    for m in range(4):
        a(f"ds_read_b64 {v(T+2*m,2)}, v{12+(m>>1)} offset:{18432*(m&1)}")
        a(f"ds_read_b64 {v(T+8+2*m,2)}, v{7 if m < 2 else 10} offset:{18432*(m&1)}")
        a(f"ds_read_b64_tr_b16 {v(T+16+2*m,2)}, v15 offset:{32*m}")
        a(f"ds_read_b128 {v(T+24+4*m,4)}, v14 offset:{256*m}")
    a(f"s_lshl_b32 s9, s8, 11\ns_add_u32 s9, s9, s54\ns_add_u32 s70, s9, {PART_OFF}\ns_lshl_b32 s9, s8, 5\ns_add_u32 s71, s9, s69\ns_add_u32 s65, s65, s55\ns_add_u32 s66, s65, 36864")
    a("v_lshrrev_b32 v5, 5, v1\nv_bfe_u32 v6, v1, 1, 4\nv_and_b32 v11, 1, v1")
    a("v_mul_u32_u24 v18, 18432, v5\nv_lshl_add_u32 v18, v11, 4, v18\nv_mul_u32_u24 v19, 160, v6\nv_add3_u32 v19, v19, v18, s6")
    a("v_mul_u32_u24 v6, 1152, v6\nv_add_u32 v18, v18, v6")
    def poll(ds):
        l = a.lab("FP"); d = a.lab("FD")
        a(f"s_mov_b32 s13, 0x40000\n{l}:")
        a(f"s_load_dwordx8 s[16:23], {s(P_WS,2)}, s71 glc\ns_waitcnt lgkmcnt(0)")
        for x in ds[1:]: a(f"s_and_b32 s{16+ds[0]}, s{16+ds[0]}, s{16+x}")
        a(f"s_cbranch_scc1 {d}\ns_sleep {optval('FSL', 1)}\ns_sub_u32 s13, s13, 1\ns_cbranch_scc0 {l}\n{d}:")
    def loads(ds, base):
        for i, d in enumerate(ds):
            a(f"s_sub_u32 s6, s4, {d}\ns_and_b32 s6, s6, 7\ns_mul_i32 s6, s6, {ACT}\ns_add_u32 s6, s6, s70")
            for mp in range(2): a(f"buffer_load_dwordx4 {v(base+8*i+4*mp,4)}, v2, s[56:59], s6 offen offset:{1024*mp} sc1")
    def accum(src, pk):
        for e in range(8): a(f"v_lshlrev_b32 v{T+2*e}, 16, v{src+e}\nv_and_b32 v{T+2*e+1}, 0xffff0000, v{src+e}")
        if pk:
            for e in range(0, 16, 2): a(f"v_pk_add_f32 {v(acc+e,2)}, {v(acc+e,2)}, {v(T+e,2)}")
        else:
            for e in range(16): a(f"v_add_f32 v{acc+e}, v{acc+e}, v{T+e}")
    a("s_waitcnt lgkmcnt(0)")
    for m in range(4): a(f"v_mov_b32 v{RR+m}, v{T+24+4*m}\nv_rcp_f32 v{T+24+4*m}, v{T+24+4*m}")
    for e in range(8):
        r = T + 24 + 4 * (e >> 1)
        a(f"v_lshlrev_b32 v{XV+2*e}, 16, v{T+8+e}\nv_and_b32 v{XV+2*e+1}, 0xffff0000, v{T+8+e}")
        a(f"v_lshlrev_b32 v{acc+2*e}, 16, v{T+e}\nv_and_b32 v{acc+2*e+1}, 0xffff0000, v{T+e}")
        a(f"v_lshlrev_b32 v{SV+2*e}, 16, v{T+16+e}\nv_and_b32 v{SV+2*e+1}, 0xffff0000, v{T+16+e}")
        a(f"v_fma_f32 v5, v{XV+2*e}, v{r+2}, v{r+3}\nv_fma_f32 v6, v{XV+2*e+1}, v{r+2}, v{r+3}")
        a(f"v_add_f32 v{acc+2*e}, v{acc+2*e}, v{r+1}\nv_add_f32 v{acc+2*e+1}, v{acc+2*e+1}, v{r+1}")
        a(f"v_mul_f32 v{SV+2*e}, v{SV+2*e}, v5\nv_mul_f32 v{SV+2*e+1}, v{SV+2*e+1}, v6")
        a(f"v_mul_f32 v{acc+2*e}, v{acc+2*e}, v{r}\nv_mul_f32 v{acc+2*e+1}, v{acc+2*e+1}, v{r}")
    a("s_waitcnt vmcnt(0)")
    flags(a, 3)
    a.stamp(8)
    poll((1, 2))
    loads((1, 2), PRE)
    a("s_waitcnt vmcnt(0)")
    for i in range(2): accum(PRE + 8 * i, False)
    a.stamp(9)
    own_pass()
    a("s_setprio 2")
    if "noprog" in OPT:
        L = (3, 4, 5, 6, 7)
        poll(L)
        a.stamp(10)
        loads(L, 32)
        for i in range(5):
            a(f"s_waitcnt vmcnt({8-2*i})")
            accum(32 + 8 * i, True)
    else:
        progressive(a, 71, lambda i, d: loads((d,), 32 + 8 * i))
        a.stamp(10)
        a("s_waitcnt vmcnt(0)")
        for i in range(5): accum(32 + 8 * i, True)
    for r in range(16): a(f"v_mul_f32 v{acc+r}, v{acc+r}, v{RR+(r>>2)}")
    for r in range(16): a(f"v_mul_f32 v{T+r}, {fh(-LOG2E)}, v{acc+r}")
    for r in range(16): a(f"v_exp_f32 v{T+r}, v{T+r}")
    for r in range(0, 16, 2): a(f"v_pk_mul_f32 {v(acc+r,2)}, {v(acc+r,2)}, {v(SV+r,2)}")
    for r in range(16): a(f"v_add_f32 v{T+r}, 1.0, v{T+r}")
    for r in range(16): a(f"v_rcp_f32 v{T+r}, v{T+r}")
    a("s_nop 0")
    for r in range(0, 16, 2): a(f"v_pk_fma_f32 {v(acc+r,2)}, {v(acc+r,2)}, {v(T+r,2)}, {v(XV+r,2)}")
    for e in range(8): a(f"v_cvt_pk_bf16_f32 v{T+16+e}, v{acc+2*e}, v{acc+2*e+1}")
    for m in range(4): a(f"ds_write_b64 v{7 if m < 2 else 10}, {v(T+16+2*m,2)} offset:{18432*(m&1)}")
    for mp in range(2): a(f"ds_read_b128 {v(T+24+4*mp,4)}, v19 offset:{36864*mp}")
    for mp in range(2):
        a(f"s_waitcnt lgkmcnt({1-mp})")
        a(f"buffer_store_dwordx4 {v(T+24+4*mp,4)}, v18, s[48:51], s{65+mp} offen")
```

```python
from common import *
import kb4
from kb4 import MACC, GT, VC, V1, fin_consts

VT = 24
STL = 44

def consts_b(a):
    a("s_mul_i32 s6, s4, 9\ns_lshr_b32 s6, s6, 1")
    a("s_and_b32 s7, s3, 3\ns_mul_i32 s8, s7, 3\ns_add_u32 s8, s8, 4\ns_mul_i32 s9, s7, 5\ns_add_u32 s9, s9, 16\ns_cmp_ge_u32 s3, 4\ns_cselect_b32 s8, s9, s8\ns_add_u32 s8, s8, s6")
    a("v_add_u32 v29, s8, v1\nv_subrev_u32 v5, 36, v29\nv_min_u32 v29, v29, v5")
    for i in range(5):
        a(f"s_add_u32 s9, s8, {i}")
        if i == 3: a("s_add_u32 s10, s6, s7\ns_cmp_lt_u32 s3, 4\ns_cselect_b32 s9, s10, s9")
        a(f"s_sub_u32 s10, s9, 36\ns_min_u32 s9, s9, s10\ns_lshl_b32 s{STL+i}, s9, 10\nv_add_u32 v{VT+i}, s{STL+i}, v2")
    a("v_lshl_add_u32 v5, v29, 1, 1\nv_mul_u32_u24 v5, 57, v5\nv_lshrrev_b32 v5, 9, v5\nv_subrev_u32 v5, s4, v5\nv_and_b32 v5, 7, v5\nv_lshlrev_b32 v5, 2, v5\nv_lshl_add_u32 v29, v29, 5, v5")
    a(f"s_mul_i32 s66, s4, {WSLICE}\ns_add_u32 s66, s66, {W4T_OFF}\ns_mov_b32 s68, s66")
    a(f"s_lshl_b32 s10, s4, 5\ns_add_u32 s10, s10, s5\ns_mul_i32 s67, s10, 73728\ns_add_u32 s67, s67, {PART_OFF}")
    a(f"s_mul_i32 s69, s5, 1152\ns_add_u32 s69, s69, {FT_OFF}")

def store_list(a, ts):
    o = []
    for t in ts:
        o.append(f"s_lshl_b32 s6, s{STL+t}, 1\ns_add_u32 s6, s6, s67")
        for mp in range(2): o += kb4.pstore(a, MACC, t, mp, 6, mp * 1024, 2 * t + mp)
    return o

def stores(a, nt, log=None):
    a.nop(8)
    for t in range(nt):
        a(f"s_lshl_b32 s6, s{STL+t}, 1\ns_add_u32 s6, s6, s67")
        for mp in range(2):
            for x in kb4.pstore(a, MACC, t, mp, 6, mp * 1024, 2 * t + mp): a(x)
            if log: log("e" if (t, mp) == (nt - 1, 1) else "x")

def flags(a, nt, lo=0):
    a(f"s_mov_b64 exec, {((1 << nt) - 1) & ~((1 << lo) - 1)}\nbuffer_store_dword v{V1}, v29, s[56:59], s69 offen sc1\ns_mov_b64 exec, -1")

def progressive(a, sf, issue, L=(3, 4, 5, 6, 7), once=False, init=True):
    l = a.lab("PG"); e = a.lab("PE")
    if init: a("s_mov_b32 s12, 0")
    a(f"s_mov_b32 s13, 0x40000\n{l}:")
    a(f"s_load_dwordx8 s[16:23], {s(P_WS,2)}, s{sf} glc\ns_waitcnt lgkmcnt(0)")
    for i, d in enumerate(L):
        n = a.lab("PN")
        a(f"s_lshl_b32 s7, s{16+d}, {i}\ns_andn2_b32 s7, s7, s12\ns_cbranch_scc0 {n}\ns_or_b32 s12, s12, s7")
        issue(i, d)
        a(f"{n}:")
    if not once:
        a(f"s_cmp_eq_u32 s12, {(1 << len(L)) - 1}\ns_cbranch_scc1 {e}\ns_sleep {optval('FSL', 1)}\ns_sub_u32 s13, s13, 1\ns_cbranch_scc0 {l}\n{e}:")

def ex_base(a, d):
    a(f"s_lshr_b32 s{d}, s4, 1\ns_lshl_b32 s{d}, s{d}, 3\ns_lshr_b32 s{d}, 0x060e0005, s{d}\ns_and_b32 s{d}, s{d}, 0xff\ns_lshl_b32 s{d}, s{d}, 10")
    a(f"s_and_b32 s7, s3, 3\ns_mul_i32 s7, s7, 18432\ns_add_u32 s{d}, s{d}, s7")

def final(a, cOwn, mid, role=None, own_acc=None):
    RM = kb4.RM
    U = lambda u: 32 + 64 * u
    PR, AC, X1, XV, SV, RAW = 0, 24, 32, 40, 48, 56
    T = 240
    TO = 224
    a.srd(48, P_OUT, ACT)
    a("s_and_b32 s60, s3, 3")
    fin_consts(a)
    a("v_and_b32 v5, 15, v1\nv_lshrrev_b32 v6, 4, v1")
    a("v_mul_u32_u24 v7, 160, v5\nv_lshl_add_u32 v7, v6, 3, v7\nv_add_u32 v7, s53, v7")
    a("v_lshrrev_b32 v8, 1, v6\nv_mul_u32_u24 v8, 18432, v8\nv_bfe_u32 v9, v1, 2, 3\nv_lshl_add_u32 v8, v9, 7, v8")
    a("v_and_b32 v9, 3, v1\nv_lshl_add_u32 v8, v9, 3, v8\nv_add_u32 v8, s53, v8\nv_add_u32 v8, 3072, v8")
    a(f"v_lshlrev_b32 v11, 4, v5\nv_add_u32 v11, {RM}, v11")
    a("v_lshrrev_b32 v5, 5, v1\nv_bfe_u32 v6, v1, 1, 4\nv_and_b32 v9, 1, v1")
    a("v_mul_u32_u24 v18, 18432, v5\nv_lshl_add_u32 v18, v9, 4, v18\nv_mul_u32_u24 v19, 160, v6\nv_add3_u32 v19, v19, v18, s53")
    a("v_mul_u32_u24 v6, 1152, v6\nv_add_u32 v18, v18, v6")
    a("s_cmp_lt_u32 s60, 2\ns_cselect_b32 s63, s62, 0")
    ex_base(a, 64)
    a("v_add_u32 v10, s64, v2")
    def opt(u, fn):
        if u < 2: fn(); return
        l = a.lab("FU")
        a(f"s_cmp_eq_u32 s63, 0\ns_cbranch_scc1 {l}")
        fn()
        a(f"{l}:")
    SO, SP, SF = (65, 66, 67), (68, 70, 71), (96, 97)
    def side(u):
        b = U(u)
        if u < 2: a(f"s_mov_b32 s6, s60\ns_mov_b32 s7, {u}")
        else: a("s_mov_b32 s6, 4\ns_mov_b32 s7, s60")
        a("s_add_u32 s8, s6, s52\ns_mul_i32 s9, s7, 36864")
        a("s_lshr_b32 s10, s8, 1\ns_lshl_b32 s10, s10, 10\ns_and_b32 s11, s8, 1\ns_lshl_b32 s11, s11, 3\ns_add_u32 s10, s10, s11\ns_add_u32 s10, s10, s9")
        if kb4.ML_X: a(f"s_add_u32 s10, s10, {kb4.ML_X}")
        a("v_add_u32 v12, s10, v2")
        a(f"s_lshl_b32 s10, s6, 5\ns_add_u32 s{SO[u]}, s10, s9\nv_add_u32 v13, s{SO[u]}, v7")
        a("s_lshl_b32 s10, s7, 9\nv_add_u32 v14, s10, v11")
        a("s_and_b32 s10, s6, 1\ns_mul_i32 s10, s10, 36864\ns_lshr_b32 s11, s6, 1\ns_lshl_b32 s11, s11, 10\ns_add_u32 s10, s10, s11\ns_lshl_b32 s11, s7, 6\ns_add_u32 s10, s10, s11")
        a("v_add_u32 v15, s10, v8")
        for mt in range(2):
            a(f"ds_read_b64 {v(T+2*mt,2)}, v12 offset:{18432*mt}")
            a(f"ds_read_b64 {v(T+4+2*mt,2)}, v13 offset:{18432*mt}")
            a(f"ds_read_b128 {v(b+RAW+4*mt,4)}, v14 offset:{256*mt}")
            a(f"ds_read_b64_tr_b16 {v(T+8+2*mt,2)}, v15 offset:{32*mt}")
        a(f"s_lshl_b32 s9, s8, 11\ns_lshl_b32 s11, s7, 10\ns_add_u32 s9, s9, s11\ns_add_u32 s9, s9, s54\ns_add_u32 s{SP[u]}, s9, {PART_OFF}")
        if u != 1: a(f"s_lshl_b32 s9, s8, 5\ns_add_u32 s{SF[u>>1]}, s9, s69")
        a("s_waitcnt lgkmcnt(0)")
        for e in range(4):
            r = b + RAW + 4 * (e >> 1)
            a(f"v_lshlrev_b32 v{b+XV+2*e}, 16, v{T+4+e}\nv_and_b32 v{b+XV+2*e+1}, 0xffff0000, v{T+4+e}")
            a(f"v_lshlrev_b32 v{b+X1+2*e}, 16, v{T+e}\nv_and_b32 v{b+X1+2*e+1}, 0xffff0000, v{T+e}")
            a(f"v_lshlrev_b32 v{b+SV+2*e}, 16, v{T+8+e}\nv_and_b32 v{b+SV+2*e+1}, 0xffff0000, v{T+8+e}")
            a(f"v_fma_f32 v{T+12}, v{b+XV+2*e}, v{r+2}, v{r+3}\nv_fma_f32 v{T+13}, v{b+XV+2*e+1}, v{r+2}, v{r+3}")
            a(f"v_add_f32 v{b+X1+2*e}, v{b+X1+2*e}, v{r+1}\nv_add_f32 v{b+X1+2*e+1}, v{b+X1+2*e+1}, v{r+1}")
            a(f"v_mul_f32 v{b+SV+2*e}, v{b+SV+2*e}, v{T+12}\nv_mul_f32 v{b+SV+2*e+1}, v{b+SV+2*e+1}, v{T+13}")
        for e in range(8): a(f"v_mov_b32 v{b+AC+e}, " + ("0" if role != "P" else f"v{own_acc+8*u+e}"))
    def poll(sf, ds):
        l = a.lab("FP"); d = a.lab("FD")
        a(f"s_mov_b32 s13, 0x40000\n{l}:")
        a(f"s_load_dwordx8 s[16:23], {s(P_WS,2)}, s{sf} glc\ns_waitcnt lgkmcnt(0)")
        for x in ds[1:]: a(f"s_and_b32 s{16+ds[0]}, s{16+ds[0]}, s{16+x}")
        a(f"s_cbranch_scc1 {d}\ns_sleep {optval('FSL', 1)}\ns_sub_u32 s13, s13, 1\ns_cbranch_scc0 {l}\n{d}:")
    def loads(u, ds, i0=0):
        for i, d in enumerate(ds, i0):
            a(f"s_sub_u32 s6, s4, {d}\ns_and_b32 s6, s6, 7\ns_mul_i32 s6, s6, {ACT}\ns_add_u32 s6, s6, s{SP[u]}")
            a(f"buffer_load_dwordx4 {v(U(u)+PR+4*i,4)}, v2, s[56:59], s6 offen sc1")
    def accum(u, n, pk=False, src=None):
        b = U(u)
        if src is None: src = b + PR
        for i in range(n):
            for e in range(4): a(f"v_lshlrev_b32 v{T+2*e}, 16, v{src+4*i+e}\nv_and_b32 v{T+2*e+1}, 0xffff0000, v{src+4*i+e}")
            if pk:
                for e in range(0, 8, 2): a(f"v_pk_add_f32 {v(b+AC+e,2)}, {v(b+AC+e,2)}, {v(T+e,2)}")
            else:
                for e in range(8): a(f"v_add_f32 v{b+AC+e}, v{b+AC+e}, v{T+e}")
    def finish(us):
        for u in us:
            for r in range(8): a(f"v_fma_f32 v{U(u)+AC+r}, v{U(u)+AC+r}, v{U(u)+RAW+4*(r>>2)}, v{U(u)+X1+r}")
        for op in range(6):
            for u in us:
                b = U(u); t = b + PR
                for r in range(8):
                    a([f"v_mul_f32 v{t+r}, {fh(-LOG2E)}, v{b+AC+r}", f"v_exp_f32 v{t+r}, v{t+r}", f"v_add_f32 v{t+r}, 1.0, v{t+r}", f"v_rcp_f32 v{t+r}, v{t+r}",
                       f"v_mul_f32 v{b+AC+r}, v{b+AC+r}, v{b+SV+r}", f"v_fma_f32 v{b+AC+r}, v{b+AC+r}, v{t+r}, v{b+XV+r}"][op])
        for u in us:
            b = U(u)
            for e in range(4): a(f"v_cvt_pk_bf16_f32 v{b+PR+8+e}, v{b+AC+2*e}, v{b+AC+2*e+1}")
            a(f"v_add_u32 v13, s{SO[u]}, v7\nv_add_u32 v20, s{SO[u]}, v19\ns_add_u32 s{SO[u]}, s{SO[u]}, s55")
            for mt in range(2): a(f"ds_write_b64 v13, {v(b+PR+8+2*mt,2)} offset:{18432*mt}")
            a(f"ds_read_b128 {v(b+PR+12,4)}, v20")
        a("s_waitcnt lgkmcnt(0)")
        for u in us: a(f"buffer_store_dwordx4 {v(U(u)+PR+12,4)}, v18, s[48:51], s{SO[u]} offen" + os.environ.get("OFL", ""))
    if role == "P":
        E, L = (1, 2), (3, 4, 5, 6, 7)
        side(0); side(1)
        a.stamp(8)
        poll(SF[0], E)
        loads(0, E); loads(1, E)
        a("s_waitcnt vmcnt(0)")
        for u in range(2): accum(u, 2, True)
        a.stamp(9)
        poll(SF[0], L)
        a.stamp(10)
        loads(0, L); loads(1, L)
        a("s_waitcnt vmcnt(5)")
        accum(0, 5, True)
        a("s_waitcnt vmcnt(0)")
        accum(1, 5, True)
        finish([0, 1])
        return
    if role == "Q":
        side(2)
        mid()
        poll(SF[1], (0, 1, 2))
        for i, d in enumerate((0, 1, 2)):
            a(f"s_sub_u32 s6, s4, {d}\ns_and_b32 s6, s6, 7\ns_mul_i32 s6, s6, {ACT}\ns_add_u32 s6, s6, s{SP[2]}")
            a(f"buffer_load_dwordx4 {v(32+4*i,4)}, v2, s[56:59], s6 offen sc1")
        progressive(a, SF[1], lambda i, d: loads(2, (d,), i))
        a("s_waitcnt vmcnt(0)")
        accum(2, 3, True, 32)
        accum(2, 5, True)
        finish([2])
        return
    if "pfirst" in OPT: E, L, E2, L2 = (1, 2), (3, 4, 5, 6, 7), (0, 1, 2), (3, 4, 5, 6, 7)
    else: E, L, E2, L2 = (4, 5, 6, 7), (1, 2, 3), (4, 5, 6, 7), (0, 1, 2, 3)
    if "pfirst" in OPT:
        side(0); side(1)
        opt(2, lambda: side(2))
        mid()
    else:
        side(0)
        mid()
        side(1)
        opt(2, lambda: side(2))
    a.stamp(1)
    poll(SF[0], E)
    loads(0, E); loads(1, E)
    opt(2, lambda: (poll(SF[1], E2), loads(2, E2)))
    a("s_lshl_b32 s6, s60, 2")
    a(f"v_add_u32 v21, s6, v{VC}")
    def own():
        a.ldswait(21, 5, 7, 1, cOwn)
        for i in range(4): a(f"ds_read_b128 {v(TO+4*i,4)}, v10 offset:{1024*i}")
        a("s_waitcnt lgkmcnt(0)")
        for u in range(2):
            for e in range(8): a(f"v_add_f32 v{U(u)+AC+e}, v{U(u)+AC+e}, v{TO+8*u+e}")
    a("s_waitcnt vmcnt(0)")
    for u in range(3): opt(u, lambda: accum(u, len(E) if u < 2 else len(E2)))
    a.stamp(8)
    a(f"s_setprio {optval('QL', 2)}")
    poll(SF[0], L)
    a.stamp(6)
    loads(0, L); loads(1, L)
    opt(2, lambda: (poll(SF[1], L2), loads(2, L2)))
    own()
    a("s_waitcnt vmcnt(0)")
    a.stamp(9)
    for u in range(2): accum(u, len(L), True)
    finish([0, 1])
    opt(2, lambda: (accum(2, len(L2), True), finish([2])))

def p_final(a, acc, own_pass, cQ):
    RM = kb4.RM
    XV, SV, RR, T, PRE = 168, 184, 20, 216, 104
    a.srd(48, P_OUT, ACT)
    a("v_and_b32 v5, 15, v1\nv_lshrrev_b32 v6, 4, v1")
    a("s_lshl_b32 s65, s3, 5\ns_add_u32 s6, s65, s53")
    a("v_mul_u32_u24 v7, 160, v5\nv_lshl_add_u32 v7, v6, 3, v7\nv_add_u32 v7, s6, v7\nv_add_u32 v10, 36864, v7")
    a("v_lshrrev_b32 v15, 1, v6\nv_mul_u32_u24 v15, 18432, v15\nv_bfe_u32 v14, v1, 2, 3\nv_lshl_add_u32 v15, v14, 7, v15\nv_and_b32 v14, 3, v1\nv_lshl_add_u32 v15, v14, 3, v15")
    a("s_and_b32 s10, s3, 1\ns_mul_i32 s10, s10, 36864\ns_lshr_b32 s11, s3, 1\ns_lshl_b32 s11, s11, 10\ns_add_u32 s10, s10, s11\ns_add_u32 s10, s10, s53\ns_add_u32 s10, s10, 3072\nv_add_u32 v15, s10, v15")
    a(f"v_lshlrev_b32 v14, 4, v5\nv_add_u32 v14, {RM}, v14")
    a("s_add_u32 s8, s3, s52\ns_lshr_b32 s10, s8, 1\ns_lshl_b32 s10, s10, 10\ns_and_b32 s11, s8, 1\ns_lshl_b32 s11, s11, 3\ns_add_u32 s10, s10, s11")
    if kb4.ML_X: a(f"s_add_u32 s10, s10, {kb4.ML_X}")
    a("v_add_u32 v12, s10, v2\nv_add_u32 v13, 36864, v12")
    for m in range(4):
        a(f"ds_read_b64 {v(T+2*m,2)}, v{12+(m>>1)} offset:{18432*(m&1)}")
        a(f"ds_read_b64 {v(T+8+2*m,2)}, v{7 if m < 2 else 10} offset:{18432*(m&1)}")
        a(f"ds_read_b64_tr_b16 {v(T+16+2*m,2)}, v15 offset:{32*m}")
        a(f"ds_read_b128 {v(T+24+4*m,4)}, v14 offset:{256*m}")
    a(f"s_lshl_b32 s9, s8, 11\ns_add_u32 s9, s9, s54\ns_add_u32 s70, s9, {PART_OFF}\ns_lshl_b32 s9, s8, 5\ns_add_u32 s71, s9, s69\ns_add_u32 s65, s65, s55\ns_add_u32 s66, s65, 36864")
    a("v_lshrrev_b32 v5, 5, v1\nv_bfe_u32 v6, v1, 1, 4\nv_and_b32 v11, 1, v1")
    a("v_mul_u32_u24 v18, 18432, v5\nv_lshl_add_u32 v18, v11, 4, v18\nv_mul_u32_u24 v19, 160, v6\nv_add3_u32 v19, v19, v18, s6")
    a("v_mul_u32_u24 v6, 1152, v6\nv_add_u32 v18, v18, v6")
    def poll(ds):
        l = a.lab("FP"); d = a.lab("FD")
        a(f"s_mov_b32 s13, 0x40000\n{l}:")
        a(f"s_load_dwordx8 s[16:23], {s(P_WS,2)}, s71 glc\ns_waitcnt lgkmcnt(0)")
        for x in ds[1:]: a(f"s_and_b32 s{16+ds[0]}, s{16+ds[0]}, s{16+x}")
        a(f"s_cbranch_scc1 {d}\ns_sleep {optval('FSL', 1)}\ns_sub_u32 s13, s13, 1\ns_cbranch_scc0 {l}\n{d}:")
    def loads(ds, base):
        for i, d in enumerate(ds):
            a(f"s_sub_u32 s6, s4, {d}\ns_and_b32 s6, s6, 7\ns_mul_i32 s6, s6, {ACT}\ns_add_u32 s6, s6, s70")
            for mp in range(2): a(f"buffer_load_dwordx4 {v(base+8*i+4*mp,4)}, v2, s[56:59], s6 offen offset:{1024*mp} sc1")
    def accum(src, pk):
        for e in range(8): a(f"v_lshlrev_b32 v{T+2*e}, 16, v{src+e}\nv_and_b32 v{T+2*e+1}, 0xffff0000, v{src+e}")
        if pk:
            for e in range(0, 16, 2): a(f"v_pk_add_f32 {v(acc+e,2)}, {v(acc+e,2)}, {v(T+e,2)}")
        else:
            for e in range(16): a(f"v_add_f32 v{acc+e}, v{acc+e}, v{T+e}")
    a("s_waitcnt lgkmcnt(0)")
    for m in range(4): a(f"v_mov_b32 v{RR+m}, v{T+24+4*m}\nv_rcp_f32 v{T+24+4*m}, v{T+24+4*m}")
    for e in range(8):
        r = T + 24 + 4 * (e >> 1)
        a(f"v_lshlrev_b32 v{XV+2*e}, 16, v{T+8+e}\nv_and_b32 v{XV+2*e+1}, 0xffff0000, v{T+8+e}")
        a(f"v_lshlrev_b32 v{acc+2*e}, 16, v{T+e}\nv_and_b32 v{acc+2*e+1}, 0xffff0000, v{T+e}")
        a(f"v_lshlrev_b32 v{SV+2*e}, 16, v{T+16+e}\nv_and_b32 v{SV+2*e+1}, 0xffff0000, v{T+16+e}")
        a(f"v_fma_f32 v5, v{XV+2*e}, v{r+2}, v{r+3}\nv_fma_f32 v6, v{XV+2*e+1}, v{r+2}, v{r+3}")
        a(f"v_add_f32 v{acc+2*e}, v{acc+2*e}, v{r+1}\nv_add_f32 v{acc+2*e+1}, v{acc+2*e+1}, v{r+1}")
        a(f"v_mul_f32 v{SV+2*e}, v{SV+2*e}, v5\nv_mul_f32 v{SV+2*e+1}, v{SV+2*e+1}, v6")
        a(f"v_mul_f32 v{acc+2*e}, v{acc+2*e}, v{r}\nv_mul_f32 v{acc+2*e+1}, v{acc+2*e+1}, v{r}")
    a("s_waitcnt vmcnt(0)")
    flags(a, 3)
    a.stamp(8)
    if "blk" in OPT:
        poll((1, 2))
        loads((1, 2), PRE)
        a("s_waitcnt vmcnt(0)")
        for i in range(2): accum(PRE + 8 * i, False)
        a.stamp(9)
        own_pass()
        a("s_setprio 2")
        if "noprog" in OPT:
            L = (3, 4, 5, 6, 7)
            poll(L)
            a.stamp(10)
            loads(L, 32)
            for i in range(5):
                a(f"s_waitcnt vmcnt({8-2*i})")
                accum(32 + 8 * i, True)
        else:
            progressive(a, 71, lambda i, d: loads((d,), 32 + 8 * i))
            a.stamp(10)
            a("s_waitcnt vmcnt(0)")
            for i in range(5): accum(32 + 8 * i, True)
    else:
        dst = lambda i: (T + 24 + 8 * i) if i < 2 else 32 + 8 * (i - 2)
        a("s_mov_b32 s12, 0\nPF_l:")
        a(f"ds_read_b32 v5, v{VC} offset:{cQ}")
        a("s_cmp_eq_u32 s12, 3\ns_cbranch_scc1 PF_s")
        progressive(a, 71, lambda i, d: loads((d,), dst(i)), (1, 2), once=True, init=False)
        a(f"PF_s:\ns_waitcnt lgkmcnt(0)\nv_readfirstlane_b32 s7, v5\ns_cmp_ge_u32 s7, {optval('QW', 4)}\ns_cbranch_scc1 PF_e\ns_sleep 1\ns_branch PF_l\nPF_e:")
        a.stamp(9)
        own_pass()
        a("s_setprio 2")
        progressive(a, 71, lambda i, d: loads((d,), dst(i)), (1, 2, 3, 4, 5, 6, 7), init=False)
        a.stamp(10)
        a("s_waitcnt vmcnt(0)")
        for i in range(7): accum(dst(i), True)
    for r in range(16): a(f"v_mul_f32 v{acc+r}, v{acc+r}, v{RR+(r>>2)}")
    for r in range(16): a(f"v_mul_f32 v{T+r}, {fh(-LOG2E)}, v{acc+r}")
    for r in range(16): a(f"v_exp_f32 v{T+r}, v{T+r}")
    for r in range(0, 16, 2): a(f"v_pk_mul_f32 {v(acc+r,2)}, {v(acc+r,2)}, {v(SV+r,2)}")
    for r in range(16): a(f"v_add_f32 v{T+r}, 1.0, v{T+r}")
    for r in range(16): a(f"v_rcp_f32 v{T+r}, v{T+r}")
    a("s_nop 0")
    for r in range(0, 16, 2): a(f"v_pk_fma_f32 {v(acc+r,2)}, {v(acc+r,2)}, {v(T+r,2)}, {v(XV+r,2)}")
    for e in range(8): a(f"v_cvt_pk_bf16_f32 v{T+16+e}, v{acc+2*e}, v{acc+2*e+1}")
    for m in range(4): a(f"ds_write_b64 v{7 if m < 2 else 10}, {v(T+16+2*m,2)} offset:{18432*(m&1)}")
    for mp in range(2): a(f"ds_read_b128 {v(T+24+4*mp,4)}, v19 offset:{36864*mp}")
    for mp in range(2):
        a(f"s_waitcnt lgkmcnt({1-mp})")
        a(f"buffer_store_dwordx4 {v(T+24+4*mp,4)}, v18, s[48:51], s{65+mp} offen")
```
